```python
import torch

def _softmax(x, axis=-1):
    return torch.softmax(x, dim=axis)
def _gelu(x):
    return torch.nn.functional.gelu(x, approximate="tanh")
def _silu(x):
    return torch.nn.functional.silu(x)
def _sigmoid(x):
    return torch.sigmoid(x)
def _layernorm(x, axis=-1, eps=1e-5):
    m = x.mean(dim=axis, keepdim=True)
    v = x.var(dim=axis, keepdim=True, unbiased=False)
    return (x - m) / torch.sqrt(v + eps)
def _scatter_add(tgt, idx, src, axis=0):
    return tgt.clone().index_add_(axis, idx, src)
def _segment_sum(src, seg, n):
    out = torch.zeros((n,) + src.shape[1:], dtype=src.dtype)
    return out.index_add_(0, seg, src)
def _pad(x, pw):
    flat = tuple(v for pair in reversed(pw) for v in pair)
    return torch.nn.functional.pad(x, flat)

kernel_name = 'interleave_layers__gqa_block_cached__glu_gated_reglu__decode'

def setup_inputs():

    _w = (lambda a: (lambda t: t.to(torch.bfloat16) if t.is_floating_point() else t)(torch.as_tensor(a)))
    def _A_setup():
        B, Sq, D = 1, 1, 576
        Hq, Hkv, Sk, Dh = 32, 16, 65536, 128
        assert Hq % Hkv == 0, (Hq, Hkv)
        return {
            "x": _w((lambda *s: torch.randn(*s, dtype=torch.bfloat16) * 0.05)(B, Sq, D)),
            "k_cache": _w((lambda *s: torch.randn(*s, dtype=torch.bfloat16) * 0.8)(B, Hkv, Sk, Dh)),
            "v_cache": _w((lambda *s: torch.randn(*s, dtype=torch.bfloat16) * 1.6)(B, Hkv, Sk, Dh)),
            "wq": _w((lambda *s: torch.randn(*s, dtype=torch.bfloat16) * 0.8)(D, Hq * Dh) * (D ** -0.5)),
            "wo": _w((lambda *s: torch.randn(*s, dtype=torch.bfloat16) * 1.6)(Hq * Dh, D) * ((Hq * Dh) ** -0.5)),
        }
    _A_in = _A_setup()

    def _B_setup():
        B, S, D, F = 1, 1, 576, 4608
        return {
            "x": _w((lambda *s: torch.randn(*s, dtype=torch.bfloat16) * 0.05)(B, S, D)),
            "W_gate": _w((lambda *s: torch.randn(*s, dtype=torch.bfloat16) * 0.4)(D, F) * (2.0 / D) ** 0.5),
            "W_up": _w((lambda *s: torch.randn(*s, dtype=torch.bfloat16) * 0.4)(D, F) * (2.0 / D) ** 0.5),
            "W_down": _w((lambda *s: torch.randn(*s, dtype=torch.bfloat16) * 0.4)(F, D) * (1.0 / F) ** 0.5),
        }
    _B_in = _B_setup()

    return {
        "A_x": _A_in["x"],
        "A_k_cache": _A_in["k_cache"],
        "A_v_cache": _A_in["v_cache"],
        "A_wq": _A_in["wq"],
        "A_wo": _A_in["wo"],
        "B_x": _B_in["x"],
        "B_W_gate": _B_in["W_gate"],
        "B_W_up": _B_in["W_up"],
        "B_W_down": _B_in["W_down"],
    }

def reference(A_x, A_k_cache, A_v_cache, A_wq, A_wo, B_x, B_W_gate, B_W_up, B_W_down):
    def _A_ref(x, k_cache, v_cache, wq, wo):
        B, Sq, D = x.shape
        Hq, Dh = 32, 128
        Hkv = k_cache.shape[1]
        rep = Hq // Hkv
        q = (lambda x, *d: x.permute(*d))((x @ wq).reshape(B, Sq, Hq, Dh), 0, 2, 1, 3)
        k = (lambda x, n, axis: torch.repeat_interleave(x, n, dim=axis))(k_cache, rep, axis=1)
        v = (lambda x, n, axis: torch.repeat_interleave(x, n, dim=axis))(v_cache, rep, axis=1)
        scores = torch.einsum("bhqd,bhkd->bhqk", q, k) * (Dh ** -0.5)
        p = _softmax(scores, axis=-1)
        o = torch.einsum("bhqk,bhkd->bhqd", p, v)
        return (lambda x, *d: x.permute(*d))(o, 0, 2, 1, 3).reshape(B, Sq, Hq * Dh) @ wo

    def _B_ref(x, W_gate, W_up, W_down):
        gate = torch.einsum("bsd,df->bsf", x, W_gate)
        up = torch.einsum("bsd,df->bsf", x, W_up)
        gate = gate * (lambda x, dt: x.to(dt))(gate > 0, gate.dtype)
        h = gate * up
        return torch.einsum("bsf,fd->bsd", h, W_down)

    x = A_x
    x = x + _A_ref(_layernorm(x, axis=-1), A_k_cache, A_v_cache, A_wq, A_wo)
    x = x + _B_ref(_layernorm(x, axis=-1), B_W_gate, B_W_up, B_W_down)
    x = x + _A_ref(_layernorm(x, axis=-1), A_k_cache, A_v_cache, A_wq, A_wo)
    x = x + _B_ref(_layernorm(x, axis=-1), B_W_gate, B_W_up, B_W_down)
    return x
```

```python
import re

_REG = re.compile(r"^(-|abs\()?([vas])(\d+)\)?$")
_RNG = re.compile(r"^([vas])\[(\d+):(\d+)\]$")
TRANS = ("v_exp_f32", "v_rcp_f32", "v_sqrt_f32", "v_rsq_f32", "v_log_f32")


def regs_of(op):
    op = op.strip()
    if op in ("vcc", "exec"):
        return [op]
    m = _REG.match(op)
    if m:
        return [m.group(2) + m.group(3)]
    m = _RNG.match(op)
    if m:
        return [m.group(1) + str(i) for i in range(int(m.group(2)), int(m.group(3)) + 1)]
    return []


def split_ops(s):
    out, depth, cur = [], 0, ""
    for ch in s:
        if ch in "[(":
            depth += 1
        if ch in "])":
            depth -= 1
        if ch == "," and depth == 0:
            out.append(cur.strip())
            cur = ""
        else:
            cur += ch
    if cur.strip():
        out.append(cur.strip())
    return out


class Asm:
    def __init__(self):
        self.lines = []
        self.pos = 0
        self.lw = {}
        self.srcc = {}
        self.wst = {}
        self.vq = []
        self.uid = 0

    def raw(self, s):
        self.lines.append(s)

    def comment(self, s):
        self.lines.append("    ; " + s)

    def label(self, name):
        self.fence()
        self.lines.append(name + ":")

    def newlabel(self, base):
        self.uid += 1
        return f"L{base}_{self.uid}"

    def nop(self, n):
        while n > 0:
            k = min(n, 16)
            self.lines.append(f"    s_nop {k-1}")
            self.pos += k
            n -= k

    def fence(self):
        need = 0
        for r, (cls, p, _) in self.lw.items():
            d = self.pos - p - 1
            lim = {"MFMA": 8, "VALU": 2, "TRANS": 2, "VSGPR": 5}.get(cls, 0)
            need = max(need, lim - d)
        for r, p in self.srcc.items():
            need = max(need, 3 - (self.pos - p - 1))
        for r, p in self.wst.items():
            need = max(need, 2 - (self.pos - p - 1))
        if need > 0:
            self.nop(need)
        self.lw.clear()
        self.srcc.clear()
        self.wst.clear()

    def __call__(self, text, tag=None):
        for line in text.strip().split("\n"):
            line = line.strip()
            if line:
                self._one(line, tag)

    def _one(self, line, tag):
        sp = line.split(None, 1)
        mn = sp[0]
        rest = sp[1] if len(sp) > 1 else ""
        ops = split_ops(rest)
        if ops:
            last = ops[-1].split()
            ops[-1] = last[0]
            mods = last[1:]
        else:
            mods = []
        reads, writes, cls = [], [], "SALU"
        srcc = []
        wide_store = []
        if mn.startswith("v_mfma"):
            cls = "MFMA"
            writes = regs_of(ops[0])
            reads = regs_of(ops[1]) + regs_of(ops[2])
            srcc = regs_of(ops[3])
        elif mn.startswith("v_permlane"):
            cls = "PERM"
            writes = regs_of(ops[0]) + regs_of(ops[1])
            reads = list(writes)
        elif mn.startswith("v_readfirstlane") or mn.startswith("v_readlane"):
            cls = "RDLANE"
            writes = regs_of(ops[0])
            reads = sum((regs_of(o) for o in ops[1:]), [])
        elif mn.startswith("v_cmp"):
            cls = "VCMP"
            writes = regs_of(ops[0])
            reads = sum((regs_of(o) for o in ops[1:]), [])
        elif mn.startswith("v_"):
            cls = "DPP" if "_dpp" in mn else ("TRANS" if mn in TRANS else "VALU")
            writes = regs_of(ops[0])
            reads = sum((regs_of(o) for o in ops[1:]), [])
            if mn.startswith("v_fmac") or mn.startswith("v_dot2c") or cls == "DPP":
                reads += writes
            assert "_co_" not in mn
        elif mn.startswith("buffer_load"):
            cls = "VMEM"
            writes = regs_of(ops[0])
            reads = sum((regs_of(o) for o in ops[1:]), [])
        elif mn.startswith("buffer_store") or mn.startswith("buffer_atomic"):
            cls = "VMEM"
            reads = sum((regs_of(o) for o in ops), [])
            if "x3" in mn or "x4" in mn:
                wide_store = regs_of(ops[0])
        elif mn.startswith("ds_read"):
            cls = "DS"
            writes = regs_of(ops[0])
            reads = sum((regs_of(o) for o in ops[1:]), [])
        elif mn.startswith("ds_write"):
            cls = "DS"
            reads = sum((regs_of(o) for o in ops), [])
        elif mn.startswith("s_"):
            cls = "SALU"
            if ops and not mn.startswith(("s_cmp", "s_cbranch", "s_branch", "s_waitcnt", "s_nop", "s_sleep",
                                          "s_barrier", "s_setpc", "s_endpgm", "s_bitcmp", "s_setprio")):
                writes = regs_of(ops[0])
                if "saveexec" in mn:
                    writes = writes + ["exec"]
            reads = sum((regs_of(o) for o in ops[1:]), [])
        else:
            raise ValueError("unknown instr " + line)

        isvalu = cls in ("VALU", "DPP", "TRANS", "PERM", "RDLANE", "VCMP")
        need = 0

        def dist(p):
            return self.pos - p - 1

        for r in reads + srcc:
            if r not in self.lw:
                continue
            c, p, tup = self.lw[r]
            n = 0
            if c in ("VALU", "TRANS"):
                if cls in ("DPP", "MFMA", "PERM"):
                    n = 2
                elif cls == "RDLANE":
                    n = 1
                if c == "TRANS" and cls != "TRANS":
                    n = max(n, 1)
            elif c == "MFMA":
                if cls == "MFMA" and r in srcc and r not in reads:
                    n = 0 if tuple(srcc) == tup else 6
                else:
                    n = 8
            elif c == "VSGPR":
                if isvalu:
                    n = 4 if cls == "RDLANE" else 2
                elif cls == "VMEM":
                    n = 5
                elif cls == "SALU":
                    n = 1
            need = max(need, n - dist(p))
        for r in writes:
            if r in self.lw:
                c, p, tup = self.lw[r]
                if c == "MFMA" and cls != "MFMA":
                    need = max(need, 8 - dist(p))
            if r in self.srcc and cls != "MFMA":
                need = max(need, 3 - dist(self.srcc[r]))
            if r in self.wst:
                need = max(need, 2 - dist(self.wst[r]))
        if mn.startswith(("s_cbranch", "s_branch", "s_setpc", "s_call", "s_swappc")):
            self.fence()
        elif need > 0:
            self.nop(need)

        self.lines.append("    " + line)
        for r in writes:
            if cls == "MFMA":
                self.lw[r] = ("MFMA", self.pos, tuple(writes))
            elif cls in ("RDLANE", "VCMP"):
                self.lw[r] = ("VSGPR", self.pos, None)
            elif cls == "TRANS":
                self.lw[r] = ("TRANS", self.pos, None)
            elif isvalu:
                self.lw[r] = ("VALU", self.pos, None)
            else:
                self.lw.pop(r, None)
        for r in srcc:
            self.srcc[r] = self.pos
        for r in wide_store:
            self.wst[r] = self.pos
        if mn == "s_nop":
            self.pos += int(ops[0]) + 1
        else:
            self.pos += 1
        if cls == "VMEM":
            self.vq.append(tag)

    def wait_vm(self, tag, floor=0):
        idx = max(i for i, t in enumerate(self.vq) if t == tag)
        n = len(self.vq) - 1 - idx
        n = min(n, 63)
        assert n >= floor, (tag, n, floor)
        self(f"s_waitcnt vmcnt({n})")
        self.vq = self.vq[len(self.vq) - n:] if n > 0 else []

    def wait_vm_n(self, n):
        self(f"s_waitcnt vmcnt({n})")
        if len(self.vq) > n:
            self.vq = self.vq[len(self.vq) - n:] if n > 0 else []

    def text(self):
        return "\n".join(self.lines) + "\n"
```

```python
import sys, struct, math
from asmlib import Asm

NAME = "interleave_layers__gqa_block_cached__glu_gated_reglu__decode"
OPT = dict(stamps=0, p2rev=0, kvpol="nt", wpol="nt")
for arg in sys.argv[2:]:
    k, v = arg.split("=")
    OPT[k] = int(v) if v.lstrip("-").isdigit() else v
STAMPS = OPT["stamps"]
KVPOL = "" if OPT["kvpol"] == "def" else " " + OPT["kvpol"]
WPOL = "" if OPT["wpol"] == "def" else " " + OPT["wpol"]


def f32(x):
    return "0x%08x" % struct.unpack("<I", struct.pack("<f", x))[0]


X0 = 0x1000
X5 = 0x5000
LB0 = 0x10000
LSTRIDE = 0x60000
X1 = 0x0
X1S = 1152
X2 = 0x48000
X3 = 0x51000
X4 = 0x54000
STAMP_OFF = 0x100000
WS_SIZE = 0x200000
WQ = 0
WO = 18432
WGU = 43008
TS = 18560
WD = 98688
KS = 9248
XBUF = 135680
XN = 137984
CB1 = 142592
CS1 = 146688
CB2 = 146752
CS2 = 150848
OB = 150912
FB = 151424
LDS_SIZE = 151552

UNIT_STEP = 524288
DPPM = " row_mask:0xf bank_mask:0xf"
a = Asm()
stamp_n = [0]


def stamp(i):
    if not STAMPS:
        return
    a("s_memrealtime s[58:59]")
    a("s_waitcnt lgkmcnt(0)")
    lab = a.newlabel("st")
    a(f"s_mov_b32 s{64+12+i}, s58")
    a("s_cmp_eq_u32 s31, 0")
    a(f"s_cbranch_scc0 {lab}")
    a(f"s_mov_b32 s{64+i}, s58")
    a.label(lab)


def R(kind, base, n=4):
    return f"{kind}[{base}:{base+n-1}]"


def srd(d, lo, hi, size):
    a(f"s_mov_b32 s{d}, s{lo}")
    a(f"s_and_b32 s{d+1}, s{hi}, 0xffff")
    a(f"s_mov_b32 s{d+2}, {size}")
    a(f"s_mov_b32 s{d+3}, 0x20000")


def srd_role(d, lo, hi, size):
    a(f"s_cselect_b32 s{d+2}, {size}, 0")
    a(f"s_mov_b32 s{d}, s{lo}")
    a(f"s_and_b32 s{d+1}, s{hi}, 0xffff")
    a(f"s_mov_b32 s{d+3}, 0x20000")


def ldK(kind, base, t, tag):
    a(f"buffer_load_dwordx4 {R(kind, base+4*t)}, v2, s[4:7], s{32+(t>>2)} offen offset:{(t&3)*1024}{KVPOL}", tag=(tag, "K", t))


def ldV(kind, base, t, tag):
    a(f"buffer_load_dwordx4 {R(kind, base+32+4*t)}, v3, s[8:11], s{32+(t>>2)} offen offset:{(t&3)*1024}{KVPOL}", tag=(tag, "V", t))


def adv():
    a("s_add_u32 s32, s32, s34")
    a("s_add_u32 s33, s33, s34")


def burst(kind, base, tag):
    for t in range(8):
        ldK(kind, base, t, tag)
    for t in range(8):
        ldV(kind, base, t, tag)
    adv()


def waitq(tag, floor=0):
    if tag in a.vq:
        a.wait_vm(tag, floor)


def allreduce(op, v, t, first=0):
    steps = ["quad_perm:[1,0,3,2]", "quad_perm:[2,3,0,1]", "row_half_mirror", "row_mirror"]
    for s in steps[first:]:
        a(f"{op}_dpp v{v}, v{v}, v{v} {s}{DPPM}")
    rows(op, v, t)


def rows(op, v, t):
    a(f"v_mov_b32 v{t}, v{v}")
    a(f"v_permlane16_swap_b32 v{v}, v{t}")
    a(f"{op} v{v}, v{v}, v{t}")
    a(f"v_mov_b32 v{t}, v{v}")
    a(f"v_permlane32_swap_b32 v{v}, v{t}")
    a(f"{op} v{v}, v{v}, v{t}")


QE, QO, OA, MS, LS, NMC = 8, 12, 16, 20, 21, 22
DS_ = [24, 28, 32, 36]
TT = 40
TMP = 44


def unit(kind, base, tag, reload_tag=None, floor=0):
    for u in range(4):
        waitq((tag, "K", 2 * u + 1), floor)
        d = R("v", DS_[u])
        a(f"v_mfma_f32_16x16x32_bf16 {d}, {R(kind, base+8*u)}, {R('v', QE)}, 0")
        a(f"v_mfma_f32_16x16x32_bf16 {d}, {R(kind, base+8*u+4)}, {R('v', QO)}, {d}")
        if reload_tag is not None:
            ldK(kind, base, 2 * u, reload_tag)
            ldK(kind, base, 2 * u + 1, reload_tag)
    order = [(0, 0), (1, 0), (2, 0), (0, 1), (1, 1), (2, 1), (0, 2), (1, 2), (3, 0), (2, 2), (0, 3), (3, 1),
             (1, 3), (2, 3), (3, 2), None, (3, 3)]
    for o in order:
        if o is None:
            a(f"v_max3_f32 v{TMP}, v{TT}, v{TT+1}, v{MS}")
            continue
        u, c = o
        qp = f"quad_perm:[{c},{c},{c},{c}]"
        if c == 0:
            a(f"v_mov_b32_dpp v{TT+u}, v{DS_[u]} {qp}{DPPM}")
        else:
            a(f"v_add_f32_dpp v{TT+u}, v{DS_[u]+c}, v{TT+u} {qp}{DPPM}")
    a(f"v_max3_f32 v{TMP}, v{TMP}, v{TT+2}, v{TT+3}")
    a(f"v_max_f32_dpp v{TMP}, v{TMP}, v{TMP} row_half_mirror{DPPM}")
    rows("v_max_f32", TMP, TMP + 1)
    a(f"v_sub_f32 v{TMP+1}, v{MS}, v{TMP}")
    a(f"v_mul_f32 v{TMP+1}, s30, v{TMP+1}")
    a(f"v_exp_f32 v{TMP+1}, v{TMP+1}")
    a(f"v_mov_b32 v{MS}, v{TMP}")
    a(f"v_mul_f32 v{NMC}, s30, v{TMP}")
    for u in range(4):
        a(f"v_fma_f32 v{TT+u}, v{TT+u}, s30, -v{NMC}")
    for u in range(4):
        a(f"v_exp_f32 v{TT+u}, v{TT+u}")
    a(f"v_mul_f32 v{LS}, v{LS}, v{TMP+1}")
    for r in range(4):
        a(f"v_mul_f32 v{OA+r}, v{OA+r}, v{TMP+1}")
    a(f"v_add_f32 v{TMP+2}, v{TT}, v{TT+1}")
    a(f"v_add_f32 v{TMP+3}, v{TT+2}, v{TT+3}")
    for u in range(4):
        a(f"v_cvt_pk_bf16_f32 v{TT+u}, v{TT+u}, v{TT+u}")
    a(f"v_add_f32 v{TMP+2}, v{TMP+2}, v{TMP+3}")
    a(f"v_add_f32 v{LS}, v{LS}, v{TMP+2}")

    def buildB(t):
        b = DS_[t & 3]
        p = TT + (t >> 1)
        for i in range(4):
            own = (i < 2) == ((t & 1) == 0)
            if own:
                a(f"v_and_b32 v{b+i}, v{p}, v{4+i}")
            else:
                sh = "row_shr:4" if (t & 1) == 0 else "row_shl:4"
                a(f"v_and_b32_dpp v{b+i}, v{p}, v{4+i} {sh}{DPPM} bound_ctrl:1")

    buildB(0)
    for t in range(8):
        if t + 1 < 8:
            buildB(t + 1)
        waitq((tag, "V", t), floor)
        a(f"v_mfma_f32_16x16x32_bf16 {R('v', OA)}, {R(kind, base+32+4*t)}, {R('v', DS_[t&3])}, {R('v', OA)}")
        if reload_tag is not None:
            ldV(kind, base, t, reload_tag)
    if reload_tag is not None:
        adv()


def qtags(tag):
    return [(tag, "K", t) for t in range(8)] + [(tag, "V", t) for t in range(8)]


RING = [64, 128, 192]


def bf16r(d, s):
    a(f"v_cvt_pk_bf16_f32 v{d}, v{s}, v{s}")
    a(f"v_and_b32 v{d}, 0xffff0000, v{d}")


def gemv(nk, vA, vB, T, acc, bstep=1024, bhalf=128):
    S = 4

    def issue(kk):
        s = T + 8 * (kk % S)
        a(f"ds_read_b128 {R('v', s)}, v{vA} offset:{kk*64}")
        a(f"ds_read_b64_tr_b16 {R('v', s+4, 2)}, v{vB} offset:{kk*bstep}")
        a(f"ds_read_b64_tr_b16 {R('v', s+6, 2)}, v{vB} offset:{kk*bstep+bhalf}")

    for kk in range(min(S, nk)):
        issue(kk)
    for kk in range(nk):
        a(f"s_waitcnt lgkmcnt({3*(min(nk, kk+S)-kk-1)})")
        s = T + 8 * (kk % S)
        c = "0" if kk == 0 else R("v", acc)
        a(f"v_mfma_f32_16x16x32_bf16 {R('v', acc)}, {R('v', s)}, {R('v', s+4)}, {c}")
        if kk + S < nk:
            issue(kk + S)


def tile_addr(v, t, base_sgpr=None, base=0):
    a(f"v_lshrrev_b32 v{v}, 4, v1")
    a(f"v_lshlrev_b32 v{v}, 8, v{v}")
    a(f"v_and_b32 v{t}, 15, v1")
    a(f"v_lshl_add_u32 v{v}, v{t}, 3, v{v}")
    if base:
        a(f"v_add_u32 v{v}, {base}, v{v}")
    if base_sgpr is not None:
        a(f"v_add_u32 v{v}, s{base_sgpr}, v{v}")


def afrag_addr(v, base_sgpr=None, base=0):
    a(f"v_lshrrev_b32 v{v}, 4, v1")
    a(f"v_lshlrev_b32 v{v}, 4, v{v}")
    if base:
        a(f"v_add_u32 v{v}, {base}, v{v}")
    if base_sgpr is not None:
        a(f"v_add_u32 v{v}, s{base_sgpr}, v{v}")


XR = 44


def layernorm():
    s, t, mb, rs = 53, 54, 55, 56
    a(f"v_add_f32 v{s}, v{XR}, v{XR+1}")
    for i in range(2, 9):
        a(f"v_add_f32 v{s}, v{s}, v{XR+i}")
    allreduce("v_add_f32", s, t)
    a(f"v_mul_f32 v{s}, {f32(1.0/576)}, v{s}")
    bf16r(mb, s)
    a(f"v_sub_f32 v{t}, v{XR}, v{s}")
    a(f"v_mul_f32 v{rs}, v{t}, v{t}")
    for i in range(1, 9):
        a(f"v_sub_f32 v{t}, v{XR+i}, v{s}")
        a(f"v_fmac_f32 v{rs}, v{t}, v{t}")
    allreduce("v_add_f32", rs, t)
    a(f"v_mul_f32 v{rs}, {f32(1.0/576)}, v{rs}")
    bf16r(rs, rs)
    a(f"v_add_f32 v{rs}, {f32(1e-5)}, v{rs}")
    bf16r(rs, rs)
    a(f"v_sqrt_f32 v{rs}, v{rs}")
    bf16r(rs, rs)
    a(f"v_rcp_f32 v{rs}, v{rs}")
    a("s_mul_i32 s44, s24, 1152")
    a(f"s_add_u32 s44, s44, {XN}")
    a(f"v_lshlrev_b32 v{s}, 1, v1")
    a(f"v_add_u32 v{s}, s44, v{s}")
    for i in range(9):
        a(f"v_sub_f32 v{XR+i}, v{XR+i}, v{mb}")
    for i in range(9):
        bf16r(XR + i, XR + i)
    for i in range(9):
        a(f"v_mul_f32 v{XR+i}, v{XR+i}, v{rs}")
    for i in range(9):
        a(f"v_cvt_pk_bf16_f32 v{XR+i}, v{XR+i}, v{XR+i}")
    for i in range(9):
        a(f"ds_write_b16 v{s}, v{XR+i} offset:{i*128}")
    afrag_addr(57, base_sgpr=44)
    a("s_waitcnt lgkmcnt(0)")


def retry(lab_again, lab_done):
    a("s_cmp_eq_u32 s38, 0")
    a(f"s_cbranch_scc1 {lab_done}")
    a("s_sub_u32 s38, s38, 1")
    a("s_sleep 1")
    a(f"s_branch {lab_again}")


def combine(CB, CS):
    a("v_lshlrev_b32 v8, 2, v0")
    a(f"v_add_u32 v8, {CB}, v8")
    a("s_lshr_b32 s44, s24, 1")
    a("s_lshl_b32 s44, s44, 5")
    a(f"s_add_u32 s44, s44, {CS}")
    a("v_mov_b32 v9, s44")
    a("ds_read_b128 v[12:15], v9")
    a("ds_read_b128 v[16:19], v9 offset:16")
    for w in range(4):
        a(f"ds_read_b32 v{20+w}, v8 offset:{w*1024}")
    a("s_waitcnt lgkmcnt(4)")
    a("v_max3_f32 v26, v12, v14, v16")
    a("v_max_f32 v26, v26, v18")
    for w in range(4):
        a(f"v_sub_f32 v{12+2*w}, v{12+2*w}, v26")
    for w in range(4):
        a(f"v_exp_f32 v{12+2*w}, v{12+2*w}")
    a("v_mul_f32 v27, v13, v12")
    for w in range(1, 4):
        a(f"v_fmac_f32 v27, v{13+2*w}, v{12+2*w}")
    a("s_waitcnt lgkmcnt(0)")
    a("v_mul_f32 v24, v20, v12")
    for w in range(1, 4):
        a(f"v_fmac_f32 v24, v{20+w}, v{12+2*w}")


def qpoll_issue():
    a("buffer_load_dwordx4 v[24:27], v32, s[12:15], s45 offen sc1", tag="qp")
    a("buffer_load_dwordx4 v[28:31], v32, s[12:15], s45 offen offset:16 sc1", tag="qp")


def qpoll_addr(xoff):
    a("s_lshl_b32 s45, s25, 10")
    a(f"s_add_u32 s45, s45, {xoff}")
    a("v_bfe_u32 v32, v1, 3, 1")
    a("v_lshlrev_b32 v32, 9, v32")
    a("v_lshrrev_b32 v33, 4, v1")
    a("v_lshl_add_u32 v32, v33, 7, v32")
    a("v_and_b32 v33, 3, v1")
    a("v_lshl_add_u32 v32, v33, 5, v32")


def qpoll_check():
    a("v_cmp_ne_u32 s[46:47], s29, v25")
    a("v_cmp_ne_u32 s[48:49], s29, v27")
    a("v_cmp_ne_u32 s[50:51], s29, v29")
    a("v_cmp_ne_u32 s[52:53], s29, v31")
    a("s_or_b64 s[46:47], s[46:47], s[48:49]")
    a("s_or_b64 s[50:51], s[50:51], s[52:53]")
    a("s_or_b64 s[46:47], s[46:47], s[50:51]")


a.raw(f"{NAME}_kernel:")
a("s_cmp_ge_u32 s2, 256")
a("s_cbranch_scc1 LEND")
if STAMPS:
    a("s_memrealtime s[100:101]")
a("s_load_dwordx16 s[64:79], s[0:1], 0")
a("s_load_dwordx8 s[80:87], s[0:1], 64")
a("v_and_b32 v1, 63, v0")
a("v_lshrrev_b32 v40, 6, v0")
a("v_readfirstlane_b32 s24, v40")
a("s_and_b32 s28, s2, 7")
a("s_lshr_b32 s27, s2, 3")
a("s_lshr_b32 s44, s27, 4")
a("s_lshl_b32 s25, s28, 1")
a("s_add_u32 s25, s25, s44")
a("s_and_b32 s26, s27, 15")
a(f"s_mov_b32 s30, {f32(math.log2(math.e)/math.sqrt(128.0))}")
a("s_mov_b32 s31, 0")
a(f"s_mov_b32 s34, {UNIT_STEP}")
a("s_mov_b32 s38, 400000")
a(f"s_mov_b32 s39, {LB0}")
a("s_mov_b32 s42, 0xf0f0f0f0")
a("s_mov_b32 s43, 0xf0f0f0f0")
a("s_lshl_b32 s44, s26, 2")
a("s_add_u32 s44, s44, s24")
a("s_lshl_b32 s32, s44, 13")
a("s_add_u32 s33, s32, 4096")
a("v_lshlrev_b32 v3, 4, v1")
a("v_bfe_u32 v40, v1, 2, 2")
a("v_lshlrev_b32 v2, 8, v40")
a("v_lshrrev_b32 v40, 4, v1")
a("v_lshl_add_u32 v2, v40, 6, v2")
a("v_and_b32 v40, 3, v1")
a("v_lshl_add_u32 v2, v40, 4, v2")
a("v_and_b32 v40, 1, v1")
a("v_lshlrev_b32 v40, 4, v40")
a("v_mov_b32 v41, 0xffff")
a("v_lshlrev_b32 v40, v40, v41")
for i in range(4):
    m = 0x03030303 << (2 * i)
    a(f"s_mov_b32 s40, 0x{m:08x}")
    a(f"s_mov_b32 s41, 0x{m:08x}")
    a(f"v_cndmask_b32 v{4+i}, 0, v40, s[40:41]")
a("s_waitcnt lgkmcnt(0)")
a("s_load_dword s29, s[86:87], 0")
a("s_lshl_b32 s44, s25, 24")
a("s_add_u32 s4, s66, s44")
a("s_addc_u32 s5, s67, 0")
a("s_and_b32 s5, s5, 0xffff")
a("s_mov_b32 s6, 0x1000000")
a("s_mov_b32 s7, 0x20000")
a("s_add_u32 s8, s68, s44")
a("s_addc_u32 s9, s69, 0")
a("s_and_b32 s9, s9, 0xffff")
a("s_mov_b32 s10, 0x1000000")
a("s_mov_b32 s11, 0x20000")
srd(12, 86, 87, WS_SIZE)
srd(16, 82, 83, 1152)
srd(20, 84, 85, 256)
srd(60, 64, 65, 1152)
srd(88, 70, 71, 576 * 8192)
a("s_cmp_eq_u32 s24, 3")
a("s_cbranch_scc0 LPRO1")
a("v_lshlrev_b32 v40, 1, v1")
for i in range(9):
    a(f"buffer_load_ushort v{XR+i}, v40, s[60:63], 0 offen offset:{i*128}")
a("v_lshrrev_b32 v40, 1, v1")
a("v_lshlrev_b32 v40, 13, v40")
a("v_and_b32 v41, 1, v1")
a("v_lshl_add_u32 v40, v41, 4, v40")
a("s_lshl_b32 s44, s25, 9")
a("s_lshl_b32 s45, s26, 5")
a("s_add_u32 s44, s44, s45")
for i in range(18):
    a(f"buffer_load_dwordx4 {R('v', 64+4*i)}, v40, s[88:91], s44 offen{WPOL}")
    a("s_add_u32 s44, s44, 262144")
a.label("LPRO1")
a.vq = []
a("v_mov_b32 v24, -1\nv_mov_b32 v25, -1\nv_mov_b32 v26, -1\nv_mov_b32 v27, -1")
a("s_lshl_b32 s44, s2, 2")
a("s_add_u32 s44, s44, s24")
a("s_mul_i32 s44, s44, 768")
a(f"s_add_u32 s44, s44, {LB0}")
a("s_mov_b32 exec_hi, 0xffff")
a("buffer_store_dwordx4 v[24:27], v3, s[12:15], s44 offen sc1", tag="clr")
a("s_mov_b64 exec, -1")
burst("a", 0, "A0")
burst("a", 64, "A1")
a("s_waitcnt lgkmcnt(0)")
a("s_mul_i32 s29, s29, 0x9e3779b1")
a("s_add_u32 s29, s29, 0x7f4a7c15")
a("s_cmp_eq_u32 s24, 3")
a("s_cbranch_scc0 LPRO2")
a("s_waitcnt vmcnt(33)")
for i in range(9):
    a(f"v_lshlrev_b32 v{XR+i}, 16, v{XR+i}")
for i in range(18):
    a(f"ds_write_b128 v3, {R('v', 64+4*i)} offset:{WQ+i*1024}")
a(f"s_mov_b32 s54, {X0}")
a("s_call_b64 s[36:37], LQSTAGE")
a.label("LPRO2")
a("s_cmp_lt_u32 s26, 12")
srd_role(88, 72, 73, 4096 * 1152)
a("s_cmp_lt_u32 s27, 24")
srd_role(92, 76, 77, 576 * 9216)
a("s_cmp_lt_u32 s27, 24")
srd_role(96, 78, 79, 576 * 9216)
a("s_cmp_lt_u32 s27, 18")
srd_role(60, 80, 81, 4608 * 1152)
a.wait_vm_n(24)
a("v_lshrrev_b32 v40, 1, v1")
a("v_mul_u32_u24 v40, 1152, v40")
a("v_and_b32 v41, 1, v1")
a("v_lshl_add_u32 v40, v41, 4, v40")
a("s_lshl_b32 s44, s25, 8")
a("s_lshl_b32 s45, s24, 6")
a("s_add_u32 s44, s44, s45")
a("s_mul_i32 s44, s44, 1152")
a("s_mul_i32 s45, s26, 96")
a("s_add_u32 s44, s44, s45")
a(f"s_add_u32 s45, s44, {32*1152}")
for i in range(2):
    for u in range(3):
        a(f"buffer_load_dwordx4 {R('v', 64+4*(3*i+u))}, v40, s[88:91], s{44+i} offen offset:{32*u}{WPOL}", tag="w")
a("v_mul_u32_u24 v41, 43, v1")
a("v_lshrrev_b32 v41, 7, v41")
a("v_mul_u32_u24 v42, 3, v41")
a("v_sub_u32 v42, v1, v42")
a("v_mul_u32_u24 v40, 9216, v41")
a("v_lshl_add_u32 v40, v42, 4, v40")
a("s_mul_i32 s44, s28, 24")
a("s_add_u32 s44, s44, s27")
a("s_mul_i32 s44, s44, 48")
a(f"s_mul_i32 s45, s24, {144*9216}")
a("s_add_u32 s44, s44, s45")
for i in range(7):
    a(f"buffer_load_dwordx4 {R('v', 88+8*i)}, v40, s[92:95], s44 offen{WPOL}", tag="w")
    a(f"buffer_load_dwordx4 {R('v', 92+8*i)}, v40, s[96:99], s44 offen{WPOL}", tag="w")
    a(f"s_add_u32 s44, s44, {21*9216}")
a(f"v_mul_u32_u24 v43, {TS}, v42")
a("v_lshl_add_u32 v43, v41, 5, v43")
a(f"s_mul_i32 s45, s24, {144*32}")
a(f"s_add_u32 s45, s45, {WGU}")
a("v_add_u32 v43, s45, v43")
a("v_mul_u32_u24 v40, 1152, v1")
a("s_mul_i32 s44, s28, 18")
a("s_add_u32 s44, s44, s27")
a("s_lshl_b32 s44, s44, 3")
a(f"s_mul_i32 s45, s24, {1152*1152}")
a("s_add_u32 s44, s44, s45")
for i in range(18):
    a(f"buffer_load_dwordx2 {R('v', 144+2*i, 2)}, v40, s[60:63], s44 offen{WPOL}", tag="w")
    a(f"s_add_u32 s44, s44, {64*1152}")
qpoll_addr(X0)
a.wait_vm_n(27)
a("v_mov_b32 v40, 0")
a("v_mov_b32 v41, 1")
a("s_mov_b64 exec, 1")
a("buffer_atomic_add v41, v40, s[20:23], 0 offen sc1", tag="atom")
a("s_mov_b64 exec, -1")
qpoll_issue()
burst("a", 128, "A2")
burst("a", 192, "A3")
a.wait_vm("qp")
a("s_lshl_b32 s44, s24, 11")
a(f"s_add_u32 s44, s44, {WO}")
a("v_add_u32 v40, s44, v3")
for i in range(2):
    for u in range(3):
        a(f"ds_write_b128 v40, {R('v', 64+4*(3*i+u))} offset:{u*8192+i*1024}")
for i in range(7):
    a(f"ds_write_b128 v43, {R('v', 88+8*i)} offset:{i*21*32}")
    a(f"ds_write_b128 v43, {R('v', 92+8*i)} offset:{i*21*32+16}")
a(f"s_mul_i32 s44, s24, {KS}")
a(f"s_add_u32 s44, s44, {WD}")
a("v_lshlrev_b32 v40, 3, v1")
a("v_add_u32 v40, s44, v40")
for i in range(18):
    a(f"ds_write_b64 v40, {R('v', 144+2*i, 2)} offset:{i*512}")
a("s_waitcnt lgkmcnt(0)")
if STAMPS:
    a("s_memrealtime s[58:59]")
    a("s_waitcnt lgkmcnt(0)")
    a("s_mov_b32 s75, s58")
qpoll_check()
a("s_cbranch_scc0 LQREADY")
saved_vq = list(a.vq)

a.label("LQPOLL")
qpoll_issue()
a("s_waitcnt vmcnt(0)")
qpoll_check()
a("s_cbranch_scc0 LQREADY")
retry("LQPOLL", "LQREADY")
a.label("LQREADY")
for i in range(4):
    a(f"v_cndmask_b32 v{QE+i}, v{24+2*i}, 0, s[42:43]")
    a(f"v_cndmask_b32 v{QO+i}, 0, v{24+2*i}, s[42:43]")
for r in range(4):
    a(f"v_mov_b32 v{OA+r}, 0")
a(f"v_mov_b32 v{MS}, {f32(-1e30)}")
a(f"v_mov_b32 v{LS}, 0")
stamp(0)
a("s_cmp_eq_u32 s31, 0")
a("s_cbranch_scc1 LAPART")
a("s_mov_b32 s35, 3")
a("s_call_b64 s[36:37], LRING")
a.label("LAPART")
a.vq = qtags("A2") + qtags("A3")
for i in range(4):
    if i < 3:
        lab = a.newlabel("nb")
        a("s_cmp_eq_u32 s31, 0")
        a(f"s_cbranch_scc0 {lab}")
        a.wait_vm_n(47)
        burst("v", RING[i], f"R{i}")
        a.label(lab)
    unit("a", 64 * i, f"A{i}", None, floor=48)
assert a.vq == qtags("R0") + qtags("R1") + qtags("R2"), a.vq
a("s_cmp_eq_u32 s31, 0")
a("s_cselect_b32 s35, 25, 22")
a("s_call_b64 s[36:37], LRING")
a.vq = qtags("R1") + qtags("R2") + qtags("R0")
a("v_mov_b32 v48, 0")
a("buffer_load_dword v49, v48, s[20:23], 0 offen sc1", tag="cnt")
for s in (1, 2, 0):
    unit("v", RING[s], f"R{s}", None)
stamp(1)
a(f"v_add_f32_dpp v{LS}, v{LS}, v{LS} row_half_mirror{DPPM}")
rows("v_add_f32", LS, TMP)
a(f"v_mul_f32 v22, s30, v{MS}")
a(f"v_mov_b32 v23, v{LS}")
a("v_bfe_u32 v40, v1, 3, 1")
a("v_lshlrev_b32 v41, 9, v40")
a("v_lshrrev_b32 v42, 4, v1")
a("v_lshl_add_u32 v41, v42, 7, v41")
a("v_and_b32 v42, 7, v1")
a("v_lshl_add_u32 v41, v42, 2, v41")
a("s_lshl_b32 s44, s24, 10")
a(f"s_add_u32 s44, s44, {CB1}")
a("v_add_u32 v41, s44, v41")
for r in range(4):
    a(f"ds_write_b32 v41, v{OA+r} offset:{32*r}")
a("s_lshl_b32 s44, s24, 3")
a(f"s_add_u32 s44, s44, {CS1}")
a("v_lshlrev_b32 v40, 5, v40")
a("v_add_u32 v40, s44, v40")
a("ds_write_b64 v40, v[22:23]")
a.label("LCNT")
a("s_waitcnt vmcnt(0)")
a("v_readfirstlane_b32 s44, v49")
a("s_cmp_eq_u32 s44, 1024")
a("s_cbranch_scc1 LCNTOK")
a("buffer_load_dword v49, v48, s[20:23], 0 offen sc1")
retry("LCNT", "LCNTOK")
a.label("LCNTOK")
a("s_waitcnt lgkmcnt(0)")
a("s_barrier")
combine(CB1, CS1)
a("s_lshl_b32 s44, s25, 4")
a("s_add_u32 s44, s44, s26")
a(f"s_mul_i32 s44, s44, {X1S}")
a("s_add_u32 s44, s44, s39")
a("v_lshlrev_b32 v8, 2, v0")
a("buffer_store_dword v24, v8, s[12:15], s44 offen sc1")
a("s_lshr_b32 s45, s24, 1")
a("s_lshl_b32 s45, s45, 3")
a("v_mov_b32 v9, s45")
a("s_mov_b64 exec, 1")
a("buffer_store_dwordx2 v[26:27], v9, s[12:15], s44 offen offset:1024 sc1")
a("s_mov_b64 exec, -1")
stamp(2)
a("s_cmp_lt_u32 s26, 12")
a("s_cbranch_scc0 LSTC")
a("s_lshl_b32 s44, s25, 4")
a("s_lshl_b32 s45, s24, 2")
a("s_add_u32 s44, s44, s45")
a(f"s_mul_i32 s44, s44, {X1S}")
a("s_add_u32 s44, s44, s39")
a("v_lshrrev_b32 v8, 5, v1")
a("v_lshlrev_b32 v9, 3, v8")
a("v_add_u32 v9, 1024, v9")
a.label("LE1")
for p in range(4):
    a(f"buffer_load_dwordx2 {R('v', 28+2*p, 2)}, v9, s[12:15], s44 offen offset:{p*X1S} sc1")
for p in range(4):
    a(f"buffer_load_dwordx4 {R('v', 12+4*p)}, v3, s[12:15], s44 offen offset:{p*X1S} sc1")
a("s_waitcnt vmcnt(4)")
a("v_max3_f32 v40, v28, v30, v32")
a("v_max_f32 v40, v40, v34")
for p in range(4):
    a(f"v_sub_f32 v{28+2*p}, v{28+2*p}, v40")
for p in range(4):
    a(f"v_exp_f32 v{28+2*p}, v{28+2*p}")
a("v_mul_f32 v41, v29, v28")
for p in range(1, 4):
    a(f"v_fmac_f32 v41, v{29+2*p}, v{28+2*p}")
a("s_waitcnt vmcnt(0)")
for r in range(4):
    a(f"v_mul_f32 v{36+r}, v{12+r}, v28")
for p in range(1, 4):
    for r in range(4):
        a(f"v_fmac_f32 v{36+r}, v{12+4*p+r}, v{28+2*p}")
a("v_add_f32 v42, v36, v37")
a("v_add_f32 v43, v38, v39")
a("v_add_f32 v42, v42, v41")
a("v_cmp_u_f32 vcc, v42, v43")
a("s_cbranch_vccz LE1OK")
retry("LE1", "LE1OK")
a.label("LE1OK")
stamp(3)
a("s_lshl_b32 s44, s24, 10")
a(f"s_add_u32 s44, s44, {CB2}")
a("v_add_u32 v10, s44, v3")
a("ds_write_b128 v10, v[36:39]")
a("s_lshl_b32 s44, s24, 3")
a(f"s_add_u32 s44, s44, {CS2}")
a("v_lshlrev_b32 v8, 5, v8")
a("v_add_u32 v8, s44, v8")
a("ds_write_b64 v8, v[40:41]")
a("s_waitcnt lgkmcnt(0)")
a("s_barrier")
combine(CB2, CS2)
a("v_rcp_f32 v27, v27")
a("v_lshlrev_b32 v8, 1, v0")
a(f"v_add_u32 v8, {OB}, v8")
a("v_mul_f32 v24, v24, v27")
a("v_cvt_pk_bf16_f32 v24, v24, v24")
a("ds_write_b16 v8, v24")
a("s_lshl_b32 s44, s24, 13")
tile_addr(58, 59, base_sgpr=44, base=WO)
afrag_addr(57, base=OB)
a("s_waitcnt lgkmcnt(0)")
a("s_barrier")
a("s_cmp_eq_u32 s24, 3")
a("s_cbranch_scc1 LSTC")
gemv(8, 57, 58, 8, 60)
a("s_mul_i32 s44, s25, 2304")
a("s_mul_i32 s45, s26, 192")
a("s_add_u32 s44, s44, s45")
a("s_lshl_b32 s45, s24, 6")
a("s_add_u32 s44, s44, s45")
a("s_add_u32 s44, s44, s39")
a(f"s_add_u32 s44, s44, {X2}")
a("v_lshlrev_b32 v8, 2, v1")
a("s_mov_b64 exec, 0xffff")
a("buffer_store_dword v60, v8, s[12:15], s44 offen sc1")
a("s_mov_b64 exec, -1")
a.label("LSTC")
stamp(4)
a("s_cmp_lt_u32 s27, 24")
a("s_cbranch_scc0 LSTQ")
a("s_cmp_eq_u32 s24, 3")
a("s_cbranch_scc1 LC_BAR")
a("v_lshrrev_b32 v56, 4, v1")
a("v_mul_u32_u24 v56, 2304, v56")
a("v_and_b32 v57, 15, v1")
a("v_lshl_add_u32 v56, v57, 4, v56")
a("s_mul_i32 s44, s24, 768")
a("s_add_u32 s44, s44, s39")
a(f"s_add_u32 s44, s44, {X2}")
for g in range(1, 4):
    a(f"s_add_u32 s{44+g}, s44, {g*9216}")
a("v_bfe_u32 v58, v1, 4, 1")
a("v_lshlrev_b32 v58, 1, v58")
a("v_lshrrev_b32 v59, 5, v1")
a("v_add_u32 v58, v58, v59")
a("v_lshl_add_u32 v58, v57, 2, v58")
a("v_lshlrev_b32 v58, 2, v58")
a("s_mul_i32 s48, s24, 768")
a(f"s_add_u32 s48, s48, {XBUF}")
a("v_add_u32 v58, s48, v58")
for c in range(3):
    a(f"ds_read_b32 v{60+c}, v58 offset:{c*256}")
a.label("LE2")
for c in range(3):
    for g in range(4):
        a(f"buffer_load_dwordx4 {R('v', 8+16*c+4*g)}, v56, s[12:15], s{44+g} offen offset:{c*256} sc1")
for c in range(3):
    b = 8 + 16 * c
    a(f"s_waitcnt vmcnt({8-4*c})")
    for r in range(4):
        a(f"v_add_f32 v{b+r}, v{b+r}, v{b+4+r}")
        a(f"v_add_f32 v{b+8+r}, v{b+8+r}, v{b+12+r}")
    for r in range(4):
        a(f"v_add_f32 v{b+r}, v{b+r}, v{b+8+r}")
    a(f"v_permlane32_swap_b32 v{b}, v{b+1}")
    a(f"v_permlane32_swap_b32 v{b+2}, v{b+3}")
    a(f"v_add_f32 v{b}, v{b}, v{b+1}")
    a(f"v_add_f32 v{b+2}, v{b+2}, v{b+3}")
    a(f"v_permlane16_swap_b32 v{b}, v{b+2}")
    a(f"v_add_f32 v{b}, v{b}, v{b+2}")
a("v_add_f32 v9, v8, v24")
a("v_cmp_u_f32 vcc, v9, v40")
a("s_cbranch_vccz LE2OK")
retry("LE2", "LE2OK")
a.label("LE2OK")
stamp(5)
a("s_waitcnt lgkmcnt(0)")
for c in range(3):
    bf16r(8 + 16 * c, 8 + 16 * c)
for c in range(3):
    a(f"v_add_f32 v{60+c}, v{60+c}, v{8+16*c}")
for c in range(3):
    bf16r(60 + c, 60 + c)
for c in range(3):
    a(f"ds_write_b32 v58, v{60+c} offset:{c*256}")
a("s_waitcnt lgkmcnt(0)")
a.label("LC_BAR")
a("s_barrier")
a("s_cmp_eq_u32 s24, 3")
a("s_cbranch_scc1 LSTD")
a("v_lshlrev_b32 v8, 2, v1")
a(f"v_add_u32 v8, {XBUF}, v8")
for i in range(9):
    a(f"ds_read_b32 v{XR+i}, v8 offset:{i*256}")
a(f"s_mul_i32 s45, s24, {TS}")
tile_addr(58, 59, base_sgpr=45, base=WGU)
a("s_waitcnt lgkmcnt(0)")
layernorm()
gemv(18, 57, 58, 8, 60)
a("s_mul_i32 s44, s28, 24")
a("s_add_u32 s44, s44, s27")
a("s_mul_i32 s44, s44, 48")
a("s_lshl_b32 s45, s24, 4")
a("s_add_u32 s44, s44, s45")
a("s_add_u32 s44, s44, s39")
a(f"s_add_u32 s44, s44, {X3}")
a("v_lshlrev_b32 v8, 1, v1")
a(f"v_mov_b32_dpp v9, v60 row_shl:8{DPPM} bound_ctrl:1")
a("v_cvt_pk_bf16_f32 v9, v60, v9")
a("v_lshlrev_b32 v10, 16, v9")
a("v_and_b32 v9, 0xffff0000, v9")
a("v_max_f32 v10, 0, v10")
a("v_mul_f32 v9, v10, v9")
a(f"v_mov_b32_dpp v10, v9 quad_perm:[1,1,3,3]{DPPM}")
a("v_cvt_pk_bf16_f32 v9, v9, v10")
a("s_mov_b64 exec, 0x55")
a("buffer_store_dword v9, v8, s[12:15], s44 offen sc1")
a("s_mov_b64 exec, -1")
a.label("LSTD")
stamp(6)
a("s_cmp_lt_u32 s27, 18")
a("s_cbranch_scc0 LSTQ")
a("v_and_b32 v58, 3, v1")
a("v_mul_u32_u24 v56, 2304, v58")
a("v_lshrrev_b32 v59, 4, v1")
a("v_lshl_add_u32 v56, v59, 4, v56")
a(f"v_mul_u32_u24 v57, {KS}, v58")
a("v_lshl_add_u32 v57, v59, 6, v57")
a("v_bfe_u32 v58, v1, 2, 2")
a("v_lshl_add_u32 v57, v58, 3, v57")
a("s_mul_i32 s45, s24, 2304")
a(f"s_add_u32 s45, s45, {WD}")
a("v_add_u32 v57, s45, v57")
a("s_mul_i32 s44, s24, 576")
a("s_add_u32 s44, s44, s39")
a(f"s_add_u32 s44, s44, {X3}")
a.label("LE3")
for k in range(9):
    a(f"buffer_load_dwordx4 {R('v', 8+4*k)}, v56, s[12:15], s44 offen offset:{k*64} sc1")


def issueB(k):
    s = 44 + 4 * (k % 3)
    a(f"ds_read_b64_tr_b16 {R('v', s, 2)}, v57 offset:{k*256}")
    a(f"ds_read_b64_tr_b16 {R('v', s+2, 2)}, v57 offset:{k*256+32}")


for k in range(3):
    issueB(k)
for k in range(9):
    a(f"s_waitcnt vmcnt({8-k}) lgkmcnt({2*(min(9, k+3)-k-1)})")
    c = "0" if k == 0 else "v[60:63]"
    a(f"v_mfma_f32_16x16x32_bf16 v[60:63], {R('v', 8+4*k)}, {R('v', 44+4*(k%3))}, {c}")
    if k + 3 < 9:
        issueB(k + 3)
a(f"v_add_f32_dpp v60, v61, v60 row_shl:4{DPPM} bound_ctrl:1")
a(f"v_add_f32_dpp v62, v63, v62 row_shl:4{DPPM} bound_ctrl:1")
a(f"v_add_f32_dpp v60, v62, v60 row_shl:8{DPPM} bound_ctrl:1")
a("v_cmp_u_f32 vcc, v60, v60")
a("s_cbranch_vccz LE3OK")
retry("LE3", "LE3OK")
a.label("LE3OK")
stamp(7)
a("s_lshl_b32 s44, s24, 4")
a(f"s_add_u32 s44, s44, {FB}")
a("v_lshlrev_b32 v8, 2, v1")
a("v_add_u32 v9, s44, v8")
a("s_mov_b64 exec, 15")
a("ds_write_b32 v9, v60")
a("s_mov_b64 exec, -1")
a("s_waitcnt lgkmcnt(0)")
a("s_barrier")
a("s_cmp_eq_u32 s24, 0")
a("s_cbranch_scc0 LSTQ")
a("s_mul_i32 s44, s28, 18")
a("s_add_u32 s44, s44, s27")
a("s_lshl_b32 s45, s44, 4")
a(f"s_add_u32 s46, s45, {XBUF}")
a("v_add_u32 v10, s46, v8")
a("s_mov_b64 exec, 15")
for w in range(4):
    a(f"ds_read_b32 v{12+w}, v9 offset:{16*w}")
a("ds_read_b32 v16, v10")
a("s_waitcnt lgkmcnt(0)")
a("v_add_f32 v12, v12, v13")
a("v_add_f32 v14, v14, v15")
a("v_add_f32 v12, v12, v14")
bf16r(12, 12)
a("v_add_f32 v12, v12, v16")
a("v_cvt_pk_bf16_f32 v12, v12, v12")
a("s_cmp_eq_u32 s31, 0")
a("s_cbranch_scc0 LFINAL")
a("v_and_b32 v12, 0xffff0000, v12")
a("s_add_u32 s45, s45, s39")
a(f"s_add_u32 s45, s45, {X4}")
a("buffer_store_dword v12, v8, s[12:15], s45 offen sc1")
a("s_mov_b64 exec, -1")
a("s_branch LSTQ")
a.label("LFINAL")
a("s_lshl_b32 s45, s44, 3")
a("v_lshlrev_b32 v8, 1, v1")
a("buffer_store_short v12, v8, s[16:19], s45 offen")
a("s_mov_b64 exec, 1")
a("s_cmp_eq_u32 s2, 0")
a("s_cbranch_scc0 LNOEP")
a("v_mov_b32 v9, s29")
a("buffer_store_dword v9, v8, s[12:15], 0 offen sc1")
a.label("LNOEP")
a("s_mov_b64 exec, -1")
a.label("LSTQ")
stamp(8)
a("s_cmp_eq_u32 s31, 0")
a("s_cbranch_scc0 LDONE")
a("s_cmp_eq_u32 s24, 3")
a("s_cbranch_scc0 LQ5")
a(f"s_add_u32 s44, s39, {X4}")
a("v_lshlrev_b32 v8, 2, v1")
a.label("LE4")
for i in range(9):
    a(f"buffer_load_dword v{XR+i}, v8, s[12:15], s44 offen offset:{i*256} sc1")
a("s_waitcnt vmcnt(0)")
a(f"v_add_f32 v9, v{XR}, v{XR+1}")
for i in range(2, 9):
    a(f"v_add_f32 v9, v9, v{XR+i}")
a("v_cmp_u_f32 vcc, v9, v9")
a("s_cbranch_vccz LE4OK")
retry("LE4", "LE4OK")
a.label("LE4OK")
stamp(9)
a(f"s_mov_b32 s54, {X5}")
a("s_call_b64 s[36:37], LQSTAGE")
a.label("LQ5")
stamp(10)
a("s_mov_b32 s31, 1")
a(f"s_add_u32 s39, s39, {LSTRIDE}")
a("s_lshl_b32 s44, s26, 2")
a("s_add_u32 s44, s44, s24")
a("s_lshl_b32 s32, s44, 13")
if OPT["p2rev"]:
    a(f"s_add_u32 s32, s32, {28*UNIT_STEP}")
    a(f"s_mov_b32 s34, {-UNIT_STEP}")
else:
    a(f"s_add_u32 s32, s32, {4*UNIT_STEP}")
a("s_add_u32 s33, s32, 4096")
qpoll_addr(X5)
a("s_branch LQPOLL")

a.label("LQSTAGE")
a("v_lshlrev_b32 v8, 2, v1")
a(f"v_add_u32 v8, {XBUF}, v8")
for i in range(9):
    a(f"ds_write_b32 v8, v{XR+i} offset:{i*256}")
tile_addr(58, 59, base=WQ)
layernorm()
gemv(18, 57, 58, 8, 60)
a("s_lshl_b32 s44, s25, 10")
a("s_lshl_b32 s45, s26, 6")
a("s_add_u32 s44, s44, s45")
a("s_add_u32 s44, s44, s54")
a("v_lshlrev_b32 v8, 2, v1")
a("v_mov_b32 v11, s29")
a(f"v_mov_b32_dpp v9, v60 quad_perm:[1,1,3,3]{DPPM}")
a("v_cvt_pk_bf16_f32 v10, v60, v9")
a("s_mov_b64 exec, 0x5555")
a("buffer_store_dwordx2 v[10:11], v8, s[12:15], s44 offen sc1")
a("s_mov_b64 exec, -1")
a("s_setpc_b64 s[36:37]")

a.label("LRING")
a.vq = qtags("R0") + qtags("R1") + qtags("R2")
for s in range(3):
    unit("v", RING[s], f"R{s}", f"R{s}n")
    a.vq = [(t[0].rstrip("n"), t[1], t[2]) for t in a.vq]
    a("s_sub_u32 s35, s35, 1")
    a("s_cmp_eq_u32 s35, 0")
    if s < 2:
        a("s_cbranch_scc1 LRINGX")
    else:
        a("s_cbranch_scc0 LRING")
a.label("LRINGX")
a("s_setpc_b64 s[36:37]")

a.label("LDONE")
if STAMPS:
    a("s_memrealtime s[58:59]")
    a("s_waitcnt lgkmcnt(0)")
    a("s_mov_b32 s87, s58")
    a("s_lshl_b32 s44, s2, 2")
    a("s_add_u32 s44, s44, s24")
    a("s_lshl_b32 s44, s44, 7")
    a(f"s_add_u32 s44, s44, {STAMP_OFF}")
    a("v_mov_b32 v8, 0")
    a("s_mov_b64 exec, 1")
    for i in range(24):
        a(f"v_mov_b32 v9, s{64+i}")
        a(f"buffer_store_dword v9, v8, s[12:15], s44 offen offset:{4*i}")
    a("v_mov_b32 v9, s100")
    a("buffer_store_dword v9, v8, s[12:15], s44 offen offset:96")
    a("s_waitcnt vmcnt(0)")
a.label("LEND")
a("s_endpgm")

hdr = open("cdna_kernels/" + NAME + ".s.ref").read().split("\n")
top = [l for l in hdr if l.startswith(";") and "@launch" not in l]
out = "\n".join(top) + "\n"
out += f"; @launch grid=(256,1,1) block=(256,1,1) lds={LDS_SIZE}\n"
out += f""".amdgcn_target "amdgcn-amd-amdhsa--gfx950"
.text
.globl {NAME}_kernel
.p2align 8
.type {NAME}_kernel,@function
"""
out += a.text()
out += f""".section .rodata,"a"
.p2align 6
.amdhsa_kernel {NAME}_kernel
  .amdhsa_next_free_vgpr 512
  .amdhsa_next_free_sgpr 102
  .amdhsa_accum_offset 256
  .amdhsa_group_segment_fixed_size 0
  .amdhsa_kernarg_size 96
  .amdhsa_user_sgpr_count 2
  .amdhsa_user_sgpr_kernarg_segment_ptr 1
  .amdhsa_system_sgpr_workgroup_id_x 1
.end_amdhsa_kernel
"""
open(sys.argv[1], "w").write(out)
```

```python
import sys, struct, math
from asmlib import Asm

NAME = "interleave_layers__gqa_block_cached__glu_gated_reglu__decode"
OPT = dict(stamps=0, p2rev=0, kvpol="nt", wpol="nt")
for arg in sys.argv[2:]:
    k, v = arg.split("=")
    OPT[k] = int(v) if v.lstrip("-").isdigit() else v
STAMPS = OPT["stamps"]
KVPOL = "" if OPT["kvpol"] == "def" else " " + OPT["kvpol"]
WPOL = "" if OPT["wpol"] == "def" else " " + OPT["wpol"]


def f32(x):
    return "0x%08x" % struct.unpack("<I", struct.pack("<f", x))[0]


X0 = 0x1000
X5 = 0x9000
CTR = 0x11000
LB0 = 0x20000
LSTRIDE = 0xE0000
X1 = 0x0
X1S = 1280
X2 = 0x50000
X3 = 0x62000
X4 = 0xCE000
STAMP_OFF = 0x200000
WS_SIZE = 0x400000
NPOOL = 22 * 64
WQ = 0
WO = 18432
WOS = 8448
WGU = 43776
TS = 18560
WD = 99456
XBUF = 128128
XN = 130432
CB1 = 135040
CS1 = 139136
CB2 = 139200
CS2 = 143296
OB = 143360
FB = 143872
HB = 144384
LDS_SIZE = 144448

UNIT_STEP = 524288
DPPM = " row_mask:0xf bank_mask:0xf"
a = Asm()
stamp_n = [0]


def stamp(i):
    if not STAMPS:
        return
    a("s_memrealtime s[58:59]")
    a("s_waitcnt lgkmcnt(0)")
    lab = a.newlabel("st")
    a(f"s_mov_b32 s{64+12+i}, s58")
    a("s_cmp_eq_u32 s31, 0")
    a(f"s_cbranch_scc0 {lab}")
    a(f"s_mov_b32 s{64+i}, s58")
    a.label(lab)


def sstamp(reg):
    if not STAMPS:
        return
    a("s_memrealtime s[58:59]")
    a("s_waitcnt lgkmcnt(0)")
    a(f"s_mov_b32 s{reg}, s58")


def R(kind, base, n=4):
    return f"{kind}[{base}:{base+n-1}]"


def srd(d, lo, hi, size):
    a(f"s_mov_b32 s{d}, s{lo}")
    a(f"s_and_b32 s{d+1}, s{hi}, 0xffff")
    a(f"s_mov_b32 s{d+2}, {size}")
    a(f"s_mov_b32 s{d+3}, 0x20000")


def srd_role(d, lo, hi, size):
    a(f"s_cselect_b32 s{d+2}, {size}, 0")
    a(f"s_mov_b32 s{d}, s{lo}")
    a(f"s_and_b32 s{d+1}, s{hi}, 0xffff")
    a(f"s_mov_b32 s{d+3}, 0x20000")


def ldK(kind, base, t, tag):
    a(f"buffer_load_dwordx4 {R(kind, base+4*t)}, v2, s[4:7], s{32+(t>>2)} offen offset:{(t&3)*1024}{KVPOL}", tag=(tag, "K", t))


def ldV(kind, base, t, tag):
    a(f"buffer_load_dwordx4 {R(kind, base+32+4*t)}, v3, s[8:11], s{32+(t>>2)} offen offset:{(t&3)*1024}{KVPOL}", tag=(tag, "V", t))


def adv():
    a("s_add_u32 s32, s32, s34")
    a("s_add_u32 s33, s33, s34")


def burst(kind, base, tag):
    for t in range(8):
        ldK(kind, base, t, tag)
    for t in range(8):
        ldV(kind, base, t, tag)
    adv()


def waitq(tag, floor=0):
    if tag in a.vq:
        a.wait_vm(tag, floor)


def allreduce(op, v, t, first=0):
    steps = ["quad_perm:[1,0,3,2]", "quad_perm:[2,3,0,1]", "row_half_mirror", "row_mirror"]
    for s in steps[first:]:
        a(f"{op}_dpp v{v}, v{v}, v{v} {s}{DPPM}")
    rows(op, v, t)


def rows(op, v, t):
    a(f"v_mov_b32 v{t}, v{v}")
    a(f"v_permlane16_swap_b32 v{v}, v{t}")
    a(f"{op} v{v}, v{v}, v{t}")
    a(f"v_mov_b32 v{t}, v{v}")
    a(f"v_permlane32_swap_b32 v{v}, v{t}")
    a(f"{op} v{v}, v{v}, v{t}")


QE, QO, OA, MS, LS, NMC = 8, 12, 16, 20, 21, 22
DS_ = [24, 28, 32, 36]
TT = 40
TMP = 44


def unit(kind, base, tag, reload_tag=None, floor=0, hooks=None, noadv=False):
    if hooks:
        hooks[0]()
    for u in range(4):
        waitq((tag, "K", 2 * u + 1), floor)
        d = R("v", DS_[u])
        a(f"v_mfma_f32_16x16x32_bf16 {d}, {R(kind, base+8*u)}, {R('v', QE)}, 0")
        a(f"v_mfma_f32_16x16x32_bf16 {d}, {R(kind, base+8*u+4)}, {R('v', QO)}, {d}")
        if reload_tag is not None:
            ldK(kind, base, 2 * u, reload_tag)
            ldK(kind, base, 2 * u + 1, reload_tag)
    order = [(0, 0), (1, 0), (2, 0), (0, 1), (1, 1), (2, 1), (0, 2), (1, 2), (3, 0), (2, 2), (0, 3), (3, 1),
             (1, 3), (2, 3), (3, 2), None, (3, 3)]
    for o in order:
        if o is None:
            a(f"v_max3_f32 v{TMP}, v{TT}, v{TT+1}, v{MS}")
            continue
        u, c = o
        qp = f"quad_perm:[{c},{c},{c},{c}]"
        if c == 0:
            a(f"v_mov_b32_dpp v{TT+u}, v{DS_[u]} {qp}{DPPM}")
        else:
            a(f"v_add_f32_dpp v{TT+u}, v{DS_[u]+c}, v{TT+u} {qp}{DPPM}")
    a(f"v_max3_f32 v{TMP}, v{TMP}, v{TT+2}, v{TT+3}")
    a(f"v_max_f32_dpp v{TMP}, v{TMP}, v{TMP} row_half_mirror{DPPM}")
    rows("v_max_f32", TMP, TMP + 1)
    a(f"v_sub_f32 v{TMP+1}, v{MS}, v{TMP}")
    a(f"v_mul_f32 v{TMP+1}, s30, v{TMP+1}")
    a(f"v_exp_f32 v{TMP+1}, v{TMP+1}")
    a(f"v_mov_b32 v{MS}, v{TMP}")
    a(f"v_mul_f32 v{NMC}, s30, v{TMP}")
    for u in range(4):
        a(f"v_fma_f32 v{TT+u}, v{TT+u}, s30, -v{NMC}")
    for u in range(4):
        a(f"v_exp_f32 v{TT+u}, v{TT+u}")
    a(f"v_mul_f32 v{LS}, v{LS}, v{TMP+1}")
    for r in range(4):
        a(f"v_mul_f32 v{OA+r}, v{OA+r}, v{TMP+1}")
    a(f"v_add_f32 v{TMP+2}, v{TT}, v{TT+1}")
    a(f"v_add_f32 v{TMP+3}, v{TT+2}, v{TT+3}")
    for u in range(4):
        a(f"v_cvt_pk_bf16_f32 v{TT+u}, v{TT+u}, v{TT+u}")
    a(f"v_add_f32 v{TMP+2}, v{TMP+2}, v{TMP+3}")
    a(f"v_add_f32 v{LS}, v{LS}, v{TMP+2}")

    def buildB(t):
        b = DS_[t & 3]
        p = TT + (t >> 1)
        for i in range(4):
            own = (i < 2) == ((t & 1) == 0)
            if own:
                a(f"v_and_b32 v{b+i}, v{p}, v{4+i}")
            else:
                sh = "row_shr:4" if (t & 1) == 0 else "row_shl:4"
                a(f"v_and_b32_dpp v{b+i}, v{p}, v{4+i} {sh}{DPPM} bound_ctrl:1")

    buildB(0)
    if hooks:
        hooks[1]()
    for t in range(8):
        if t + 1 < 8:
            buildB(t + 1)
        waitq((tag, "V", t), floor)
        a(f"v_mfma_f32_16x16x32_bf16 {R('v', OA)}, {R(kind, base+32+4*t)}, {R('v', DS_[t&3])}, {R('v', OA)}")
        if reload_tag is not None:
            ldV(kind, base, t, reload_tag)
    if reload_tag is not None and not noadv:
        adv()


def qtags(tag):
    return [(tag, "K", t) for t in range(8)] + [(tag, "V", t) for t in range(8)]


RING = [64, 128, 192]


def bf16r(d, s):
    a(f"v_cvt_pk_bf16_f32 v{d}, v{s}, v{s}")
    a(f"v_and_b32 v{d}, 0xffff0000, v{d}")


def gemv(nk, vA, vB, T, acc, bstep=1024, bhalf=128):
    S = 4

    def issue(kk):
        s = T + 8 * (kk % S)
        a(f"ds_read_b128 {R('v', s)}, v{vA} offset:{kk*64}")
        a(f"ds_read_b64_tr_b16 {R('v', s+4, 2)}, v{vB} offset:{kk*bstep}")
        a(f"ds_read_b64_tr_b16 {R('v', s+6, 2)}, v{vB} offset:{kk*bstep+bhalf}")

    for kk in range(min(S, nk)):
        issue(kk)
    for kk in range(nk):
        a(f"s_waitcnt lgkmcnt({3*(min(nk, kk+S)-kk-1)})")
        s = T + 8 * (kk % S)
        c = "0" if kk == 0 else R("v", acc)
        a(f"v_mfma_f32_16x16x32_bf16 {R('v', acc)}, {R('v', s)}, {R('v', s+4)}, {c}")
        if kk + S < nk:
            issue(kk + S)


def tile_addr(v, t, base_sgpr=None, base=0):
    a(f"v_lshrrev_b32 v{v}, 4, v1")
    a(f"v_lshlrev_b32 v{v}, 8, v{v}")
    a(f"v_and_b32 v{t}, 15, v1")
    a(f"v_lshl_add_u32 v{v}, v{t}, 3, v{v}")
    if base:
        a(f"v_add_u32 v{v}, {base}, v{v}")
    if base_sgpr is not None:
        a(f"v_add_u32 v{v}, s{base_sgpr}, v{v}")


def afrag_addr(v, base_sgpr=None, base=0):
    a(f"v_lshrrev_b32 v{v}, 4, v1")
    a(f"v_lshlrev_b32 v{v}, 4, v{v}")
    if base:
        a(f"v_add_u32 v{v}, {base}, v{v}")
    if base_sgpr is not None:
        a(f"v_add_u32 v{v}, s{base_sgpr}, v{v}")


XR = 44


def layernorm():
    s, t, mb, rs = 53, 54, 55, 56
    a(f"v_add_f32 v{s}, v{XR}, v{XR+1}")
    for i in range(2, 9):
        a(f"v_add_f32 v{s}, v{s}, v{XR+i}")
    allreduce("v_add_f32", s, t)
    a(f"v_mul_f32 v{s}, {f32(1.0/576)}, v{s}")
    bf16r(mb, s)
    a(f"v_sub_f32 v{t}, v{XR}, v{s}")
    a(f"v_mul_f32 v{rs}, v{t}, v{t}")
    for i in range(1, 9):
        a(f"v_sub_f32 v{t}, v{XR+i}, v{s}")
        a(f"v_fmac_f32 v{rs}, v{t}, v{t}")
    allreduce("v_add_f32", rs, t)
    a(f"v_mul_f32 v{rs}, {f32(1.0/576)}, v{rs}")
    bf16r(rs, rs)
    a(f"v_add_f32 v{rs}, {f32(1e-5)}, v{rs}")
    bf16r(rs, rs)
    a(f"v_sqrt_f32 v{rs}, v{rs}")
    bf16r(rs, rs)
    a(f"v_rcp_f32 v{rs}, v{rs}")
    a("s_mul_i32 s44, s24, 1152")
    a(f"s_add_u32 s44, s44, {XN}")
    a(f"v_lshlrev_b32 v{s}, 1, v1")
    a(f"v_add_u32 v{s}, s44, v{s}")
    for i in range(9):
        a(f"v_sub_f32 v{XR+i}, v{XR+i}, v{mb}")
    for i in range(9):
        bf16r(XR + i, XR + i)
    for i in range(9):
        a(f"v_mul_f32 v{XR+i}, v{XR+i}, v{rs}")
    for i in range(9):
        a(f"v_cvt_pk_bf16_f32 v{XR+i}, v{XR+i}, v{XR+i}")
    for i in range(9):
        a(f"ds_write_b16 v{s}, v{XR+i} offset:{i*128}")
    afrag_addr(57, base_sgpr=44)
    a("s_waitcnt lgkmcnt(0)")


def retry(lab_again, lab_done):
    a("s_cmp_eq_u32 s38, 0")
    a(f"s_cbranch_scc1 {lab_done}")
    a("s_sub_u32 s38, s38, 1")
    a("s_sleep 1")
    a(f"s_branch {lab_again}")


def combine(CB, CS):
    a("v_lshlrev_b32 v8, 2, v0")
    a(f"v_add_u32 v8, {CB}, v8")
    a("s_lshr_b32 s44, s24, 1")
    a("s_lshl_b32 s44, s44, 5")
    a(f"s_add_u32 s44, s44, {CS}")
    a("v_mov_b32 v9, s44")
    a("ds_read_b128 v[12:15], v9")
    a("ds_read_b128 v[16:19], v9 offset:16")
    for w in range(4):
        a(f"ds_read_b32 v{20+w}, v8 offset:{w*1024}")
    a("s_waitcnt lgkmcnt(4)")
    a("v_max3_f32 v26, v12, v14, v16")
    a("v_max_f32 v26, v26, v18")
    for w in range(4):
        a(f"v_sub_f32 v{12+2*w}, v{12+2*w}, v26")
    for w in range(4):
        a(f"v_exp_f32 v{12+2*w}, v{12+2*w}")
    a("v_mul_f32 v27, v13, v12")
    for w in range(1, 4):
        a(f"v_fmac_f32 v27, v{13+2*w}, v{12+2*w}")
    a("s_waitcnt lgkmcnt(0)")
    a("v_mul_f32 v24, v20, v12")
    for w in range(1, 4):
        a(f"v_fmac_f32 v24, v{20+w}, v{12+2*w}")


def qpoll_issue():
    a("buffer_load_dwordx4 v[24:27], v32, s[12:15], s45 offen sc1", tag="qp")
    a("buffer_load_dwordx4 v[28:31], v32, s[12:15], s45 offen offset:16 sc1", tag="qp")


def qpoll_addr(xoff):
    a("s_lshl_b32 s45, s25, 11")
    a(f"s_add_u32 s45, s45, {xoff}")
    a("v_bfe_u32 v32, v1, 3, 1")
    a("v_lshlrev_b32 v32, 10, v32")
    a("v_lshrrev_b32 v33, 4, v1")
    a("v_lshl_add_u32 v32, v33, 8, v32")
    a("v_bfe_u32 v33, v1, 1, 1")
    a("v_lshl_add_u32 v32, v33, 7, v32")
    a("v_and_b32 v33, 1, v1")
    a("v_lshl_add_u32 v32, v33, 5, v32")


def qpoll_check():
    a("v_cmp_ne_u32 s[46:47], s29, v25")
    a("v_cmp_ne_u32 s[48:49], s29, v27")
    a("v_cmp_ne_u32 s[50:51], s29, v29")
    a("v_cmp_ne_u32 s[52:53], s29, v31")
    a("s_or_b64 s[46:47], s[46:47], s[48:49]")
    a("s_or_b64 s[50:51], s[50:51], s[52:53]")
    a("s_or_b64 s[46:47], s[46:47], s[50:51]")


def unit_drain(base):
    def pwait(n0, n1, n2):
        l0, l1 = a.newlabel("dw"), a.newlabel("dw")
        a("s_cmp_eq_u32 s93, 0")
        a(f"s_cbranch_scc1 {l0}")
        a("s_cmp_eq_u32 s93, 1")
        a(f"s_cbranch_scc1 {l1}")
        a(f"s_waitcnt vmcnt({n2})")
        a.label(l1)
        a(f"s_waitcnt vmcnt({n1})")
        a.label(l0)
        a(f"s_waitcnt vmcnt({n0})")
    a.vq = []
    unit("v", base, "none", None, hooks=(lambda: pwait(41, 25, 9), lambda: pwait(33, 17, 1)))


a.raw(f"{NAME}_kernel:")
a("s_cmp_ge_u32 s2, 256")
a("s_cbranch_scc1 LEND")
if STAMPS:
    a("s_memrealtime s[100:101]")
a("s_load_dwordx16 s[64:79], s[0:1], 0")
a("s_load_dwordx8 s[80:87], s[0:1], 64")
a("v_and_b32 v1, 63, v0")
a("v_lshrrev_b32 v40, 6, v0")
a("v_readfirstlane_b32 s24, v40")
a("s_and_b32 s28, s2, 7")
a("s_lshr_b32 s27, s2, 3")
a("s_lshr_b32 s25, s2, 4")
a("s_and_b32 s26, s2, 15")
a("s_lshr_b32 s44, s27, 4")
a("s_lshl_b32 s94, s28, 1")
a("s_add_u32 s94, s94, s44")
a("s_and_b32 s95, s27, 15")
a(f"s_mov_b32 s30, {f32(math.log2(math.e)/math.sqrt(128.0))}")
a("s_mov_b32 s31, 0")
a(f"s_mov_b32 s34, {UNIT_STEP}")
a("s_mov_b32 s38, 400000")
a(f"s_mov_b32 s39, {LB0}")
a("s_mov_b32 s42, 0xf0f0f0f0")
a("s_mov_b32 s43, 0xf0f0f0f0")
a("s_lshl_b32 s44, s26, 2")
a("s_add_u32 s44, s44, s24")
a("s_lshl_b32 s32, s44, 13")
a("s_add_u32 s33, s32, 4096")
a("v_lshlrev_b32 v3, 4, v1")
a("v_bfe_u32 v40, v1, 2, 2")
a("v_lshlrev_b32 v2, 8, v40")
a("v_lshrrev_b32 v40, 4, v1")
a("v_lshl_add_u32 v2, v40, 6, v2")
a("v_and_b32 v40, 3, v1")
a("v_lshl_add_u32 v2, v40, 4, v2")
a("s_waitcnt lgkmcnt(0)")
a("s_load_dword s29, s[86:87], 0")
a("s_lshl_b32 s44, s25, 24")
a("s_add_u32 s4, s66, s44")
a("s_addc_u32 s5, s67, 0")
a("s_and_b32 s5, s5, 0xffff")
a("s_mov_b32 s6, 0x1000000")
a("s_mov_b32 s7, 0x20000")
a("s_add_u32 s8, s68, s44")
a("s_addc_u32 s9, s69, 0")
a("s_and_b32 s9, s9, 0xffff")
a("s_mov_b32 s10, 0x1000000")
a("s_mov_b32 s11, 0x20000")
srd(12, 86, 87, WS_SIZE)
a("s_cmp_eq_u32 s24, 3")
a("s_cbranch_scc0 LPRO1")
srd(60, 64, 65, 1152)
srd(96, 70, 71, 576 * 8192)
a("v_lshlrev_b32 v40, 1, v1")
for i in range(9):
    a(f"buffer_load_ushort v{XR+i}, v40, s[60:63], 0 offen offset:{i*128}")
a("v_lshrrev_b32 v40, 1, v1")
a("v_lshlrev_b32 v40, 13, v40")
a("v_and_b32 v41, 1, v1")
a("v_lshl_add_u32 v40, v41, 4, v40")
a("s_lshl_b32 s44, s94, 9")
a("s_lshl_b32 s45, s95, 5")
a("s_add_u32 s44, s44, s45")
for i in range(18):
    a(f"buffer_load_dwordx4 {R('v', 64+4*i)}, v40, s[96:99], s44 offen{WPOL}")
    a("s_add_u32 s44, s44, 262144")
a("s_cmp_eq_u32 s95, 0")
a("s_cbranch_scc0 LPRO0")
a("v_lshlrev_b32 v40, 12, v1")
a("v_mov_b32 v41, 0")
a("s_lshl_b32 s44, s94, 8")
a(f"s_add_u32 s44, s44, {CTR}")
a("s_mov_b64 exec, 3")
a("buffer_store_dword v41, v40, s[12:15], s44 offen sc1")
a("s_mov_b64 exec, -1")
a.label("LPRO0")
a("s_waitcnt vmcnt(0) lgkmcnt(0)")
sstamp(3)
a("s_mul_i32 s29, s29, 0x9e3779b1")
a("s_add_u32 s29, s29, 0x7f4a7c15")
for i in range(9):
    a(f"v_lshlrev_b32 v{XR+i}, 16, v{XR+i}")
for i in range(18):
    a(f"ds_write_b128 v3, {R('v', 64+4*i)} offset:{WQ+i*1024}")
a(f"s_mov_b32 s54, {X0}")
a("s_call_b64 s[36:37], LQSTAGE")
a("s_branch LPRO2")
a.label("LPRO1")
a("s_waitcnt lgkmcnt(0)")
a("s_mul_i32 s29, s29, 0x9e3779b1")
a("s_add_u32 s29, s29, 0x7f4a7c15")
a("s_cmp_eq_u32 s24, 0")
a("s_cbranch_scc0 LPRO2")
a("v_mov_b32 v24, -1\nv_mov_b32 v25, -1\nv_mov_b32 v26, -1\nv_mov_b32 v27, -1")
a("s_mul_i32 s44, s2, 7168")
a(f"s_add_u32 s44, s44, {LB0}")
a("s_add_u32 s45, s44, 4096")
for i in range(7):
    a(f"buffer_store_dwordx4 v[24:27], v3, s[12:15], s{44+(i>>2)} offen offset:{1024*(i&3)} sc1")
a.label("LPRO2")
sstamp(55)
a.vq = []
burst("a", 0, "A0")
burst("a", 64, "A1")
srd(16, 82, 83, 1152)
srd(20, 84, 85, 256)
a("v_and_b32 v40, 1, v1")
a("v_lshlrev_b32 v40, 4, v40")
a("v_mov_b32 v41, 0xffff")
a("v_lshlrev_b32 v40, v40, v41")
for i in range(4):
    m = 0x03030303 << (2 * i)
    a(f"s_mov_b32 s40, 0x{m:08x}")
    a(f"s_mov_b32 s41, 0x{m:08x}")
    a(f"v_cndmask_b32 v{4+i}, 0, v40, s[40:41]")
a("s_lshl_b32 s44, s25, 8")
a(f"s_add_u32 s44, s44, {CTR}")
a("s_add_u32 s88, s86, s44")
a("s_addc_u32 s89, s87, 0")
a.wait_vm_n(27)
sstamp(56)
a("s_cmp_lt_u32 s95, 12")
srd_role(60, 72, 73, 4096 * 1152)
a("v_mul_u32_u24 v41, 43, v1")
a("v_lshrrev_b32 v41, 8, v41")
a("v_mul_u32_u24 v42, 6, v41")
a("v_sub_u32 v42, v1, v42")
a("v_mul_u32_u24 v40, 1152, v41")
a("v_lshl_add_u32 v40, v42, 4, v40")
a("s_lshl_b32 s44, s94, 8")
a("s_lshl_b32 s45, s24, 6")
a("s_add_u32 s44, s44, s45")
a("s_mul_i32 s44, s44, 1152")
a("s_mul_i32 s45, s95, 96")
a("s_add_u32 s44, s44, s45")
for i in range(7):
    a(f"buffer_load_dwordx4 {R('v', 64+4*i)}, v40, s[60:63], s44 offen{WPOL}", tag="w")
    a(f"s_add_u32 s44, s44, {10*1152}")
a("v_lshrrev_b32 v34, 1, v42")
a(f"v_mul_u32_u24 v34, {WOS}, v34")
a("v_lshl_add_u32 v34, v41, 5, v34")
a("v_and_b32 v42, 1, v42")
a("v_lshl_add_u32 v34, v42, 4, v34")
a("s_lshl_b32 s45, s24, 11")
a(f"s_add_u32 s45, s45, {WO}")
a("v_add_u32 v34, s45, v34")
a("s_cmp_lt_u32 s27, 24")
srd_role(60, 76, 77, 576 * 9216)
a("s_cmp_lt_u32 s27, 24")
srd_role(96, 78, 79, 576 * 9216)
a("v_mul_u32_u24 v41, 43, v1")
a("v_lshrrev_b32 v41, 7, v41")
a("v_mul_u32_u24 v42, 3, v41")
a("v_sub_u32 v42, v1, v42")
a("v_mul_u32_u24 v40, 9216, v41")
a("v_lshl_add_u32 v40, v42, 4, v40")
a("s_mul_i32 s46, s28, 24")
a("s_add_u32 s46, s46, s27")
a("s_mul_i32 s44, s46, 48")
a(f"s_mul_i32 s45, s24, {144*9216}")
a("s_add_u32 s44, s44, s45")
for i in range(7):
    a(f"buffer_load_dwordx4 {R('v', 92+8*i)}, v40, s[60:63], s44 offen{WPOL}", tag="w")
    a(f"buffer_load_dwordx4 {R('v', 96+8*i)}, v40, s[96:99], s44 offen{WPOL}", tag="w")
    a(f"s_add_u32 s44, s44, {21*9216}")
a(f"v_mul_u32_u24 v43, {TS}, v42")
a("v_lshl_add_u32 v43, v41, 5, v43")
a(f"s_mul_i32 s45, s24, {144*32}")
a(f"s_add_u32 s45, s45, {WGU}")
a("v_add_u32 v43, s45, v43")
a("s_cmp_lt_u32 s27, 24")
srd_role(60, 80, 81, 4608 * 1152)
a(f"s_mul_i32 s44, s46, {24*1152}")
a("s_mul_i32 s45, s24, 7168")
a("s_add_u32 s44, s44, s45")
a("s_add_u32 s45, s44, 4096")
for i in range(7):
    a(f"buffer_load_dwordx4 {R('v', 148+4*i)}, v3, s[60:63], s{44+(i>>2)} offen offset:{(i&3)*1024}{WPOL}", tag="w")
sstamp(57)
a.wait_vm_n(40)
burst("a", 128, "A2")
qpoll_addr(X0)
a.wait_vm_n(40)
sstamp(101)
qpoll_issue()
burst("a", 192, "A3")
a.wait_vm("w")
for i in range(7):
    a(f"ds_write_b128 v34, {R('v', 64+4*i)} offset:{i*320}")
for i in range(7):
    a(f"ds_write_b128 v43, {R('v', 92+8*i)} offset:{i*21*32}")
    a(f"ds_write_b128 v43, {R('v', 96+8*i)} offset:{i*21*32+16}")
a("s_mul_i32 s44, s24, 7168")
a(f"s_add_u32 s44, s44, {WD}")
a("v_add_u32 v40, s44, v3")
for i in range(7):
    a(f"ds_write_b128 v40, {R('v', 148+4*i)} offset:{i*1024}")
a(f"v_mov_b32 v40, {HB+48}")
a("v_mov_b32 v36, 0\nv_mov_b32 v37, 0\nv_mov_b32 v38, 0\nv_mov_b32 v39, 0")
a("ds_write_b128 v40, v[36:39]")
a("s_waitcnt lgkmcnt(0)")
burst("v", RING[0], "R0")
a.wait_vm("qp")
if STAMPS:
    a("s_memrealtime s[58:59]")
    a("s_waitcnt lgkmcnt(0)")
    a("s_mov_b32 s75, s58")
qpoll_check()
a("s_cbranch_scc0 LQREADY")

a.label("LQPOLL")
qpoll_issue()
a("s_waitcnt vmcnt(0)")
qpoll_check()
a("s_cbranch_scc0 LQREADY")
retry("LQPOLL", "LQREADY")
a.label("LQREADY")
for i in range(4):
    a(f"v_cndmask_b32 v{QE+i}, v{24+2*i}, 0, s[42:43]")
    a(f"v_cndmask_b32 v{QO+i}, 0, v{24+2*i}, s[42:43]")
for r in range(4):
    a(f"v_mov_b32 v{OA+r}, 0")
a(f"v_mov_b32 v{MS}, {f32(-1e30)}")
a(f"v_mov_b32 v{LS}, 0")
stamp(0)
a("s_cmp_eq_u32 s31, 0")
a("s_cbranch_scc0 LP2")
a("s_cmp_eq_u32 s24, 0")
a("s_cbranch_scc0 LAPART")
a("s_mov_b32 s44, 1")
a("s_atomic_add s44, s[84:85], 0")
a("s_branch LAPART")
a.label("LP2")
a("s_mov_b32 s35, 3")
a(f"s_mov_b32 s90, {NPOOL}")
a("s_mov_b32 s91, 3")
a("s_call_b64 s[36:37], LRING")
a.label("LAPART")
a("s_mov_b32 s90, 1")
a("s_atomic_add s90, s[88:89], 0 glc")
a.vq = qtags("A3") + qtags("R0")
for i in range(4):
    if i < 2:
        lab = a.newlabel("nb")
        a("s_cmp_eq_u32 s31, 0")
        a(f"s_cbranch_scc0 {lab}")
        a.wait_vm_n(47)
        burst("v", RING[i + 1], f"R{i+1}")
        a.label(lab)
    unit("a", 64 * i, f"A{i}", None, floor=48)
assert a.vq == qtags("R0") + qtags("R1") + qtags("R2"), a.vq
a("s_lshl_b32 s44, s26, 2")
a("s_add_u32 s44, s44, s24")
a("s_lshl_b32 s92, s44, 13")
a(f"s_add_u32 s92, s92, {29*UNIT_STEP}")
a("s_cmp_eq_u32 s31, 0")
a("s_cselect_b32 s91, 3, 0")
a("s_mov_b32 s35, 0x7fffffff")
a("s_call_b64 s[36:37], LRING")
a.label("LPASSEND")
stamp(1)
a(f"v_add_f32_dpp v{LS}, v{LS}, v{LS} row_half_mirror{DPPM}")
rows("v_add_f32", LS, TMP)
a(f"v_mul_f32 v22, s30, v{MS}")
a(f"v_mov_b32 v23, v{LS}")
a("v_bfe_u32 v40, v1, 3, 1")
a("v_lshlrev_b32 v41, 9, v40")
a("v_lshrrev_b32 v42, 4, v1")
a("v_lshl_add_u32 v41, v42, 7, v41")
a("v_and_b32 v42, 7, v1")
a("v_lshl_add_u32 v41, v42, 2, v41")
a("s_lshl_b32 s44, s24, 10")
a(f"s_add_u32 s44, s44, {CB1}")
a("v_add_u32 v41, s44, v41")
for r in range(4):
    a(f"ds_write_b32 v41, v{OA+r} offset:{32*r}")
a("s_lshl_b32 s44, s24, 3")
a(f"s_add_u32 s44, s44, {CS1}")
a("v_lshlrev_b32 v40, 5, v40")
a("v_add_u32 v40, s44, v40")
a("ds_write_b64 v40, v[22:23]")
a.label("LCNT")
a("s_waitcnt vmcnt(0)")
a("v_readfirstlane_b32 s44, v49")
a("s_cmp_ge_u32 s44, 256")
a("s_cbranch_scc1 LCNTOK")
a("v_mov_b32 v48, 0")
a("buffer_load_dword v49, v48, s[20:23], 0 offen sc1")
retry("LCNT", "LCNTOK")
a.label("LCNTOK")
a("s_waitcnt lgkmcnt(0)")
a("s_barrier")
combine(CB1, CS1)
a(f"s_mul_i32 s44, s2, {X1S}")
a("s_add_u32 s44, s44, s39")
a("v_lshlrev_b32 v8, 2, v0")
a("buffer_store_dword v24, v8, s[12:15], s44 offen sc1")
a("s_lshl_b32 s45, s24, 6")
a("v_mov_b32 v9, s45")
a("s_bitcmp0_b32 s24, 0")
a("s_cbranch_scc0 LPUB1")
a("s_mov_b64 exec, 1")
a("buffer_store_dwordx2 v[26:27], v9, s[12:15], s44 offen offset:1024 sc1")
a("s_mov_b64 exec, -1")
a.label("LPUB1")
stamp(2)
a("s_cmp_lt_u32 s95, 12")
a("s_cbranch_scc0 LSTC")
a("s_lshl_b32 s44, s94, 4")
a("s_lshl_b32 s45, s24, 2")
a("s_add_u32 s44, s44, s45")
a(f"s_mul_i32 s44, s44, {X1S}")
a("s_add_u32 s44, s44, s39")
a("v_lshrrev_b32 v8, 5, v1")
a("v_lshlrev_b32 v9, 7, v8")
a("v_add_u32 v9, 1024, v9")
a.label("LE1")
for p in range(4):
    a(f"buffer_load_dwordx2 {R('v', 28+2*p, 2)}, v9, s[12:15], s44 offen offset:{p*X1S} sc1")
for p in range(4):
    a(f"buffer_load_dwordx4 {R('v', 12+4*p)}, v3, s[12:15], s44 offen offset:{p*X1S} sc1")
a("s_waitcnt vmcnt(4)")
a("v_max3_f32 v40, v28, v30, v32")
a("v_max_f32 v40, v40, v34")
for p in range(4):
    a(f"v_sub_f32 v{28+2*p}, v{28+2*p}, v40")
for p in range(4):
    a(f"v_exp_f32 v{28+2*p}, v{28+2*p}")
a("v_mul_f32 v41, v29, v28")
for p in range(1, 4):
    a(f"v_fmac_f32 v41, v{29+2*p}, v{28+2*p}")
a("s_waitcnt vmcnt(0)")
for r in range(4):
    a(f"v_mul_f32 v{36+r}, v{12+r}, v28")
for p in range(1, 4):
    for r in range(4):
        a(f"v_fmac_f32 v{36+r}, v{12+4*p+r}, v{28+2*p}")
a("v_add_f32 v42, v36, v37")
a("v_add_f32 v43, v38, v39")
a("v_add_f32 v42, v42, v41")
a("v_cmp_u_f32 vcc, v42, v43")
a("s_cbranch_vccz LE1OK")
retry("LE1", "LE1OK")
a.label("LE1OK")
stamp(3)
a("s_lshl_b32 s44, s24, 10")
a(f"s_add_u32 s44, s44, {CB2}")
a("v_add_u32 v10, s44, v3")
a("ds_write_b128 v10, v[36:39]")
a("s_lshl_b32 s44, s24, 3")
a(f"s_add_u32 s44, s44, {CS2}")
a("v_lshlrev_b32 v8, 5, v8")
a("v_add_u32 v8, s44, v8")
a("ds_write_b64 v8, v[40:41]")
a("s_waitcnt lgkmcnt(0)")
a("s_barrier")
combine(CB2, CS2)
a("v_rcp_f32 v27, v27")
a("v_lshlrev_b32 v8, 1, v0")
a(f"v_add_u32 v8, {OB}, v8")
a("v_mul_f32 v24, v24, v27")
a("v_cvt_pk_bf16_f32 v24, v24, v24")
a("ds_write_b16 v8, v24")
a(f"s_mul_i32 s44, s24, {WOS}")
tile_addr(58, 59, base_sgpr=44, base=WO)
afrag_addr(57, base=OB)
a("s_waitcnt lgkmcnt(0)")
a("s_barrier")
a("s_cmp_eq_u32 s24, 3")
a("s_cbranch_scc1 LSTC")
gemv(8, 57, 58, 8, 60)
a("s_mul_i32 s44, s94, 4608")
a("s_mul_i32 s45, s95, 384")
a("s_add_u32 s44, s44, s45")
a("s_lshl_b32 s45, s24, 7")
a("s_add_u32 s44, s44, s45")
a("s_add_u32 s44, s44, s39")
a(f"s_add_u32 s44, s44, {X2}")
a("v_lshlrev_b32 v8, 2, v1")
a("s_mov_b64 exec, 0xffff")
a("buffer_store_dword v60, v8, s[12:15], s44 offen sc1")
a("s_mov_b64 exec, -1")
a.label("LSTC")
stamp(4)
a("s_cmp_lt_u32 s27, 24")
a("s_cbranch_scc0 LSTQ")
a("s_cmp_eq_u32 s24, 3")
a("s_cbranch_scc1 LC_BAR")
a("v_lshrrev_b32 v56, 4, v1")
a("v_mul_u32_u24 v56, 4608, v56")
a("v_bfe_u32 v57, v1, 2, 2")
a("v_lshl_add_u32 v56, v57, 7, v56")
a("v_and_b32 v57, 3, v1")
a("v_lshl_add_u32 v56, v57, 4, v56")
a("v_and_b32 v57, 15, v1")
a("s_mul_i32 s44, s24, 1536")
a("s_add_u32 s44, s44, s39")
a(f"s_add_u32 s44, s44, {X2}")
for g in range(1, 4):
    a(f"s_add_u32 s{44+g}, s44, {g*18432}")
a("v_bfe_u32 v58, v1, 4, 1")
a("v_lshlrev_b32 v58, 1, v58")
a("v_lshrrev_b32 v59, 5, v1")
a("v_add_u32 v58, v58, v59")
a("v_lshl_add_u32 v58, v57, 2, v58")
a("v_lshlrev_b32 v58, 2, v58")
a("s_mul_i32 s48, s24, 768")
a(f"s_add_u32 s48, s48, {XBUF}")
a("v_add_u32 v58, s48, v58")
for c in range(3):
    a(f"ds_read_b32 v{60+c}, v58 offset:{c*256}")
a.label("LE2")
for c in range(3):
    for g in range(4):
        a(f"buffer_load_dwordx4 {R('v', 8+16*c+4*g)}, v56, s[12:15], s{44+g} offen offset:{c*512} sc1")


def swapreduce(b):
    a(f"v_permlane32_swap_b32 v{b}, v{b+1}")
    a(f"v_permlane32_swap_b32 v{b+2}, v{b+3}")
    a(f"v_add_f32 v{b}, v{b}, v{b+1}")
    a(f"v_add_f32 v{b+2}, v{b+2}, v{b+3}")
    a(f"v_permlane16_swap_b32 v{b}, v{b+2}")
    a(f"v_add_f32 v{b}, v{b}, v{b+2}")


for c in range(3):
    b = 8 + 16 * c
    a(f"s_waitcnt vmcnt({8-4*c})")
    for r in range(4):
        a(f"v_add_f32 v{b+r}, v{b+r}, v{b+4+r}")
        a(f"v_add_f32 v{b+8+r}, v{b+8+r}, v{b+12+r}")
    for r in range(4):
        a(f"v_add_f32 v{b+r}, v{b+r}, v{b+8+r}")
    swapreduce(b)
a("v_add_f32 v9, v8, v24")
a("v_cmp_u_f32 vcc, v9, v40")
a("s_cbranch_vccz LE2OK")
retry("LE2", "LE2OK")
a.label("LE2OK")
stamp(5)
a("s_waitcnt lgkmcnt(0)")
for c in range(3):
    bf16r(8 + 16 * c, 8 + 16 * c)
for c in range(3):
    a(f"v_add_f32 v{60+c}, v{60+c}, v{8+16*c}")
for c in range(3):
    bf16r(60 + c, 60 + c)
for c in range(3):
    a(f"ds_write_b32 v58, v{60+c} offset:{c*256}")
a("s_waitcnt lgkmcnt(0)")
a.label("LC_BAR")
a("s_barrier")
a("s_cmp_eq_u32 s24, 3")
a("s_cbranch_scc1 LC_BAR2")
a("v_lshlrev_b32 v8, 2, v1")
a(f"v_add_u32 v8, {XBUF}, v8")
for i in range(9):
    a(f"ds_read_b32 v{XR+i}, v8 offset:{i*256}")
a(f"s_mul_i32 s45, s24, {TS}")
tile_addr(58, 59, base_sgpr=45, base=WGU)
a("s_waitcnt lgkmcnt(0)")
layernorm()
gemv(18, 57, 58, 8, 60)
a("s_lshl_b32 s44, s24, 4")
a(f"s_add_u32 s44, s44, {HB}")
a("v_lshlrev_b32 v8, 1, v1")
a("v_add_u32 v8, s44, v8")
a(f"v_mov_b32_dpp v9, v60 row_shl:8{DPPM} bound_ctrl:1")
a("v_cvt_pk_bf16_f32 v9, v60, v9")
a("v_lshlrev_b32 v10, 16, v9")
a("v_and_b32 v9, 0xffff0000, v9")
a("v_max_f32 v10, 0, v10")
a("v_mul_f32 v9, v10, v9")
a("v_cvt_pk_bf16_f32 v9, v9, v9")
a("s_mov_b64 exec, 0xff")
a("ds_write_b16 v8, v9")
a("s_mov_b64 exec, -1")
a.label("LC_BAR2")
a("v_lshrrev_b32 v56, 4, v1")
a("v_min_u32 v57, 2, v56")
a("v_lshlrev_b32 v57, 3, v57")
a("v_bfe_u32 v58, v1, 2, 2")
a("v_add_u32 v57, v57, v58")
a("v_mul_u32_u24 v57, 1152, v57")
a("v_and_b32 v58, 3, v1")
a("v_lshl_add_u32 v57, v58, 3, v57")
a("s_lshl_b32 s44, s24, 7")
a(f"s_add_u32 s44, s44, {WD}")
a("v_add_u32 v57, s44, v57")
a("v_lshlrev_b32 v56, 4, v56")
a(f"v_add_u32 v56, {HB}, v56")


def downB(i):
    for t in range(4):
        s = 8 + 16 * (i & 1) + 4 * t
        a(f"ds_read_b64_tr_b16 {R('v', s, 2)}, v57 offset:{i*512+t*32}")
        a(f"ds_read_b64_tr_b16 {R('v', s+2, 2)}, v57 offset:{i*512+t*32+4*1152}")


downB(0)
a("v_lshrrev_b32 v58, 5, v1")
a("v_mul_u32_u24 v58, 24576, v58")
a("v_and_b32 v59, 31, v1")
a("v_lshl_add_u32 v58, v59, 2, v58")
a("s_mul_i32 s44, s28, 24")
a("s_add_u32 s44, s44, s27")
a("s_lshl_b32 s44, s44, 7")
a("s_mul_i32 s45, s24, 49152")
a("s_add_u32 s44, s44, s45")
a("s_add_u32 s44, s44, s39")
a(f"s_add_u32 s44, s44, {X3}")
a("s_mov_b32 s46, 0xffff0000")
a("s_mov_b32 s47, 0xffff0000")
a("s_mov_b32 s48, 0")
a("s_mov_b32 s49, -1")
a("s_waitcnt lgkmcnt(0)")
a("s_barrier")
a("ds_read_b128 v[60:63], v56")
downB(1)


def downG(i, wait):
    a(f"s_waitcnt lgkmcnt({wait})")
    for t in range(4):
        s = 8 + 16 * (i & 1) + 4 * t
        a(f"v_mfma_f32_16x16x32_bf16 {R('v', 40+4*t)}, v[60:63], {R('v', s)}, 0")
    a("v_cndmask_b32 v40, v40, v44, s[46:47]")
    a("v_cndmask_b32 v48, v48, v52, s[46:47]")
    a("v_cndmask_b32 v40, v40, v48, s[48:49]")
    a("buffer_store_dword v40, v58, s[12:15], s44 offen sc1")
    a(f"s_add_u32 s44, s44, {4*49152}")


downG(0, 8)
a("s_cmp_eq_u32 s24, 0")
a("s_cbranch_scc1 LDOWN3")
downG(1, 0)
a("s_branch LSTD")
a.label("LDOWN3")
a("s_waitcnt lgkmcnt(0)")
downB(2)
downG(1, 8)
downG(2, 0)
a.label("LSTD")
stamp(6)
a("s_cmp_lt_u32 s2, 18")
a("s_cbranch_scc0 LSTQ")
a("s_mul_i32 s44, s2, 24576")
a("s_mul_i32 s45, s24, 6144")
a("s_add_u32 s44, s44, s45")
a("s_add_u32 s44, s44, s39")
a(f"s_add_u32 s44, s44, {X3}")
a("s_add_u32 s45, s44, 4096")
a("v_bfe_u32 v58, v1, 4, 1")
a("v_lshlrev_b32 v58, 1, v58")
a("v_lshrrev_b32 v59, 5, v1")
a("v_add_u32 v58, v58, v59")
a("v_and_b32 v59, 7, v1")
a("v_lshl_add_u32 v58, v59, 2, v58")
a("v_lshlrev_b32 v58, 2, v58")
a("s_lshl_b32 s46, s24, 7")
a(f"s_add_u32 s46, s46, {FB}")
a("v_add_u32 v58, s46, v58")
a.label("LE3")
for i in range(6):
    a(f"buffer_load_dwordx4 {R('v', 8+4*i)}, v3, s[12:15], s{44+(i>>2)} offen offset:{(i&3)*1024} sc1")
a("s_waitcnt vmcnt(0)")
for r in range(4):
    a(f"v_add_f32 v{8+r}, v{8+r}, v{12+r}")
    a(f"v_add_f32 v{16+r}, v{16+r}, v{20+r}")
    a(f"v_add_f32 v{24+r}, v{24+r}, v{28+r}")
for r in range(4):
    a(f"v_add_f32 v{8+r}, v{8+r}, v{16+r}")
for r in range(4):
    a(f"v_add_f32 v{8+r}, v{8+r}, v{24+r}")
swapreduce(8)
a(f"v_add_f32_dpp v8, v8, v8 row_ror:8{DPPM}")
a("v_cmp_u_f32 vcc, v8, v8")
a("s_cbranch_vccz LE3OK")
retry("LE3", "LE3OK")
a.label("LE3OK")
stamp(7)
a("ds_write_b32 v58, v8")
a("v_lshlrev_b32 v8, 2, v1")
a(f"v_add_u32 v9, {FB}, v8")
a("s_lshl_b32 s45, s2, 7")
a(f"s_add_u32 s46, s45, {XBUF}")
a("v_add_u32 v10, s46, v8")
a("s_waitcnt lgkmcnt(0)")
a("s_barrier")
a("s_cmp_eq_u32 s24, 0")
a("s_cbranch_scc0 LSTQ")
a("s_mov_b32 exec_hi, 0")
for w in range(4):
    a(f"ds_read_b32 v{12+w}, v9 offset:{128*w}")
a("ds_read_b32 v16, v10")
a("s_waitcnt lgkmcnt(0)")
a("v_add_f32 v12, v12, v13")
a("v_add_f32 v14, v14, v15")
a("v_add_f32 v12, v12, v14")
bf16r(12, 12)
a("v_add_f32 v12, v12, v16")
a("v_cvt_pk_bf16_f32 v12, v12, v12")
a("s_cmp_eq_u32 s31, 0")
a("s_cbranch_scc0 LFINAL")
a("v_and_b32 v12, 0xffff0000, v12")
a("s_add_u32 s45, s45, s39")
a(f"s_add_u32 s45, s45, {X4}")
a("buffer_store_dword v12, v8, s[12:15], s45 offen sc1")
a("s_mov_b64 exec, -1")
a("s_branch LSTQ")
a.label("LFINAL")
a("s_lshl_b32 s45, s2, 6")
a("v_lshlrev_b32 v8, 1, v1")
a("buffer_store_short v12, v8, s[16:19], s45 offen")
a("s_mov_b64 exec, 1")
a("s_cmp_eq_u32 s2, 0")
a("s_cbranch_scc0 LNOEP")
a("v_mov_b32 v9, s29")
a("buffer_store_dword v9, v8, s[12:15], 0 offen sc1")
a.label("LNOEP")
a("s_mov_b64 exec, -1")
a.label("LSTQ")
stamp(8)
a("s_cmp_eq_u32 s31, 0")
a("s_cbranch_scc0 LDONE")
a("s_cmp_eq_u32 s24, 3")
a("s_cbranch_scc0 LQ5")
a(f"s_add_u32 s44, s39, {X4}")
a("v_lshlrev_b32 v8, 2, v1")
a.label("LE4")
for i in range(9):
    a(f"buffer_load_dword v{XR+i}, v8, s[12:15], s44 offen offset:{i*256} sc1")
a("s_waitcnt vmcnt(0)")
a(f"v_add_f32 v9, v{XR}, v{XR+1}")
for i in range(2, 9):
    a(f"v_add_f32 v9, v9, v{XR+i}")
a("v_cmp_u_f32 vcc, v9, v9")
a("s_cbranch_vccz LE4OK")
retry("LE4", "LE4OK")
a.label("LE4OK")
stamp(9)
a(f"s_mov_b32 s54, {X5}")
a("s_call_b64 s[36:37], LQSTAGE")
a.label("LQ5")
a("s_mov_b32 s31, 1")
a(f"s_add_u32 s39, s39, {LSTRIDE}")
a("s_add_u32 s88, s88, 4096")
a("s_addc_u32 s89, s89, 0")
a("s_lshl_b32 s44, s26, 2")
a("s_add_u32 s44, s44, s24")
a("s_lshl_b32 s92, s44, 13")
a(f"s_add_u32 s92, s92, {4*UNIT_STEP}")
qpoll_addr(X5)
a("s_barrier")
if STAMPS:
    a("s_memrealtime s[58:59]")
    a("s_waitcnt lgkmcnt(0)")
    a("s_mov_b32 s74, s58")
a("s_branch LQPOLL")

a.label("LQSTAGE")
a("v_lshlrev_b32 v8, 2, v1")
a(f"v_add_u32 v8, {XBUF}, v8")
for i in range(9):
    a(f"ds_write_b32 v8, v{XR+i} offset:{i*256}")
tile_addr(58, 59, base=WQ)
layernorm()
gemv(18, 57, 58, 8, 60)
a("s_lshl_b32 s44, s94, 11")
a("s_lshl_b32 s45, s95, 7")
a("s_add_u32 s44, s44, s45")
a("s_add_u32 s44, s44, s54")
a("v_lshlrev_b32 v8, 2, v1")
a("v_mov_b32 v11, s29")
a(f"v_mov_b32_dpp v9, v60 quad_perm:[1,1,3,3]{DPPM}")
a("v_cvt_pk_bf16_f32 v10, v60, v9")
a("s_mov_b64 exec, 0x5555")
a("buffer_store_dwordx2 v[10:11], v8, s[12:15], s44 offen sc1")
a("s_mov_b64 exec, -1")
a("s_setpc_b64 s[36:37]")

a.label("LRING")
a.vq = qtags("R0") + qtags("R1") + qtags("R2")
for s in range(3):
    lp, lg = a.newlabel("pool"), a.newlabel("go")
    a("s_waitcnt lgkmcnt(0)")
    a(f"s_cmp_lt_u32 s90, {NPOOL}")
    a(f"s_cbranch_scc1 {lp}")
    a("s_cmp_eq_u32 s91, 0")
    a(f"s_cbranch_scc1 LDRAINE{s}")
    a("s_sub_u32 s91, s91, 1")
    a("s_mov_b32 s32, s92")
    a("s_add_u32 s92, s92, s34")
    a(f"s_branch {lg}")
    a.label(lp)
    a("s_add_u32 s32, s90, 448")
    a("s_lshl_b32 s32, s32, 13")
    a("s_mov_b32 s90, 1")
    a("s_atomic_add s90, s[88:89], 0 glc")
    a.label(lg)
    a("s_add_u32 s33, s32, 4096")
    unit("v", RING[s], f"R{s}", f"R{s}n", noadv=True)
    a.vq = [(t[0].rstrip("n"), t[1], t[2]) for t in a.vq]
    a("s_sub_u32 s35, s35, 1")
    a("s_cmp_eq_u32 s35, 0")
    if s < 2:
        a("s_cbranch_scc1 LRINGX")
    else:
        a("s_cbranch_scc0 LRING")
a.label("LRINGX")
a("s_setpc_b64 s[36:37]")

for s in range(3):
    a.label(f"LDRAINE{s}")
    a("v_mov_b32 v48, 0")
    a("buffer_load_dword v49, v48, s[20:23], 0 offen sc1")
    a("s_mov_b32 s93, 0")
    a(f"s_branch LDRAIN{s}")
for s in range(3):
    a.label(f"LDRAIN{s}")
    unit_drain(RING[s])
    a("s_add_u32 s93, s93, 1")
    a("s_cmp_eq_u32 s93, 3")
    a("s_cbranch_scc1 LPASSEND")
a("s_branch LDRAIN0")

a.label("LDONE")
if STAMPS:
    a("s_memrealtime s[58:59]")
    a("s_waitcnt lgkmcnt(0)")
    a("s_mov_b32 s87, s58")
    a("s_lshl_b32 s44, s2, 2")
    a("s_add_u32 s44, s44, s24")
    a("s_lshl_b32 s44, s44, 7")
    a(f"s_add_u32 s44, s44, {STAMP_OFF}")
    a("v_mov_b32 v8, 0")
    a("s_mov_b64 exec, 1")
    for i in range(24):
        a(f"v_mov_b32 v9, s{64+i}")
        a(f"buffer_store_dword v9, v8, s[12:15], s44 offen offset:{4*i}")
    a("v_mov_b32 v9, s100")
    a("buffer_store_dword v9, v8, s[12:15], s44 offen offset:96")
    for i, r in enumerate((3, 55, 56, 57, 101)):
        a(f"v_mov_b32 v9, s{r}")
        a(f"buffer_store_dword v9, v8, s[12:15], s44 offen offset:{100+4*i}")
    a("s_waitcnt vmcnt(0)")
a.label("LEND")
a("s_endpgm")

hdr = open("cdna_kernels/" + NAME + ".s.ref").read().split("\n")
top = [l for l in hdr if l.startswith(";") and "@launch" not in l]
out = "\n".join(top) + "\n"
out += f"; @launch grid=(256,1,1) block=(256,1,1) lds={LDS_SIZE}\n"
out += f""".amdgcn_target "amdgcn-amd-amdhsa--gfx950"
.text
.globl {NAME}_kernel
.p2align 8
.type {NAME}_kernel,@function
"""
out += a.text()
out += f""".section .rodata,"a"
.p2align 6
.amdhsa_kernel {NAME}_kernel
  .amdhsa_next_free_vgpr 512
  .amdhsa_next_free_sgpr 102
  .amdhsa_accum_offset 256
  .amdhsa_group_segment_fixed_size 0
  .amdhsa_kernarg_size 96
  .amdhsa_user_sgpr_count 2
  .amdhsa_user_sgpr_kernarg_segment_ptr 1
  .amdhsa_system_sgpr_workgroup_id_x 1
.end_amdhsa_kernel
"""
open(sys.argv[1], "w").write(out)
```

```python
import sys, struct, math
from asmlib import Asm

NAME = "interleave_layers__gqa_block_cached__glu_gated_reglu__decode"
OPT = dict(stamps=0, p2rev=0, kvpol="nt", wpol="nt", wskip=0)
for arg in sys.argv[2:]:
    k, v = arg.split("=")
    OPT[k] = int(v) if v.lstrip("-").isdigit() else v
STAMPS = OPT["stamps"]
KVPOL = "" if OPT["kvpol"] == "def" else " " + OPT["kvpol"]
WPOL = "" if OPT["wpol"] == "def" else " " + OPT["wpol"]


def f32(x):
    return "0x%08x" % struct.unpack("<I", struct.pack("<f", x))[0]


X0 = 0x1000
X5 = 0x9000
CTR = 0x11000
LB0 = 0x20000
LSTRIDE = 0xE0000
X1 = 0x0
X1S = 1280
X2 = 0x50000
X3 = 0x62000
X4 = 0xCE000
STAMP_OFF = 0x200000
WS_SIZE = 0x400000
NPOOL = 22 * 64
WQ = 0
WO = 18432
WOS = 8448
WGU = 43776
TS = 18560
WD = 99456
XBUF = 128128
XN = 130432
CB1 = 135040
CS1 = 139136
CB2 = 139200
CS2 = 143296
OB = 143360
FB = 143872
HB = 144384
LDS_SIZE = 144448

UNIT_STEP = 524288
DPPM = " row_mask:0xf bank_mask:0xf"
a = Asm()
stamp_n = [0]


def stamp(i):
    if not STAMPS:
        return
    a("s_memrealtime s[58:59]")
    a("s_waitcnt lgkmcnt(0)")
    lab = a.newlabel("st")
    a(f"s_mov_b32 s{64+12+i}, s58")
    a("s_cmp_eq_u32 s31, 0")
    a(f"s_cbranch_scc0 {lab}")
    a(f"s_mov_b32 s{64+i}, s58")
    a.label(lab)


def sstamp(reg):
    if not STAMPS:
        return
    a("s_memrealtime s[58:59]")
    a("s_waitcnt lgkmcnt(0)")
    a(f"s_mov_b32 s{reg}, s58")


def R(kind, base, n=4):
    return f"{kind}[{base}:{base+n-1}]"


def srd(d, lo, hi, size):
    a(f"s_mov_b32 s{d}, s{lo}")
    a(f"s_and_b32 s{d+1}, s{hi}, 0xffff")
    a(f"s_mov_b32 s{d+2}, {size}")
    a(f"s_mov_b32 s{d+3}, 0x20000")


def srd_role(d, lo, hi, size):
    a(f"s_cselect_b32 s{d+2}, {size}, 0")
    a(f"s_mov_b32 s{d}, s{lo}")
    a(f"s_and_b32 s{d+1}, s{hi}, 0xffff")
    a(f"s_mov_b32 s{d+3}, 0x20000")


def ldK(kind, base, t, tag):
    a(f"buffer_load_dwordx4 {R(kind, base+4*t)}, v2, s[4:7], s{32+(t>>2)} offen offset:{(t&3)*1024}{KVPOL}", tag=(tag, "K", t))


def ldV(kind, base, t, tag):
    a(f"buffer_load_dwordx4 {R(kind, base+32+4*t)}, v3, s[8:11], s{32+(t>>2)} offen offset:{(t&3)*1024}{KVPOL}", tag=(tag, "V", t))


def adv():
    a("s_add_u32 s32, s32, s34")
    a("s_add_u32 s33, s33, s34")


def burst(kind, base, tag):
    for t in range(8):
        ldK(kind, base, t, tag)
    for t in range(8):
        ldV(kind, base, t, tag)
    adv()


def waitq(tag, floor=0):
    if tag in a.vq:
        a.wait_vm(tag, floor)


def allreduce(op, v, t, first=0):
    steps = ["quad_perm:[1,0,3,2]", "quad_perm:[2,3,0,1]", "row_half_mirror", "row_mirror"]
    for s in steps[first:]:
        a(f"{op}_dpp v{v}, v{v}, v{v} {s}{DPPM}")
    rows(op, v, t)


def rows(op, v, t):
    a(f"v_mov_b32 v{t}, v{v}")
    a(f"v_permlane16_swap_b32 v{v}, v{t}")
    a(f"{op} v{v}, v{v}, v{t}")
    a(f"v_mov_b32 v{t}, v{v}")
    a(f"v_permlane32_swap_b32 v{v}, v{t}")
    a(f"{op} v{v}, v{v}, v{t}")


QE, QO, OA, MS, LS, NMC = 8, 12, 16, 20, 21, 22
DS_ = [24, 28, 32, 36]
TT = 40
TMP = 44


def unit(kind, base, tag, reload_tag=None, floor=0, hooks=None, noadv=False):
    if hooks:
        hooks[0]()
    for u in range(4):
        waitq((tag, "K", 2 * u + 1), floor)
        d = R("v", DS_[u])
        a(f"v_mfma_f32_16x16x32_bf16 {d}, {R(kind, base+8*u)}, {R('v', QE)}, 0")
        a(f"v_mfma_f32_16x16x32_bf16 {d}, {R(kind, base+8*u+4)}, {R('v', QO)}, {d}")
        if reload_tag is not None:
            ldK(kind, base, 2 * u, reload_tag)
            ldK(kind, base, 2 * u + 1, reload_tag)
    order = [(0, 0), (1, 0), (2, 0), (0, 1), (1, 1), (2, 1), (0, 2), (1, 2), (3, 0), (2, 2), (0, 3), (3, 1),
             (1, 3), (2, 3), (3, 2), None, (3, 3)]
    for o in order:
        if o is None:
            a(f"v_max3_f32 v{TMP}, v{TT}, v{TT+1}, v{MS}")
            continue
        u, c = o
        qp = f"quad_perm:[{c},{c},{c},{c}]"
        if c == 0:
            a(f"v_mov_b32_dpp v{TT+u}, v{DS_[u]} {qp}{DPPM}")
        else:
            a(f"v_add_f32_dpp v{TT+u}, v{DS_[u]+c}, v{TT+u} {qp}{DPPM}")
    a(f"v_max3_f32 v{TMP}, v{TMP}, v{TT+2}, v{TT+3}")
    a(f"v_max_f32_dpp v{TMP}, v{TMP}, v{TMP} row_half_mirror{DPPM}")
    rows("v_max_f32", TMP, TMP + 1)
    a(f"v_sub_f32 v{TMP+1}, v{MS}, v{TMP}")
    a(f"v_mul_f32 v{TMP+1}, s30, v{TMP+1}")
    a(f"v_exp_f32 v{TMP+1}, v{TMP+1}")
    a(f"v_mov_b32 v{MS}, v{TMP}")
    a(f"v_mul_f32 v{NMC}, s30, v{TMP}")
    for u in range(4):
        a(f"v_fma_f32 v{TT+u}, v{TT+u}, s30, -v{NMC}")
    for u in range(4):
        a(f"v_exp_f32 v{TT+u}, v{TT+u}")
    a(f"v_mul_f32 v{LS}, v{LS}, v{TMP+1}")
    for r in range(4):
        a(f"v_mul_f32 v{OA+r}, v{OA+r}, v{TMP+1}")
    a(f"v_add_f32 v{TMP+2}, v{TT}, v{TT+1}")
    a(f"v_add_f32 v{TMP+3}, v{TT+2}, v{TT+3}")
    for u in range(4):
        a(f"v_cvt_pk_bf16_f32 v{TT+u}, v{TT+u}, v{TT+u}")
    a(f"v_add_f32 v{TMP+2}, v{TMP+2}, v{TMP+3}")
    a(f"v_add_f32 v{LS}, v{LS}, v{TMP+2}")

    def buildB(t):
        b = DS_[t & 3]
        p = TT + (t >> 1)
        for i in range(4):
            own = (i < 2) == ((t & 1) == 0)
            if own:
                a(f"v_and_b32 v{b+i}, v{p}, v{4+i}")
            else:
                sh = "row_shr:4" if (t & 1) == 0 else "row_shl:4"
                a(f"v_and_b32_dpp v{b+i}, v{p}, v{4+i} {sh}{DPPM} bound_ctrl:1")

    buildB(0)
    if hooks:
        hooks[1]()
    for t in range(8):
        if t + 1 < 8:
            buildB(t + 1)
        waitq((tag, "V", t), floor)
        a(f"v_mfma_f32_16x16x32_bf16 {R('v', OA)}, {R(kind, base+32+4*t)}, {R('v', DS_[t&3])}, {R('v', OA)}")
        if reload_tag is not None:
            ldV(kind, base, t, reload_tag)
    if reload_tag is not None and not noadv:
        adv()


def qtags(tag):
    return [(tag, "K", t) for t in range(8)] + [(tag, "V", t) for t in range(8)]


RING = [64, 128, 192]


def bf16r(d, s):
    a(f"v_cvt_pk_bf16_f32 v{d}, v{s}, v{s}")
    a(f"v_and_b32 v{d}, 0xffff0000, v{d}")


def gemv(nk, vA, vB, T, acc, bstep=1024, bhalf=128):
    S = 4

    def issue(kk):
        s = T + 8 * (kk % S)
        a(f"ds_read_b128 {R('v', s)}, v{vA} offset:{kk*64}")
        a(f"ds_read_b64_tr_b16 {R('v', s+4, 2)}, v{vB} offset:{kk*bstep}")
        a(f"ds_read_b64_tr_b16 {R('v', s+6, 2)}, v{vB} offset:{kk*bstep+bhalf}")

    for kk in range(min(S, nk)):
        issue(kk)
    for kk in range(nk):
        a(f"s_waitcnt lgkmcnt({3*(min(nk, kk+S)-kk-1)})")
        s = T + 8 * (kk % S)
        c = "0" if kk == 0 else R("v", acc)
        a(f"v_mfma_f32_16x16x32_bf16 {R('v', acc)}, {R('v', s)}, {R('v', s+4)}, {c}")
        if kk + S < nk:
            issue(kk + S)


def tile_addr(v, t, base_sgpr=None, base=0):
    a(f"v_lshrrev_b32 v{v}, 4, v1")
    a(f"v_lshlrev_b32 v{v}, 8, v{v}")
    a(f"v_and_b32 v{t}, 15, v1")
    a(f"v_lshl_add_u32 v{v}, v{t}, 3, v{v}")
    if base:
        a(f"v_add_u32 v{v}, {base}, v{v}")
    if base_sgpr is not None:
        a(f"v_add_u32 v{v}, s{base_sgpr}, v{v}")


def afrag_addr(v, base_sgpr=None, base=0):
    a(f"v_lshrrev_b32 v{v}, 4, v1")
    a(f"v_lshlrev_b32 v{v}, 4, v{v}")
    if base:
        a(f"v_add_u32 v{v}, {base}, v{v}")
    if base_sgpr is not None:
        a(f"v_add_u32 v{v}, s{base_sgpr}, v{v}")


XR = 44


def layernorm():
    s, t, mb, rs = 53, 54, 55, 56
    a(f"v_add_f32 v{s}, v{XR}, v{XR+1}")
    for i in range(2, 9):
        a(f"v_add_f32 v{s}, v{s}, v{XR+i}")
    allreduce("v_add_f32", s, t)
    a(f"v_mul_f32 v{s}, {f32(1.0/576)}, v{s}")
    bf16r(mb, s)
    a(f"v_sub_f32 v{t}, v{XR}, v{s}")
    a(f"v_mul_f32 v{rs}, v{t}, v{t}")
    for i in range(1, 9):
        a(f"v_sub_f32 v{t}, v{XR+i}, v{s}")
        a(f"v_fmac_f32 v{rs}, v{t}, v{t}")
    allreduce("v_add_f32", rs, t)
    a(f"v_mul_f32 v{rs}, {f32(1.0/576)}, v{rs}")
    bf16r(rs, rs)
    a(f"v_add_f32 v{rs}, {f32(1e-5)}, v{rs}")
    bf16r(rs, rs)
    a(f"v_sqrt_f32 v{rs}, v{rs}")
    bf16r(rs, rs)
    a(f"v_rcp_f32 v{rs}, v{rs}")
    a("s_mul_i32 s44, s24, 1152")
    a(f"s_add_u32 s44, s44, {XN}")
    a(f"v_lshlrev_b32 v{s}, 1, v1")
    a(f"v_add_u32 v{s}, s44, v{s}")
    for i in range(9):
        a(f"v_sub_f32 v{XR+i}, v{XR+i}, v{mb}")
    for i in range(9):
        bf16r(XR + i, XR + i)
    for i in range(9):
        a(f"v_mul_f32 v{XR+i}, v{XR+i}, v{rs}")
    for i in range(9):
        a(f"v_cvt_pk_bf16_f32 v{XR+i}, v{XR+i}, v{XR+i}")
    for i in range(9):
        a(f"ds_write_b16 v{s}, v{XR+i} offset:{i*128}")
    afrag_addr(57, base_sgpr=44)
    a("s_waitcnt lgkmcnt(0)")


def retry(lab_again, lab_done):
    a("s_cmp_eq_u32 s38, 0")
    a(f"s_cbranch_scc1 {lab_done}")
    a("s_sub_u32 s38, s38, 1")
    a("s_sleep 1")
    a(f"s_branch {lab_again}")


def combine(CB, CS):
    a("v_lshlrev_b32 v8, 2, v0")
    a(f"v_add_u32 v8, {CB}, v8")
    a("s_lshr_b32 s44, s24, 1")
    a("s_lshl_b32 s44, s44, 5")
    a(f"s_add_u32 s44, s44, {CS}")
    a("v_mov_b32 v9, s44")
    a("ds_read_b128 v[12:15], v9")
    a("ds_read_b128 v[16:19], v9 offset:16")
    for w in range(4):
        a(f"ds_read_b32 v{20+w}, v8 offset:{w*1024}")
    a("s_waitcnt lgkmcnt(4)")
    a("v_max3_f32 v26, v12, v14, v16")
    a("v_max_f32 v26, v26, v18")
    for w in range(4):
        a(f"v_sub_f32 v{12+2*w}, v{12+2*w}, v26")
    for w in range(4):
        a(f"v_exp_f32 v{12+2*w}, v{12+2*w}")
    a("v_mul_f32 v27, v13, v12")
    for w in range(1, 4):
        a(f"v_fmac_f32 v27, v{13+2*w}, v{12+2*w}")
    a("s_waitcnt lgkmcnt(0)")
    a("v_mul_f32 v24, v20, v12")
    for w in range(1, 4):
        a(f"v_fmac_f32 v24, v{20+w}, v{12+2*w}")


def qpoll_issue():
    a("buffer_load_dwordx4 v[24:27], v32, s[12:15], s45 offen sc1", tag="qp")
    a("buffer_load_dwordx4 v[28:31], v32, s[12:15], s45 offen offset:16 sc1", tag="qp")


def qpoll_addr(xoff):
    a("s_lshl_b32 s45, s25, 11")
    a(f"s_add_u32 s45, s45, {xoff}")
    a("v_bfe_u32 v32, v1, 3, 1")
    a("v_lshlrev_b32 v32, 10, v32")
    a("v_lshrrev_b32 v33, 4, v1")
    a("v_lshl_add_u32 v32, v33, 8, v32")
    a("v_bfe_u32 v33, v1, 1, 1")
    a("v_lshl_add_u32 v32, v33, 7, v32")
    a("v_and_b32 v33, 1, v1")
    a("v_lshl_add_u32 v32, v33, 5, v32")


def qpoll_check():
    a("v_cmp_ne_u32 s[46:47], s29, v25")
    a("v_cmp_ne_u32 s[48:49], s29, v27")
    a("v_cmp_ne_u32 s[50:51], s29, v29")
    a("v_cmp_ne_u32 s[52:53], s29, v31")
    a("s_or_b64 s[46:47], s[46:47], s[48:49]")
    a("s_or_b64 s[50:51], s[50:51], s[52:53]")
    a("s_or_b64 s[46:47], s[46:47], s[50:51]")


def unit_drain(base):
    def pwait(n0, n1, n2):
        l0, l1 = a.newlabel("dw"), a.newlabel("dw")
        a("s_cmp_eq_u32 s93, 0")
        a(f"s_cbranch_scc1 {l0}")
        a("s_cmp_eq_u32 s93, 1")
        a(f"s_cbranch_scc1 {l1}")
        a(f"s_waitcnt vmcnt({n2})")
        a.label(l1)
        a(f"s_waitcnt vmcnt({n1})")
        a.label(l0)
        a(f"s_waitcnt vmcnt({n0})")
    a.vq = []
    unit("v", base, "none", None, hooks=(lambda: pwait(41, 25, 9), lambda: pwait(33, 17, 1)))


a.raw(f"{NAME}_kernel:")
a("s_cmp_ge_u32 s2, 256")
a("s_cbranch_scc1 LEND")
if STAMPS:
    a("s_memrealtime s[100:101]")
a("s_load_dwordx16 s[64:79], s[0:1], 0")
a("s_load_dwordx8 s[80:87], s[0:1], 64")
a("v_and_b32 v1, 63, v0")
a("v_lshrrev_b32 v40, 6, v0")
a("v_readfirstlane_b32 s24, v40")
a("s_and_b32 s28, s2, 7")
a("s_lshr_b32 s27, s2, 3")
a("s_lshr_b32 s25, s2, 4")
a("s_and_b32 s26, s2, 15")
a("s_lshr_b32 s44, s27, 4")
a("s_lshl_b32 s94, s28, 1")
a("s_add_u32 s94, s94, s44")
a("s_and_b32 s95, s27, 15")
a(f"s_mov_b32 s30, {f32(math.log2(math.e)/math.sqrt(128.0))}")
a("s_mov_b32 s31, 0")
a(f"s_mov_b32 s34, {UNIT_STEP}")
a("s_mov_b32 s38, 400000")
a(f"s_mov_b32 s39, {LB0}")
a("s_mov_b32 s42, 0xf0f0f0f0")
a("s_mov_b32 s43, 0xf0f0f0f0")
a("s_lshl_b32 s44, s26, 2")
a("s_add_u32 s44, s44, s24")
a("s_lshl_b32 s32, s44, 13")
a("s_add_u32 s33, s32, 4096")
a("v_lshlrev_b32 v3, 4, v1")
a("v_bfe_u32 v40, v1, 2, 2")
a("v_lshlrev_b32 v2, 8, v40")
a("v_lshrrev_b32 v40, 4, v1")
a("v_lshl_add_u32 v2, v40, 6, v2")
a("v_and_b32 v40, 3, v1")
a("v_lshl_add_u32 v2, v40, 4, v2")
a("s_waitcnt lgkmcnt(0)")
a("s_load_dword s29, s[86:87], 0")
a("s_lshl_b32 s44, s25, 24")
a("s_add_u32 s4, s66, s44")
a("s_addc_u32 s5, s67, 0")
a("s_and_b32 s5, s5, 0xffff")
a("s_mov_b32 s6, 0x1000000")
a("s_mov_b32 s7, 0x20000")
a("s_add_u32 s8, s68, s44")
a("s_addc_u32 s9, s69, 0")
a("s_and_b32 s9, s9, 0xffff")
a("s_mov_b32 s10, 0x1000000")
a("s_mov_b32 s11, 0x20000")
srd(12, 86, 87, WS_SIZE)
a("s_cmp_eq_u32 s24, 3")
a("s_cbranch_scc0 LPRO1")
srd(60, 64, 65, 1152)
srd(96, 70, 71, 0 if OPT["wskip"] & 8 else 576 * 8192)
a("v_lshlrev_b32 v40, 1, v1")
for i in range(9):
    a(f"buffer_load_ushort v{XR+i}, v40, s[60:63], 0 offen offset:{i*128}")
a("v_lshrrev_b32 v40, 1, v1")
a("v_lshlrev_b32 v40, 13, v40")
a("v_and_b32 v41, 1, v1")
a("v_lshl_add_u32 v40, v41, 4, v40")
a("s_lshl_b32 s44, s94, 9")
a("s_lshl_b32 s45, s95, 5")
a("s_add_u32 s44, s44, s45")
for i in range(18):
    a(f"buffer_load_dwordx4 {R('v', 64+4*i)}, v40, s[96:99], s44 offen{WPOL}")
    a("s_add_u32 s44, s44, 262144")
a("s_cmp_eq_u32 s95, 0")
a("s_cbranch_scc0 LPRO0")
a("v_lshlrev_b32 v40, 12, v1")
a("v_mov_b32 v41, 0")
a("s_lshl_b32 s44, s94, 8")
a(f"s_add_u32 s44, s44, {CTR}")
a("s_mov_b64 exec, 3")
a("buffer_store_dword v41, v40, s[12:15], s44 offen sc1")
a("s_mov_b64 exec, -1")
a.label("LPRO0")
a("s_waitcnt vmcnt(0) lgkmcnt(0)")
sstamp(3)
a("s_mul_i32 s29, s29, 0x9e3779b1")
a("s_add_u32 s29, s29, 0x7f4a7c15")
for i in range(9):
    a(f"v_lshlrev_b32 v{XR+i}, 16, v{XR+i}")
for i in range(18):
    a(f"ds_write_b128 v3, {R('v', 64+4*i)} offset:{WQ+i*1024}")
a(f"s_mov_b32 s54, {X0}")
a("s_call_b64 s[36:37], LQSTAGE")
a("s_branch LPRO2")
a.label("LPRO1")
a("s_waitcnt lgkmcnt(0)")
a("s_mul_i32 s29, s29, 0x9e3779b1")
a("s_add_u32 s29, s29, 0x7f4a7c15")
a("s_cmp_eq_u32 s24, 0")
a("s_cbranch_scc0 LPRO2")
a("v_mov_b32 v24, -1\nv_mov_b32 v25, -1\nv_mov_b32 v26, -1\nv_mov_b32 v27, -1")
a("s_mul_i32 s44, s2, 7168")
a(f"s_add_u32 s44, s44, {LB0}")
a("s_add_u32 s45, s44, 4096")
for i in range(7):
    a(f"buffer_store_dwordx4 v[24:27], v3, s[12:15], s{44+(i>>2)} offen offset:{1024*(i&3)} sc1")
a.label("LPRO2")
sstamp(55)
a.vq = []
burst("a", 0, "A0")
burst("a", 64, "A1")
srd(16, 82, 83, 1152)
srd(20, 84, 85, 256)
a("v_and_b32 v40, 1, v1")
a("v_lshlrev_b32 v40, 4, v40")
a("v_mov_b32 v41, 0xffff")
a("v_lshlrev_b32 v40, v40, v41")
for i in range(4):
    m = 0x03030303 << (2 * i)
    a(f"s_mov_b32 s40, 0x{m:08x}")
    a(f"s_mov_b32 s41, 0x{m:08x}")
    a(f"v_cndmask_b32 v{4+i}, 0, v40, s[40:41]")
a("s_lshl_b32 s44, s25, 8")
a(f"s_add_u32 s44, s44, {CTR}")
a("s_add_u32 s88, s86, s44")
a("s_addc_u32 s89, s87, 0")
a.wait_vm_n(27)
sstamp(56)
a("s_cmp_lt_u32 s95, 12")
srd_role(60, 72, 73, 0 if OPT["wskip"] & 1 else 4096 * 1152)
a("v_mul_u32_u24 v41, 43, v1")
a("v_lshrrev_b32 v41, 8, v41")
a("v_mul_u32_u24 v42, 6, v41")
a("v_sub_u32 v42, v1, v42")
a("v_mul_u32_u24 v40, 1152, v41")
a("v_lshl_add_u32 v40, v42, 4, v40")
a("s_lshl_b32 s44, s94, 8")
a("s_lshl_b32 s45, s24, 6")
a("s_add_u32 s44, s44, s45")
a("s_mul_i32 s44, s44, 1152")
a("s_mul_i32 s45, s95, 96")
a("s_add_u32 s44, s44, s45")
for i in range(7):
    a(f"buffer_load_dwordx4 {R('v', 64+4*i)}, v40, s[60:63], s44 offen{WPOL}", tag="w")
    a(f"s_add_u32 s44, s44, {10*1152}")
a("v_lshrrev_b32 v34, 1, v42")
a(f"v_mul_u32_u24 v34, {WOS}, v34")
a("v_lshl_add_u32 v34, v41, 5, v34")
a("v_and_b32 v42, 1, v42")
a("v_lshl_add_u32 v34, v42, 4, v34")
a("s_lshl_b32 s45, s24, 11")
a(f"s_add_u32 s45, s45, {WO}")
a("v_add_u32 v34, s45, v34")
a("s_cmp_lt_u32 s27, 24")
srd_role(60, 76, 77, 0 if OPT["wskip"] & 2 else 576 * 9216)
a("s_cmp_lt_u32 s27, 24")
srd_role(96, 78, 79, 0 if OPT["wskip"] & 2 else 576 * 9216)
a("v_mul_u32_u24 v41, 43, v1")
a("v_lshrrev_b32 v41, 7, v41")
a("v_mul_u32_u24 v42, 3, v41")
a("v_sub_u32 v42, v1, v42")
a("v_mul_u32_u24 v40, 9216, v41")
a("v_lshl_add_u32 v40, v42, 4, v40")
a("s_mul_i32 s46, s28, 24")
a("s_add_u32 s46, s46, s27")
a("s_mul_i32 s44, s46, 48")
a(f"s_mul_i32 s45, s24, {144*9216}")
a("s_add_u32 s44, s44, s45")
for i in range(7):
    a(f"buffer_load_dwordx4 {R('v', 92+8*i)}, v40, s[60:63], s44 offen{WPOL}", tag="w")
    a(f"buffer_load_dwordx4 {R('v', 96+8*i)}, v40, s[96:99], s44 offen{WPOL}", tag="w")
    a(f"s_add_u32 s44, s44, {21*9216}")
a(f"v_mul_u32_u24 v43, {TS}, v42")
a("v_lshl_add_u32 v43, v41, 5, v43")
a(f"s_mul_i32 s45, s24, {144*32}")
a(f"s_add_u32 s45, s45, {WGU}")
a("v_add_u32 v43, s45, v43")
a("s_cmp_lt_u32 s27, 24")
srd_role(60, 80, 81, 0 if OPT["wskip"] & 4 else 4608 * 1152)
a(f"s_mul_i32 s44, s46, {24*1152}")
a("s_mul_i32 s45, s24, 7168")
a("s_add_u32 s44, s44, s45")
a("s_add_u32 s45, s44, 4096")
for i in range(7):
    a(f"buffer_load_dwordx4 {R('v', 148+4*i)}, v3, s[60:63], s{44+(i>>2)} offen offset:{(i&3)*1024}{WPOL}", tag="w")
sstamp(57)
a.wait_vm_n(40)
burst("a", 128, "A2")
qpoll_addr(X0)
a.wait_vm_n(40)
sstamp(101)
qpoll_issue()
burst("a", 192, "A3")
a.wait_vm("w")
for i in range(7):
    a(f"ds_write_b128 v34, {R('v', 64+4*i)} offset:{i*320}")
for i in range(7):
    a(f"ds_write_b128 v43, {R('v', 92+8*i)} offset:{i*21*32}")
    a(f"ds_write_b128 v43, {R('v', 96+8*i)} offset:{i*21*32+16}")
a("s_mul_i32 s44, s24, 7168")
a(f"s_add_u32 s44, s44, {WD}")
a("v_add_u32 v40, s44, v3")
for i in range(7):
    a(f"ds_write_b128 v40, {R('v', 148+4*i)} offset:{i*1024}")
a(f"v_mov_b32 v40, {HB+48}")
a("v_mov_b32 v36, 0\nv_mov_b32 v37, 0\nv_mov_b32 v38, 0\nv_mov_b32 v39, 0")
a("ds_write_b128 v40, v[36:39]")
a("s_waitcnt lgkmcnt(0)")
burst("v", RING[0], "R0")
a.wait_vm("qp")
if STAMPS:
    a("s_memrealtime s[58:59]")
    a("s_waitcnt lgkmcnt(0)")
    a("s_mov_b32 s75, s58")
qpoll_check()
a("s_cbranch_scc0 LQREADY")

a.label("LQPOLL")
qpoll_issue()
a("s_waitcnt vmcnt(0)")
qpoll_check()
a("s_cbranch_scc0 LQREADY")
retry("LQPOLL", "LQREADY")
a.label("LQREADY")
for i in range(4):
    a(f"v_cndmask_b32 v{QE+i}, v{24+2*i}, 0, s[42:43]")
    a(f"v_cndmask_b32 v{QO+i}, 0, v{24+2*i}, s[42:43]")
for r in range(4):
    a(f"v_mov_b32 v{OA+r}, 0")
a(f"v_mov_b32 v{MS}, {f32(-1e30)}")
a(f"v_mov_b32 v{LS}, 0")
stamp(0)
a("s_cmp_eq_u32 s31, 0")
a("s_cbranch_scc0 LP2")
a("s_cmp_eq_u32 s24, 0")
a("s_cbranch_scc0 LAPART")
a("s_mov_b32 s44, 1")
a("s_atomic_add s44, s[84:85], 0")
a("s_branch LAPART")
a.label("LP2")
a("s_mov_b32 s35, 3")
a(f"s_mov_b32 s90, {NPOOL}")
a("s_mov_b32 s91, 3")
a("s_call_b64 s[36:37], LRING")
a.label("LAPART")
a("s_mov_b32 s90, 1")
a("s_atomic_add s90, s[88:89], 0 glc")
a.vq = qtags("A3") + qtags("R0")
for i in range(4):
    if i < 2:
        lab = a.newlabel("nb")
        a("s_cmp_eq_u32 s31, 0")
        a(f"s_cbranch_scc0 {lab}")
        a.wait_vm_n(47)
        burst("v", RING[i + 1], f"R{i+1}")
        a.label(lab)
    unit("a", 64 * i, f"A{i}", None, floor=48)
assert a.vq == qtags("R0") + qtags("R1") + qtags("R2"), a.vq
a("s_lshl_b32 s44, s26, 2")
a("s_add_u32 s44, s44, s24")
a("s_lshl_b32 s92, s44, 13")
a(f"s_add_u32 s92, s92, {29*UNIT_STEP}")
a("s_cmp_eq_u32 s31, 0")
a("s_cselect_b32 s91, 3, 0")
a("s_mov_b32 s35, 0x7fffffff")
a("s_call_b64 s[36:37], LRING")
a.label("LPASSEND")
stamp(1)
a(f"v_add_f32_dpp v{LS}, v{LS}, v{LS} row_half_mirror{DPPM}")
rows("v_add_f32", LS, TMP)
a(f"v_mul_f32 v22, s30, v{MS}")
a(f"v_mov_b32 v23, v{LS}")
a("v_bfe_u32 v40, v1, 3, 1")
a("v_lshlrev_b32 v41, 9, v40")
a("v_lshrrev_b32 v42, 4, v1")
a("v_lshl_add_u32 v41, v42, 7, v41")
a("v_and_b32 v42, 7, v1")
a("v_lshl_add_u32 v41, v42, 2, v41")
a("s_lshl_b32 s44, s24, 10")
a(f"s_add_u32 s44, s44, {CB1}")
a("v_add_u32 v41, s44, v41")
for r in range(4):
    a(f"ds_write_b32 v41, v{OA+r} offset:{32*r}")
a("s_lshl_b32 s44, s24, 3")
a(f"s_add_u32 s44, s44, {CS1}")
a("v_lshlrev_b32 v40, 5, v40")
a("v_add_u32 v40, s44, v40")
a("ds_write_b64 v40, v[22:23]")
a.label("LCNT")
a("s_waitcnt vmcnt(0)")
a("v_readfirstlane_b32 s44, v49")
a("s_cmp_ge_u32 s44, 256")
a("s_cbranch_scc1 LCNTOK")
a("v_mov_b32 v48, 0")
a("buffer_load_dword v49, v48, s[20:23], 0 offen sc1")
retry("LCNT", "LCNTOK")
a.label("LCNTOK")
a("s_waitcnt lgkmcnt(0)")
a("s_barrier")
combine(CB1, CS1)
a(f"s_mul_i32 s44, s2, {X1S}")
a("s_add_u32 s44, s44, s39")
a("v_lshlrev_b32 v8, 2, v0")
a("buffer_store_dword v24, v8, s[12:15], s44 offen sc1")
a("s_lshl_b32 s45, s24, 6")
a("v_mov_b32 v9, s45")
a("s_bitcmp0_b32 s24, 0")
a("s_cbranch_scc0 LPUB1")
a("s_mov_b64 exec, 1")
a("buffer_store_dwordx2 v[26:27], v9, s[12:15], s44 offen offset:1024 sc1")
a("s_mov_b64 exec, -1")
a.label("LPUB1")
stamp(2)
a("s_cmp_lt_u32 s95, 12")
a("s_cbranch_scc0 LSTC")
a("s_lshl_b32 s44, s94, 4")
a("s_lshl_b32 s45, s24, 2")
a("s_add_u32 s44, s44, s45")
a(f"s_mul_i32 s44, s44, {X1S}")
a("s_add_u32 s44, s44, s39")
a("v_lshrrev_b32 v8, 5, v1")
a("v_lshlrev_b32 v9, 7, v8")
a("v_add_u32 v9, 1024, v9")
a.label("LE1")
for p in range(4):
    a(f"buffer_load_dwordx2 {R('v', 28+2*p, 2)}, v9, s[12:15], s44 offen offset:{p*X1S} sc1")
for p in range(4):
    a(f"buffer_load_dwordx4 {R('v', 12+4*p)}, v3, s[12:15], s44 offen offset:{p*X1S} sc1")
a("s_waitcnt vmcnt(4)")
a("v_max3_f32 v40, v28, v30, v32")
a("v_max_f32 v40, v40, v34")
for p in range(4):
    a(f"v_sub_f32 v{28+2*p}, v{28+2*p}, v40")
for p in range(4):
    a(f"v_exp_f32 v{28+2*p}, v{28+2*p}")
a("v_mul_f32 v41, v29, v28")
for p in range(1, 4):
    a(f"v_fmac_f32 v41, v{29+2*p}, v{28+2*p}")
a("s_waitcnt vmcnt(0)")
for r in range(4):
    a(f"v_mul_f32 v{36+r}, v{12+r}, v28")
for p in range(1, 4):
    for r in range(4):
        a(f"v_fmac_f32 v{36+r}, v{12+4*p+r}, v{28+2*p}")
a("v_add_f32 v42, v36, v37")
a("v_add_f32 v43, v38, v39")
a("v_add_f32 v42, v42, v41")
a("v_cmp_u_f32 vcc, v42, v43")
a("s_cbranch_vccz LE1OK")
retry("LE1", "LE1OK")
a.label("LE1OK")
stamp(3)
a("s_lshl_b32 s44, s24, 10")
a(f"s_add_u32 s44, s44, {CB2}")
a("v_add_u32 v10, s44, v3")
a("ds_write_b128 v10, v[36:39]")
a("s_lshl_b32 s44, s24, 3")
a(f"s_add_u32 s44, s44, {CS2}")
a("v_lshlrev_b32 v8, 5, v8")
a("v_add_u32 v8, s44, v8")
a("ds_write_b64 v8, v[40:41]")
a("s_waitcnt lgkmcnt(0)")
a("s_barrier")
combine(CB2, CS2)
a("v_rcp_f32 v27, v27")
a("v_lshlrev_b32 v8, 1, v0")
a(f"v_add_u32 v8, {OB}, v8")
a("v_mul_f32 v24, v24, v27")
a("v_cvt_pk_bf16_f32 v24, v24, v24")
a("ds_write_b16 v8, v24")
a(f"s_mul_i32 s44, s24, {WOS}")
tile_addr(58, 59, base_sgpr=44, base=WO)
afrag_addr(57, base=OB)
a("s_waitcnt lgkmcnt(0)")
a("s_barrier")
a("s_cmp_eq_u32 s24, 3")
a("s_cbranch_scc1 LSTC")
gemv(8, 57, 58, 8, 60)
a("s_mul_i32 s44, s94, 4608")
a("s_mul_i32 s45, s95, 384")
a("s_add_u32 s44, s44, s45")
a("s_lshl_b32 s45, s24, 7")
a("s_add_u32 s44, s44, s45")
a("s_add_u32 s44, s44, s39")
a(f"s_add_u32 s44, s44, {X2}")
a("v_lshlrev_b32 v8, 2, v1")
a("s_mov_b64 exec, 0xffff")
a("buffer_store_dword v60, v8, s[12:15], s44 offen sc1")
a("s_mov_b64 exec, -1")
a.label("LSTC")
stamp(4)
a("s_cmp_lt_u32 s27, 24")
a("s_cbranch_scc0 LSTQ")
a("s_cmp_eq_u32 s24, 3")
a("s_cbranch_scc1 LC_BAR")
a("v_lshrrev_b32 v56, 4, v1")
a("v_mul_u32_u24 v56, 4608, v56")
a("v_bfe_u32 v57, v1, 2, 2")
a("v_lshl_add_u32 v56, v57, 7, v56")
a("v_and_b32 v57, 3, v1")
a("v_lshl_add_u32 v56, v57, 4, v56")
a("v_and_b32 v57, 15, v1")
a("s_mul_i32 s44, s24, 1536")
a("s_add_u32 s44, s44, s39")
a(f"s_add_u32 s44, s44, {X2}")
for g in range(1, 4):
    a(f"s_add_u32 s{44+g}, s44, {g*18432}")
a("v_bfe_u32 v58, v1, 4, 1")
a("v_lshlrev_b32 v58, 1, v58")
a("v_lshrrev_b32 v59, 5, v1")
a("v_add_u32 v58, v58, v59")
a("v_lshl_add_u32 v58, v57, 2, v58")
a("v_lshlrev_b32 v58, 2, v58")
a("s_mul_i32 s48, s24, 768")
a(f"s_add_u32 s48, s48, {XBUF}")
a("v_add_u32 v58, s48, v58")
for c in range(3):
    a(f"ds_read_b32 v{60+c}, v58 offset:{c*256}")
a.label("LE2")
for c in range(3):
    for g in range(4):
        a(f"buffer_load_dwordx4 {R('v', 8+16*c+4*g)}, v56, s[12:15], s{44+g} offen offset:{c*512} sc1")


def swapreduce(b):
    a(f"v_permlane32_swap_b32 v{b}, v{b+1}")
    a(f"v_permlane32_swap_b32 v{b+2}, v{b+3}")
    a(f"v_add_f32 v{b}, v{b}, v{b+1}")
    a(f"v_add_f32 v{b+2}, v{b+2}, v{b+3}")
    a(f"v_permlane16_swap_b32 v{b}, v{b+2}")
    a(f"v_add_f32 v{b}, v{b}, v{b+2}")


for c in range(3):
    b = 8 + 16 * c
    a(f"s_waitcnt vmcnt({8-4*c})")
    for r in range(4):
        a(f"v_add_f32 v{b+r}, v{b+r}, v{b+4+r}")
        a(f"v_add_f32 v{b+8+r}, v{b+8+r}, v{b+12+r}")
    for r in range(4):
        a(f"v_add_f32 v{b+r}, v{b+r}, v{b+8+r}")
    swapreduce(b)
a("v_add_f32 v9, v8, v24")
a("v_cmp_u_f32 vcc, v9, v40")
a("s_cbranch_vccz LE2OK")
retry("LE2", "LE2OK")
a.label("LE2OK")
stamp(5)
a("s_waitcnt lgkmcnt(0)")
for c in range(3):
    bf16r(8 + 16 * c, 8 + 16 * c)
for c in range(3):
    a(f"v_add_f32 v{60+c}, v{60+c}, v{8+16*c}")
for c in range(3):
    bf16r(60 + c, 60 + c)
for c in range(3):
    a(f"ds_write_b32 v58, v{60+c} offset:{c*256}")
a("s_waitcnt lgkmcnt(0)")
a.label("LC_BAR")
a("s_barrier")
a("s_cmp_eq_u32 s24, 3")
a("s_cbranch_scc1 LC_BAR2")
a("v_lshlrev_b32 v8, 2, v1")
a(f"v_add_u32 v8, {XBUF}, v8")
for i in range(9):
    a(f"ds_read_b32 v{XR+i}, v8 offset:{i*256}")
a(f"s_mul_i32 s45, s24, {TS}")
tile_addr(58, 59, base_sgpr=45, base=WGU)
a("s_waitcnt lgkmcnt(0)")
layernorm()
gemv(18, 57, 58, 8, 60)
a("s_lshl_b32 s44, s24, 4")
a(f"s_add_u32 s44, s44, {HB}")
a("v_lshlrev_b32 v8, 1, v1")
a("v_add_u32 v8, s44, v8")
a(f"v_mov_b32_dpp v9, v60 row_shl:8{DPPM} bound_ctrl:1")
a("v_cvt_pk_bf16_f32 v9, v60, v9")
a("v_lshlrev_b32 v10, 16, v9")
a("v_and_b32 v9, 0xffff0000, v9")
a("v_max_f32 v10, 0, v10")
a("v_mul_f32 v9, v10, v9")
a("v_cvt_pk_bf16_f32 v9, v9, v9")
a("s_mov_b64 exec, 0xff")
a("ds_write_b16 v8, v9")
a("s_mov_b64 exec, -1")
a.label("LC_BAR2")
a("v_lshrrev_b32 v56, 4, v1")
a("v_min_u32 v57, 2, v56")
a("v_lshlrev_b32 v57, 3, v57")
a("v_bfe_u32 v58, v1, 2, 2")
a("v_add_u32 v57, v57, v58")
a("v_mul_u32_u24 v57, 1152, v57")
a("v_and_b32 v58, 3, v1")
a("v_lshl_add_u32 v57, v58, 3, v57")
a("s_lshl_b32 s44, s24, 7")
a(f"s_add_u32 s44, s44, {WD}")
a("v_add_u32 v57, s44, v57")
a("v_lshlrev_b32 v56, 4, v56")
a(f"v_add_u32 v56, {HB}, v56")


def downB(i):
    for t in range(4):
        s = 8 + 16 * (i & 1) + 4 * t
        a(f"ds_read_b64_tr_b16 {R('v', s, 2)}, v57 offset:{i*512+t*32}")
        a(f"ds_read_b64_tr_b16 {R('v', s+2, 2)}, v57 offset:{i*512+t*32+4*1152}")


downB(0)
a("v_lshrrev_b32 v58, 5, v1")
a("v_mul_u32_u24 v58, 24576, v58")
a("v_and_b32 v59, 31, v1")
a("v_lshl_add_u32 v58, v59, 2, v58")
a("s_mul_i32 s44, s28, 24")
a("s_add_u32 s44, s44, s27")
a("s_lshl_b32 s44, s44, 7")
a("s_mul_i32 s45, s24, 49152")
a("s_add_u32 s44, s44, s45")
a("s_add_u32 s44, s44, s39")
a(f"s_add_u32 s44, s44, {X3}")
a("s_mov_b32 s46, 0xffff0000")
a("s_mov_b32 s47, 0xffff0000")
a("s_mov_b32 s48, 0")
a("s_mov_b32 s49, -1")
a("s_waitcnt lgkmcnt(0)")
a("s_barrier")
a("ds_read_b128 v[60:63], v56")
downB(1)


def downG(i, wait):
    a(f"s_waitcnt lgkmcnt({wait})")
    for t in range(4):
        s = 8 + 16 * (i & 1) + 4 * t
        a(f"v_mfma_f32_16x16x32_bf16 {R('v', 40+4*t)}, v[60:63], {R('v', s)}, 0")
    a("v_cndmask_b32 v40, v40, v44, s[46:47]")
    a("v_cndmask_b32 v48, v48, v52, s[46:47]")
    a("v_cndmask_b32 v40, v40, v48, s[48:49]")
    a("buffer_store_dword v40, v58, s[12:15], s44 offen sc1")
    a(f"s_add_u32 s44, s44, {4*49152}")


downG(0, 8)
a("s_cmp_eq_u32 s24, 0")
a("s_cbranch_scc1 LDOWN3")
downG(1, 0)
a("s_branch LSTD")
a.label("LDOWN3")
a("s_waitcnt lgkmcnt(0)")
downB(2)
downG(1, 8)
downG(2, 0)
a.label("LSTD")
stamp(6)
a("s_cmp_lt_u32 s2, 18")
a("s_cbranch_scc0 LSTQ")
a("s_mul_i32 s44, s2, 24576")
a("s_mul_i32 s45, s24, 6144")
a("s_add_u32 s44, s44, s45")
a("s_add_u32 s44, s44, s39")
a(f"s_add_u32 s44, s44, {X3}")
a("s_add_u32 s45, s44, 4096")
a("v_bfe_u32 v58, v1, 4, 1")
a("v_lshlrev_b32 v58, 1, v58")
a("v_lshrrev_b32 v59, 5, v1")
a("v_add_u32 v58, v58, v59")
a("v_and_b32 v59, 7, v1")
a("v_lshl_add_u32 v58, v59, 2, v58")
a("v_lshlrev_b32 v58, 2, v58")
a("s_lshl_b32 s46, s24, 7")
a(f"s_add_u32 s46, s46, {FB}")
a("v_add_u32 v58, s46, v58")
a.label("LE3")
for i in range(6):
    a(f"buffer_load_dwordx4 {R('v', 8+4*i)}, v3, s[12:15], s{44+(i>>2)} offen offset:{(i&3)*1024} sc1")
a("s_waitcnt vmcnt(0)")
for r in range(4):
    a(f"v_add_f32 v{8+r}, v{8+r}, v{12+r}")
    a(f"v_add_f32 v{16+r}, v{16+r}, v{20+r}")
    a(f"v_add_f32 v{24+r}, v{24+r}, v{28+r}")
for r in range(4):
    a(f"v_add_f32 v{8+r}, v{8+r}, v{16+r}")
for r in range(4):
    a(f"v_add_f32 v{8+r}, v{8+r}, v{24+r}")
swapreduce(8)
a(f"v_add_f32_dpp v8, v8, v8 row_ror:8{DPPM}")
a("v_cmp_u_f32 vcc, v8, v8")
a("s_cbranch_vccz LE3OK")
retry("LE3", "LE3OK")
a.label("LE3OK")
stamp(7)
a("ds_write_b32 v58, v8")
a("v_lshlrev_b32 v8, 2, v1")
a(f"v_add_u32 v9, {FB}, v8")
a("s_lshl_b32 s45, s2, 7")
a(f"s_add_u32 s46, s45, {XBUF}")
a("v_add_u32 v10, s46, v8")
a("s_waitcnt lgkmcnt(0)")
a("s_barrier")
a("s_cmp_eq_u32 s24, 0")
a("s_cbranch_scc0 LSTQ")
a("s_mov_b32 exec_hi, 0")
for w in range(4):
    a(f"ds_read_b32 v{12+w}, v9 offset:{128*w}")
a("ds_read_b32 v16, v10")
a("s_waitcnt lgkmcnt(0)")
a("v_add_f32 v12, v12, v13")
a("v_add_f32 v14, v14, v15")
a("v_add_f32 v12, v12, v14")
bf16r(12, 12)
a("v_add_f32 v12, v12, v16")
a("v_cvt_pk_bf16_f32 v12, v12, v12")
a("s_cmp_eq_u32 s31, 0")
a("s_cbranch_scc0 LFINAL")
a("v_and_b32 v12, 0xffff0000, v12")
a("s_add_u32 s45, s45, s39")
a(f"s_add_u32 s45, s45, {X4}")
a("buffer_store_dword v12, v8, s[12:15], s45 offen sc1")
a("s_mov_b64 exec, -1")
a("s_branch LSTQ")
a.label("LFINAL")
a("s_lshl_b32 s45, s2, 6")
a("v_lshlrev_b32 v8, 1, v1")
a("buffer_store_short v12, v8, s[16:19], s45 offen")
a("s_mov_b64 exec, 1")
a("s_cmp_eq_u32 s2, 0")
a("s_cbranch_scc0 LNOEP")
a("v_mov_b32 v9, s29")
a("buffer_store_dword v9, v8, s[12:15], 0 offen sc1")
a.label("LNOEP")
a("s_mov_b64 exec, -1")
a.label("LSTQ")
stamp(8)
a("s_cmp_eq_u32 s31, 0")
a("s_cbranch_scc0 LDONE")
a("s_cmp_eq_u32 s24, 3")
a("s_cbranch_scc0 LQ5")
a(f"s_add_u32 s44, s39, {X4}")
a("v_lshlrev_b32 v8, 2, v1")
a.label("LE4")
for i in range(9):
    a(f"buffer_load_dword v{XR+i}, v8, s[12:15], s44 offen offset:{i*256} sc1")
a("s_waitcnt vmcnt(0)")
a(f"v_add_f32 v9, v{XR}, v{XR+1}")
for i in range(2, 9):
    a(f"v_add_f32 v9, v9, v{XR+i}")
a("v_cmp_u_f32 vcc, v9, v9")
a("s_cbranch_vccz LE4OK")
retry("LE4", "LE4OK")
a.label("LE4OK")
stamp(9)
a(f"s_mov_b32 s54, {X5}")
a("s_call_b64 s[36:37], LQSTAGE")
a.label("LQ5")
a("s_mov_b32 s31, 1")
a(f"s_add_u32 s39, s39, {LSTRIDE}")
a("s_add_u32 s88, s88, 4096")
a("s_addc_u32 s89, s89, 0")
a("s_lshl_b32 s44, s26, 2")
a("s_add_u32 s44, s44, s24")
a("s_lshl_b32 s92, s44, 13")
a(f"s_add_u32 s92, s92, {4*UNIT_STEP}")
qpoll_addr(X5)
a("s_barrier")
if STAMPS:
    a("s_memrealtime s[58:59]")
    a("s_waitcnt lgkmcnt(0)")
    a("s_mov_b32 s74, s58")
a("s_branch LQPOLL")

a.label("LQSTAGE")
a("v_lshlrev_b32 v8, 2, v1")
a(f"v_add_u32 v8, {XBUF}, v8")
for i in range(9):
    a(f"ds_write_b32 v8, v{XR+i} offset:{i*256}")
tile_addr(58, 59, base=WQ)
layernorm()
gemv(18, 57, 58, 8, 60)
a("s_lshl_b32 s44, s94, 11")
a("s_lshl_b32 s45, s95, 7")
a("s_add_u32 s44, s44, s45")
a("s_add_u32 s44, s44, s54")
a("v_lshlrev_b32 v8, 2, v1")
a("v_mov_b32 v11, s29")
a(f"v_mov_b32_dpp v9, v60 quad_perm:[1,1,3,3]{DPPM}")
a("v_cvt_pk_bf16_f32 v10, v60, v9")
a("s_mov_b64 exec, 0x5555")
a("buffer_store_dwordx2 v[10:11], v8, s[12:15], s44 offen sc1")
a("s_mov_b64 exec, -1")
a("s_setpc_b64 s[36:37]")

a.label("LRING")
a.vq = qtags("R0") + qtags("R1") + qtags("R2")
for s in range(3):
    lp, lg = a.newlabel("pool"), a.newlabel("go")
    a("s_waitcnt lgkmcnt(0)")
    a(f"s_cmp_lt_u32 s90, {NPOOL}")
    a(f"s_cbranch_scc1 {lp}")
    a("s_cmp_eq_u32 s91, 0")
    a(f"s_cbranch_scc1 LDRAINE{s}")
    a("s_sub_u32 s91, s91, 1")
    a("s_mov_b32 s32, s92")
    a("s_add_u32 s92, s92, s34")
    a(f"s_branch {lg}")
    a.label(lp)
    a("s_add_u32 s32, s90, 448")
    a("s_lshl_b32 s32, s32, 13")
    a("s_mov_b32 s90, 1")
    a("s_atomic_add s90, s[88:89], 0 glc")
    a.label(lg)
    a("s_add_u32 s33, s32, 4096")
    unit("v", RING[s], f"R{s}", f"R{s}n", noadv=True)
    a.vq = [(t[0].rstrip("n"), t[1], t[2]) for t in a.vq]
    a("s_sub_u32 s35, s35, 1")
    a("s_cmp_eq_u32 s35, 0")
    if s < 2:
        a("s_cbranch_scc1 LRINGX")
    else:
        a("s_cbranch_scc0 LRING")
a.label("LRINGX")
a("s_setpc_b64 s[36:37]")

for s in range(3):
    a.label(f"LDRAINE{s}")
    a("v_mov_b32 v48, 0")
    a("buffer_load_dword v49, v48, s[20:23], 0 offen sc1")
    a("s_mov_b32 s93, 0")
    a(f"s_branch LDRAIN{s}")
for s in range(3):
    a.label(f"LDRAIN{s}")
    unit_drain(RING[s])
    a("s_add_u32 s93, s93, 1")
    a("s_cmp_eq_u32 s93, 3")
    a("s_cbranch_scc1 LPASSEND")
a("s_branch LDRAIN0")

a.label("LDONE")
if STAMPS:
    a("s_memrealtime s[58:59]")
    a("s_waitcnt lgkmcnt(0)")
    a("s_mov_b32 s87, s58")
    a("s_lshl_b32 s44, s2, 2")
    a("s_add_u32 s44, s44, s24")
    a("s_lshl_b32 s44, s44, 7")
    a(f"s_add_u32 s44, s44, {STAMP_OFF}")
    a("v_mov_b32 v8, 0")
    a("s_mov_b64 exec, 1")
    for i in range(24):
        a(f"v_mov_b32 v9, s{64+i}")
        a(f"buffer_store_dword v9, v8, s[12:15], s44 offen offset:{4*i}")
    a("v_mov_b32 v9, s100")
    a("buffer_store_dword v9, v8, s[12:15], s44 offen offset:96")
    for i, r in enumerate((3, 55, 56, 57, 101)):
        a(f"v_mov_b32 v9, s{r}")
        a(f"buffer_store_dword v9, v8, s[12:15], s44 offen offset:{100+4*i}")
    a("s_waitcnt vmcnt(0)")
a.label("LEND")
a("s_endpgm")

hdr = open("cdna_kernels/" + NAME + ".s.ref").read().split("\n")
top = [l for l in hdr if l.startswith(";") and "@launch" not in l]
out = "\n".join(top) + "\n"
out += f"; @launch grid=(256,1,1) block=(256,1,1) lds={LDS_SIZE}\n"
out += f""".amdgcn_target "amdgcn-amd-amdhsa--gfx950"
.text
.globl {NAME}_kernel
.p2align 8
.type {NAME}_kernel,@function
"""
out += a.text()
out += f""".section .rodata,"a"
.p2align 6
.amdhsa_kernel {NAME}_kernel
  .amdhsa_next_free_vgpr 512
  .amdhsa_next_free_sgpr 102
  .amdhsa_accum_offset 256
  .amdhsa_group_segment_fixed_size 0
  .amdhsa_kernarg_size 96
  .amdhsa_user_sgpr_count 2
  .amdhsa_user_sgpr_kernarg_segment_ptr 1
  .amdhsa_system_sgpr_workgroup_id_x 1
.end_amdhsa_kernel
"""
open(sys.argv[1], "w").write(out)
```

```python
import sys, struct, math
from asmlib import Asm

NAME = "interleave_layers__gqa_block_cached__glu_gated_reglu__decode"
OPT = dict(stamps=0, p2rev=0, kvpol="nt", wpol="nt", wskip=0, vring="nt", kring="nt")
for arg in sys.argv[2:]:
    k, v = arg.split("=")
    OPT[k] = int(v) if v.lstrip("-").isdigit() else v
STAMPS = OPT["stamps"]
KVPOL = "" if OPT["kvpol"] == "def" else " " + OPT["kvpol"]
WPOL = "" if OPT["wpol"] == "def" else " " + OPT["wpol"]


def f32(x):
    return "0x%08x" % struct.unpack("<I", struct.pack("<f", x))[0]


X0 = 0x1000
X5 = 0x9000
CTR = 0x11000
LB0 = 0x20000
LSTRIDE = 0xE0000
X1 = 0x0
X1S = 1280
X2 = 0x50000
X3 = 0x62000
X4 = 0xCE000
STAMP_OFF = 0x200000
WS_SIZE = 0x400000
NPOOL = 22 * 64
WQ = 0
WO = 18432
WOS = 8448
WGU = 43776
TS = 18560
WD = 99456
XBUF = 128128
XN = 130432
CB1 = 135040
CS1 = 139136
CB2 = 139200
CS2 = 143296
OB = 143360
FB = 143872
HB = 144384
LDS_SIZE = 144448

UNIT_STEP = 524288
DPPM = " row_mask:0xf bank_mask:0xf"
a = Asm()
stamp_n = [0]


def stamp(i):
    if not STAMPS:
        return
    a("s_memrealtime s[58:59]")
    a("s_waitcnt lgkmcnt(0)")
    lab = a.newlabel("st")
    a(f"s_mov_b32 s{64+12+i}, s58")
    a("s_cmp_eq_u32 s31, 0")
    a(f"s_cbranch_scc0 {lab}")
    a(f"s_mov_b32 s{64+i}, s58")
    a.label(lab)


def sstamp(reg):
    if not STAMPS:
        return
    a("s_memrealtime s[58:59]")
    a("s_waitcnt lgkmcnt(0)")
    a(f"s_mov_b32 s{reg}, s58")


def R(kind, base, n=4):
    return f"{kind}[{base}:{base+n-1}]"


def srd(d, lo, hi, size):
    a(f"s_mov_b32 s{d}, s{lo}")
    a(f"s_and_b32 s{d+1}, s{hi}, 0xffff")
    a(f"s_mov_b32 s{d+2}, {size}")
    a(f"s_mov_b32 s{d+3}, 0x20000")


def srd_role(d, lo, hi, size):
    a(f"s_cselect_b32 s{d+2}, {size}, 0")
    a(f"s_mov_b32 s{d}, s{lo}")
    a(f"s_and_b32 s{d+1}, s{hi}, 0xffff")
    a(f"s_mov_b32 s{d+3}, 0x20000")


def ldK(kind, base, t, tag):
    pol = KVPOL if kind == "a" else ("" if OPT["kring"] == "def" else " nt")
    a(f"buffer_load_dwordx4 {R(kind, base+4*t)}, v2, s[4:7], s{32+(t>>2)} offen offset:{(t&3)*1024}{pol}", tag=(tag, "K", t))


def ldV(kind, base, t, tag):
    pol = KVPOL if kind == "a" else ("" if OPT["vring"] == "def" else " nt")
    a(f"buffer_load_dwordx4 {R(kind, base+32+4*t)}, v3, s[8:11], s{32+(t>>2)} offen offset:{(t&3)*1024}{pol}", tag=(tag, "V", t))


def adv():
    a("s_add_u32 s32, s32, s34")
    a("s_add_u32 s33, s33, s34")


def burst(kind, base, tag):
    for t in range(8):
        ldK(kind, base, t, tag)
    for t in range(8):
        ldV(kind, base, t, tag)
    adv()


def waitq(tag, floor=0):
    if tag in a.vq:
        a.wait_vm(tag, floor)


def allreduce(op, v, t, first=0):
    steps = ["quad_perm:[1,0,3,2]", "quad_perm:[2,3,0,1]", "row_half_mirror", "row_mirror"]
    for s in steps[first:]:
        a(f"{op}_dpp v{v}, v{v}, v{v} {s}{DPPM}")
    rows(op, v, t)


def rows(op, v, t):
    a(f"v_mov_b32 v{t}, v{v}")
    a(f"v_permlane16_swap_b32 v{v}, v{t}")
    a(f"{op} v{v}, v{v}, v{t}")
    a(f"v_mov_b32 v{t}, v{v}")
    a(f"v_permlane32_swap_b32 v{v}, v{t}")
    a(f"{op} v{v}, v{v}, v{t}")


QE, QO, OA, MS, LS, NMC = 8, 12, 16, 20, 21, 22
DS_ = [24, 28, 32, 36]
TT = 40
TMP = 44


def unit(kind, base, tag, reload_tag=None, floor=0, hooks=None, noadv=False):
    if hooks:
        hooks[0]()
    for u in range(4):
        waitq((tag, "K", 2 * u + 1), floor)
        d = R("v", DS_[u])
        a(f"v_mfma_f32_16x16x32_bf16 {d}, {R(kind, base+8*u)}, {R('v', QE)}, 0")
        a(f"v_mfma_f32_16x16x32_bf16 {d}, {R(kind, base+8*u+4)}, {R('v', QO)}, {d}")
        if reload_tag is not None:
            ldK(kind, base, 2 * u, reload_tag)
            ldK(kind, base, 2 * u + 1, reload_tag)
    order = [(0, 0), (1, 0), (2, 0), (0, 1), (1, 1), (2, 1), (0, 2), (1, 2), (3, 0), (2, 2), (0, 3), (3, 1),
             (1, 3), (2, 3), (3, 2), None, (3, 3)]
    for o in order:
        if o is None:
            a(f"v_max3_f32 v{TMP}, v{TT}, v{TT+1}, v{MS}")
            continue
        u, c = o
        qp = f"quad_perm:[{c},{c},{c},{c}]"
        if c == 0:
            a(f"v_mov_b32_dpp v{TT+u}, v{DS_[u]} {qp}{DPPM}")
        else:
            a(f"v_add_f32_dpp v{TT+u}, v{DS_[u]+c}, v{TT+u} {qp}{DPPM}")
    a(f"v_max3_f32 v{TMP}, v{TMP}, v{TT+2}, v{TT+3}")
    a(f"v_max_f32_dpp v{TMP}, v{TMP}, v{TMP} row_half_mirror{DPPM}")
    rows("v_max_f32", TMP, TMP + 1)
    a(f"v_sub_f32 v{TMP+1}, v{MS}, v{TMP}")
    a(f"v_mul_f32 v{TMP+1}, s30, v{TMP+1}")
    a(f"v_exp_f32 v{TMP+1}, v{TMP+1}")
    a(f"v_mov_b32 v{MS}, v{TMP}")
    a(f"v_mul_f32 v{NMC}, s30, v{TMP}")
    for u in range(4):
        a(f"v_fma_f32 v{TT+u}, v{TT+u}, s30, -v{NMC}")
    for u in range(4):
        a(f"v_exp_f32 v{TT+u}, v{TT+u}")
    a(f"v_mul_f32 v{LS}, v{LS}, v{TMP+1}")
    for r in range(4):
        a(f"v_mul_f32 v{OA+r}, v{OA+r}, v{TMP+1}")
    a(f"v_add_f32 v{TMP+2}, v{TT}, v{TT+1}")
    a(f"v_add_f32 v{TMP+3}, v{TT+2}, v{TT+3}")
    for u in range(4):
        a(f"v_cvt_pk_bf16_f32 v{TT+u}, v{TT+u}, v{TT+u}")
    a(f"v_add_f32 v{TMP+2}, v{TMP+2}, v{TMP+3}")
    a(f"v_add_f32 v{LS}, v{LS}, v{TMP+2}")

    def buildB(t):
        b = DS_[t & 3]
        p = TT + (t >> 1)
        for i in range(4):
            own = (i < 2) == ((t & 1) == 0)
            if own:
                a(f"v_and_b32 v{b+i}, v{p}, v{4+i}")
            else:
                sh = "row_shr:4" if (t & 1) == 0 else "row_shl:4"
                a(f"v_and_b32_dpp v{b+i}, v{p}, v{4+i} {sh}{DPPM} bound_ctrl:1")

    buildB(0)
    if hooks:
        hooks[1]()
    for t in range(8):
        if t + 1 < 8:
            buildB(t + 1)
        waitq((tag, "V", t), floor)
        a(f"v_mfma_f32_16x16x32_bf16 {R('v', OA)}, {R(kind, base+32+4*t)}, {R('v', DS_[t&3])}, {R('v', OA)}")
        if reload_tag is not None:
            ldV(kind, base, t, reload_tag)
    if reload_tag is not None and not noadv:
        adv()


def qtags(tag):
    return [(tag, "K", t) for t in range(8)] + [(tag, "V", t) for t in range(8)]


RING = [64, 128, 192]


def bf16r(d, s):
    a(f"v_cvt_pk_bf16_f32 v{d}, v{s}, v{s}")
    a(f"v_and_b32 v{d}, 0xffff0000, v{d}")


def gemv(nk, vA, vB, T, acc, bstep=1024, bhalf=128):
    S = 4

    def issue(kk):
        s = T + 8 * (kk % S)
        a(f"ds_read_b128 {R('v', s)}, v{vA} offset:{kk*64}")
        a(f"ds_read_b64_tr_b16 {R('v', s+4, 2)}, v{vB} offset:{kk*bstep}")
        a(f"ds_read_b64_tr_b16 {R('v', s+6, 2)}, v{vB} offset:{kk*bstep+bhalf}")

    for kk in range(min(S, nk)):
        issue(kk)
    for kk in range(nk):
        a(f"s_waitcnt lgkmcnt({3*(min(nk, kk+S)-kk-1)})")
        s = T + 8 * (kk % S)
        c = "0" if kk == 0 else R("v", acc)
        a(f"v_mfma_f32_16x16x32_bf16 {R('v', acc)}, {R('v', s)}, {R('v', s+4)}, {c}")
        if kk + S < nk:
            issue(kk + S)


def tile_addr(v, t, base_sgpr=None, base=0):
    a(f"v_lshrrev_b32 v{v}, 4, v1")
    a(f"v_lshlrev_b32 v{v}, 8, v{v}")
    a(f"v_and_b32 v{t}, 15, v1")
    a(f"v_lshl_add_u32 v{v}, v{t}, 3, v{v}")
    if base:
        a(f"v_add_u32 v{v}, {base}, v{v}")
    if base_sgpr is not None:
        a(f"v_add_u32 v{v}, s{base_sgpr}, v{v}")


def afrag_addr(v, base_sgpr=None, base=0):
    a(f"v_lshrrev_b32 v{v}, 4, v1")
    a(f"v_lshlrev_b32 v{v}, 4, v{v}")
    if base:
        a(f"v_add_u32 v{v}, {base}, v{v}")
    if base_sgpr is not None:
        a(f"v_add_u32 v{v}, s{base_sgpr}, v{v}")


XR = 44


def layernorm():
    s, t, mb, rs = 53, 54, 55, 56
    a(f"v_add_f32 v{s}, v{XR}, v{XR+1}")
    for i in range(2, 9):
        a(f"v_add_f32 v{s}, v{s}, v{XR+i}")
    allreduce("v_add_f32", s, t)
    a(f"v_mul_f32 v{s}, {f32(1.0/576)}, v{s}")
    bf16r(mb, s)
    a(f"v_sub_f32 v{t}, v{XR}, v{s}")
    a(f"v_mul_f32 v{rs}, v{t}, v{t}")
    for i in range(1, 9):
        a(f"v_sub_f32 v{t}, v{XR+i}, v{s}")
        a(f"v_fmac_f32 v{rs}, v{t}, v{t}")
    allreduce("v_add_f32", rs, t)
    a(f"v_mul_f32 v{rs}, {f32(1.0/576)}, v{rs}")
    bf16r(rs, rs)
    a(f"v_add_f32 v{rs}, {f32(1e-5)}, v{rs}")
    bf16r(rs, rs)
    a(f"v_sqrt_f32 v{rs}, v{rs}")
    bf16r(rs, rs)
    a(f"v_rcp_f32 v{rs}, v{rs}")
    a("s_mul_i32 s44, s24, 1152")
    a(f"s_add_u32 s44, s44, {XN}")
    a(f"v_lshlrev_b32 v{s}, 1, v1")
    a(f"v_add_u32 v{s}, s44, v{s}")
    for i in range(9):
        a(f"v_sub_f32 v{XR+i}, v{XR+i}, v{mb}")
    for i in range(9):
        bf16r(XR + i, XR + i)
    for i in range(9):
        a(f"v_mul_f32 v{XR+i}, v{XR+i}, v{rs}")
    for i in range(9):
        a(f"v_cvt_pk_bf16_f32 v{XR+i}, v{XR+i}, v{XR+i}")
    for i in range(9):
        a(f"ds_write_b16 v{s}, v{XR+i} offset:{i*128}")
    afrag_addr(57, base_sgpr=44)
    a("s_waitcnt lgkmcnt(0)")


def retry(lab_again, lab_done):
    a("s_cmp_eq_u32 s38, 0")
    a(f"s_cbranch_scc1 {lab_done}")
    a("s_sub_u32 s38, s38, 1")
    a("s_sleep 1")
    a(f"s_branch {lab_again}")


def combine(CB, CS):
    a("v_lshlrev_b32 v8, 2, v0")
    a(f"v_add_u32 v8, {CB}, v8")
    a("s_lshr_b32 s44, s24, 1")
    a("s_lshl_b32 s44, s44, 5")
    a(f"s_add_u32 s44, s44, {CS}")
    a("v_mov_b32 v9, s44")
    a("ds_read_b128 v[12:15], v9")
    a("ds_read_b128 v[16:19], v9 offset:16")
    for w in range(4):
        a(f"ds_read_b32 v{20+w}, v8 offset:{w*1024}")
    a("s_waitcnt lgkmcnt(4)")
    a("v_max3_f32 v26, v12, v14, v16")
    a("v_max_f32 v26, v26, v18")
    for w in range(4):
        a(f"v_sub_f32 v{12+2*w}, v{12+2*w}, v26")
    for w in range(4):
        a(f"v_exp_f32 v{12+2*w}, v{12+2*w}")
    a("v_mul_f32 v27, v13, v12")
    for w in range(1, 4):
        a(f"v_fmac_f32 v27, v{13+2*w}, v{12+2*w}")
    a("s_waitcnt lgkmcnt(0)")
    a("v_mul_f32 v24, v20, v12")
    for w in range(1, 4):
        a(f"v_fmac_f32 v24, v{20+w}, v{12+2*w}")


def qpoll_issue():
    a("buffer_load_dwordx4 v[24:27], v32, s[12:15], s45 offen sc1", tag="qp")
    a("buffer_load_dwordx4 v[28:31], v32, s[12:15], s45 offen offset:16 sc1", tag="qp")


def qpoll_addr(xoff):
    a("s_lshl_b32 s45, s25, 11")
    a(f"s_add_u32 s45, s45, {xoff}")
    a("v_bfe_u32 v32, v1, 3, 1")
    a("v_lshlrev_b32 v32, 10, v32")
    a("v_lshrrev_b32 v33, 4, v1")
    a("v_lshl_add_u32 v32, v33, 8, v32")
    a("v_bfe_u32 v33, v1, 1, 1")
    a("v_lshl_add_u32 v32, v33, 7, v32")
    a("v_and_b32 v33, 1, v1")
    a("v_lshl_add_u32 v32, v33, 5, v32")


def qpoll_check():
    a("v_cmp_ne_u32 s[46:47], s29, v25")
    a("v_cmp_ne_u32 s[48:49], s29, v27")
    a("v_cmp_ne_u32 s[50:51], s29, v29")
    a("v_cmp_ne_u32 s[52:53], s29, v31")
    a("s_or_b64 s[46:47], s[46:47], s[48:49]")
    a("s_or_b64 s[50:51], s[50:51], s[52:53]")
    a("s_or_b64 s[46:47], s[46:47], s[50:51]")


def unit_drain(base):
    def pwait(n0, n1, n2):
        l0, l1 = a.newlabel("dw"), a.newlabel("dw")
        a("s_cmp_eq_u32 s93, 0")
        a(f"s_cbranch_scc1 {l0}")
        a("s_cmp_eq_u32 s93, 1")
        a(f"s_cbranch_scc1 {l1}")
        a(f"s_waitcnt vmcnt({n2})")
        a.label(l1)
        a(f"s_waitcnt vmcnt({n1})")
        a.label(l0)
        a(f"s_waitcnt vmcnt({n0})")
    a.vq = []
    unit("v", base, "none", None, hooks=(lambda: pwait(41, 25, 9), lambda: pwait(33, 17, 1)))


a.raw(f"{NAME}_kernel:")
a("s_cmp_ge_u32 s2, 256")
a("s_cbranch_scc1 LEND")
if STAMPS:
    a("s_memrealtime s[100:101]")
a("s_load_dwordx16 s[64:79], s[0:1], 0")
a("s_load_dwordx8 s[80:87], s[0:1], 64")
a("v_and_b32 v1, 63, v0")
a("v_lshrrev_b32 v40, 6, v0")
a("v_readfirstlane_b32 s24, v40")
a("s_and_b32 s28, s2, 7")
a("s_lshr_b32 s27, s2, 3")
a("s_lshr_b32 s25, s2, 4")
a("s_and_b32 s26, s2, 15")
a("s_lshr_b32 s44, s27, 4")
a("s_lshl_b32 s94, s28, 1")
a("s_add_u32 s94, s94, s44")
a("s_and_b32 s95, s27, 15")
a(f"s_mov_b32 s30, {f32(math.log2(math.e)/math.sqrt(128.0))}")
a("s_mov_b32 s31, 0")
a(f"s_mov_b32 s34, {UNIT_STEP}")
a("s_mov_b32 s38, 400000")
a(f"s_mov_b32 s39, {LB0}")
a("s_mov_b32 s42, 0xf0f0f0f0")
a("s_mov_b32 s43, 0xf0f0f0f0")
a("s_lshl_b32 s44, s26, 2")
a("s_add_u32 s44, s44, s24")
a("s_lshl_b32 s32, s44, 13")
a("s_add_u32 s33, s32, 4096")
a("v_lshlrev_b32 v3, 4, v1")
a("v_bfe_u32 v40, v1, 2, 2")
a("v_lshlrev_b32 v2, 8, v40")
a("v_lshrrev_b32 v40, 4, v1")
a("v_lshl_add_u32 v2, v40, 6, v2")
a("v_and_b32 v40, 3, v1")
a("v_lshl_add_u32 v2, v40, 4, v2")
a("s_waitcnt lgkmcnt(0)")
a("s_load_dword s29, s[86:87], 0")
a("s_lshl_b32 s44, s25, 24")
a("s_add_u32 s4, s66, s44")
a("s_addc_u32 s5, s67, 0")
a("s_and_b32 s5, s5, 0xffff")
a("s_mov_b32 s6, 0x1000000")
a("s_mov_b32 s7, 0x20000")
a("s_add_u32 s8, s68, s44")
a("s_addc_u32 s9, s69, 0")
a("s_and_b32 s9, s9, 0xffff")
a("s_mov_b32 s10, 0x1000000")
a("s_mov_b32 s11, 0x20000")
srd(12, 86, 87, WS_SIZE)
a("s_cmp_eq_u32 s24, 3")
a("s_cbranch_scc0 LPRO1")
srd(60, 64, 65, 1152)
srd(96, 70, 71, 0 if OPT["wskip"] & 8 else 576 * 8192)
a("v_lshlrev_b32 v40, 1, v1")
for i in range(9):
    a(f"buffer_load_ushort v{XR+i}, v40, s[60:63], 0 offen offset:{i*128}")
a("v_lshrrev_b32 v40, 1, v1")
a("v_lshlrev_b32 v40, 13, v40")
a("v_and_b32 v41, 1, v1")
a("v_lshl_add_u32 v40, v41, 4, v40")
a("s_lshl_b32 s44, s94, 9")
a("s_lshl_b32 s45, s95, 5")
a("s_add_u32 s44, s44, s45")
for i in range(18):
    a(f"buffer_load_dwordx4 {R('v', 64+4*i)}, v40, s[96:99], s44 offen{WPOL}")
    a("s_add_u32 s44, s44, 262144")
a("s_cmp_eq_u32 s95, 0")
a("s_cbranch_scc0 LPRO0")
a("v_lshlrev_b32 v40, 12, v1")
a("v_mov_b32 v41, 0")
a("s_lshl_b32 s44, s94, 8")
a(f"s_add_u32 s44, s44, {CTR}")
a("s_mov_b64 exec, 3")
a("buffer_store_dword v41, v40, s[12:15], s44 offen sc1")
a("s_mov_b64 exec, -1")
a.label("LPRO0")
a("s_waitcnt vmcnt(0) lgkmcnt(0)")
sstamp(3)
a("s_mul_i32 s29, s29, 0x9e3779b1")
a("s_add_u32 s29, s29, 0x7f4a7c15")
for i in range(9):
    a(f"v_lshlrev_b32 v{XR+i}, 16, v{XR+i}")
for i in range(18):
    a(f"ds_write_b128 v3, {R('v', 64+4*i)} offset:{WQ+i*1024}")
a(f"s_mov_b32 s54, {X0}")
a("s_call_b64 s[36:37], LQSTAGE")
a("s_branch LPRO2")
a.label("LPRO1")
a("s_waitcnt lgkmcnt(0)")
a("s_mul_i32 s29, s29, 0x9e3779b1")
a("s_add_u32 s29, s29, 0x7f4a7c15")
a("s_cmp_eq_u32 s24, 0")
a("s_cbranch_scc0 LPRO2")
a("v_mov_b32 v24, -1\nv_mov_b32 v25, -1\nv_mov_b32 v26, -1\nv_mov_b32 v27, -1")
a("s_mul_i32 s44, s2, 7168")
a(f"s_add_u32 s44, s44, {LB0}")
a("s_add_u32 s45, s44, 4096")
for i in range(7):
    a(f"buffer_store_dwordx4 v[24:27], v3, s[12:15], s{44+(i>>2)} offen offset:{1024*(i&3)} sc1")
a.label("LPRO2")
sstamp(55)
a.vq = []
burst("a", 0, "A0")
burst("a", 64, "A1")
srd(16, 82, 83, 1152)
srd(20, 84, 85, 256)
a("v_and_b32 v40, 1, v1")
a("v_lshlrev_b32 v40, 4, v40")
a("v_mov_b32 v41, 0xffff")
a("v_lshlrev_b32 v40, v40, v41")
for i in range(4):
    m = 0x03030303 << (2 * i)
    a(f"s_mov_b32 s40, 0x{m:08x}")
    a(f"s_mov_b32 s41, 0x{m:08x}")
    a(f"v_cndmask_b32 v{4+i}, 0, v40, s[40:41]")
a("s_lshl_b32 s44, s25, 8")
a(f"s_add_u32 s44, s44, {CTR}")
a("s_add_u32 s88, s86, s44")
a("s_addc_u32 s89, s87, 0")
a.wait_vm_n(27)
sstamp(56)
a("s_cmp_lt_u32 s95, 12")
srd_role(60, 72, 73, 0 if OPT["wskip"] & 1 else 4096 * 1152)
a("v_mul_u32_u24 v41, 43, v1")
a("v_lshrrev_b32 v41, 8, v41")
a("v_mul_u32_u24 v42, 6, v41")
a("v_sub_u32 v42, v1, v42")
a("v_mul_u32_u24 v40, 1152, v41")
a("v_lshl_add_u32 v40, v42, 4, v40")
a("s_lshl_b32 s44, s94, 8")
a("s_lshl_b32 s45, s24, 6")
a("s_add_u32 s44, s44, s45")
a("s_mul_i32 s44, s44, 1152")
a("s_mul_i32 s45, s95, 96")
a("s_add_u32 s44, s44, s45")
for i in range(7):
    a(f"buffer_load_dwordx4 {R('v', 64+4*i)}, v40, s[60:63], s44 offen{WPOL}", tag="w")
    a(f"s_add_u32 s44, s44, {10*1152}")
a("v_lshrrev_b32 v34, 1, v42")
a(f"v_mul_u32_u24 v34, {WOS}, v34")
a("v_lshl_add_u32 v34, v41, 5, v34")
a("v_and_b32 v42, 1, v42")
a("v_lshl_add_u32 v34, v42, 4, v34")
a("s_lshl_b32 s45, s24, 11")
a(f"s_add_u32 s45, s45, {WO}")
a("v_add_u32 v34, s45, v34")
a("s_cmp_lt_u32 s27, 24")
srd_role(60, 76, 77, 0 if OPT["wskip"] & 2 else 576 * 9216)
a("s_cmp_lt_u32 s27, 24")
srd_role(96, 78, 79, 0 if OPT["wskip"] & 2 else 576 * 9216)
a("v_mul_u32_u24 v41, 43, v1")
a("v_lshrrev_b32 v41, 7, v41")
a("v_mul_u32_u24 v42, 3, v41")
a("v_sub_u32 v42, v1, v42")
a("v_mul_u32_u24 v40, 9216, v41")
a("v_lshl_add_u32 v40, v42, 4, v40")
a("s_mul_i32 s46, s28, 24")
a("s_add_u32 s46, s46, s27")
a("s_mul_i32 s44, s46, 48")
a(f"s_mul_i32 s45, s24, {144*9216}")
a("s_add_u32 s44, s44, s45")
for i in range(7):
    a(f"buffer_load_dwordx4 {R('v', 92+8*i)}, v40, s[60:63], s44 offen{WPOL}", tag="w")
    a(f"buffer_load_dwordx4 {R('v', 96+8*i)}, v40, s[96:99], s44 offen{WPOL}", tag="w")
    a(f"s_add_u32 s44, s44, {21*9216}")
a(f"v_mul_u32_u24 v43, {TS}, v42")
a("v_lshl_add_u32 v43, v41, 5, v43")
a(f"s_mul_i32 s45, s24, {144*32}")
a(f"s_add_u32 s45, s45, {WGU}")
a("v_add_u32 v43, s45, v43")
a("s_cmp_lt_u32 s27, 24")
srd_role(60, 80, 81, 0 if OPT["wskip"] & 4 else 4608 * 1152)
a(f"s_mul_i32 s44, s46, {24*1152}")
a("s_mul_i32 s45, s24, 7168")
a("s_add_u32 s44, s44, s45")
a("s_add_u32 s45, s44, 4096")
for i in range(7):
    a(f"buffer_load_dwordx4 {R('v', 148+4*i)}, v3, s[60:63], s{44+(i>>2)} offen offset:{(i&3)*1024}{WPOL}", tag="w")
sstamp(57)
a.wait_vm_n(40)
burst("a", 128, "A2")
qpoll_addr(X0)
a.wait_vm_n(40)
sstamp(101)
qpoll_issue()
burst("a", 192, "A3")
a.wait_vm("w")
for i in range(7):
    a(f"ds_write_b128 v34, {R('v', 64+4*i)} offset:{i*320}")
for i in range(7):
    a(f"ds_write_b128 v43, {R('v', 92+8*i)} offset:{i*21*32}")
    a(f"ds_write_b128 v43, {R('v', 96+8*i)} offset:{i*21*32+16}")
a("s_mul_i32 s44, s24, 7168")
a(f"s_add_u32 s44, s44, {WD}")
a("v_add_u32 v40, s44, v3")
for i in range(7):
    a(f"ds_write_b128 v40, {R('v', 148+4*i)} offset:{i*1024}")
a(f"v_mov_b32 v40, {HB+48}")
a("v_mov_b32 v36, 0\nv_mov_b32 v37, 0\nv_mov_b32 v38, 0\nv_mov_b32 v39, 0")
a("ds_write_b128 v40, v[36:39]")
a("s_waitcnt lgkmcnt(0)")
burst("v", RING[0], "R0")
a.wait_vm("qp")
if STAMPS:
    a("s_memrealtime s[58:59]")
    a("s_waitcnt lgkmcnt(0)")
    a("s_mov_b32 s75, s58")
qpoll_check()
a("s_cbranch_scc0 LQREADY")

a.label("LQPOLL")
qpoll_issue()
a("s_waitcnt vmcnt(0)")
qpoll_check()
a("s_cbranch_scc0 LQREADY")
retry("LQPOLL", "LQREADY")
a.label("LQREADY")
for i in range(4):
    a(f"v_cndmask_b32 v{QE+i}, v{24+2*i}, 0, s[42:43]")
    a(f"v_cndmask_b32 v{QO+i}, 0, v{24+2*i}, s[42:43]")
for r in range(4):
    a(f"v_mov_b32 v{OA+r}, 0")
a(f"v_mov_b32 v{MS}, {f32(-1e30)}")
a(f"v_mov_b32 v{LS}, 0")
stamp(0)
a("s_cmp_eq_u32 s31, 0")
a("s_cbranch_scc0 LP2")
a("s_cmp_eq_u32 s24, 0")
a("s_cbranch_scc0 LAPART")
a("s_mov_b32 s44, 1")
a("s_atomic_add s44, s[84:85], 0")
a("s_branch LAPART")
a.label("LP2")
a("s_mov_b32 s35, 3")
a(f"s_mov_b32 s90, {NPOOL}")
a("s_mov_b32 s91, 3")
a("s_call_b64 s[36:37], LRING")
a.label("LAPART")
a("s_mov_b32 s90, 1")
a("s_atomic_add s90, s[88:89], 0 glc")
a.vq = qtags("A3") + qtags("R0")
for i in range(4):
    if i < 2:
        lab = a.newlabel("nb")
        a("s_cmp_eq_u32 s31, 0")
        a(f"s_cbranch_scc0 {lab}")
        a.wait_vm_n(47)
        burst("v", RING[i + 1], f"R{i+1}")
        a.label(lab)
    unit("a", 64 * i, f"A{i}", None, floor=48)
assert a.vq == qtags("R0") + qtags("R1") + qtags("R2"), a.vq
a("s_lshl_b32 s44, s26, 2")
a("s_add_u32 s44, s44, s24")
a("s_lshl_b32 s92, s44, 13")
a(f"s_add_u32 s92, s92, {29*UNIT_STEP}")
a("s_cmp_eq_u32 s31, 0")
a("s_cselect_b32 s91, 3, 0")
a("s_mov_b32 s35, 0x7fffffff")
a("s_call_b64 s[36:37], LRING")
a.label("LPASSEND")
stamp(1)
a(f"v_add_f32_dpp v{LS}, v{LS}, v{LS} row_half_mirror{DPPM}")
rows("v_add_f32", LS, TMP)
a(f"v_mul_f32 v22, s30, v{MS}")
a(f"v_mov_b32 v23, v{LS}")
a("v_bfe_u32 v40, v1, 3, 1")
a("v_lshlrev_b32 v41, 9, v40")
a("v_lshrrev_b32 v42, 4, v1")
a("v_lshl_add_u32 v41, v42, 7, v41")
a("v_and_b32 v42, 7, v1")
a("v_lshl_add_u32 v41, v42, 2, v41")
a("s_lshl_b32 s44, s24, 10")
a(f"s_add_u32 s44, s44, {CB1}")
a("v_add_u32 v41, s44, v41")
for r in range(4):
    a(f"ds_write_b32 v41, v{OA+r} offset:{32*r}")
a("s_lshl_b32 s44, s24, 3")
a(f"s_add_u32 s44, s44, {CS1}")
a("v_lshlrev_b32 v40, 5, v40")
a("v_add_u32 v40, s44, v40")
a("ds_write_b64 v40, v[22:23]")
a.label("LCNT")
a("s_waitcnt vmcnt(0)")
a("v_readfirstlane_b32 s44, v49")
a("s_cmp_ge_u32 s44, 256")
a("s_cbranch_scc1 LCNTOK")
a("v_mov_b32 v48, 0")
a("buffer_load_dword v49, v48, s[20:23], 0 offen sc1")
retry("LCNT", "LCNTOK")
a.label("LCNTOK")
a("s_waitcnt lgkmcnt(0)")
a("s_barrier")
combine(CB1, CS1)
a(f"s_mul_i32 s44, s2, {X1S}")
a("s_add_u32 s44, s44, s39")
a("v_lshlrev_b32 v8, 2, v0")
a("buffer_store_dword v24, v8, s[12:15], s44 offen sc1")
a("s_lshl_b32 s45, s24, 6")
a("v_mov_b32 v9, s45")
a("s_bitcmp0_b32 s24, 0")
a("s_cbranch_scc0 LPUB1")
a("s_mov_b64 exec, 1")
a("buffer_store_dwordx2 v[26:27], v9, s[12:15], s44 offen offset:1024 sc1")
a("s_mov_b64 exec, -1")
a.label("LPUB1")
stamp(2)
a("s_cmp_lt_u32 s95, 12")
a("s_cbranch_scc0 LSTC")
a("s_lshl_b32 s44, s94, 4")
a("s_lshl_b32 s45, s24, 2")
a("s_add_u32 s44, s44, s45")
a(f"s_mul_i32 s44, s44, {X1S}")
a("s_add_u32 s44, s44, s39")
a("v_lshrrev_b32 v8, 5, v1")
a("v_lshlrev_b32 v9, 7, v8")
a("v_add_u32 v9, 1024, v9")
a.label("LE1")
for p in range(4):
    a(f"buffer_load_dwordx2 {R('v', 28+2*p, 2)}, v9, s[12:15], s44 offen offset:{p*X1S} sc1")
for p in range(4):
    a(f"buffer_load_dwordx4 {R('v', 12+4*p)}, v3, s[12:15], s44 offen offset:{p*X1S} sc1")
a("s_waitcnt vmcnt(4)")
a("v_max3_f32 v40, v28, v30, v32")
a("v_max_f32 v40, v40, v34")
for p in range(4):
    a(f"v_sub_f32 v{28+2*p}, v{28+2*p}, v40")
for p in range(4):
    a(f"v_exp_f32 v{28+2*p}, v{28+2*p}")
a("v_mul_f32 v41, v29, v28")
for p in range(1, 4):
    a(f"v_fmac_f32 v41, v{29+2*p}, v{28+2*p}")
a("s_waitcnt vmcnt(0)")
for r in range(4):
    a(f"v_mul_f32 v{36+r}, v{12+r}, v28")
for p in range(1, 4):
    for r in range(4):
        a(f"v_fmac_f32 v{36+r}, v{12+4*p+r}, v{28+2*p}")
a("v_add_f32 v42, v36, v37")
a("v_add_f32 v43, v38, v39")
a("v_add_f32 v42, v42, v41")
a("v_cmp_u_f32 vcc, v42, v43")
a("s_cbranch_vccz LE1OK")
retry("LE1", "LE1OK")
a.label("LE1OK")
stamp(3)
a("s_lshl_b32 s44, s24, 10")
a(f"s_add_u32 s44, s44, {CB2}")
a("v_add_u32 v10, s44, v3")
a("ds_write_b128 v10, v[36:39]")
a("s_lshl_b32 s44, s24, 3")
a(f"s_add_u32 s44, s44, {CS2}")
a("v_lshlrev_b32 v8, 5, v8")
a("v_add_u32 v8, s44, v8")
a("ds_write_b64 v8, v[40:41]")
a("s_waitcnt lgkmcnt(0)")
a("s_barrier")
combine(CB2, CS2)
a("v_rcp_f32 v27, v27")
a("v_lshlrev_b32 v8, 1, v0")
a(f"v_add_u32 v8, {OB}, v8")
a("v_mul_f32 v24, v24, v27")
a("v_cvt_pk_bf16_f32 v24, v24, v24")
a("ds_write_b16 v8, v24")
a(f"s_mul_i32 s44, s24, {WOS}")
tile_addr(58, 59, base_sgpr=44, base=WO)
afrag_addr(57, base=OB)
a("s_waitcnt lgkmcnt(0)")
a("s_barrier")
a("s_cmp_eq_u32 s24, 3")
a("s_cbranch_scc1 LSTC")
gemv(8, 57, 58, 8, 60)
a("s_mul_i32 s44, s94, 4608")
a("s_mul_i32 s45, s95, 384")
a("s_add_u32 s44, s44, s45")
a("s_lshl_b32 s45, s24, 7")
a("s_add_u32 s44, s44, s45")
a("s_add_u32 s44, s44, s39")
a(f"s_add_u32 s44, s44, {X2}")
a("v_lshlrev_b32 v8, 2, v1")
a("s_mov_b64 exec, 0xffff")
a("buffer_store_dword v60, v8, s[12:15], s44 offen sc1")
a("s_mov_b64 exec, -1")
a.label("LSTC")
stamp(4)
a("s_cmp_lt_u32 s27, 24")
a("s_cbranch_scc0 LSTQ")
a("s_cmp_eq_u32 s24, 3")
a("s_cbranch_scc1 LC_BAR")
a("v_lshrrev_b32 v56, 4, v1")
a("v_mul_u32_u24 v56, 4608, v56")
a("v_bfe_u32 v57, v1, 2, 2")
a("v_lshl_add_u32 v56, v57, 7, v56")
a("v_and_b32 v57, 3, v1")
a("v_lshl_add_u32 v56, v57, 4, v56")
a("v_and_b32 v57, 15, v1")
a("s_mul_i32 s44, s24, 1536")
a("s_add_u32 s44, s44, s39")
a(f"s_add_u32 s44, s44, {X2}")
for g in range(1, 4):
    a(f"s_add_u32 s{44+g}, s44, {g*18432}")
a("v_bfe_u32 v58, v1, 4, 1")
a("v_lshlrev_b32 v58, 1, v58")
a("v_lshrrev_b32 v59, 5, v1")
a("v_add_u32 v58, v58, v59")
a("v_lshl_add_u32 v58, v57, 2, v58")
a("v_lshlrev_b32 v58, 2, v58")
a("s_mul_i32 s48, s24, 768")
a(f"s_add_u32 s48, s48, {XBUF}")
a("v_add_u32 v58, s48, v58")
for c in range(3):
    a(f"ds_read_b32 v{60+c}, v58 offset:{c*256}")
a.label("LE2")
for c in range(3):
    for g in range(4):
        a(f"buffer_load_dwordx4 {R('v', 8+16*c+4*g)}, v56, s[12:15], s{44+g} offen offset:{c*512} sc1")


def swapreduce(b):
    a(f"v_permlane32_swap_b32 v{b}, v{b+1}")
    a(f"v_permlane32_swap_b32 v{b+2}, v{b+3}")
    a(f"v_add_f32 v{b}, v{b}, v{b+1}")
    a(f"v_add_f32 v{b+2}, v{b+2}, v{b+3}")
    a(f"v_permlane16_swap_b32 v{b}, v{b+2}")
    a(f"v_add_f32 v{b}, v{b}, v{b+2}")


for c in range(3):
    b = 8 + 16 * c
    a(f"s_waitcnt vmcnt({8-4*c})")
    for r in range(4):
        a(f"v_add_f32 v{b+r}, v{b+r}, v{b+4+r}")
        a(f"v_add_f32 v{b+8+r}, v{b+8+r}, v{b+12+r}")
    for r in range(4):
        a(f"v_add_f32 v{b+r}, v{b+r}, v{b+8+r}")
    swapreduce(b)
a("v_add_f32 v9, v8, v24")
a("v_cmp_u_f32 vcc, v9, v40")
a("s_cbranch_vccz LE2OK")
retry("LE2", "LE2OK")
a.label("LE2OK")
stamp(5)
a("s_waitcnt lgkmcnt(0)")
for c in range(3):
    bf16r(8 + 16 * c, 8 + 16 * c)
for c in range(3):
    a(f"v_add_f32 v{60+c}, v{60+c}, v{8+16*c}")
for c in range(3):
    bf16r(60 + c, 60 + c)
for c in range(3):
    a(f"ds_write_b32 v58, v{60+c} offset:{c*256}")
a("s_waitcnt lgkmcnt(0)")
a.label("LC_BAR")
a("s_barrier")
a("s_cmp_eq_u32 s24, 3")
a("s_cbranch_scc1 LC_BAR2")
a("v_lshlrev_b32 v8, 2, v1")
a(f"v_add_u32 v8, {XBUF}, v8")
for i in range(9):
    a(f"ds_read_b32 v{XR+i}, v8 offset:{i*256}")
a(f"s_mul_i32 s45, s24, {TS}")
tile_addr(58, 59, base_sgpr=45, base=WGU)
a("s_waitcnt lgkmcnt(0)")
layernorm()
gemv(18, 57, 58, 8, 60)
a("s_lshl_b32 s44, s24, 4")
a(f"s_add_u32 s44, s44, {HB}")
a("v_lshlrev_b32 v8, 1, v1")
a("v_add_u32 v8, s44, v8")
a(f"v_mov_b32_dpp v9, v60 row_shl:8{DPPM} bound_ctrl:1")
a("v_cvt_pk_bf16_f32 v9, v60, v9")
a("v_lshlrev_b32 v10, 16, v9")
a("v_and_b32 v9, 0xffff0000, v9")
a("v_max_f32 v10, 0, v10")
a("v_mul_f32 v9, v10, v9")
a("v_cvt_pk_bf16_f32 v9, v9, v9")
a("s_mov_b64 exec, 0xff")
a("ds_write_b16 v8, v9")
a("s_mov_b64 exec, -1")
a.label("LC_BAR2")
a("v_lshrrev_b32 v56, 4, v1")
a("v_min_u32 v57, 2, v56")
a("v_lshlrev_b32 v57, 3, v57")
a("v_bfe_u32 v58, v1, 2, 2")
a("v_add_u32 v57, v57, v58")
a("v_mul_u32_u24 v57, 1152, v57")
a("v_and_b32 v58, 3, v1")
a("v_lshl_add_u32 v57, v58, 3, v57")
a("s_lshl_b32 s44, s24, 7")
a(f"s_add_u32 s44, s44, {WD}")
a("v_add_u32 v57, s44, v57")
a("v_lshlrev_b32 v56, 4, v56")
a(f"v_add_u32 v56, {HB}, v56")


def downB(i):
    for t in range(4):
        s = 8 + 16 * (i & 1) + 4 * t
        a(f"ds_read_b64_tr_b16 {R('v', s, 2)}, v57 offset:{i*512+t*32}")
        a(f"ds_read_b64_tr_b16 {R('v', s+2, 2)}, v57 offset:{i*512+t*32+4*1152}")


downB(0)
a("v_lshrrev_b32 v58, 5, v1")
a("v_mul_u32_u24 v58, 24576, v58")
a("v_and_b32 v59, 31, v1")
a("v_lshl_add_u32 v58, v59, 2, v58")
a("s_mul_i32 s44, s28, 24")
a("s_add_u32 s44, s44, s27")
a("s_lshl_b32 s44, s44, 7")
a("s_mul_i32 s45, s24, 49152")
a("s_add_u32 s44, s44, s45")
a("s_add_u32 s44, s44, s39")
a(f"s_add_u32 s44, s44, {X3}")
a("s_mov_b32 s46, 0xffff0000")
a("s_mov_b32 s47, 0xffff0000")
a("s_mov_b32 s48, 0")
a("s_mov_b32 s49, -1")
a("s_waitcnt lgkmcnt(0)")
a("s_barrier")
a("ds_read_b128 v[60:63], v56")
downB(1)


def downG(i, wait):
    a(f"s_waitcnt lgkmcnt({wait})")
    for t in range(4):
        s = 8 + 16 * (i & 1) + 4 * t
        a(f"v_mfma_f32_16x16x32_bf16 {R('v', 40+4*t)}, v[60:63], {R('v', s)}, 0")
    a("v_cndmask_b32 v40, v40, v44, s[46:47]")
    a("v_cndmask_b32 v48, v48, v52, s[46:47]")
    a("v_cndmask_b32 v40, v40, v48, s[48:49]")
    a("buffer_store_dword v40, v58, s[12:15], s44 offen sc1")
    a(f"s_add_u32 s44, s44, {4*49152}")


downG(0, 8)
a("s_cmp_eq_u32 s24, 0")
a("s_cbranch_scc1 LDOWN3")
downG(1, 0)
a("s_branch LSTD")
a.label("LDOWN3")
a("s_waitcnt lgkmcnt(0)")
downB(2)
downG(1, 8)
downG(2, 0)
a.label("LSTD")
stamp(6)
a("s_cmp_lt_u32 s2, 18")
a("s_cbranch_scc0 LSTQ")
a("s_mul_i32 s44, s2, 24576")
a("s_mul_i32 s45, s24, 6144")
a("s_add_u32 s44, s44, s45")
a("s_add_u32 s44, s44, s39")
a(f"s_add_u32 s44, s44, {X3}")
a("s_add_u32 s45, s44, 4096")
a("v_bfe_u32 v58, v1, 4, 1")
a("v_lshlrev_b32 v58, 1, v58")
a("v_lshrrev_b32 v59, 5, v1")
a("v_add_u32 v58, v58, v59")
a("v_and_b32 v59, 7, v1")
a("v_lshl_add_u32 v58, v59, 2, v58")
a("v_lshlrev_b32 v58, 2, v58")
a("s_lshl_b32 s46, s24, 7")
a(f"s_add_u32 s46, s46, {FB}")
a("v_add_u32 v58, s46, v58")
a.label("LE3")
for i in range(6):
    a(f"buffer_load_dwordx4 {R('v', 8+4*i)}, v3, s[12:15], s{44+(i>>2)} offen offset:{(i&3)*1024} sc1")
a("s_waitcnt vmcnt(0)")
for r in range(4):
    a(f"v_add_f32 v{8+r}, v{8+r}, v{12+r}")
    a(f"v_add_f32 v{16+r}, v{16+r}, v{20+r}")
    a(f"v_add_f32 v{24+r}, v{24+r}, v{28+r}")
for r in range(4):
    a(f"v_add_f32 v{8+r}, v{8+r}, v{16+r}")
for r in range(4):
    a(f"v_add_f32 v{8+r}, v{8+r}, v{24+r}")
swapreduce(8)
a(f"v_add_f32_dpp v8, v8, v8 row_ror:8{DPPM}")
a("v_cmp_u_f32 vcc, v8, v8")
a("s_cbranch_vccz LE3OK")
retry("LE3", "LE3OK")
a.label("LE3OK")
stamp(7)
a("ds_write_b32 v58, v8")
a("v_lshlrev_b32 v8, 2, v1")
a(f"v_add_u32 v9, {FB}, v8")
a("s_lshl_b32 s45, s2, 7")
a(f"s_add_u32 s46, s45, {XBUF}")
a("v_add_u32 v10, s46, v8")
a("s_waitcnt lgkmcnt(0)")
a("s_barrier")
a("s_cmp_eq_u32 s24, 0")
a("s_cbranch_scc0 LSTQ")
a("s_mov_b32 exec_hi, 0")
for w in range(4):
    a(f"ds_read_b32 v{12+w}, v9 offset:{128*w}")
a("ds_read_b32 v16, v10")
a("s_waitcnt lgkmcnt(0)")
a("v_add_f32 v12, v12, v13")
a("v_add_f32 v14, v14, v15")
a("v_add_f32 v12, v12, v14")
bf16r(12, 12)
a("v_add_f32 v12, v12, v16")
a("v_cvt_pk_bf16_f32 v12, v12, v12")
a("s_cmp_eq_u32 s31, 0")
a("s_cbranch_scc0 LFINAL")
a("v_and_b32 v12, 0xffff0000, v12")
a("s_add_u32 s45, s45, s39")
a(f"s_add_u32 s45, s45, {X4}")
a("buffer_store_dword v12, v8, s[12:15], s45 offen sc1")
a("s_mov_b64 exec, -1")
a("s_branch LSTQ")
a.label("LFINAL")
a("s_lshl_b32 s45, s2, 6")
a("v_lshlrev_b32 v8, 1, v1")
a("buffer_store_short v12, v8, s[16:19], s45 offen")
a("s_mov_b64 exec, 1")
a("s_cmp_eq_u32 s2, 0")
a("s_cbranch_scc0 LNOEP")
a("v_mov_b32 v9, s29")
a("buffer_store_dword v9, v8, s[12:15], 0 offen sc1")
a.label("LNOEP")
a("s_mov_b64 exec, -1")
a.label("LSTQ")
stamp(8)
a("s_cmp_eq_u32 s31, 0")
a("s_cbranch_scc0 LDONE")
a("s_cmp_eq_u32 s24, 3")
a("s_cbranch_scc0 LQ5")
a(f"s_add_u32 s44, s39, {X4}")
a("v_lshlrev_b32 v8, 2, v1")
a.label("LE4")
for i in range(9):
    a(f"buffer_load_dword v{XR+i}, v8, s[12:15], s44 offen offset:{i*256} sc1")
a("s_waitcnt vmcnt(0)")
a(f"v_add_f32 v9, v{XR}, v{XR+1}")
for i in range(2, 9):
    a(f"v_add_f32 v9, v9, v{XR+i}")
a("v_cmp_u_f32 vcc, v9, v9")
a("s_cbranch_vccz LE4OK")
retry("LE4", "LE4OK")
a.label("LE4OK")
stamp(9)
a(f"s_mov_b32 s54, {X5}")
a("s_call_b64 s[36:37], LQSTAGE")
a.label("LQ5")
a("s_mov_b32 s31, 1")
a(f"s_add_u32 s39, s39, {LSTRIDE}")
a("s_add_u32 s88, s88, 4096")
a("s_addc_u32 s89, s89, 0")
a("s_lshl_b32 s44, s26, 2")
a("s_add_u32 s44, s44, s24")
a("s_lshl_b32 s92, s44, 13")
a(f"s_add_u32 s92, s92, {4*UNIT_STEP}")
qpoll_addr(X5)
a("s_barrier")
if STAMPS:
    a("s_memrealtime s[58:59]")
    a("s_waitcnt lgkmcnt(0)")
    a("s_mov_b32 s74, s58")
a("s_branch LQPOLL")

a.label("LQSTAGE")
a("v_lshlrev_b32 v8, 2, v1")
a(f"v_add_u32 v8, {XBUF}, v8")
for i in range(9):
    a(f"ds_write_b32 v8, v{XR+i} offset:{i*256}")
tile_addr(58, 59, base=WQ)
layernorm()
gemv(18, 57, 58, 8, 60)
a("s_lshl_b32 s44, s94, 11")
a("s_lshl_b32 s45, s95, 7")
a("s_add_u32 s44, s44, s45")
a("s_add_u32 s44, s44, s54")
a("v_lshlrev_b32 v8, 2, v1")
a("v_mov_b32 v11, s29")
a(f"v_mov_b32_dpp v9, v60 quad_perm:[1,1,3,3]{DPPM}")
a("v_cvt_pk_bf16_f32 v10, v60, v9")
a("s_mov_b64 exec, 0x5555")
a("buffer_store_dwordx2 v[10:11], v8, s[12:15], s44 offen sc1")
a("s_mov_b64 exec, -1")
a("s_setpc_b64 s[36:37]")

a.label("LRING")
a.vq = qtags("R0") + qtags("R1") + qtags("R2")
for s in range(3):
    lp, lg = a.newlabel("pool"), a.newlabel("go")
    a("s_waitcnt lgkmcnt(0)")
    a(f"s_cmp_lt_u32 s90, {NPOOL}")
    a(f"s_cbranch_scc1 {lp}")
    a("s_cmp_eq_u32 s91, 0")
    a(f"s_cbranch_scc1 LDRAINE{s}")
    a("s_sub_u32 s91, s91, 1")
    a("s_mov_b32 s32, s92")
    a("s_add_u32 s92, s92, s34")
    a(f"s_branch {lg}")
    a.label(lp)
    a("s_add_u32 s32, s90, 448")
    a("s_lshl_b32 s32, s32, 13")
    a("s_mov_b32 s90, 1")
    a("s_atomic_add s90, s[88:89], 0 glc")
    a.label(lg)
    a("s_add_u32 s33, s32, 4096")
    unit("v", RING[s], f"R{s}", f"R{s}n", noadv=True)
    a.vq = [(t[0].rstrip("n"), t[1], t[2]) for t in a.vq]
    a("s_sub_u32 s35, s35, 1")
    a("s_cmp_eq_u32 s35, 0")
    if s < 2:
        a("s_cbranch_scc1 LRINGX")
    else:
        a("s_cbranch_scc0 LRING")
a.label("LRINGX")
a("s_setpc_b64 s[36:37]")

for s in range(3):
    a.label(f"LDRAINE{s}")
    a("v_mov_b32 v48, 0")
    a("buffer_load_dword v49, v48, s[20:23], 0 offen sc1")
    a("s_mov_b32 s93, 0")
    a(f"s_branch LDRAIN{s}")
for s in range(3):
    a.label(f"LDRAIN{s}")
    unit_drain(RING[s])
    a("s_add_u32 s93, s93, 1")
    a("s_cmp_eq_u32 s93, 3")
    a("s_cbranch_scc1 LPASSEND")
a("s_branch LDRAIN0")

a.label("LDONE")
if STAMPS:
    a("s_memrealtime s[58:59]")
    a("s_waitcnt lgkmcnt(0)")
    a("s_mov_b32 s87, s58")
    a("s_lshl_b32 s44, s2, 2")
    a("s_add_u32 s44, s44, s24")
    a("s_lshl_b32 s44, s44, 7")
    a(f"s_add_u32 s44, s44, {STAMP_OFF}")
    a("v_mov_b32 v8, 0")
    a("s_mov_b64 exec, 1")
    for i in range(24):
        a(f"v_mov_b32 v9, s{64+i}")
        a(f"buffer_store_dword v9, v8, s[12:15], s44 offen offset:{4*i}")
    a("v_mov_b32 v9, s100")
    a("buffer_store_dword v9, v8, s[12:15], s44 offen offset:96")
    for i, r in enumerate((3, 55, 56, 57, 101)):
        a(f"v_mov_b32 v9, s{r}")
        a(f"buffer_store_dword v9, v8, s[12:15], s44 offen offset:{100+4*i}")
    a("s_waitcnt vmcnt(0)")
a.label("LEND")
a("s_endpgm")

hdr = open("cdna_kernels/" + NAME + ".s.ref").read().split("\n")
top = [l for l in hdr if l.startswith(";") and "@launch" not in l]
out = "\n".join(top) + "\n"
out += f"; @launch grid=(256,1,1) block=(256,1,1) lds={LDS_SIZE}\n"
out += f""".amdgcn_target "amdgcn-amd-amdhsa--gfx950"
.text
.globl {NAME}_kernel
.p2align 8
.type {NAME}_kernel,@function
"""
out += a.text()
out += f""".section .rodata,"a"
.p2align 6
.amdhsa_kernel {NAME}_kernel
  .amdhsa_next_free_vgpr 512
  .amdhsa_next_free_sgpr 102
  .amdhsa_accum_offset 256
  .amdhsa_group_segment_fixed_size 0
  .amdhsa_kernarg_size 96
  .amdhsa_user_sgpr_count 2
  .amdhsa_user_sgpr_kernarg_segment_ptr 1
  .amdhsa_system_sgpr_workgroup_id_x 1
.end_amdhsa_kernel
"""
open(sys.argv[1], "w").write(out)
```

```python
import sys, struct, math
from asmlib import Asm

NAME = "interleave_layers__gqa_block_cached__glu_gated_reglu__decode"
OPT = dict(stamps=0, p2rev=0, kvpol="nt", wpol="nt", wskip=0, vring="def", kring="nt", tfw=7, psleep=1, npf=0, pfk="nt", pfv="def")
for arg in sys.argv[2:]:
    k, v = arg.split("=")
    OPT[k] = int(v) if v.lstrip("-").isdigit() else v
STAMPS = OPT["stamps"]
KVPOL = "" if OPT["kvpol"] == "def" else " " + OPT["kvpol"]
WPOL = "" if OPT["wpol"] == "def" else " " + OPT["wpol"]
PFK = "" if OPT["pfk"] == "def" else " " + OPT["pfk"]
PFV = "" if OPT["pfv"] == "def" else " " + OPT["pfv"]


def f32(x):
    return "0x%08x" % struct.unpack("<I", struct.pack("<f", x))[0]


X0 = 0x1000
X5 = 0x9000
CTR = 0x11000
LB0 = 0x20000
LSTRIDE = 0xC0000
X1 = 0x0
X1S = 1280
X2 = 0x50000
X3 = 0x59000
X4 = 0xAA000
STAMP_OFF = 0x200000
WS_SIZE = 0x400000
NP1 = 22 * 64
TF = NP1 - OPT["tfw"] * 64
WGU = 0
TS = 18432
WD = 73728
WO = 0
WOS = 8448
WQ = 50688
XBUF = 124416
XN = 126720
CB1 = 131328
CS1 = 135424
CB2 = 135488
CS2 = 139584
OB = 139648
FB = 140160
HB = 140672
LSV = 140736
LDS_SIZE = 141760

UNIT_STEP = 524288
DPPM = " row_mask:0xf bank_mask:0xf"
a = Asm()
stamp_n = [0]


def stamp(i):
    if not STAMPS:
        return
    a("s_memrealtime s[58:59]")
    a("s_waitcnt lgkmcnt(0)")
    lab = a.newlabel("st")
    a(f"s_mov_b32 s{64+12+i}, s58")
    a("s_cmp_eq_u32 s31, 0")
    a(f"s_cbranch_scc0 {lab}")
    a(f"s_mov_b32 s{64+i}, s58")
    a.label(lab)


def sstamp(reg):
    if not STAMPS:
        return
    a("s_memrealtime s[58:59]")
    a("s_waitcnt lgkmcnt(0)")
    a(f"s_mov_b32 s{reg}, s58")


def R(kind, base, n=4):
    return f"{kind}[{base}:{base+n-1}]"


def srd(d, lo, hi, size):
    a(f"s_mov_b32 s{d}, s{lo}")
    a(f"s_and_b32 s{d+1}, s{hi}, 0xffff")
    a(f"s_mov_b32 s{d+2}, {size}")
    a(f"s_mov_b32 s{d+3}, 0x20000")


def srd_role(d, lo, hi, size):
    a(f"s_cselect_b32 s{d+2}, {size}, 0")
    a(f"s_mov_b32 s{d}, s{lo}")
    a(f"s_and_b32 s{d+1}, s{hi}, 0xffff")
    a(f"s_mov_b32 s{d+3}, 0x20000")


def ldK(kind, base, t, tag):
    pol = KVPOL if kind == "a" else ("" if OPT["kring"] == "def" else " nt")
    a(f"buffer_load_dwordx4 {R(kind, base+4*t)}, v2, s[4:7], s{32+(t>>2)} offen offset:{(t&3)*1024}{pol}", tag=(tag, "K", t))


def ldV(kind, base, t, tag):
    pol = KVPOL if kind == "a" else ("" if OPT["vring"] == "def" else " nt")
    a(f"buffer_load_dwordx4 {R(kind, base+32+4*t)}, v3, s[8:11], s{32+(t>>2)} offen offset:{(t&3)*1024}{pol}", tag=(tag, "V", t))


def adv():
    a("s_add_u32 s32, s32, s34")
    a("s_add_u32 s33, s33, s34")


def burst(kind, base, tag):
    for t in range(8):
        ldK(kind, base, t, tag)
    for t in range(8):
        ldV(kind, base, t, tag)
    adv()


def waitq(tag, floor=0):
    if tag in a.vq:
        a.wait_vm(tag, floor)


def allreduce(op, v, t, first=0):
    steps = ["quad_perm:[1,0,3,2]", "quad_perm:[2,3,0,1]", "row_half_mirror", "row_mirror"]
    for s in steps[first:]:
        a(f"{op}_dpp v{v}, v{v}, v{v} {s}{DPPM}")
    rows(op, v, t)


def rows(op, v, t):
    a(f"v_mov_b32 v{t}, v{v}")
    a(f"v_permlane16_swap_b32 v{v}, v{t}")
    a(f"{op} v{v}, v{v}, v{t}")
    a(f"v_mov_b32 v{t}, v{v}")
    a(f"v_permlane32_swap_b32 v{v}, v{t}")
    a(f"{op} v{v}, v{v}, v{t}")


QE, QO, OA, MS, LS, NMC = 8, 12, 16, 20, 21, 22
DS_ = [24, 28, 32, 36]
TT = 40
TMP = 44


def unit(kind, base, tag, reload_tag=None, floor=0, hooks=None, noadv=False):
    if hooks:
        hooks[0]()
    for u in range(4):
        waitq((tag, "K", 2 * u + 1), floor)
        d = R("v", DS_[u])
        a(f"v_mfma_f32_16x16x32_bf16 {d}, {R(kind, base+8*u)}, {R('v', QE)}, 0")
        a(f"v_mfma_f32_16x16x32_bf16 {d}, {R(kind, base+8*u+4)}, {R('v', QO)}, {d}")
        if reload_tag is not None:
            ldK(kind, base, 2 * u, reload_tag)
            ldK(kind, base, 2 * u + 1, reload_tag)
    order = [(0, 0), (1, 0), (2, 0), (0, 1), (1, 1), (2, 1), (0, 2), (1, 2), (3, 0), (2, 2), (0, 3), (3, 1),
             (1, 3), (2, 3), (3, 2), None, (3, 3)]
    for o in order:
        if o is None:
            a(f"v_max3_f32 v{TMP}, v{TT}, v{TT+1}, v{MS}")
            continue
        u, c = o
        qp = f"quad_perm:[{c},{c},{c},{c}]"
        if c == 0:
            a(f"v_mov_b32_dpp v{TT+u}, v{DS_[u]} {qp}{DPPM}")
        else:
            a(f"v_add_f32_dpp v{TT+u}, v{DS_[u]+c}, v{TT+u} {qp}{DPPM}")
    a(f"v_max3_f32 v{TMP}, v{TMP}, v{TT+2}, v{TT+3}")
    a(f"v_max_f32_dpp v{TMP}, v{TMP}, v{TMP} row_half_mirror{DPPM}")
    rows("v_max_f32", TMP, TMP + 1)
    a(f"v_sub_f32 v{TMP+1}, v{MS}, v{TMP}")
    a(f"v_mul_f32 v{TMP+1}, s30, v{TMP+1}")
    a(f"v_exp_f32 v{TMP+1}, v{TMP+1}")
    a(f"v_mov_b32 v{MS}, v{TMP}")
    a(f"v_mul_f32 v{NMC}, s30, v{TMP}")
    for u in range(4):
        a(f"v_fma_f32 v{TT+u}, v{TT+u}, s30, -v{NMC}")
    for u in range(4):
        a(f"v_exp_f32 v{TT+u}, v{TT+u}")
    a(f"v_mul_f32 v{LS}, v{LS}, v{TMP+1}")
    for r in range(4):
        a(f"v_mul_f32 v{OA+r}, v{OA+r}, v{TMP+1}")
    a(f"v_add_f32 v{TMP+2}, v{TT}, v{TT+1}")
    a(f"v_add_f32 v{TMP+3}, v{TT+2}, v{TT+3}")
    for u in range(4):
        a(f"v_cvt_pk_bf16_f32 v{TT+u}, v{TT+u}, v{TT+u}")
    a(f"v_add_f32 v{TMP+2}, v{TMP+2}, v{TMP+3}")
    a(f"v_add_f32 v{LS}, v{LS}, v{TMP+2}")

    def buildB(t):
        b = DS_[t & 3]
        p = TT + (t >> 1)
        for i in range(4):
            own = (i < 2) == ((t & 1) == 0)
            if own:
                a(f"v_and_b32 v{b+i}, v{p}, v{4+i}")
            else:
                sh = "row_shr:4" if (t & 1) == 0 else "row_shl:4"
                a(f"v_and_b32_dpp v{b+i}, v{p}, v{4+i} {sh}{DPPM} bound_ctrl:1")

    buildB(0)
    if hooks:
        hooks[1]()
    for t in range(8):
        if t + 1 < 8:
            buildB(t + 1)
        waitq((tag, "V", t), floor)
        a(f"v_mfma_f32_16x16x32_bf16 {R('v', OA)}, {R(kind, base+32+4*t)}, {R('v', DS_[t&3])}, {R('v', OA)}")
        if reload_tag is not None:
            ldV(kind, base, t, reload_tag)
    if reload_tag is not None and not noadv:
        adv()


def qtags(tag):
    return [(tag, "K", t) for t in range(8)] + [(tag, "V", t) for t in range(8)]


RING = [64, 128, 192]


def bf16r(d, s):
    a(f"v_cvt_pk_bf16_f32 v{d}, v{s}, v{s}")
    a(f"v_and_b32 v{d}, 0xffff0000, v{d}")


def gemv(nk, vA, vB, T, acc, bstep=1024, bhalf=128):
    S = 4

    def issue(kk):
        s = T + 8 * (kk % S)
        a(f"ds_read_b128 {R('v', s)}, v{vA} offset:{kk*64}")
        a(f"ds_read_b64_tr_b16 {R('v', s+4, 2)}, v{vB} offset:{kk*bstep}")
        a(f"ds_read_b64_tr_b16 {R('v', s+6, 2)}, v{vB} offset:{kk*bstep+bhalf}")

    for kk in range(min(S, nk)):
        issue(kk)
    for kk in range(nk):
        a(f"s_waitcnt lgkmcnt({3*(min(nk, kk+S)-kk-1)})")
        s = T + 8 * (kk % S)
        c = "0" if kk == 0 else R("v", acc)
        a(f"v_mfma_f32_16x16x32_bf16 {R('v', acc)}, {R('v', s)}, {R('v', s+4)}, {c}")
        if kk + S < nk:
            issue(kk + S)


def tile_addr(v, t, base_sgpr=None, base=0):
    a(f"v_lshrrev_b32 v{v}, 4, v1")
    a(f"v_lshlrev_b32 v{v}, 8, v{v}")
    a(f"v_and_b32 v{t}, 15, v1")
    a(f"v_lshl_add_u32 v{v}, v{t}, 3, v{v}")
    if base:
        a(f"v_add_u32 v{v}, {base}, v{v}")
    if base_sgpr is not None:
        a(f"v_add_u32 v{v}, s{base_sgpr}, v{v}")


def afrag_addr(v, base_sgpr=None, base=0):
    a(f"v_lshrrev_b32 v{v}, 4, v1")
    a(f"v_lshlrev_b32 v{v}, 4, v{v}")
    if base:
        a(f"v_add_u32 v{v}, {base}, v{v}")
    if base_sgpr is not None:
        a(f"v_add_u32 v{v}, s{base_sgpr}, v{v}")


XR = 44


def layernorm():
    s, t, mb, rs = 53, 54, 55, 56
    a(f"v_add_f32 v{s}, v{XR}, v{XR+1}")
    for i in range(2, 9):
        a(f"v_add_f32 v{s}, v{s}, v{XR+i}")
    allreduce("v_add_f32", s, t)
    a(f"v_mul_f32 v{s}, {f32(1.0/576)}, v{s}")
    bf16r(mb, s)
    a(f"v_sub_f32 v{t}, v{XR}, v{s}")
    a(f"v_mul_f32 v{rs}, v{t}, v{t}")
    for i in range(1, 9):
        a(f"v_sub_f32 v{t}, v{XR+i}, v{s}")
        a(f"v_fmac_f32 v{rs}, v{t}, v{t}")
    allreduce("v_add_f32", rs, t)
    a(f"v_mul_f32 v{rs}, {f32(1.0/576)}, v{rs}")
    bf16r(rs, rs)
    a(f"v_add_f32 v{rs}, {f32(1e-5)}, v{rs}")
    bf16r(rs, rs)
    a(f"v_sqrt_f32 v{rs}, v{rs}")
    bf16r(rs, rs)
    a(f"v_rcp_f32 v{rs}, v{rs}")
    a("s_mul_i32 s44, s24, 1152")
    a(f"s_add_u32 s44, s44, {XN}")
    a(f"v_lshlrev_b32 v{s}, 1, v1")
    a(f"v_add_u32 v{s}, s44, v{s}")
    for i in range(9):
        a(f"v_sub_f32 v{XR+i}, v{XR+i}, v{mb}")
    for i in range(9):
        bf16r(XR + i, XR + i)
    for i in range(9):
        a(f"v_mul_f32 v{XR+i}, v{XR+i}, v{rs}")
    for i in range(9):
        a(f"v_cvt_pk_bf16_f32 v{XR+i}, v{XR+i}, v{XR+i}")
    for i in range(9):
        a(f"ds_write_b16 v{s}, v{XR+i} offset:{i*128}")
    afrag_addr(57, base_sgpr=44)
    a("s_waitcnt lgkmcnt(0)")


def retry(lab_again, lab_done):
    a("s_cmp_eq_u32 s38, 0")
    a(f"s_cbranch_scc1 {lab_done}")
    a("s_sub_u32 s38, s38, 1")
    a(f"s_sleep {OPT['psleep']}")
    a(f"s_branch {lab_again}")


def combine(CB, CS):
    a("v_lshlrev_b32 v8, 2, v0")
    a(f"v_add_u32 v8, {CB}, v8")
    a("s_lshr_b32 s44, s24, 1")
    a("s_lshl_b32 s44, s44, 5")
    a(f"s_add_u32 s44, s44, {CS}")
    a("v_mov_b32 v9, s44")
    a("ds_read_b128 v[12:15], v9")
    a("ds_read_b128 v[16:19], v9 offset:16")
    for w in range(4):
        a(f"ds_read_b32 v{20+w}, v8 offset:{w*1024}")
    a("s_waitcnt lgkmcnt(4)")
    a("v_max3_f32 v26, v12, v14, v16")
    a("v_max_f32 v26, v26, v18")
    for w in range(4):
        a(f"v_sub_f32 v{12+2*w}, v{12+2*w}, v26")
    for w in range(4):
        a(f"v_exp_f32 v{12+2*w}, v{12+2*w}")
    a("v_mul_f32 v27, v13, v12")
    for w in range(1, 4):
        a(f"v_fmac_f32 v27, v{13+2*w}, v{12+2*w}")
    a("s_waitcnt lgkmcnt(0)")
    a("v_mul_f32 v24, v20, v12")
    for w in range(1, 4):
        a(f"v_fmac_f32 v24, v{20+w}, v{12+2*w}")


def qpoll_issue():
    a("buffer_load_dwordx4 v[24:27], v32, s[12:15], s45 offen sc1", tag="qp")
    a("buffer_load_dwordx4 v[28:31], v32, s[12:15], s45 offen offset:16 sc1", tag="qp")


def qpoll_addr(xoff):
    a("s_lshl_b32 s45, s25, 11")
    a(f"s_add_u32 s45, s45, {xoff}")
    a("v_bfe_u32 v32, v1, 3, 1")
    a("v_lshlrev_b32 v32, 10, v32")
    a("v_lshrrev_b32 v33, 4, v1")
    a("v_lshl_add_u32 v32, v33, 8, v32")
    a("v_bfe_u32 v33, v1, 1, 1")
    a("v_lshl_add_u32 v32, v33, 7, v32")
    a("v_and_b32 v33, 1, v1")
    a("v_lshl_add_u32 v32, v33, 5, v32")


def qpoll_check():
    a("v_cmp_ne_u32 s[46:47], s29, v25")
    a("v_cmp_ne_u32 s[48:49], s29, v27")
    a("v_cmp_ne_u32 s[50:51], s29, v29")
    a("v_cmp_ne_u32 s[52:53], s29, v31")
    a("s_or_b64 s[46:47], s[46:47], s[48:49]")
    a("s_or_b64 s[50:51], s[50:51], s[52:53]")
    a("s_or_b64 s[46:47], s[46:47], s[50:51]")


VL = 50


def unit_drain(base):
    def pwait(n0, n1, n2):
        l0, l1 = a.newlabel("dw"), a.newlabel("dw")
        a("s_cmp_eq_u32 s93, 0")
        a(f"s_cbranch_scc1 {l0}")
        a("s_cmp_eq_u32 s93, 1")
        a(f"s_cbranch_scc1 {l1}")
        a(f"s_waitcnt vmcnt({n2})")
        a.label(l1)
        a(f"s_waitcnt vmcnt({n1})")
        a.label(l0)
        a(f"s_waitcnt vmcnt({n0})")
    a.vq = []
    unit("v", base, "none", None, hooks=(lambda: pwait(41, 25, 9), lambda: pwait(33, 17, 1)))


def swapreduce(b):
    a(f"v_permlane32_swap_b32 v{b}, v{b+1}")
    a(f"v_permlane32_swap_b32 v{b+2}, v{b+3}")
    a(f"v_add_f32 v{b}, v{b}, v{b+1}")
    a(f"v_add_f32 v{b+2}, v{b+2}, v{b+3}")
    a(f"v_permlane16_swap_b32 v{b}, v{b+2}")
    a(f"v_add_f32 v{b}, v{b}, v{b+2}")


a.raw(f"{NAME}_kernel:")
a("s_cmp_ge_u32 s2, 256")
a("s_cbranch_scc1 LEND")
if STAMPS:
    a("s_memrealtime s[100:101]")
a("s_load_dwordx16 s[64:79], s[0:1], 0")
a("s_load_dwordx8 s[80:87], s[0:1], 64")
a("v_and_b32 v1, 63, v0")
a("v_lshrrev_b32 v40, 6, v0")
a("v_readfirstlane_b32 s24, v40")
a("s_and_b32 s28, s2, 7")
a("s_lshr_b32 s27, s2, 3")
a("s_lshl_b32 s44, s28, 2")
a("s_add_u32 s27, s27, s44")
a("s_and_b32 s27, s27, 31")
a("s_lshr_b32 s25, s2, 4")
a("s_and_b32 s26, s2, 15")
a(f"s_mov_b32 s30, {f32(math.log2(math.e)/math.sqrt(128.0))}")
a("s_mov_b32 s31, 0")
a(f"s_mov_b32 s34, {UNIT_STEP}")
a("s_mov_b32 s38, 400000")
a(f"s_mov_b32 s39, {LB0}")
a("s_mov_b32 s42, 0xf0f0f0f0")
a("s_mov_b32 s43, 0xf0f0f0f0")
a("s_lshl_b32 s44, s26, 2")
a("s_add_u32 s44, s44, s24")
a("s_lshl_b32 s32, s44, 13")
a("s_add_u32 s33, s32, 4096")
a("v_lshlrev_b32 v3, 4, v1")
a("v_bfe_u32 v40, v1, 2, 2")
a("v_lshlrev_b32 v2, 8, v40")
a("v_lshrrev_b32 v40, 4, v1")
a("v_lshl_add_u32 v2, v40, 6, v2")
a("v_and_b32 v40, 3, v1")
a("v_lshl_add_u32 v2, v40, 4, v2")
a("s_waitcnt lgkmcnt(0)")
a("s_load_dword s29, s[86:87], 0")
a("s_lshl_b32 s44, s25, 24")
a("s_add_u32 s4, s66, s44")
a("s_addc_u32 s5, s67, 0")
a("s_and_b32 s5, s5, 0xffff")
a("s_mov_b32 s6, 0x1000000")
a("s_mov_b32 s7, 0x20000")
a("s_add_u32 s8, s68, s44")
a("s_addc_u32 s9, s69, 0")
a("s_and_b32 s9, s9, 0xffff")
a("s_mov_b32 s10, 0x1000000")
a("s_mov_b32 s11, 0x20000")
srd(12, 86, 87, WS_SIZE)
a("s_cmp_ge_u32 s27, 24")
a("s_cbranch_scc0 LPRO1")
srd(60, 64, 65, 1152)
srd(92, 70, 71, 0 if OPT["wskip"] & 8 else 576 * 8192)
a("v_lshrrev_b32 v41, 3, v1")
a("v_lshlrev_b32 v40, 13, v41")
a("v_and_b32 v42, 7, v1")
a("v_lshl_add_u32 v40, v42, 4, v40")
a("s_lshl_b32 s46, s28, 3")
a("s_add_u32 s46, s46, s27")
a("s_sub_u32 s46, s46, 24")
a("s_lshl_b32 s44, s46, 7")
a(f"s_mul_i32 s45, s24, {144*8192}")
a("s_add_u32 s44, s44, s45")
for i in range(18):
    a(f"buffer_load_dwordx4 {R('v', 64+4*i)}, v40, s[92:95], s44 offen{WPOL}")
    a("s_add_u32 s44, s44, 65536")
a("v_lshlrev_b32 v40, 1, v1")
for i in range(9):
    a(f"buffer_load_ushort v{XR+i}, v40, s[60:63], 0 offen offset:{i*128}")
a("s_and_b32 s44, s46, 3")
a("s_or_b32 s44, s44, s24")
a("s_cmp_eq_u32 s44, 0")
a("s_cbranch_scc0 LPRO0")
a("v_lshlrev_b32 v40, 12, v1")
a("v_mov_b32 v43, 0")
a("s_lshl_b32 s44, s46, 6")
a(f"s_add_u32 s44, s44, {CTR}")
a("s_mov_b64 exec, 3")
a("buffer_store_dword v43, v40, s[12:15], s44 offen sc1")
a("s_mov_b64 exec, -1")
a.label("LPRO0")
a("v_lshrrev_b32 v40, 1, v42")
a(f"v_mul_u32_u24 v40, {TS}, v40")
a("v_lshl_add_u32 v40, v41, 5, v40")
a("v_and_b32 v42, 1, v42")
a("v_lshl_add_u32 v40, v42, 4, v40")
a(f"s_mul_i32 s44, s24, {144*32}")
a(f"s_add_u32 s44, s44, {WQ}")
a("v_add_u32 v40, s44, v40")
a("s_waitcnt vmcnt(0) lgkmcnt(0)")
sstamp(3)
a("s_mul_i32 s29, s29, 0x9e3779b1")
a("s_add_u32 s29, s29, 0x7f4a7c15")
for i in range(18):
    a(f"ds_write_b128 v40, {R('v', 64+4*i)} offset:{i*256}")
for i in range(9):
    a(f"v_lshlrev_b32 v{XR+i}, 16, v{XR+i}")
a("s_waitcnt lgkmcnt(0)")
a("s_barrier")
a(f"s_mov_b32 s54, {X0}")
a("s_call_b64 s[36:37], LQSTAGE")
a("s_branch LPRO2")
a.label("LPRO1")
a("s_waitcnt lgkmcnt(0)")
a("s_mul_i32 s29, s29, 0x9e3779b1")
a("s_add_u32 s29, s29, 0x7f4a7c15")
a.label("LPRO2")
sstamp(55)
a.vq = []
burst("a", 0, "A0")
a("s_cmp_eq_u32 s24, 0")
a("s_cbranch_scc0 LPRO3")
a("v_mov_b32 v24, -1\nv_mov_b32 v25, -1\nv_mov_b32 v26, -1\nv_mov_b32 v27, -1")
a("s_mul_i32 s44, s2, 6144")
a(f"s_add_u32 s44, s44, {LB0}")
a("s_add_u32 s45, s44, 4096")
keep = list(a.vq)
for i in range(6):
    a(f"buffer_store_dwordx4 v[24:27], v3, s[12:15], s{44+(i>>2)} offen offset:{1024*(i&3)} sc1")
a.vq = keep
a.label("LPRO3")
srd(16, 82, 83, 1152)
srd(20, 84, 85, 256)
a("s_mov_b32 s98, s64")
a("s_mov_b32 s99, s65")
a("v_and_b32 v40, 1, v1")
a("v_lshlrev_b32 v40, 4, v40")
a("v_mov_b32 v41, 0xffff")
a("v_lshlrev_b32 v40, v40, v41")
for i in range(4):
    m = 0x03030303 << (2 * i)
    a(f"s_mov_b32 s40, 0x{m:08x}")
    a(f"s_mov_b32 s41, 0x{m:08x}")
    a(f"v_cndmask_b32 v{4+i}, 0, v40, s[40:41]")
a("s_lshl_b32 s44, s25, 8")
a(f"s_add_u32 s44, s44, {CTR}")
a("s_add_u32 s88, s86, s44")
a("s_addc_u32 s89, s87, 0")
sstamp(56)
keep = list(a.vq)
a("s_cmp_lt_u32 s27, 18")
a("s_cbranch_scc0 LWB")
srd(60, 76, 77, 0 if OPT["wskip"] & 2 else 576 * 9216)
srd(92, 78, 79, 0 if OPT["wskip"] & 2 else 576 * 9216)
a("v_lshrrev_b32 v41, 2, v1")
a("v_and_b32 v42, 3, v1")
a("v_mul_u32_u24 v40, 9216, v41")
a("v_lshl_add_u32 v40, v42, 4, v40")
a("s_mul_i32 s46, s28, 18")
a("s_add_u32 s46, s46, s27")
a("s_lshl_b32 s44, s46, 6")
a(f"s_mul_i32 s45, s24, {144*9216}")
a("s_add_u32 s44, s44, s45")
for i in range(9):
    a(f"buffer_load_dwordx4 {R('v', 64+8*i)}, v40, s[60:63], s44 offen{WPOL}")
    a(f"buffer_load_dwordx4 {R('v', 68+8*i)}, v40, s[92:95], s44 offen{WPOL}")
    a(f"s_add_u32 s44, s44, {16*9216}")
a(f"v_mul_u32_u24 v43, {TS}, v42")
a("v_lshl_add_u32 v43, v41, 5, v43")
a(f"s_mul_i32 s45, s24, {144*32}")
a("v_add_u32 v43, s45, v43")
srd(60, 80, 81, 0 if OPT["wskip"] & 4 else 4608 * 1152)
a(f"s_mul_i32 s44, s46, {32*1152}")
a("s_mul_i32 s45, s24, 9216")
a("s_add_u32 s44, s44, s45")
a("s_add_u32 s45, s44, 4096")
a("s_add_u32 s46, s44, 8192")
for i in range(9):
    a(f"buffer_load_dwordx4 {R('v', 136+4*i)}, v3, s[60:63], s{44+(i>>2)} offen offset:{(i&3)*1024}{WPOL}")
a("s_branch LWDONE")
a.label("LWB")
a("s_cmp_lt_u32 s27, 30")
a("s_cbranch_scc0 LWDONE")
srd(60, 72, 73, 0 if OPT["wskip"] & 1 else 4096 * 1152)
a("v_mul_u32_u24 v41, 43, v1")
a("v_lshrrev_b32 v41, 9, v41")
a("v_mul_u32_u24 v42, 12, v41")
a("v_sub_u32 v42, v1, v42")
a("v_mul_u32_u24 v40, 1152, v41")
a("v_lshl_add_u32 v40, v42, 4, v40")


def brole():
    a("s_sub_u32 s47, s27, 18")
    a("s_lshl_b32 s46, s28, 1")
    a("s_cmp_ge_u32 s47, 6")
    a("s_addc_u32 s46, s46, 0")
    a("s_cmp_ge_u32 s47, 6")
    a("s_cselect_b32 s48, 6, 0")
    a("s_sub_u32 s47, s47, s48")


brole()
a("s_lshl_b32 s44, s46, 8")
a("s_lshl_b32 s45, s24, 6")
a("s_add_u32 s44, s44, s45")
a("s_mul_i32 s44, s44, 1152")
a("s_mul_i32 s45, s47, 192")
a("s_add_u32 s44, s44, s45")
for i in range(13):
    a(f"buffer_load_dwordx4 {R('v', 64+4*i)}, v40, s[60:63], s44 offen{WPOL}")
    a(f"s_add_u32 s44, s44, {5*1152}")
a("v_lshrrev_b32 v43, 1, v42")
a(f"v_mul_u32_u24 v43, {WOS}, v43")
a("v_lshl_add_u32 v43, v41, 5, v43")
a("v_and_b32 v42, 1, v42")
a("v_lshl_add_u32 v43, v42, 4, v43")
a("s_lshl_b32 s45, s24, 11")
a("v_add_u32 v43, s45, v43")
a.label("LWDONE")
a.vq = keep
sstamp(57)
a.wait_vm_n(30)
burst("a", 64, "A1")
a.wait_vm_n(30)
burst("a", 128, "A2")
a.wait_vm_n(40)
burst("a", 192, "A3")
a.wait_vm_n(48)
a("s_cmp_lt_u32 s27, 18")
a("s_cbranch_scc0 LWB2")
for i in range(9):
    a(f"ds_write_b128 v43, {R('v', 64+8*i)} offset:{i*512}")
    a(f"ds_write_b128 v43, {R('v', 68+8*i)} offset:{i*512+16}")
a("s_mul_i32 s44, s24, 9216")
a(f"s_add_u32 s44, s44, {WD}")
a("v_add_u32 v40, s44, v3")
for i in range(9):
    a(f"ds_write_b128 v40, {R('v', 136+4*i)} offset:{i*1024}")
a("s_branch LWDONE2")
a.label("LWB2")
a("s_cmp_lt_u32 s27, 30")
a("s_cbranch_scc0 LWDONE2")
for i in range(13):
    a(f"ds_write_b128 v43, {R('v', 64+4*i)} offset:{i*160}")
a.label("LWDONE2")
a(f"v_mov_b32 v{VL}, 0")
for i in range(6):
    a(f"s_add_u32 s44, s32, {i*UNIT_STEP}")
    a(f"v_writelane_b32 v{VL}, s44, {i}")
a("s_mov_b32 s91, 3")
a("s_mov_b32 s92, 6")
a("s_mov_b32 s94, 6")
a("s_mov_b32 s95, 7")
a(f"s_mov_b32 s96, {NP1}")
qpoll_addr(X0)
a("s_waitcnt lgkmcnt(0)")
a("s_cmp_eq_u32 s24, 0")
a("s_cbranch_scc0 LNOCNT")
a("s_mov_b32 s53, 1")
a("s_atomic_add s53, s[84:85], 0")
a.label("LNOCNT")
a.wait_vm_n(40)
burst("v", RING[0], "R0")
a.wait_vm_n(40)
burst("v", RING[1], "R1")
a.wait_vm_n(40)
sstamp(101)
qpoll_issue()
burst("v", RING[2], "R2")
a.wait_vm("qp")
if STAMPS:
    a("s_memrealtime s[58:59]")
    a("s_waitcnt lgkmcnt(0)")
    a("s_mov_b32 s75, s58")
qpoll_check()
a("s_cbranch_scc0 LQREADY")

a.label("LQPOLL")
qpoll_issue()
a("s_waitcnt vmcnt(0)")
qpoll_check()
a("s_cbranch_scc0 LQREADY")
retry("LQPOLL", "LQREADY")
a.label("LQREADY")
a("s_mov_b32 s90, 1")
a("s_atomic_add s90, s[88:89], 0 glc")
for i in range(4):
    a(f"v_cndmask_b32 v{QE+i}, v{24+2*i}, 0, s[42:43]")
    a(f"v_cndmask_b32 v{QO+i}, 0, v{24+2*i}, s[42:43]")
for r in range(4):
    a(f"v_mov_b32 v{OA+r}, 0")
a(f"v_mov_b32 v{MS}, {f32(-1e30)}")
a(f"v_mov_b32 v{LS}, 0")
stamp(0)
if STAMPS >= 2:
    a("s_mov_b32 s3, 0")
    a("v_mov_b32 v51, 0")
for i in range(4):
    if i < 3:
        a("s_mov_b32 s35, 1")
        a(f"s_call_b64 s[36:37], LRING{i}")
    a.vq = []
    unit("a", 64 * i, f"A{i}", None)
a("s_mov_b32 s35, 0x7fffffff")
a("s_call_b64 s[36:37], LRING0")
a.label("LPASSEND")
stamp(1)
if STAMPS >= 2:
    a("s_lshl_b32 s44, s31, 8")
    a("s_add_u32 s44, s44, s2")
    a("s_lshl_b32 s44, s44, 10")
    a(f"s_add_u32 s44, s44, {STAMP_OFF+0x40000}")
    a("v_lshlrev_b32 v40, 2, v0")
    a("buffer_store_dword v51, v40, s[12:15], s44 offen")
a(f"v_add_f32_dpp v{LS}, v{LS}, v{LS} row_half_mirror{DPPM}")
rows("v_add_f32", LS, TMP)
a(f"v_mul_f32 v22, s30, v{MS}")
a(f"v_mov_b32 v23, v{LS}")
a("v_bfe_u32 v40, v1, 3, 1")
a("v_lshlrev_b32 v41, 9, v40")
a("v_lshrrev_b32 v42, 4, v1")
a("v_lshl_add_u32 v41, v42, 7, v41")
a("v_and_b32 v42, 7, v1")
a("v_lshl_add_u32 v41, v42, 2, v41")
a("s_lshl_b32 s44, s24, 10")
a(f"s_add_u32 s44, s44, {CB1}")
a("v_add_u32 v41, s44, v41")
for r in range(4):
    a(f"ds_write_b32 v41, v{OA+r} offset:{32*r}")
a("s_lshl_b32 s44, s24, 3")
a(f"s_add_u32 s44, s44, {CS1}")
a("v_lshlrev_b32 v40, 5, v40")
a("v_add_u32 v40, s44, v40")
a("ds_write_b64 v40, v[22:23]")
a("v_lshlrev_b32 v40, 2, v0")
a(f"v_add_u32 v40, {LSV}, v40")
a(f"ds_write_b32 v40, v{VL}")
a.label("LCNT")
a("s_waitcnt vmcnt(0)")
a("v_readfirstlane_b32 s44, v49")
a("s_cmp_ge_u32 s44, 256")
a("s_cbranch_scc1 LCNTOK")
a("v_mov_b32 v48, 0")
a("buffer_load_dword v49, v48, s[20:23], 0 offen sc1")
retry("LCNT", "LCNTOK")
a.label("LCNTOK")
a("s_waitcnt lgkmcnt(0)")
a("s_barrier")
combine(CB1, CS1)
a(f"s_mul_i32 s44, s2, {X1S}")
a("s_add_u32 s44, s44, s39")
a("v_lshlrev_b32 v8, 2, v0")
a("buffer_store_dword v24, v8, s[12:15], s44 offen sc1")
a("s_lshl_b32 s45, s24, 6")
a("v_mov_b32 v9, s45")
a("s_bitcmp0_b32 s24, 0")
a("s_cbranch_scc0 LPUB1")
a("s_mov_b64 exec, 1")
a("buffer_store_dwordx2 v[26:27], v9, s[12:15], s44 offen offset:1024 sc1")
a("s_mov_b64 exec, -1")
a.label("LPUB1")
stamp(2)
a("s_cmp_lt_u32 s27, 18")
a("s_cbranch_scc1 LSTC")
a("s_cmp_lt_u32 s27, 30")
a("s_cbranch_scc0 LSTQ")
brole()
a("s_lshl_b32 s44, s46, 4")
a("s_lshl_b32 s45, s24, 2")
a("s_add_u32 s44, s44, s45")
a(f"s_mul_i32 s44, s44, {X1S}")
a("s_add_u32 s44, s44, s39")
a("v_lshrrev_b32 v8, 5, v1")
a("v_lshlrev_b32 v9, 7, v8")
a("v_add_u32 v9, 1024, v9")
a.label("LE1")
for p in range(4):
    a(f"buffer_load_dwordx2 {R('v', 28+2*p, 2)}, v9, s[12:15], s44 offen offset:{p*X1S} sc1")
for p in range(4):
    a(f"buffer_load_dwordx4 {R('v', 12+4*p)}, v3, s[12:15], s44 offen offset:{p*X1S} sc1")
a("s_waitcnt vmcnt(4)")
a("v_max3_f32 v40, v28, v30, v32")
a("v_max_f32 v40, v40, v34")
for p in range(4):
    a(f"v_sub_f32 v{28+2*p}, v{28+2*p}, v40")
for p in range(4):
    a(f"v_exp_f32 v{28+2*p}, v{28+2*p}")
a("v_mul_f32 v41, v29, v28")
for p in range(1, 4):
    a(f"v_fmac_f32 v41, v{29+2*p}, v{28+2*p}")
a("s_waitcnt vmcnt(0)")
for r in range(4):
    a(f"v_mul_f32 v{36+r}, v{12+r}, v28")
for p in range(1, 4):
    for r in range(4):
        a(f"v_fmac_f32 v{36+r}, v{12+4*p+r}, v{28+2*p}")
a("v_add_f32 v42, v36, v37")
a("v_add_f32 v43, v38, v39")
a("v_add_f32 v42, v42, v41")
a("v_cmp_u_f32 vcc, v42, v43")
a("s_cbranch_vccz LE1OK")
retry("LE1", "LE1OK")
a.label("LE1OK")
stamp(3)
a("s_lshl_b32 s44, s24, 10")
a(f"s_add_u32 s44, s44, {CB2}")
a("v_add_u32 v10, s44, v3")
a("ds_write_b128 v10, v[36:39]")
a("s_lshl_b32 s44, s24, 3")
a(f"s_add_u32 s44, s44, {CS2}")
a("v_lshlrev_b32 v8, 5, v8")
a("v_add_u32 v8, s44, v8")
a("ds_write_b64 v8, v[40:41]")
a("s_waitcnt lgkmcnt(0)")
a("s_barrier")
combine(CB2, CS2)
a("v_rcp_f32 v27, v27")
a("v_lshlrev_b32 v8, 1, v0")
a(f"v_add_u32 v8, {OB}, v8")
a("v_mul_f32 v24, v24, v27")
a("v_cvt_pk_bf16_f32 v24, v24, v24")
a("ds_write_b16 v8, v24")
a(f"s_mul_i32 s44, s24, {2*WOS}")
tile_addr(58, 59, base_sgpr=44, base=WO)
afrag_addr(57, base=OB)
a("s_waitcnt lgkmcnt(0)")
a("s_barrier")
a("s_cmp_eq_u32 s24, 3")
a("s_cbranch_scc1 LSTQ")


def b_issue(kk):
    s = 8 + 12 * (kk % 3)
    a(f"ds_read_b128 {R('v', s)}, v57 offset:{kk*64}")
    for t in range(2):
        a(f"ds_read_b64_tr_b16 {R('v', s+4+4*t, 2)}, v58 offset:{kk*1024+t*WOS}")
        a(f"ds_read_b64_tr_b16 {R('v', s+6+4*t, 2)}, v58 offset:{kk*1024+t*WOS+128}")


for kk in range(3):
    b_issue(kk)
for kk in range(8):
    a(f"s_waitcnt lgkmcnt({5*(min(8, kk+3)-kk-1)})")
    s = 8 + 12 * (kk % 3)
    for t in range(2):
        acc = R("v", 48 + 4 * t)
        a(f"v_mfma_f32_16x16x32_bf16 {acc}, {R('v', s)}, {R('v', s+4+4*t)}, {'0' if kk == 0 else acc}")
    if kk + 3 < 8:
        b_issue(kk + 3)
a("s_mul_i32 s44, s46, 2304")
a("s_mul_i32 s45, s47, 384")
a("s_add_u32 s44, s44, s45")
a("s_lshl_b32 s45, s24, 7")
a("s_add_u32 s44, s44, s45")
a("s_add_u32 s44, s44, s39")
a(f"s_add_u32 s44, s44, {X2}")
a("s_mov_b32 s48, 0xffff0000")
a("s_mov_b32 s49, 0xffff0000")
a("v_lshlrev_b32 v8, 2, v1")
a("v_cndmask_b32 v48, v48, v52, s[48:49]")
a("s_mov_b32 exec_hi, 0")
a("buffer_store_dword v48, v8, s[12:15], s44 offen sc1")
a("s_mov_b64 exec, -1")
stamp(4)
a("s_branch LSTQ")
a.label("LSTC")
a("s_cmp_eq_u32 s24, 3")
a("s_cbranch_scc0 LSTC1")
if OPT["npf"]:
    a("s_cmp_eq_u32 s31, 0")
    a("s_cbranch_scc0 LC_BAR")
    a("v_lshlrev_b32 v34, 7, v1")
    a("s_lshl_b32 s44, s26, 15")
    for n in range(OPT["npf"]):
        for i in range(4):
            a(f"s_add_u32 s45, s44, {(4+n)*UNIT_STEP+i*8192}")
            a(f"buffer_load_dword v35, v34, s[4:7], s45 offen{PFK}")
            a(f"buffer_load_dword v36, v34, s[8:11], s45 offen{PFV}")
    a("s_waitcnt vmcnt(0)")
a("s_branch LC_BAR")
a.label("LSTC1")
a("v_lshrrev_b32 v56, 4, v1")
a("v_mul_u32_u24 v56, 2304, v56")
a("v_and_b32 v57, 15, v1")
a("v_lshl_add_u32 v56, v57, 4, v56")
a("s_mul_i32 s48, s24, 768")
a("s_add_u32 s44, s48, s39")
a(f"s_add_u32 s44, s44, {X2}")
for g in range(1, 4):
    a(f"s_add_u32 s{44+g}, s44, {g*9216}")
a("v_bfe_u32 v58, v1, 4, 1")
a("v_lshlrev_b32 v58, 1, v58")
a("v_lshrrev_b32 v59, 5, v1")
a("v_add_u32 v58, v58, v59")
a("v_lshl_add_u32 v58, v57, 2, v58")
a("v_lshlrev_b32 v58, 2, v58")
a("v_add_u32 v58, s48, v58")
a("s_cmp_eq_u32 s31, 0")
a("s_cbranch_scc0 LC_X2")
srd(60, 98, 99, 1152)
a("v_lshrrev_b32 v59, 1, v58")
for c in range(3):
    a(f"buffer_load_ushort v{60+c}, v59, s[60:63], 0 offen offset:{c*128}")
a("s_waitcnt vmcnt(0)")
for c in range(3):
    a(f"v_lshlrev_b32 v{60+c}, 16, v{60+c}")
a("s_branch LC_X3")
a.label("LC_X2")
a(f"s_mov_b32 s48, {LB0+X4}")
for c in range(3):
    a(f"buffer_load_dword v{60+c}, v58, s[12:15], s48 offen offset:{c*256} sc1")
a.label("LC_X3")
a(f"v_add_u32 v58, {XBUF}, v58")
a.label("LE2")
for c in range(3):
    for g in range(4):
        a(f"buffer_load_dwordx4 {R('v', 8+16*c+4*g)}, v56, s[12:15], s{44+g} offen offset:{c*256} sc1")
for c in range(3):
    b = 8 + 16 * c
    a(f"s_waitcnt vmcnt({8-4*c})")
    for r in range(4):
        a(f"v_add_f32 v{b+r}, v{b+r}, v{b+4+r}")
        a(f"v_add_f32 v{b+8+r}, v{b+8+r}, v{b+12+r}")
    for r in range(4):
        a(f"v_add_f32 v{b+r}, v{b+r}, v{b+8+r}")
    swapreduce(b)
a("v_add_f32 v9, v8, v24")
a("v_cmp_u_f32 vcc, v9, v40")
a("s_cbranch_vccz LE2OK")
retry("LE2", "LE2OK")
a.label("LE2OK")
stamp(5)
for c in range(3):
    bf16r(8 + 16 * c, 8 + 16 * c)
for c in range(3):
    a(f"v_add_f32 v{60+c}, v{60+c}, v{8+16*c}")
for c in range(3):
    bf16r(60 + c, 60 + c)
for c in range(3):
    a(f"ds_write_b32 v58, v{60+c} offset:{c*256}")
a.label("LC_BAR")
a("v_lshlrev_b32 v8, 2, v1")
a(f"v_add_u32 v8, {XBUF}, v8")
a(f"s_mul_i32 s45, s24, {TS}")
tile_addr(58, 59, base_sgpr=45, base=WGU)
a("s_waitcnt lgkmcnt(0)")
a("s_barrier")
for i in range(9):
    a(f"ds_read_b32 v{XR+i}, v8 offset:{i*256}")
a("s_waitcnt lgkmcnt(0)")
layernorm()
gemv(18, 57, 58, 8, 60)
a("s_lshl_b32 s44, s24, 4")
a(f"s_add_u32 s44, s44, {HB}")
a("v_lshlrev_b32 v40, 1, v1")
a("v_add_u32 v40, s44, v40")
a("v_lshrrev_b32 v56, 4, v1")
a("v_lshlrev_b32 v57, 3, v56")
a("v_bfe_u32 v58, v1, 2, 2")
a("v_add_u32 v57, v57, v58")
a("v_mul_u32_u24 v57, 1152, v57")
a("v_and_b32 v58, 3, v1")
a("v_lshl_add_u32 v57, v58, 3, v57")
a("s_lshl_b32 s44, s24, 7")
a(f"s_add_u32 s44, s44, {WD}")
a("v_add_u32 v57, s44, v57")
a("v_lshlrev_b32 v56, 4, v56")
a(f"v_add_u32 v56, {HB}, v56")


def downB(i):
    for t in range(4):
        s = 8 + 16 * (i & 1) + 4 * t
        a(f"ds_read_b64_tr_b16 {R('v', s, 2)}, v57 offset:{i*512+t*32}")
        a(f"ds_read_b64_tr_b16 {R('v', s+2, 2)}, v57 offset:{i*512+t*32+4*1152}")


downB(0)
a(f"v_mov_b32_dpp v41, v60 row_shl:8{DPPM} bound_ctrl:1")
a("v_cvt_pk_bf16_f32 v41, v60, v41")
a("v_lshlrev_b32 v42, 16, v41")
a("v_and_b32 v41, 0xffff0000, v41")
a("v_max_f32 v42, 0, v42")
a("v_mul_f32 v41, v42, v41")
a("v_cvt_pk_bf16_f32 v41, v41, v41")
a("s_mov_b64 exec, 0xff")
a("ds_write_b16 v40, v41")
a("s_mov_b64 exec, -1")
a("v_lshrrev_b32 v58, 5, v1")
a("v_mul_u32_u24 v58, 18432, v58")
a("v_and_b32 v59, 31, v1")
a("v_lshl_add_u32 v58, v59, 2, v58")
a("s_mul_i32 s44, s28, 18")
a("s_add_u32 s44, s44, s27")
a("s_lshl_b32 s44, s44, 7")
a("s_mul_i32 s45, s24, 36864")
a("s_add_u32 s44, s44, s45")
a("s_add_u32 s44, s44, s39")
a(f"s_add_u32 s44, s44, {X3}")
a("s_mov_b32 s46, 0xffff0000")
a("s_mov_b32 s47, 0xffff0000")
a("s_mov_b32 s48, 0")
a("s_mov_b32 s49, -1")
a("s_waitcnt lgkmcnt(0)")
a("s_barrier")
a("ds_read_b128 v[60:63], v56")
downB(1)


def downG(i, wait):
    a(f"s_waitcnt lgkmcnt({wait})")
    for t in range(4):
        s = 8 + 16 * (i & 1) + 4 * t
        a(f"v_mfma_f32_16x16x32_bf16 {R('v', 40+4*t)}, v[60:63], {R('v', s)}, 0")
    a("v_cndmask_b32 v40, v40, v44, s[46:47]")
    a("v_cndmask_b32 v48, v48, v52, s[46:47]")
    a("v_cndmask_b32 v40, v40, v48, s[48:49]")
    a("buffer_store_dword v40, v58, s[12:15], s44 offen sc1")
    a(f"s_add_u32 s44, s44, {4*36864}")


downG(0, 8)
a("s_cmp_eq_u32 s24, 0")
a("s_cbranch_scc1 LDOWN3")
downG(1, 0)
a("s_branch LSTD")
a.label("LDOWN3")
a("s_waitcnt lgkmcnt(0)")
downB(2)
downG(1, 8)
downG(2, 0)
a.label("LSTD")
stamp(6)
a("s_lshl_b32 s50, s27, 3")
a("s_add_u32 s50, s50, s28")
a("s_cmp_lt_u32 s50, 18")
a("s_cbranch_scc0 LSTQ")
a("s_mul_i32 s44, s50, 18432")
a("s_mul_i32 s45, s24, 4608")
a("s_add_u32 s44, s44, s45")
a("s_add_u32 s44, s44, s39")
a(f"s_add_u32 s44, s44, {X3}")
a("s_add_u32 s45, s44, 4096")
a("v_bfe_u32 v58, v1, 4, 1")
a("v_lshlrev_b32 v58, 1, v58")
a("v_lshrrev_b32 v59, 5, v1")
a("v_add_u32 v58, v58, v59")
a("v_and_b32 v59, 7, v1")
a("v_lshl_add_u32 v58, v59, 2, v58")
a("v_lshlrev_b32 v58, 2, v58")
a("s_lshl_b32 s46, s24, 7")
a(f"s_add_u32 s46, s46, {FB}")
a("v_add_u32 v58, s46, v58")
for r in range(4):
    a(f"v_mov_b32 v{24+r}, 0")
a.label("LE3")
for i in range(4):
    a(f"buffer_load_dwordx4 {R('v', 8+4*i)}, v3, s[12:15], s44 offen offset:{i*1024} sc1")
a("s_mov_b32 exec_hi, 0")
a("buffer_load_dwordx4 v[24:27], v3, s[12:15], s45 offen sc1")
a("s_mov_b64 exec, -1")
a("s_waitcnt vmcnt(0)")
for r in range(4):
    a(f"v_add_f32 v{8+r}, v{8+r}, v{12+r}")
    a(f"v_add_f32 v{16+r}, v{16+r}, v{20+r}")
for r in range(4):
    a(f"v_add_f32 v{8+r}, v{8+r}, v{24+r}")
for r in range(4):
    a(f"v_add_f32 v{8+r}, v{8+r}, v{16+r}")
swapreduce(8)
a(f"v_add_f32_dpp v8, v8, v8 row_ror:8{DPPM}")
a("v_cmp_u_f32 vcc, v8, v8")
a("s_cbranch_vccz LE3OK")
retry("LE3", "LE3OK")
a.label("LE3OK")
stamp(7)
a("ds_write_b32 v58, v8")
a("v_lshlrev_b32 v8, 2, v1")
a(f"v_add_u32 v9, {FB}, v8")
a("s_lshl_b32 s45, s50, 7")
a(f"s_add_u32 s46, s45, {XBUF}")
a("v_add_u32 v10, s46, v8")
a("s_waitcnt lgkmcnt(0)")
a("s_barrier")
a("s_cmp_eq_u32 s24, 0")
a("s_cbranch_scc0 LSTQ")
a("s_mov_b32 exec_hi, 0")
for w in range(4):
    a(f"ds_read_b32 v{12+w}, v9 offset:{128*w}")
a("ds_read_b32 v16, v10")
a("s_waitcnt lgkmcnt(0)")
a("v_add_f32 v12, v12, v13")
a("v_add_f32 v14, v14, v15")
a("v_add_f32 v12, v12, v14")
bf16r(12, 12)
a("v_add_f32 v12, v12, v16")
a("v_cvt_pk_bf16_f32 v12, v12, v12")
a("s_cmp_eq_u32 s31, 0")
a("s_cbranch_scc0 LFINAL")
a("v_and_b32 v12, 0xffff0000, v12")
a("s_add_u32 s45, s45, s39")
a(f"s_add_u32 s45, s45, {X4}")
a("buffer_store_dword v12, v8, s[12:15], s45 offen sc1")
a("s_mov_b64 exec, -1")
a("s_branch LSTQ")
a.label("LFINAL")
a("s_lshl_b32 s45, s50, 6")
a("v_lshlrev_b32 v8, 1, v1")
a("buffer_store_short v12, v8, s[16:19], s45 offen")
a("s_mov_b64 exec, 1")
a("s_cmp_eq_u32 s50, 0")
a("s_cbranch_scc0 LNOEP")
a("v_mov_b32 v9, s29")
a("buffer_store_dword v9, v8, s[12:15], 0 offen sc1")
a.label("LNOEP")
a("s_mov_b64 exec, -1")
a.label("LSTQ")
stamp(8)
a("s_cmp_eq_u32 s31, 0")
a("s_cbranch_scc0 LDONE")
if OPT["npf"]:
    a("s_cmp_lt_u32 s27, 18")
    a("s_cbranch_scc1 LQ5")
    a("v_lshlrev_b32 v34, 7, v1")
    a("s_lshl_b32 s44, s26, 2")
    a("s_add_u32 s44, s44, s24")
    a("s_lshl_b32 s44, s44, 13")
    for n in range(OPT["npf"]):
        a(f"s_add_u32 s45, s44, {(4+n)*UNIT_STEP}")
        a(f"buffer_load_dword v35, v34, s[4:7], s45 offen{PFK}")
        a(f"buffer_load_dword v36, v34, s[8:11], s45 offen{PFV}")
a("s_cmp_ge_u32 s27, 24")
a("s_cbranch_scc0 LQ5")
a(f"s_add_u32 s44, s39, {X4}")
a("v_lshlrev_b32 v8, 2, v1")
a.label("LE4")
for i in range(9):
    a(f"buffer_load_dword v{XR+i}, v8, s[12:15], s44 offen offset:{i*256} sc1")
a("s_waitcnt vmcnt(0)")
a(f"v_add_f32 v9, v{XR}, v{XR+1}")
for i in range(2, 9):
    a(f"v_add_f32 v9, v9, v{XR+i}")
a("v_cmp_u_f32 vcc, v9, v9")
a("s_cbranch_vccz LE4OK")
retry("LE4", "LE4OK")
a.label("LE4OK")
stamp(9)
a(f"s_mov_b32 s54, {X5}")
a("s_call_b64 s[36:37], LQSTAGE")
a.label("LQ5")
if STAMPS:
    a("s_memrealtime s[58:59]")
    a("s_waitcnt lgkmcnt(0)")
    a("s_mov_b32 s74, s58")
a("s_mov_b32 s31, 1")
a(f"s_add_u32 s39, s39, {LSTRIDE}")
a("s_add_u32 s88, s88, 4096")
a("s_addc_u32 s89, s89, 0")
a(f"s_mov_b32 s96, {TF}")
a("s_mov_b32 s91, 0")
a("s_mov_b32 s95, s97")
a("v_lshlrev_b32 v40, 2, v0")
a(f"v_add_u32 v40, {LSV}, v40")
a(f"ds_read_b32 v{VL}, v40")
qpoll_addr(X5)
a("s_waitcnt lgkmcnt(0)")
a("s_branch LQPOLL")

a.label("LQSTAGE")
a(f"s_mul_i32 s45, s24, {TS}")
tile_addr(58, 59, base_sgpr=45, base=WQ)
layernorm()
gemv(18, 57, 58, 8, 60)
a("s_lshl_b32 s44, s28, 3")
a("s_add_u32 s44, s44, s27")
a("s_sub_u32 s44, s44, 24")
a("s_lshl_b32 s44, s44, 2")
a("s_add_u32 s44, s44, s24")
a("s_lshl_b32 s44, s44, 7")
a("s_add_u32 s44, s44, s54")
a("v_lshlrev_b32 v8, 2, v1")
a("v_mov_b32 v11, s29")
a(f"v_mov_b32_dpp v9, v60 quad_perm:[1,1,3,3]{DPPM}")
a("v_cvt_pk_bf16_f32 v10, v60, v9")
a("s_mov_b64 exec, 0x5555")
a("buffer_store_dwordx2 v[10:11], v8, s[12:15], s44 offen sc1")
a("s_mov_b64 exec, -1")
a("s_setpc_b64 s[36:37]")

a.vq = qtags("R0") + qtags("R1") + qtags("R2")
for s in range(3):
    lp, lg, ln, lb, lx = (a.newlabel(x) for x in ("pool", "go", "noapp", "bonly", "next"))
    a.label(f"LRING{s}")
    a("s_cmp_lt_u32 s91, s92")
    a(f"s_cbranch_scc0 {lp}")
    a(f"v_readlane_b32 s32, v{VL}, s91")
    a("s_add_u32 s91, s91, 1")
    a(f"s_branch {lg}")
    a.label(lp)
    if STAMPS == 2:
        a("s_memrealtime s[58:59]")
    a("s_waitcnt lgkmcnt(0)")
    if STAMPS == 3:
        a("s_lshl_b32 s44, s26, 2")
        a("s_add_u32 s44, s44, s24")
        a("s_lshl_b32 s44, s44, 1")
        a("s_and_b32 s45, s3, 1")
        a("s_add_u32 s44, s44, s45")
        a("s_add_u32 s44, s44, 1920")
        a("s_lshl_b32 s44, s44, 13")
        a("s_lshr_b32 s45, s3, 1")
        a("s_lshl_b32 s45, s45, 8")
        a("s_add_u32 s44, s44, s45")
        a("s_memtime s[46:47]")
        a("s_waitcnt lgkmcnt(0)")
        a("s_buffer_load_dword s48, s[8:11], s44")
        a("s_waitcnt lgkmcnt(0)")
        a("s_memtime s[58:59]")
        a("s_waitcnt lgkmcnt(0)")
        a("s_sub_u32 s58, s58, s46")
    if STAMPS >= 2:
        a("s_mov_b32 m0, s3")
        a("s_add_u32 s3, s3, 1")
        a("s_min_u32 s3, s3, 63")
        a("v_writelane_b32 v51, s58, m0")
    a("s_cmp_lt_u32 s90, s96")
    a(f"s_cbranch_scc0 LDRAINE{s}")
    a("s_add_u32 s32, s90, 640")
    a("s_lshl_b32 s32, s32, 13")
    a(f"s_cmp_ge_u32 s90, {TF}")
    a("s_mov_b32 s90, 1")
    a(f"s_cbranch_scc0 {ln}")
    a("s_mov_b32 m0, s94")
    a("s_nop 0")
    a(f"v_writelane_b32 v{VL}, s32, m0")
    a("s_add_u32 s94, s94, 1")
    a("s_cmp_lt_u32 s94, 62")
    a(f"s_cbranch_scc1 {ln}")
    a("s_mov_b32 s90, -1")
    a(f"s_branch {lg}")
    a.label(ln)
    a("s_atomic_add s90, s[88:89], 0 glc")
    a.label(lg)
    a("s_add_u32 s33, s32, 4096")
    a(f"s_bitcmp1_b32 s95, {s}")
    a(f"s_cbranch_scc0 {lb}")
    q0 = list(a.vq)
    unit("v", RING[s], f"R{s}", f"R{s}n", noadv=True)
    q1 = [(t[0].rstrip("n"), t[1], t[2]) for t in a.vq]
    a.label(lx)
    a("s_sub_u32 s35, s35, 1")
    a("s_cmp_eq_u32 s35, 0")
    a("s_cbranch_scc1 LRINGX")
    a(f"s_branch LRING{(s+1)%3}")
    a.label(lb)
    a(f"s_bitset1_b32 s95, {s}")
    for t in range(8):
        ldK("v", RING[s], t, "x")
    for t in range(8):
        ldV("v", RING[s], t, "x")
    a(f"s_branch {lx}")
    a.vq = q1
a.label("LRINGX")
a("s_setpc_b64 s[36:37]")

for s in range(3):
    a.label(f"LDRAINE{s}")
    a("v_mov_b32 v48, 0")
    a("buffer_load_dword v49, v48, s[20:23], 0 offen sc1")
    a("s_mov_b32 s93, 0")
    a("s_sub_u32 s44, s94, 6")
    a("s_min_u32 s44, s44, 3")
    a("s_sub_u32 s92, s94, s44")
    a("s_cmp_ge_u32 s44, 1")
    a(f"s_cselect_b32 s97, {1 << ((s+2) % 3)}, 0")
    a("s_cmp_ge_u32 s44, 2")
    a(f"s_cselect_b32 s45, {1 << ((s+1) % 3)}, 0")
    a("s_or_b32 s97, s97, s45")
    a("s_cmp_ge_u32 s44, 3")
    a(f"s_cselect_b32 s45, {1 << s}, 0")
    a("s_or_b32 s97, s97, s45")
    a(f"s_branch LDRAIN{s}")
for s in range(3):
    a.label(f"LDRAIN{s}")
    unit_drain(RING[s])
    a("s_add_u32 s93, s93, 1")
    a("s_cmp_eq_u32 s93, 3")
    a("s_cbranch_scc1 LPASSEND")
a("s_branch LDRAIN0")

a.label("LDONE")
if STAMPS:
    a("s_memrealtime s[58:59]")
    a("s_waitcnt lgkmcnt(0)")
    a("s_mov_b32 s87, s58")
    a("s_lshl_b32 s44, s2, 2")
    a("s_add_u32 s44, s44, s24")
    a("s_lshl_b32 s44, s44, 7")
    a(f"s_add_u32 s44, s44, {STAMP_OFF}")
    a("v_mov_b32 v8, 0")
    a("s_mov_b64 exec, 1")
    for i in range(24):
        a(f"v_mov_b32 v9, s{64+i}")
        a(f"buffer_store_dword v9, v8, s[12:15], s44 offen offset:{4*i}")
    a("v_mov_b32 v9, s100")
    a("buffer_store_dword v9, v8, s[12:15], s44 offen offset:96")
    for i, r in enumerate((3, 55, 56, 57, 101, 94)):
        a(f"v_mov_b32 v9, s{r}")
        a(f"buffer_store_dword v9, v8, s[12:15], s44 offen offset:{100+4*i}")
    a("s_waitcnt vmcnt(0)")
a.label("LEND")
a("s_endpgm")

hdr = open("cdna_kernels/" + NAME + ".s.ref").read().split("\n")
top = [l for l in hdr if l.startswith(";") and "@launch" not in l]
out = "\n".join(top) + "\n"
out += f"; @launch grid=(256,1,1) block=(256,1,1) lds={LDS_SIZE}\n"
out += f""".amdgcn_target "amdgcn-amd-amdhsa--gfx950"
.text
.globl {NAME}_kernel
.p2align 8
.type {NAME}_kernel,@function
"""
out += a.text()
out += f""".section .rodata,"a"
.p2align 6
.amdhsa_kernel {NAME}_kernel
  .amdhsa_next_free_vgpr 512
  .amdhsa_next_free_sgpr 102
  .amdhsa_accum_offset 256
  .amdhsa_group_segment_fixed_size 0
  .amdhsa_kernarg_size 96
  .amdhsa_user_sgpr_count 2
  .amdhsa_user_sgpr_kernarg_segment_ptr 1
  .amdhsa_system_sgpr_workgroup_id_x 1
.end_amdhsa_kernel
"""
open(sys.argv[1], "w").write(out)
```

```python
import sys, struct, math
from asmlib import Asm

NAME = "interleave_layers__gqa_block_cached__glu_gated_reglu__decode"
OPT = dict(stamps=0, p2rev=0, kvpol="nt", wpol="nt", wskip=0, vring="def", kring="nt", tfw=7, psleep=1, npf=0, dbgout=0, pfk="nt", pfv="def")
for arg in sys.argv[2:]:
    k, v = arg.split("=")
    OPT[k] = int(v) if v.lstrip("-").isdigit() else v
STAMPS = OPT["stamps"]
KVPOL = "" if OPT["kvpol"] == "def" else " " + OPT["kvpol"]
WPOL = "" if OPT["wpol"] == "def" else " " + OPT["wpol"]
PFK = "" if OPT["pfk"] == "def" else " " + OPT["pfk"]
PFV = "" if OPT["pfv"] == "def" else " " + OPT["pfv"]


def f32(x):
    return "0x%08x" % struct.unpack("<I", struct.pack("<f", x))[0]


X0 = 0x1000
X5 = 0x9000
CTR = 0x11000
LB0 = 0x20000
LSTRIDE = 0xC0000
X1 = 0x0
X1S = 1280
X2 = 0x50000
X3 = 0x59000
X4 = 0xAA000
STAMP_OFF = 0x200000
WS_SIZE = 0x400000
NP1 = 22 * 64
TF = NP1 - OPT["tfw"] * 64
WGU = 0
TS = 18432
WD = 73728
WO = 0
WOS = 8448
WQ = 50688
XBUF = 124416
XN = 126720
CB1 = 131328
CS1 = 135424
CB2 = 135488
CS2 = 139584
OB = 139648
FB = 140160
HB = 140672
LSV = 140736
LDS_SIZE = 141760

UNIT_STEP = 524288
DPPM = " row_mask:0xf bank_mask:0xf"
a = Asm()
stamp_n = [0]


def stamp(i):
    if not STAMPS:
        return
    a("s_memrealtime s[58:59]")
    a("s_waitcnt lgkmcnt(0)")
    lab = a.newlabel("st")
    a(f"s_mov_b32 s{64+12+i}, s58")
    a("s_cmp_eq_u32 s31, 0")
    a(f"s_cbranch_scc0 {lab}")
    a(f"s_mov_b32 s{64+i}, s58")
    a.label(lab)


def sstamp(reg):
    if not STAMPS:
        return
    a("s_memrealtime s[58:59]")
    a("s_waitcnt lgkmcnt(0)")
    a(f"s_mov_b32 s{reg}, s58")


def R(kind, base, n=4):
    return f"{kind}[{base}:{base+n-1}]"


def srd(d, lo, hi, size):
    a(f"s_mov_b32 s{d}, s{lo}")
    a(f"s_and_b32 s{d+1}, s{hi}, 0xffff")
    a(f"s_mov_b32 s{d+2}, {size}")
    a(f"s_mov_b32 s{d+3}, 0x20000")


def srd_role(d, lo, hi, size):
    a(f"s_cselect_b32 s{d+2}, {size}, 0")
    a(f"s_mov_b32 s{d}, s{lo}")
    a(f"s_and_b32 s{d+1}, s{hi}, 0xffff")
    a(f"s_mov_b32 s{d+3}, 0x20000")


def ldK(kind, base, t, tag):
    pol = KVPOL if kind == "a" else ("" if OPT["kring"] == "def" else " nt")
    a(f"buffer_load_dwordx4 {R(kind, base+4*t)}, v2, s[4:7], s{32+(t>>2)} offen offset:{(t&3)*1024}{pol}", tag=(tag, "K", t))


def ldV(kind, base, t, tag):
    pol = KVPOL if kind == "a" else ("" if OPT["vring"] == "def" else " nt")
    a(f"buffer_load_dwordx4 {R(kind, base+32+4*t)}, v3, s[8:11], s{32+(t>>2)} offen offset:{(t&3)*1024}{pol}", tag=(tag, "V", t))


def adv():
    a("s_add_u32 s32, s32, s34")
    a("s_add_u32 s33, s33, s34")


def burst(kind, base, tag):
    for t in range(8):
        ldK(kind, base, t, tag)
    for t in range(8):
        ldV(kind, base, t, tag)
    adv()


def waitq(tag, floor=0):
    if tag in a.vq:
        a.wait_vm(tag, floor)


def allreduce(op, v, t, first=0):
    steps = ["quad_perm:[1,0,3,2]", "quad_perm:[2,3,0,1]", "row_half_mirror", "row_mirror"]
    for s in steps[first:]:
        a(f"{op}_dpp v{v}, v{v}, v{v} {s}{DPPM}")
    rows(op, v, t)


def rows(op, v, t):
    a(f"v_mov_b32 v{t}, v{v}")
    a(f"v_permlane16_swap_b32 v{v}, v{t}")
    a(f"{op} v{v}, v{v}, v{t}")
    a(f"v_mov_b32 v{t}, v{v}")
    a(f"v_permlane32_swap_b32 v{v}, v{t}")
    a(f"{op} v{v}, v{v}, v{t}")


QE, QO, OA, MS, LS, NMC = 8, 12, 16, 20, 21, 22
DS_ = [24, 28, 32, 36]
TT = 40
TMP = 44


def unit(kind, base, tag, reload_tag=None, floor=0, hooks=None, noadv=False):
    if hooks:
        hooks[0]()
    for u in range(4):
        waitq((tag, "K", 2 * u + 1), floor)
        d = R("v", DS_[u])
        a(f"v_mfma_f32_16x16x32_bf16 {d}, {R(kind, base+8*u)}, {R('v', QE)}, 0")
        a(f"v_mfma_f32_16x16x32_bf16 {d}, {R(kind, base+8*u+4)}, {R('v', QO)}, {d}")
        if reload_tag is not None:
            ldK(kind, base, 2 * u, reload_tag)
            ldK(kind, base, 2 * u + 1, reload_tag)
    order = [(0, 0), (1, 0), (2, 0), (0, 1), (1, 1), (2, 1), (0, 2), (1, 2), (3, 0), (2, 2), (0, 3), (3, 1),
             (1, 3), (2, 3), (3, 2), None, (3, 3)]
    for o in order:
        if o is None:
            a(f"v_max3_f32 v{TMP}, v{TT}, v{TT+1}, v{MS}")
            continue
        u, c = o
        qp = f"quad_perm:[{c},{c},{c},{c}]"
        if c == 0:
            a(f"v_mov_b32_dpp v{TT+u}, v{DS_[u]} {qp}{DPPM}")
        else:
            a(f"v_add_f32_dpp v{TT+u}, v{DS_[u]+c}, v{TT+u} {qp}{DPPM}")
    a(f"v_max3_f32 v{TMP}, v{TMP}, v{TT+2}, v{TT+3}")
    a(f"v_max_f32_dpp v{TMP}, v{TMP}, v{TMP} row_half_mirror{DPPM}")
    rows("v_max_f32", TMP, TMP + 1)
    a(f"v_sub_f32 v{TMP+1}, v{MS}, v{TMP}")
    a(f"v_mul_f32 v{TMP+1}, s30, v{TMP+1}")
    a(f"v_exp_f32 v{TMP+1}, v{TMP+1}")
    a(f"v_mov_b32 v{MS}, v{TMP}")
    a(f"v_mul_f32 v{NMC}, s30, v{TMP}")
    for u in range(4):
        a(f"v_fma_f32 v{TT+u}, v{TT+u}, s30, -v{NMC}")
    for u in range(4):
        a(f"v_exp_f32 v{TT+u}, v{TT+u}")
    a(f"v_mul_f32 v{LS}, v{LS}, v{TMP+1}")
    for r in range(4):
        a(f"v_mul_f32 v{OA+r}, v{OA+r}, v{TMP+1}")
    a(f"v_add_f32 v{TMP+2}, v{TT}, v{TT+1}")
    a(f"v_add_f32 v{TMP+3}, v{TT+2}, v{TT+3}")
    for u in range(4):
        a(f"v_cvt_pk_bf16_f32 v{TT+u}, v{TT+u}, v{TT+u}")
    a(f"v_add_f32 v{TMP+2}, v{TMP+2}, v{TMP+3}")
    a(f"v_add_f32 v{LS}, v{LS}, v{TMP+2}")

    def buildB(t):
        b = DS_[t & 3]
        p = TT + (t >> 1)
        for i in range(4):
            own = (i < 2) == ((t & 1) == 0)
            if own:
                a(f"v_and_b32 v{b+i}, v{p}, v{4+i}")
            else:
                sh = "row_shr:4" if (t & 1) == 0 else "row_shl:4"
                a(f"v_and_b32_dpp v{b+i}, v{p}, v{4+i} {sh}{DPPM} bound_ctrl:1")

    buildB(0)
    if hooks:
        hooks[1]()
    for t in range(8):
        if t + 1 < 8:
            buildB(t + 1)
        waitq((tag, "V", t), floor)
        a(f"v_mfma_f32_16x16x32_bf16 {R('v', OA)}, {R(kind, base+32+4*t)}, {R('v', DS_[t&3])}, {R('v', OA)}")
        if reload_tag is not None:
            ldV(kind, base, t, reload_tag)
    if reload_tag is not None and not noadv:
        adv()


def qtags(tag):
    return [(tag, "K", t) for t in range(8)] + [(tag, "V", t) for t in range(8)]


RING = [64, 128, 192]


def bf16r(d, s):
    a(f"v_cvt_pk_bf16_f32 v{d}, v{s}, v{s}")
    a(f"v_and_b32 v{d}, 0xffff0000, v{d}")


def gemv(nk, vA, vB, T, acc, bstep=1024, bhalf=128):
    S = 4

    def issue(kk):
        s = T + 8 * (kk % S)
        a(f"ds_read_b128 {R('v', s)}, v{vA} offset:{kk*64}")
        a(f"ds_read_b64_tr_b16 {R('v', s+4, 2)}, v{vB} offset:{kk*bstep}")
        a(f"ds_read_b64_tr_b16 {R('v', s+6, 2)}, v{vB} offset:{kk*bstep+bhalf}")

    for kk in range(min(S, nk)):
        issue(kk)
    for kk in range(nk):
        a(f"s_waitcnt lgkmcnt({3*(min(nk, kk+S)-kk-1)})")
        s = T + 8 * (kk % S)
        c = "0" if kk == 0 else R("v", acc)
        a(f"v_mfma_f32_16x16x32_bf16 {R('v', acc)}, {R('v', s)}, {R('v', s+4)}, {c}")
        if kk + S < nk:
            issue(kk + S)


def tile_addr(v, t, base_sgpr=None, base=0):
    a(f"v_lshrrev_b32 v{v}, 4, v1")
    a(f"v_lshlrev_b32 v{v}, 8, v{v}")
    a(f"v_and_b32 v{t}, 15, v1")
    a(f"v_lshl_add_u32 v{v}, v{t}, 3, v{v}")
    if base:
        a(f"v_add_u32 v{v}, {base}, v{v}")
    if base_sgpr is not None:
        a(f"v_add_u32 v{v}, s{base_sgpr}, v{v}")


def afrag_addr(v, base_sgpr=None, base=0):
    a(f"v_lshrrev_b32 v{v}, 4, v1")
    a(f"v_lshlrev_b32 v{v}, 4, v{v}")
    if base:
        a(f"v_add_u32 v{v}, {base}, v{v}")
    if base_sgpr is not None:
        a(f"v_add_u32 v{v}, s{base_sgpr}, v{v}")


XR = 44


def layernorm():
    s, t, mb, rs = 53, 54, 55, 56
    a(f"v_add_f32 v{s}, v{XR}, v{XR+1}")
    for i in range(2, 9):
        a(f"v_add_f32 v{s}, v{s}, v{XR+i}")
    allreduce("v_add_f32", s, t)
    a(f"v_mul_f32 v{s}, {f32(1.0/576)}, v{s}")
    bf16r(mb, s)
    a(f"v_sub_f32 v{t}, v{XR}, v{s}")
    a(f"v_mul_f32 v{rs}, v{t}, v{t}")
    for i in range(1, 9):
        a(f"v_sub_f32 v{t}, v{XR+i}, v{s}")
        a(f"v_fmac_f32 v{rs}, v{t}, v{t}")
    allreduce("v_add_f32", rs, t)
    a(f"v_mul_f32 v{rs}, {f32(1.0/576)}, v{rs}")
    bf16r(rs, rs)
    a(f"v_add_f32 v{rs}, {f32(1e-5)}, v{rs}")
    bf16r(rs, rs)
    a(f"v_sqrt_f32 v{rs}, v{rs}")
    bf16r(rs, rs)
    a(f"v_rcp_f32 v{rs}, v{rs}")
    a("s_mul_i32 s44, s24, 1152")
    a(f"s_add_u32 s44, s44, {XN}")
    a(f"v_lshlrev_b32 v{s}, 1, v1")
    a(f"v_add_u32 v{s}, s44, v{s}")
    for i in range(9):
        a(f"v_sub_f32 v{XR+i}, v{XR+i}, v{mb}")
    for i in range(9):
        bf16r(XR + i, XR + i)
    for i in range(9):
        a(f"v_mul_f32 v{XR+i}, v{XR+i}, v{rs}")
    for i in range(9):
        a(f"v_cvt_pk_bf16_f32 v{XR+i}, v{XR+i}, v{XR+i}")
    for i in range(9):
        a(f"ds_write_b16 v{s}, v{XR+i} offset:{i*128}")
    afrag_addr(57, base_sgpr=44)
    a("s_waitcnt lgkmcnt(0)")


def retry(lab_again, lab_done):
    a("s_cmp_eq_u32 s38, 0")
    a(f"s_cbranch_scc1 {lab_done}")
    a("s_sub_u32 s38, s38, 1")
    a(f"s_sleep {OPT['psleep']}")
    a(f"s_branch {lab_again}")


def combine(CB, CS):
    a("v_lshlrev_b32 v8, 2, v0")
    a(f"v_add_u32 v8, {CB}, v8")
    a("s_lshr_b32 s44, s24, 1")
    a("s_lshl_b32 s44, s44, 5")
    a(f"s_add_u32 s44, s44, {CS}")
    a("v_mov_b32 v9, s44")
    a("ds_read_b128 v[12:15], v9")
    a("ds_read_b128 v[16:19], v9 offset:16")
    for w in range(4):
        a(f"ds_read_b32 v{20+w}, v8 offset:{w*1024}")
    a("s_waitcnt lgkmcnt(4)")
    a("v_max3_f32 v26, v12, v14, v16")
    a("v_max_f32 v26, v26, v18")
    for w in range(4):
        a(f"v_sub_f32 v{12+2*w}, v{12+2*w}, v26")
    for w in range(4):
        a(f"v_exp_f32 v{12+2*w}, v{12+2*w}")
    a("v_mul_f32 v27, v13, v12")
    for w in range(1, 4):
        a(f"v_fmac_f32 v27, v{13+2*w}, v{12+2*w}")
    a("s_waitcnt lgkmcnt(0)")
    a("v_mul_f32 v24, v20, v12")
    for w in range(1, 4):
        a(f"v_fmac_f32 v24, v{20+w}, v{12+2*w}")


def qpoll_issue():
    a("buffer_load_dwordx4 v[24:27], v32, s[12:15], s45 offen sc1", tag="qp")
    a("buffer_load_dwordx4 v[28:31], v32, s[12:15], s45 offen offset:16 sc1", tag="qp")


def qpoll_addr(xoff):
    a("s_lshl_b32 s45, s25, 11")
    a(f"s_add_u32 s45, s45, {xoff}")
    a("v_bfe_u32 v32, v1, 3, 1")
    a("v_lshlrev_b32 v32, 10, v32")
    a("v_lshrrev_b32 v33, 4, v1")
    a("v_lshl_add_u32 v32, v33, 8, v32")
    a("v_bfe_u32 v33, v1, 1, 1")
    a("v_lshl_add_u32 v32, v33, 7, v32")
    a("v_and_b32 v33, 1, v1")
    a("v_lshl_add_u32 v32, v33, 5, v32")


def qpoll_check():
    a("v_cmp_ne_u32 s[46:47], s29, v25")
    a("v_cmp_ne_u32 s[48:49], s29, v27")
    a("v_cmp_ne_u32 s[50:51], s29, v29")
    a("v_cmp_ne_u32 s[52:53], s29, v31")
    a("s_or_b64 s[46:47], s[46:47], s[48:49]")
    a("s_or_b64 s[50:51], s[50:51], s[52:53]")
    a("s_or_b64 s[46:47], s[46:47], s[50:51]")


VL = 50


def unit_drain(base):
    def pwait(n0, n1, n2):
        l0, l1 = a.newlabel("dw"), a.newlabel("dw")
        a("s_cmp_eq_u32 s93, 0")
        a(f"s_cbranch_scc1 {l0}")
        a("s_cmp_eq_u32 s93, 1")
        a(f"s_cbranch_scc1 {l1}")
        a(f"s_waitcnt vmcnt({n2})")
        a.label(l1)
        a(f"s_waitcnt vmcnt({n1})")
        a.label(l0)
        a(f"s_waitcnt vmcnt({n0})")
    a.vq = []
    unit("v", base, "none", None, hooks=(lambda: pwait(41, 25, 9), lambda: pwait(33, 17, 1)))


def swapreduce(b):
    a(f"v_permlane32_swap_b32 v{b}, v{b+1}")
    a(f"v_permlane32_swap_b32 v{b+2}, v{b+3}")
    a(f"v_add_f32 v{b}, v{b}, v{b+1}")
    a(f"v_add_f32 v{b+2}, v{b+2}, v{b+3}")
    a(f"v_permlane16_swap_b32 v{b}, v{b+2}")
    a(f"v_add_f32 v{b}, v{b}, v{b+2}")


a.raw(f"{NAME}_kernel:")
a("s_cmp_ge_u32 s2, 256")
a("s_cbranch_scc1 LEND")
if STAMPS:
    a("s_memrealtime s[100:101]")
a("s_load_dwordx16 s[64:79], s[0:1], 0")
a("s_load_dwordx8 s[80:87], s[0:1], 64")
a("v_and_b32 v1, 63, v0")
a("v_lshrrev_b32 v40, 6, v0")
a("v_readfirstlane_b32 s24, v40")
a("s_and_b32 s28, s2, 7")
a("s_lshr_b32 s27, s2, 3")
a("s_lshl_b32 s44, s28, 2")
a("s_add_u32 s27, s27, s44")
a("s_and_b32 s27, s27, 31")
a("s_lshr_b32 s25, s2, 4")
a("s_and_b32 s26, s2, 15")
a(f"s_mov_b32 s30, {f32(math.log2(math.e)/math.sqrt(128.0))}")
a("s_mov_b32 s31, 0")
a(f"s_mov_b32 s34, {UNIT_STEP}")
a("s_mov_b32 s38, 400000")
a(f"s_mov_b32 s39, {LB0}")
a("s_mov_b32 s42, 0xf0f0f0f0")
a("s_mov_b32 s43, 0xf0f0f0f0")
a("s_lshl_b32 s44, s26, 2")
a("s_add_u32 s44, s44, s24")
a("s_lshl_b32 s32, s44, 13")
a("s_add_u32 s33, s32, 4096")
a("v_lshlrev_b32 v3, 4, v1")
a("v_bfe_u32 v40, v1, 2, 2")
a("v_lshlrev_b32 v2, 8, v40")
a("v_lshrrev_b32 v40, 4, v1")
a("v_lshl_add_u32 v2, v40, 6, v2")
a("v_and_b32 v40, 3, v1")
a("v_lshl_add_u32 v2, v40, 4, v2")
a("s_waitcnt lgkmcnt(0)")
a("s_load_dword s29, s[86:87], 0")
a("s_lshl_b32 s44, s25, 24")
a("s_add_u32 s4, s66, s44")
a("s_addc_u32 s5, s67, 0")
a("s_and_b32 s5, s5, 0xffff")
a("s_mov_b32 s6, 0x1000000")
a("s_mov_b32 s7, 0x20000")
a("s_add_u32 s8, s68, s44")
a("s_addc_u32 s9, s69, 0")
a("s_and_b32 s9, s9, 0xffff")
a("s_mov_b32 s10, 0x1000000")
a("s_mov_b32 s11, 0x20000")
srd(12, 86, 87, WS_SIZE)
a("s_cmp_ge_u32 s27, 24")
a("s_cbranch_scc0 LPRO1")
srd(60, 64, 65, 1152)
srd(92, 70, 71, 0 if OPT["wskip"] & 8 else 576 * 8192)
a("v_lshrrev_b32 v41, 3, v1")
a("v_lshlrev_b32 v40, 13, v41")
a("v_and_b32 v42, 7, v1")
a("v_lshl_add_u32 v40, v42, 4, v40")
a("s_lshl_b32 s46, s28, 3")
a("s_add_u32 s46, s46, s27")
a("s_sub_u32 s46, s46, 24")
a("s_lshl_b32 s44, s46, 7")
a(f"s_mul_i32 s45, s24, {144*8192}")
a("s_add_u32 s44, s44, s45")
for i in range(18):
    a(f"buffer_load_dwordx4 {R('v', 64+4*i)}, v40, s[92:95], s44 offen{WPOL}")
    a("s_add_u32 s44, s44, 65536")
a("v_lshlrev_b32 v40, 1, v1")
for i in range(9):
    a(f"buffer_load_ushort v{XR+i}, v40, s[60:63], 0 offen offset:{i*128}")
a("s_and_b32 s44, s46, 3")
a("s_or_b32 s44, s44, s24")
a("s_cmp_eq_u32 s44, 0")
a("s_cbranch_scc0 LPRO0")
a("v_lshlrev_b32 v40, 12, v1")
a("v_mov_b32 v43, 0")
a("s_lshl_b32 s44, s46, 6")
a(f"s_add_u32 s44, s44, {CTR}")
a("s_mov_b64 exec, 3")
a("buffer_store_dword v43, v40, s[12:15], s44 offen sc1")
a("s_mov_b64 exec, -1")
a.label("LPRO0")
a("v_lshrrev_b32 v40, 1, v42")
a(f"v_mul_u32_u24 v40, {TS}, v40")
a("v_lshl_add_u32 v40, v41, 5, v40")
a("v_and_b32 v42, 1, v42")
a("v_lshl_add_u32 v40, v42, 4, v40")
a(f"s_mul_i32 s44, s24, {144*32}")
a(f"s_add_u32 s44, s44, {WQ}")
a("v_add_u32 v40, s44, v40")
a("s_waitcnt vmcnt(0) lgkmcnt(0)")
sstamp(3)
a("s_mul_i32 s29, s29, 0x9e3779b1")
a("s_add_u32 s29, s29, 0x7f4a7c15")
for i in range(18):
    a(f"ds_write_b128 v40, {R('v', 64+4*i)} offset:{i*256}")
for i in range(9):
    a(f"v_lshlrev_b32 v{XR+i}, 16, v{XR+i}")
a("s_waitcnt lgkmcnt(0)")
a("s_barrier")
a(f"s_mov_b32 s54, {X0}")
a("s_call_b64 s[36:37], LQSTAGE")
a("s_branch LPRO2")
a.label("LPRO1")
a("s_waitcnt lgkmcnt(0)")
a("s_mul_i32 s29, s29, 0x9e3779b1")
a("s_add_u32 s29, s29, 0x7f4a7c15")
a.label("LPRO2")
sstamp(55)
a.vq = []
burst("a", 0, "A0")
a("s_cmp_eq_u32 s24, 0")
a("s_cbranch_scc0 LPRO3")
a("v_mov_b32 v24, -1\nv_mov_b32 v25, -1\nv_mov_b32 v26, -1\nv_mov_b32 v27, -1")
a("s_mul_i32 s44, s2, 6144")
a(f"s_add_u32 s44, s44, {LB0}")
a("s_add_u32 s45, s44, 4096")
keep = list(a.vq)
for i in range(6):
    a(f"buffer_store_dwordx4 v[24:27], v3, s[12:15], s{44+(i>>2)} offen offset:{1024*(i&3)} sc1")
a.vq = keep
a.label("LPRO3")
srd(16, 82, 83, 1152)
srd(20, 84, 85, 256)
a("s_mov_b32 s98, s64")
a("s_mov_b32 s99, s65")
a("v_and_b32 v40, 1, v1")
a("v_lshlrev_b32 v40, 4, v40")
a("v_mov_b32 v41, 0xffff")
a("v_lshlrev_b32 v40, v40, v41")
for i in range(4):
    m = 0x03030303 << (2 * i)
    a(f"s_mov_b32 s40, 0x{m:08x}")
    a(f"s_mov_b32 s41, 0x{m:08x}")
    a(f"v_cndmask_b32 v{4+i}, 0, v40, s[40:41]")
a("s_lshl_b32 s44, s25, 8")
a(f"s_add_u32 s44, s44, {CTR}")
a("s_add_u32 s88, s86, s44")
a("s_addc_u32 s89, s87, 0")
sstamp(56)
keep = list(a.vq)
a("s_cmp_lt_u32 s27, 18")
a("s_cbranch_scc0 LWB")
srd(60, 76, 77, 0 if OPT["wskip"] & 2 else 576 * 9216)
srd(92, 78, 79, 0 if OPT["wskip"] & 2 else 576 * 9216)
a("v_lshrrev_b32 v41, 2, v1")
a("v_and_b32 v42, 3, v1")
a("v_mul_u32_u24 v40, 9216, v41")
a("v_lshl_add_u32 v40, v42, 4, v40")
a("s_mul_i32 s46, s28, 18")
a("s_add_u32 s46, s46, s27")
a("s_lshl_b32 s44, s46, 6")
a(f"s_mul_i32 s45, s24, {144*9216}")
a("s_add_u32 s44, s44, s45")
for i in range(9):
    a(f"buffer_load_dwordx4 {R('v', 64+8*i)}, v40, s[60:63], s44 offen{WPOL}")
    a(f"buffer_load_dwordx4 {R('v', 68+8*i)}, v40, s[92:95], s44 offen{WPOL}")
    a(f"s_add_u32 s44, s44, {16*9216}")
a(f"v_mul_u32_u24 v43, {TS}, v42")
a("v_lshl_add_u32 v43, v41, 5, v43")
a(f"s_mul_i32 s45, s24, {144*32}")
a("v_add_u32 v43, s45, v43")
srd(60, 80, 81, 0 if OPT["wskip"] & 4 else 4608 * 1152)
a(f"s_mul_i32 s44, s46, {32*1152}")
a("s_mul_i32 s45, s24, 9216")
a("s_add_u32 s44, s44, s45")
a("s_add_u32 s45, s44, 4096")
a("s_add_u32 s46, s44, 8192")
for i in range(9):
    a(f"buffer_load_dwordx4 {R('v', 136+4*i)}, v3, s[60:63], s{44+(i>>2)} offen offset:{(i&3)*1024}{WPOL}")
a("s_branch LWDONE")
a.label("LWB")
a("s_cmp_lt_u32 s27, 30")
a("s_cbranch_scc0 LWDONE")
srd(60, 72, 73, 0 if OPT["wskip"] & 1 else 4096 * 1152)
a("v_mul_u32_u24 v41, 43, v1")
a("v_lshrrev_b32 v41, 9, v41")
a("v_mul_u32_u24 v42, 12, v41")
a("v_sub_u32 v42, v1, v42")
a("v_mul_u32_u24 v40, 1152, v41")
a("v_lshl_add_u32 v40, v42, 4, v40")


def brole():
    a("s_sub_u32 s47, s27, 18")
    a("s_lshl_b32 s46, s28, 1")
    a("s_cmp_ge_u32 s47, 6")
    a("s_addc_u32 s46, s46, 0")
    a("s_cmp_ge_u32 s47, 6")
    a("s_cselect_b32 s48, 6, 0")
    a("s_sub_u32 s47, s47, s48")


brole()
a("s_lshl_b32 s44, s46, 8")
a("s_lshl_b32 s45, s24, 6")
a("s_add_u32 s44, s44, s45")
a("s_mul_i32 s44, s44, 1152")
a("s_mul_i32 s45, s47, 192")
a("s_add_u32 s44, s44, s45")
for i in range(13):
    a(f"buffer_load_dwordx4 {R('v', 64+4*i)}, v40, s[60:63], s44 offen{WPOL}")
    a(f"s_add_u32 s44, s44, {5*1152}")
a("v_lshrrev_b32 v43, 1, v42")
a(f"v_mul_u32_u24 v43, {WOS}, v43")
a("v_lshl_add_u32 v43, v41, 5, v43")
a("v_and_b32 v42, 1, v42")
a("v_lshl_add_u32 v43, v42, 4, v43")
a("s_lshl_b32 s45, s24, 11")
a("v_add_u32 v43, s45, v43")
a.label("LWDONE")
a.vq = keep
sstamp(57)
a.wait_vm_n(30)
burst("a", 64, "A1")
a.wait_vm_n(30)
burst("a", 128, "A2")
a.wait_vm_n(40)
burst("a", 192, "A3")
a.wait_vm_n(48)
a("s_cmp_lt_u32 s27, 18")
a("s_cbranch_scc0 LWB2")
for i in range(9):
    a(f"ds_write_b128 v43, {R('v', 64+8*i)} offset:{i*512}")
    a(f"ds_write_b128 v43, {R('v', 68+8*i)} offset:{i*512+16}")
a("s_mul_i32 s44, s24, 9216")
a(f"s_add_u32 s44, s44, {WD}")
a("v_add_u32 v40, s44, v3")
for i in range(9):
    a(f"ds_write_b128 v40, {R('v', 136+4*i)} offset:{i*1024}")
a("s_branch LWDONE2")
a.label("LWB2")
a("s_cmp_lt_u32 s27, 30")
a("s_cbranch_scc0 LWDONE2")
for i in range(13):
    a(f"ds_write_b128 v43, {R('v', 64+4*i)} offset:{i*160}")
a.label("LWDONE2")
a(f"v_mov_b32 v{VL}, 0")
for i in range(6):
    a(f"s_add_u32 s44, s32, {i*UNIT_STEP}")
    a(f"v_writelane_b32 v{VL}, s44, {i}")
a("s_mov_b32 s91, 3")
a("s_mov_b32 s92, 6")
a("s_mov_b32 s94, 6")
a("s_mov_b32 s95, 7")
a(f"s_mov_b32 s96, {NP1}")
qpoll_addr(X0)
a("s_waitcnt lgkmcnt(0)")
a("s_cmp_eq_u32 s24, 0")
a("s_cbranch_scc0 LNOCNT")
a("s_mov_b32 s53, 1")
a("s_atomic_add s53, s[84:85], 0")
a.label("LNOCNT")
a.wait_vm_n(40)
burst("v", RING[0], "R0")
a.wait_vm_n(40)
burst("v", RING[1], "R1")
a.wait_vm_n(40)
sstamp(101)
qpoll_issue()
burst("v", RING[2], "R2")
a.wait_vm("qp")
if STAMPS:
    a("s_memrealtime s[58:59]")
    a("s_waitcnt lgkmcnt(0)")
    a("s_mov_b32 s75, s58")
qpoll_check()
a("s_cbranch_scc0 LQREADY")

a.label("LQPOLL")
qpoll_issue()
a("s_waitcnt vmcnt(0)")
qpoll_check()
a("s_cbranch_scc0 LQREADY")
retry("LQPOLL", "LQREADY")
a.label("LQREADY")
a("s_mov_b32 s90, 1")
a("s_atomic_add s90, s[88:89], 0 glc")
for i in range(4):
    a(f"v_cndmask_b32 v{QE+i}, v{24+2*i}, 0, s[42:43]")
    a(f"v_cndmask_b32 v{QO+i}, 0, v{24+2*i}, s[42:43]")
for r in range(4):
    a(f"v_mov_b32 v{OA+r}, 0")
a(f"v_mov_b32 v{MS}, {f32(-1e30)}")
a(f"v_mov_b32 v{LS}, 0")
stamp(0)
if STAMPS >= 2:
    a("s_mov_b32 s3, 0")
    a("v_mov_b32 v51, 0")
for i in range(4):
    if i < 3:
        a("s_mov_b32 s35, 1")
        a(f"s_call_b64 s[36:37], LRING{i}")
    a.vq = []
    unit("a", 64 * i, f"A{i}", None)
a("s_mov_b32 s35, 0x7fffffff")
a("s_call_b64 s[36:37], LRING0")
a.label("LPASSEND")
stamp(1)
if STAMPS >= 2:
    a("s_lshl_b32 s44, s31, 8")
    a("s_add_u32 s44, s44, s2")
    a("s_lshl_b32 s44, s44, 10")
    a(f"s_add_u32 s44, s44, {STAMP_OFF+0x40000}")
    a("v_lshlrev_b32 v40, 2, v0")
    a("buffer_store_dword v51, v40, s[12:15], s44 offen")
a(f"v_add_f32_dpp v{LS}, v{LS}, v{LS} row_half_mirror{DPPM}")
rows("v_add_f32", LS, TMP)
a(f"v_mul_f32 v22, s30, v{MS}")
a(f"v_mov_b32 v23, v{LS}")
a("v_bfe_u32 v40, v1, 3, 1")
a("v_lshlrev_b32 v41, 9, v40")
a("v_lshrrev_b32 v42, 4, v1")
a("v_lshl_add_u32 v41, v42, 7, v41")
a("v_and_b32 v42, 7, v1")
a("v_lshl_add_u32 v41, v42, 2, v41")
a("s_lshl_b32 s44, s24, 10")
a(f"s_add_u32 s44, s44, {CB1}")
a("v_add_u32 v41, s44, v41")
for r in range(4):
    a(f"ds_write_b32 v41, v{OA+r} offset:{32*r}")
a("s_lshl_b32 s44, s24, 3")
a(f"s_add_u32 s44, s44, {CS1}")
a("v_lshlrev_b32 v40, 5, v40")
a("v_add_u32 v40, s44, v40")
a("ds_write_b64 v40, v[22:23]")
a("v_lshlrev_b32 v40, 2, v0")
a(f"v_add_u32 v40, {LSV}, v40")
a(f"ds_write_b32 v40, v{VL}")
a.label("LCNT")
a("s_waitcnt vmcnt(0)")
a("v_readfirstlane_b32 s44, v49")
a("s_cmp_ge_u32 s44, 256")
a("s_cbranch_scc1 LCNTOK")
a("v_mov_b32 v48, 0")
a("buffer_load_dword v49, v48, s[20:23], 0 offen sc1")
retry("LCNT", "LCNTOK")
a.label("LCNTOK")
a("s_waitcnt lgkmcnt(0)")
a("s_barrier")
combine(CB1, CS1)
a(f"s_mul_i32 s44, s2, {X1S}")
a("s_add_u32 s44, s44, s39")
a("v_lshlrev_b32 v8, 2, v0")
a("buffer_store_dword v24, v8, s[12:15], s44 offen sc1")
a("s_lshl_b32 s45, s24, 6")
a("v_mov_b32 v9, s45")
a("s_bitcmp0_b32 s24, 0")
a("s_cbranch_scc0 LPUB1")
a("s_mov_b64 exec, 1")
a("buffer_store_dwordx2 v[26:27], v9, s[12:15], s44 offen offset:1024 sc1")
a("s_mov_b64 exec, -1")
a.label("LPUB1")
stamp(2)
a("s_cmp_lt_u32 s27, 18")
a("s_cbranch_scc1 LSTC")
a("s_cmp_lt_u32 s27, 30")
a("s_cbranch_scc0 LSTQ")
brole()
a("s_lshl_b32 s44, s46, 4")
a("s_lshl_b32 s45, s24, 2")
a("s_add_u32 s44, s44, s45")
a(f"s_mul_i32 s44, s44, {X1S}")
a("s_add_u32 s44, s44, s39")
a("v_lshrrev_b32 v8, 5, v1")
a("v_lshlrev_b32 v9, 7, v8")
a("v_add_u32 v9, 1024, v9")
a.label("LE1")
for p in range(4):
    a(f"buffer_load_dwordx2 {R('v', 28+2*p, 2)}, v9, s[12:15], s44 offen offset:{p*X1S} sc1")
for p in range(4):
    a(f"buffer_load_dwordx4 {R('v', 12+4*p)}, v3, s[12:15], s44 offen offset:{p*X1S} sc1")
a("s_waitcnt vmcnt(4)")
a("v_max3_f32 v40, v28, v30, v32")
a("v_max_f32 v40, v40, v34")
for p in range(4):
    a(f"v_sub_f32 v{28+2*p}, v{28+2*p}, v40")
for p in range(4):
    a(f"v_exp_f32 v{28+2*p}, v{28+2*p}")
a("v_mul_f32 v41, v29, v28")
for p in range(1, 4):
    a(f"v_fmac_f32 v41, v{29+2*p}, v{28+2*p}")
a("s_waitcnt vmcnt(0)")
for r in range(4):
    a(f"v_mul_f32 v{36+r}, v{12+r}, v28")
for p in range(1, 4):
    for r in range(4):
        a(f"v_fmac_f32 v{36+r}, v{12+4*p+r}, v{28+2*p}")
a("v_add_f32 v42, v36, v37")
a("v_add_f32 v43, v38, v39")
a("v_add_f32 v42, v42, v41")
a("v_cmp_u_f32 vcc, v42, v43")
a("s_cbranch_vccz LE1OK")
retry("LE1", "LE1OK")
a.label("LE1OK")
stamp(3)
a("s_lshl_b32 s44, s24, 10")
a(f"s_add_u32 s44, s44, {CB2}")
a("v_add_u32 v10, s44, v3")
a("ds_write_b128 v10, v[36:39]")
a("s_lshl_b32 s44, s24, 3")
a(f"s_add_u32 s44, s44, {CS2}")
a("v_lshlrev_b32 v8, 5, v8")
a("v_add_u32 v8, s44, v8")
a("ds_write_b64 v8, v[40:41]")
a("s_waitcnt lgkmcnt(0)")
a("s_barrier")
combine(CB2, CS2)
a("v_rcp_f32 v27, v27")
a("v_lshlrev_b32 v8, 1, v0")
a(f"v_add_u32 v8, {OB}, v8")
a("v_mul_f32 v24, v24, v27")
a("v_cvt_pk_bf16_f32 v24, v24, v24")
a("ds_write_b16 v8, v24")
a(f"s_mul_i32 s44, s24, {2*WOS}")
tile_addr(58, 59, base_sgpr=44, base=WO)
afrag_addr(57, base=OB)
a("s_waitcnt lgkmcnt(0)")
a("s_barrier")
a("s_cmp_eq_u32 s24, 3")
a("s_cbranch_scc1 LSTQ")


def b_issue(kk):
    s = 8 + 12 * (kk % 3)
    a(f"ds_read_b128 {R('v', s)}, v57 offset:{kk*64}")
    for t in range(2):
        a(f"ds_read_b64_tr_b16 {R('v', s+4+4*t, 2)}, v58 offset:{kk*1024+t*WOS}")
        a(f"ds_read_b64_tr_b16 {R('v', s+6+4*t, 2)}, v58 offset:{kk*1024+t*WOS+128}")


for kk in range(3):
    b_issue(kk)
for kk in range(8):
    a(f"s_waitcnt lgkmcnt({5*(min(8, kk+3)-kk-1)})")
    s = 8 + 12 * (kk % 3)
    for t in range(2):
        acc = R("v", 48 + 4 * t)
        a(f"v_mfma_f32_16x16x32_bf16 {acc}, {R('v', s)}, {R('v', s+4+4*t)}, {'0' if kk == 0 else acc}")
    if kk + 3 < 8:
        b_issue(kk + 3)
a("s_mul_i32 s44, s46, 2304")
a("s_mul_i32 s45, s47, 384")
a("s_add_u32 s44, s44, s45")
a("s_lshl_b32 s45, s24, 7")
a("s_add_u32 s44, s44, s45")
a("s_add_u32 s44, s44, s39")
a(f"s_add_u32 s44, s44, {X2}")
a("s_mov_b32 s48, 0xffff0000")
a("s_mov_b32 s49, 0xffff0000")
a("v_lshlrev_b32 v8, 2, v1")
a("v_cndmask_b32 v48, v48, v52, s[48:49]")
a("s_mov_b32 exec_hi, 0")
a("buffer_store_dword v48, v8, s[12:15], s44 offen sc1")
a("s_mov_b64 exec, -1")
stamp(4)
a("s_branch LSTQ")
a.label("LSTC")
a("s_cmp_eq_u32 s24, 3")
a("s_cbranch_scc0 LSTC1")
if OPT["npf"]:
    a("s_cmp_eq_u32 s31, 0")
    a("s_cbranch_scc0 LC_BAR")
    a("v_lshlrev_b32 v34, 7, v1")
    a("s_lshl_b32 s44, s26, 15")
    for n in range(OPT["npf"]):
        for i in range(4):
            a(f"s_add_u32 s45, s44, {(4+n)*UNIT_STEP+i*8192}")
            a(f"buffer_load_dword v35, v34, s[4:7], s45 offen{PFK}")
            a(f"buffer_load_dword v36, v34, s[8:11], s45 offen{PFV}")
    a("s_waitcnt vmcnt(0)")
a("s_branch LC_BAR")
a.label("LSTC1")
a("v_lshrrev_b32 v56, 4, v1")
a("v_mul_u32_u24 v56, 2304, v56")
a("v_and_b32 v57, 15, v1")
a("v_lshl_add_u32 v56, v57, 4, v56")
a("s_mul_i32 s48, s24, 768")
a("s_add_u32 s44, s48, s39")
a(f"s_add_u32 s44, s44, {X2}")
for g in range(1, 4):
    a(f"s_add_u32 s{44+g}, s44, {g*9216}")
a("v_bfe_u32 v58, v1, 4, 1")
a("v_lshlrev_b32 v58, 1, v58")
a("v_lshrrev_b32 v59, 5, v1")
a("v_add_u32 v58, v58, v59")
a("v_lshl_add_u32 v58, v57, 2, v58")
a("v_lshlrev_b32 v58, 2, v58")
a("v_add_u32 v58, s48, v58")
a("s_cmp_eq_u32 s31, 0")
a("s_cbranch_scc0 LC_X2")
srd(60, 98, 99, 1152)
a("v_lshrrev_b32 v59, 1, v58")
for c in range(3):
    a(f"buffer_load_ushort v{60+c}, v59, s[60:63], 0 offen offset:{c*128}")
a("s_waitcnt vmcnt(0)")
for c in range(3):
    a(f"v_lshlrev_b32 v{60+c}, 16, v{60+c}")
a("s_branch LC_X3")
a.label("LC_X2")
a(f"s_mov_b32 s48, {LB0+X4}")
for c in range(3):
    a(f"buffer_load_dword v{60+c}, v58, s[12:15], s48 offen offset:{c*256} sc1")
a.label("LC_X3")
a(f"v_add_u32 v58, {XBUF}, v58")
a.label("LE2")
for c in range(3):
    for g in range(4):
        a(f"buffer_load_dwordx4 {R('v', 8+16*c+4*g)}, v56, s[12:15], s{44+g} offen offset:{c*256} sc1")
for c in range(3):
    b = 8 + 16 * c
    a(f"s_waitcnt vmcnt({8-4*c})")
    for r in range(4):
        a(f"v_add_f32 v{b+r}, v{b+r}, v{b+4+r}")
        a(f"v_add_f32 v{b+8+r}, v{b+8+r}, v{b+12+r}")
    for r in range(4):
        a(f"v_add_f32 v{b+r}, v{b+r}, v{b+8+r}")
    swapreduce(b)
a("v_add_f32 v9, v8, v24")
a("v_cmp_u_f32 vcc, v9, v40")
a("s_cbranch_vccz LE2OK")
retry("LE2", "LE2OK")
a.label("LE2OK")
stamp(5)
for c in range(3):
    bf16r(8 + 16 * c, 8 + 16 * c)
for c in range(3):
    a(f"v_add_f32 v{60+c}, v{60+c}, v{8+16*c}")
for c in range(3):
    bf16r(60 + c, 60 + c)
for c in range(3):
    a(f"ds_write_b32 v58, v{60+c} offset:{c*256}")
a.label("LC_BAR")
a("v_lshlrev_b32 v8, 2, v1")
a(f"v_add_u32 v8, {XBUF}, v8")
a(f"s_mul_i32 s45, s24, {TS}")
tile_addr(58, 59, base_sgpr=45, base=WGU)
a("s_waitcnt lgkmcnt(0)")
a("s_barrier")
for i in range(9):
    a(f"ds_read_b32 v{XR+i}, v8 offset:{i*256}")
a("s_waitcnt lgkmcnt(0)")
layernorm()
gemv(18, 57, 58, 8, 60)
a("s_lshl_b32 s44, s24, 4")
a(f"s_add_u32 s44, s44, {HB}")
a("v_lshlrev_b32 v40, 1, v1")
a("v_add_u32 v40, s44, v40")
a("v_lshrrev_b32 v56, 4, v1")
a("v_lshlrev_b32 v57, 3, v56")
a("v_bfe_u32 v58, v1, 2, 2")
a("v_add_u32 v57, v57, v58")
a("v_mul_u32_u24 v57, 1152, v57")
a("v_and_b32 v58, 3, v1")
a("v_lshl_add_u32 v57, v58, 3, v57")
a("s_lshl_b32 s44, s24, 7")
a(f"s_add_u32 s44, s44, {WD}")
a("v_add_u32 v57, s44, v57")
a("v_lshlrev_b32 v56, 4, v56")
a(f"v_add_u32 v56, {HB}, v56")


def downB(i):
    for t in range(4):
        s = 8 + 16 * (i & 1) + 4 * t
        a(f"ds_read_b64_tr_b16 {R('v', s, 2)}, v57 offset:{i*512+t*32}")
        a(f"ds_read_b64_tr_b16 {R('v', s+2, 2)}, v57 offset:{i*512+t*32+4*1152}")


downB(0)
a(f"v_mov_b32_dpp v41, v60 row_shl:8{DPPM} bound_ctrl:1")
a("v_cvt_pk_bf16_f32 v41, v60, v41")
a("v_lshlrev_b32 v42, 16, v41")
a("v_and_b32 v41, 0xffff0000, v41")
a("v_max_f32 v42, 0, v42")
a("v_mul_f32 v41, v42, v41")
a("v_cvt_pk_bf16_f32 v41, v41, v41")
a("s_mov_b64 exec, 0xff")
a("ds_write_b16 v40, v41")
a("s_mov_b64 exec, -1")
a("v_lshrrev_b32 v58, 5, v1")
a("v_mul_u32_u24 v58, 18432, v58")
a("v_and_b32 v59, 31, v1")
a("v_lshl_add_u32 v58, v59, 2, v58")
a("s_mul_i32 s44, s28, 18")
a("s_add_u32 s44, s44, s27")
a("s_lshl_b32 s44, s44, 7")
a("s_mul_i32 s45, s24, 36864")
a("s_add_u32 s44, s44, s45")
a("s_add_u32 s44, s44, s39")
a(f"s_add_u32 s44, s44, {X3}")
a("s_mov_b32 s46, 0xffff0000")
a("s_mov_b32 s47, 0xffff0000")
a("s_mov_b32 s48, 0")
a("s_mov_b32 s49, -1")
a("s_waitcnt lgkmcnt(0)")
a("s_barrier")
a("ds_read_b128 v[60:63], v56")
downB(1)


def downG(i, wait):
    a(f"s_waitcnt lgkmcnt({wait})")
    for t in range(4):
        s = 8 + 16 * (i & 1) + 4 * t
        a(f"v_mfma_f32_16x16x32_bf16 {R('v', 40+4*t)}, v[60:63], {R('v', s)}, 0")
    a("v_cndmask_b32 v40, v40, v44, s[46:47]")
    a("v_cndmask_b32 v48, v48, v52, s[46:47]")
    a("v_cndmask_b32 v40, v40, v48, s[48:49]")
    a("buffer_store_dword v40, v58, s[12:15], s44 offen sc1")
    a(f"s_add_u32 s44, s44, {4*36864}")


downG(0, 8)
a("s_cmp_eq_u32 s24, 0")
a("s_cbranch_scc1 LDOWN3")
downG(1, 0)
a("s_branch LSTD")
a.label("LDOWN3")
a("s_waitcnt lgkmcnt(0)")
downB(2)
downG(1, 8)
downG(2, 0)
a.label("LSTD")
stamp(6)
a("s_lshl_b32 s50, s27, 3")
a("s_add_u32 s50, s50, s28")
a("s_cmp_lt_u32 s50, 18")
a("s_cbranch_scc0 LSTQ")
a("s_mul_i32 s44, s50, 18432")
a("s_mul_i32 s45, s24, 4608")
a("s_add_u32 s44, s44, s45")
a("s_add_u32 s44, s44, s39")
a(f"s_add_u32 s44, s44, {X3}")
a("s_add_u32 s45, s44, 4096")
a("v_bfe_u32 v58, v1, 4, 1")
a("v_lshlrev_b32 v58, 1, v58")
a("v_lshrrev_b32 v59, 5, v1")
a("v_add_u32 v58, v58, v59")
a("v_and_b32 v59, 7, v1")
a("v_lshl_add_u32 v58, v59, 2, v58")
a("v_lshlrev_b32 v58, 2, v58")
a("s_lshl_b32 s46, s24, 7")
a(f"s_add_u32 s46, s46, {FB}")
a("v_add_u32 v58, s46, v58")
for r in range(4):
    a(f"v_mov_b32 v{24+r}, 0")
a.label("LE3")
for i in range(4):
    a(f"buffer_load_dwordx4 {R('v', 8+4*i)}, v3, s[12:15], s44 offen offset:{i*1024} sc1")
a("s_mov_b32 exec_hi, 0")
a("buffer_load_dwordx4 v[24:27], v3, s[12:15], s45 offen sc1")
a("s_mov_b64 exec, -1")
a("s_waitcnt vmcnt(0)")
for r in range(4):
    a(f"v_add_f32 v{8+r}, v{8+r}, v{12+r}")
    a(f"v_add_f32 v{16+r}, v{16+r}, v{20+r}")
for r in range(4):
    a(f"v_add_f32 v{8+r}, v{8+r}, v{24+r}")
for r in range(4):
    a(f"v_add_f32 v{8+r}, v{8+r}, v{16+r}")
swapreduce(8)
a(f"v_add_f32_dpp v8, v8, v8 row_ror:8{DPPM}")
a("v_cmp_u_f32 vcc, v8, v8")
a("s_cbranch_vccz LE3OK")
retry("LE3", "LE3OK")
a.label("LE3OK")
stamp(7)
a("ds_write_b32 v58, v8")
a("v_lshlrev_b32 v8, 2, v1")
a(f"v_add_u32 v9, {FB}, v8")
a("s_lshl_b32 s45, s50, 7")
a(f"s_add_u32 s46, s45, {XBUF}")
a("v_add_u32 v10, s46, v8")
a("s_waitcnt lgkmcnt(0)")
a("s_barrier")
a("s_cmp_eq_u32 s24, 0")
a("s_cbranch_scc0 LSTQ")
a("s_mov_b32 exec_hi, 0")
for w in range(4):
    a(f"ds_read_b32 v{12+w}, v9 offset:{128*w}")
a("ds_read_b32 v16, v10")
a("s_waitcnt lgkmcnt(0)")
a("v_add_f32 v12, v12, v13")
a("v_add_f32 v14, v14, v15")
a("v_add_f32 v12, v12, v14")
bf16r(12, 12)
a("v_add_f32 v12, v12, v16")
a("v_cvt_pk_bf16_f32 v12, v12, v12")
a("s_cmp_eq_u32 s31, 0")
a("s_cbranch_scc0 LFINAL")
a("v_and_b32 v12, 0xffff0000, v12")
a("s_add_u32 s45, s45, s39")
a(f"s_add_u32 s45, s45, {X4}")
a("buffer_store_dword v12, v8, s[12:15], s45 offen sc1")
a("s_mov_b64 exec, -1")
a("s_branch LSTQ")
a.label("LFINAL")
a("s_lshl_b32 s45, s50, 6")
a("v_lshlrev_b32 v8, 1, v1")
a("buffer_store_short v12, v8, s[16:19], s45 offen")
a("s_mov_b64 exec, 1")
a("s_cmp_eq_u32 s50, 0")
a("s_cbranch_scc0 LNOEP")
a("v_mov_b32 v9, s29")
a("buffer_store_dword v9, v8, s[12:15], 0 offen sc1")
a.label("LNOEP")
a("s_mov_b64 exec, -1")
a.label("LSTQ")
stamp(8)
a("s_cmp_eq_u32 s31, 0")
a("s_cbranch_scc0 LDONE")
if OPT["npf"]:
    a("s_cmp_lt_u32 s27, 18")
    a("s_cbranch_scc1 LQ5")
    a("v_lshlrev_b32 v34, 7, v1")
    a("s_lshl_b32 s44, s26, 2")
    a("s_add_u32 s44, s44, s24")
    a("s_lshl_b32 s44, s44, 13")
    for n in range(OPT["npf"]):
        a(f"s_add_u32 s45, s44, {(4+n)*UNIT_STEP}")
        a(f"buffer_load_dword v35, v34, s[4:7], s45 offen{PFK}")
        a(f"buffer_load_dword v36, v34, s[8:11], s45 offen{PFV}")
a("s_cmp_ge_u32 s27, 24")
a("s_cbranch_scc0 LQ5")
a(f"s_add_u32 s44, s39, {X4}")
a("v_lshlrev_b32 v8, 2, v1")
a.label("LE4")
for i in range(9):
    a(f"buffer_load_dword v{XR+i}, v8, s[12:15], s44 offen offset:{i*256} sc1")
a("s_waitcnt vmcnt(0)")
a(f"v_add_f32 v9, v{XR}, v{XR+1}")
for i in range(2, 9):
    a(f"v_add_f32 v9, v9, v{XR+i}")
a("v_cmp_u_f32 vcc, v9, v9")
a("s_cbranch_vccz LE4OK")
retry("LE4", "LE4OK")
a.label("LE4OK")
stamp(9)
a(f"s_mov_b32 s54, {X5}")
a("s_call_b64 s[36:37], LQSTAGE")
a.label("LQ5")
if STAMPS:
    a("s_memrealtime s[58:59]")
    a("s_waitcnt lgkmcnt(0)")
    a("s_mov_b32 s74, s58")
a("s_mov_b32 s31, 1")
a(f"s_add_u32 s39, s39, {LSTRIDE}")
a("s_add_u32 s88, s88, 4096")
a("s_addc_u32 s89, s89, 0")
a(f"s_mov_b32 s96, {TF}")
a("s_mov_b32 s91, 0")
a("s_mov_b32 s95, s97")
a("v_lshlrev_b32 v40, 2, v0")
a(f"v_add_u32 v40, {LSV}, v40")
a(f"ds_read_b32 v{VL}, v40")
qpoll_addr(X5)
a("s_waitcnt lgkmcnt(0)")
a("s_branch LQPOLL")

a.label("LQSTAGE")
a(f"s_mul_i32 s45, s24, {TS}")
tile_addr(58, 59, base_sgpr=45, base=WQ)
layernorm()
gemv(18, 57, 58, 8, 60)
a("s_lshl_b32 s44, s28, 3")
a("s_add_u32 s44, s44, s27")
a("s_sub_u32 s44, s44, 24")
a("s_lshl_b32 s44, s44, 2")
a("s_add_u32 s44, s44, s24")
a("s_lshl_b32 s44, s44, 7")
a("s_add_u32 s44, s44, s54")
a("v_lshlrev_b32 v8, 2, v1")
a("v_mov_b32 v11, s29")
a(f"v_mov_b32_dpp v9, v60 quad_perm:[1,1,3,3]{DPPM}")
a("v_cvt_pk_bf16_f32 v10, v60, v9")
a("s_mov_b64 exec, 0x5555")
a("buffer_store_dwordx2 v[10:11], v8, s[12:15], s44 offen sc1")
a("s_mov_b64 exec, -1")
a("s_setpc_b64 s[36:37]")

a.vq = qtags("R0") + qtags("R1") + qtags("R2")
for s in range(3):
    lp, lg, ln, lb, lx = (a.newlabel(x) for x in ("pool", "go", "noapp", "bonly", "next"))
    a.label(f"LRING{s}")
    a("s_cmp_lt_u32 s91, s92")
    a(f"s_cbranch_scc0 {lp}")
    a(f"v_readlane_b32 s32, v{VL}, s91")
    a("s_add_u32 s91, s91, 1")
    a(f"s_branch {lg}")
    a.label(lp)
    if STAMPS == 2:
        a("s_memrealtime s[58:59]")
    a("s_waitcnt lgkmcnt(0)")
    if STAMPS == 3:
        a("s_lshl_b32 s44, s26, 2")
        a("s_add_u32 s44, s44, s24")
        a("s_lshl_b32 s44, s44, 1")
        a("s_and_b32 s45, s3, 1")
        a("s_add_u32 s44, s44, s45")
        a("s_add_u32 s44, s44, 1920")
        a("s_lshl_b32 s44, s44, 13")
        a("s_lshr_b32 s45, s3, 1")
        a("s_lshl_b32 s45, s45, 8")
        a("s_add_u32 s44, s44, s45")
        a("s_memtime s[46:47]")
        a("s_waitcnt lgkmcnt(0)")
        a("s_buffer_load_dword s48, s[8:11], s44")
        a("s_waitcnt lgkmcnt(0)")
        a("s_memtime s[58:59]")
        a("s_waitcnt lgkmcnt(0)")
        a("s_sub_u32 s58, s58, s46")
    if STAMPS >= 2:
        a("s_mov_b32 m0, s3")
        a("s_add_u32 s3, s3, 1")
        a("s_min_u32 s3, s3, 63")
        a("v_writelane_b32 v51, s58, m0")
    a("s_cmp_lt_u32 s90, s96")
    a(f"s_cbranch_scc0 LDRAINE{s}")
    a("s_add_u32 s32, s90, 640")
    a("s_lshl_b32 s32, s32, 13")
    a(f"s_cmp_ge_u32 s90, {TF}")
    a("s_mov_b32 s90, 1")
    a(f"s_cbranch_scc0 {ln}")
    a("s_mov_b32 m0, s94")
    a("s_nop 0")
    a(f"v_writelane_b32 v{VL}, s32, m0")
    a("s_add_u32 s94, s94, 1")
    a("s_cmp_lt_u32 s94, 62")
    a(f"s_cbranch_scc1 {ln}")
    a("s_mov_b32 s90, -1")
    a(f"s_branch {lg}")
    a.label(ln)
    a("s_atomic_add s90, s[88:89], 0 glc")
    a.label(lg)
    a("s_add_u32 s33, s32, 4096")
    a(f"s_bitcmp1_b32 s95, {s}")
    a(f"s_cbranch_scc0 {lb}")
    q0 = list(a.vq)
    unit("v", RING[s], f"R{s}", f"R{s}n", noadv=True)
    q1 = [(t[0].rstrip("n"), t[1], t[2]) for t in a.vq]
    a.label(lx)
    a("s_sub_u32 s35, s35, 1")
    a("s_cmp_eq_u32 s35, 0")
    a("s_cbranch_scc1 LRINGX")
    a(f"s_branch LRING{(s+1)%3}")
    a.label(lb)
    a(f"s_bitset1_b32 s95, {s}")
    for t in range(8):
        ldK("v", RING[s], t, "x")
    for t in range(8):
        ldV("v", RING[s], t, "x")
    a(f"s_branch {lx}")
    a.vq = q1
a.label("LRINGX")
a("s_setpc_b64 s[36:37]")

for s in range(3):
    a.label(f"LDRAINE{s}")
    a("v_mov_b32 v48, 0")
    a("buffer_load_dword v49, v48, s[20:23], 0 offen sc1")
    a("s_mov_b32 s93, 0")
    a("s_sub_u32 s44, s94, 6")
    a("s_min_u32 s44, s44, 3")
    a("s_sub_u32 s92, s94, s44")
    a("s_cmp_ge_u32 s44, 1")
    a(f"s_cselect_b32 s97, {1 << ((s+2) % 3)}, 0")
    a("s_cmp_ge_u32 s44, 2")
    a(f"s_cselect_b32 s45, {1 << ((s+1) % 3)}, 0")
    a("s_or_b32 s97, s97, s45")
    a("s_cmp_ge_u32 s44, 3")
    a(f"s_cselect_b32 s45, {1 << s}, 0")
    a("s_or_b32 s97, s97, s45")
    a(f"s_branch LDRAIN{s}")
for s in range(3):
    a.label(f"LDRAIN{s}")
    unit_drain(RING[s])
    a("s_add_u32 s93, s93, 1")
    a("s_cmp_eq_u32 s93, 3")
    a("s_cbranch_scc1 LPASSEND")
a("s_branch LDRAIN0")

a.label("LDONE")
if STAMPS:
    a("s_memrealtime s[58:59]")
    a("s_waitcnt lgkmcnt(0)")
    a("s_mov_b32 s87, s58")
    a("s_lshl_b32 s44, s2, 2")
    a("s_add_u32 s44, s44, s24")
    a("s_lshl_b32 s44, s44, 7")
    a(f"s_add_u32 s44, s44, {STAMP_OFF}")
    a("v_mov_b32 v8, 0")
    a("s_mov_b64 exec, 1")
    for i in range(24):
        a(f"v_mov_b32 v9, s{64+i}")
        a(f"buffer_store_dword v9, v8, s[12:15], s44 offen offset:{4*i}")
    a("v_mov_b32 v9, s100")
    a("buffer_store_dword v9, v8, s[12:15], s44 offen offset:96")
    for i, r in enumerate((3, 55, 56, 57, 101, 94)):
        a(f"v_mov_b32 v9, s{r}")
        a(f"buffer_store_dword v9, v8, s[12:15], s44 offen offset:{100+4*i}")
    if OPT["dbgout"]:
        a("s_or_b32 s44, s2, s24")
        a("s_cmp_eq_u32 s44, 0")
        a("s_cbranch_scc0 LEND")
        for i, r in enumerate((64, 65, 66, 69, 70, 71, 72, 76, 77, 78, 81, 82, 83, 87)):
            a(f"s_sub_u32 s44, s{r}, s100")
            a("v_mov_b32 v9, s44")
            a(f"buffer_store_dword v9, v8, s[20:23], 0 offen offset:{4+4*i}")
    a("s_waitcnt vmcnt(0)")
a.label("LEND")
a("s_endpgm")

hdr = open("cdna_kernels/" + NAME + ".s.ref").read().split("\n")
top = [l for l in hdr if l.startswith(";") and "@launch" not in l]
out = "\n".join(top) + "\n"
out += f"; @launch grid=(256,1,1) block=(256,1,1) lds={LDS_SIZE}\n"
out += f""".amdgcn_target "amdgcn-amd-amdhsa--gfx950"
.text
.globl {NAME}_kernel
.p2align 8
.type {NAME}_kernel,@function
"""
out += a.text()
out += f""".section .rodata,"a"
.p2align 6
.amdhsa_kernel {NAME}_kernel
  .amdhsa_next_free_vgpr 512
  .amdhsa_next_free_sgpr 102
  .amdhsa_accum_offset 256
  .amdhsa_group_segment_fixed_size 0
  .amdhsa_kernarg_size 96
  .amdhsa_user_sgpr_count 2
  .amdhsa_user_sgpr_kernarg_segment_ptr 1
  .amdhsa_system_sgpr_workgroup_id_x 1
.end_amdhsa_kernel
"""
open(sys.argv[1], "w").write(out)
```

```python
import sys, struct, math
from asmlib import Asm

NAME = "interleave_layers__gqa_block_cached__glu_gated_reglu__decode"
OPT = dict(stamps=0, p2rev=0, kvpol="nt", wpol="nt", wskip=0, vring="def", kring="nt", tfw=7, psleep=1, npf=0, thrp=80, cn=3, vote=1, avpol="def", forcecls=-1, dbgout=0, pfk="nt", pfv="def")
for arg in sys.argv[2:]:
    k, v = arg.split("=")
    OPT[k] = int(v) if v.lstrip("-").isdigit() else v
STAMPS = OPT["stamps"]
KVPOL = "" if OPT["kvpol"] == "def" else " " + OPT["kvpol"]
WPOL = "" if OPT["wpol"] == "def" else " " + OPT["wpol"]
PFK = "" if OPT["pfk"] == "def" else " " + OPT["pfk"]
PFV = "" if OPT["pfv"] == "def" else " " + OPT["pfv"]


def f32(x):
    return "0x%08x" % struct.unpack("<I", struct.pack("<f", x))[0]


X0 = 0x1000
X5 = 0x9000
CTR = 0x11000
LB0 = 0x20000
LSTRIDE = 0xC0000
X1 = 0x0
X1S = 1280
X2 = 0x50000
X3 = 0x59000
X4 = 0xAA000
STAMP_OFF = 0x200000
WS_SIZE = 0x400000
NP1 = 14 * 64
TF = NP1 - OPT["tfw"] * 64
NP2 = 448 + TF
THR0 = 64
THRS = (NP2 * OPT["thrp"] // 100 - THR0) // 8
WGU = 0
TS = 18432
WD = 73728
WO = 0
WOS = 8448
WQ = 50688
XBUF = 124416
XN = 126720
CB1 = 131328
CS1 = 135424
CB2 = 135488
CS2 = 139584
OB = 139648
FB = 140160
HB = 140672
LSV = 140736
LDS_SIZE = 141760

UNIT_STEP = 524288
DPPM = " row_mask:0xf bank_mask:0xf"
a = Asm()
stamp_n = [0]


def stamp(i):
    if not STAMPS:
        return
    a("s_memrealtime s[58:59]")
    a("s_waitcnt lgkmcnt(0)")
    lab = a.newlabel("st")
    a(f"s_mov_b32 s{64+12+i}, s58")
    a("s_cmp_eq_u32 s31, 0")
    a(f"s_cbranch_scc0 {lab}")
    a(f"s_mov_b32 s{64+i}, s58")
    a.label(lab)


def sstamp(reg):
    if True:
        return
    a("s_memrealtime s[58:59]")
    a("s_waitcnt lgkmcnt(0)")
    a(f"s_mov_b32 s{reg}, s58")


def R(kind, base, n=4):
    return f"{kind}[{base}:{base+n-1}]"


def srd(d, lo, hi, size):
    a(f"s_mov_b32 s{d}, s{lo}")
    a(f"s_and_b32 s{d+1}, s{hi}, 0xffff")
    a(f"s_mov_b32 s{d+2}, {size}")
    a(f"s_mov_b32 s{d+3}, 0x20000")


def srd_role(d, lo, hi, size):
    a(f"s_cselect_b32 s{d+2}, {size}, 0")
    a(f"s_mov_b32 s{d}, s{lo}")
    a(f"s_and_b32 s{d+1}, s{hi}, 0xffff")
    a(f"s_mov_b32 s{d+3}, 0x20000")


def ld(kind, reg, t, src, half, pol, tag):
    srd_, vo = {"K": ("s[4:7]", "v2"), "K2": ("s[60:63]", "v51"), "V": ("s[8:11]", "v3")}[src]
    a(f"buffer_load_dwordx4 {R(kind, reg+4*t)}, {vo}, {srd_}, s{32+2*half+(t>>2)} offen offset:{(t&3)*1024}{pol}", tag=tag)


VPOL = "" if OPT["vring"] == "def" else " nt"


def ldK(kind, base, t, tag):
    ld(kind, base, t, "K", 0, " nt", (tag, "K", t))


def ldV(kind, base, t, tag):
    ld(kind, base + 32, t, "V", 1, ("" if OPT["avpol"] == "def" else " nt") if kind == "a" else VPOL, (tag, "V", t))


def adv():
    for r in range(32, 36):
        a(f"s_add_u32 s{r}, s{r}, {UNIT_STEP}")


def setaddr(k, v):
    if k is not None:
        if k != 32:
            a(f"s_mov_b32 s32, s{k}")
        a("s_add_u32 s33, s32, 4096")
    if v is not None:
        if v != 34:
            a(f"s_mov_b32 s34, s{v}")
        a("s_add_u32 s35, s34, 4096")


def burst(kind, base, tag):
    for t in range(8):
        ldK(kind, base, t, tag)
    for t in range(8):
        ldV(kind, base, t, tag)
    adv()


def waitq(tag, floor=0):
    if tag in a.vq:
        a.wait_vm(tag, floor)


def allreduce(op, v, t, first=0):
    steps = ["quad_perm:[1,0,3,2]", "quad_perm:[2,3,0,1]", "row_half_mirror", "row_mirror"]
    for s in steps[first:]:
        a(f"{op}_dpp v{v}, v{v}, v{v} {s}{DPPM}")
    rows(op, v, t)


def rows(op, v, t):
    a(f"v_mov_b32 v{t}, v{v}")
    a(f"v_permlane16_swap_b32 v{v}, v{t}")
    a(f"{op} v{v}, v{v}, v{t}")
    a(f"v_mov_b32 v{t}, v{v}")
    a(f"v_permlane32_swap_b32 v{v}, v{t}")
    a(f"{op} v{v}, v{v}, v{t}")


QE, QO, OA, MS, LS, NMC = 8, 12, 16, 20, 21, 22
DS_ = [24, 28, 32, 36]
TT = 40
TMP = 44


def unit2(K, V, kt=None, vt=None, rk=None, rv=None, hooks=None, tt=TT):
    if K is not None:
        if hooks:
            hooks[0]()
        for u in range(4):
            if kt:
                waitq(kt(2 * u + 1))
            d = R("v", DS_[u])
            a(f"v_mfma_f32_16x16x32_bf16 {d}, {R(K[0], K[1]+8*u)}, {R('v', QE)}, 0")
            a(f"v_mfma_f32_16x16x32_bf16 {d}, {R(K[0], K[1]+8*u+4)}, {R('v', QO)}, {d}")
            if rk:
                rk(2 * u)
                rk(2 * u + 1)
        order = [(0, 0), (1, 0), (2, 0), (0, 1), (1, 1), (2, 1), (0, 2), (1, 2), (3, 0), (2, 2), (0, 3), (3, 1),
                 (1, 3), (2, 3), (3, 2), None, (3, 3)]
        for o in order:
            if o is None:
                if V is not None:
                    a(f"v_max3_f32 v{TMP}, v{tt}, v{tt+1}, v{MS}")
                continue
            u, c = o
            qp = f"quad_perm:[{c},{c},{c},{c}]"
            if c == 0:
                a(f"v_mov_b32_dpp v{tt+u}, v{DS_[u]} {qp}{DPPM}")
            else:
                a(f"v_add_f32_dpp v{tt+u}, v{DS_[u]+c}, v{tt+u} {qp}{DPPM}")
    if V is None:
        return
    if K is None:
        a(f"v_max3_f32 v{TMP}, v{tt}, v{tt+1}, v{MS}")
    a(f"v_max3_f32 v{TMP}, v{TMP}, v{tt+2}, v{tt+3}")
    a(f"v_max_f32_dpp v{TMP}, v{TMP}, v{TMP} row_half_mirror{DPPM}")
    rows("v_max_f32", TMP, TMP + 1)
    a(f"v_sub_f32 v{TMP+1}, v{MS}, v{TMP}")
    a(f"v_mul_f32 v{TMP+1}, s30, v{TMP+1}")
    a(f"v_exp_f32 v{TMP+1}, v{TMP+1}")
    a(f"v_mov_b32 v{MS}, v{TMP}")
    a(f"v_mul_f32 v{NMC}, s30, v{TMP}")
    for u in range(4):
        a(f"v_fma_f32 v{tt+u}, v{tt+u}, s30, -v{NMC}")
    for u in range(4):
        a(f"v_exp_f32 v{tt+u}, v{tt+u}")
    a(f"v_mul_f32 v{LS}, v{LS}, v{TMP+1}")
    for r in range(4):
        a(f"v_mul_f32 v{OA+r}, v{OA+r}, v{TMP+1}")
    a(f"v_add_f32 v{TMP+2}, v{tt}, v{tt+1}")
    a(f"v_add_f32 v{TMP+3}, v{tt+2}, v{tt+3}")
    for u in range(4):
        a(f"v_cvt_pk_bf16_f32 v{tt+u}, v{tt+u}, v{tt+u}")
    a(f"v_add_f32 v{TMP+2}, v{TMP+2}, v{TMP+3}")
    a(f"v_add_f32 v{LS}, v{LS}, v{TMP+2}")

    def buildB(t):
        b = DS_[t & 3]
        p = tt + (t >> 1)
        for i in range(4):
            own = (i < 2) == ((t & 1) == 0)
            if own:
                a(f"v_and_b32 v{b+i}, v{p}, v{4+i}")
            else:
                sh = "row_shr:4" if (t & 1) == 0 else "row_shl:4"
                a(f"v_and_b32_dpp v{b+i}, v{p}, v{4+i} {sh}{DPPM} bound_ctrl:1")

    buildB(0)
    if hooks:
        hooks[1]()
    for t in range(8):
        if t + 1 < 8:
            buildB(t + 1)
        if vt:
            waitq(vt(t))
        a(f"v_mfma_f32_16x16x32_bf16 {R('v', OA)}, {R(V[0], V[1]+4*t)}, {R('v', DS_[t&3])}, {R('v', OA)}")
        if rv:
            rv(t)


def unit(kind, base, tag, reload_tag=None, hooks=None):
    rk = rv = None
    if reload_tag is not None:
        rk = lambda t: ldK(kind, base, t, reload_tag)
        rv = lambda t: ldV(kind, base, t, reload_tag)
    unit2((kind, base), (kind, base + 32), lambda t: (tag, "K", t), lambda t: (tag, "V", t), rk, rv, hooks)


probe_k = [0]


def probe():
    k = probe_k[0]
    probe_k[0] += 1
    for c in ((0, 1) if k & 1 else (1, 0)):
        a(f"s_add_u32 s50, s57, {(c ^ 1)*8192 + k*1152}")
        a("s_memtime s[52:53]")
        a("s_waitcnt lgkmcnt(0)")
        a("s_buffer_load_dword s51, s[8:11], s50")
        a("s_waitcnt lgkmcnt(0)")
        a("s_memtime s[50:51]")
        a("s_waitcnt lgkmcnt(0)")
        a("s_sub_u32 s50, s50, s52")
        a(f"s_min_u32 s{55+c}, s{55+c}, s50")


def qtags(tag):
    return [(tag, "K", t) for t in range(8)] + [(tag, "V", t) for t in range(8)]


RING = [64, 128, 192]


def bf16r(d, s):
    a(f"v_cvt_pk_bf16_f32 v{d}, v{s}, v{s}")
    a(f"v_and_b32 v{d}, 0xffff0000, v{d}")


def gemv(nk, vA, vB, T, acc, bstep=1024, bhalf=128):
    S = 4

    def issue(kk):
        s = T + 8 * (kk % S)
        a(f"ds_read_b128 {R('v', s)}, v{vA} offset:{kk*64}")
        a(f"ds_read_b64_tr_b16 {R('v', s+4, 2)}, v{vB} offset:{kk*bstep}")
        a(f"ds_read_b64_tr_b16 {R('v', s+6, 2)}, v{vB} offset:{kk*bstep+bhalf}")

    for kk in range(min(S, nk)):
        issue(kk)
    for kk in range(nk):
        a(f"s_waitcnt lgkmcnt({3*(min(nk, kk+S)-kk-1)})")
        s = T + 8 * (kk % S)
        c = "0" if kk == 0 else R("v", acc)
        a(f"v_mfma_f32_16x16x32_bf16 {R('v', acc)}, {R('v', s)}, {R('v', s+4)}, {c}")
        if kk + S < nk:
            issue(kk + S)


def tile_addr(v, t, base_sgpr=None, base=0):
    a(f"v_lshrrev_b32 v{v}, 4, v1")
    a(f"v_lshlrev_b32 v{v}, 8, v{v}")
    a(f"v_and_b32 v{t}, 15, v1")
    a(f"v_lshl_add_u32 v{v}, v{t}, 3, v{v}")
    if base:
        a(f"v_add_u32 v{v}, {base}, v{v}")
    if base_sgpr is not None:
        a(f"v_add_u32 v{v}, s{base_sgpr}, v{v}")


def afrag_addr(v, base_sgpr=None, base=0):
    a(f"v_lshrrev_b32 v{v}, 4, v1")
    a(f"v_lshlrev_b32 v{v}, 4, v{v}")
    if base:
        a(f"v_add_u32 v{v}, {base}, v{v}")
    if base_sgpr is not None:
        a(f"v_add_u32 v{v}, s{base_sgpr}, v{v}")


XR = 44


def layernorm():
    s, t, mb, rs = 53, 54, 55, 56
    a(f"v_add_f32 v{s}, v{XR}, v{XR+1}")
    for i in range(2, 9):
        a(f"v_add_f32 v{s}, v{s}, v{XR+i}")
    allreduce("v_add_f32", s, t)
    a(f"v_mul_f32 v{s}, {f32(1.0/576)}, v{s}")
    bf16r(mb, s)
    a(f"v_sub_f32 v{t}, v{XR}, v{s}")
    a(f"v_mul_f32 v{rs}, v{t}, v{t}")
    for i in range(1, 9):
        a(f"v_sub_f32 v{t}, v{XR+i}, v{s}")
        a(f"v_fmac_f32 v{rs}, v{t}, v{t}")
    allreduce("v_add_f32", rs, t)
    a(f"v_mul_f32 v{rs}, {f32(1.0/576)}, v{rs}")
    bf16r(rs, rs)
    a(f"v_add_f32 v{rs}, {f32(1e-5)}, v{rs}")
    bf16r(rs, rs)
    a(f"v_sqrt_f32 v{rs}, v{rs}")
    bf16r(rs, rs)
    a(f"v_rcp_f32 v{rs}, v{rs}")
    a("s_mul_i32 s44, s24, 1152")
    a(f"s_add_u32 s44, s44, {XN}")
    a(f"v_lshlrev_b32 v{s}, 1, v1")
    a(f"v_add_u32 v{s}, s44, v{s}")
    for i in range(9):
        a(f"v_sub_f32 v{XR+i}, v{XR+i}, v{mb}")
    for i in range(9):
        bf16r(XR + i, XR + i)
    for i in range(9):
        a(f"v_mul_f32 v{XR+i}, v{XR+i}, v{rs}")
    for i in range(9):
        a(f"v_cvt_pk_bf16_f32 v{XR+i}, v{XR+i}, v{XR+i}")
    for i in range(9):
        a(f"ds_write_b16 v{s}, v{XR+i} offset:{i*128}")
    afrag_addr(57, base_sgpr=44)
    a("s_waitcnt lgkmcnt(0)")


def retry(lab_again, lab_done):
    a("s_cmp_eq_u32 s38, 0")
    a(f"s_cbranch_scc1 {lab_done}")
    a("s_sub_u32 s38, s38, 1")
    a(f"s_sleep {OPT['psleep']}")
    a(f"s_branch {lab_again}")


def combine(CB, CS):
    a("v_lshlrev_b32 v8, 2, v0")
    a(f"v_add_u32 v8, {CB}, v8")
    a("s_lshr_b32 s44, s24, 1")
    a("s_lshl_b32 s44, s44, 5")
    a(f"s_add_u32 s44, s44, {CS}")
    a("v_mov_b32 v9, s44")
    a("ds_read_b128 v[12:15], v9")
    a("ds_read_b128 v[16:19], v9 offset:16")
    for w in range(4):
        a(f"ds_read_b32 v{20+w}, v8 offset:{w*1024}")
    a("s_waitcnt lgkmcnt(4)")
    a("v_max3_f32 v26, v12, v14, v16")
    a("v_max_f32 v26, v26, v18")
    for w in range(4):
        a(f"v_sub_f32 v{12+2*w}, v{12+2*w}, v26")
    for w in range(4):
        a(f"v_exp_f32 v{12+2*w}, v{12+2*w}")
    a("v_mul_f32 v27, v13, v12")
    for w in range(1, 4):
        a(f"v_fmac_f32 v27, v{13+2*w}, v{12+2*w}")
    a("s_waitcnt lgkmcnt(0)")
    a("v_mul_f32 v24, v20, v12")
    for w in range(1, 4):
        a(f"v_fmac_f32 v24, v{20+w}, v{12+2*w}")


def qpoll_issue():
    a("buffer_load_dwordx4 v[24:27], v32, s[12:15], s45 offen sc1", tag="qp")
    a("buffer_load_dwordx4 v[28:31], v32, s[12:15], s45 offen offset:16 sc1", tag="qp")


def qpoll_addr(xoff):
    a("s_lshl_b32 s45, s25, 11")
    a(f"s_add_u32 s45, s45, {xoff}")
    a("v_bfe_u32 v32, v1, 3, 1")
    a("v_lshlrev_b32 v32, 10, v32")
    a("v_lshrrev_b32 v33, 4, v1")
    a("v_lshl_add_u32 v32, v33, 8, v32")
    a("v_bfe_u32 v33, v1, 1, 1")
    a("v_lshl_add_u32 v32, v33, 7, v32")
    a("v_and_b32 v33, 1, v1")
    a("v_lshl_add_u32 v32, v33, 5, v32")


def qpoll_check():
    a("v_cmp_ne_u32 s[46:47], s29, v25")
    a("v_cmp_ne_u32 s[48:49], s29, v27")
    a("v_cmp_ne_u32 s[50:51], s29, v29")
    a("v_cmp_ne_u32 s[52:53], s29, v31")
    a("s_or_b64 s[46:47], s[46:47], s[48:49]")
    a("s_or_b64 s[50:51], s[50:51], s[52:53]")
    a("s_or_b64 s[46:47], s[46:47], s[50:51]")


VL = 50


def unit_drain(base):
    def pwait(n0, n1, n2):
        l0, l1 = a.newlabel("dw"), a.newlabel("dw")
        a("s_cmp_eq_u32 s93, 0")
        a(f"s_cbranch_scc1 {l0}")
        a("s_cmp_eq_u32 s93, 1")
        a(f"s_cbranch_scc1 {l1}")
        a(f"s_waitcnt vmcnt({n2})")
        a.label(l1)
        a(f"s_waitcnt vmcnt({n1})")
        a.label(l0)
        a(f"s_waitcnt vmcnt({n0})")
    a.vq = []
    unit("v", base, "none", None, hooks=(lambda: pwait(41, 25, 9), lambda: pwait(33, 17, 1)))


def swapreduce(b):
    a(f"v_permlane32_swap_b32 v{b}, v{b+1}")
    a(f"v_permlane32_swap_b32 v{b+2}, v{b+3}")
    a(f"v_add_f32 v{b}, v{b}, v{b+1}")
    a(f"v_add_f32 v{b+2}, v{b+2}, v{b+3}")
    a(f"v_permlane16_swap_b32 v{b}, v{b+2}")
    a(f"v_add_f32 v{b}, v{b}, v{b+2}")


a.raw(f"{NAME}_kernel:")
a("s_cmp_ge_u32 s2, 256")
a("s_cbranch_scc1 LEND")
if STAMPS:
    a("s_memrealtime s[100:101]")
a("s_load_dwordx16 s[64:79], s[0:1], 0")
a("s_load_dwordx8 s[80:87], s[0:1], 64")
a("v_and_b32 v1, 63, v0")
a("v_lshrrev_b32 v40, 6, v0")
a("v_readfirstlane_b32 s24, v40")
a("s_and_b32 s28, s2, 7")
a("s_lshr_b32 s27, s2, 3")
a("s_lshl_b32 s44, s28, 2")
a("s_add_u32 s27, s27, s44")
a("s_and_b32 s27, s27, 31")
a("s_lshr_b32 s25, s2, 4")
a("s_and_b32 s26, s2, 15")
a(f"s_mov_b32 s30, {f32(math.log2(math.e)/math.sqrt(128.0))}")
a("s_mov_b32 s31, 0")
a("s_mov_b32 s38, 400000")
a(f"s_mov_b32 s39, {LB0}")
a("s_mov_b32 s42, 0xf0f0f0f0")
a("s_mov_b32 s43, 0xf0f0f0f0")
a("s_lshl_b32 s44, s26, 2")
a("s_add_u32 s44, s44, s24")
a("s_lshl_b32 s32, s44, 13")
a(f"s_add_u32 s32, s32, {3*UNIT_STEP}")
setaddr(32, 32)
a("s_lshl_b32 s57, s44, 14")
a(f"s_add_u32 s57, s57, {1408*8192}")
a("s_mov_b32 s55, -1")
a("s_mov_b32 s56, -1")
a("v_lshlrev_b32 v3, 4, v1")
a("v_bfe_u32 v40, v1, 2, 2")
a("v_lshlrev_b32 v2, 8, v40")
a("v_lshrrev_b32 v40, 4, v1")
a("v_lshl_add_u32 v2, v40, 6, v2")
a("v_and_b32 v40, 3, v1")
a("v_lshl_add_u32 v2, v40, 4, v2")
a("s_waitcnt lgkmcnt(0)")
a("s_load_dword s29, s[86:87], 0")
a("s_lshl_b32 s44, s25, 24")
a("s_add_u32 s4, s66, s44")
a("s_addc_u32 s5, s67, 0")
a("s_and_b32 s5, s5, 0xffff")
a("s_mov_b32 s6, 0x1000000")
a("s_mov_b32 s7, 0x20000")
a("s_add_u32 s8, s68, s44")
a("s_addc_u32 s9, s69, 0")
a("s_and_b32 s9, s9, 0xffff")
a("s_mov_b32 s10, 0x1000000")
a("s_mov_b32 s11, 0x20000")
srd(12, 86, 87, WS_SIZE)
a("s_cmp_ge_u32 s27, 24")
a("s_cbranch_scc0 LPRO1")
srd(60, 64, 65, 1152)
srd(92, 70, 71, 0 if OPT["wskip"] & 8 else 576 * 8192)
a("v_lshrrev_b32 v41, 3, v1")
a("v_lshlrev_b32 v40, 13, v41")
a("v_and_b32 v42, 7, v1")
a("v_lshl_add_u32 v40, v42, 4, v40")
a("s_lshl_b32 s46, s28, 3")
a("s_add_u32 s46, s46, s27")
a("s_sub_u32 s46, s46, 24")
a("s_lshl_b32 s44, s46, 7")
a(f"s_mul_i32 s45, s24, {144*8192}")
a("s_add_u32 s44, s44, s45")
for i in range(18):
    a(f"buffer_load_dwordx4 {R('v', 64+4*i)}, v40, s[92:95], s44 offen{WPOL}")
    a("s_add_u32 s44, s44, 65536")
a("v_lshlrev_b32 v40, 1, v1")
for i in range(9):
    a(f"buffer_load_ushort v{XR+i}, v40, s[60:63], 0 offen offset:{i*128}")
a("s_and_b32 s44, s46, 3")
a("s_or_b32 s44, s44, s24")
a("s_cmp_eq_u32 s44, 0")
a("s_cbranch_scc0 LPRO0")
a("v_lshlrev_b32 v40, 12, v1")
a("v_mov_b32 v36, 0\nv_mov_b32 v37, 0\nv_mov_b32 v38, 0\nv_mov_b32 v39, 0")
a("s_lshl_b32 s44, s46, 6")
a(f"s_add_u32 s44, s44, {CTR}")
a("s_mov_b64 exec, 3")
a("buffer_store_dwordx4 v[36:39], v40, s[12:15], s44 offen sc1")
a("s_mov_b64 exec, -1")
a.label("LPRO0")
a("v_lshrrev_b32 v40, 1, v42")
a(f"v_mul_u32_u24 v40, {TS}, v40")
a("v_lshl_add_u32 v40, v41, 5, v40")
a("v_and_b32 v42, 1, v42")
a("v_lshl_add_u32 v40, v42, 4, v40")
a(f"s_mul_i32 s44, s24, {144*32}")
a(f"s_add_u32 s44, s44, {WQ}")
a("v_add_u32 v40, s44, v40")
a("s_waitcnt vmcnt(0) lgkmcnt(0)")
sstamp(3)
a("s_mul_i32 s29, s29, 0x9e3779b1")
a("s_add_u32 s29, s29, 0x7f4a7c15")
for i in range(18):
    a(f"ds_write_b128 v40, {R('v', 64+4*i)} offset:{i*256}")
for i in range(9):
    a(f"v_lshlrev_b32 v{XR+i}, 16, v{XR+i}")
a("s_waitcnt lgkmcnt(0)")
a("s_barrier")
a(f"s_mov_b32 s54, {X0}")
a("s_call_b64 s[36:37], LQSTAGE")
a("s_branch LPRO2")
a.label("LPRO1")
a("s_waitcnt lgkmcnt(0)")
a("s_mul_i32 s29, s29, 0x9e3779b1")
a("s_add_u32 s29, s29, 0x7f4a7c15")
a.label("LPRO2")
sstamp(55)
a.vq = []
burst("a", 0, "A0")
a("s_cmp_eq_u32 s24, 0")
a("s_cbranch_scc0 LPRO3")
a("v_mov_b32 v24, -1\nv_mov_b32 v25, -1\nv_mov_b32 v26, -1\nv_mov_b32 v27, -1")
a("s_mul_i32 s44, s2, 6144")
a(f"s_add_u32 s44, s44, {LB0}")
a("s_add_u32 s45, s44, 4096")
keep = list(a.vq)
for i in range(6):
    a(f"buffer_store_dwordx4 v[24:27], v3, s[12:15], s{44+(i>>2)} offen offset:{1024*(i&3)} sc1")
a.vq = keep
a.label("LPRO3")
srd(16, 82, 83, 1152)
srd(20, 84, 85, 256)
a("s_mov_b32 s98, s64")
a("s_mov_b32 s99, s65")
a("v_and_b32 v40, 1, v1")
a("v_lshlrev_b32 v40, 4, v40")
a("v_mov_b32 v41, 0xffff")
a("v_lshlrev_b32 v40, v40, v41")
for i in range(4):
    m = 0x03030303 << (2 * i)
    a(f"s_mov_b32 s40, 0x{m:08x}")
    a(f"s_mov_b32 s41, 0x{m:08x}")
    a(f"v_cndmask_b32 v{4+i}, 0, v40, s[40:41]")
a("s_lshl_b32 s44, s25, 8")
a(f"s_add_u32 s44, s44, {CTR}")
a("s_add_u32 s88, s86, s44")
a("s_addc_u32 s89, s87, 0")
sstamp(56)
keep = list(a.vq)
a("s_cmp_lt_u32 s27, 18")
a("s_cbranch_scc0 LWB")
srd(60, 76, 77, 0 if OPT["wskip"] & 2 else 576 * 9216)
srd(92, 78, 79, 0 if OPT["wskip"] & 2 else 576 * 9216)
a("v_lshrrev_b32 v41, 2, v1")
a("v_and_b32 v42, 3, v1")
a("v_mul_u32_u24 v40, 9216, v41")
a("v_lshl_add_u32 v40, v42, 4, v40")
a("s_mul_i32 s46, s28, 18")
a("s_add_u32 s46, s46, s27")
a("s_lshl_b32 s44, s46, 6")
a(f"s_mul_i32 s45, s24, {144*9216}")
a("s_add_u32 s44, s44, s45")
for i in range(9):
    a(f"buffer_load_dwordx4 {R('v', 64+8*i)}, v40, s[60:63], s44 offen{WPOL}")
    a(f"buffer_load_dwordx4 {R('v', 68+8*i)}, v40, s[92:95], s44 offen{WPOL}")
    a(f"s_add_u32 s44, s44, {16*9216}")
a(f"v_mul_u32_u24 v43, {TS}, v42")
a("v_lshl_add_u32 v43, v41, 5, v43")
a(f"s_mul_i32 s45, s24, {144*32}")
a("v_add_u32 v43, s45, v43")
srd(60, 80, 81, 0 if OPT["wskip"] & 4 else 4608 * 1152)
a(f"s_mul_i32 s44, s46, {32*1152}")
a("s_mul_i32 s45, s24, 9216")
a("s_add_u32 s44, s44, s45")
a("s_add_u32 s45, s44, 4096")
a("s_add_u32 s46, s44, 8192")
for i in range(9):
    a(f"buffer_load_dwordx4 {R('v', 136+4*i)}, v3, s[60:63], s{44+(i>>2)} offen offset:{(i&3)*1024}{WPOL}")
a("s_branch LWDONE")
a.label("LWB")
a("s_cmp_lt_u32 s27, 30")
a("s_cbranch_scc0 LWDONE")
srd(60, 72, 73, 0 if OPT["wskip"] & 1 else 4096 * 1152)
a("v_mul_u32_u24 v41, 43, v1")
a("v_lshrrev_b32 v41, 9, v41")
a("v_mul_u32_u24 v42, 12, v41")
a("v_sub_u32 v42, v1, v42")
a("v_mul_u32_u24 v40, 1152, v41")
a("v_lshl_add_u32 v40, v42, 4, v40")


def brole():
    a("s_sub_u32 s47, s27, 18")
    a("s_lshl_b32 s46, s28, 1")
    a("s_cmp_ge_u32 s47, 6")
    a("s_addc_u32 s46, s46, 0")
    a("s_cmp_ge_u32 s47, 6")
    a("s_cselect_b32 s48, 6, 0")
    a("s_sub_u32 s47, s47, s48")


brole()
a("s_lshl_b32 s44, s46, 8")
a("s_lshl_b32 s45, s24, 6")
a("s_add_u32 s44, s44, s45")
a("s_mul_i32 s44, s44, 1152")
a("s_mul_i32 s45, s47, 192")
a("s_add_u32 s44, s44, s45")
for i in range(13):
    a(f"buffer_load_dwordx4 {R('v', 64+4*i)}, v40, s[60:63], s44 offen{WPOL}")
    a(f"s_add_u32 s44, s44, {5*1152}")
a("v_lshrrev_b32 v43, 1, v42")
a(f"v_mul_u32_u24 v43, {WOS}, v43")
a("v_lshl_add_u32 v43, v41, 5, v43")
a("v_and_b32 v42, 1, v42")
a("v_lshl_add_u32 v43, v42, 4, v43")
a("s_lshl_b32 s45, s24, 11")
a("v_add_u32 v43, s45, v43")
a.label("LWDONE")
a.vq = keep
sstamp(57)
probe()
a.wait_vm_n(30)
burst("a", 64, "A1")
probe()
a.wait_vm_n(30)
burst("a", 128, "A2")
probe()
a.wait_vm_n(40)
burst("a", 192, "A3")
probe()
a.wait_vm_n(48)
a("s_cmp_lt_u32 s27, 18")
a("s_cbranch_scc0 LWB2")
for i in range(9):
    a(f"ds_write_b128 v43, {R('v', 64+8*i)} offset:{i*512}")
    a(f"ds_write_b128 v43, {R('v', 68+8*i)} offset:{i*512+16}")
a("s_mul_i32 s44, s24, 9216")
a(f"s_add_u32 s44, s44, {WD}")
a("v_add_u32 v40, s44, v3")
for i in range(9):
    a(f"ds_write_b128 v40, {R('v', 136+4*i)} offset:{i*1024}")
a("s_branch LWDONE2")
a.label("LWB2")
a("s_cmp_lt_u32 s27, 30")
a("s_cbranch_scc0 LWDONE2")
for i in range(13):
    a(f"ds_write_b128 v43, {R('v', 64+4*i)} offset:{i*160}")
a.label("LWDONE2")
a(f"v_mov_b32 v{VL}, 0")
a("s_mov_b32 s91, 0")
a("s_mov_b32 s92, 0")
a("s_mov_b32 s94, 0")
a("s_mov_b32 s95, 7")
a(f"s_mov_b32 s96, {NP1}")
qpoll_addr(X0)
a("s_waitcnt lgkmcnt(0)")
a("s_cmp_eq_u32 s24, 0")
a("s_cbranch_scc0 LNOCNT")
a("s_mov_b32 s49, 1")
a("s_atomic_add s49, s[84:85], 0")
a.label("LNOCNT")
a.wait_vm_n(40)
burst("v", RING[0], "R0")
probe()
a.wait_vm_n(40)
burst("v", RING[1], "R1")
probe()
a.wait_vm_n(40)
qpoll_issue()
burst("v", RING[2], "R2")
probe()
a.wait_vm("qp")
if STAMPS:
    a("s_memrealtime s[58:59]")
    a("s_waitcnt lgkmcnt(0)")
    a("s_mov_b32 s75, s58")
qpoll_check()
a("s_cbranch_scc0 LQREADY")

a.label("LQPOLL")
qpoll_issue()
a("s_waitcnt vmcnt(0)")
qpoll_check()
a("s_cbranch_scc0 LQREADY")
retry("LQPOLL", "LQREADY")
a.label("LQREADY")
a("s_mov_b32 s90, 1")
a("s_atomic_add s90, s[88:89], 0 glc")
for i in range(4):
    a(f"v_cndmask_b32 v{QE+i}, v{24+2*i}, 0, s[42:43]")
    a(f"v_cndmask_b32 v{QO+i}, 0, v{24+2*i}, s[42:43]")
for r in range(4):
    a(f"v_mov_b32 v{OA+r}, 0")
a(f"v_mov_b32 v{MS}, {f32(-1e30)}")
a(f"v_mov_b32 v{LS}, 0")
stamp(0)
a("s_cmp_eq_u32 s31, 0")
a("s_cbranch_scc0 LP2")
if OPT["vote"]:
    a("s_getreg_b32 s47, hwreg(HW_REG_XCC_ID)")
    a("s_bfe_u32 s47, s47, 0x10002")
    a("s_sub_i32 s44, s55, s56")
    a("s_min_i32 s44, s44, 300")
    a("s_max_i32 s44, s44, -300")
    a("s_sub_i32 s45, 0, s44")
    a("s_cmp_eq_u32 s47, 0")
    a("s_cselect_b32 s44, s44, s45")
    a("s_mov_b32 s46, s44")
    a("s_atomic_add s46, s[88:89], 12 glc")
    a("s_waitcnt lgkmcnt(0)")
    a("s_add_i32 s44, s44, s46")
    a("s_cmp_gt_i32 s44, 0")
    a("s_cselect_b32 s44, 1, 0")
    a("s_xor_b32 s44, s44, s47")
else:
    a("s_cmp_gt_u32 s55, s56")
    a("s_cselect_b32 s44, 1, 0")
if OPT["forcecls"] == 2:
    a("s_xor_b32 s44, s44, 1")
a("s_lshl_b32 s45, s44, 2")
a("s_add_u32 s45, s45, 4")
a("s_mov_b32 s46, 1")
a("s_atomic_add s46, s[88:89], s45 glc")
a(f"s_sub_u32 s93, s32, {10*UNIT_STEP}")
a("s_mov_b32 s60, s4\ns_mov_b32 s61, s5\ns_mov_b32 s62, 0x1000000\ns_mov_b32 s63, 0x20000")
a("v_mov_b32 v51, v2")
a("s_mov_b32 s4, s8\ns_mov_b32 s5, s9")
a("v_mov_b32 v2, v3")
a("s_waitcnt lgkmcnt(0)")
a("s_cmp_lt_u32 s46, 32")
a("s_cbranch_scc1 LBUN")
a("s_xor_b32 s44, s44, 1")
a("s_xor_b32 s45, s45, 12")
a("s_mov_b32 s46, 1")
a("s_atomic_add s46, s[88:89], s45 glc")
a("s_waitcnt lgkmcnt(0)")
a.label("LBUN")
a("s_lshr_b32 s45, s46, 4")
a("s_xor_b32 s44, s44, s45")
a("s_lshl_b32 s57, s46, 4")
a("s_add_u32 s57, s57, s44")
a("s_add_u32 s57, s57, 1536")
a("s_lshl_b32 s57, s57, 13")
a("s_mov_b32 s55, 0")
a("s_mov_b32 s56, 640")
a(f"s_mov_b32 s54, {TF}")
a("s_mov_b32 s36, 0")
a("s_mov_b32 s101, 0")
a.vq = []


def baddr(i):
    a(f"s_add_u32 s32, s57, {2*i*16384}")
    a(f"s_add_u32 s34, s57, {(2*i+1)*16384}")
    setaddr(32, 34)


for i in range(4):
    baddr(i)
    if i < 3:
        a("s_add_u32 s36, s36, 1")
        a(f"s_branch LRINGD{i}")
        a.label(f"LRET{i+1}")
        a.vq += [("X", 2 * i, t) for t in range(8)] + [("X", 2 * i + 1, t) for t in range(8)]
    a.wait_vm_n(47)
    unit2(("a", 64 * i), ("a", 64 * i + 32), None, None,
          lambda t: ld("a", 64 * i, t, "K2", 0, " nt", ("BK", 2 * i, t)),
          lambda t: ld("a", 64 * i + 32, t, "K2", 1, " nt", ("BK", 2 * i + 1, t)))
a("s_mov_b32 s4, s60\ns_mov_b32 s5, s61")
a("v_mov_b32 v2, v51")
for d in range(4):
    sl = RING[d % 3]
    if d == 0:
        rka = lambda t: ld("v", sl, t, "V", 0, VPOL, ("X", 6, t))
        rkb = lambda t: ld("v", sl + 32, t, "V", 1, VPOL, ("X", 7, t))
    else:
        a(f"s_add_u32 s32, s93, {(d-1)*UNIT_STEP}")
        setaddr(32, 32)
        a(f"v_writelane_b32 v{VL}, s32, {d-1}")
        rka = lambda t: ldK("v", sl, t, f"P{d}")
        rkb = lambda t: ldV("v", sl, t, f"P{d}")
    a.wait_vm_n(47)
    unit2(("a", 64 * d), ("v", sl), lambda t: ("BK", 2 * d, t), lambda t: ("X", 2 * d, t), None, rka)
    unit2(("a", 64 * d + 32), ("v", sl + 32), lambda t: ("BK", 2 * d + 1, t), lambda t: ("X", 2 * d + 1, t), None, rkb)
a("s_mov_b32 s55, -1")
a("s_mov_b32 s94, 3")
a("s_mov_b32 s97, 7")
a("s_mov_b32 s37, -1")
a("s_branch LRING1")
a.label("LP2")
a("s_mov_b32 s3, 0")
a("s_mov_b32 s56, 192")
a("s_mov_b32 s54, -1")
a("s_mov_b32 s101, 0")
a("s_mov_b32 s36, 3")
a(f"s_mov_b32 s37, {OPT['cn']}")
a("s_and_b32 s3, s3, s36")
for i in range(9):
    a(f"s_mov_b32 s55, {THR0 + i*THRS}")
    a("s_add_u32 s36, s36, 1")
    a("s_branch LRINGGO")
    a.label(f"LRET{i+4}")
    a.vq = []
    if i > 0:
        def vwait():
            l0, l1 = a.newlabel("sw"), a.newlabel("sw")
            a("s_cmp_ge_u32 s101, 2")
            a(f"s_cbranch_scc1 {l0}")
            a("s_cmp_eq_u32 s101, 1")
            a(f"s_cbranch_scc1 {l1}")
            a("s_waitcnt vmcnt(0)")
            a.label(l1)
            a("s_waitcnt vmcnt(16)")
            a.label(l0)
            a("s_waitcnt vmcnt(32)")
        unit2(None, ("a", 32 * (i - 1)), hooks=(None, vwait), tt=52)
    if i < 8:
        a(f"s_add_u32 s34, s57, {i*16384}")
        setaddr(None, 34)
        a.wait_vm_n(55)
        unit2(("a", 32 * i), None, None, None, lambda t: ld("a", 32 * i, t, "V", 1, VPOL, None), tt=52)
        a("s_mov_b32 s101, 0")
a("s_mov_b32 s55, -1")
a("s_mov_b32 s37, -1")
a.label("LRINGGO")
a("s_cmp_eq_u32 s3, 0")
a("s_cbranch_scc1 LRING0")
a("s_cmp_eq_u32 s3, 1")
a("s_cbranch_scc1 LRING1")
a("s_branch LRING2")
a.label("LPASSEND")
stamp(1)
a(f"v_add_f32_dpp v{LS}, v{LS}, v{LS} row_half_mirror{DPPM}")
rows("v_add_f32", LS, TMP)
a(f"v_mul_f32 v22, s30, v{MS}")
a(f"v_mov_b32 v23, v{LS}")
a("v_bfe_u32 v40, v1, 3, 1")
a("v_lshlrev_b32 v41, 9, v40")
a("v_lshrrev_b32 v42, 4, v1")
a("v_lshl_add_u32 v41, v42, 7, v41")
a("v_and_b32 v42, 7, v1")
a("v_lshl_add_u32 v41, v42, 2, v41")
a("s_lshl_b32 s44, s24, 10")
a(f"s_add_u32 s44, s44, {CB1}")
a("v_add_u32 v41, s44, v41")
for r in range(4):
    a(f"ds_write_b32 v41, v{OA+r} offset:{32*r}")
a("s_lshl_b32 s44, s24, 3")
a(f"s_add_u32 s44, s44, {CS1}")
a("v_lshlrev_b32 v40, 5, v40")
a("v_add_u32 v40, s44, v40")
a("ds_write_b64 v40, v[22:23]")
a("v_lshlrev_b32 v40, 2, v0")
a(f"v_add_u32 v40, {LSV}, v40")
a(f"ds_write_b32 v40, v{VL}")
a.label("LCNT")
a("s_waitcnt vmcnt(0)")
a("v_readfirstlane_b32 s44, v49")
a("s_cmp_ge_u32 s44, 256")
a("s_cbranch_scc1 LCNTOK")
a("v_mov_b32 v48, 0")
a("buffer_load_dword v49, v48, s[20:23], 0 offen sc1")
retry("LCNT", "LCNTOK")
a.label("LCNTOK")
a("s_waitcnt lgkmcnt(0)")
a("s_barrier")
combine(CB1, CS1)
a(f"s_mul_i32 s44, s2, {X1S}")
a("s_add_u32 s44, s44, s39")
a("v_lshlrev_b32 v8, 2, v0")
a("buffer_store_dword v24, v8, s[12:15], s44 offen sc1")
a("s_lshl_b32 s45, s24, 6")
a("v_mov_b32 v9, s45")
a("s_bitcmp0_b32 s24, 0")
a("s_cbranch_scc0 LPUB1")
a("s_mov_b64 exec, 1")
a("buffer_store_dwordx2 v[26:27], v9, s[12:15], s44 offen offset:1024 sc1")
a("s_mov_b64 exec, -1")
a.label("LPUB1")
stamp(2)
a("s_cmp_lt_u32 s27, 18")
a("s_cbranch_scc1 LSTC")
a("s_cmp_lt_u32 s27, 30")
a("s_cbranch_scc0 LSTQ")
brole()
a("s_lshl_b32 s44, s46, 4")
a("s_lshl_b32 s45, s24, 2")
a("s_add_u32 s44, s44, s45")
a(f"s_mul_i32 s44, s44, {X1S}")
a("s_add_u32 s44, s44, s39")
a("v_lshrrev_b32 v8, 5, v1")
a("v_lshlrev_b32 v9, 7, v8")
a("v_add_u32 v9, 1024, v9")
a.label("LE1")
for p in range(4):
    a(f"buffer_load_dwordx2 {R('v', 28+2*p, 2)}, v9, s[12:15], s44 offen offset:{p*X1S} sc1")
for p in range(4):
    a(f"buffer_load_dwordx4 {R('v', 12+4*p)}, v3, s[12:15], s44 offen offset:{p*X1S} sc1")
a("s_waitcnt vmcnt(4)")
a("v_max3_f32 v40, v28, v30, v32")
a("v_max_f32 v40, v40, v34")
for p in range(4):
    a(f"v_sub_f32 v{28+2*p}, v{28+2*p}, v40")
for p in range(4):
    a(f"v_exp_f32 v{28+2*p}, v{28+2*p}")
a("v_mul_f32 v41, v29, v28")
for p in range(1, 4):
    a(f"v_fmac_f32 v41, v{29+2*p}, v{28+2*p}")
a("s_waitcnt vmcnt(0)")
for r in range(4):
    a(f"v_mul_f32 v{36+r}, v{12+r}, v28")
for p in range(1, 4):
    for r in range(4):
        a(f"v_fmac_f32 v{36+r}, v{12+4*p+r}, v{28+2*p}")
a("v_add_f32 v42, v36, v37")
a("v_add_f32 v43, v38, v39")
a("v_add_f32 v42, v42, v41")
a("v_cmp_u_f32 vcc, v42, v43")
a("s_cbranch_vccz LE1OK")
retry("LE1", "LE1OK")
a.label("LE1OK")
stamp(3)
a("s_lshl_b32 s44, s24, 10")
a(f"s_add_u32 s44, s44, {CB2}")
a("v_add_u32 v10, s44, v3")
a("ds_write_b128 v10, v[36:39]")
a("s_lshl_b32 s44, s24, 3")
a(f"s_add_u32 s44, s44, {CS2}")
a("v_lshlrev_b32 v8, 5, v8")
a("v_add_u32 v8, s44, v8")
a("ds_write_b64 v8, v[40:41]")
a("s_waitcnt lgkmcnt(0)")
a("s_barrier")
combine(CB2, CS2)
a("v_rcp_f32 v27, v27")
a("v_lshlrev_b32 v8, 1, v0")
a(f"v_add_u32 v8, {OB}, v8")
a("v_mul_f32 v24, v24, v27")
a("v_cvt_pk_bf16_f32 v24, v24, v24")
a("ds_write_b16 v8, v24")
a(f"s_mul_i32 s44, s24, {2*WOS}")
tile_addr(58, 59, base_sgpr=44, base=WO)
afrag_addr(57, base=OB)
a("s_waitcnt lgkmcnt(0)")
a("s_barrier")
a("s_cmp_eq_u32 s24, 3")
a("s_cbranch_scc1 LSTQ")


def b_issue(kk):
    s = 8 + 12 * (kk % 3)
    a(f"ds_read_b128 {R('v', s)}, v57 offset:{kk*64}")
    for t in range(2):
        a(f"ds_read_b64_tr_b16 {R('v', s+4+4*t, 2)}, v58 offset:{kk*1024+t*WOS}")
        a(f"ds_read_b64_tr_b16 {R('v', s+6+4*t, 2)}, v58 offset:{kk*1024+t*WOS+128}")


for kk in range(3):
    b_issue(kk)
for kk in range(8):
    a(f"s_waitcnt lgkmcnt({5*(min(8, kk+3)-kk-1)})")
    s = 8 + 12 * (kk % 3)
    for t in range(2):
        acc = R("v", 48 + 4 * t)
        a(f"v_mfma_f32_16x16x32_bf16 {acc}, {R('v', s)}, {R('v', s+4+4*t)}, {'0' if kk == 0 else acc}")
    if kk + 3 < 8:
        b_issue(kk + 3)
a("s_mul_i32 s44, s46, 2304")
a("s_mul_i32 s45, s47, 384")
a("s_add_u32 s44, s44, s45")
a("s_lshl_b32 s45, s24, 7")
a("s_add_u32 s44, s44, s45")
a("s_add_u32 s44, s44, s39")
a(f"s_add_u32 s44, s44, {X2}")
a("s_mov_b32 s48, 0xffff0000")
a("s_mov_b32 s49, 0xffff0000")
a("v_lshlrev_b32 v8, 2, v1")
a("v_cndmask_b32 v48, v48, v52, s[48:49]")
a("s_mov_b32 exec_hi, 0")
a("buffer_store_dword v48, v8, s[12:15], s44 offen sc1")
a("s_mov_b64 exec, -1")
stamp(4)
a("s_branch LSTQ")
a.label("LSTC")
a("s_cmp_eq_u32 s24, 3")
a("s_cbranch_scc0 LSTC1")
if OPT["npf"]:
    a("s_cmp_eq_u32 s31, 0")
    a("s_cbranch_scc0 LC_BAR")
    a("v_lshlrev_b32 v34, 7, v1")
    a("s_lshl_b32 s44, s26, 15")
    for n in range(OPT["npf"]):
        for i in range(4):
            a(f"s_add_u32 s45, s44, {(4+n)*UNIT_STEP+i*8192}")
            a(f"buffer_load_dword v35, v34, s[4:7], s45 offen{PFK}")
            a(f"buffer_load_dword v36, v34, s[8:11], s45 offen{PFV}")
    a("s_waitcnt vmcnt(0)")
a("s_branch LC_BAR")
a.label("LSTC1")
a("v_lshrrev_b32 v56, 4, v1")
a("v_mul_u32_u24 v56, 2304, v56")
a("v_and_b32 v57, 15, v1")
a("v_lshl_add_u32 v56, v57, 4, v56")
a("s_mul_i32 s48, s24, 768")
a("s_add_u32 s44, s48, s39")
a(f"s_add_u32 s44, s44, {X2}")
for g in range(1, 4):
    a(f"s_add_u32 s{44+g}, s44, {g*9216}")
a("v_bfe_u32 v58, v1, 4, 1")
a("v_lshlrev_b32 v58, 1, v58")
a("v_lshrrev_b32 v59, 5, v1")
a("v_add_u32 v58, v58, v59")
a("v_lshl_add_u32 v58, v57, 2, v58")
a("v_lshlrev_b32 v58, 2, v58")
a("v_add_u32 v58, s48, v58")
a("s_cmp_eq_u32 s31, 0")
a("s_cbranch_scc0 LC_X2")
srd(60, 98, 99, 1152)
a("v_lshrrev_b32 v59, 1, v58")
for c in range(3):
    a(f"buffer_load_ushort v{60+c}, v59, s[60:63], 0 offen offset:{c*128}")
a("s_waitcnt vmcnt(0)")
for c in range(3):
    a(f"v_lshlrev_b32 v{60+c}, 16, v{60+c}")
a("s_branch LC_X3")
a.label("LC_X2")
a(f"s_mov_b32 s48, {LB0+X4}")
for c in range(3):
    a(f"buffer_load_dword v{60+c}, v58, s[12:15], s48 offen offset:{c*256} sc1")
a.label("LC_X3")
a(f"v_add_u32 v58, {XBUF}, v58")
a.label("LE2")
for c in range(3):
    for g in range(4):
        a(f"buffer_load_dwordx4 {R('v', 8+16*c+4*g)}, v56, s[12:15], s{44+g} offen offset:{c*256} sc1")
for c in range(3):
    b = 8 + 16 * c
    a(f"s_waitcnt vmcnt({8-4*c})")
    for r in range(4):
        a(f"v_add_f32 v{b+r}, v{b+r}, v{b+4+r}")
        a(f"v_add_f32 v{b+8+r}, v{b+8+r}, v{b+12+r}")
    for r in range(4):
        a(f"v_add_f32 v{b+r}, v{b+r}, v{b+8+r}")
    swapreduce(b)
a("v_add_f32 v9, v8, v24")
a("v_cmp_u_f32 vcc, v9, v40")
a("s_cbranch_vccz LE2OK")
retry("LE2", "LE2OK")
a.label("LE2OK")
stamp(5)
for c in range(3):
    bf16r(8 + 16 * c, 8 + 16 * c)
for c in range(3):
    a(f"v_add_f32 v{60+c}, v{60+c}, v{8+16*c}")
for c in range(3):
    bf16r(60 + c, 60 + c)
for c in range(3):
    a(f"ds_write_b32 v58, v{60+c} offset:{c*256}")
a.label("LC_BAR")
a("v_lshlrev_b32 v8, 2, v1")
a(f"v_add_u32 v8, {XBUF}, v8")
a(f"s_mul_i32 s45, s24, {TS}")
tile_addr(58, 59, base_sgpr=45, base=WGU)
a("s_waitcnt lgkmcnt(0)")
a("s_barrier")
for i in range(9):
    a(f"ds_read_b32 v{XR+i}, v8 offset:{i*256}")
a("s_waitcnt lgkmcnt(0)")
layernorm()
gemv(18, 57, 58, 8, 60)
a("s_lshl_b32 s44, s24, 4")
a(f"s_add_u32 s44, s44, {HB}")
a("v_lshlrev_b32 v40, 1, v1")
a("v_add_u32 v40, s44, v40")
a("v_lshrrev_b32 v56, 4, v1")
a("v_lshlrev_b32 v57, 3, v56")
a("v_bfe_u32 v58, v1, 2, 2")
a("v_add_u32 v57, v57, v58")
a("v_mul_u32_u24 v57, 1152, v57")
a("v_and_b32 v58, 3, v1")
a("v_lshl_add_u32 v57, v58, 3, v57")
a("s_lshl_b32 s44, s24, 7")
a(f"s_add_u32 s44, s44, {WD}")
a("v_add_u32 v57, s44, v57")
a("v_lshlrev_b32 v56, 4, v56")
a(f"v_add_u32 v56, {HB}, v56")


def downB(i):
    for t in range(4):
        s = 8 + 16 * (i & 1) + 4 * t
        a(f"ds_read_b64_tr_b16 {R('v', s, 2)}, v57 offset:{i*512+t*32}")
        a(f"ds_read_b64_tr_b16 {R('v', s+2, 2)}, v57 offset:{i*512+t*32+4*1152}")


downB(0)
a(f"v_mov_b32_dpp v41, v60 row_shl:8{DPPM} bound_ctrl:1")
a("v_cvt_pk_bf16_f32 v41, v60, v41")
a("v_lshlrev_b32 v42, 16, v41")
a("v_and_b32 v41, 0xffff0000, v41")
a("v_max_f32 v42, 0, v42")
a("v_mul_f32 v41, v42, v41")
a("v_cvt_pk_bf16_f32 v41, v41, v41")
a("s_mov_b64 exec, 0xff")
a("ds_write_b16 v40, v41")
a("s_mov_b64 exec, -1")
a("v_lshrrev_b32 v58, 5, v1")
a("v_mul_u32_u24 v58, 18432, v58")
a("v_and_b32 v59, 31, v1")
a("v_lshl_add_u32 v58, v59, 2, v58")
a("s_mul_i32 s44, s28, 18")
a("s_add_u32 s44, s44, s27")
a("s_lshl_b32 s44, s44, 7")
a("s_mul_i32 s45, s24, 36864")
a("s_add_u32 s44, s44, s45")
a("s_add_u32 s44, s44, s39")
a(f"s_add_u32 s44, s44, {X3}")
a("s_mov_b32 s46, 0xffff0000")
a("s_mov_b32 s47, 0xffff0000")
a("s_mov_b32 s48, 0")
a("s_mov_b32 s49, -1")
a("s_waitcnt lgkmcnt(0)")
a("s_barrier")
a("ds_read_b128 v[60:63], v56")
downB(1)


def downG(i, wait):
    a(f"s_waitcnt lgkmcnt({wait})")
    for t in range(4):
        s = 8 + 16 * (i & 1) + 4 * t
        a(f"v_mfma_f32_16x16x32_bf16 {R('v', 40+4*t)}, v[60:63], {R('v', s)}, 0")
    a("v_cndmask_b32 v40, v40, v44, s[46:47]")
    a("v_cndmask_b32 v48, v48, v52, s[46:47]")
    a("v_cndmask_b32 v40, v40, v48, s[48:49]")
    a("buffer_store_dword v40, v58, s[12:15], s44 offen sc1")
    a(f"s_add_u32 s44, s44, {4*36864}")


downG(0, 8)
a("s_cmp_eq_u32 s24, 0")
a("s_cbranch_scc1 LDOWN3")
downG(1, 0)
a("s_branch LSTD")
a.label("LDOWN3")
a("s_waitcnt lgkmcnt(0)")
downB(2)
downG(1, 8)
downG(2, 0)
a.label("LSTD")
stamp(6)
a("s_lshl_b32 s50, s27, 3")
a("s_add_u32 s50, s50, s28")
a("s_cmp_lt_u32 s50, 18")
a("s_cbranch_scc0 LSTQ")
a("s_mul_i32 s44, s50, 18432")
a("s_mul_i32 s45, s24, 4608")
a("s_add_u32 s44, s44, s45")
a("s_add_u32 s44, s44, s39")
a(f"s_add_u32 s44, s44, {X3}")
a("s_add_u32 s45, s44, 4096")
a("v_bfe_u32 v58, v1, 4, 1")
a("v_lshlrev_b32 v58, 1, v58")
a("v_lshrrev_b32 v59, 5, v1")
a("v_add_u32 v58, v58, v59")
a("v_and_b32 v59, 7, v1")
a("v_lshl_add_u32 v58, v59, 2, v58")
a("v_lshlrev_b32 v58, 2, v58")
a("s_lshl_b32 s46, s24, 7")
a(f"s_add_u32 s46, s46, {FB}")
a("v_add_u32 v58, s46, v58")
for r in range(4):
    a(f"v_mov_b32 v{24+r}, 0")
a.label("LE3")
for i in range(4):
    a(f"buffer_load_dwordx4 {R('v', 8+4*i)}, v3, s[12:15], s44 offen offset:{i*1024} sc1")
a("s_mov_b32 exec_hi, 0")
a("buffer_load_dwordx4 v[24:27], v3, s[12:15], s45 offen sc1")
a("s_mov_b64 exec, -1")
a("s_waitcnt vmcnt(0)")
for r in range(4):
    a(f"v_add_f32 v{8+r}, v{8+r}, v{12+r}")
    a(f"v_add_f32 v{16+r}, v{16+r}, v{20+r}")
for r in range(4):
    a(f"v_add_f32 v{8+r}, v{8+r}, v{24+r}")
for r in range(4):
    a(f"v_add_f32 v{8+r}, v{8+r}, v{16+r}")
swapreduce(8)
a(f"v_add_f32_dpp v8, v8, v8 row_ror:8{DPPM}")
a("v_cmp_u_f32 vcc, v8, v8")
a("s_cbranch_vccz LE3OK")
retry("LE3", "LE3OK")
a.label("LE3OK")
stamp(7)
a("ds_write_b32 v58, v8")
a("v_lshlrev_b32 v8, 2, v1")
a(f"v_add_u32 v9, {FB}, v8")
a("s_lshl_b32 s45, s50, 7")
a(f"s_add_u32 s46, s45, {XBUF}")
a("v_add_u32 v10, s46, v8")
a("s_waitcnt lgkmcnt(0)")
a("s_barrier")
a("s_cmp_eq_u32 s24, 0")
a("s_cbranch_scc0 LSTQ")
a("s_mov_b32 exec_hi, 0")
for w in range(4):
    a(f"ds_read_b32 v{12+w}, v9 offset:{128*w}")
a("ds_read_b32 v16, v10")
a("s_waitcnt lgkmcnt(0)")
a("v_add_f32 v12, v12, v13")
a("v_add_f32 v14, v14, v15")
a("v_add_f32 v12, v12, v14")
bf16r(12, 12)
a("v_add_f32 v12, v12, v16")
a("v_cvt_pk_bf16_f32 v12, v12, v12")
a("s_cmp_eq_u32 s31, 0")
a("s_cbranch_scc0 LFINAL")
a("v_and_b32 v12, 0xffff0000, v12")
a("s_add_u32 s45, s45, s39")
a(f"s_add_u32 s45, s45, {X4}")
a("buffer_store_dword v12, v8, s[12:15], s45 offen sc1")
a("s_mov_b64 exec, -1")
a("s_branch LSTQ")
a.label("LFINAL")
a("s_lshl_b32 s45, s50, 6")
a("v_lshlrev_b32 v8, 1, v1")
a("buffer_store_short v12, v8, s[16:19], s45 offen")
a("s_mov_b64 exec, 1")
a("s_cmp_eq_u32 s50, 0")
a("s_cbranch_scc0 LNOEP")
a("v_mov_b32 v9, s29")
a("buffer_store_dword v9, v8, s[12:15], 0 offen sc1")
a.label("LNOEP")
a("s_mov_b64 exec, -1")
a.label("LSTQ")
stamp(8)
a("s_cmp_eq_u32 s31, 0")
a("s_cbranch_scc0 LDONE")
if OPT["npf"]:
    a("s_cmp_lt_u32 s27, 18")
    a("s_cbranch_scc1 LQ5")
    a("v_lshlrev_b32 v34, 7, v1")
    a("s_lshl_b32 s44, s26, 2")
    a("s_add_u32 s44, s44, s24")
    a("s_lshl_b32 s44, s44, 13")
    for n in range(OPT["npf"]):
        a(f"s_add_u32 s45, s44, {(4+n)*UNIT_STEP}")
        a(f"buffer_load_dword v35, v34, s[4:7], s45 offen{PFK}")
        a(f"buffer_load_dword v36, v34, s[8:11], s45 offen{PFV}")
a("s_cmp_ge_u32 s27, 24")
a("s_cbranch_scc0 LQ5")
a(f"s_add_u32 s44, s39, {X4}")
a("v_lshlrev_b32 v8, 2, v1")
a.label("LE4")
for i in range(9):
    a(f"buffer_load_dword v{XR+i}, v8, s[12:15], s44 offen offset:{i*256} sc1")
a("s_waitcnt vmcnt(0)")
a(f"v_add_f32 v9, v{XR}, v{XR+1}")
for i in range(2, 9):
    a(f"v_add_f32 v9, v9, v{XR+i}")
a("v_cmp_u_f32 vcc, v9, v9")
a("s_cbranch_vccz LE4OK")
retry("LE4", "LE4OK")
a.label("LE4OK")
stamp(9)
a(f"s_mov_b32 s54, {X5}")
a("s_call_b64 s[36:37], LQSTAGE")
a.label("LQ5")
if STAMPS:
    a("s_memrealtime s[58:59]")
    a("s_waitcnt lgkmcnt(0)")
    a("s_mov_b32 s74, s58")
a("s_mov_b32 s31, 1")
a(f"s_add_u32 s39, s39, {LSTRIDE}")
a("s_add_u32 s88, s88, 4096")
a("s_addc_u32 s89, s89, 0")
a(f"s_mov_b32 s96, {NP2}")
a("s_mov_b32 s91, 0")
a("s_mov_b32 s95, s97")
a("v_lshlrev_b32 v40, 2, v0")
a(f"v_add_u32 v40, {LSV}, v40")
a(f"ds_read_b32 v{VL}, v40")
qpoll_addr(X5)
a("s_waitcnt lgkmcnt(0)")
a("s_branch LQPOLL")

a.label("LQSTAGE")
a(f"s_mul_i32 s45, s24, {TS}")
tile_addr(58, 59, base_sgpr=45, base=WQ)
layernorm()
gemv(18, 57, 58, 8, 60)
a("s_lshl_b32 s44, s28, 3")
a("s_add_u32 s44, s44, s27")
a("s_sub_u32 s44, s44, 24")
a("s_lshl_b32 s44, s44, 2")
a("s_add_u32 s44, s44, s24")
a("s_lshl_b32 s44, s44, 7")
a("s_add_u32 s44, s44, s54")
a("v_lshlrev_b32 v8, 2, v1")
a("v_mov_b32 v11, s29")
a(f"v_mov_b32_dpp v9, v60 quad_perm:[1,1,3,3]{DPPM}")
a("v_cvt_pk_bf16_f32 v10, v60, v9")
a("s_mov_b64 exec, 0x5555")
a("buffer_store_dwordx2 v[10:11], v8, s[12:15], s44 offen sc1")
a("s_mov_b64 exec, -1")
a("s_setpc_b64 s[36:37]")

a.vq = qtags("R0") + qtags("R1") + qtags("R2")
for s in range(3):
    lp, lg, ln, lb, lx = (a.newlabel(x) for x in ("pool", "go", "noapp", "bonly", "next"))
    a.label(f"LRING{s}")
    a(f"s_mov_b32 s3, {s}")
    a("s_waitcnt lgkmcnt(0)")
    a("s_cmp_ge_u32 s90, s55")
    a("s_cbranch_scc1 LRINGX")
    a("s_cmp_ge_u32 s101, s37")
    a("s_cbranch_scc1 LRINGX")
    a("s_cmp_lt_u32 s91, s92")
    a(f"s_cbranch_scc0 {lp}")
    a(f"v_readlane_b32 s32, v{VL}, s91")
    a("s_add_u32 s91, s91, 1")
    a(f"s_branch {lg}")
    a.label(lp)
    a("s_cmp_lt_u32 s90, s96")
    a(f"s_cbranch_scc0 LDRAINE{s}")
    a("s_add_u32 s32, s90, s56")
    a("s_lshl_b32 s32, s32, 13")
    a(f"s_bitset0_b32 s97, {s}")
    a("s_cmp_ge_u32 s90, s54")
    a("s_mov_b32 s90, 1")
    a(f"s_cbranch_scc0 {ln}")
    a(f"s_bitset1_b32 s97, {s}")
    a("s_mov_b32 m0, s94")
    a("s_nop 0")
    a(f"v_writelane_b32 v{VL}, s32, m0")
    a("s_add_u32 s94, s94, 1")
    a("s_cmp_lt_u32 s94, 62")
    a(f"s_cbranch_scc1 {ln}")
    a("s_mov_b32 s90, 0x7fffffff")
    a(f"s_branch {lg}")
    a.label(ln)
    a("s_atomic_add s90, s[88:89], 0 glc")
    a.label(lg)
    setaddr(32, 32)
    a("s_add_u32 s101, s101, 1")
    a(f"s_bitcmp1_b32 s95, {s}")
    a(f"s_cbranch_scc0 {lb}")
    a.label(f"LRINGD{s}")
    unit("v", RING[s], f"R{s}", f"R{s}n")
    q1 = [(t[0].rstrip("n"), t[1], t[2]) for t in a.vq]
    a(f"s_branch LRING{(s+1)%3}")
    a.label(lb)
    a(f"s_bitset1_b32 s95, {s}")
    for t in range(8):
        ldK("v", RING[s], t, "x")
    for t in range(8):
        ldV("v", RING[s], t, "x")
    a(f"s_branch LRING{(s+1)%3}")
    a.vq = q1
a.label("LRINGX")
for k in range(1, 12):
    a(f"s_cmp_eq_u32 s36, {k}")
    a(f"s_cbranch_scc1 LRET{k}")
a("s_branch LRET12")

for s in range(3):
    a.label(f"LDRAINE{s}")
    a("v_mov_b32 v48, 0")
    a("buffer_load_dword v49, v48, s[20:23], 0 offen sc1")
    a("s_mov_b32 s93, 0")
    a("s_bcnt1_i32_b32 s44, s97")
    a("s_sub_u32 s92, s94, s44")
    a(f"s_branch LDRAIN{s}")
for s in range(3):
    a.label(f"LDRAIN{s}")
    lsk = a.newlabel("dsk")
    a(f"s_bitcmp1_b32 s95, {s}")
    a(f"s_cbranch_scc0 {lsk}")
    unit_drain(RING[s])
    a.label(lsk)
    a("s_add_u32 s93, s93, 1")
    a("s_cmp_eq_u32 s93, 3")
    a("s_cbranch_scc1 LPASSEND")
a("s_branch LDRAIN0")

a.label("LDONE")
if STAMPS:
    a("s_memrealtime s[58:59]")
    a("s_waitcnt lgkmcnt(0)")
    a("s_mov_b32 s87, s58")
    a("s_lshl_b32 s44, s2, 2")
    a("s_add_u32 s44, s44, s24")
    a("s_lshl_b32 s44, s44, 7")
    a(f"s_add_u32 s44, s44, {STAMP_OFF}")
    a("v_mov_b32 v8, 0")
    a("s_mov_b64 exec, 1")
    for i in range(24):
        a(f"v_mov_b32 v9, s{64+i}")
        a(f"buffer_store_dword v9, v8, s[12:15], s44 offen offset:{4*i}")
    a("v_mov_b32 v9, s100")
    a("buffer_store_dword v9, v8, s[12:15], s44 offen offset:96")
    for i, r in enumerate((57, 92, 57, 57, 57, 94)):
        a(f"v_mov_b32 v9, s{r}")
        a(f"buffer_store_dword v9, v8, s[12:15], s44 offen offset:{100+4*i}")
    if OPT["dbgout"]:
        a("s_or_b32 s44, s2, s24")
        a("s_cmp_eq_u32 s44, 0")
        a("s_cbranch_scc0 LEND")
        for i, r in enumerate((64, 65, 66, 69, 70, 71, 72, 76, 77, 78, 81, 82, 83, 87)):
            a(f"s_sub_u32 s44, s{r}, s100")
            a("v_mov_b32 v9, s44")
            a(f"buffer_store_dword v9, v8, s[20:23], 0 offen offset:{4+4*i}")
    a("s_waitcnt vmcnt(0)")
a.label("LEND")
a("s_endpgm")

hdr = open("cdna_kernels/" + NAME + ".s.ref").read().split("\n")
top = [l for l in hdr if l.startswith(";") and "@launch" not in l]
out = "\n".join(top) + "\n"
out += f"; @launch grid=(256,1,1) block=(256,1,1) lds={LDS_SIZE}\n"
out += f""".amdgcn_target "amdgcn-amd-amdhsa--gfx950"
.text
.globl {NAME}_kernel
.p2align 8
.type {NAME}_kernel,@function
"""
out += a.text()
out += f""".section .rodata,"a"
.p2align 6
.amdhsa_kernel {NAME}_kernel
  .amdhsa_next_free_vgpr 512
  .amdhsa_next_free_sgpr 102
  .amdhsa_accum_offset 256
  .amdhsa_group_segment_fixed_size 0
  .amdhsa_kernarg_size 96
  .amdhsa_user_sgpr_count 2
  .amdhsa_user_sgpr_kernarg_segment_ptr 1
  .amdhsa_system_sgpr_workgroup_id_x 1
.end_amdhsa_kernel
"""
open(sys.argv[1], "w").write(out)
```

```python
import sys, struct, math
from asmlib import Asm

NAME = "interleave_layers__gqa_block_cached__glu_gated_reglu__decode"
OPT = dict(stamps=0, p2rev=0, kvpol="nt", wpol="nt", wskip=0, vring="def", kring="nt", tfw=7, psleep=1, npf=0, thrp=80, pr=1110, eg=0, gv=8, xl=0, xs=0, padto=0, cn=3, vote=1, avpol="def", forcecls=-1, dbgout=0, pfk="nt", pfv="def")
for arg in sys.argv[2:]:
    k, v = arg.split("=")
    OPT[k] = int(v) if v.lstrip("-").isdigit() else v
STAMPS = OPT["stamps"]
KVPOL = "" if OPT["kvpol"] == "def" else " " + OPT["kvpol"]
WPOL = "" if OPT["wpol"] == "def" else " " + OPT["wpol"]
PFK = "" if OPT["pfk"] == "def" else " " + OPT["pfk"]
PFV = "" if OPT["pfv"] == "def" else " " + OPT["pfv"]


def f32(x):
    return "0x%08x" % struct.unpack("<I", struct.pack("<f", x))[0]


X0 = 0x1000
X5 = 0x9000
CTR = 0x11000
LB0 = 0x20000
LSTRIDE = 0xC0000
X1 = 0x0
X1S = 1280
X2 = 0x50000
X3 = 0x59000
X4 = 0xAA000
STAMP_OFF = 0x200000
WS_SIZE = 0x400000
NP1 = 19 * 64
TF = NP1 - OPT["tfw"] * 64
NP2 = 256 + TF
THR0 = 64
THRS = (NP2 * OPT["thrp"] // 100 - THR0) // 9
WGU = 0
TS = 18432
WD = 73728
FB = 110592
HB = 111104
WO = 0
WOS = 8192
WQ = 49152
SA = 122880
CB1 = SA
CS1 = SA + 4096
XB = SA
OB = 127488
LSV = 128000
ONES = 129024
KL = 130176
LDS_SIZE = 162944

UNIT_STEP = 524288
DPPM = " row_mask:0xf bank_mask:0xf"
a = Asm()
stamp_n = [0]


def stamp(i):
    if not STAMPS:
        return
    a("s_memrealtime s[58:59]")
    a("s_waitcnt lgkmcnt(0)")
    lab = a.newlabel("st")
    a(f"s_mov_b32 s{64+12+i}, s58")
    a("s_cmp_eq_u32 s31, 0")
    a(f"s_cbranch_scc0 {lab}")
    a(f"s_mov_b32 s{64+i}, s58")
    a.label(lab)


def sstamp(reg):
    if True:
        return
    a("s_memrealtime s[58:59]")
    a("s_waitcnt lgkmcnt(0)")
    a(f"s_mov_b32 s{reg}, s58")


def R(kind, base, n=4):
    return f"{kind}[{base}:{base+n-1}]"


def srd(d, lo, hi, size):
    a(f"s_mov_b32 s{d}, s{lo}")
    a(f"s_and_b32 s{d+1}, s{hi}, 0xffff")
    a(f"s_mov_b32 s{d+2}, {size}")
    a(f"s_mov_b32 s{d+3}, 0x20000")


def srd_role(d, lo, hi, size):
    a(f"s_cselect_b32 s{d+2}, {size}, 0")
    a(f"s_mov_b32 s{d}, s{lo}")
    a(f"s_and_b32 s{d+1}, s{hi}, 0xffff")
    a(f"s_mov_b32 s{d+3}, 0x20000")


def ld(kind, reg, t, src, half, pol, tag):
    srd_, vo = {"K": ("s[4:7]", "v2"), "K2": ("s[60:63]", "v51"), "V": ("s[8:11]", "v3")}[src]
    a(f"buffer_load_dwordx4 {R(kind, reg+4*t)}, {vo}, {srd_}, s{32+2*half+(t>>2)} offen offset:{(t&3)*1024}{pol}", tag=tag)


VPOL = "" if OPT["vring"] == "def" else " nt"


def ldK(kind, base, t, tag):
    ld(kind, base, t, "K", 0, " nt", (tag, "K", t))


def ldV(kind, base, t, tag):
    ld(kind, base + 32, t, "V", 1, ("" if OPT["avpol"] == "def" else " nt") if kind == "a" else VPOL, (tag, "V", t))


def adv():
    for r in range(32, 36):
        a(f"s_add_u32 s{r}, s{r}, {UNIT_STEP}")


def setaddr(k, v):
    if k is not None:
        if k != 32:
            a(f"s_mov_b32 s32, s{k}")
        a("s_add_u32 s33, s32, 4096")
    if v is not None:
        if v != 34:
            a(f"s_mov_b32 s34, s{v}")
        a("s_add_u32 s35, s34, 4096")


def burst(kind, base, tag):
    for t in range(8):
        ldK(kind, base, t, tag)
    for t in range(8):
        ldV(kind, base, t, tag)
    adv()


def waitq(tag, floor=0):
    if tag in a.vq:
        a.wait_vm(tag, floor)


def allreduce(op, v, t, first=0):
    steps = ["quad_perm:[1,0,3,2]", "quad_perm:[2,3,0,1]", "row_half_mirror", "row_mirror"]
    for s in steps[first:]:
        a(f"{op}_dpp v{v}, v{v}, v{v} {s}{DPPM}")
    rows(op, v, t)


def rows(op, v, t):
    a(f"v_mov_b32 v{t}, v{v}")
    a(f"v_permlane16_swap_b32 v{v}, v{t}")
    a(f"{op} v{v}, v{v}, v{t}")
    a(f"v_mov_b32 v{t}, v{v}")
    a(f"v_permlane32_swap_b32 v{v}, v{t}")
    a(f"{op} v{v}, v{v}, v{t}")


QE, QO, OA, MS, LS, NMC = 8, 12, 16, 20, 21, 22
DS_ = [24, 28, 32, 36]
TT = 40
TMP = 44


def unit2(K, V, kt=None, vt=None, rk=None, rv=None, hooks=None, tt=TT):
    if K is not None:
        if hooks:
            hooks[0]()
        for u in range(4):
            if kt:
                waitq(kt(2 * u + 1))
            d = R("v", DS_[u])
            a(f"v_mfma_f32_16x16x32_bf16 {d}, {R(K[0], K[1]+8*u)}, {R('v', QE)}, 0")
            a(f"v_mfma_f32_16x16x32_bf16 {d}, {R(K[0], K[1]+8*u+4)}, {R('v', QO)}, {d}")
            if rk:
                rk(2 * u)
                rk(2 * u + 1)
        order = [(0, 0), (1, 0), (2, 0), (0, 1), (1, 1), (2, 1), (0, 2), (1, 2), (3, 0), (2, 2), (0, 3), (3, 1),
                 (1, 3), (2, 3), (3, 2), None, (3, 3)]
        for o in order:
            if o is None:
                if V is not None:
                    a(f"v_max3_f32 v{TMP}, v{tt}, v{tt+1}, v{MS}")
                continue
            u, c = o
            qp = f"quad_perm:[{c},{c},{c},{c}]"
            if c == 0:
                a(f"v_mov_b32_dpp v{tt+u}, v{DS_[u]} {qp}{DPPM}")
            else:
                a(f"v_add_f32_dpp v{tt+u}, v{DS_[u]+c}, v{tt+u} {qp}{DPPM}")
    if V is None:
        return
    if K is None:
        a(f"v_max3_f32 v{TMP}, v{tt}, v{tt+1}, v{MS}")
    a(f"v_max3_f32 v{TMP}, v{TMP}, v{tt+2}, v{tt+3}")
    a(f"v_max_f32_dpp v{TMP}, v{TMP}, v{TMP} row_half_mirror{DPPM}")
    rows("v_max_f32", TMP, TMP + 1)
    a(f"v_sub_f32 v{TMP+1}, v{MS}, v{TMP}")
    a(f"v_mul_f32 v{TMP+1}, s30, v{TMP+1}")
    a(f"v_exp_f32 v{TMP+1}, v{TMP+1}")
    a(f"v_mov_b32 v{MS}, v{TMP}")
    a(f"v_mul_f32 v{NMC}, s30, v{TMP}")
    for u in range(4):
        a(f"v_fma_f32 v{tt+u}, v{tt+u}, s30, -v{NMC}")
    for u in range(4):
        a(f"v_exp_f32 v{tt+u}, v{tt+u}")
    a(f"v_mul_f32 v{LS}, v{LS}, v{TMP+1}")
    for r in range(4):
        a(f"v_mul_f32 v{OA+r}, v{OA+r}, v{TMP+1}")
    a(f"v_add_f32 v{TMP+2}, v{tt}, v{tt+1}")
    a(f"v_add_f32 v{TMP+3}, v{tt+2}, v{tt+3}")
    for u in range(4):
        a(f"v_cvt_pk_bf16_f32 v{tt+u}, v{tt+u}, v{tt+u}")
    a(f"v_add_f32 v{TMP+2}, v{TMP+2}, v{TMP+3}")
    a(f"v_add_f32 v{LS}, v{LS}, v{TMP+2}")

    def buildB(t):
        b = DS_[t & 3]
        p = tt + (t >> 1)
        for i in range(4):
            own = (i < 2) == ((t & 1) == 0)
            if own:
                a(f"v_and_b32 v{b+i}, v{p}, v{4+i}")
            else:
                sh = "row_shr:4" if (t & 1) == 0 else "row_shl:4"
                a(f"v_and_b32_dpp v{b+i}, v{p}, v{4+i} {sh}{DPPM} bound_ctrl:1")

    buildB(0)
    if hooks:
        hooks[1]()
    for t in range(8):
        if t + 1 < 8:
            buildB(t + 1)
        if vt:
            waitq(vt(t))
        a(f"v_mfma_f32_16x16x32_bf16 {R('v', OA)}, {R(V[0], V[1]+4*t)}, {R('v', DS_[t&3])}, {R('v', OA)}")
        if rv:
            rv(t)


def unit(kind, base, tag, reload_tag=None, hooks=None):
    rk = rv = None
    if reload_tag is not None:
        rk = lambda t: ldK(kind, base, t, reload_tag)
        rv = lambda t: ldV(kind, base, t, reload_tag)
    unit2((kind, base), (kind, base + 32), lambda t: (tag, "K", t), lambda t: (tag, "V", t), rk, rv, hooks)


probe_k = [0]


def probe():
    k = probe_k[0]
    probe_k[0] += 1
    for c in ((0, 1) if k & 1 else (1, 0)):
        a(f"s_add_u32 s50, s57, {(c ^ 1)*8192 + k*1152}")
        a("s_memtime s[52:53]")
        a("s_waitcnt lgkmcnt(0)")
        a("s_buffer_load_dword s51, s[8:11], s50")
        a("s_waitcnt lgkmcnt(0)")
        a("s_memtime s[50:51]")
        a("s_waitcnt lgkmcnt(0)")
        a("s_sub_u32 s50, s50, s52")
        a(f"s_min_u32 s{55+c}, s{55+c}, s50")


def qtags(tag):
    return [(tag, "K", t) for t in range(8)] + [(tag, "V", t) for t in range(8)]


RING = [64, 128, 192]


def bf16r(d, s):
    a(f"v_cvt_pk_bf16_f32 v{d}, v{s}, v{s}")
    a(f"v_and_b32 v{d}, 0xffff0000, v{d}")


def afrag_addr(v, base_sgpr=None, base=0):
    a(f"v_lshrrev_b32 v{v}, 4, v1")
    a(f"v_lshlrev_b32 v{v}, 4, v{v}")
    if base:
        a(f"v_add_u32 v{v}, {base}, v{v}")
    if base_sgpr is not None:
        a(f"v_add_u32 v{v}, s{base_sgpr}, v{v}")


def lng_addr():
    a("v_add_u32 v56, s44, v3")
    a("v_lshlrev_b32 v55, 1, v1")
    a("v_add_u32 v55, s44, v55")
    a("v_mov_b32 v57, s44")
    a(f"v_mov_b32 v54, {ONES}")
    a("s_mov_b32 s46, 0x00020002")
    a("s_mov_b32 s47, 0x00020002")
    a("v_cndmask_b32 v57, v57, v54, s[46:47]")
    a("v_lshrrev_b32 v54, 4, v1")
    a("v_lshl_add_u32 v57, v54, 4, v57")
    a("v_lshlrev_b32 v58, 3, v1")
    a("v_add_u32 v58, s45, v58")


def lngemv():
    S, nk, T, acc = 4, 18, 8, 60
    X = 45
    s, t, rs = 54, 55, 44
    f = []
    for i in range(4):
        f.append(f"v_lshlrev_b32 v{X+2*i}, 16, v{40+i}")
        f.append(f"v_and_b32 v{X+2*i+1}, 0xffff0000, v{40+i}")
    f.append(f"v_lshlrev_b32 v{X+8}, 16, v44")
    f.append(f"v_add_f32 v{s}, v{X}, v{X+1}")
    for i in range(2, 9):
        f.append(f"v_add_f32 v{s}, v{s}, v{X+i}")

    def red(v):
        for st in ("quad_perm:[1,0,3,2]", "quad_perm:[2,3,0,1]", "row_half_mirror", "row_mirror"):
            f.append(f"v_add_f32_dpp v{v}, v{v}, v{v} {st}{DPPM}")
        for sw in ("16", "32"):
            f.append(f"v_mov_b32 v{t}, v{v}")
            f.append(f"v_permlane{sw}_swap_b32 v{v}, v{t}")
            f.append(f"v_add_f32 v{v}, v{v}, v{t}")
    red(s)
    f.append(f"v_mul_f32 v{s}, {f32(1.0/576)}, v{s}")
    for i in range(9):
        f.append(f"v_sub_f32 v{X+i}, v{X+i}, v{s}")
    f.append(f"v_mul_f32 v{rs}, v{X}, v{X}")
    for i in range(1, 9):
        f.append(f"v_fmac_f32 v{rs}, v{X+i}, v{X+i}")
    red(rs)
    f.append(f"v_cvt_pk_bf16_f32 v{s}, v{s}, v{s}")
    f.append(f"v_and_b32 v{s}, 0xffff0000, v{s}")
    f.append(f"v_mul_f32 v{rs}, {f32(1.0/576)}, v{rs}")
    for op in (None, f"v_add_f32 v{rs}, {f32(1e-5)}, v{rs}", f"v_sqrt_f32 v{rs}, v{rs}"):
        if op:
            f.append(op)
        f.append(f"v_cvt_pk_bf16_f32 v{rs}, v{rs}, v{rs}")
        f.append(f"v_and_b32 v{rs}, 0xffff0000, v{rs}")
    f.append(f"v_rcp_f32 v{rs}, v{rs}")

    def issue(kk):
        q = T + 8 * (kk % S)
        a(f"ds_read_b128 {R('v', q)}, v57 offset:{kk*64}")
        a(f"ds_read_b64_tr_b16 {R('v', q+4, 2)}, v58 offset:{kk*1024}")
        a(f"ds_read_b64_tr_b16 {R('v', q+6, 2)}, v58 offset:{kk*1024+512}")

    a("ds_read_b128 v[40:43], v56")
    a("ds_read_u16 v44, v55 offset:1024")
    for kk in range(S):
        issue(kk)
    per = -(-len(f) // (nk + 1))
    for kk in range(nk):
        a(f"s_waitcnt lgkmcnt({3*(min(nk, kk+S)-kk-1)})")
        q = T + 8 * (kk % S)
        c = "0" if kk == 0 else R("v", acc)
        a(f"v_mfma_f32_16x16x32_bf16 {R('v', acc)}, {R('v', q)}, {R('v', q+4)}, {c}")
        if kk + S < nk:
            issue(kk + S)
        for _ in range(per):
            if f:
                a(f.pop(0))
    while f:
        a(f.pop(0))
    a(f"v_fma_f32 v60, -v{s}, v61, v60")
    a(f"v_mul_f32 v60, v60, v{rs}")


def retry(lab_again, lab_done):
    a("s_cmp_eq_u32 s38, 0")
    a(f"s_cbranch_scc1 {lab_done}")
    a("s_sub_u32 s38, s38, 1")
    if OPT["psleep"]:
        a(f"s_sleep {OPT['psleep']}")
    a(f"s_branch {lab_again}")


def combine(CB, CS):
    a("v_lshlrev_b32 v8, 2, v0")
    a(f"v_add_u32 v8, {CB}, v8")
    a("s_lshr_b32 s44, s24, 1")
    a("s_lshl_b32 s44, s44, 5")
    a(f"s_add_u32 s44, s44, {CS}")
    a("v_mov_b32 v9, s44")
    a("ds_read_b128 v[12:15], v9")
    a("ds_read_b128 v[16:19], v9 offset:16")
    for w in range(4):
        a(f"ds_read_b32 v{20+w}, v8 offset:{w*1024}")
    a("s_waitcnt lgkmcnt(4)")
    a("v_max3_f32 v26, v12, v14, v16")
    a("v_max_f32 v26, v26, v18")
    for w in range(4):
        a(f"v_sub_f32 v{12+2*w}, v{12+2*w}, v26")
    for w in range(4):
        a(f"v_exp_f32 v{12+2*w}, v{12+2*w}")
    a("v_mul_f32 v27, v13, v12")
    for w in range(1, 4):
        a(f"v_fmac_f32 v27, v{13+2*w}, v{12+2*w}")
    a("s_waitcnt lgkmcnt(0)")
    a("v_mul_f32 v24, v20, v12")
    for w in range(1, 4):
        a(f"v_fmac_f32 v24, v{20+w}, v{12+2*w}")


def qpoll_issue():
    a("buffer_load_dwordx4 v[24:27], v32, s[12:15], s45 offen sc1", tag="qp")
    a("buffer_load_dwordx4 v[28:31], v32, s[12:15], s45 offen offset:16 sc1", tag="qp")


def qpoll_addr(xoff):
    a("s_lshl_b32 s45, s25, 11")
    a(f"s_add_u32 s45, s45, {xoff}")
    a("v_bfe_u32 v32, v1, 3, 1")
    a("v_lshlrev_b32 v32, 10, v32")
    a("v_lshrrev_b32 v33, 4, v1")
    a("v_lshl_add_u32 v32, v33, 8, v32")
    a("v_bfe_u32 v33, v1, 1, 1")
    a("v_lshl_add_u32 v32, v33, 7, v32")
    a("v_and_b32 v33, 1, v1")
    a("v_lshl_add_u32 v32, v33, 5, v32")


def qpoll_check():
    a("v_cmp_ne_u32 s[46:47], s29, v25")
    a("v_cmp_ne_u32 s[48:49], s29, v27")
    a("v_cmp_ne_u32 s[50:51], s29, v29")
    a("v_cmp_ne_u32 s[52:53], s29, v31")
    a("s_or_b64 s[46:47], s[46:47], s[48:49]")
    a("s_or_b64 s[50:51], s[50:51], s[52:53]")
    a("s_or_b64 s[46:47], s[46:47], s[50:51]")


VL = 50


def unit_drain(base):
    def pwait(n0, n1, n2):
        l0, l1 = a.newlabel("dw"), a.newlabel("dw")
        a("s_cmp_eq_u32 s93, 0")
        a(f"s_cbranch_scc1 {l0}")
        a("s_cmp_eq_u32 s93, 1")
        a(f"s_cbranch_scc1 {l1}")
        a(f"s_waitcnt vmcnt({n2})")
        a.label(l1)
        a(f"s_waitcnt vmcnt({n1})")
        a.label(l0)
        a(f"s_waitcnt vmcnt({n0})")
    a.vq = []
    unit("v", base, "none", None, hooks=(lambda: pwait(41, 25, 9), lambda: pwait(33, 17, 1)))


def swapreduce(b):
    a(f"v_permlane32_swap_b32 v{b}, v{b+1}")
    a(f"v_permlane32_swap_b32 v{b+2}, v{b+3}")
    a(f"v_add_f32 v{b}, v{b}, v{b+1}")
    a(f"v_add_f32 v{b+2}, v{b+2}, v{b+3}")
    a(f"v_permlane16_swap_b32 v{b}, v{b+2}")
    a(f"v_add_f32 v{b}, v{b}, v{b+2}")


def ones_init():
    for r in range(4):
        a(f"v_mov_b32 v{16+r}, 0x3f803f80")
    a(f"v_add_u32 v20, {ONES}, v3")
    a("ds_write_b128 v20, v[16:19]")
    a("s_mov_b64 exec, 0xff")
    a("ds_write_b128 v20, v[16:19] offset:1024")
    a("s_mov_b64 exec, -1")


a.raw(f"{NAME}_kernel:")
a("s_cmp_ge_u32 s2, 256")
a("s_cbranch_scc1 LEND")
if STAMPS or OPT["padto"]:
    a("s_memrealtime s[100:101]")
a("s_load_dwordx16 s[64:79], s[0:1], 0")
a("s_load_dwordx8 s[80:87], s[0:1], 64")
a("v_and_b32 v1, 63, v0")
a("v_lshrrev_b32 v40, 6, v0")
a("v_readfirstlane_b32 s24, v40")
a("s_and_b32 s28, s2, 7")
a("s_lshr_b32 s27, s2, 3")
a("s_lshl_b32 s44, s28, 2")
a("s_add_u32 s27, s27, s44")
a("s_and_b32 s27, s27, 31")
a("s_lshr_b32 s25, s2, 4")
a("s_and_b32 s26, s2, 15")
a(f"s_mov_b32 s30, {f32(math.log2(math.e)/math.sqrt(128.0))}")
a("s_mov_b32 s31, 0")
a("s_mov_b32 s38, 400000")
a(f"s_mov_b32 s39, {LB0}")
a("s_mov_b32 s42, 0xf0f0f0f0")
a("s_mov_b32 s43, 0xf0f0f0f0")
a("s_lshl_b32 s44, s26, 2")
a("s_add_u32 s44, s44, s24")
a("s_lshl_b32 s32, s44, 13")
setaddr(32, 32)
a("s_lshl_b32 s57, s44, 14")
a(f"s_add_u32 s57, s57, {1344*8192}")
a("s_mov_b32 s55, -1")
a("s_mov_b32 s56, -1")
a("v_lshlrev_b32 v3, 4, v1")
a("v_bfe_u32 v40, v1, 2, 2")
a("v_lshlrev_b32 v2, 8, v40")
a("v_lshrrev_b32 v40, 4, v1")
a("v_lshl_add_u32 v2, v40, 6, v2")
a("v_and_b32 v40, 3, v1")
a("v_lshl_add_u32 v2, v40, 4, v2")
a("s_waitcnt lgkmcnt(0)")
a("s_load_dword s29, s[86:87], 0")
a("s_lshl_b32 s44, s25, 24")
a("s_add_u32 s4, s66, s44")
a("s_addc_u32 s5, s67, 0")
a("s_and_b32 s5, s5, 0xffff")
a("s_mov_b32 s6, 0x1000000")
a("s_mov_b32 s7, 0x20000")
a("s_add_u32 s8, s68, s44")
a("s_addc_u32 s9, s69, 0")
a("s_and_b32 s9, s9, 0xffff")
a("s_mov_b32 s10, 0x1000000")
a("s_mov_b32 s11, 0x20000")
srd(12, 86, 87, WS_SIZE)
a("s_cmp_ge_u32 s27, 24")
a("s_cbranch_scc0 LPRO1")
srd(60, 64, 65, 1152)
srd(92, 70, 71, 0 if OPT["wskip"] & 8 else 576 * 8192)
a("v_lshrrev_b32 v41, 3, v1")
a("v_lshlrev_b32 v40, 13, v41")
a("v_and_b32 v42, 7, v1")
a("v_lshl_add_u32 v40, v42, 4, v40")
a("s_lshl_b32 s46, s28, 3")
a("s_add_u32 s46, s46, s27")
a("s_sub_u32 s46, s46, 24")
a("s_lshl_b32 s44, s46, 7")
a(f"s_mul_i32 s45, s24, {144*8192}")
a("s_add_u32 s44, s44, s45")
for i in range(18):
    a(f"buffer_load_dwordx4 {R('v', 64+4*i)}, v40, s[92:95], s44 offen{WPOL}")
    a("s_add_u32 s44, s44, 65536")
a("buffer_load_dwordx4 v[8:11], v3, s[60:63], 0 offen")
a("buffer_load_dwordx4 v[12:15], v3, s[60:63], 0 offen offset:1024")
a("s_and_b32 s44, s46, 3")
a("s_or_b32 s44, s44, s24")
a("s_cmp_eq_u32 s44, 0")
a("s_cbranch_scc0 LPRO0")
a("v_lshlrev_b32 v40, 12, v1")
a("v_mov_b32 v36, 0\nv_mov_b32 v37, 0\nv_mov_b32 v38, 0\nv_mov_b32 v39, 0")
a("s_lshl_b32 s44, s46, 6")
a(f"s_add_u32 s44, s44, {CTR}")
a("s_mov_b64 exec, 3")
a("buffer_store_dwordx4 v[36:39], v40, s[12:15], s44 offen sc1")
a("s_mov_b64 exec, -1")
a.label("LPRO0")
a("v_lshrrev_b32 v40, 1, v42")
a(f"v_mul_u32_u24 v40, {TS}, v40")
a("v_and_b32 v43, 3, v41")
a("v_lshl_add_u32 v40, v43, 5, v40")
a("v_lshrrev_b32 v43, 2, v41")
a("v_lshl_add_u32 v40, v43, 9, v40")
a("v_and_b32 v42, 1, v42")
a("v_lshl_add_u32 v40, v42, 4, v40")
for k, reg in ((0, 41), (2, 42)):
    a("s_mul_i32 s44, s24, 18")
    a(f"s_add_u32 s44, s44, {k}")
    a("s_lshr_b32 s45, s44, 2")
    a("s_lshl_b32 s45, s45, 10")
    a("s_and_b32 s44, s44, 3")
    a("s_lshl_b32 s44, s44, 7")
    a("s_add_u32 s44, s44, s45")
    a(f"s_add_u32 s44, s44, {WQ}")
    a(f"v_add_u32 v{reg}, s44, v40")
ones_init()
a("s_waitcnt vmcnt(0) lgkmcnt(0)")
a("s_mul_i32 s29, s29, 0x9e3779b1")
a("s_add_u32 s29, s29, 0x7f4a7c15")
for i in range(18):
    a(f"ds_write_b128 v{41 + ((i>>1)&1)}, {R('v', 64+4*i)} offset:{(i>>2)*1024+(i&1)*128}")
a("s_waitcnt lgkmcnt(0)")
a("s_barrier")
a(f"s_mov_b32 s54, {X0}")
a("s_call_b64 s[36:37], LQSTAGE")
a("s_branch LPRO2")
a.label("LPRO1")
a("s_waitcnt lgkmcnt(0)")
ones_init()
a("s_mul_i32 s29, s29, 0x9e3779b1")
a("s_add_u32 s29, s29, 0x7f4a7c15")
a.label("LPRO2")
sstamp(55)
a.vq = []
burst("a", 0, "A0")
a("s_cmp_eq_u32 s24, 0")
a("s_cbranch_scc0 LPRO3")
a("v_mov_b32 v24, -1\nv_mov_b32 v25, -1\nv_mov_b32 v26, -1\nv_mov_b32 v27, -1")
a("s_mul_i32 s44, s2, 6144")
a(f"s_add_u32 s44, s44, {LB0}")
a("s_add_u32 s45, s44, 4096")
keep = list(a.vq)
for i in range(6):
    a(f"buffer_store_dwordx4 v[24:27], v3, s[12:15], s{44+(i>>2)} offen offset:{1024*(i&3)} sc1")
a.vq = keep
a.label("LPRO3")
srd(16, 82, 83, 1152)
srd(20, 84, 85, 256)
a("s_mov_b32 s98, s64")
a("s_mov_b32 s99, s65")
a("v_and_b32 v40, 1, v1")
a("v_lshlrev_b32 v40, 4, v40")
a("v_mov_b32 v41, 0xffff")
a("v_lshlrev_b32 v40, v40, v41")
for i in range(4):
    m = 0x03030303 << (2 * i)
    a(f"s_mov_b32 s40, 0x{m:08x}")
    a(f"s_mov_b32 s41, 0x{m:08x}")
    a(f"v_cndmask_b32 v{4+i}, 0, v40, s[40:41]")
a("s_lshl_b32 s44, s25, 8")
a(f"s_add_u32 s44, s44, {CTR}")
a("s_add_u32 s88, s86, s44")
a("s_addc_u32 s89, s87, 0")
sstamp(56)
keep = list(a.vq)
a("s_cmp_lt_u32 s27, 18")
a("s_cbranch_scc0 LWB")
srd(60, 76, 77, 0 if OPT["wskip"] & 2 else 576 * 9216)
srd(92, 78, 79, 0 if OPT["wskip"] & 2 else 576 * 9216)
a("v_lshrrev_b32 v41, 2, v1")
a("v_and_b32 v42, 3, v1")
a("v_mul_u32_u24 v40, 9216, v41")
a("v_lshl_add_u32 v40, v42, 4, v40")
a("s_mul_i32 s46, s28, 18")
a("s_add_u32 s46, s46, s27")
a("s_lshl_b32 s44, s46, 6")
a(f"s_mul_i32 s45, s24, {144*9216}")
a("s_add_u32 s44, s44, s45")
for i in range(9):
    a(f"buffer_load_dwordx4 {R('v', 64+8*i)}, v40, s[60:63], s44 offen{WPOL}")
    a(f"buffer_load_dwordx4 {R('v', 68+8*i)}, v40, s[92:95], s44 offen{WPOL}")
    a(f"s_add_u32 s44, s44, {16*9216}")
a(f"v_mul_u32_u24 v43, {TS}, v42")
a("v_and_b32 v42, 3, v41")
a("v_lshl_add_u32 v43, v42, 5, v43")
a("v_bfe_u32 v42, v41, 2, 1")
a("v_lshl_add_u32 v43, v42, 9, v43")
a("v_lshrrev_b32 v42, 3, v41")
a("v_lshl_add_u32 v43, v42, 7, v43")
for k, reg in ((1, 34), (0, 43)):
    a("s_mul_i32 s44, s24, 9")
    a(f"s_add_u32 s44, s44, {k}")
    a("s_lshr_b32 s45, s44, 1")
    a("s_lshl_b32 s45, s45, 10")
    a("s_and_b32 s44, s44, 1")
    a("s_lshl_b32 s44, s44, 8")
    a("s_add_u32 s44, s44, s45")
    a(f"v_add_u32 v{reg}, s44, v43")
srd(60, 80, 81, 0 if OPT["wskip"] & 4 else 4608 * 1152)
a(f"s_mul_i32 s44, s46, {32*1152}")
a("s_mul_i32 s45, s24, 9216")
a("s_add_u32 s44, s44, s45")
a("s_add_u32 s45, s44, 4096")
a("s_add_u32 s46, s44, 8192")
for i in range(9):
    a(f"buffer_load_dwordx4 {R('v', 136+4*i)}, v3, s[60:63], s{44+(i>>2)} offen offset:{(i&3)*1024}{WPOL}")
a("s_branch LWDONE")
a.label("LWB")
a("s_cmp_lt_u32 s27, 30")
a("s_cbranch_scc0 LWDONE")
srd(60, 72, 73, 0 if OPT["wskip"] & 1 else 4096 * 1152)
a("v_lshrrev_b32 v41, 4, v1")
a("v_and_b32 v42, 15, v1")
a("v_mul_u32_u24 v40, 1152, v41")
a("v_lshl_add_u32 v40, v42, 4, v40")


def brole():
    a("s_sub_u32 s47, s27, 18")
    a("s_lshl_b32 s46, s28, 1")
    a("s_cmp_ge_u32 s47, 6")
    a("s_addc_u32 s46, s46, 0")
    a("s_cmp_ge_u32 s47, 6")
    a("s_cselect_b32 s48, 6, 0")
    a("s_sub_u32 s47, s47, s48")


brole()
a("s_lshl_b32 s44, s46, 8")
a("s_lshl_b32 s45, s24, 6")
a("s_add_u32 s44, s44, s45")
a("s_mul_i32 s44, s44, 1152")
a("s_mul_i32 s45, s47, 192")
a("s_add_u32 s44, s44, s45")
a("s_mov_b32 exec_lo, 0x0fff0fff")
a("s_mov_b32 exec_hi, 0x0fff0fff")
for i in range(16):
    a(f"buffer_load_dwordx4 {R('v', 64+4*i)}, v40, s[60:63], s44 offen{WPOL}")
    a(f"s_add_u32 s44, s44, {4*1152}")
a("s_mov_b64 exec, -1")
a("v_lshrrev_b32 v43, 1, v42")
a(f"v_mul_u32_u24 v43, {WOS}, v43")
a("v_lshl_add_u32 v43, v41, 5, v43")
a("v_and_b32 v42, 1, v42")
a("v_lshl_add_u32 v43, v42, 4, v43")
a("s_lshl_b32 s45, s24, 11")
a("v_add_u32 v43, s45, v43")
a.label("LWDONE")
a.vq = keep
sstamp(57)
PR = str(OPT["pr"]).zfill(4)
for _ in range(int(PR[0])):
    probe()
a.wait_vm_n(30)
burst("a", 64, "A1")
for _ in range(int(PR[1])):
    probe()
a.wait_vm_n(30)
burst("a", 128, "A2")
for _ in range(int(PR[2])):
    probe()
qpoll_addr(X0)
a.wait_vm_n(40)
qpoll_issue()
burst("a", 192, "A3")
for _ in range(int(PR[3])):
    probe()
a.wait_vm_n(50)
a("s_cmp_lt_u32 s27, 18")
a("s_cbranch_scc0 LWB2")
for i in range(9):
    a(f"ds_write_b128 v{34 if i & 1 else 43}, {R('v', 64+8*i)} offset:{(i>>1)*1024}")
    a(f"ds_write_b128 v{34 if i & 1 else 43}, {R('v', 68+8*i)} offset:{(i>>1)*1024+16}")
a("s_mul_i32 s44, s24, 9216")
a(f"s_add_u32 s44, s44, {WD}")
a("v_add_u32 v40, s44, v3")
for i in range(9):
    a(f"ds_write_b128 v40, {R('v', 136+4*i)} offset:{i*1024}")
a("s_branch LWDONE2")
a.label("LWB2")
a("s_cmp_lt_u32 s27, 30")
a("s_cbranch_scc0 LWDONE2")
a("s_mov_b32 exec_lo, 0x0fff0fff")
a("s_mov_b32 exec_hi, 0x0fff0fff")
for i in range(16):
    a(f"ds_write_b128 v43, {R('v', 64+4*i)} offset:{(i&1)*512+((i>>1)&3)*128+(i>>3)*1024}")
a("s_mov_b64 exec, -1")
a.label("LWDONE2")
a(f"v_mov_b32 v{VL}, 0")
a("s_mov_b32 s91, 0")
a("s_mov_b32 s92, 0")
a("s_mov_b32 s94, 0")
a("s_mov_b32 s95, 7")
a(f"s_mov_b32 s96, {NP1}")
a("s_waitcnt lgkmcnt(0)")
a.wait_vm("qp")
if STAMPS:
    a("s_memrealtime s[58:59]")
    a("s_waitcnt lgkmcnt(0)")
    a("s_mov_b32 s75, s58")
qpoll_check()
a("s_cbranch_scc0 LQREADY")

a.label("LQPOLL")
qpoll_issue()
a("s_waitcnt vmcnt(0)")
qpoll_check()
a("s_cbranch_scc0 LQREADY")
retry("LQPOLL", "LQREADY")
a.label("LQREADY")
a("s_mov_b32 s90, 1")
a("s_atomic_add s90, s[88:89], 0 glc")
for i in range(4):
    a(f"v_cndmask_b32 v{QE+i}, v{24+2*i}, 0, s[42:43]")
    a(f"v_cndmask_b32 v{QO+i}, 0, v{24+2*i}, s[42:43]")
for r in range(4):
    a(f"v_mov_b32 v{OA+r}, 0")
a(f"v_mov_b32 v{MS}, {f32(-1e30)}")
a(f"v_mov_b32 v{LS}, 0")
stamp(0)
a("s_cmp_eq_u32 s31, 0")
a("s_cbranch_scc0 LP2")
if OPT["vote"]:
    a("s_getreg_b32 s47, hwreg(HW_REG_XCC_ID)")
    a("s_bfe_u32 s47, s47, 0x10002")
    a("s_sub_i32 s44, s55, s56")
    a("s_min_i32 s44, s44, 300")
    a("s_max_i32 s44, s44, -300")
    a("s_sub_i32 s45, 0, s44")
    a("s_cmp_eq_u32 s47, 0")
    a("s_cselect_b32 s44, s44, s45")
    a("s_mov_b32 s46, s44")
    a("s_atomic_add s46, s[88:89], 12 glc")
    a("s_waitcnt lgkmcnt(0)")
    a("s_add_i32 s44, s44, s46")
    a("s_cmp_gt_i32 s44, 0")
    a("s_cselect_b32 s44, 1, 0")
    a("s_xor_b32 s44, s44, s47")
else:
    a("s_cmp_gt_u32 s55, s56")
    a("s_cselect_b32 s44, 1, 0")
if OPT["forcecls"] == 2:
    a("s_xor_b32 s44, s44, 1")
a("s_lshl_b32 s45, s44, 2")
a("s_add_u32 s45, s45, 4")
a("s_mov_b32 s46, 1")
a("s_atomic_add s46, s[88:89], s45 glc")
a("s_waitcnt lgkmcnt(0)")
a("s_cmp_lt_u32 s46, 32")
a("s_cbranch_scc1 LBUN")
a("s_xor_b32 s44, s44, 1")
a("s_xor_b32 s45, s45, 12")
a("s_mov_b32 s46, 1")
a("s_atomic_add s46, s[88:89], s45 glc")
a("s_waitcnt lgkmcnt(0)")
a.label("LBUN")
a("s_lshl_b32 s40, s46, 1")
a("s_sub_u32 s40, s40, s44")
a("s_add_u32 s40, s40, 1473")
a("s_lshl_b32 s40, s40, 13")
a("s_lshr_b32 s45, s46, 4")
a("s_xor_b32 s44, s44, s45")
a("s_lshl_b32 s57, s46, 4")
a("s_add_u32 s57, s57, s44")
a("s_add_u32 s57, s57, 1536")
a("s_lshl_b32 s57, s57, 13")
a("s_mov_b32 s55, -1")
a("s_mov_b32 s37, -1")
a("s_mov_b32 s56, 256")
a(f"s_mov_b32 s54, {TF}")
a("s_mov_b32 s36, 0")
a("s_mov_b32 s101, 0")
a("s_mov_b32 s97, 0")
a("s_mov_b32 s41, 0")
a("s_cmp_eq_u32 s24, 0")
a("s_cbranch_scc0 LNOCNT")
a("s_mov_b32 s48, 1")
a("s_atomic_add s48, s[84:85], 0")
a.label("LNOCNT")
a.vq = qtags("A3")


def baddr(i):
    a(f"s_add_u32 s32, s57, {2*i*16384}")
    a(f"s_add_u32 s34, s57, {(2*i+1)*16384}")
    setaddr(32, 34)


def draw(s, exhausted):
    ln, lg = a.newlabel("noapp"), a.newlabel("go")
    a("s_cmp_lt_u32 s90, s96")
    a(f"s_cbranch_scc0 {exhausted}")
    a("s_add_u32 s32, s90, s56")
    a("s_lshl_b32 s32, s32, 13")
    a(f"s_bitset0_b32 s97, {s}")
    a("s_cmp_ge_u32 s90, s54")
    a(f"s_cbranch_scc0 {ln}")
    a(f"s_bitset1_b32 s97, {s}")
    a("s_mov_b32 m0, s94")
    a("s_nop 0")
    a(f"v_writelane_b32 v{VL}, s32, m0")
    a("s_add_u32 s94, s94, 1")
    a("s_cmp_lt_u32 s94, 62")
    a(f"s_cbranch_scc1 {ln}")
    a("s_mov_b32 s90, 0x7fffffff")
    a(f"s_branch {lg}")
    a.label(ln)
    if OPT["eg"]:
        a(f"s_add_u32 s90, s90, {OPT['eg']}")
        a("s_cmp_ge_u32 s90, s96")
        a("s_cselect_b32 s41, 1, 0")
        a(f"s_cbranch_scc1 {lg}")
    a("s_mov_b32 s90, 1")
    a("s_atomic_add s90, s[88:89], 0 glc")
    a.label(lg)


def ticket_ready():
    if OPT["eg"]:
        lk = a.newlabel("tk")
        a("s_cmp_eq_u32 s41, 0")
        a(f"s_cbranch_scc1 {lk}")
        a(f"s_waitcnt vmcnt({OPT['gv']})")
        a("s_sub_u32 s41, s41, 1")
        a("s_mov_b32 s90, 1")
        a("s_atomic_add s90, s[88:89], 0 glc")
        a.label(lk)
    a("s_waitcnt lgkmcnt(0)")


for i in range(4):
    baddr(i)
    if i < 3:
        a.wait_vm_n(47)
        for hf in range(2):
            for t in range(8):
                ld("v", RING[i] + 32 * hf, t, "V", hf, VPOL, ("X", 2 * i + hf, t))
    a.wait_vm_n(47)
    unit2(("a", 64 * i), ("a", 64 * i + 32), lambda t: (f"A{i}", "K", t), lambda t: (f"A{i}", "V", t),
          lambda t: ld("a", 64 * i, t, "K", 0, " nt", ("BK", 2 * i, t)),
          lambda t: ld("a", 64 * i + 32, t, "K", 1, " nt", ("BK", 2 * i + 1, t)))
for d in range(4):
    sl = RING[d % 3]
    if d == 0:
        rka = lambda t: ld("v", sl, t, "V", 0, VPOL, ("X", 6, t))
        rkb = lambda t: ld("v", sl + 32, t, "V", 1, VPOL, ("X", 7, t))
    else:
        if d == 1:
            setaddr(40, 40)
        else:
            le, lc = a.newlabel("dex"), a.newlabel("dco")
            ticket_ready()
            draw(d % 3, le)
            a(f"s_branch {lc}")
            a.label(le)
            a(f"s_bitset0_b32 s95, {d % 3}")
            a("s_mov_b32 s32, 0x1000000")
            a.label(lc)
            setaddr(32, 32)
        rka = lambda t: ldK("v", sl, t, f"P{d}")
        rkb = lambda t: ldV("v", sl, t, f"P{d}")
    a.wait_vm_n(47)
    unit2(("a", 64 * d), ("v", sl), lambda t: ("BK", 2 * d, t), lambda t: ("X", 2 * d, t), None, rka)
    unit2(("a", 64 * d + 32), ("v", sl + 32), lambda t: ("BK", 2 * d + 1, t), lambda t: ("X", 2 * d + 1, t), None, rkb)
a("s_lshl_b32 s44, s24, 13")
a(f"s_add_u32 s44, s44, {KL}")
a("v_add_u32 v40, s44, v3")
waitq(("P1", "K", 7))
for t in range(8):
    a(f"ds_write_b128 v40, {R('v', RING[1]+4*t)} offset:{t*1024}")
a("s_branch LRING1")
a.label("LP2")
a("s_mov_b32 s3, 0")
a("s_mov_b32 s56, 0")
a("s_mov_b32 s41, 0")
a("s_mov_b32 s54, -1")
a("s_mov_b32 s101, 0")
a("s_mov_b32 s36, 0")
a(f"s_mov_b32 s37, {OPT['cn']}")
a("s_and_b32 s3, s3, s36")
for i in range(10):
    a(f"s_mov_b32 s55, {THR0 + i*THRS}")
    a("s_add_u32 s36, s36, 1")
    a("s_branch LRINGGO")
    a.label(f"LRET{i+1}")
    a.vq = []
    if i > 0:
        def vwait():
            l0, l1 = a.newlabel("sw"), a.newlabel("sw")
            a("s_cmp_ge_u32 s101, 2")
            a(f"s_cbranch_scc1 {l0}")
            a("s_cmp_eq_u32 s101, 1")
            a(f"s_cbranch_scc1 {l1}")
            a("s_waitcnt vmcnt(0)")
            a.label(l1)
            a("s_waitcnt vmcnt(16)")
            a.label(l0)
            a("s_waitcnt vmcnt(32)")
        if i == 8:
            a("s_lshl_b32 s44, s24, 13")
            a(f"s_add_u32 s44, s44, {KL}")
            a("v_add_u32 v40, s44, v3")
            for t in range(8):
                a(f"ds_read_b128 {R('a', 4*t)}, v40 offset:{t*1024}")
        unit2(None, ("a", 32 * ((i - 1) & 7)), hooks=(None, vwait), tt=52)
    if i < 9:
        if i < 8:
            a(f"s_add_u32 s34, s57, {i*16384}")
            setaddr(None, 34)
        else:
            setaddr(None, 40)
            a("s_waitcnt lgkmcnt(0)")
        a.wait_vm_n(55)
        unit2(("a", 32 * (i & 7)), None, None, None, lambda t: ld("a", 32 * (i & 7), t, "V", 1, VPOL, None), tt=52)
        a("s_mov_b32 s101, 0")
a("s_mov_b32 s55, -1")
a("s_mov_b32 s37, -1")
a.label("LRINGGO")
a("s_cmp_eq_u32 s3, 0")
a("s_cbranch_scc1 LRING0")
a("s_cmp_eq_u32 s3, 1")
a("s_cbranch_scc1 LRING1")
a("s_branch LRING2")
a.label("LPASSEND")
stamp(1)
a(f"v_add_f32_dpp v{LS}, v{LS}, v{LS} row_half_mirror{DPPM}")
rows("v_add_f32", LS, TMP)
a(f"v_mul_f32 v22, s30, v{MS}")
a(f"v_mov_b32 v23, v{LS}")
a("v_bfe_u32 v40, v1, 3, 1")
a("v_lshlrev_b32 v41, 9, v40")
a("v_lshrrev_b32 v42, 4, v1")
a("v_lshl_add_u32 v41, v42, 7, v41")
a("v_and_b32 v42, 7, v1")
a("v_lshl_add_u32 v41, v42, 2, v41")
a("s_lshl_b32 s44, s24, 10")
a(f"s_add_u32 s44, s44, {CB1}")
a("v_add_u32 v41, s44, v41")
for r in range(4):
    a(f"ds_write_b32 v41, v{OA+r} offset:{32*r}")
a("s_lshl_b32 s44, s24, 3")
a(f"s_add_u32 s44, s44, {CS1}")
a("v_lshlrev_b32 v40, 5, v40")
a("v_add_u32 v40, s44, v40")
a("ds_write_b64 v40, v[22:23]")
a("v_lshlrev_b32 v40, 2, v0")
a(f"v_add_u32 v40, {LSV}, v40")
a(f"ds_write_b32 v40, v{VL}")
a.label("LCNT")
a("s_waitcnt vmcnt(0)")
a("v_readfirstlane_b32 s44, v49")
a("s_cmp_ge_u32 s44, 256")
a("s_cbranch_scc1 LCNTOK")
a("v_mov_b32 v48, 0")
a("buffer_load_dword v49, v48, s[20:23], 0 offen sc1")
retry("LCNT", "LCNTOK")
a.label("LCNTOK")
a("s_waitcnt lgkmcnt(0)")
a("s_barrier")
combine(CB1, CS1)
a(f"s_mul_i32 s44, s2, {X1S}")
a("s_add_u32 s44, s44, s39")
a("v_lshlrev_b32 v8, 2, v0")
a("buffer_store_dword v24, v8, s[12:15], s44 offen sc1")
a("s_lshl_b32 s45, s24, 6")
a("v_mov_b32 v9, s45")
a("s_bitcmp0_b32 s24, 0")
a("s_cbranch_scc0 LPUB1")
a("s_mov_b64 exec, 1")
a("buffer_store_dwordx2 v[26:27], v9, s[12:15], s44 offen offset:1024 sc1")
a("s_mov_b64 exec, -1")
a.label("LPUB1")
stamp(2)
a("s_cmp_lt_u32 s27, 18")
a("s_cbranch_scc1 LSTC")
a("s_cmp_lt_u32 s27, 30")
a("s_cbranch_scc0 LSTQ")
brole()
a(f"s_mul_i32 s48, s46, {16*X1S}")
a("s_add_u32 s48, s48, s39")
for g in range(1, 4):
    a(f"s_add_u32 s{48+g}, s48, {g*4*X1S}")
a("v_lshlrev_b32 v8, 2, v0")
a("v_and_b32 v9, 15, v1")
a(f"v_mul_u32_u24 v9, {X1S}, v9")
a("s_lshr_b32 s44, s24, 1")
a("s_lshl_b32 s44, s44, 7")
a("v_add_u32 v9, s44, v9")
a("v_lshlrev_b32 v10, 1, v0")
a(f"v_add_u32 v10, {OB}, v10")
a(f"s_mul_i32 s44, s24, {2*WOS}")
a("v_lshlrev_b32 v58, 3, v1")
a("v_add_u32 v58, s44, v58")
afrag_addr(57, base=OB)
a.label("LE1")
a("buffer_load_dwordx2 v[28:29], v9, s[12:15], s48 offen offset:1024 sc1")
for p in range(16):
    a(f"buffer_load_dword v{12+p}, v8, s[12:15], s{48+(p>>2)} offen offset:{(p&3)*X1S} sc1")
a("s_waitcnt vmcnt(16)")
ROWRED = ("quad_perm:[1,0,3,2]", "quad_perm:[2,3,0,1]", "row_half_mirror", "row_mirror")
a(f"v_max_f32_dpp v30, v28, v28 {ROWRED[0]}{DPPM}")
for st in ROWRED[1:]:
    a(f"v_max_f32_dpp v30, v30, v30 {st}{DPPM}")
a("v_sub_f32 v28, v28, v30")
a("v_exp_f32 v28, v28")
a("v_mul_f32 v29, v29, v28")
for st in ROWRED:
    a(f"v_add_f32_dpp v29, v29, v29 {st}{DPPM}")
a("v_rcp_f32 v29, v29")
a("v_mul_f32 v28, v28, v29")
a("s_waitcnt vmcnt(0)")
for p in range(16):
    op = "v_mul_f32_dpp" if p < 4 else "v_fmac_f32_dpp"
    a(f"{op} v{32+(p&3)}, v28, v{12+p} row_newbcast:{p}{DPPM}")
a("v_add_f32 v32, v32, v33")
a("v_add_f32 v34, v34, v35")
a("v_add_f32 v32, v32, v34")
a("v_cmp_u_f32 vcc, v32, v32")
a("s_cbranch_vccz LE1OK")
retry("LE1", "LE1OK")
a.label("LE1OK")
stamp(3)
a("v_cvt_pk_bf16_f32 v32, v32, v32")
a("ds_write_b16 v10, v32")
a("s_waitcnt lgkmcnt(0)")
a("s_barrier")
a("s_cmp_eq_u32 s24, 3")
a("s_cbranch_scc1 LSTQ")


def b_issue(kk):
    s = 8 + 12 * (kk % 3)
    a(f"ds_read_b128 {R('v', s)}, v57 offset:{kk*64}")
    for t in range(2):
        a(f"ds_read_b64_tr_b16 {R('v', s+4+4*t, 2)}, v58 offset:{kk*1024+t*WOS}")
        a(f"ds_read_b64_tr_b16 {R('v', s+6+4*t, 2)}, v58 offset:{kk*1024+t*WOS+512}")


for kk in range(3):
    b_issue(kk)
for kk in range(8):
    a(f"s_waitcnt lgkmcnt({5*(min(8, kk+3)-kk-1)})")
    s = 8 + 12 * (kk % 3)
    for t in range(2):
        acc = R("v", 48 + 4 * t)
        a(f"v_mfma_f32_16x16x32_bf16 {acc}, {R('v', s)}, {R('v', s+4+4*t)}, {'0' if kk == 0 else acc}")
    if kk + 3 < 8:
        b_issue(kk + 3)
a("s_mul_i32 s44, s46, 2304")
a("s_mul_i32 s45, s47, 384")
a("s_add_u32 s44, s44, s45")
a("s_lshl_b32 s45, s24, 7")
a("s_add_u32 s44, s44, s45")
a("s_add_u32 s44, s44, s39")
a(f"s_add_u32 s44, s44, {X2}")
a("s_mov_b32 s48, 0xffff0000")
a("s_mov_b32 s49, 0xffff0000")
a("v_lshlrev_b32 v8, 2, v1")
a("v_cndmask_b32 v48, v48, v52, s[48:49]")
a("s_mov_b32 exec_hi, 0")
a("buffer_store_dword v48, v8, s[12:15], s44 offen sc1")
a("s_mov_b64 exec, -1")
stamp(4)
a("s_branch LSTQ")
a.label("LSTC")
a("s_cmp_eq_u32 s24, 3")
a("s_cbranch_scc0 LSTC1")
if OPT["npf"]:
    a("s_cmp_eq_u32 s31, 0")
    a("s_cbranch_scc0 LC_BAR")
    a("v_lshlrev_b32 v34, 7, v1")
    a("s_lshl_b32 s44, s26, 15")
    for n in range(OPT["npf"]):
        for i in range(4):
            a(f"s_add_u32 s45, s44, {(4+n)*UNIT_STEP+i*8192}")
            a(f"buffer_load_dword v35, v34, s[4:7], s45 offen{PFK}")
            a(f"buffer_load_dword v36, v34, s[8:11], s45 offen{PFV}")
    a("s_waitcnt vmcnt(0)")
a("s_branch LC_BAR")
a.label("LSTC1")
a("v_lshrrev_b32 v56, 4, v1")
a("v_mul_u32_u24 v56, 2304, v56")
a("v_and_b32 v57, 15, v1")
a("v_lshl_add_u32 v56, v57, 4, v56")
a("s_mul_i32 s48, s24, 768")
a("s_add_u32 s44, s48, s39")
a(f"s_add_u32 s44, s44, {X2}")
for g in range(1, 4):
    a(f"s_add_u32 s{44+g}, s44, {g*9216}")
a("v_bfe_u32 v58, v1, 4, 1")
a("v_lshlrev_b32 v58, 1, v58")
a("v_lshrrev_b32 v59, 5, v1")
a("v_add_u32 v58, v58, v59")
a("v_lshl_add_u32 v58, v57, 2, v58")
a("s_cmp_eq_u32 s31, 0")
a("s_cbranch_scc0 LC_X2")
srd(60, 98, 99, 1152)
a("s_lshr_b32 s48, s48, 1")
a("v_lshlrev_b32 v58, 1, v58")
a("v_add_u32 v58, s48, v58")
for c in range(3):
    a(f"buffer_load_ushort v{60+c}, v58, s[60:63], 0 offen offset:{c*128}")
a("s_branch LC_X3")
a.label("LC_X2")
a("v_lshrrev_b32 v59, 5, v58")
a("v_lshlrev_b32 v59, 6, v59")
a("v_lshl_add_u32 v59, v58, 1, v59")
a(f"s_add_u32 s49, s48, {LB0+X4}")
for c in range(3):
    a(f"buffer_load_ushort v{60+c}, v59, s[12:15], s49 offen offset:{c*256} sc1")
a("s_lshr_b32 s48, s48, 1")
a("v_lshlrev_b32 v58, 1, v58")
a("v_add_u32 v58, s48, v58")
a.label("LC_X3")
a(f"v_add_u32 v59, {XB}, v58")
a.label("LE2")
for c in range(3):
    for g in range(4):
        a(f"buffer_load_dwordx4 {R('v', 8+16*c+4*g)}, v56, s[12:15], s{44+g} offen offset:{c*256} sc1")
for c in range(3):
    b = 8 + 16 * c
    a(f"s_waitcnt vmcnt({8-4*c})")
    for r in range(4):
        a(f"v_add_f32 v{b+r}, v{b+r}, v{b+4+r}")
        a(f"v_add_f32 v{b+8+r}, v{b+8+r}, v{b+12+r}")
    for r in range(4):
        a(f"v_add_f32 v{b+r}, v{b+r}, v{b+8+r}")
    swapreduce(b)
a("v_add_f32 v9, v8, v24")
a("v_cmp_u_f32 vcc, v9, v40")
a("s_cbranch_vccz LE2OK")
retry("LE2", "LE2OK")
a.label("LE2OK")
stamp(5)
for c in range(3):
    bf16r(8 + 16 * c, 8 + 16 * c)
    a(f"v_lshlrev_b32 v{60+c}, 16, v{60+c}")
for c in range(3):
    a(f"v_add_f32 v{60+c}, v{60+c}, v{8+16*c}")
for c in range(3):
    a(f"v_cvt_pk_bf16_f32 v{60+c}, v{60+c}, v{60+c}")
for c in range(3):
    a(f"ds_write_b16 v59, v{60+c} offset:{c*128}")
a.label("LC_BAR")
a(f"s_mov_b32 s44, {XB}")
a(f"s_mul_i32 s45, s24, {TS}")
lng_addr()
a("s_waitcnt lgkmcnt(0)")
a("s_barrier")
a("s_call_b64 s[36:37], LLNG")
a("s_lshl_b32 s44, s24, 4")
a(f"s_add_u32 s44, s44, {HB}")
a("v_lshlrev_b32 v40, 1, v1")
a("v_add_u32 v40, s44, v40")
a("v_lshrrev_b32 v56, 4, v1")
a("v_lshlrev_b32 v57, 3, v56")
a("v_bfe_u32 v58, v1, 2, 2")
a("v_add_u32 v57, v57, v58")
a("v_mul_u32_u24 v57, 1152, v57")
a("v_and_b32 v58, 3, v1")
a("v_lshl_add_u32 v57, v58, 3, v57")
a("s_lshl_b32 s44, s24, 7")
a(f"s_add_u32 s44, s44, {WD}")
a("v_add_u32 v57, s44, v57")
a("v_lshlrev_b32 v56, 4, v56")
a(f"v_add_u32 v56, {HB}, v56")


def downB(i):
    for t in range(4):
        s = 8 + 16 * (i & 1) + 4 * t
        a(f"ds_read_b64_tr_b16 {R('v', s, 2)}, v57 offset:{i*512+t*32}")
        a(f"ds_read_b64_tr_b16 {R('v', s+2, 2)}, v57 offset:{i*512+t*32+4*1152}")


downB(0)
a(f"v_mov_b32_dpp v41, v60 row_shl:8{DPPM} bound_ctrl:1")
a("v_cvt_pk_bf16_f32 v41, v60, v41")
a("v_lshlrev_b32 v42, 16, v41")
a("v_and_b32 v41, 0xffff0000, v41")
a("v_max_f32 v42, 0, v42")
a("v_mul_f32 v41, v42, v41")
a("v_cvt_pk_bf16_f32 v41, v41, v41")
a("s_mov_b64 exec, 0xff")
a("ds_write_b16 v40, v41")
a("s_mov_b64 exec, -1")
a("v_lshrrev_b32 v58, 5, v1")
a("v_mul_u32_u24 v58, 18432, v58")
a("v_and_b32 v59, 31, v1")
a("v_lshl_add_u32 v58, v59, 2, v58")
a("s_mul_i32 s44, s28, 18")
a("s_add_u32 s44, s44, s27")
a("s_lshl_b32 s44, s44, 7")
a("s_mul_i32 s45, s24, 36864")
a("s_add_u32 s44, s44, s45")
a("s_add_u32 s44, s44, s39")
a(f"s_add_u32 s44, s44, {X3}")
a("s_mov_b32 s46, 0xffff0000")
a("s_mov_b32 s47, 0xffff0000")
a("s_mov_b32 s48, 0")
a("s_mov_b32 s49, -1")
a("s_waitcnt lgkmcnt(0)")
a("s_barrier")
a("ds_read_b128 v[60:63], v56")
downB(1)


def downG(i, wait):
    a(f"s_waitcnt lgkmcnt({wait})")
    for t in range(4):
        s = 8 + 16 * (i & 1) + 4 * t
        a(f"v_mfma_f32_16x16x32_bf16 {R('v', 40+4*t)}, v[60:63], {R('v', s)}, 0")
    a("v_cndmask_b32 v40, v40, v44, s[46:47]")
    a("v_cndmask_b32 v48, v48, v52, s[46:47]")
    a("v_cndmask_b32 v40, v40, v48, s[48:49]")
    a("buffer_store_dword v40, v58, s[12:15], s44 offen sc1")
    a(f"s_add_u32 s44, s44, {4*36864}")


downG(0, 8)
a("s_cmp_eq_u32 s24, 0")
a("s_cbranch_scc1 LDOWN3")
downG(1, 0)
a("s_branch LSTD")
a.label("LDOWN3")
a("s_waitcnt lgkmcnt(0)")
downB(2)
downG(1, 8)
downG(2, 0)
a.label("LSTD")
stamp(6)
a("s_lshl_b32 s50, s27, 3")
a("s_add_u32 s50, s50, s28")
a("s_cmp_lt_u32 s50, 18")
a("s_cbranch_scc0 LSTQ")
a("s_mul_i32 s44, s50, 18432")
a("s_mul_i32 s45, s24, 4608")
a("s_add_u32 s44, s44, s45")
a("s_add_u32 s44, s44, s39")
a(f"s_add_u32 s44, s44, {X3}")
a("s_add_u32 s45, s44, 4096")
a("v_bfe_u32 v58, v1, 4, 1")
a("v_lshlrev_b32 v58, 1, v58")
a("v_lshrrev_b32 v59, 5, v1")
a("v_add_u32 v58, v58, v59")
a("v_and_b32 v59, 7, v1")
a("v_lshl_add_u32 v58, v59, 2, v58")
a("v_lshlrev_b32 v58, 2, v58")
a("s_lshl_b32 s46, s24, 7")
a(f"s_add_u32 s46, s46, {FB}")
a("v_add_u32 v58, s46, v58")
for r in range(4):
    a(f"v_mov_b32 v{24+r}, 0")
a.label("LE3")
for i in range(4):
    a(f"buffer_load_dwordx4 {R('v', 8+4*i)}, v3, s[12:15], s44 offen offset:{i*1024} sc1")
a("s_mov_b32 exec_hi, 0")
a("buffer_load_dwordx4 v[24:27], v3, s[12:15], s45 offen sc1")
a("s_mov_b64 exec, -1")
a("s_waitcnt vmcnt(0)")
for r in range(4):
    a(f"v_add_f32 v{8+r}, v{8+r}, v{12+r}")
    a(f"v_add_f32 v{16+r}, v{16+r}, v{20+r}")
for r in range(4):
    a(f"v_add_f32 v{8+r}, v{8+r}, v{24+r}")
for r in range(4):
    a(f"v_add_f32 v{8+r}, v{8+r}, v{16+r}")
swapreduce(8)
a(f"v_add_f32_dpp v8, v8, v8 row_ror:8{DPPM}")
a("v_cmp_u_f32 vcc, v8, v8")
a("s_cbranch_vccz LE3OK")
retry("LE3", "LE3OK")
a.label("LE3OK")
stamp(7)
a("ds_write_b32 v58, v8")
a("v_lshlrev_b32 v8, 2, v1")
a(f"v_add_u32 v9, {FB}, v8")
a("s_lshl_b32 s45, s50, 6")
a(f"s_add_u32 s46, s45, {XB}")
a("v_lshlrev_b32 v8, 1, v1")
a("v_add_u32 v10, s46, v8")
a("s_waitcnt lgkmcnt(0)")
a("s_barrier")
a("s_cmp_eq_u32 s24, 0")
a("s_cbranch_scc0 LSTQ")
a("s_mov_b32 exec_hi, 0")
for w in range(4):
    a(f"ds_read_b32 v{12+w}, v9 offset:{128*w}")
a("ds_read_u16 v16, v10")
a("s_waitcnt lgkmcnt(0)")
a("v_lshlrev_b32 v16, 16, v16")
a("v_add_f32 v12, v12, v13")
a("v_add_f32 v14, v14, v15")
a("v_add_f32 v12, v12, v14")
bf16r(12, 12)
a("v_add_f32 v12, v12, v16")
a(f"v_mov_b32_dpp v13, v12 quad_perm:[1,1,3,3]{DPPM}")
a("v_cvt_pk_bf16_f32 v12, v12, v13")
a("s_mov_b32 exec_lo, 0x55555555")
a("s_cmp_eq_u32 s31, 0")
a("s_cbranch_scc0 LFINAL")
a("s_lshl_b32 s45, s50, 7")
a("s_add_u32 s45, s45, s39")
a(f"s_add_u32 s45, s45, {X4}")
a("buffer_store_dword v12, v8, s[12:15], s45 offen sc1")
a("s_mov_b64 exec, -1")
a("s_branch LSTQ")
a.label("LFINAL")
a("buffer_store_dword v12, v8, s[16:19], s45 offen")
a("s_mov_b64 exec, 1")
a("s_cmp_eq_u32 s50, 0")
a("s_cbranch_scc0 LNOEP")
a("v_mov_b32 v9, s29")
a("buffer_store_dword v9, v8, s[12:15], 0 offen sc1")
a.label("LNOEP")
a("s_mov_b64 exec, -1")
a.label("LSTQ")
stamp(8)
a("s_cmp_eq_u32 s31, 0")
a("s_cbranch_scc0 LDONE")
if OPT["npf"]:
    a("s_cmp_lt_u32 s27, 18")
    a("s_cbranch_scc1 LQ5")
    a("v_lshlrev_b32 v34, 7, v1")
    a("s_lshl_b32 s44, s26, 2")
    a("s_add_u32 s44, s44, s24")
    a("s_lshl_b32 s44, s44, 13")
    for n in range(OPT["npf"]):
        a(f"s_add_u32 s45, s44, {(4+n)*UNIT_STEP}")
        a(f"buffer_load_dword v35, v34, s[4:7], s45 offen{PFK}")
        a(f"buffer_load_dword v36, v34, s[8:11], s45 offen{PFV}")
a("s_cmp_ge_u32 s27, 24")
a("s_cbranch_scc0 LQ5")
a(f"s_add_u32 s44, s39, {X4}")
a("v_lshrrev_b32 v16, 2, v1")
a("v_lshlrev_b32 v16, 7, v16")
a("v_and_b32 v17, 3, v1")
a("v_lshl_add_u32 v16, v17, 4, v16")
for r in range(4):
    a(f"v_mov_b32 v{12+r}, 0")
a.label("LE4")
a("buffer_load_dwordx4 v[8:11], v16, s[12:15], s44 offen sc1")
a("s_mov_b64 exec, 0xff")
a("buffer_load_dwordx4 v[12:15], v16, s[12:15], s44 offen offset:2048 sc1")
a("s_mov_b64 exec, -1")
a("s_waitcnt vmcnt(0)")
a("v_max3_u32 v17, v8, v9, v10")
a("v_max3_u32 v18, v11, v12, v13")
a("v_max3_u32 v17, v17, v14, v15")
a("v_max_u32 v17, v17, v18")
a("v_cmp_eq_u32 vcc, -1, v17")
a("s_cbranch_vccz LE4OK")
retry("LE4", "LE4OK")
a.label("LE4OK")
stamp(9)
a(f"s_mov_b32 s54, {X5}")
a("s_call_b64 s[36:37], LQSTAGE")
a.label("LQ5")
if STAMPS:
    a("s_memrealtime s[58:59]")
    a("s_waitcnt lgkmcnt(0)")
    a("s_mov_b32 s74, s58")
a("s_mov_b32 s31, 1")
a(f"s_add_u32 s39, s39, {LSTRIDE}")
a("s_add_u32 s88, s88, 4096")
a("s_addc_u32 s89, s89, 0")
a(f"s_mov_b32 s96, {NP2}")
a("s_mov_b32 s91, 0")
a("s_mov_b32 s95, s97")
a("v_lshlrev_b32 v40, 2, v0")
a(f"v_add_u32 v40, {LSV}, v40")
a(f"ds_read_b32 v{VL}, v40")
qpoll_addr(X5)
a("s_waitcnt lgkmcnt(0)")
a("s_branch LQPOLL")

a.label("LQSTAGE")
a("s_mul_i32 s44, s24, 1152")
a(f"s_add_u32 s44, s44, {XB}")
a("v_add_u32 v56, s44, v3")
a("ds_write_b128 v56, v[8:11]")
a("s_mov_b64 exec, 0xff")
a("ds_write_b128 v56, v[12:15] offset:1024")
a("s_mov_b64 exec, -1")
a(f"s_mul_i32 s45, s24, {TS}")
a(f"s_add_u32 s45, s45, {WQ}")
lng_addr()
a("s_mov_b64 s[52:53], s[36:37]")
a("s_waitcnt lgkmcnt(0)")
a("s_call_b64 s[36:37], LLNG")
a("s_lshl_b32 s44, s28, 3")
a("s_add_u32 s44, s44, s27")
a("s_sub_u32 s44, s44, 24")
a("s_lshl_b32 s44, s44, 2")
a("s_add_u32 s44, s44, s24")
a("s_lshl_b32 s44, s44, 7")
a("s_add_u32 s44, s44, s54")
a("v_lshlrev_b32 v8, 2, v1")
a("v_mov_b32 v11, s29")
a(f"v_mov_b32_dpp v9, v60 quad_perm:[1,1,3,3]{DPPM}")
a("v_cvt_pk_bf16_f32 v10, v60, v9")
a("s_mov_b64 exec, 0x5555")
a("buffer_store_dwordx2 v[10:11], v8, s[12:15], s44 offen sc1")
a("s_mov_b64 exec, -1")
a("s_setpc_b64 s[52:53]")

a.label("LLNG")
lngemv()
a("s_setpc_b64 s[36:37]")

a.vq = qtags("R0") + qtags("R1") + qtags("R2")
for s in range(3):
    lp, lg, ln, lb, lx = (a.newlabel(x) for x in ("pool", "go", "noapp", "bonly", "next"))
    a.label(f"LRING{s}")
    a(f"s_mov_b32 s3, {s}")
    ticket_ready()
    a("s_cmp_ge_u32 s90, s55")
    a("s_cbranch_scc1 LRINGX")
    a("s_cmp_ge_u32 s101, s37")
    a("s_cbranch_scc1 LRINGX")
    a("s_cmp_lt_u32 s91, s92")
    a(f"s_cbranch_scc0 {lp}")
    a(f"v_readlane_b32 s32, v{VL}, s91")
    a("s_add_u32 s91, s91, 1")
    a(f"s_branch {lg}")
    a.label(lp)
    draw(s, f"LDRAINE{s}")
    a.label(lg)
    setaddr(32, 32)
    a("s_add_u32 s101, s101, 1")
    a(f"s_bitcmp1_b32 s95, {s}")
    a(f"s_cbranch_scc0 {lb}")
    unit("v", RING[s], f"R{s}", f"R{s}n")
    q1 = [(t[0].rstrip("n"), t[1], t[2]) for t in a.vq]
    a(f"s_branch LRING{(s+1)%3}")
    a.label(lb)
    a(f"s_bitset1_b32 s95, {s}")
    for t in range(8):
        ldK("v", RING[s], t, "x")
    for t in range(8):
        ldV("v", RING[s], t, "x")
    a(f"s_branch LRING{(s+1)%3}")
    a.vq = q1
a.label("LRINGX")
for k in range(1, 10):
    a(f"s_cmp_eq_u32 s36, {k}")
    a(f"s_cbranch_scc1 LRET{k}")
a("s_branch LRET10")

for s in range(3):
    a.label(f"LDRAINE{s}")
    a("v_mov_b32 v48, 0")
    a("buffer_load_dword v49, v48, s[20:23], 0 offen sc1")
    a("s_mov_b32 s93, 0")
    a("s_bcnt1_i32_b32 s44, s97")
    a("s_sub_u32 s92, s94, s44")
    a(f"s_branch LDRAIN{s}")
for s in range(3):
    a.label(f"LDRAIN{s}")
    lsk = a.newlabel("dsk")
    a(f"s_bitcmp1_b32 s95, {s}")
    a(f"s_cbranch_scc0 {lsk}")
    unit_drain(RING[s])
    a.label(lsk)
    a("s_add_u32 s93, s93, 1")
    a("s_cmp_eq_u32 s93, 3")
    a("s_cbranch_scc1 LPASSEND")
a("s_branch LDRAIN0")

a.label("LDONE")
if OPT["padto"]:
    a.label("LPAD")
    a("s_memrealtime s[58:59]")
    a("s_waitcnt lgkmcnt(0)")
    a("s_sub_u32 s58, s58, s100")
    a(f"s_cmp_lt_u32 s58, {OPT['padto']*100}")
    a("s_cbranch_scc1 LPAD")
if STAMPS:
    a("s_memrealtime s[58:59]")
    a("s_waitcnt lgkmcnt(0)")
    a("s_mov_b32 s87, s58")
    a("s_lshl_b32 s44, s2, 2")
    a("s_add_u32 s44, s44, s24")
    a("s_lshl_b32 s44, s44, 7")
    a(f"s_add_u32 s44, s44, {STAMP_OFF}")
    a("v_mov_b32 v8, 0")
    a("s_mov_b64 exec, 1")
    for i in range(24):
        a(f"v_mov_b32 v9, s{64+i}")
        a(f"buffer_store_dword v9, v8, s[12:15], s44 offen offset:{4*i}")
    a("v_mov_b32 v9, s100")
    a("buffer_store_dword v9, v8, s[12:15], s44 offen offset:96")
    for i, r in enumerate((57, 92, 57, 57, 57, 94)):
        a(f"v_mov_b32 v9, s{r}")
        a(f"buffer_store_dword v9, v8, s[12:15], s44 offen offset:{100+4*i}")
    if OPT["dbgout"]:
        a("s_or_b32 s44, s2, s24")
        a("s_cmp_eq_u32 s44, 0")
        a("s_cbranch_scc0 LEND")
        for i, r in enumerate((64, 65, 66, 69, 70, 71, 72, 76, 77, 78, 81, 82, 83, 87)):
            a(f"s_sub_u32 s44, s{r}, s100")
            a("v_mov_b32 v9, s44")
            a(f"buffer_store_dword v9, v8, s[20:23], 0 offen offset:{4+4*i}")
    a("s_waitcnt vmcnt(0)")
a.label("LEND")
a("s_endpgm")

hdr = open("cdna_kernels/" + NAME + ".s.ref").read().split("\n")
top = [l for l in hdr if l.startswith(";") and "@launch" not in l]
out = "\n".join(top) + "\n"
out += f"; @launch grid=(256,1,1) block=(256,1,1) lds={LDS_SIZE}\n"
out += f""".amdgcn_target "amdgcn-amd-amdhsa--gfx950"
.text
.globl {NAME}_kernel
.p2align 8
.type {NAME}_kernel,@function
"""
out += a.text()
out += f""".section .rodata,"a"
.p2align 6
.amdhsa_kernel {NAME}_kernel
  .amdhsa_next_free_vgpr 512
  .amdhsa_next_free_sgpr 102
  .amdhsa_accum_offset 256
  .amdhsa_group_segment_fixed_size 0
  .amdhsa_kernarg_size 96
  .amdhsa_user_sgpr_count 2
  .amdhsa_user_sgpr_kernarg_segment_ptr 1
  .amdhsa_system_sgpr_workgroup_id_x 1
.end_amdhsa_kernel
"""
import re
if OPT["xl"]:
    out = re.sub(r"(buffer_load\S+ .*) sc1$", r"\1 sc0 sc1", out, flags=re.M)
if OPT["xs"]:
    out = re.sub(r"(buffer_store\S+ .*) sc1$", r"\1 sc0 sc1", out, flags=re.M)
open(sys.argv[1], "w").write(out)
```

```python
import sys, struct, math
from asmlib import Asm

NAME = "interleave_layers__gqa_block_cached__glu_gated_reglu__decode"
OPT = dict(stamps=0, p2rev=0, kvpol="nt", wpol="nt", wskip=0, vring="def", kring="nt", tfw=7, psleep=1, npf=0, thrp=80, pr=1110, eg=0, gv=8, xl=0, xs=0, padto=0, padmin=0, cn=3, vote=1, avpol="def", forcecls=-1, dbgout=0, pfk="nt", pfv="def")
for arg in sys.argv[2:]:
    k, v = arg.split("=")
    OPT[k] = int(v) if v.lstrip("-").isdigit() else v
STAMPS = OPT["stamps"]
KVPOL = "" if OPT["kvpol"] == "def" else " " + OPT["kvpol"]
WPOL = "" if OPT["wpol"] == "def" else " " + OPT["wpol"]
PFK = "" if OPT["pfk"] == "def" else " " + OPT["pfk"]
PFV = "" if OPT["pfv"] == "def" else " " + OPT["pfv"]


def f32(x):
    return "0x%08x" % struct.unpack("<I", struct.pack("<f", x))[0]


X0 = 0x1000
X5 = 0x9000
CTR = 0x11000
LB0 = 0x20000
LSTRIDE = 0xC0000
X1 = 0x0
X1S = 1280
X2 = 0x50000
X3 = 0x59000
X4 = 0xAA000
STAMP_OFF = 0x200000
WS_SIZE = 0x400000
NP1 = 19 * 64
TF = NP1 - OPT["tfw"] * 64
NP2 = 256 + TF
THR0 = 64
THRS = (NP2 * OPT["thrp"] // 100 - THR0) // 9
WGU = 0
TS = 18432
WD = 73728
FB = 110592
HB = 111104
WO = 0
WOS = 8192
WQ = 49152
SA = 122880
CB1 = SA
CS1 = SA + 4096
XB = SA
OB = 127488
LSV = 128000
ONES = 129024
KL = 130176
LDS_SIZE = 162944

UNIT_STEP = 524288
DPPM = " row_mask:0xf bank_mask:0xf"
a = Asm()
stamp_n = [0]


def stamp(i):
    if not STAMPS:
        return
    a("s_memrealtime s[58:59]")
    a("s_waitcnt lgkmcnt(0)")
    lab = a.newlabel("st")
    a(f"s_mov_b32 s{64+12+i}, s58")
    a("s_cmp_eq_u32 s31, 0")
    a(f"s_cbranch_scc0 {lab}")
    a(f"s_mov_b32 s{64+i}, s58")
    a.label(lab)


def sstamp(reg):
    if True:
        return
    a("s_memrealtime s[58:59]")
    a("s_waitcnt lgkmcnt(0)")
    a(f"s_mov_b32 s{reg}, s58")


def R(kind, base, n=4):
    return f"{kind}[{base}:{base+n-1}]"


def srd(d, lo, hi, size):
    a(f"s_mov_b32 s{d}, s{lo}")
    a(f"s_and_b32 s{d+1}, s{hi}, 0xffff")
    a(f"s_mov_b32 s{d+2}, {size}")
    a(f"s_mov_b32 s{d+3}, 0x20000")


def srd_role(d, lo, hi, size):
    a(f"s_cselect_b32 s{d+2}, {size}, 0")
    a(f"s_mov_b32 s{d}, s{lo}")
    a(f"s_and_b32 s{d+1}, s{hi}, 0xffff")
    a(f"s_mov_b32 s{d+3}, 0x20000")


def ld(kind, reg, t, src, half, pol, tag):
    srd_, vo = {"K": ("s[4:7]", "v2"), "K2": ("s[60:63]", "v51"), "V": ("s[8:11]", "v3")}[src]
    a(f"buffer_load_dwordx4 {R(kind, reg+4*t)}, {vo}, {srd_}, s{32+2*half+(t>>2)} offen offset:{(t&3)*1024}{pol}", tag=tag)


VPOL = "" if OPT["vring"] == "def" else " nt"


def ldK(kind, base, t, tag):
    ld(kind, base, t, "K", 0, " nt", (tag, "K", t))


def ldV(kind, base, t, tag):
    ld(kind, base + 32, t, "V", 1, ("" if OPT["avpol"] == "def" else " nt") if kind == "a" else VPOL, (tag, "V", t))


def adv():
    for r in range(32, 36):
        a(f"s_add_u32 s{r}, s{r}, {UNIT_STEP}")


def setaddr(k, v):
    if k is not None:
        if k != 32:
            a(f"s_mov_b32 s32, s{k}")
        a("s_add_u32 s33, s32, 4096")
    if v is not None:
        if v != 34:
            a(f"s_mov_b32 s34, s{v}")
        a("s_add_u32 s35, s34, 4096")


def burst(kind, base, tag):
    for t in range(8):
        ldK(kind, base, t, tag)
    for t in range(8):
        ldV(kind, base, t, tag)
    adv()


def waitq(tag, floor=0):
    if tag in a.vq:
        a.wait_vm(tag, floor)


def allreduce(op, v, t, first=0):
    steps = ["quad_perm:[1,0,3,2]", "quad_perm:[2,3,0,1]", "row_half_mirror", "row_mirror"]
    for s in steps[first:]:
        a(f"{op}_dpp v{v}, v{v}, v{v} {s}{DPPM}")
    rows(op, v, t)


def rows(op, v, t):
    a(f"v_mov_b32 v{t}, v{v}")
    a(f"v_permlane16_swap_b32 v{v}, v{t}")
    a(f"{op} v{v}, v{v}, v{t}")
    a(f"v_mov_b32 v{t}, v{v}")
    a(f"v_permlane32_swap_b32 v{v}, v{t}")
    a(f"{op} v{v}, v{v}, v{t}")


QE, QO, OA, MS, LS, NMC = 8, 12, 16, 20, 21, 22
DS_ = [24, 28, 32, 36]
TT = 40
TMP = 44


def unit2(K, V, kt=None, vt=None, rk=None, rv=None, hooks=None, tt=TT):
    if K is not None:
        if hooks:
            hooks[0]()
        for u in range(4):
            if kt:
                waitq(kt(2 * u + 1))
            d = R("v", DS_[u])
            a(f"v_mfma_f32_16x16x32_bf16 {d}, {R(K[0], K[1]+8*u)}, {R('v', QE)}, 0")
            a(f"v_mfma_f32_16x16x32_bf16 {d}, {R(K[0], K[1]+8*u+4)}, {R('v', QO)}, {d}")
            if rk:
                rk(2 * u)
                rk(2 * u + 1)
        order = [(0, 0), (1, 0), (2, 0), (0, 1), (1, 1), (2, 1), (0, 2), (1, 2), (3, 0), (2, 2), (0, 3), (3, 1),
                 (1, 3), (2, 3), (3, 2), None, (3, 3)]
        for o in order:
            if o is None:
                if V is not None:
                    a(f"v_max3_f32 v{TMP}, v{tt}, v{tt+1}, v{MS}")
                continue
            u, c = o
            qp = f"quad_perm:[{c},{c},{c},{c}]"
            if c == 0:
                a(f"v_mov_b32_dpp v{tt+u}, v{DS_[u]} {qp}{DPPM}")
            else:
                a(f"v_add_f32_dpp v{tt+u}, v{DS_[u]+c}, v{tt+u} {qp}{DPPM}")
    if V is None:
        return
    if K is None:
        a(f"v_max3_f32 v{TMP}, v{tt}, v{tt+1}, v{MS}")
    a(f"v_max3_f32 v{TMP}, v{TMP}, v{tt+2}, v{tt+3}")
    a(f"v_max_f32_dpp v{TMP}, v{TMP}, v{TMP} row_half_mirror{DPPM}")
    rows("v_max_f32", TMP, TMP + 1)
    a(f"v_sub_f32 v{TMP+1}, v{MS}, v{TMP}")
    a(f"v_mul_f32 v{TMP+1}, s30, v{TMP+1}")
    a(f"v_exp_f32 v{TMP+1}, v{TMP+1}")
    a(f"v_mov_b32 v{MS}, v{TMP}")
    a(f"v_mul_f32 v{NMC}, s30, v{TMP}")
    for u in range(4):
        a(f"v_fma_f32 v{tt+u}, v{tt+u}, s30, -v{NMC}")
    for u in range(4):
        a(f"v_exp_f32 v{tt+u}, v{tt+u}")
    a(f"v_mul_f32 v{LS}, v{LS}, v{TMP+1}")
    for r in range(4):
        a(f"v_mul_f32 v{OA+r}, v{OA+r}, v{TMP+1}")
    a(f"v_add_f32 v{TMP+2}, v{tt}, v{tt+1}")
    a(f"v_add_f32 v{TMP+3}, v{tt+2}, v{tt+3}")
    for u in range(4):
        a(f"v_cvt_pk_bf16_f32 v{tt+u}, v{tt+u}, v{tt+u}")
    a(f"v_add_f32 v{TMP+2}, v{TMP+2}, v{TMP+3}")
    a(f"v_add_f32 v{LS}, v{LS}, v{TMP+2}")

    def buildB(t):
        b = DS_[t & 3]
        p = tt + (t >> 1)
        for i in range(4):
            own = (i < 2) == ((t & 1) == 0)
            if own:
                a(f"v_and_b32 v{b+i}, v{p}, v{4+i}")
            else:
                sh = "row_shr:4" if (t & 1) == 0 else "row_shl:4"
                a(f"v_and_b32_dpp v{b+i}, v{p}, v{4+i} {sh}{DPPM} bound_ctrl:1")

    buildB(0)
    if hooks:
        hooks[1]()
    for t in range(8):
        if t + 1 < 8:
            buildB(t + 1)
        if vt:
            waitq(vt(t))
        a(f"v_mfma_f32_16x16x32_bf16 {R('v', OA)}, {R(V[0], V[1]+4*t)}, {R('v', DS_[t&3])}, {R('v', OA)}")
        if rv:
            rv(t)


def unit(kind, base, tag, reload_tag=None, hooks=None):
    rk = rv = None
    if reload_tag is not None:
        rk = lambda t: ldK(kind, base, t, reload_tag)
        rv = lambda t: ldV(kind, base, t, reload_tag)
    unit2((kind, base), (kind, base + 32), lambda t: (tag, "K", t), lambda t: (tag, "V", t), rk, rv, hooks)


probe_k = [0]


def probe():
    k = probe_k[0]
    probe_k[0] += 1
    for c in ((0, 1) if k & 1 else (1, 0)):
        a(f"s_add_u32 s50, s57, {(c ^ 1)*8192 + k*1152}")
        a("s_memtime s[52:53]")
        a("s_waitcnt lgkmcnt(0)")
        a("s_buffer_load_dword s51, s[8:11], s50")
        a("s_waitcnt lgkmcnt(0)")
        a("s_memtime s[50:51]")
        a("s_waitcnt lgkmcnt(0)")
        a("s_sub_u32 s50, s50, s52")
        a(f"s_min_u32 s{55+c}, s{55+c}, s50")


def qtags(tag):
    return [(tag, "K", t) for t in range(8)] + [(tag, "V", t) for t in range(8)]


RING = [64, 128, 192]


def bf16r(d, s):
    a(f"v_cvt_pk_bf16_f32 v{d}, v{s}, v{s}")
    a(f"v_and_b32 v{d}, 0xffff0000, v{d}")


def afrag_addr(v, base_sgpr=None, base=0):
    a(f"v_lshrrev_b32 v{v}, 4, v1")
    a(f"v_lshlrev_b32 v{v}, 4, v{v}")
    if base:
        a(f"v_add_u32 v{v}, {base}, v{v}")
    if base_sgpr is not None:
        a(f"v_add_u32 v{v}, s{base_sgpr}, v{v}")


def lng_addr():
    a("v_add_u32 v56, s44, v3")
    a("v_lshlrev_b32 v55, 1, v1")
    a("v_add_u32 v55, s44, v55")
    a("v_mov_b32 v57, s44")
    a(f"v_mov_b32 v54, {ONES}")
    a("s_mov_b32 s46, 0x00020002")
    a("s_mov_b32 s47, 0x00020002")
    a("v_cndmask_b32 v57, v57, v54, s[46:47]")
    a("v_lshrrev_b32 v54, 4, v1")
    a("v_lshl_add_u32 v57, v54, 4, v57")
    a("v_lshlrev_b32 v58, 3, v1")
    a("v_add_u32 v58, s45, v58")


def lngemv():
    S, nk, T, acc = 4, 18, 8, 60
    X = 45
    s, t, rs = 54, 55, 44
    f = []
    for i in range(4):
        f.append(f"v_lshlrev_b32 v{X+2*i}, 16, v{40+i}")
        f.append(f"v_and_b32 v{X+2*i+1}, 0xffff0000, v{40+i}")
    f.append(f"v_lshlrev_b32 v{X+8}, 16, v44")
    f.append(f"v_add_f32 v{s}, v{X}, v{X+1}")
    for i in range(2, 9):
        f.append(f"v_add_f32 v{s}, v{s}, v{X+i}")

    def red(v):
        for st in ("quad_perm:[1,0,3,2]", "quad_perm:[2,3,0,1]", "row_half_mirror", "row_mirror"):
            f.append(f"v_add_f32_dpp v{v}, v{v}, v{v} {st}{DPPM}")
        for sw in ("16", "32"):
            f.append(f"v_mov_b32 v{t}, v{v}")
            f.append(f"v_permlane{sw}_swap_b32 v{v}, v{t}")
            f.append(f"v_add_f32 v{v}, v{v}, v{t}")
    red(s)
    f.append(f"v_mul_f32 v{s}, {f32(1.0/576)}, v{s}")
    for i in range(9):
        f.append(f"v_sub_f32 v{X+i}, v{X+i}, v{s}")
    f.append(f"v_mul_f32 v{rs}, v{X}, v{X}")
    for i in range(1, 9):
        f.append(f"v_fmac_f32 v{rs}, v{X+i}, v{X+i}")
    red(rs)
    f.append(f"v_cvt_pk_bf16_f32 v{s}, v{s}, v{s}")
    f.append(f"v_and_b32 v{s}, 0xffff0000, v{s}")
    f.append(f"v_mul_f32 v{rs}, {f32(1.0/576)}, v{rs}")
    for op in (None, f"v_add_f32 v{rs}, {f32(1e-5)}, v{rs}", f"v_sqrt_f32 v{rs}, v{rs}"):
        if op:
            f.append(op)
        f.append(f"v_cvt_pk_bf16_f32 v{rs}, v{rs}, v{rs}")
        f.append(f"v_and_b32 v{rs}, 0xffff0000, v{rs}")
    f.append(f"v_rcp_f32 v{rs}, v{rs}")

    def issue(kk):
        q = T + 8 * (kk % S)
        a(f"ds_read_b128 {R('v', q)}, v57 offset:{kk*64}")
        a(f"ds_read_b64_tr_b16 {R('v', q+4, 2)}, v58 offset:{kk*1024}")
        a(f"ds_read_b64_tr_b16 {R('v', q+6, 2)}, v58 offset:{kk*1024+512}")

    a("ds_read_b128 v[40:43], v56")
    a("ds_read_u16 v44, v55 offset:1024")
    for kk in range(S):
        issue(kk)
    per = -(-len(f) // (nk + 1))
    for kk in range(nk):
        a(f"s_waitcnt lgkmcnt({3*(min(nk, kk+S)-kk-1)})")
        q = T + 8 * (kk % S)
        c = "0" if kk == 0 else R("v", acc)
        a(f"v_mfma_f32_16x16x32_bf16 {R('v', acc)}, {R('v', q)}, {R('v', q+4)}, {c}")
        if kk + S < nk:
            issue(kk + S)
        for _ in range(per):
            if f:
                a(f.pop(0))
    while f:
        a(f.pop(0))
    a(f"v_fma_f32 v60, -v{s}, v61, v60")
    a(f"v_mul_f32 v60, v60, v{rs}")


def retry(lab_again, lab_done):
    a("s_cmp_eq_u32 s38, 0")
    a(f"s_cbranch_scc1 {lab_done}")
    a("s_sub_u32 s38, s38, 1")
    if OPT["psleep"]:
        a(f"s_sleep {OPT['psleep']}")
    a(f"s_branch {lab_again}")


def combine(CB, CS):
    a("v_lshlrev_b32 v8, 2, v0")
    a(f"v_add_u32 v8, {CB}, v8")
    a("s_lshr_b32 s44, s24, 1")
    a("s_lshl_b32 s44, s44, 5")
    a(f"s_add_u32 s44, s44, {CS}")
    a("v_mov_b32 v9, s44")
    a("ds_read_b128 v[12:15], v9")
    a("ds_read_b128 v[16:19], v9 offset:16")
    for w in range(4):
        a(f"ds_read_b32 v{20+w}, v8 offset:{w*1024}")
    a("s_waitcnt lgkmcnt(4)")
    a("v_max3_f32 v26, v12, v14, v16")
    a("v_max_f32 v26, v26, v18")
    for w in range(4):
        a(f"v_sub_f32 v{12+2*w}, v{12+2*w}, v26")
    for w in range(4):
        a(f"v_exp_f32 v{12+2*w}, v{12+2*w}")
    a("v_mul_f32 v27, v13, v12")
    for w in range(1, 4):
        a(f"v_fmac_f32 v27, v{13+2*w}, v{12+2*w}")
    a("s_waitcnt lgkmcnt(0)")
    a("v_mul_f32 v24, v20, v12")
    for w in range(1, 4):
        a(f"v_fmac_f32 v24, v{20+w}, v{12+2*w}")


def qpoll_issue():
    a("buffer_load_dwordx4 v[24:27], v32, s[12:15], s45 offen sc1", tag="qp")
    a("buffer_load_dwordx4 v[28:31], v32, s[12:15], s45 offen offset:16 sc1", tag="qp")


def qpoll_addr(xoff):
    a("s_lshl_b32 s45, s25, 11")
    a(f"s_add_u32 s45, s45, {xoff}")
    a("v_bfe_u32 v32, v1, 3, 1")
    a("v_lshlrev_b32 v32, 10, v32")
    a("v_lshrrev_b32 v33, 4, v1")
    a("v_lshl_add_u32 v32, v33, 8, v32")
    a("v_bfe_u32 v33, v1, 1, 1")
    a("v_lshl_add_u32 v32, v33, 7, v32")
    a("v_and_b32 v33, 1, v1")
    a("v_lshl_add_u32 v32, v33, 5, v32")


def qpoll_check():
    a("v_cmp_ne_u32 s[46:47], s29, v25")
    a("v_cmp_ne_u32 s[48:49], s29, v27")
    a("v_cmp_ne_u32 s[50:51], s29, v29")
    a("v_cmp_ne_u32 s[52:53], s29, v31")
    a("s_or_b64 s[46:47], s[46:47], s[48:49]")
    a("s_or_b64 s[50:51], s[50:51], s[52:53]")
    a("s_or_b64 s[46:47], s[46:47], s[50:51]")


VL = 50


def unit_drain(base):
    def pwait(n0, n1, n2):
        l0, l1 = a.newlabel("dw"), a.newlabel("dw")
        a("s_cmp_eq_u32 s93, 0")
        a(f"s_cbranch_scc1 {l0}")
        a("s_cmp_eq_u32 s93, 1")
        a(f"s_cbranch_scc1 {l1}")
        a(f"s_waitcnt vmcnt({n2})")
        a.label(l1)
        a(f"s_waitcnt vmcnt({n1})")
        a.label(l0)
        a(f"s_waitcnt vmcnt({n0})")
    a.vq = []
    unit("v", base, "none", None, hooks=(lambda: pwait(41, 25, 9), lambda: pwait(33, 17, 1)))


def swapreduce(b):
    a(f"v_permlane32_swap_b32 v{b}, v{b+1}")
    a(f"v_permlane32_swap_b32 v{b+2}, v{b+3}")
    a(f"v_add_f32 v{b}, v{b}, v{b+1}")
    a(f"v_add_f32 v{b+2}, v{b+2}, v{b+3}")
    a(f"v_permlane16_swap_b32 v{b}, v{b+2}")
    a(f"v_add_f32 v{b}, v{b}, v{b+2}")


def ones_init():
    for r in range(4):
        a(f"v_mov_b32 v{16+r}, 0x3f803f80")
    a(f"v_add_u32 v20, {ONES}, v3")
    a("ds_write_b128 v20, v[16:19]")
    a("s_mov_b64 exec, 0xff")
    a("ds_write_b128 v20, v[16:19] offset:1024")
    a("s_mov_b64 exec, -1")


a.raw(f"{NAME}_kernel:")
a("s_cmp_ge_u32 s2, 256")
a("s_cbranch_scc1 LEND")
if STAMPS or OPT["padto"]:
    a("s_memrealtime s[100:101]")
a("s_load_dwordx16 s[64:79], s[0:1], 0")
a("s_load_dwordx8 s[80:87], s[0:1], 64")
a("v_and_b32 v1, 63, v0")
a("v_lshrrev_b32 v40, 6, v0")
a("v_readfirstlane_b32 s24, v40")
a("s_and_b32 s28, s2, 7")
a("s_lshr_b32 s27, s2, 3")
a("s_lshl_b32 s44, s28, 2")
a("s_add_u32 s27, s27, s44")
a("s_and_b32 s27, s27, 31")
a("s_lshr_b32 s25, s2, 4")
a("s_and_b32 s26, s2, 15")
a(f"s_mov_b32 s30, {f32(math.log2(math.e)/math.sqrt(128.0))}")
a("s_mov_b32 s31, 0")
a("s_mov_b32 s38, 400000")
a(f"s_mov_b32 s39, {LB0}")
a("s_mov_b32 s42, 0xf0f0f0f0")
a("s_mov_b32 s43, 0xf0f0f0f0")
a("s_lshl_b32 s44, s26, 2")
a("s_add_u32 s44, s44, s24")
a("s_lshl_b32 s32, s44, 13")
setaddr(32, 32)
a("s_lshl_b32 s57, s44, 14")
a(f"s_add_u32 s57, s57, {1344*8192}")
a("s_mov_b32 s55, -1")
a("s_mov_b32 s56, -1")
a("v_lshlrev_b32 v3, 4, v1")
a("v_bfe_u32 v40, v1, 2, 2")
a("v_lshlrev_b32 v2, 8, v40")
a("v_lshrrev_b32 v40, 4, v1")
a("v_lshl_add_u32 v2, v40, 6, v2")
a("v_and_b32 v40, 3, v1")
a("v_lshl_add_u32 v2, v40, 4, v2")
a("s_waitcnt lgkmcnt(0)")
a("s_load_dword s29, s[86:87], 0")
if OPT["padmin"]:
    a("s_not_b32 s101, s100")
    a("s_atomic_umax s101, s[84:85], 64")
a("s_lshl_b32 s44, s25, 24")
a("s_add_u32 s4, s66, s44")
a("s_addc_u32 s5, s67, 0")
a("s_and_b32 s5, s5, 0xffff")
a("s_mov_b32 s6, 0x1000000")
a("s_mov_b32 s7, 0x20000")
a("s_add_u32 s8, s68, s44")
a("s_addc_u32 s9, s69, 0")
a("s_and_b32 s9, s9, 0xffff")
a("s_mov_b32 s10, 0x1000000")
a("s_mov_b32 s11, 0x20000")
srd(12, 86, 87, WS_SIZE)
a("s_cmp_ge_u32 s27, 24")
a("s_cbranch_scc0 LPRO1")
srd(60, 64, 65, 1152)
srd(92, 70, 71, 0 if OPT["wskip"] & 8 else 576 * 8192)
a("v_lshrrev_b32 v41, 3, v1")
a("v_lshlrev_b32 v40, 13, v41")
a("v_and_b32 v42, 7, v1")
a("v_lshl_add_u32 v40, v42, 4, v40")
a("s_lshl_b32 s46, s28, 3")
a("s_add_u32 s46, s46, s27")
a("s_sub_u32 s46, s46, 24")
a("s_lshl_b32 s44, s46, 7")
a(f"s_mul_i32 s45, s24, {144*8192}")
a("s_add_u32 s44, s44, s45")
for i in range(18):
    a(f"buffer_load_dwordx4 {R('v', 64+4*i)}, v40, s[92:95], s44 offen{WPOL}")
    a("s_add_u32 s44, s44, 65536")
a("buffer_load_dwordx4 v[8:11], v3, s[60:63], 0 offen")
a("buffer_load_dwordx4 v[12:15], v3, s[60:63], 0 offen offset:1024")
a("s_and_b32 s44, s46, 3")
a("s_or_b32 s44, s44, s24")
a("s_cmp_eq_u32 s44, 0")
a("s_cbranch_scc0 LPRO0")
a("v_lshlrev_b32 v40, 12, v1")
a("v_mov_b32 v36, 0\nv_mov_b32 v37, 0\nv_mov_b32 v38, 0\nv_mov_b32 v39, 0")
a("s_lshl_b32 s44, s46, 6")
a(f"s_add_u32 s44, s44, {CTR}")
a("s_mov_b64 exec, 3")
a("buffer_store_dwordx4 v[36:39], v40, s[12:15], s44 offen sc1")
a("s_mov_b64 exec, -1")
a.label("LPRO0")
a("v_lshrrev_b32 v40, 1, v42")
a(f"v_mul_u32_u24 v40, {TS}, v40")
a("v_and_b32 v43, 3, v41")
a("v_lshl_add_u32 v40, v43, 5, v40")
a("v_lshrrev_b32 v43, 2, v41")
a("v_lshl_add_u32 v40, v43, 9, v40")
a("v_and_b32 v42, 1, v42")
a("v_lshl_add_u32 v40, v42, 4, v40")
for k, reg in ((0, 41), (2, 42)):
    a("s_mul_i32 s44, s24, 18")
    a(f"s_add_u32 s44, s44, {k}")
    a("s_lshr_b32 s45, s44, 2")
    a("s_lshl_b32 s45, s45, 10")
    a("s_and_b32 s44, s44, 3")
    a("s_lshl_b32 s44, s44, 7")
    a("s_add_u32 s44, s44, s45")
    a(f"s_add_u32 s44, s44, {WQ}")
    a(f"v_add_u32 v{reg}, s44, v40")
ones_init()
a("s_waitcnt vmcnt(0) lgkmcnt(0)")
a("s_mul_i32 s29, s29, 0x9e3779b1")
a("s_add_u32 s29, s29, 0x7f4a7c15")
for i in range(18):
    a(f"ds_write_b128 v{41 + ((i>>1)&1)}, {R('v', 64+4*i)} offset:{(i>>2)*1024+(i&1)*128}")
a("s_waitcnt lgkmcnt(0)")
a("s_barrier")
a(f"s_mov_b32 s54, {X0}")
a("s_call_b64 s[36:37], LQSTAGE")
a("s_branch LPRO2")
a.label("LPRO1")
a("s_waitcnt lgkmcnt(0)")
ones_init()
a("s_mul_i32 s29, s29, 0x9e3779b1")
a("s_add_u32 s29, s29, 0x7f4a7c15")
a.label("LPRO2")
sstamp(55)
a.vq = []
burst("a", 0, "A0")
a("s_cmp_eq_u32 s24, 0")
a("s_cbranch_scc0 LPRO3")
a("v_mov_b32 v24, -1\nv_mov_b32 v25, -1\nv_mov_b32 v26, -1\nv_mov_b32 v27, -1")
a("s_mul_i32 s44, s2, 6144")
a(f"s_add_u32 s44, s44, {LB0}")
a("s_add_u32 s45, s44, 4096")
keep = list(a.vq)
for i in range(6):
    a(f"buffer_store_dwordx4 v[24:27], v3, s[12:15], s{44+(i>>2)} offen offset:{1024*(i&3)} sc1")
a.vq = keep
a.label("LPRO3")
srd(16, 82, 83, 1152)
srd(20, 84, 85, 256)
a("s_mov_b32 s98, s64")
a("s_mov_b32 s99, s65")
a("v_and_b32 v40, 1, v1")
a("v_lshlrev_b32 v40, 4, v40")
a("v_mov_b32 v41, 0xffff")
a("v_lshlrev_b32 v40, v40, v41")
for i in range(4):
    m = 0x03030303 << (2 * i)
    a(f"s_mov_b32 s40, 0x{m:08x}")
    a(f"s_mov_b32 s41, 0x{m:08x}")
    a(f"v_cndmask_b32 v{4+i}, 0, v40, s[40:41]")
a("s_lshl_b32 s44, s25, 8")
a(f"s_add_u32 s44, s44, {CTR}")
a("s_add_u32 s88, s86, s44")
a("s_addc_u32 s89, s87, 0")
sstamp(56)
keep = list(a.vq)
a("s_cmp_lt_u32 s27, 18")
a("s_cbranch_scc0 LWB")
srd(60, 76, 77, 0 if OPT["wskip"] & 2 else 576 * 9216)
srd(92, 78, 79, 0 if OPT["wskip"] & 2 else 576 * 9216)
a("v_lshrrev_b32 v41, 2, v1")
a("v_and_b32 v42, 3, v1")
a("v_mul_u32_u24 v40, 9216, v41")
a("v_lshl_add_u32 v40, v42, 4, v40")
a("s_mul_i32 s46, s28, 18")
a("s_add_u32 s46, s46, s27")
a("s_lshl_b32 s44, s46, 6")
a(f"s_mul_i32 s45, s24, {144*9216}")
a("s_add_u32 s44, s44, s45")
for i in range(9):
    a(f"buffer_load_dwordx4 {R('v', 64+8*i)}, v40, s[60:63], s44 offen{WPOL}")
    a(f"buffer_load_dwordx4 {R('v', 68+8*i)}, v40, s[92:95], s44 offen{WPOL}")
    a(f"s_add_u32 s44, s44, {16*9216}")
a(f"v_mul_u32_u24 v43, {TS}, v42")
a("v_and_b32 v42, 3, v41")
a("v_lshl_add_u32 v43, v42, 5, v43")
a("v_bfe_u32 v42, v41, 2, 1")
a("v_lshl_add_u32 v43, v42, 9, v43")
a("v_lshrrev_b32 v42, 3, v41")
a("v_lshl_add_u32 v43, v42, 7, v43")
for k, reg in ((1, 34), (0, 43)):
    a("s_mul_i32 s44, s24, 9")
    a(f"s_add_u32 s44, s44, {k}")
    a("s_lshr_b32 s45, s44, 1")
    a("s_lshl_b32 s45, s45, 10")
    a("s_and_b32 s44, s44, 1")
    a("s_lshl_b32 s44, s44, 8")
    a("s_add_u32 s44, s44, s45")
    a(f"v_add_u32 v{reg}, s44, v43")
srd(60, 80, 81, 0 if OPT["wskip"] & 4 else 4608 * 1152)
a(f"s_mul_i32 s44, s46, {32*1152}")
a("s_mul_i32 s45, s24, 9216")
a("s_add_u32 s44, s44, s45")
a("s_add_u32 s45, s44, 4096")
a("s_add_u32 s46, s44, 8192")
for i in range(9):
    a(f"buffer_load_dwordx4 {R('v', 136+4*i)}, v3, s[60:63], s{44+(i>>2)} offen offset:{(i&3)*1024}{WPOL}")
a("s_branch LWDONE")
a.label("LWB")
a("s_cmp_lt_u32 s27, 30")
a("s_cbranch_scc0 LWDONE")
srd(60, 72, 73, 0 if OPT["wskip"] & 1 else 4096 * 1152)
a("v_lshrrev_b32 v41, 4, v1")
a("v_and_b32 v42, 15, v1")
a("v_mul_u32_u24 v40, 1152, v41")
a("v_lshl_add_u32 v40, v42, 4, v40")


def brole():
    a("s_sub_u32 s47, s27, 18")
    a("s_lshl_b32 s46, s28, 1")
    a("s_cmp_ge_u32 s47, 6")
    a("s_addc_u32 s46, s46, 0")
    a("s_cmp_ge_u32 s47, 6")
    a("s_cselect_b32 s48, 6, 0")
    a("s_sub_u32 s47, s47, s48")


brole()
a("s_lshl_b32 s44, s46, 8")
a("s_lshl_b32 s45, s24, 6")
a("s_add_u32 s44, s44, s45")
a("s_mul_i32 s44, s44, 1152")
a("s_mul_i32 s45, s47, 192")
a("s_add_u32 s44, s44, s45")
a("s_mov_b32 exec_lo, 0x0fff0fff")
a("s_mov_b32 exec_hi, 0x0fff0fff")
for i in range(16):
    a(f"buffer_load_dwordx4 {R('v', 64+4*i)}, v40, s[60:63], s44 offen{WPOL}")
    a(f"s_add_u32 s44, s44, {4*1152}")
a("s_mov_b64 exec, -1")
a("v_lshrrev_b32 v43, 1, v42")
a(f"v_mul_u32_u24 v43, {WOS}, v43")
a("v_lshl_add_u32 v43, v41, 5, v43")
a("v_and_b32 v42, 1, v42")
a("v_lshl_add_u32 v43, v42, 4, v43")
a("s_lshl_b32 s45, s24, 11")
a("v_add_u32 v43, s45, v43")
a.label("LWDONE")
a.vq = keep
sstamp(57)
PR = str(OPT["pr"]).zfill(4)
for _ in range(int(PR[0])):
    probe()
a.wait_vm_n(30)
burst("a", 64, "A1")
for _ in range(int(PR[1])):
    probe()
a.wait_vm_n(30)
burst("a", 128, "A2")
for _ in range(int(PR[2])):
    probe()
qpoll_addr(X0)
a.wait_vm_n(40)
qpoll_issue()
burst("a", 192, "A3")
for _ in range(int(PR[3])):
    probe()
a.wait_vm_n(50)
a("s_cmp_lt_u32 s27, 18")
a("s_cbranch_scc0 LWB2")
for i in range(9):
    a(f"ds_write_b128 v{34 if i & 1 else 43}, {R('v', 64+8*i)} offset:{(i>>1)*1024}")
    a(f"ds_write_b128 v{34 if i & 1 else 43}, {R('v', 68+8*i)} offset:{(i>>1)*1024+16}")
a("s_mul_i32 s44, s24, 9216")
a(f"s_add_u32 s44, s44, {WD}")
a("v_add_u32 v40, s44, v3")
for i in range(9):
    a(f"ds_write_b128 v40, {R('v', 136+4*i)} offset:{i*1024}")
a("s_branch LWDONE2")
a.label("LWB2")
a("s_cmp_lt_u32 s27, 30")
a("s_cbranch_scc0 LWDONE2")
a("s_mov_b32 exec_lo, 0x0fff0fff")
a("s_mov_b32 exec_hi, 0x0fff0fff")
for i in range(16):
    a(f"ds_write_b128 v43, {R('v', 64+4*i)} offset:{(i&1)*512+((i>>1)&3)*128+(i>>3)*1024}")
a("s_mov_b64 exec, -1")
a.label("LWDONE2")
a(f"v_mov_b32 v{VL}, 0")
a("s_mov_b32 s91, 0")
a("s_mov_b32 s92, 0")
a("s_mov_b32 s94, 0")
a("s_mov_b32 s95, 7")
a(f"s_mov_b32 s96, {NP1}")
a("s_waitcnt lgkmcnt(0)")
a.wait_vm("qp")
if STAMPS:
    a("s_memrealtime s[58:59]")
    a("s_waitcnt lgkmcnt(0)")
    a("s_mov_b32 s75, s58")
qpoll_check()
a("s_cbranch_scc0 LQREADY")

a.label("LQPOLL")
qpoll_issue()
a("s_waitcnt vmcnt(0)")
qpoll_check()
a("s_cbranch_scc0 LQREADY")
retry("LQPOLL", "LQREADY")
a.label("LQREADY")
a("s_mov_b32 s90, 1")
a("s_atomic_add s90, s[88:89], 0 glc")
for i in range(4):
    a(f"v_cndmask_b32 v{QE+i}, v{24+2*i}, 0, s[42:43]")
    a(f"v_cndmask_b32 v{QO+i}, 0, v{24+2*i}, s[42:43]")
for r in range(4):
    a(f"v_mov_b32 v{OA+r}, 0")
a(f"v_mov_b32 v{MS}, {f32(-1e30)}")
a(f"v_mov_b32 v{LS}, 0")
stamp(0)
a("s_cmp_eq_u32 s31, 0")
a("s_cbranch_scc0 LP2")
if OPT["vote"]:
    a("s_getreg_b32 s47, hwreg(HW_REG_XCC_ID)")
    a("s_bfe_u32 s47, s47, 0x10002")
    a("s_sub_i32 s44, s55, s56")
    a("s_min_i32 s44, s44, 300")
    a("s_max_i32 s44, s44, -300")
    a("s_sub_i32 s45, 0, s44")
    a("s_cmp_eq_u32 s47, 0")
    a("s_cselect_b32 s44, s44, s45")
    a("s_mov_b32 s46, s44")
    a("s_atomic_add s46, s[88:89], 12 glc")
    a("s_waitcnt lgkmcnt(0)")
    a("s_add_i32 s44, s44, s46")
    a("s_cmp_gt_i32 s44, 0")
    a("s_cselect_b32 s44, 1, 0")
    a("s_xor_b32 s44, s44, s47")
else:
    a("s_cmp_gt_u32 s55, s56")
    a("s_cselect_b32 s44, 1, 0")
if OPT["forcecls"] == 2:
    a("s_xor_b32 s44, s44, 1")
a("s_lshl_b32 s45, s44, 2")
a("s_add_u32 s45, s45, 4")
a("s_mov_b32 s46, 1")
a("s_atomic_add s46, s[88:89], s45 glc")
a("s_waitcnt lgkmcnt(0)")
a("s_cmp_lt_u32 s46, 32")
a("s_cbranch_scc1 LBUN")
a("s_xor_b32 s44, s44, 1")
a("s_xor_b32 s45, s45, 12")
a("s_mov_b32 s46, 1")
a("s_atomic_add s46, s[88:89], s45 glc")
a("s_waitcnt lgkmcnt(0)")
a.label("LBUN")
a("s_lshl_b32 s40, s46, 1")
a("s_sub_u32 s40, s40, s44")
a("s_add_u32 s40, s40, 1473")
a("s_lshl_b32 s40, s40, 13")
a("s_lshr_b32 s45, s46, 4")
a("s_xor_b32 s44, s44, s45")
a("s_lshl_b32 s57, s46, 4")
a("s_add_u32 s57, s57, s44")
a("s_add_u32 s57, s57, 1536")
a("s_lshl_b32 s57, s57, 13")
a("s_mov_b32 s55, -1")
a("s_mov_b32 s37, -1")
a("s_mov_b32 s56, 256")
a(f"s_mov_b32 s54, {TF}")
a("s_mov_b32 s36, 0")
a("s_mov_b32 s101, 0")
a("s_mov_b32 s97, 0")
a("s_mov_b32 s41, 0")
a("s_cmp_eq_u32 s24, 0")
a("s_cbranch_scc0 LNOCNT")
a("s_mov_b32 s48, 1")
a("s_atomic_add s48, s[84:85], 0")
a.label("LNOCNT")
a.vq = qtags("A3")


def baddr(i):
    a(f"s_add_u32 s32, s57, {2*i*16384}")
    a(f"s_add_u32 s34, s57, {(2*i+1)*16384}")
    setaddr(32, 34)


def draw(s, exhausted):
    ln, lg = a.newlabel("noapp"), a.newlabel("go")
    a("s_cmp_lt_u32 s90, s96")
    a(f"s_cbranch_scc0 {exhausted}")
    a("s_add_u32 s32, s90, s56")
    a("s_lshl_b32 s32, s32, 13")
    a(f"s_bitset0_b32 s97, {s}")
    a("s_cmp_ge_u32 s90, s54")
    a(f"s_cbranch_scc0 {ln}")
    a(f"s_bitset1_b32 s97, {s}")
    a("s_mov_b32 m0, s94")
    a("s_nop 0")
    a(f"v_writelane_b32 v{VL}, s32, m0")
    a("s_add_u32 s94, s94, 1")
    a("s_cmp_lt_u32 s94, 62")
    a(f"s_cbranch_scc1 {ln}")
    a("s_mov_b32 s90, 0x7fffffff")
    a(f"s_branch {lg}")
    a.label(ln)
    if OPT["eg"]:
        a(f"s_add_u32 s90, s90, {OPT['eg']}")
        a("s_cmp_ge_u32 s90, s96")
        a("s_cselect_b32 s41, 1, 0")
        a(f"s_cbranch_scc1 {lg}")
    a("s_mov_b32 s90, 1")
    a("s_atomic_add s90, s[88:89], 0 glc")
    a.label(lg)


def ticket_ready():
    if OPT["eg"]:
        lk = a.newlabel("tk")
        a("s_cmp_eq_u32 s41, 0")
        a(f"s_cbranch_scc1 {lk}")
        a(f"s_waitcnt vmcnt({OPT['gv']})")
        a("s_sub_u32 s41, s41, 1")
        a("s_mov_b32 s90, 1")
        a("s_atomic_add s90, s[88:89], 0 glc")
        a.label(lk)
    a("s_waitcnt lgkmcnt(0)")


for i in range(4):
    baddr(i)
    if i < 3:
        a.wait_vm_n(47)
        for hf in range(2):
            for t in range(8):
                ld("v", RING[i] + 32 * hf, t, "V", hf, VPOL, ("X", 2 * i + hf, t))
    a.wait_vm_n(47)
    unit2(("a", 64 * i), ("a", 64 * i + 32), lambda t: (f"A{i}", "K", t), lambda t: (f"A{i}", "V", t),
          lambda t: ld("a", 64 * i, t, "K", 0, " nt", ("BK", 2 * i, t)),
          lambda t: ld("a", 64 * i + 32, t, "K", 1, " nt", ("BK", 2 * i + 1, t)))
for d in range(4):
    sl = RING[d % 3]
    if d == 0:
        rka = lambda t: ld("v", sl, t, "V", 0, VPOL, ("X", 6, t))
        rkb = lambda t: ld("v", sl + 32, t, "V", 1, VPOL, ("X", 7, t))
    else:
        if d == 1:
            setaddr(40, 40)
        else:
            le, lc = a.newlabel("dex"), a.newlabel("dco")
            ticket_ready()
            draw(d % 3, le)
            a(f"s_branch {lc}")
            a.label(le)
            a(f"s_bitset0_b32 s95, {d % 3}")
            a("s_mov_b32 s32, 0x1000000")
            a.label(lc)
            setaddr(32, 32)
        rka = lambda t: ldK("v", sl, t, f"P{d}")
        rkb = lambda t: ldV("v", sl, t, f"P{d}")
    a.wait_vm_n(47)
    unit2(("a", 64 * d), ("v", sl), lambda t: ("BK", 2 * d, t), lambda t: ("X", 2 * d, t), None, rka)
    unit2(("a", 64 * d + 32), ("v", sl + 32), lambda t: ("BK", 2 * d + 1, t), lambda t: ("X", 2 * d + 1, t), None, rkb)
a("s_lshl_b32 s44, s24, 13")
a(f"s_add_u32 s44, s44, {KL}")
a("v_add_u32 v40, s44, v3")
waitq(("P1", "K", 7))
for t in range(8):
    a(f"ds_write_b128 v40, {R('v', RING[1]+4*t)} offset:{t*1024}")
a("s_branch LRING1")
a.label("LP2")
a("s_mov_b32 s3, 0")
a("s_mov_b32 s56, 0")
a("s_mov_b32 s41, 0")
a("s_mov_b32 s54, -1")
a("s_mov_b32 s101, 0")
a("s_mov_b32 s36, 0")
a(f"s_mov_b32 s37, {OPT['cn']}")
a("s_and_b32 s3, s3, s36")
for i in range(10):
    a(f"s_mov_b32 s55, {THR0 + i*THRS}")
    a("s_add_u32 s36, s36, 1")
    a("s_branch LRINGGO")
    a.label(f"LRET{i+1}")
    a.vq = []
    if i > 0:
        def vwait():
            l0, l1 = a.newlabel("sw"), a.newlabel("sw")
            a("s_cmp_ge_u32 s101, 2")
            a(f"s_cbranch_scc1 {l0}")
            a("s_cmp_eq_u32 s101, 1")
            a(f"s_cbranch_scc1 {l1}")
            a("s_waitcnt vmcnt(0)")
            a.label(l1)
            a("s_waitcnt vmcnt(16)")
            a.label(l0)
            a("s_waitcnt vmcnt(32)")
        if i == 8:
            a("s_lshl_b32 s44, s24, 13")
            a(f"s_add_u32 s44, s44, {KL}")
            a("v_add_u32 v40, s44, v3")
            for t in range(8):
                a(f"ds_read_b128 {R('a', 4*t)}, v40 offset:{t*1024}")
        unit2(None, ("a", 32 * ((i - 1) & 7)), hooks=(None, vwait), tt=52)
    if i < 9:
        if i < 8:
            a(f"s_add_u32 s34, s57, {i*16384}")
            setaddr(None, 34)
        else:
            setaddr(None, 40)
            a("s_waitcnt lgkmcnt(0)")
        a.wait_vm_n(55)
        unit2(("a", 32 * (i & 7)), None, None, None, lambda t: ld("a", 32 * (i & 7), t, "V", 1, VPOL, None), tt=52)
        a("s_mov_b32 s101, 0")
a("s_mov_b32 s55, -1")
a("s_mov_b32 s37, -1")
a.label("LRINGGO")
a("s_cmp_eq_u32 s3, 0")
a("s_cbranch_scc1 LRING0")
a("s_cmp_eq_u32 s3, 1")
a("s_cbranch_scc1 LRING1")
a("s_branch LRING2")
a.label("LPASSEND")
stamp(1)
a(f"v_add_f32_dpp v{LS}, v{LS}, v{LS} row_half_mirror{DPPM}")
rows("v_add_f32", LS, TMP)
a(f"v_mul_f32 v22, s30, v{MS}")
a(f"v_mov_b32 v23, v{LS}")
a("v_bfe_u32 v40, v1, 3, 1")
a("v_lshlrev_b32 v41, 9, v40")
a("v_lshrrev_b32 v42, 4, v1")
a("v_lshl_add_u32 v41, v42, 7, v41")
a("v_and_b32 v42, 7, v1")
a("v_lshl_add_u32 v41, v42, 2, v41")
a("s_lshl_b32 s44, s24, 10")
a(f"s_add_u32 s44, s44, {CB1}")
a("v_add_u32 v41, s44, v41")
for r in range(4):
    a(f"ds_write_b32 v41, v{OA+r} offset:{32*r}")
a("s_lshl_b32 s44, s24, 3")
a(f"s_add_u32 s44, s44, {CS1}")
a("v_lshlrev_b32 v40, 5, v40")
a("v_add_u32 v40, s44, v40")
a("ds_write_b64 v40, v[22:23]")
a("v_lshlrev_b32 v40, 2, v0")
a(f"v_add_u32 v40, {LSV}, v40")
a(f"ds_write_b32 v40, v{VL}")
a.label("LCNT")
a("s_waitcnt vmcnt(0)")
a("v_readfirstlane_b32 s44, v49")
a("s_cmp_ge_u32 s44, 256")
a("s_cbranch_scc1 LCNTOK")
a("v_mov_b32 v48, 0")
a("buffer_load_dword v49, v48, s[20:23], 0 offen sc1")
retry("LCNT", "LCNTOK")
a.label("LCNTOK")
a("s_waitcnt lgkmcnt(0)")
a("s_barrier")
combine(CB1, CS1)
a(f"s_mul_i32 s44, s2, {X1S}")
a("s_add_u32 s44, s44, s39")
a("v_lshlrev_b32 v8, 2, v0")
a("buffer_store_dword v24, v8, s[12:15], s44 offen sc1")
a("s_lshl_b32 s45, s24, 6")
a("v_mov_b32 v9, s45")
a("s_bitcmp0_b32 s24, 0")
a("s_cbranch_scc0 LPUB1")
a("s_mov_b64 exec, 1")
a("buffer_store_dwordx2 v[26:27], v9, s[12:15], s44 offen offset:1024 sc1")
a("s_mov_b64 exec, -1")
a.label("LPUB1")
stamp(2)
a("s_cmp_lt_u32 s27, 18")
a("s_cbranch_scc1 LSTC")
a("s_cmp_lt_u32 s27, 30")
a("s_cbranch_scc0 LSTQ")
brole()
a(f"s_mul_i32 s48, s46, {16*X1S}")
a("s_add_u32 s48, s48, s39")
for g in range(1, 4):
    a(f"s_add_u32 s{48+g}, s48, {g*4*X1S}")
a("v_lshlrev_b32 v8, 2, v0")
a("v_and_b32 v9, 15, v1")
a(f"v_mul_u32_u24 v9, {X1S}, v9")
a("s_lshr_b32 s44, s24, 1")
a("s_lshl_b32 s44, s44, 7")
a("v_add_u32 v9, s44, v9")
a("v_lshlrev_b32 v10, 1, v0")
a(f"v_add_u32 v10, {OB}, v10")
a(f"s_mul_i32 s44, s24, {2*WOS}")
a("v_lshlrev_b32 v58, 3, v1")
a("v_add_u32 v58, s44, v58")
afrag_addr(57, base=OB)
a.label("LE1")
a("buffer_load_dwordx2 v[28:29], v9, s[12:15], s48 offen offset:1024 sc1")
for p in range(16):
    a(f"buffer_load_dword v{12+p}, v8, s[12:15], s{48+(p>>2)} offen offset:{(p&3)*X1S} sc1")
a("s_waitcnt vmcnt(16)")
ROWRED = ("quad_perm:[1,0,3,2]", "quad_perm:[2,3,0,1]", "row_half_mirror", "row_mirror")
a(f"v_max_f32_dpp v30, v28, v28 {ROWRED[0]}{DPPM}")
for st in ROWRED[1:]:
    a(f"v_max_f32_dpp v30, v30, v30 {st}{DPPM}")
a("v_sub_f32 v28, v28, v30")
a("v_exp_f32 v28, v28")
a("v_mul_f32 v29, v29, v28")
for st in ROWRED:
    a(f"v_add_f32_dpp v29, v29, v29 {st}{DPPM}")
a("v_rcp_f32 v29, v29")
a("v_mul_f32 v28, v28, v29")
a("s_waitcnt vmcnt(0)")
for p in range(16):
    op = "v_mul_f32_dpp" if p < 4 else "v_fmac_f32_dpp"
    a(f"{op} v{32+(p&3)}, v28, v{12+p} row_newbcast:{p}{DPPM}")
a("v_add_f32 v32, v32, v33")
a("v_add_f32 v34, v34, v35")
a("v_add_f32 v32, v32, v34")
a("v_cmp_u_f32 vcc, v32, v32")
a("s_cbranch_vccz LE1OK")
retry("LE1", "LE1OK")
a.label("LE1OK")
stamp(3)
a("v_cvt_pk_bf16_f32 v32, v32, v32")
a("ds_write_b16 v10, v32")
a("s_waitcnt lgkmcnt(0)")
a("s_barrier")
a("s_cmp_eq_u32 s24, 3")
a("s_cbranch_scc1 LSTQ")


def b_issue(kk):
    s = 8 + 12 * (kk % 3)
    a(f"ds_read_b128 {R('v', s)}, v57 offset:{kk*64}")
    for t in range(2):
        a(f"ds_read_b64_tr_b16 {R('v', s+4+4*t, 2)}, v58 offset:{kk*1024+t*WOS}")
        a(f"ds_read_b64_tr_b16 {R('v', s+6+4*t, 2)}, v58 offset:{kk*1024+t*WOS+512}")


for kk in range(3):
    b_issue(kk)
for kk in range(8):
    a(f"s_waitcnt lgkmcnt({5*(min(8, kk+3)-kk-1)})")
    s = 8 + 12 * (kk % 3)
    for t in range(2):
        acc = R("v", 48 + 4 * t)
        a(f"v_mfma_f32_16x16x32_bf16 {acc}, {R('v', s)}, {R('v', s+4+4*t)}, {'0' if kk == 0 else acc}")
    if kk + 3 < 8:
        b_issue(kk + 3)
a("s_mul_i32 s44, s46, 2304")
a("s_mul_i32 s45, s47, 384")
a("s_add_u32 s44, s44, s45")
a("s_lshl_b32 s45, s24, 7")
a("s_add_u32 s44, s44, s45")
a("s_add_u32 s44, s44, s39")
a(f"s_add_u32 s44, s44, {X2}")
a("s_mov_b32 s48, 0xffff0000")
a("s_mov_b32 s49, 0xffff0000")
a("v_lshlrev_b32 v8, 2, v1")
a("v_cndmask_b32 v48, v48, v52, s[48:49]")
a("s_mov_b32 exec_hi, 0")
a("buffer_store_dword v48, v8, s[12:15], s44 offen sc1")
a("s_mov_b64 exec, -1")
stamp(4)
a("s_branch LSTQ")
a.label("LSTC")
a("s_cmp_eq_u32 s24, 3")
a("s_cbranch_scc0 LSTC1")
if OPT["npf"]:
    a("s_cmp_eq_u32 s31, 0")
    a("s_cbranch_scc0 LC_BAR")
    a("v_lshlrev_b32 v34, 7, v1")
    a("s_lshl_b32 s44, s26, 15")
    for n in range(OPT["npf"]):
        for i in range(4):
            a(f"s_add_u32 s45, s44, {(4+n)*UNIT_STEP+i*8192}")
            a(f"buffer_load_dword v35, v34, s[4:7], s45 offen{PFK}")
            a(f"buffer_load_dword v36, v34, s[8:11], s45 offen{PFV}")
    a("s_waitcnt vmcnt(0)")
a("s_branch LC_BAR")
a.label("LSTC1")
a("v_lshrrev_b32 v56, 4, v1")
a("v_mul_u32_u24 v56, 2304, v56")
a("v_and_b32 v57, 15, v1")
a("v_lshl_add_u32 v56, v57, 4, v56")
a("s_mul_i32 s48, s24, 768")
a("s_add_u32 s44, s48, s39")
a(f"s_add_u32 s44, s44, {X2}")
for g in range(1, 4):
    a(f"s_add_u32 s{44+g}, s44, {g*9216}")
a("v_bfe_u32 v58, v1, 4, 1")
a("v_lshlrev_b32 v58, 1, v58")
a("v_lshrrev_b32 v59, 5, v1")
a("v_add_u32 v58, v58, v59")
a("v_lshl_add_u32 v58, v57, 2, v58")
a("s_cmp_eq_u32 s31, 0")
a("s_cbranch_scc0 LC_X2")
srd(60, 98, 99, 1152)
a("s_lshr_b32 s48, s48, 1")
a("v_lshlrev_b32 v58, 1, v58")
a("v_add_u32 v58, s48, v58")
for c in range(3):
    a(f"buffer_load_ushort v{60+c}, v58, s[60:63], 0 offen offset:{c*128}")
a("s_branch LC_X3")
a.label("LC_X2")
a("v_lshrrev_b32 v59, 5, v58")
a("v_lshlrev_b32 v59, 6, v59")
a("v_lshl_add_u32 v59, v58, 1, v59")
a(f"s_add_u32 s49, s48, {LB0+X4}")
for c in range(3):
    a(f"buffer_load_ushort v{60+c}, v59, s[12:15], s49 offen offset:{c*256} sc1")
a("s_lshr_b32 s48, s48, 1")
a("v_lshlrev_b32 v58, 1, v58")
a("v_add_u32 v58, s48, v58")
a.label("LC_X3")
a(f"v_add_u32 v59, {XB}, v58")
a.label("LE2")
for c in range(3):
    for g in range(4):
        a(f"buffer_load_dwordx4 {R('v', 8+16*c+4*g)}, v56, s[12:15], s{44+g} offen offset:{c*256} sc1")
for c in range(3):
    b = 8 + 16 * c
    a(f"s_waitcnt vmcnt({8-4*c})")
    for r in range(4):
        a(f"v_add_f32 v{b+r}, v{b+r}, v{b+4+r}")
        a(f"v_add_f32 v{b+8+r}, v{b+8+r}, v{b+12+r}")
    for r in range(4):
        a(f"v_add_f32 v{b+r}, v{b+r}, v{b+8+r}")
    swapreduce(b)
a("v_add_f32 v9, v8, v24")
a("v_cmp_u_f32 vcc, v9, v40")
a("s_cbranch_vccz LE2OK")
retry("LE2", "LE2OK")
a.label("LE2OK")
stamp(5)
for c in range(3):
    bf16r(8 + 16 * c, 8 + 16 * c)
    a(f"v_lshlrev_b32 v{60+c}, 16, v{60+c}")
for c in range(3):
    a(f"v_add_f32 v{60+c}, v{60+c}, v{8+16*c}")
for c in range(3):
    a(f"v_cvt_pk_bf16_f32 v{60+c}, v{60+c}, v{60+c}")
for c in range(3):
    a(f"ds_write_b16 v59, v{60+c} offset:{c*128}")
a.label("LC_BAR")
a(f"s_mov_b32 s44, {XB}")
a(f"s_mul_i32 s45, s24, {TS}")
lng_addr()
a("s_waitcnt lgkmcnt(0)")
a("s_barrier")
a("s_call_b64 s[36:37], LLNG")
a("s_lshl_b32 s44, s24, 4")
a(f"s_add_u32 s44, s44, {HB}")
a("v_lshlrev_b32 v40, 1, v1")
a("v_add_u32 v40, s44, v40")
a("v_lshrrev_b32 v56, 4, v1")
a("v_lshlrev_b32 v57, 3, v56")
a("v_bfe_u32 v58, v1, 2, 2")
a("v_add_u32 v57, v57, v58")
a("v_mul_u32_u24 v57, 1152, v57")
a("v_and_b32 v58, 3, v1")
a("v_lshl_add_u32 v57, v58, 3, v57")
a("s_lshl_b32 s44, s24, 7")
a(f"s_add_u32 s44, s44, {WD}")
a("v_add_u32 v57, s44, v57")
a("v_lshlrev_b32 v56, 4, v56")
a(f"v_add_u32 v56, {HB}, v56")


def downB(i):
    for t in range(4):
        s = 8 + 16 * (i & 1) + 4 * t
        a(f"ds_read_b64_tr_b16 {R('v', s, 2)}, v57 offset:{i*512+t*32}")
        a(f"ds_read_b64_tr_b16 {R('v', s+2, 2)}, v57 offset:{i*512+t*32+4*1152}")


downB(0)
a(f"v_mov_b32_dpp v41, v60 row_shl:8{DPPM} bound_ctrl:1")
a("v_cvt_pk_bf16_f32 v41, v60, v41")
a("v_lshlrev_b32 v42, 16, v41")
a("v_and_b32 v41, 0xffff0000, v41")
a("v_max_f32 v42, 0, v42")
a("v_mul_f32 v41, v42, v41")
a("v_cvt_pk_bf16_f32 v41, v41, v41")
a("s_mov_b64 exec, 0xff")
a("ds_write_b16 v40, v41")
a("s_mov_b64 exec, -1")
a("v_lshrrev_b32 v58, 5, v1")
a("v_mul_u32_u24 v58, 18432, v58")
a("v_and_b32 v59, 31, v1")
a("v_lshl_add_u32 v58, v59, 2, v58")
a("s_mul_i32 s44, s28, 18")
a("s_add_u32 s44, s44, s27")
a("s_lshl_b32 s44, s44, 7")
a("s_mul_i32 s45, s24, 36864")
a("s_add_u32 s44, s44, s45")
a("s_add_u32 s44, s44, s39")
a(f"s_add_u32 s44, s44, {X3}")
a("s_mov_b32 s46, 0xffff0000")
a("s_mov_b32 s47, 0xffff0000")
a("s_mov_b32 s48, 0")
a("s_mov_b32 s49, -1")
a("s_waitcnt lgkmcnt(0)")
a("s_barrier")
a("ds_read_b128 v[60:63], v56")
downB(1)


def downG(i, wait):
    a(f"s_waitcnt lgkmcnt({wait})")
    for t in range(4):
        s = 8 + 16 * (i & 1) + 4 * t
        a(f"v_mfma_f32_16x16x32_bf16 {R('v', 40+4*t)}, v[60:63], {R('v', s)}, 0")
    a("v_cndmask_b32 v40, v40, v44, s[46:47]")
    a("v_cndmask_b32 v48, v48, v52, s[46:47]")
    a("v_cndmask_b32 v40, v40, v48, s[48:49]")
    a("buffer_store_dword v40, v58, s[12:15], s44 offen sc1")
    a(f"s_add_u32 s44, s44, {4*36864}")


downG(0, 8)
a("s_cmp_eq_u32 s24, 0")
a("s_cbranch_scc1 LDOWN3")
downG(1, 0)
a("s_branch LSTD")
a.label("LDOWN3")
a("s_waitcnt lgkmcnt(0)")
downB(2)
downG(1, 8)
downG(2, 0)
a.label("LSTD")
stamp(6)
a("s_lshl_b32 s50, s27, 3")
a("s_add_u32 s50, s50, s28")
a("s_cmp_lt_u32 s50, 18")
a("s_cbranch_scc0 LSTQ")
a("s_mul_i32 s44, s50, 18432")
a("s_mul_i32 s45, s24, 4608")
a("s_add_u32 s44, s44, s45")
a("s_add_u32 s44, s44, s39")
a(f"s_add_u32 s44, s44, {X3}")
a("s_add_u32 s45, s44, 4096")
a("v_bfe_u32 v58, v1, 4, 1")
a("v_lshlrev_b32 v58, 1, v58")
a("v_lshrrev_b32 v59, 5, v1")
a("v_add_u32 v58, v58, v59")
a("v_and_b32 v59, 7, v1")
a("v_lshl_add_u32 v58, v59, 2, v58")
a("v_lshlrev_b32 v58, 2, v58")
a("s_lshl_b32 s46, s24, 7")
a(f"s_add_u32 s46, s46, {FB}")
a("v_add_u32 v58, s46, v58")
for r in range(4):
    a(f"v_mov_b32 v{24+r}, 0")
a.label("LE3")
for i in range(4):
    a(f"buffer_load_dwordx4 {R('v', 8+4*i)}, v3, s[12:15], s44 offen offset:{i*1024} sc1")
a("s_mov_b32 exec_hi, 0")
a("buffer_load_dwordx4 v[24:27], v3, s[12:15], s45 offen sc1")
a("s_mov_b64 exec, -1")
a("s_waitcnt vmcnt(0)")
for r in range(4):
    a(f"v_add_f32 v{8+r}, v{8+r}, v{12+r}")
    a(f"v_add_f32 v{16+r}, v{16+r}, v{20+r}")
for r in range(4):
    a(f"v_add_f32 v{8+r}, v{8+r}, v{24+r}")
for r in range(4):
    a(f"v_add_f32 v{8+r}, v{8+r}, v{16+r}")
swapreduce(8)
a(f"v_add_f32_dpp v8, v8, v8 row_ror:8{DPPM}")
a("v_cmp_u_f32 vcc, v8, v8")
a("s_cbranch_vccz LE3OK")
retry("LE3", "LE3OK")
a.label("LE3OK")
stamp(7)
a("ds_write_b32 v58, v8")
a("v_lshlrev_b32 v8, 2, v1")
a(f"v_add_u32 v9, {FB}, v8")
a("s_lshl_b32 s45, s50, 6")
a(f"s_add_u32 s46, s45, {XB}")
a("v_lshlrev_b32 v8, 1, v1")
a("v_add_u32 v10, s46, v8")
a("s_waitcnt lgkmcnt(0)")
a("s_barrier")
a("s_cmp_eq_u32 s24, 0")
a("s_cbranch_scc0 LSTQ")
a("s_mov_b32 exec_hi, 0")
for w in range(4):
    a(f"ds_read_b32 v{12+w}, v9 offset:{128*w}")
a("ds_read_u16 v16, v10")
a("s_waitcnt lgkmcnt(0)")
a("v_lshlrev_b32 v16, 16, v16")
a("v_add_f32 v12, v12, v13")
a("v_add_f32 v14, v14, v15")
a("v_add_f32 v12, v12, v14")
bf16r(12, 12)
a("v_add_f32 v12, v12, v16")
a(f"v_mov_b32_dpp v13, v12 quad_perm:[1,1,3,3]{DPPM}")
a("v_cvt_pk_bf16_f32 v12, v12, v13")
a("s_mov_b32 exec_lo, 0x55555555")
a("s_cmp_eq_u32 s31, 0")
a("s_cbranch_scc0 LFINAL")
a("s_lshl_b32 s45, s50, 7")
a("s_add_u32 s45, s45, s39")
a(f"s_add_u32 s45, s45, {X4}")
a("buffer_store_dword v12, v8, s[12:15], s45 offen sc1")
a("s_mov_b64 exec, -1")
a("s_branch LSTQ")
a.label("LFINAL")
a("buffer_store_dword v12, v8, s[16:19], s45 offen")
a("s_mov_b64 exec, 1")
a("s_cmp_eq_u32 s50, 0")
a("s_cbranch_scc0 LNOEP")
a("v_mov_b32 v9, s29")
a("buffer_store_dword v9, v8, s[12:15], 0 offen sc1")
a.label("LNOEP")
a("s_mov_b64 exec, -1")
a.label("LSTQ")
stamp(8)
a("s_cmp_eq_u32 s31, 0")
a("s_cbranch_scc0 LDONE")
if OPT["npf"]:
    a("s_cmp_lt_u32 s27, 18")
    a("s_cbranch_scc1 LQ5")
    a("v_lshlrev_b32 v34, 7, v1")
    a("s_lshl_b32 s44, s26, 2")
    a("s_add_u32 s44, s44, s24")
    a("s_lshl_b32 s44, s44, 13")
    for n in range(OPT["npf"]):
        a(f"s_add_u32 s45, s44, {(4+n)*UNIT_STEP}")
        a(f"buffer_load_dword v35, v34, s[4:7], s45 offen{PFK}")
        a(f"buffer_load_dword v36, v34, s[8:11], s45 offen{PFV}")
a("s_cmp_ge_u32 s27, 24")
a("s_cbranch_scc0 LQ5")
a(f"s_add_u32 s44, s39, {X4}")
a("v_lshrrev_b32 v16, 2, v1")
a("v_lshlrev_b32 v16, 7, v16")
a("v_and_b32 v17, 3, v1")
a("v_lshl_add_u32 v16, v17, 4, v16")
for r in range(4):
    a(f"v_mov_b32 v{12+r}, 0")
a.label("LE4")
a("buffer_load_dwordx4 v[8:11], v16, s[12:15], s44 offen sc1")
a("s_mov_b64 exec, 0xff")
a("buffer_load_dwordx4 v[12:15], v16, s[12:15], s44 offen offset:2048 sc1")
a("s_mov_b64 exec, -1")
a("s_waitcnt vmcnt(0)")
a("v_max3_u32 v17, v8, v9, v10")
a("v_max3_u32 v18, v11, v12, v13")
a("v_max3_u32 v17, v17, v14, v15")
a("v_max_u32 v17, v17, v18")
a("v_cmp_eq_u32 vcc, -1, v17")
a("s_cbranch_vccz LE4OK")
retry("LE4", "LE4OK")
a.label("LE4OK")
stamp(9)
a(f"s_mov_b32 s54, {X5}")
a("s_call_b64 s[36:37], LQSTAGE")
a.label("LQ5")
if STAMPS:
    a("s_memrealtime s[58:59]")
    a("s_waitcnt lgkmcnt(0)")
    a("s_mov_b32 s74, s58")
a("s_mov_b32 s31, 1")
a(f"s_add_u32 s39, s39, {LSTRIDE}")
a("s_add_u32 s88, s88, 4096")
a("s_addc_u32 s89, s89, 0")
a(f"s_mov_b32 s96, {NP2}")
a("s_mov_b32 s91, 0")
a("s_mov_b32 s95, s97")
a("v_lshlrev_b32 v40, 2, v0")
a(f"v_add_u32 v40, {LSV}, v40")
a(f"ds_read_b32 v{VL}, v40")
qpoll_addr(X5)
a("s_waitcnt lgkmcnt(0)")
a("s_branch LQPOLL")

a.label("LQSTAGE")
a("s_mul_i32 s44, s24, 1152")
a(f"s_add_u32 s44, s44, {XB}")
a("v_add_u32 v56, s44, v3")
a("ds_write_b128 v56, v[8:11]")
a("s_mov_b64 exec, 0xff")
a("ds_write_b128 v56, v[12:15] offset:1024")
a("s_mov_b64 exec, -1")
a(f"s_mul_i32 s45, s24, {TS}")
a(f"s_add_u32 s45, s45, {WQ}")
lng_addr()
a("s_mov_b64 s[52:53], s[36:37]")
a("s_waitcnt lgkmcnt(0)")
a("s_call_b64 s[36:37], LLNG")
a("s_lshl_b32 s44, s28, 3")
a("s_add_u32 s44, s44, s27")
a("s_sub_u32 s44, s44, 24")
a("s_lshl_b32 s44, s44, 2")
a("s_add_u32 s44, s44, s24")
a("s_lshl_b32 s44, s44, 7")
a("s_add_u32 s44, s44, s54")
a("v_lshlrev_b32 v8, 2, v1")
a("v_mov_b32 v11, s29")
a(f"v_mov_b32_dpp v9, v60 quad_perm:[1,1,3,3]{DPPM}")
a("v_cvt_pk_bf16_f32 v10, v60, v9")
a("s_mov_b64 exec, 0x5555")
a("buffer_store_dwordx2 v[10:11], v8, s[12:15], s44 offen sc1")
a("s_mov_b64 exec, -1")
a("s_setpc_b64 s[52:53]")

a.label("LLNG")
lngemv()
a("s_setpc_b64 s[36:37]")

a.vq = qtags("R0") + qtags("R1") + qtags("R2")
for s in range(3):
    lp, lg, ln, lb, lx = (a.newlabel(x) for x in ("pool", "go", "noapp", "bonly", "next"))
    a.label(f"LRING{s}")
    a(f"s_mov_b32 s3, {s}")
    ticket_ready()
    a("s_cmp_ge_u32 s90, s55")
    a("s_cbranch_scc1 LRINGX")
    a("s_cmp_ge_u32 s101, s37")
    a("s_cbranch_scc1 LRINGX")
    a("s_cmp_lt_u32 s91, s92")
    a(f"s_cbranch_scc0 {lp}")
    a(f"v_readlane_b32 s32, v{VL}, s91")
    a("s_add_u32 s91, s91, 1")
    a(f"s_branch {lg}")
    a.label(lp)
    draw(s, f"LDRAINE{s}")
    a.label(lg)
    setaddr(32, 32)
    a("s_add_u32 s101, s101, 1")
    a(f"s_bitcmp1_b32 s95, {s}")
    a(f"s_cbranch_scc0 {lb}")
    unit("v", RING[s], f"R{s}", f"R{s}n")
    q1 = [(t[0].rstrip("n"), t[1], t[2]) for t in a.vq]
    a(f"s_branch LRING{(s+1)%3}")
    a.label(lb)
    a(f"s_bitset1_b32 s95, {s}")
    for t in range(8):
        ldK("v", RING[s], t, "x")
    for t in range(8):
        ldV("v", RING[s], t, "x")
    a(f"s_branch LRING{(s+1)%3}")
    a.vq = q1
a.label("LRINGX")
for k in range(1, 10):
    a(f"s_cmp_eq_u32 s36, {k}")
    a(f"s_cbranch_scc1 LRET{k}")
a("s_branch LRET10")

for s in range(3):
    a.label(f"LDRAINE{s}")
    a("v_mov_b32 v48, 0")
    a("buffer_load_dword v49, v48, s[20:23], 0 offen sc1")
    a("s_mov_b32 s93, 0")
    a("s_bcnt1_i32_b32 s44, s97")
    a("s_sub_u32 s92, s94, s44")
    a(f"s_branch LDRAIN{s}")
for s in range(3):
    a.label(f"LDRAIN{s}")
    lsk = a.newlabel("dsk")
    a(f"s_bitcmp1_b32 s95, {s}")
    a(f"s_cbranch_scc0 {lsk}")
    unit_drain(RING[s])
    a.label(lsk)
    a("s_add_u32 s93, s93, 1")
    a("s_cmp_eq_u32 s93, 3")
    a("s_cbranch_scc1 LPASSEND")
a("s_branch LDRAIN0")

a.label("LDONE")
if OPT["padto"]:
    if OPT["padmin"]:
        a("s_mov_b32 s100, 0")
        a("s_atomic_add s100, s[84:85], 64 glc")
        a("s_waitcnt lgkmcnt(0)")
        a("s_not_b32 s100, s100")
    a.label("LPAD")
    a("s_memrealtime s[58:59]")
    a("s_waitcnt lgkmcnt(0)")
    a("s_sub_u32 s58, s58, s100")
    a(f"s_cmp_lt_u32 s58, {OPT['padto']*100}")
    a("s_cbranch_scc1 LPAD")
if STAMPS:
    a("s_memrealtime s[58:59]")
    a("s_waitcnt lgkmcnt(0)")
    a("s_mov_b32 s87, s58")
    a("s_lshl_b32 s44, s2, 2")
    a("s_add_u32 s44, s44, s24")
    a("s_lshl_b32 s44, s44, 7")
    a(f"s_add_u32 s44, s44, {STAMP_OFF}")
    a("v_mov_b32 v8, 0")
    a("s_mov_b64 exec, 1")
    for i in range(24):
        a(f"v_mov_b32 v9, s{64+i}")
        a(f"buffer_store_dword v9, v8, s[12:15], s44 offen offset:{4*i}")
    a("v_mov_b32 v9, s100")
    a("buffer_store_dword v9, v8, s[12:15], s44 offen offset:96")
    for i, r in enumerate((57, 92, 57, 57, 57, 94)):
        a(f"v_mov_b32 v9, s{r}")
        a(f"buffer_store_dword v9, v8, s[12:15], s44 offen offset:{100+4*i}")
    if OPT["dbgout"]:
        a("s_or_b32 s44, s2, s24")
        a("s_cmp_eq_u32 s44, 0")
        a("s_cbranch_scc0 LEND")
        for i, r in enumerate((64, 65, 66, 69, 70, 71, 72, 76, 77, 78, 81, 82, 83, 87)):
            a(f"s_sub_u32 s44, s{r}, s100")
            a("v_mov_b32 v9, s44")
            a(f"buffer_store_dword v9, v8, s[20:23], 0 offen offset:{4+4*i}")
    a("s_waitcnt vmcnt(0)")
a.label("LEND")
a("s_endpgm")

hdr = open("cdna_kernels/" + NAME + ".s.ref").read().split("\n")
top = [l for l in hdr if l.startswith(";") and "@launch" not in l]
out = "\n".join(top) + "\n"
out += f"; @launch grid=(256,1,1) block=(256,1,1) lds={LDS_SIZE}\n"
out += f""".amdgcn_target "amdgcn-amd-amdhsa--gfx950"
.text
.globl {NAME}_kernel
.p2align 8
.type {NAME}_kernel,@function
"""
out += a.text()
out += f""".section .rodata,"a"
.p2align 6
.amdhsa_kernel {NAME}_kernel
  .amdhsa_next_free_vgpr 512
  .amdhsa_next_free_sgpr 102
  .amdhsa_accum_offset 256
  .amdhsa_group_segment_fixed_size 0
  .amdhsa_kernarg_size 96
  .amdhsa_user_sgpr_count 2
  .amdhsa_user_sgpr_kernarg_segment_ptr 1
  .amdhsa_system_sgpr_workgroup_id_x 1
.end_amdhsa_kernel
"""
import re
if OPT["xl"]:
    out = re.sub(r"(buffer_load\S+ .*) sc1$", r"\1 sc0 sc1", out, flags=re.M)
if OPT["xs"]:
    out = re.sub(r"(buffer_store\S+ .*) sc1$", r"\1 sc0 sc1", out, flags=re.M)
open(sys.argv[1], "w").write(out)
```

```python
import sys, struct, math
from asmlib import Asm

NAME = "interleave_layers__gqa_block_cached__glu_gated_reglu__decode"
OPT = dict(stamps=0, p2rev=0, kvpol="nt", wpol="nt", wskip=0, vring="def", kring="nt", tfw=7, psleep=1, npf=0, thrp=80, pr=1110, eg=0, gv=8, xl=0, xs=0, padto=0, e1f=1, mixx=1, rot=0, padmin=0, cn=3, vote=1, avpol="def", forcecls=-1, dbgout=0, pfk="nt", pfv="def")
for arg in sys.argv[2:]:
    k, v = arg.split("=")
    OPT[k] = int(v) if v.lstrip("-").isdigit() else v
STAMPS = OPT["stamps"]
KVPOL = "" if OPT["kvpol"] == "def" else " " + OPT["kvpol"]
WPOL = "" if OPT["wpol"] == "def" else " " + OPT["wpol"]
PFK = "" if OPT["pfk"] == "def" else " " + OPT["pfk"]
PFV = "" if OPT["pfv"] == "def" else " " + OPT["pfv"]


def f32(x):
    return "0x%08x" % struct.unpack("<I", struct.pack("<f", x))[0]


X0 = 0x1000
X5 = 0x9000
CTR = 0x11000
LB0 = 0x20000
LSTRIDE = 0xC0000
X1 = 0x0
X1S = 1280
X2 = 0x50000
X3 = 0x59000
X4 = 0xAA000
STAMP_OFF = 0x200000
WS_SIZE = 0x400000
NP1 = 19 * 64
TF = NP1 - OPT["tfw"] * 64
NP2 = 256 + TF
THR0 = 64
THRS = (NP2 * OPT["thrp"] // 100 - THR0) // 9
WGU = 0
TS = 18432
WD = 73728
FB = 110592
HB = 111104
WO = 0
WOS = 8192
WQ = 49152
SA = 122880
CB1 = SA
CS1 = SA + 4096
XB = SA
OB = 127488
LSV = 128000
ONES = 129024
KL = 130176
LDS_SIZE = 162944

UNIT_STEP = 524288
DPPM = " row_mask:0xf bank_mask:0xf"
a = Asm()
stamp_n = [0]


def stamp(i):
    if not STAMPS:
        return
    a("s_memrealtime s[58:59]")
    a("s_waitcnt lgkmcnt(0)")
    lab = a.newlabel("st")
    a(f"s_mov_b32 s{64+12+i}, s58")
    a("s_cmp_eq_u32 s31, 0")
    a(f"s_cbranch_scc0 {lab}")
    a(f"s_mov_b32 s{64+i}, s58")
    a.label(lab)


def sstamp(reg):
    if True:
        return
    a("s_memrealtime s[58:59]")
    a("s_waitcnt lgkmcnt(0)")
    a(f"s_mov_b32 s{reg}, s58")


def logt():
    if STAMPS != 2:
        return
    a("s_memrealtime s[58:59]")
    a("s_waitcnt lgkmcnt(0)")
    a("s_mov_b32 m0, s93")
    a("s_add_u32 s93, s93, 1")
    a("s_min_u32 s93, s93, 63")
    a("v_writelane_b32 v51, s58, m0")


def R(kind, base, n=4):
    return f"{kind}[{base}:{base+n-1}]"


def srd(d, lo, hi, size):
    a(f"s_mov_b32 s{d}, s{lo}")
    a(f"s_and_b32 s{d+1}, s{hi}, 0xffff")
    a(f"s_mov_b32 s{d+2}, {size}")
    a(f"s_mov_b32 s{d+3}, 0x20000")


def srd_role(d, lo, hi, size):
    a(f"s_cselect_b32 s{d+2}, {size}, 0")
    a(f"s_mov_b32 s{d}, s{lo}")
    a(f"s_and_b32 s{d+1}, s{hi}, 0xffff")
    a(f"s_mov_b32 s{d+3}, 0x20000")


def ld(kind, reg, t, src, half, pol, tag):
    srd_, vo = {"K": ("s[4:7]", "v2"), "K2": ("s[60:63]", "v51"), "V": ("s[8:11]", "v3")}[src]
    a(f"buffer_load_dwordx4 {R(kind, reg+4*t)}, {vo}, {srd_}, s{32+2*half+(t>>2)} offen offset:{(t&3)*1024}{pol}", tag=tag)


VPOL = "" if OPT["vring"] == "def" else " nt"


def ldK(kind, base, t, tag):
    ld(kind, base, t, "K", 0, " nt", (tag, "K", t))


def ldV(kind, base, t, tag):
    ld(kind, base + 32, t, "V", 1, ("" if OPT["avpol"] == "def" else " nt") if kind == "a" else VPOL, (tag, "V", t))


def adv():
    for r in range(32, 36):
        a(f"s_add_u32 s{r}, s{r}, {UNIT_STEP}")


def setaddr(k, v):
    if k is not None:
        if k != 32:
            a(f"s_mov_b32 s32, s{k}")
        a("s_add_u32 s33, s32, 4096")
    if v is not None:
        if v != 34:
            a(f"s_mov_b32 s34, s{v}")
        a("s_add_u32 s35, s34, 4096")


def burst(kind, base, tag):
    for t in range(8):
        ldK(kind, base, t, tag)
    for t in range(8):
        ldV(kind, base, t, tag)
    adv()
    logt()


def waitq(tag, floor=0):
    if tag in a.vq:
        a.wait_vm(tag, floor)


def allreduce(op, v, t, first=0):
    steps = ["quad_perm:[1,0,3,2]", "quad_perm:[2,3,0,1]", "row_half_mirror", "row_mirror"]
    for s in steps[first:]:
        a(f"{op}_dpp v{v}, v{v}, v{v} {s}{DPPM}")
    rows(op, v, t)


def rows(op, v, t):
    a(f"v_mov_b32 v{t}, v{v}")
    a(f"v_permlane16_swap_b32 v{v}, v{t}")
    a(f"{op} v{v}, v{v}, v{t}")
    a(f"v_mov_b32 v{t}, v{v}")
    a(f"v_permlane32_swap_b32 v{v}, v{t}")
    a(f"{op} v{v}, v{v}, v{t}")


QE, QO, OA, MS, LS, NMC = 8, 12, 16, 20, 21, 22
DS_ = [24, 28, 32, 36]
TT = 40
TMP = 44


def unit2(K, V, kt=None, vt=None, rk=None, rv=None, hooks=None, tt=TT):
    if K is not None:
        if hooks:
            hooks[0]()
        for u in range(4):
            if kt:
                waitq(kt(2 * u + 1))
            d = R("v", DS_[u])
            a(f"v_mfma_f32_16x16x32_bf16 {d}, {R(K[0], K[1]+8*u)}, {R('v', QE)}, 0")
            a(f"v_mfma_f32_16x16x32_bf16 {d}, {R(K[0], K[1]+8*u+4)}, {R('v', QO)}, {d}")
            if rk:
                rk(2 * u)
                rk(2 * u + 1)
        order = [(0, 0), (1, 0), (2, 0), (0, 1), (1, 1), (2, 1), (0, 2), (1, 2), (3, 0), (2, 2), (0, 3), (3, 1),
                 (1, 3), (2, 3), (3, 2), None, (3, 3)]
        for o in order:
            if o is None:
                if V is not None:
                    a(f"v_max3_f32 v{TMP}, v{tt}, v{tt+1}, v{MS}")
                continue
            u, c = o
            qp = f"quad_perm:[{c},{c},{c},{c}]"
            if c == 0:
                a(f"v_mov_b32_dpp v{tt+u}, v{DS_[u]} {qp}{DPPM}")
            else:
                a(f"v_add_f32_dpp v{tt+u}, v{DS_[u]+c}, v{tt+u} {qp}{DPPM}")
    if V is None:
        return
    if K is None:
        a(f"v_max3_f32 v{TMP}, v{tt}, v{tt+1}, v{MS}")
    a(f"v_max3_f32 v{TMP}, v{TMP}, v{tt+2}, v{tt+3}")
    a(f"v_max_f32_dpp v{TMP}, v{TMP}, v{TMP} row_half_mirror{DPPM}")
    rows("v_max_f32", TMP, TMP + 1)
    a(f"v_sub_f32 v{TMP+1}, v{MS}, v{TMP}")
    a(f"v_mul_f32 v{TMP+1}, s30, v{TMP+1}")
    a(f"v_exp_f32 v{TMP+1}, v{TMP+1}")
    a(f"v_mov_b32 v{MS}, v{TMP}")
    a(f"v_mul_f32 v{NMC}, s30, v{TMP}")
    for u in range(4):
        a(f"v_fma_f32 v{tt+u}, v{tt+u}, s30, -v{NMC}")
    for u in range(4):
        a(f"v_exp_f32 v{tt+u}, v{tt+u}")
    a(f"v_mul_f32 v{LS}, v{LS}, v{TMP+1}")
    for r in range(4):
        a(f"v_mul_f32 v{OA+r}, v{OA+r}, v{TMP+1}")
    a(f"v_add_f32 v{TMP+2}, v{tt}, v{tt+1}")
    a(f"v_add_f32 v{TMP+3}, v{tt+2}, v{tt+3}")
    for u in range(4):
        a(f"v_cvt_pk_bf16_f32 v{tt+u}, v{tt+u}, v{tt+u}")
    a(f"v_add_f32 v{TMP+2}, v{TMP+2}, v{TMP+3}")
    a(f"v_add_f32 v{LS}, v{LS}, v{TMP+2}")

    def buildB(t):
        b = DS_[t & 3]
        p = tt + (t >> 1)
        for i in range(4):
            own = (i < 2) == ((t & 1) == 0)
            if own:
                a(f"v_and_b32 v{b+i}, v{p}, v{4+i}")
            else:
                sh = "row_shr:4" if (t & 1) == 0 else "row_shl:4"
                a(f"v_and_b32_dpp v{b+i}, v{p}, v{4+i} {sh}{DPPM} bound_ctrl:1")

    buildB(0)
    if hooks:
        hooks[1]()
    for t in range(8):
        if t + 1 < 8:
            buildB(t + 1)
        if vt:
            waitq(vt(t))
        a(f"v_mfma_f32_16x16x32_bf16 {R('v', OA)}, {R(V[0], V[1]+4*t)}, {R('v', DS_[t&3])}, {R('v', OA)}")
        if rv:
            rv(t)


def unit(kind, base, tag, reload_tag=None, hooks=None):
    rk = rv = None
    if reload_tag is not None:
        rk = lambda t: ldK(kind, base, t, reload_tag)
        rv = lambda t: ldV(kind, base, t, reload_tag)
    unit2((kind, base), (kind, base + 32), lambda t: (tag, "K", t), lambda t: (tag, "V", t), rk, rv, hooks)


probe_k = [0]


def probe():
    k = probe_k[0]
    probe_k[0] += 1
    for c in ((0, 1) if k & 1 else (1, 0)):
        a(f"s_add_u32 s50, s57, {(c ^ 1)*8192 + k*1152}")
        a("s_memtime s[52:53]")
        a("s_waitcnt lgkmcnt(0)")
        a("s_buffer_load_dword s51, s[8:11], s50")
        a("s_waitcnt lgkmcnt(0)")
        a("s_memtime s[50:51]")
        a("s_waitcnt lgkmcnt(0)")
        a("s_sub_u32 s50, s50, s52")
        a(f"s_min_u32 s{55+c}, s{55+c}, s50")


def qtags(tag):
    return [(tag, "K", t) for t in range(8)] + [(tag, "V", t) for t in range(8)]


RING = [64, 128, 192]


def bf16r(d, s):
    a(f"v_cvt_pk_bf16_f32 v{d}, v{s}, v{s}")
    a(f"v_and_b32 v{d}, 0xffff0000, v{d}")


def afrag_addr(v, base_sgpr=None, base=0):
    a(f"v_lshrrev_b32 v{v}, 4, v1")
    a(f"v_lshlrev_b32 v{v}, 4, v{v}")
    if base:
        a(f"v_add_u32 v{v}, {base}, v{v}")
    if base_sgpr is not None:
        a(f"v_add_u32 v{v}, s{base_sgpr}, v{v}")


def lng_addr():
    a("v_add_u32 v2, s44, v3")
    a("v_mov_b32 v57, s44")
    a(f"v_mov_b32 v58, {ONES}")
    a("s_mov_b32 s46, 0x00020002")
    a("s_mov_b32 s47, 0x00020002")
    a("v_cndmask_b32 v57, v57, v58, s[46:47]")
    a("v_lshrrev_b32 v58, 4, v1")
    a("v_lshl_add_u32 v57, v58, 4, v57")
    a("v_lshlrev_b32 v58, 3, v1")
    a("v_add_u32 v58, s45, v58")


def lngemv():
    S, nk, T, acc = 4, 18, 8, 60
    s, q, t, t2, one = 48, 49, 50, 51, 52
    f = []
    for i in range(8):
        f.append(f"v_dot2c_f32_bf16 v{s}, v{40+i}, v{one}")
        f.append(f"v_dot2c_f32_bf16 v{q}, v{40+i}, v{40+i}")
    f.append("s_nop 1")
    for st in ("quad_perm:[1,0,3,2]", "quad_perm:[2,3,0,1]", "row_half_mirror", "row_mirror"):
        f.append(f"v_add_f32_dpp v{s}, v{s}, v{s} {st}{DPPM}")
        f.append(f"v_add_f32_dpp v{q}, v{q}, v{q} {st}{DPPM}")
    f.append(f"v_permlane16_swap_b32 v{s}, v{q}")
    f.append(f"v_add_f32 v{s}, v{s}, v{q}")
    f.append(f"v_mov_b32 v{t}, v{s}")
    f.append(f"v_permlane32_swap_b32 v{s}, v{t}")
    f.append(f"v_add_f32 v{s}, v{s}, v{t}")
    f.append(f"v_mul_f32 v{s}, {f32(1.0/576)}, v{s}")
    f.append(f"v_mov_b32 v{q}, v{s}")
    f.append(f"v_permlane16_swap_b32 v{s}, v{q}")
    f.append(f"v_fma_f32 v{q}, -v{s}, v{s}, v{q}")
    f.append(f"v_max_f32 v{q}, 0, v{q}")
    f.append(f"v_cvt_pk_bf16_f32 v{q}, v{s}, v{q}")
    f.append(f"v_lshlrev_b32 v{s}, 16, v{q}")
    f.append(f"v_and_b32 v{q}, 0xffff0000, v{q}")
    for op in (f"v_add_f32 v{q}, {f32(1e-5)}, v{q}", f"v_sqrt_f32 v{q}, v{q}"):
        f.append(op)
        f.append(f"v_cvt_pk_bf16_f32 v{q}, v{q}, v{q}")
        f.append(f"v_and_b32 v{q}, 0xffff0000, v{q}")
    f.append(f"v_rcp_f32 v{q}, v{q}")

    def issue(kk):
        z = T + 8 * (kk % S)
        a(f"ds_read_b128 {R('v', z)}, v57 offset:{kk*64}")
        a(f"ds_read_b64_tr_b16 {R('v', z+4, 2)}, v58 offset:{kk*1024}")
        a(f"ds_read_b64_tr_b16 {R('v', z+6, 2)}, v58 offset:{kk*1024+512}")

    for r in range(4):
        a(f"v_mov_b32 v{44+r}, 0")
    a("ds_read_b128 v[40:43], v2")
    a("s_mov_b64 exec, 0xff")
    a("ds_read_b128 v[44:47], v2 offset:1024")
    a("s_mov_b64 exec, -1")
    for kk in range(S):
        issue(kk)
    a(f"v_mov_b32 v{s}, 0")
    a(f"v_mov_b32 v{q}, 0")
    a(f"v_mov_b32 v{one}, 0x3f803f80")
    per = -(-len(f) // (nk // 2 + 1))
    for kk in range(0, nk, 2):
        a(f"s_waitcnt lgkmcnt({3*(min(nk, kk+S)-kk-2)})")
        for k2 in (kk, kk + 1):
            z = T + 8 * (k2 % S)
            c = "0" if k2 == 0 else R("v", acc)
            a(f"v_mfma_f32_16x16x32_bf16 {R('v', acc)}, {R('v', z)}, {R('v', z+4)}, {c}")
        for k2 in (kk, kk + 1):
            if k2 + S < nk:
                issue(k2 + S)
        for _ in range(per):
            if f:
                a(f.pop(0))
    while f:
        a(f.pop(0))
    a(f"v_fma_f32 v60, -v{s}, v61, v60")
    a(f"v_mul_f32 v60, v60, v{q}")


def retry(lab_again, lab_done):
    a("s_cmp_eq_u32 s38, 0")
    a(f"s_cbranch_scc1 {lab_done}")
    a("s_sub_u32 s38, s38, 1")
    if OPT["psleep"]:
        a(f"s_sleep {OPT['psleep']}")
    a(f"s_branch {lab_again}")


def combine(CB, CS):
    a("v_lshlrev_b32 v8, 2, v0")
    a(f"v_add_u32 v8, {CB}, v8")
    a("s_lshr_b32 s44, s24, 1")
    a("s_lshl_b32 s44, s44, 5")
    a(f"s_add_u32 s44, s44, {CS}")
    a("v_mov_b32 v9, s44")
    a("ds_read_b128 v[12:15], v9")
    a("ds_read_b128 v[16:19], v9 offset:16")
    for w in range(4):
        a(f"ds_read_b32 v{20+w}, v8 offset:{w*1024}")
    a("s_waitcnt lgkmcnt(4)")
    a("v_max3_f32 v26, v12, v14, v16")
    a("v_max_f32 v26, v26, v18")
    for w in range(4):
        a(f"v_sub_f32 v{12+2*w}, v{12+2*w}, v26")
    for w in range(4):
        a(f"v_exp_f32 v{12+2*w}, v{12+2*w}")
    a("v_mul_f32 v27, v13, v12")
    for w in range(1, 4):
        a(f"v_fmac_f32 v27, v{13+2*w}, v{12+2*w}")
    a("s_waitcnt lgkmcnt(0)")
    a("v_mul_f32 v24, v20, v12")
    for w in range(1, 4):
        a(f"v_fmac_f32 v24, v{20+w}, v{12+2*w}")


def qpoll_issue():
    a("buffer_load_dwordx4 v[24:27], v32, s[12:15], s45 offen sc1", tag="qp")
    a("buffer_load_dwordx4 v[28:31], v32, s[12:15], s45 offen offset:16 sc1", tag="qp")


def qpoll_addr(xoff):
    a("s_lshl_b32 s45, s25, 11")
    a(f"s_add_u32 s45, s45, {xoff}")
    a("v_bfe_u32 v32, v1, 3, 1")
    a("v_lshlrev_b32 v32, 10, v32")
    a("v_lshrrev_b32 v33, 4, v1")
    a("v_lshl_add_u32 v32, v33, 8, v32")
    a("v_bfe_u32 v33, v1, 1, 1")
    a("v_lshl_add_u32 v32, v33, 7, v32")
    a("v_and_b32 v33, 1, v1")
    a("v_lshl_add_u32 v32, v33, 5, v32")


def qpoll_check():
    a("v_cmp_ne_u32 s[46:47], s29, v25")
    a("v_cmp_ne_u32 s[48:49], s29, v27")
    a("v_cmp_ne_u32 s[50:51], s29, v29")
    a("v_cmp_ne_u32 s[52:53], s29, v31")
    a("s_or_b64 s[46:47], s[46:47], s[48:49]")
    a("s_or_b64 s[50:51], s[50:51], s[52:53]")
    a("s_or_b64 s[46:47], s[46:47], s[50:51]")


VL = 50


def unit_drain(base):
    def pwait(n0, n1, n2):
        l0, l1 = a.newlabel("dw"), a.newlabel("dw")
        a("s_cmp_eq_u32 s93, 0")
        a(f"s_cbranch_scc1 {l0}")
        a("s_cmp_eq_u32 s93, 1")
        a(f"s_cbranch_scc1 {l1}")
        a(f"s_waitcnt vmcnt({n2})")
        a.label(l1)
        a(f"s_waitcnt vmcnt({n1})")
        a.label(l0)
        a(f"s_waitcnt vmcnt({n0})")
    a.vq = []
    unit("v", base, "none", None, hooks=(lambda: pwait(41, 25, 9), lambda: pwait(33, 17, 1)))


def swapreduce(b):
    a(f"v_permlane32_swap_b32 v{b}, v{b+1}")
    a(f"v_permlane32_swap_b32 v{b+2}, v{b+3}")
    a(f"v_add_f32 v{b}, v{b}, v{b+1}")
    a(f"v_add_f32 v{b+2}, v{b+2}, v{b+3}")
    a(f"v_permlane16_swap_b32 v{b}, v{b+2}")
    a(f"v_add_f32 v{b}, v{b}, v{b+2}")


def kofs():
    a("v_bfe_u32 v40, v1, 2, 2")
    a("v_lshlrev_b32 v2, 8, v40")
    a("v_lshrrev_b32 v40, 4, v1")
    a("v_lshl_add_u32 v2, v40, 6, v2")
    a("v_and_b32 v40, 3, v1")
    a("v_lshl_add_u32 v2, v40, 4, v2")


def masks():
    a("v_and_b32 v40, 1, v1")
    a("v_lshlrev_b32 v40, 4, v40")
    a("v_mov_b32 v41, 0xffff")
    a("v_lshlrev_b32 v40, v40, v41")
    for i in range(4):
        m = 0x03030303 << (2 * i)
        a(f"s_mov_b32 s46, 0x{m:08x}")
        a(f"s_mov_b32 s47, 0x{m:08x}")
        a(f"v_cndmask_b32 v{4+i}, 0, v40, s[46:47]")


def loopconsts():
    kofs()
    masks()


def qprep(xoff):
    a("s_mul_i32 s44, s24, 1152")
    a(f"s_add_u32 s44, s44, {XB}")
    a(f"s_mul_i32 s45, s24, {TS}")
    a(f"s_add_u32 s45, s45, {WQ}")
    lng_addr()
    a("s_lshl_b32 s54, s28, 3")
    a("s_add_u32 s54, s54, s27")
    a("s_sub_u32 s54, s54, 24")
    a("s_lshl_b32 s54, s54, 2")
    a("s_add_u32 s54, s54, s24")
    a("s_lshl_b32 s54, s54, 7")
    a(f"s_add_u32 s54, s54, {xoff}")


def ones_init():
    for r in range(4):
        a(f"v_mov_b32 v{16+r}, 0x3f803f80")
    a(f"v_add_u32 v20, {ONES}, v3")
    a("ds_write_b128 v20, v[16:19]")
    a("s_mov_b64 exec, 0xff")
    a("ds_write_b128 v20, v[16:19] offset:1024")
    a("s_mov_b64 exec, -1")


a.raw(f"{NAME}_kernel:")
a("s_cmp_ge_u32 s2, 256")
a("s_cbranch_scc1 LEND")
if STAMPS or OPT["padto"]:
    a("s_memrealtime s[100:101]")
a("s_load_dwordx16 s[64:79], s[0:1], 0")
a("s_load_dwordx8 s[80:87], s[0:1], 64")
a("v_and_b32 v1, 63, v0")
a("v_lshrrev_b32 v40, 6, v0")
a("v_readfirstlane_b32 s24, v40")
a("s_and_b32 s28, s2, 7")
a("s_lshr_b32 s27, s2, 3")
a("s_lshl_b32 s44, s28, 2")
a("s_add_u32 s27, s27, s44")
a("s_and_b32 s27, s27, 31")
a("s_lshr_b32 s25, s2, 4")
a("s_and_b32 s26, s2, 15")
a(f"s_mov_b32 s30, {f32(math.log2(math.e)/math.sqrt(128.0))}")
a("s_mov_b32 s31, 0")
a("s_mov_b32 s38, 400000")
a(f"s_mov_b32 s39, {LB0}")
a("s_mov_b32 s42, 0xf0f0f0f0")
a("s_mov_b32 s43, 0xf0f0f0f0")
a("s_lshl_b32 s44, s26, 2")
a("s_add_u32 s44, s44, s24")
a("s_lshl_b32 s32, s44, 13")
setaddr(32, 32)
a("s_lshl_b32 s57, s44, 14")
a(f"s_add_u32 s57, s57, {1920*8192}")
a("s_mov_b32 s55, -1")
a("s_mov_b32 s56, -1")
a("v_lshlrev_b32 v3, 4, v1")
kofs()
a("s_waitcnt lgkmcnt(0)")
a("s_load_dword s29, s[86:87], 0")
if OPT["padmin"]:
    a("s_not_b32 s101, s100")
    a("s_atomic_umax s101, s[84:85], 64")
a("s_lshl_b32 s44, s25, 24")
a("s_add_u32 s4, s66, s44")
a("s_addc_u32 s5, s67, 0")
a("s_and_b32 s5, s5, 0xffff")
a("s_mov_b32 s6, 0x1000000")
a("s_mov_b32 s7, 0x20000")
a("s_add_u32 s8, s68, s44")
a("s_addc_u32 s9, s69, 0")
a("s_and_b32 s9, s9, 0xffff")
a("s_mov_b32 s10, 0x1000000")
a("s_mov_b32 s11, 0x20000")
srd(12, 86, 87, WS_SIZE)
a("s_cmp_ge_u32 s27, 24")
a("s_cbranch_scc0 LPRO1")
srd(60, 64, 65, 1152)
srd(92, 70, 71, 0 if OPT["wskip"] & 8 else 576 * 8192)
a("v_lshrrev_b32 v41, 3, v1")
a("v_lshlrev_b32 v40, 13, v41")
a("v_and_b32 v42, 7, v1")
a("v_lshl_add_u32 v40, v42, 4, v40")
a("s_lshl_b32 s46, s28, 3")
a("s_add_u32 s46, s46, s27")
a("s_sub_u32 s46, s46, 24")
a("s_lshl_b32 s44, s46, 7")
a(f"s_mul_i32 s45, s24, {144*8192}")
a("s_add_u32 s44, s44, s45")
for i in range(18):
    a(f"buffer_load_dwordx4 {R('v', 64+4*i)}, v40, s[92:95], s44 offen{WPOL}")
    a("s_add_u32 s44, s44, 65536")
a("buffer_load_dwordx4 v[8:11], v3, s[60:63], 0 offen")
a("buffer_load_dwordx4 v[12:15], v3, s[60:63], 0 offen offset:1024")
a("s_and_b32 s44, s46, 3")
a("s_or_b32 s44, s44, s24")
a("s_cmp_eq_u32 s44, 0")
a("s_cbranch_scc0 LPRO0")
a("v_lshlrev_b32 v40, 12, v1")
a("v_mov_b32 v36, 0\nv_mov_b32 v37, 0\nv_mov_b32 v38, 0\nv_mov_b32 v39, 0")
a("s_lshl_b32 s44, s46, 6")
a(f"s_add_u32 s44, s44, {CTR}")
a("s_mov_b64 exec, 3")
a("buffer_store_dwordx4 v[36:39], v40, s[12:15], s44 offen sc1")
a("s_mov_b64 exec, -1")
a.label("LPRO0")
a("v_lshrrev_b32 v40, 1, v42")
a(f"v_mul_u32_u24 v40, {TS}, v40")
a("v_and_b32 v43, 3, v41")
a("v_lshl_add_u32 v40, v43, 5, v40")
a("v_lshrrev_b32 v43, 2, v41")
a("v_lshl_add_u32 v40, v43, 9, v40")
a("v_and_b32 v42, 1, v42")
a("v_lshl_add_u32 v40, v42, 4, v40")
for k, reg in ((0, 41), (2, 42)):
    a("s_mul_i32 s44, s24, 18")
    a(f"s_add_u32 s44, s44, {k}")
    a("s_lshr_b32 s45, s44, 2")
    a("s_lshl_b32 s45, s45, 10")
    a("s_and_b32 s44, s44, 3")
    a("s_lshl_b32 s44, s44, 7")
    a("s_add_u32 s44, s44, s45")
    a(f"s_add_u32 s44, s44, {WQ}")
    a(f"v_add_u32 v{reg}, s44, v40")
ones_init()
a("s_waitcnt vmcnt(0) lgkmcnt(0)")
a("s_mul_i32 s29, s29, 0x9e3779b1")
a("s_add_u32 s29, s29, 0x7f4a7c15")
for i in range(18):
    a(f"ds_write_b128 v{41 + ((i>>1)&1)}, {R('v', 64+4*i)} offset:{(i>>2)*1024+(i&1)*128}")
a("s_waitcnt lgkmcnt(0)")
a("s_barrier")
qprep(X0)
a("s_call_b64 s[36:37], LQSTAGE")
kofs()
a("s_branch LPRO2")
a.label("LPRO1")
a("s_waitcnt lgkmcnt(0)")
ones_init()
a("s_mul_i32 s29, s29, 0x9e3779b1")
a("s_add_u32 s29, s29, 0x7f4a7c15")
a.label("LPRO2")
if STAMPS == 2:
    a("v_mov_b32 v51, 0")
    a("s_mov_b32 s93, 0")
sstamp(55)
a.vq = []
burst("a", 0, "A0")
a("s_cmp_eq_u32 s24, 0")
a("s_cbranch_scc0 LPRO3")
a("v_mov_b32 v24, -1\nv_mov_b32 v25, -1\nv_mov_b32 v26, -1\nv_mov_b32 v27, -1")
a("s_mul_i32 s44, s2, 6144")
a(f"s_add_u32 s44, s44, {LB0}")
a("s_add_u32 s45, s44, 4096")
keep = list(a.vq)
for i in range(6):
    a(f"buffer_store_dwordx4 v[24:27], v3, s[12:15], s{44+(i>>2)} offen offset:{1024*(i&3)} sc1")
a.vq = keep
a.label("LPRO3")
srd(16, 82, 83, 1152)
srd(20, 84, 85, 256)
a("s_mov_b32 s98, s64")
a("s_mov_b32 s99, s65")
masks()
a("s_lshl_b32 s44, s25, 8")
a(f"s_add_u32 s44, s44, {CTR}")
a("s_add_u32 s88, s86, s44")
a("s_addc_u32 s89, s87, 0")
sstamp(56)
keep = list(a.vq)
a("s_cmp_lt_u32 s27, 18")
a("s_cbranch_scc0 LWB")
srd(60, 76, 77, 0 if OPT["wskip"] & 2 else 576 * 9216)
srd(92, 78, 79, 0 if OPT["wskip"] & 2 else 576 * 9216)
a("v_lshrrev_b32 v41, 2, v1")
a("v_and_b32 v42, 3, v1")
a("v_mul_u32_u24 v40, 9216, v41")
a("v_lshl_add_u32 v40, v42, 4, v40")
a("s_mul_i32 s46, s28, 18")
a("s_add_u32 s46, s46, s27")
a("s_lshl_b32 s44, s46, 6")
a(f"s_mul_i32 s45, s24, {144*9216}")
a("s_add_u32 s44, s44, s45")
for i in range(9):
    a(f"buffer_load_dwordx4 {R('v', 64+8*i)}, v40, s[60:63], s44 offen{WPOL}")
    a(f"buffer_load_dwordx4 {R('v', 68+8*i)}, v40, s[92:95], s44 offen{WPOL}")
    a(f"s_add_u32 s44, s44, {16*9216}")
a(f"v_mul_u32_u24 v43, {TS}, v42")
a("v_and_b32 v42, 3, v41")
a("v_lshl_add_u32 v43, v42, 5, v43")
a("v_bfe_u32 v42, v41, 2, 1")
a("v_lshl_add_u32 v43, v42, 9, v43")
a("v_lshrrev_b32 v42, 3, v41")
a("v_lshl_add_u32 v43, v42, 7, v43")
for k, reg in ((1, 34), (0, 43)):
    a("s_mul_i32 s44, s24, 9")
    a(f"s_add_u32 s44, s44, {k}")
    a("s_lshr_b32 s45, s44, 1")
    a("s_lshl_b32 s45, s45, 10")
    a("s_and_b32 s44, s44, 1")
    a("s_lshl_b32 s44, s44, 8")
    a("s_add_u32 s44, s44, s45")
    a(f"v_add_u32 v{reg}, s44, v43")
srd(60, 80, 81, 0 if OPT["wskip"] & 4 else 4608 * 1152)
a(f"s_mul_i32 s44, s46, {32*1152}")
a("s_mul_i32 s45, s24, 9216")
a("s_add_u32 s44, s44, s45")
a("s_add_u32 s45, s44, 4096")
a("s_add_u32 s46, s44, 8192")
for i in range(9):
    a(f"buffer_load_dwordx4 {R('v', 136+4*i)}, v3, s[60:63], s{44+(i>>2)} offen offset:{(i&3)*1024}{WPOL}")
a("s_branch LWDONE")
a.label("LWB")
a("s_cmp_lt_u32 s27, 30")
a("s_cbranch_scc0 LWDONE")
srd(60, 72, 73, 0 if OPT["wskip"] & 1 else 4096 * 1152)
a("v_lshrrev_b32 v41, 4, v1")
a("v_and_b32 v42, 15, v1")
a("v_mul_u32_u24 v40, 1152, v41")
a("v_lshl_add_u32 v40, v42, 4, v40")


def brole():
    a("s_sub_u32 s47, s27, 18")
    a("s_lshl_b32 s46, s28, 1")
    a("s_cmp_ge_u32 s47, 6")
    a("s_addc_u32 s46, s46, 0")
    a("s_cmp_ge_u32 s47, 6")
    a("s_cselect_b32 s48, 6, 0")
    a("s_sub_u32 s47, s47, s48")


brole()
a("s_lshl_b32 s44, s46, 8")
a("s_lshl_b32 s45, s24, 6")
a("s_add_u32 s44, s44, s45")
a("s_mul_i32 s44, s44, 1152")
a("s_mul_i32 s45, s47, 192")
a("s_add_u32 s44, s44, s45")
a("s_mov_b32 exec_lo, 0x0fff0fff")
a("s_mov_b32 exec_hi, 0x0fff0fff")
for i in range(16):
    a(f"buffer_load_dwordx4 {R('v', 64+4*i)}, v40, s[60:63], s44 offen{WPOL}")
    a(f"s_add_u32 s44, s44, {4*1152}")
a("s_mov_b64 exec, -1")
a("v_lshrrev_b32 v43, 1, v42")
a(f"v_mul_u32_u24 v43, {WOS}, v43")
a("v_lshl_add_u32 v43, v41, 5, v43")
a("v_and_b32 v42, 1, v42")
a("v_lshl_add_u32 v43, v42, 4, v43")
a("s_lshl_b32 s45, s24, 11")
a("v_add_u32 v43, s45, v43")
a.label("LWDONE")
a.vq = keep
sstamp(57)
PR = str(OPT["pr"]).zfill(4)
for _ in range(int(PR[0])):
    probe()
a.wait_vm_n(30)
burst("a", 64, "A1")
for _ in range(int(PR[1])):
    probe()
a.wait_vm_n(30)
burst("a", 128, "A2")
for _ in range(int(PR[2])):
    probe()
qpoll_addr(X0)
a.wait_vm_n(40)
qpoll_issue()
burst("a", 192, "A3")
for _ in range(int(PR[3])):
    probe()
a.wait_vm_n(50)
a("s_cmp_lt_u32 s27, 18")
a("s_cbranch_scc0 LWB2")
for i in range(9):
    a(f"ds_write_b128 v{34 if i & 1 else 43}, {R('v', 64+8*i)} offset:{(i>>1)*1024}")
    a(f"ds_write_b128 v{34 if i & 1 else 43}, {R('v', 68+8*i)} offset:{(i>>1)*1024+16}")
a("s_mul_i32 s44, s24, 9216")
a(f"s_add_u32 s44, s44, {WD}")
a("v_add_u32 v40, s44, v3")
for i in range(9):
    a(f"ds_write_b128 v40, {R('v', 136+4*i)} offset:{i*1024}")
a("s_branch LWDONE2")
a.label("LWB2")
a("s_cmp_lt_u32 s27, 30")
a("s_cbranch_scc0 LWDONE2")
a("s_mov_b32 exec_lo, 0x0fff0fff")
a("s_mov_b32 exec_hi, 0x0fff0fff")
for i in range(16):
    a(f"ds_write_b128 v43, {R('v', 64+4*i)} offset:{(i&1)*512+((i>>1)&3)*128+(i>>3)*1024}")
a("s_mov_b64 exec, -1")
a.label("LWDONE2")
a(f"v_mov_b32 v{VL}, 0")
a("s_mov_b32 s91, 0")
a("s_mov_b32 s92, 0")
a("s_mov_b32 s94, 0")
a("s_mov_b32 s95, 7")
a(f"s_mov_b32 s96, {NP1}")
a("s_waitcnt lgkmcnt(0)")
a.wait_vm("qp")
if STAMPS:
    a("s_memrealtime s[58:59]")
    a("s_waitcnt lgkmcnt(0)")
    a("s_mov_b32 s75, s58")
qpoll_check()
a("s_cbranch_scc0 LQREADY")

a.label("LQPOLL")
qpoll_issue()
a("s_waitcnt vmcnt(0)")
qpoll_check()
a("s_cbranch_scc0 LQREADY")
retry("LQPOLL", "LQREADY")
a.label("LQREADY")
for i in range(4):
    a(f"v_cndmask_b32 v{QE+i}, v{24+2*i}, 0, s[42:43]")
    a(f"v_cndmask_b32 v{QO+i}, 0, v{24+2*i}, s[42:43]")
for r in range(4):
    a(f"v_mov_b32 v{OA+r}, 0")
a(f"v_mov_b32 v{MS}, {f32(-1e30)}")
a(f"v_mov_b32 v{LS}, 0")
stamp(0)
a("s_cmp_eq_u32 s31, 0")
a("s_cbranch_scc0 LP2")
a("s_mov_b32 s90, 1")
a("s_atomic_add s90, s[88:89], 0 glc")
if OPT["vote"]:
    a("s_getreg_b32 s47, hwreg(HW_REG_XCC_ID)")
    a("s_bfe_u32 s47, s47, 0x10002")
    a("s_sub_i32 s44, s55, s56")
    a("s_min_i32 s44, s44, 300")
    a("s_max_i32 s44, s44, -300")
    a("s_sub_i32 s45, 0, s44")
    a("s_cmp_eq_u32 s47, 0")
    a("s_cselect_b32 s44, s44, s45")
    a("s_mov_b32 s46, s44")
    a("s_atomic_add s46, s[88:89], 12 glc")
    a("s_waitcnt lgkmcnt(0)")
    a("s_add_i32 s44, s44, s46")
    a("s_cmp_gt_i32 s44, 0")
    a("s_cselect_b32 s44, 1, 0")
    a("s_xor_b32 s44, s44, s47")
else:
    a("s_cmp_gt_u32 s55, s56")
    a("s_cselect_b32 s44, 1, 0")
if OPT["forcecls"] == 2:
    a("s_xor_b32 s44, s44, 1")
a("s_lshl_b32 s45, s44, 2")
a("s_add_u32 s45, s45, 4")
a("s_mov_b32 s46, 1")
a("s_atomic_add s46, s[88:89], s45 glc")
a("s_waitcnt lgkmcnt(0)")
a("s_cmp_lt_u32 s46, 32")
a("s_cbranch_scc1 LBUN")
a("s_xor_b32 s44, s44, 1")
a("s_xor_b32 s45, s45, 12")
a("s_mov_b32 s46, 1")
a("s_atomic_add s46, s[88:89], s45 glc")
a("s_waitcnt lgkmcnt(0)")
a.label("LBUN")
a("s_lshl_b32 s57, s46, 1")
a("s_add_u32 s57, s57, s44")
a("s_add_u32 s57, s57, 256")
a("s_lshl_b32 s57, s57, 13")
a("s_mov_b32 s55, -1")
a("s_mov_b32 s37, -1")
a("s_mov_b32 s56, 832")
a("s_mov_b32 s60, 0")
a(f"s_mov_b32 s54, {TF}")
a("s_mov_b32 s36, 0")
a("s_mov_b32 s101, 0")
a("s_mov_b32 s97, 0")
a("s_mov_b32 s41, 0")
a("s_cmp_eq_u32 s24, 0")
a("s_cbranch_scc0 LNOCNT")
a("s_mov_b32 s48, 1")
a("s_atomic_add s48, s[84:85], 0")
a.label("LNOCNT")
a.vq = qtags("A3")


def xaddr(reg, i):
    a(f"s_add_u32 s{reg}, s57, {i*UNIT_STEP}")
    if (1 + (i >> 2)) & 1:
        a(f"s_xor_b32 s{reg}, s{reg}, 8192")


def baddr(i):
    xaddr(32, 2 * i)
    xaddr(34, 2 * i + 1)
    setaddr(32, 34)


def draw(s, exhausted):
    ln, lg = a.newlabel("noapp"), a.newlabel("go")
    a("s_cmp_lt_u32 s90, s96")
    a(f"s_cbranch_scc0 {exhausted}")
    a("s_cmp_ge_u32 s90, s60")
    a("s_cselect_b32 s32, s56, 0")
    a("s_add_u32 s32, s32, s90")
    a("s_lshl_b32 s32, s32, 13")
    a(f"s_bitset0_b32 s97, {s}")
    a("s_cmp_ge_u32 s90, s54")
    a(f"s_cbranch_scc0 {ln}")
    a(f"s_bitset1_b32 s97, {s}")
    a("s_mov_b32 m0, s94")
    a("s_nop 0")
    a(f"v_writelane_b32 v{VL}, s32, m0")
    a("s_add_u32 s94, s94, 1")
    a("s_cmp_lt_u32 s94, 62")
    a(f"s_cbranch_scc1 {ln}")
    a("s_mov_b32 s90, 0x7fffffff")
    a(f"s_branch {lg}")
    a.label(ln)
    if OPT["eg"]:
        a(f"s_add_u32 s90, s90, {OPT['eg']}")
        a("s_cmp_ge_u32 s90, s96")
        a("s_cselect_b32 s41, 1, 0")
        a(f"s_cbranch_scc1 {lg}")
    a("s_mov_b32 s90, 1")
    a("s_atomic_add s90, s[88:89], 0 glc")
    a.label(lg)


def ticket_ready():
    if OPT["eg"]:
        lk = a.newlabel("tk")
        a("s_cmp_eq_u32 s41, 0")
        a(f"s_cbranch_scc1 {lk}")
        a(f"s_waitcnt vmcnt({OPT['gv']})")
        a("s_sub_u32 s41, s41, 1")
        a("s_mov_b32 s90, 1")
        a("s_atomic_add s90, s[88:89], 0 glc")
        a.label(lk)
    a("s_waitcnt lgkmcnt(0)")


for i in range(4):
    baddr(i)

    def rl(hf, t):
        if OPT["mixx"] and i < 3:
            ld("v", RING[i] + 32 * hf, t, "V", hf, VPOL, ("X", 2 * i + hf, t))
        ld("a", 64 * i + 32 * hf, t, "K", hf, " nt", ("BK", 2 * i + hf, t))
    if i < 3 and not OPT["mixx"]:
        a.wait_vm_n(47)
        for hf in range(2):
            for t in range(8):
                ld("v", RING[i] + 32 * hf, t, "V", hf, VPOL, ("X", 2 * i + hf, t))
        logt()
    a.wait_vm_n(31 if OPT["mixx"] else 47)
    unit2(("a", 64 * i), ("a", 64 * i + 32), lambda t: (f"A{i}", "K", t), lambda t: (f"A{i}", "V", t),
          lambda t: rl(0, t), lambda t: rl(1, t))
    logt()
for d in range(4):
    sl = RING[d % 3]
    if d == 0:
        rka = lambda t: ld("v", sl, t, "V", 0, VPOL, ("X", 6, t))
        rkb = lambda t: ld("v", sl + 32, t, "V", 1, VPOL, ("X", 7, t))
    else:
        if d == 1:
            xaddr(32, 8)
            setaddr(32, 32)
        else:
            le, lc = a.newlabel("dex"), a.newlabel("dco")
            ticket_ready()
            draw(d % 3, le)
            a(f"s_branch {lc}")
            a.label(le)
            a(f"s_bitset0_b32 s95, {d % 3}")
            a("s_mov_b32 s32, 0x1000000")
            a.label(lc)
            setaddr(32, 32)
        rka = lambda t: ldK("v", sl, t, f"P{d}")
        rkb = lambda t: ldV("v", sl, t, f"P{d}")
    a.wait_vm_n(47)
    unit2(("a", 64 * d), ("v", sl), lambda t: ("BK", 2 * d, t), lambda t: ("X", 2 * d, t), None, rka)
    unit2(("a", 64 * d + 32), ("v", sl + 32), lambda t: ("BK", 2 * d + 1, t), lambda t: ("X", 2 * d + 1, t), None, rkb)
    logt()
a("s_lshl_b32 s44, s24, 13")
a(f"s_add_u32 s44, s44, {KL}")
a("v_add_u32 v40, s44, v3")
waitq(("P1", "K", 7))
for t in range(8):
    a(f"ds_write_b128 v40, {R('v', RING[1]+4*t)} offset:{t*1024}")
a("s_branch LRING1")
a.label("LP2")
if STAMPS == 2:
    a("v_mov_b32 v51, 0")
    a("s_mov_b32 s93, 0")
a("s_mov_b32 s3, 0")
a("s_mov_b32 s56, 576")
a("s_mov_b32 s60, 256")
a("s_mov_b32 s41, 0")
a("s_mov_b32 s54, -1")
a("s_mov_b32 s101, 0")
a("s_mov_b32 s36, 0")
a(f"s_mov_b32 s37, {OPT['cn']}")
a("s_and_b32 s3, s3, s36")
for i in range(10):
    a(f"s_mov_b32 s55, {THR0 + i*THRS}")
    a("s_add_u32 s36, s36, 1")
    a("s_branch LRINGGO")
    a.label(f"LRET{i+1}")
    a.vq = []
    if i > 0:
        def vwait():
            l0, l1 = a.newlabel("sw"), a.newlabel("sw")
            a("s_cmp_ge_u32 s101, 2")
            a(f"s_cbranch_scc1 {l0}")
            a("s_cmp_eq_u32 s101, 1")
            a(f"s_cbranch_scc1 {l1}")
            a("s_waitcnt vmcnt(0)")
            a.label(l1)
            a("s_waitcnt vmcnt(16)")
            a.label(l0)
            a("s_waitcnt vmcnt(32)")
        if i == 8:
            a("s_lshl_b32 s44, s24, 13")
            a(f"s_add_u32 s44, s44, {KL}")
            a("v_add_u32 v40, s44, v3")
            for t in range(8):
                a(f"ds_read_b128 {R('a', 4*t)}, v40 offset:{t*1024}")
        unit2(None, ("a", 32 * ((i - 1) & 7)), hooks=(None, vwait), tt=52)
    if i < 9:
        if i < 8:
            xaddr(34, i)
            setaddr(None, 34)
        else:
            xaddr(34, 8)
            setaddr(None, 34)
            a("s_waitcnt lgkmcnt(0)")
        a.wait_vm_n(55)
        unit2(("a", 32 * (i & 7)), None, None, None, lambda t: ld("a", 32 * (i & 7), t, "V", 1, VPOL, None), tt=52)
        a("s_mov_b32 s101, 0")
a("s_mov_b32 s55, -1")
a("s_mov_b32 s37, -1")
a.label("LRINGGO")
a("s_cmp_eq_u32 s3, 0")
a("s_cbranch_scc1 LRING0")
a("s_cmp_eq_u32 s3, 1")
a("s_cbranch_scc1 LRING1")
a("s_branch LRING2")
a.label("LPASSEND")
stamp(1)
if STAMPS == 2:
    a("s_lshl_b32 s44, s31, 8")
    a("s_add_u32 s44, s44, s2")
    a("s_lshl_b32 s44, s44, 10")
    a(f"s_add_u32 s44, s44, {STAMP_OFF+0x40000}")
    a("v_lshlrev_b32 v40, 2, v0")
    a("buffer_store_dword v51, v40, s[12:15], s44 offen")
a(f"v_add_f32_dpp v{LS}, v{LS}, v{LS} row_half_mirror{DPPM}")
rows("v_add_f32", LS, TMP)
a(f"v_mul_f32 v22, s30, v{MS}")
a(f"v_mov_b32 v23, v{LS}")
a("v_bfe_u32 v40, v1, 3, 1")
a("v_lshlrev_b32 v41, 9, v40")
a("v_lshrrev_b32 v42, 4, v1")
a("v_lshl_add_u32 v41, v42, 7, v41")
a("v_and_b32 v42, 7, v1")
a("v_lshl_add_u32 v41, v42, 2, v41")
a("s_lshl_b32 s44, s24, 10")
a(f"s_add_u32 s44, s44, {CB1}")
a("v_add_u32 v41, s44, v41")
for r in range(4):
    a(f"ds_write_b32 v41, v{OA+r} offset:{32*r}")
a("s_lshl_b32 s44, s24, 3")
a(f"s_add_u32 s44, s44, {CS1}")
a("v_lshlrev_b32 v40, 5, v40")
a("v_add_u32 v40, s44, v40")
a("ds_write_b64 v40, v[22:23]")
a("v_lshlrev_b32 v40, 2, v0")
a(f"v_add_u32 v40, {LSV}, v40")
a(f"ds_write_b32 v40, v{VL}")
a.label("LCNT")
a("s_waitcnt vmcnt(0)")
a("v_readfirstlane_b32 s44, v49")
a("s_cmp_ge_u32 s44, 256")
a("s_cbranch_scc1 LCNTOK")
a("v_mov_b32 v48, 0")
a("buffer_load_dword v49, v48, s[20:23], 0 offen sc1")
retry("LCNT", "LCNTOK")
a.label("LCNTOK")
a("s_waitcnt lgkmcnt(0)")
a("s_barrier")
combine(CB1, CS1)
a(f"s_mul_i32 s44, s2, {X1S}")
a("s_add_u32 s44, s44, s39")
a("v_lshlrev_b32 v8, 2, v0")
a("buffer_store_dword v24, v8, s[12:15], s44 offen sc1")
a("s_lshl_b32 s45, s24, 6")
a("v_mov_b32 v9, s45")
a("s_bitcmp0_b32 s24, 0")
a("s_cbranch_scc0 LPUB1")
a("s_mov_b64 exec, 1")
a("buffer_store_dwordx2 v[26:27], v9, s[12:15], s44 offen offset:1024 sc1")
a("s_mov_b64 exec, -1")
a.label("LPUB1")
stamp(2)
a("s_cmp_lt_u32 s27, 18")
a("s_cbranch_scc1 LSTC")
a("s_cmp_lt_u32 s27, 30")
a("s_cbranch_scc0 LSTQ")
brole()
a(f"s_mul_i32 s48, s46, {16*X1S}")
a("s_add_u32 s48, s48, s39")
for g in range(1, 4):
    a(f"s_add_u32 s{48+g}, s48, {g*4*X1S}")
a("v_lshlrev_b32 v8, 2, v0")
a("v_and_b32 v9, 15, v1")
a(f"v_mul_u32_u24 v9, {X1S}, v9")
a("s_lshr_b32 s44, s24, 1")
a("s_lshl_b32 s44, s44, 7")
a("v_add_u32 v9, s44, v9")
a("v_lshlrev_b32 v10, 1, v0")
a(f"v_add_u32 v10, {OB}, v10")
a(f"s_mul_i32 s44, s24, {2*WOS}")
a("v_lshlrev_b32 v58, 3, v1")
a("v_add_u32 v58, s44, v58")
afrag_addr(57, base=OB)
a.label("LE1")
a("buffer_load_dwordx2 v[28:29], v9, s[12:15], s48 offen offset:1024 sc1")
for p in range(16):
    a(f"buffer_load_dword v{12+p}, v8, s[12:15], s{48+(p>>2)} offen offset:{(p&3)*X1S} sc1")
a("s_waitcnt vmcnt(16)")
if OPT["e1f"]:
    a("v_cmp_u_f32 vcc, v28, v29")
    a("s_cbranch_vccnz LE1R")
ROWRED = ("quad_perm:[1,0,3,2]", "quad_perm:[2,3,0,1]", "row_half_mirror", "row_mirror")
a(f"v_max_f32_dpp v30, v28, v28 {ROWRED[0]}{DPPM}")
for st in ROWRED[1:]:
    a(f"v_max_f32_dpp v30, v30, v30 {st}{DPPM}")
a("v_sub_f32 v28, v28, v30")
a("v_exp_f32 v28, v28")
a("v_mul_f32 v29, v29, v28")
for st in ROWRED:
    a(f"v_add_f32_dpp v29, v29, v29 {st}{DPPM}")
a("v_rcp_f32 v29, v29")
a("v_mul_f32 v28, v28, v29")
a("s_waitcnt vmcnt(0)")
for p in range(16):
    op = "v_mul_f32_dpp" if p < 4 else "v_fmac_f32_dpp"
    a(f"{op} v{32+(p&3)}, v28, v{12+p} row_newbcast:{p}{DPPM}")
a("v_add_f32 v32, v32, v33")
a("v_add_f32 v34, v34, v35")
a("v_add_f32 v32, v32, v34")
a("v_cmp_u_f32 vcc, v32, v32")
a("s_cbranch_vccz LE1OK")
a.label("LE1R")
retry("LE1", "LE1OK")
a.label("LE1OK")
a("s_waitcnt vmcnt(0)")
stamp(3)
a("v_cvt_pk_bf16_f32 v32, v32, v32")
a("ds_write_b16 v10, v32")
a("s_waitcnt lgkmcnt(0)")
a("s_barrier")
a("s_cmp_eq_u32 s24, 3")
a("s_cbranch_scc1 LSTQ")


def b_issue(kk):
    s = 8 + 12 * (kk % 3)
    a(f"ds_read_b128 {R('v', s)}, v57 offset:{kk*64}")
    for t in range(2):
        a(f"ds_read_b64_tr_b16 {R('v', s+4+4*t, 2)}, v58 offset:{kk*1024+t*WOS}")
        a(f"ds_read_b64_tr_b16 {R('v', s+6+4*t, 2)}, v58 offset:{kk*1024+t*WOS+512}")


for kk in range(3):
    b_issue(kk)
for kk in range(8):
    a(f"s_waitcnt lgkmcnt({5*(min(8, kk+3)-kk-1)})")
    s = 8 + 12 * (kk % 3)
    for t in range(2):
        acc = R("v", 48 + 4 * t)
        a(f"v_mfma_f32_16x16x32_bf16 {acc}, {R('v', s)}, {R('v', s+4+4*t)}, {'0' if kk == 0 else acc}")
    if kk + 3 < 8:
        b_issue(kk + 3)
a("s_mul_i32 s44, s46, 2304")
a("s_mul_i32 s45, s47, 384")
a("s_add_u32 s44, s44, s45")
a("s_lshl_b32 s45, s24, 7")
a("s_add_u32 s44, s44, s45")
a("s_add_u32 s44, s44, s39")
a(f"s_add_u32 s44, s44, {X2}")
a("s_mov_b32 s48, 0xffff0000")
a("s_mov_b32 s49, 0xffff0000")
a("v_lshlrev_b32 v8, 2, v1")
a("v_cndmask_b32 v48, v48, v52, s[48:49]")
a("s_mov_b32 exec_hi, 0")
a("buffer_store_dword v48, v8, s[12:15], s44 offen sc1")
a("s_mov_b64 exec, -1")
stamp(4)
a("s_branch LSTQ")
a.label("LSTC")
a(f"s_mov_b32 s44, {XB}")
a(f"s_mul_i32 s45, s24, {TS}")
lng_addr()
a("v_lshrrev_b32 v5, 4, v1")
a("v_lshlrev_b32 v4, 3, v5")
a("v_bfe_u32 v6, v1, 2, 2")
a("v_add_u32 v4, v4, v6")
a("v_mul_u32_u24 v4, 1152, v4")
a("v_and_b32 v6, 3, v1")
a("v_lshl_add_u32 v4, v6, 3, v4")
a("s_lshl_b32 s44, s24, 7")
a(f"s_add_u32 s44, s44, {WD}")
a("v_add_u32 v4, s44, v4")
a("v_lshlrev_b32 v5, 4, v5")
a(f"v_add_u32 v5, {HB}, v5")
a("s_lshl_b32 s44, s24, 4")
a(f"s_add_u32 s44, s44, {HB}")
a("v_lshlrev_b32 v6, 1, v1")
a("v_add_u32 v6, s44, v6")
a("v_lshrrev_b32 v7, 5, v1")
a("v_mul_u32_u24 v7, 18432, v7")
a("v_and_b32 v59, 31, v1")
a("v_lshl_add_u32 v7, v59, 2, v7")
a("s_mul_i32 s50, s28, 18")
a("s_add_u32 s50, s50, s27")
a("s_lshl_b32 s50, s50, 7")
a("s_mul_i32 s45, s24, 36864")
a("s_add_u32 s50, s50, s45")
a("s_add_u32 s50, s50, s39")
a(f"s_add_u32 s50, s50, {X3}")
a("s_mov_b32 s52, 0xffff0000")
a("s_mov_b32 s53, 0xffff0000")
a("s_mov_b32 s40, 0")
a("s_mov_b32 s41, -1")
a("s_cmp_eq_u32 s24, 3")
a("s_cbranch_scc1 LC_BAR")
a("v_lshrrev_b32 v56, 4, v1")
a("v_mul_u32_u24 v56, 2304, v56")
a("v_and_b32 v8, 15, v1")
a("v_lshl_add_u32 v56, v8, 4, v56")
a("s_mul_i32 s48, s24, 768")
a("s_add_u32 s44, s48, s39")
a(f"s_add_u32 s44, s44, {X2}")
for g in range(1, 4):
    a(f"s_add_u32 s{44+g}, s44, {g*9216}")
a("v_bfe_u32 v9, v1, 4, 1")
a("v_lshlrev_b32 v9, 1, v9")
a("v_lshrrev_b32 v10, 5, v1")
a("v_add_u32 v9, v9, v10")
a("v_lshl_add_u32 v9, v8, 2, v9")
a("v_lshrrev_b32 v10, 5, v9")
a("v_lshlrev_b32 v10, 6, v10")
a("v_lshl_add_u32 v10, v9, 1, v10")
a(f"s_add_u32 s49, s48, {LB0+X4}")
a("s_lshr_b32 s48, s48, 1")
a("v_lshlrev_b32 v9, 1, v9")
a("v_add_u32 v9, s48, v9")
a(f"v_add_u32 v59, {XB}, v9")
a("s_cmp_eq_u32 s31, 0")
a("s_cbranch_scc0 LC_X2")
srd(60, 98, 99, 1152)
for c in range(3):
    a(f"buffer_load_ushort v{60+c}, v9, s[60:63], 0 offen offset:{c*128}")
a("s_branch LC_X3")
a.label("LC_X2")
for c in range(3):
    a(f"buffer_load_ushort v{60+c}, v10, s[12:15], s49 offen offset:{c*256} sc1")
a.label("LC_X3")
a("s_waitcnt vmcnt(0)")
for c in range(3):
    a(f"v_lshlrev_b32 v{60+c}, 16, v{60+c}")
a.label("LE2")
for c in range(3):
    for g in range(4):
        a(f"buffer_load_dwordx4 {R('v', 8+16*c+4*g)}, v56, s[12:15], s{44+g} offen offset:{c*256} sc1")
for c in range(3):
    b = 8 + 16 * c
    a(f"s_waitcnt vmcnt({8-4*c})")
    for r in range(4):
        a(f"v_add_f32 v{b+r}, v{b+r}, v{b+4+r}")
        a(f"v_add_f32 v{b+8+r}, v{b+8+r}, v{b+12+r}")
    for r in range(4):
        a(f"v_add_f32 v{b+r}, v{b+r}, v{b+8+r}")
    if OPT["e1f"] and c < 2:
        a(f"v_cmp_u_f32 vcc, v{b}, v{b+3}")
        a("s_cbranch_vccnz LE2R")
    swapreduce(b)
a("v_add_f32 v9, v8, v24")
a("v_cmp_u_f32 vcc, v9, v40")
a("s_cbranch_vccz LE2OK")
a.label("LE2R")
retry("LE2", "LE2OK")
a.label("LE2OK")
a("s_waitcnt vmcnt(0)")
stamp(5)
for c in range(3):
    bf16r(8 + 16 * c, 8 + 16 * c)
for c in range(3):
    a(f"v_add_f32 v{60+c}, v{60+c}, v{8+16*c}")
for c in range(3):
    a(f"v_cvt_pk_bf16_f32 v{60+c}, v{60+c}, v{60+c}")
for c in range(3):
    a(f"ds_write_b16 v59, v{60+c} offset:{c*128}")
a.label("LC_BAR")
a("s_waitcnt lgkmcnt(0)")
a("s_barrier")
a("s_call_b64 s[36:37], LLNG")


def downB(i):
    for t in range(4):
        s = 8 + 16 * (i & 1) + 4 * t
        a(f"ds_read_b64_tr_b16 {R('v', s, 2)}, v4 offset:{i*512+t*32}")
        a(f"ds_read_b64_tr_b16 {R('v', s+2, 2)}, v4 offset:{i*512+t*32+4*1152}")


a(f"v_mov_b32_dpp v41, v60 row_shl:8{DPPM} bound_ctrl:1")
a("v_cvt_pk_bf16_f32 v41, v60, v41")
a("v_lshlrev_b32 v42, 16, v41")
a("v_and_b32 v41, 0xffff0000, v41")
a("v_max_f32 v42, 0, v42")
a("v_mul_f32 v41, v42, v41")
a("v_cvt_pk_bf16_f32 v41, v41, v41")
a("s_mov_b64 exec, 0xff")
a("ds_write_b16 v6, v41")
a("s_mov_b64 exec, -1")
downB(0)
a("s_waitcnt lgkmcnt(8)")
a("s_barrier")
a("ds_read_b128 v[60:63], v5")
a("s_waitcnt lgkmcnt(5)")
downB(1)


def downG(i, wait):
    a(f"s_waitcnt lgkmcnt({wait})")
    for t in range(4):
        s = 8 + 16 * (i & 1) + 4 * t
        a(f"v_mfma_f32_16x16x32_bf16 {R('v', 40+4*t)}, v[60:63], {R('v', s)}, 0")
    a("v_cndmask_b32 v40, v40, v44, s[52:53]")
    a("v_cndmask_b32 v48, v48, v52, s[52:53]")
    a("v_cndmask_b32 v40, v40, v48, s[40:41]")
    a("buffer_store_dword v40, v7, s[12:15], s50 offen sc1")
    a(f"s_add_u32 s50, s50, {4*36864}")


downG(0, 8)
a("s_cmp_eq_u32 s24, 0")
a("s_cbranch_scc1 LDOWN3")
downG(1, 0)
a("s_branch LSTD")
a.label("LDOWN3")
a("s_waitcnt lgkmcnt(0)")
downB(2)
downG(1, 8)
downG(2, 0)
a.label("LSTD")
stamp(6)
a("s_lshl_b32 s50, s27, 3")
a("s_add_u32 s50, s50, s28")
a("s_cmp_lt_u32 s50, 18")
a("s_cbranch_scc0 LSTQ")
a("s_mul_i32 s44, s50, 18432")
a("s_mul_i32 s45, s24, 4608")
a("s_add_u32 s44, s44, s45")
a("s_add_u32 s44, s44, s39")
a(f"s_add_u32 s44, s44, {X3}")
a("s_add_u32 s45, s44, 4096")
a("v_bfe_u32 v58, v1, 4, 1")
a("v_lshlrev_b32 v58, 1, v58")
a("v_lshrrev_b32 v59, 5, v1")
a("v_add_u32 v58, v58, v59")
a("v_and_b32 v59, 7, v1")
a("v_lshl_add_u32 v58, v59, 2, v58")
a("v_lshlrev_b32 v58, 2, v58")
a("s_lshl_b32 s46, s24, 7")
a(f"s_add_u32 s46, s46, {FB}")
a("v_add_u32 v58, s46, v58")
for r in range(4):
    a(f"v_mov_b32 v{24+r}, 0")
a.label("LE3")
for i in range(4):
    a(f"buffer_load_dwordx4 {R('v', 8+4*i)}, v3, s[12:15], s44 offen offset:{i*1024} sc1")
a("s_mov_b32 exec_hi, 0")
a("buffer_load_dwordx4 v[24:27], v3, s[12:15], s45 offen sc1")
a("s_mov_b64 exec, -1")
a("s_waitcnt vmcnt(0)")
for r in range(4):
    a(f"v_add_f32 v{8+r}, v{8+r}, v{12+r}")
    a(f"v_add_f32 v{16+r}, v{16+r}, v{20+r}")
for r in range(4):
    a(f"v_add_f32 v{8+r}, v{8+r}, v{24+r}")
for r in range(4):
    a(f"v_add_f32 v{8+r}, v{8+r}, v{16+r}")
swapreduce(8)
a(f"v_add_f32_dpp v8, v8, v8 row_ror:8{DPPM}")
a("v_cmp_u_f32 vcc, v8, v8")
a("s_cbranch_vccz LE3OK")
retry("LE3", "LE3OK")
a.label("LE3OK")
stamp(7)
a("ds_write_b32 v58, v8")
a("v_lshlrev_b32 v8, 2, v1")
a(f"v_add_u32 v9, {FB}, v8")
a("s_lshl_b32 s45, s50, 6")
a(f"s_add_u32 s46, s45, {XB}")
a("v_lshlrev_b32 v8, 1, v1")
a("v_add_u32 v10, s46, v8")
a("s_waitcnt lgkmcnt(0)")
a("s_barrier")
a("s_cmp_eq_u32 s24, 0")
a("s_cbranch_scc0 LSTQ")
a("s_mov_b32 exec_hi, 0")
for w in range(4):
    a(f"ds_read_b32 v{12+w}, v9 offset:{128*w}")
a("ds_read_u16 v16, v10")
a("s_waitcnt lgkmcnt(0)")
a("v_lshlrev_b32 v16, 16, v16")
a("v_add_f32 v12, v12, v13")
a("v_add_f32 v14, v14, v15")
a("v_add_f32 v12, v12, v14")
bf16r(12, 12)
a("v_add_f32 v12, v12, v16")
a(f"v_mov_b32_dpp v13, v12 quad_perm:[1,1,3,3]{DPPM}")
a("v_cvt_pk_bf16_f32 v12, v12, v13")
a("s_mov_b32 exec_lo, 0x55555555")
a("s_cmp_eq_u32 s31, 0")
a("s_cbranch_scc0 LFINAL")
a("s_lshl_b32 s45, s50, 7")
a("s_add_u32 s45, s45, s39")
a(f"s_add_u32 s45, s45, {X4}")
a("buffer_store_dword v12, v8, s[12:15], s45 offen sc1")
a("s_mov_b64 exec, -1")
a("s_branch LSTQ")
a.label("LFINAL")
a("buffer_store_dword v12, v8, s[16:19], s45 offen")
a("s_mov_b64 exec, 1")
a("s_cmp_eq_u32 s50, 0")
a("s_cbranch_scc0 LNOEP")
a("v_mov_b32 v9, s29")
a("buffer_store_dword v9, v8, s[12:15], 0 offen sc1")
a.label("LNOEP")
a("s_mov_b64 exec, -1")
a.label("LSTQ")
stamp(8)
a("s_cmp_eq_u32 s31, 0")
a("s_cbranch_scc0 LDONE")
if OPT["npf"]:
    a("s_cmp_lt_u32 s27, 18")
    a("s_cbranch_scc1 LQ5")
    a("v_lshlrev_b32 v34, 7, v1")
    a("s_lshl_b32 s44, s26, 2")
    a("s_add_u32 s44, s44, s24")
    a("s_lshl_b32 s44, s44, 13")
    for n in range(OPT["npf"]):
        a(f"s_add_u32 s45, s44, {(4+n)*UNIT_STEP}")
        a(f"buffer_load_dword v35, v34, s[4:7], s45 offen{PFK}")
        a(f"buffer_load_dword v36, v34, s[8:11], s45 offen{PFV}")
a("s_cmp_ge_u32 s27, 24")
a("s_cbranch_scc0 LQ5")
qprep(X5)
a(f"s_add_u32 s44, s39, {X4}")
a("v_lshrrev_b32 v16, 2, v1")
a("v_lshlrev_b32 v16, 7, v16")
a("v_and_b32 v17, 3, v1")
a("v_lshl_add_u32 v16, v17, 4, v16")
for r in range(4):
    a(f"v_mov_b32 v{12+r}, 0")
a.label("LE4")
a("buffer_load_dwordx4 v[8:11], v16, s[12:15], s44 offen sc1")
a("s_mov_b64 exec, 0xff")
a("buffer_load_dwordx4 v[12:15], v16, s[12:15], s44 offen offset:2048 sc1")
a("s_mov_b64 exec, -1")
a("s_waitcnt vmcnt(0)")
a("v_max3_u32 v17, v8, v9, v10")
a("v_max3_u32 v18, v11, v12, v13")
a("v_max3_u32 v17, v17, v14, v15")
a("v_max_u32 v17, v17, v18")
a("v_cmp_eq_u32 vcc, -1, v17")
a("s_cbranch_vccz LE4OK")
retry("LE4", "LE4OK")
a.label("LE4OK")
stamp(9)
a("s_call_b64 s[36:37], LQSTAGE")
a.label("LQ5")
if STAMPS:
    a("s_memrealtime s[58:59]")
    a("s_waitcnt lgkmcnt(0)")
    a("s_mov_b32 s74, s58")
a("s_mov_b32 s31, 1")
a(f"s_add_u32 s39, s39, {LSTRIDE}")
a("s_add_u32 s88, s88, 4096")
a("s_addc_u32 s89, s89, 0")
a("s_mov_b32 s90, 1")
a("s_atomic_add s90, s[88:89], 0 glc")
loopconsts()
a(f"s_mov_b32 s96, {NP2}")
a("s_mov_b32 s91, 0")
a("s_mov_b32 s95, s97")
a("v_lshlrev_b32 v40, 2, v0")
a(f"v_add_u32 v40, {LSV}, v40")
a(f"ds_read_b32 v{VL}, v40")
qpoll_addr(X5)
a("s_waitcnt lgkmcnt(0)")
a("s_branch LQPOLL")

a.label("LQSTAGE")
a("ds_write_b128 v2, v[8:11]")
a("s_mov_b64 exec, 0xff")
a("ds_write_b128 v2, v[12:15] offset:1024")
a("s_mov_b64 exec, -1")
a("s_mov_b64 s[52:53], s[36:37]")
a("s_waitcnt lgkmcnt(1)")
a("s_call_b64 s[36:37], LLNG")
a("v_lshlrev_b32 v8, 2, v1")
a("v_mov_b32 v11, s29")
a(f"v_mov_b32_dpp v9, v60 quad_perm:[1,1,3,3]{DPPM}")
a("v_cvt_pk_bf16_f32 v10, v60, v9")
a("s_mov_b64 exec, 0x5555")
a("buffer_store_dwordx2 v[10:11], v8, s[12:15], s54 offen sc1")
a("s_mov_b64 exec, -1")
a("s_setpc_b64 s[52:53]")

a.label("LLNG")
lngemv()
a("s_setpc_b64 s[36:37]")

a.vq = qtags("R0") + qtags("R1") + qtags("R2")
for s in range(3):
    lp, lg, ln, lb, lx = (a.newlabel(x) for x in ("pool", "go", "noapp", "bonly", "next"))
    a.label(f"LRING{s}")
    a(f"s_mov_b32 s3, {s}")
    ticket_ready()
    a("s_cmp_ge_u32 s90, s55")
    a("s_cbranch_scc1 LRINGX")
    a("s_cmp_ge_u32 s101, s37")
    a("s_cbranch_scc1 LRINGX")
    a("s_cmp_lt_u32 s91, s92")
    a(f"s_cbranch_scc0 {lp}")
    a(f"v_readlane_b32 s32, v{VL}, s91")
    a("s_add_u32 s91, s91, 1")
    a(f"s_branch {lg}")
    a.label(lp)
    draw(s, f"LDRAINE{s}")
    a.label(lg)
    setaddr(32, 32)
    a("s_add_u32 s101, s101, 1")
    a(f"s_bitcmp1_b32 s95, {s}")
    a(f"s_cbranch_scc0 {lb}")
    unit("v", RING[s], f"R{s}", f"R{s}n")
    logt()
    q1 = [(t[0].rstrip("n"), t[1], t[2]) for t in a.vq]
    a(f"s_branch LRING{(s+1)%3}")
    a.label(lb)
    a(f"s_bitset1_b32 s95, {s}")
    for t in range(8):
        ldK("v", RING[s], t, "x")
    for t in range(8):
        ldV("v", RING[s], t, "x")
    a(f"s_branch LRING{(s+1)%3}")
    a.vq = q1
a.label("LRINGX")
for k in range(1, 10):
    a(f"s_cmp_eq_u32 s36, {k}")
    a(f"s_cbranch_scc1 LRET{k}")
a("s_branch LRET10")

for s in range(3):
    a.label(f"LDRAINE{s}")
    a("v_mov_b32 v48, 0")
    a("buffer_load_dword v49, v48, s[20:23], 0 offen sc1")
    a("s_mov_b32 s93, 0")
    a("s_bcnt1_i32_b32 s44, s97")
    a("s_sub_u32 s92, s94, s44")
    a(f"s_branch LDRAIN{s}")
for s in range(3):
    a.label(f"LDRAIN{s}")
    lsk = a.newlabel("dsk")
    a(f"s_bitcmp1_b32 s95, {s}")
    a(f"s_cbranch_scc0 {lsk}")
    unit_drain(RING[s])
    a.label(lsk)
    a("s_add_u32 s93, s93, 1")
    a("s_cmp_eq_u32 s93, 3")
    a("s_cbranch_scc1 LPASSEND")
a("s_branch LDRAIN0")

a.label("LDONE")
if OPT["padto"]:
    if OPT["padmin"]:
        a("s_mov_b32 s100, 0")
        a("s_atomic_add s100, s[84:85], 64 glc")
        a("s_waitcnt lgkmcnt(0)")
        a("s_not_b32 s100, s100")
    a.label("LPAD")
    a("s_memrealtime s[58:59]")
    a("s_waitcnt lgkmcnt(0)")
    a("s_sub_u32 s58, s58, s100")
    a(f"s_cmp_lt_u32 s58, {OPT['padto']*100}")
    a("s_cbranch_scc1 LPAD")
if STAMPS:
    a("s_memrealtime s[58:59]")
    a("s_waitcnt lgkmcnt(0)")
    a("s_mov_b32 s87, s58")
    a("s_lshl_b32 s44, s2, 2")
    a("s_add_u32 s44, s44, s24")
    a("s_lshl_b32 s44, s44, 7")
    a(f"s_add_u32 s44, s44, {STAMP_OFF}")
    a("v_mov_b32 v8, 0")
    a("s_mov_b64 exec, 1")
    for i in range(24):
        a(f"v_mov_b32 v9, s{64+i}")
        a(f"buffer_store_dword v9, v8, s[12:15], s44 offen offset:{4*i}")
    a("v_mov_b32 v9, s100")
    a("buffer_store_dword v9, v8, s[12:15], s44 offen offset:96")
    for i, r in enumerate((57, 92, 57, 57, 57, 94)):
        a(f"v_mov_b32 v9, s{r}")
        a(f"buffer_store_dword v9, v8, s[12:15], s44 offen offset:{100+4*i}")
    if OPT["dbgout"]:
        a("s_or_b32 s44, s2, s24")
        a("s_cmp_eq_u32 s44, 0")
        a("s_cbranch_scc0 LEND")
        for i, r in enumerate((64, 65, 66, 69, 70, 71, 72, 76, 77, 78, 81, 82, 83, 87)):
            a(f"s_sub_u32 s44, s{r}, s100")
            a("v_mov_b32 v9, s44")
            a(f"buffer_store_dword v9, v8, s[20:23], 0 offen offset:{4+4*i}")
    a("s_waitcnt vmcnt(0)")
a.label("LEND")
a("s_endpgm")

hdr = open("cdna_kernels/" + NAME + ".s.ref").read().split("\n")
top = [l for l in hdr if l.startswith(";") and "@launch" not in l]
out = "\n".join(top) + "\n"
out += f"; @launch grid=(256,1,1) block=(256,1,1) lds={LDS_SIZE}\n"
out += f""".amdgcn_target "amdgcn-amd-amdhsa--gfx950"
.text
.globl {NAME}_kernel
.p2align 8
.type {NAME}_kernel,@function
"""
out += a.text()
out += f""".section .rodata,"a"
.p2align 6
.amdhsa_kernel {NAME}_kernel
  .amdhsa_next_free_vgpr 512
  .amdhsa_next_free_sgpr 102
  .amdhsa_accum_offset 256
  .amdhsa_group_segment_fixed_size 0
  .amdhsa_kernarg_size 96
  .amdhsa_user_sgpr_count 2
  .amdhsa_user_sgpr_kernarg_segment_ptr 1
  .amdhsa_system_sgpr_workgroup_id_x 1
.end_amdhsa_kernel
"""
import re
if OPT["xl"]:
    out = re.sub(r"(buffer_load\S+ .*) sc1$", r"\1 sc0 sc1", out, flags=re.M)
if OPT["xs"]:
    out = re.sub(r"(buffer_store\S+ .*) sc1$", r"\1 sc0 sc1", out, flags=re.M)
open(sys.argv[1], "w").write(out)
```

```python
import sys, struct, math
from asmlib import Asm

NAME = "interleave_layers__gqa_block_cached__glu_gated_reglu__decode"
OPT = dict(stamps=0, p2rev=0, kvpol="nt", wpol="nt", wskip=0, vring="def", kring="nt", tfw=7, psleep=1, npf=0, thrp=80, pr=1110, eg=0, gv=8, xl=0, xs=0, padto=0, tk2=0, klate=1, wcl=0, hv=0, lv=0, alt=3, e1f=1, mixx=1, rot=0, padmin=0, cn=3, vote=1, avpol="def", forcecls=-1, dbgout=0, pfk="nt", pfv="def")
for arg in sys.argv[2:]:
    k, v = arg.split("=")
    OPT[k] = int(v) if v.lstrip("-").isdigit() else v
STAMPS = OPT["stamps"]
TKI = 2 if OPT["tk2"] else 1
KVPOL = "" if OPT["kvpol"] == "def" else " " + OPT["kvpol"]
WPOL = "" if OPT["wpol"] == "def" else " " + OPT["wpol"]
PFK = "" if OPT["pfk"] == "def" else " " + OPT["pfk"]
PFV = "" if OPT["pfv"] == "def" else " " + OPT["pfv"]


def f32(x):
    return "0x%08x" % struct.unpack("<I", struct.pack("<f", x))[0]


X0 = 0x1000
X5 = 0x9000
CTR = 0x11000
LB0 = 0x20000
LSTRIDE = 0xC0000
X1 = 0x0
X1S = 1280
X2 = 0x50000
X3 = 0x59000
X4 = 0xAA000
STAMP_OFF = 0x200000
WS_SIZE = 0x400000
NP1 = 19 * 64
TF = NP1 - OPT["tfw"] * 64
NP2 = 128 + TF // 2
THR0 = 32
THRS = (NP2 * OPT["thrp"] // 100 - THR0) // 9
WGU = 0
TS = 18432
WD = 73728
FB = 110592
HB = 111104
WO = 0
WOS = 8192
WQ = 49152
SA = 122880
CB1 = SA
CS1 = SA + 4096
XB = SA
OB = 127488
LSV = 128000
ONES = 129088
KL = 130304
LDS_SIZE = 163072

UNIT_STEP = 524288
DPPM = " row_mask:0xf bank_mask:0xf"
a = Asm()
stamp_n = [0]


def stamp(i):
    if not STAMPS:
        return
    a("s_memrealtime s[58:59]")
    a("s_waitcnt lgkmcnt(0)")
    lab = a.newlabel("st")
    a(f"s_mov_b32 s{64+12+i}, s58")
    a("s_cmp_eq_u32 s31, 0")
    a(f"s_cbranch_scc0 {lab}")
    a(f"s_mov_b32 s{64+i}, s58")
    a.label(lab)


def sstamp(reg):
    if True:
        return
    a("s_memrealtime s[58:59]")
    a("s_waitcnt lgkmcnt(0)")
    a(f"s_mov_b32 s{reg}, s58")


def logt():
    if STAMPS != 2:
        return
    a("s_memrealtime s[58:59]")
    a("s_waitcnt lgkmcnt(0)")
    a("s_mov_b32 m0, s93")
    a("s_add_u32 s93, s93, 1")
    a("s_min_u32 s93, s93, 63")
    a("v_writelane_b32 v51, s58, m0")


def R(kind, base, n=4):
    return f"{kind}[{base}:{base+n-1}]"


def srd(d, lo, hi, size):
    a(f"s_mov_b32 s{d}, s{lo}")
    a(f"s_and_b32 s{d+1}, s{hi}, 0xffff")
    a(f"s_mov_b32 s{d+2}, {size}")
    a(f"s_mov_b32 s{d+3}, 0x20000")


def srd_role(d, lo, hi, size):
    a(f"s_cselect_b32 s{d+2}, {size}, 0")
    a(f"s_mov_b32 s{d}, s{lo}")
    a(f"s_and_b32 s{d+1}, s{hi}, 0xffff")
    a(f"s_mov_b32 s{d+3}, 0x20000")


def ld(kind, reg, t, src, half, pol, tag):
    if OPT["lv"] and (t & 1) == 0:
        a(f"s_waitcnt vmcnt({OPT['lv']})")
    srd_, vo = {"K": ("s[4:7]", "v2"), "K2": ("s[60:63]", "v51"), "V": ("s[8:11]", "v3")}[src]
    a(f"buffer_load_dwordx4 {R(kind, reg+4*t)}, {vo}, {srd_}, s{32+2*half+(t>>2)} offen offset:{(t&3)*1024}{pol}", tag=tag)


VPOL = "" if OPT["vring"] == "def" else " nt"


def ldK(kind, base, t, tag):
    ld(kind, base, t, "K", 0, " nt", (tag, "K", t))


def ldV(kind, base, t, tag):
    ld(kind, base + 32, t, "V", 1, ("" if OPT["avpol"] == "def" else " nt") if kind == "a" else VPOL, (tag, "V", t))


def adv():
    for r in range(32, 36):
        a(f"s_add_u32 s{r}, s{r}, {UNIT_STEP}")


def setaddr(k, v):
    if k is not None:
        if k != 32:
            a(f"s_mov_b32 s32, s{k}")
        a("s_add_u32 s33, s32, 4096")
    if v is not None:
        if v != 34:
            a(f"s_mov_b32 s34, s{v}")
        a("s_add_u32 s35, s34, 4096")


def burst(kind, base, tag):
    for t in range(8):
        ldK(kind, base, t, tag)
    for t in range(8):
        ldV(kind, base, t, tag)
    adv()
    logt()


def waitq(tag, floor=0):
    if tag in a.vq:
        a.wait_vm(tag, floor)


def allreduce(op, v, t, first=0):
    steps = ["quad_perm:[1,0,3,2]", "quad_perm:[2,3,0,1]", "row_half_mirror", "row_mirror"]
    for s in steps[first:]:
        a(f"{op}_dpp v{v}, v{v}, v{v} {s}{DPPM}")
    rows(op, v, t)


def rows(op, v, t):
    a(f"v_mov_b32 v{t}, v{v}")
    a(f"v_permlane16_swap_b32 v{v}, v{t}")
    a(f"{op} v{v}, v{v}, v{t}")
    a(f"v_mov_b32 v{t}, v{v}")
    a(f"v_permlane32_swap_b32 v{v}, v{t}")
    a(f"{op} v{v}, v{v}, v{t}")


QE, QO, OA, MS, LS, NMC = 8, 12, 16, 20, 21, 22
DS_ = [24, 28, 32, 36]
TT = 40
TMP = 44


def unit2(K, V, kt=None, vt=None, rk=None, rv=None, hooks=None, tt=TT):
    if K is not None:
        if hooks:
            hooks[0]()
        for u in range(4):
            if kt:
                waitq(kt(2 * u + 1))
            d = R("v", DS_[u])
            a(f"v_mfma_f32_16x16x32_bf16 {d}, {R(K[0], K[1]+8*u)}, {R('v', QE)}, 0")
            a(f"v_mfma_f32_16x16x32_bf16 {d}, {R(K[0], K[1]+8*u+4)}, {R('v', QO)}, {d}")
            if rk:
                rk(2 * u)
                rk(2 * u + 1)
        order = [(0, 0), (1, 0), (2, 0), (0, 1), (1, 1), (2, 1), (0, 2), (1, 2), (3, 0), (2, 2), (0, 3), (3, 1),
                 (1, 3), (2, 3), (3, 2), None, (3, 3)]
        for o in order:
            if o is None:
                if V is not None:
                    a(f"v_max3_f32 v{TMP}, v{tt}, v{tt+1}, v{MS}")
                continue
            u, c = o
            qp = f"quad_perm:[{c},{c},{c},{c}]"
            if c == 0:
                a(f"v_mov_b32_dpp v{tt+u}, v{DS_[u]} {qp}{DPPM}")
            else:
                a(f"v_add_f32_dpp v{tt+u}, v{DS_[u]+c}, v{tt+u} {qp}{DPPM}")
    if V is None:
        return
    if K is None:
        a(f"v_max3_f32 v{TMP}, v{tt}, v{tt+1}, v{MS}")
    a(f"v_max3_f32 v{TMP}, v{TMP}, v{tt+2}, v{tt+3}")
    a(f"v_max_f32_dpp v{TMP}, v{TMP}, v{TMP} row_half_mirror{DPPM}")
    rows("v_max_f32", TMP, TMP + 1)
    a(f"v_sub_f32 v{TMP+1}, v{MS}, v{TMP}")
    a(f"v_mul_f32 v{TMP+1}, s30, v{TMP+1}")
    a(f"v_exp_f32 v{TMP+1}, v{TMP+1}")
    a(f"v_mov_b32 v{MS}, v{TMP}")
    a(f"v_mul_f32 v{NMC}, s30, v{TMP}")
    for u in range(4):
        a(f"v_fma_f32 v{tt+u}, v{tt+u}, s30, -v{NMC}")
    for u in range(4):
        a(f"v_exp_f32 v{tt+u}, v{tt+u}")
    a(f"v_mul_f32 v{LS}, v{LS}, v{TMP+1}")
    for r in range(4):
        a(f"v_mul_f32 v{OA+r}, v{OA+r}, v{TMP+1}")
    a(f"v_add_f32 v{TMP+2}, v{tt}, v{tt+1}")
    a(f"v_add_f32 v{TMP+3}, v{tt+2}, v{tt+3}")
    for u in range(4):
        a(f"v_cvt_pk_bf16_f32 v{tt+u}, v{tt+u}, v{tt+u}")
    a(f"v_add_f32 v{TMP+2}, v{TMP+2}, v{TMP+3}")
    a(f"v_add_f32 v{LS}, v{LS}, v{TMP+2}")

    def buildB(t):
        b = DS_[t & 3]
        p = tt + (t >> 1)
        for i in range(4):
            own = (i < 2) == ((t & 1) == 0)
            if own:
                a(f"v_and_b32 v{b+i}, v{p}, v{4+i}")
            else:
                sh = "row_shr:4" if (t & 1) == 0 else "row_shl:4"
                a(f"v_and_b32_dpp v{b+i}, v{p}, v{4+i} {sh}{DPPM} bound_ctrl:1")

    buildB(0)
    if hooks:
        hooks[1]()
    for t in range(8):
        if t + 1 < 8:
            buildB(t + 1)
        if vt:
            waitq(vt(t))
        a(f"v_mfma_f32_16x16x32_bf16 {R('v', OA)}, {R(V[0], V[1]+4*t)}, {R('v', DS_[t&3])}, {R('v', OA)}")
        if rv:
            rv(t)


def unit(kind, base, tag, reload_tag=None, hooks=None):
    rk = rv = None
    if reload_tag is not None:
        rk = lambda t: ldK(kind, base, t, reload_tag)
        rv = lambda t: ldV(kind, base, t, reload_tag)
    unit2((kind, base), (kind, base + 32), lambda t: (tag, "K", t), lambda t: (tag, "V", t), rk, rv, hooks)


probe_k = [0]


def probe(kind="V"):
    k = probe_k[0]
    probe_k[0] += 1
    srd_, base = ("s[8:11]", 55) if kind == "V" else ("s[4:7]", 96)
    for c in ((0, 1) if k & 1 else (1, 0)):
        a(f"s_add_u32 s50, s57, {(c ^ 1)*8192 + k*1152}")
        a("s_memtime s[52:53]")
        a("s_waitcnt lgkmcnt(0)")
        a(f"s_buffer_load_dword s51, {srd_}, s50")
        a("s_waitcnt lgkmcnt(0)")
        a("s_memtime s[50:51]")
        a("s_waitcnt lgkmcnt(0)")
        a("s_sub_u32 s50, s50, s52")
        a(f"s_min_u32 s{base+c}, s{base+c}, s50")


def qtags(tag):
    return [(tag, "K", t) for t in range(8)] + [(tag, "V", t) for t in range(8)]


RING = [64, 128, 192]


def bf16r(d, s):
    a(f"v_cvt_pk_bf16_f32 v{d}, v{s}, v{s}")
    a(f"v_and_b32 v{d}, 0xffff0000, v{d}")


def afrag_addr(v, base_sgpr=None, base=0):
    a(f"v_lshrrev_b32 v{v}, 4, v1")
    a(f"v_lshlrev_b32 v{v}, 4, v{v}")
    if base:
        a(f"v_add_u32 v{v}, {base}, v{v}")
    if base_sgpr is not None:
        a(f"v_add_u32 v{v}, s{base_sgpr}, v{v}")


def lng_addr():
    a("v_add_u32 v2, s44, v3")
    a("v_mov_b32 v57, s44")
    a(f"v_mov_b32 v58, {ONES}")
    a("s_mov_b32 s46, 0x00020002")
    a("s_mov_b32 s47, 0x00020002")
    a("v_cndmask_b32 v57, v57, v58, s[46:47]")
    a("v_lshrrev_b32 v58, 4, v1")
    a("v_lshl_add_u32 v57, v58, 4, v57")
    a("v_lshlrev_b32 v58, 3, v1")
    a("v_add_u32 v58, s45, v58")


def lngemv():
    S, nk, T, acc = 4, 18, 8, 60
    s, q, t, t2, one = 48, 49, 50, 51, 52
    f = []
    for i in range(8):
        f.append(f"v_dot2c_f32_bf16 v{s}, v{40+i}, v{one}")
        f.append(f"v_dot2c_f32_bf16 v{q}, v{40+i}, v{40+i}")
    f.append("s_nop 1")
    for st in ("quad_perm:[1,0,3,2]", "quad_perm:[2,3,0,1]", "row_half_mirror", "row_mirror"):
        f.append(f"v_add_f32_dpp v{s}, v{s}, v{s} {st}{DPPM}")
        f.append(f"v_add_f32_dpp v{q}, v{q}, v{q} {st}{DPPM}")
    f.append(f"v_permlane16_swap_b32 v{s}, v{q}")
    f.append(f"v_add_f32 v{s}, v{s}, v{q}")
    f.append(f"v_mov_b32 v{t}, v{s}")
    f.append(f"v_permlane32_swap_b32 v{s}, v{t}")
    f.append(f"v_add_f32 v{s}, v{s}, v{t}")
    f.append(f"v_mul_f32 v{s}, {f32(1.0/576)}, v{s}")
    f.append(f"v_mov_b32 v{q}, v{s}")
    f.append(f"v_permlane16_swap_b32 v{s}, v{q}")
    f.append(f"v_fma_f32 v{q}, -v{s}, v{s}, v{q}")
    f.append(f"v_max_f32 v{q}, 0, v{q}")
    f.append(f"v_cvt_pk_bf16_f32 v{q}, v{s}, v{q}")
    f.append(f"v_lshlrev_b32 v{s}, 16, v{q}")
    f.append(f"v_and_b32 v{q}, 0xffff0000, v{q}")
    for op in (f"v_add_f32 v{q}, {f32(1e-5)}, v{q}", f"v_sqrt_f32 v{q}, v{q}"):
        f.append(op)
        f.append(f"v_cvt_pk_bf16_f32 v{q}, v{q}, v{q}")
        f.append(f"v_and_b32 v{q}, 0xffff0000, v{q}")
    f.append(f"v_rcp_f32 v{q}, v{q}")

    def issue(kk):
        z = T + 8 * (kk % S)
        a(f"ds_read_b128 {R('v', z)}, v57 offset:{kk*64}")
        a(f"ds_read_b64_tr_b16 {R('v', z+4, 2)}, v58 offset:{kk*1024}")
        a(f"ds_read_b64_tr_b16 {R('v', z+6, 2)}, v58 offset:{kk*1024+512}")

    for r in range(4):
        a(f"v_mov_b32 v{44+r}, 0")
    a("ds_read_b128 v[40:43], v2")
    a("s_mov_b64 exec, 0xff")
    a("ds_read_b128 v[44:47], v2 offset:1024")
    a("s_mov_b64 exec, -1")
    for kk in range(S):
        issue(kk)
    a(f"v_mov_b32 v{s}, 0")
    a(f"v_mov_b32 v{q}, 0")
    a(f"v_mov_b32 v{one}, 0x3f803f80")
    per = -(-len(f) // (nk // 2 + 1))
    for kk in range(0, nk, 2):
        a(f"s_waitcnt lgkmcnt({3*(min(nk, kk+S)-kk-2)})")
        for k2 in (kk, kk + 1):
            z = T + 8 * (k2 % S)
            c = "0" if k2 == 0 else R("v", acc)
            a(f"v_mfma_f32_16x16x32_bf16 {R('v', acc)}, {R('v', z)}, {R('v', z+4)}, {c}")
        for k2 in (kk, kk + 1):
            if k2 + S < nk:
                issue(k2 + S)
        for _ in range(per):
            if f:
                a(f.pop(0))
    while f:
        a(f.pop(0))
    a(f"v_fma_f32 v60, -v{s}, v61, v60")
    a(f"v_mul_f32 v60, v60, v{q}")


def retry(lab_again, lab_done):
    a("s_cmp_eq_u32 s38, 0")
    a(f"s_cbranch_scc1 {lab_done}")
    a("s_sub_u32 s38, s38, 1")
    if OPT["psleep"]:
        a(f"s_sleep {OPT['psleep']}")
    a(f"s_branch {lab_again}")


def combine(CB, CS):
    a("v_lshlrev_b32 v8, 2, v0")
    a(f"v_add_u32 v8, {CB}, v8")
    a("s_lshr_b32 s44, s24, 1")
    a("s_lshl_b32 s44, s44, 5")
    a(f"s_add_u32 s44, s44, {CS}")
    a("v_mov_b32 v9, s44")
    a("ds_read_b128 v[12:15], v9")
    a("ds_read_b128 v[16:19], v9 offset:16")
    for w in range(4):
        a(f"ds_read_b32 v{20+w}, v8 offset:{w*1024}")
    a("s_waitcnt lgkmcnt(4)")
    a("v_max3_f32 v26, v12, v14, v16")
    a("v_max_f32 v26, v26, v18")
    for w in range(4):
        a(f"v_sub_f32 v{12+2*w}, v{12+2*w}, v26")
    for w in range(4):
        a(f"v_exp_f32 v{12+2*w}, v{12+2*w}")
    a("v_mul_f32 v27, v13, v12")
    for w in range(1, 4):
        a(f"v_fmac_f32 v27, v{13+2*w}, v{12+2*w}")
    a("s_waitcnt lgkmcnt(0)")
    a("v_mul_f32 v24, v20, v12")
    for w in range(1, 4):
        a(f"v_fmac_f32 v24, v{20+w}, v{12+2*w}")


def qpoll_issue():
    a("buffer_load_dwordx4 v[24:27], v32, s[12:15], s45 offen sc1", tag="qp")
    a("buffer_load_dwordx4 v[28:31], v32, s[12:15], s45 offen offset:16 sc1", tag="qp")


def qpoll_addr(xoff):
    a("s_lshl_b32 s45, s25, 11")
    a(f"s_add_u32 s45, s45, {xoff}")
    a("v_bfe_u32 v32, v1, 3, 1")
    a("v_lshlrev_b32 v32, 10, v32")
    a("v_lshrrev_b32 v33, 4, v1")
    a("v_lshl_add_u32 v32, v33, 8, v32")
    a("v_bfe_u32 v33, v1, 1, 1")
    a("v_lshl_add_u32 v32, v33, 7, v32")
    a("v_and_b32 v33, 1, v1")
    a("v_lshl_add_u32 v32, v33, 5, v32")


def qpoll_check():
    a("v_cmp_ne_u32 s[46:47], s29, v25")
    a("v_cmp_ne_u32 s[48:49], s29, v27")
    a("v_cmp_ne_u32 s[50:51], s29, v29")
    a("v_cmp_ne_u32 s[52:53], s29, v31")
    a("s_or_b64 s[46:47], s[46:47], s[48:49]")
    a("s_or_b64 s[50:51], s[50:51], s[52:53]")
    a("s_or_b64 s[46:47], s[46:47], s[50:51]")


VL = 50


def unit_drain(base):
    def pwait(n0, n1, n2):
        l0, l1 = a.newlabel("dw"), a.newlabel("dw")
        a("s_cmp_eq_u32 s93, 0")
        a(f"s_cbranch_scc1 {l0}")
        a("s_cmp_eq_u32 s93, 1")
        a(f"s_cbranch_scc1 {l1}")
        a(f"s_waitcnt vmcnt({n2})")
        a.label(l1)
        a(f"s_waitcnt vmcnt({n1})")
        a.label(l0)
        a(f"s_waitcnt vmcnt({n0})")
    a.vq = []
    unit("v", base, "none", None, hooks=(lambda: pwait(41, 25, 9), lambda: pwait(33, 17, 1)))


def swapreduce(b):
    a(f"v_permlane32_swap_b32 v{b}, v{b+1}")
    a(f"v_permlane32_swap_b32 v{b+2}, v{b+3}")
    a(f"v_add_f32 v{b}, v{b}, v{b+1}")
    a(f"v_add_f32 v{b+2}, v{b+2}, v{b+3}")
    a(f"v_permlane16_swap_b32 v{b}, v{b+2}")
    a(f"v_add_f32 v{b}, v{b}, v{b+2}")


def kofs():
    a("v_bfe_u32 v40, v1, 2, 2")
    a("v_lshlrev_b32 v2, 8, v40")
    a("v_lshrrev_b32 v40, 4, v1")
    a("v_lshl_add_u32 v2, v40, 6, v2")
    a("v_and_b32 v40, 3, v1")
    a("v_lshl_add_u32 v2, v40, 4, v2")


def masks():
    a("v_and_b32 v40, 1, v1")
    a("v_lshlrev_b32 v40, 4, v40")
    a("v_mov_b32 v41, 0xffff")
    a("v_lshlrev_b32 v40, v40, v41")
    for i in range(4):
        m = 0x03030303 << (2 * i)
        a(f"s_mov_b32 s46, 0x{m:08x}")
        a(f"s_mov_b32 s47, 0x{m:08x}")
        a(f"v_cndmask_b32 v{4+i}, 0, v40, s[46:47]")


def loopconsts():
    kofs()
    masks()


def qprep(xoff):
    a("s_mul_i32 s44, s24, 1152")
    a(f"s_add_u32 s44, s44, {XB}")
    a(f"s_mul_i32 s45, s24, {TS}")
    a(f"s_add_u32 s45, s45, {WQ}")
    lng_addr()
    a("s_lshl_b32 s54, s28, 3")
    a("s_add_u32 s54, s54, s27")
    a("s_sub_u32 s54, s54, 24")
    a("s_lshl_b32 s54, s54, 2")
    a("s_add_u32 s54, s54, s24")
    a("s_lshl_b32 s54, s54, 7")
    a(f"s_add_u32 s54, s54, {xoff}")


def ones_init():
    for r in range(4):
        a(f"v_mov_b32 v{16+r}, 0x3f803f80")
    a(f"v_add_u32 v20, {ONES}, v3")
    a("ds_write_b128 v20, v[16:19]")
    a("s_mov_b64 exec, 0xff")
    a("ds_write_b128 v20, v[16:19] offset:1024")
    a("s_mov_b64 exec, -1")


a.raw(f"{NAME}_kernel:")
a("s_cmp_ge_u32 s2, 256")
a("s_cbranch_scc1 LEND")
if STAMPS or OPT["padto"]:
    a("s_memrealtime s[100:101]")
a("s_load_dwordx16 s[64:79], s[0:1], 0")
a("s_load_dwordx8 s[80:87], s[0:1], 64")
a("v_and_b32 v1, 63, v0")
a("v_lshrrev_b32 v40, 6, v0")
a("v_readfirstlane_b32 s24, v40")
a("s_and_b32 s28, s2, 7")
a("s_lshr_b32 s27, s2, 3")
a("s_lshl_b32 s44, s28, 2")
a("s_add_u32 s27, s27, s44")
a("s_and_b32 s27, s27, 31")
a("s_lshr_b32 s25, s2, 4")
a("s_and_b32 s26, s2, 15")
a(f"s_mov_b32 s30, {f32(math.log2(math.e)/math.sqrt(128.0))}")
a("s_mov_b32 s31, 0")
a("s_mov_b32 s38, 400000")
a(f"s_mov_b32 s39, {LB0}")
a("s_mov_b32 s42, 0xf0f0f0f0")
a("s_mov_b32 s43, 0xf0f0f0f0")
a("s_lshl_b32 s44, s26, 2")
a("s_add_u32 s44, s44, s24")
a("s_lshl_b32 s32, s44, 13")
setaddr(32, 32)
a("s_lshl_b32 s57, s44, 14")
a(f"s_add_u32 s57, s57, {1920*8192}")
a("s_mov_b32 s55, -1")
a("s_mov_b32 s56, -1")
a("s_mov_b32 s96, -1")
a("s_mov_b32 s97, -1")
a("v_lshlrev_b32 v3, 4, v1")
kofs()
a("s_waitcnt lgkmcnt(0)")
a("s_load_dword s29, s[86:87], 0")
if OPT["padmin"]:
    a("s_not_b32 s101, s100")
    a("s_atomic_umax s101, s[84:85], 64")
a("s_lshl_b32 s44, s25, 24")
a("s_add_u32 s4, s66, s44")
a("s_addc_u32 s5, s67, 0")
a("s_and_b32 s5, s5, 0xffff")
a("s_mov_b32 s6, 0x1000000")
a("s_mov_b32 s7, 0x20000")
a("s_add_u32 s8, s68, s44")
a("s_addc_u32 s9, s69, 0")
a("s_and_b32 s9, s9, 0xffff")
a("s_mov_b32 s10, 0x1000000")
a("s_mov_b32 s11, 0x20000")
srd(12, 86, 87, WS_SIZE)
a("s_cmp_ge_u32 s27, 24")
a("s_cbranch_scc0 LPRO1")
srd(60, 64, 65, 1152)
srd(92, 70, 71, 0 if OPT["wskip"] & 8 else 576 * 8192)
a("v_lshrrev_b32 v41, 3, v1")
a("v_lshlrev_b32 v40, 13, v41")
a("v_and_b32 v42, 7, v1")
a("v_lshl_add_u32 v40, v42, 4, v40")
a("s_lshl_b32 s46, s28, 3")
a("s_add_u32 s46, s46, s27")
a("s_sub_u32 s46, s46, 24")
a("s_lshl_b32 s44, s46, 7")
a(f"s_mul_i32 s45, s24, {144*8192}")
a("s_add_u32 s44, s44, s45")
for i in range(18):
    a(f"buffer_load_dwordx4 {R('v', 64+4*i)}, v40, s[92:95], s44 offen{WPOL}")
    a("s_add_u32 s44, s44, 65536")
a("buffer_load_dwordx4 v[8:11], v3, s[60:63], 0 offen")
a("buffer_load_dwordx4 v[12:15], v3, s[60:63], 0 offen offset:1024")
a("s_and_b32 s44, s46, 3")
a("s_or_b32 s44, s44, s24")
a("s_cmp_eq_u32 s44, 0")
a("s_cbranch_scc0 LPRO0")
a("v_and_b32 v40, 1, v1")
a("v_lshlrev_b32 v40, 12, v40")
a("v_bfe_u32 v43, v1, 1, 1")
a("v_lshl_add_u32 v40, v43, 13, v40")
a("v_lshrrev_b32 v43, 2, v1")
a("v_lshl_add_u32 v40, v43, 4, v40")
a("v_mov_b32 v36, 0\nv_mov_b32 v37, 0\nv_mov_b32 v38, 0\nv_mov_b32 v39, 0")
a("s_lshl_b32 s44, s46, 6")
a(f"s_add_u32 s44, s44, {CTR}")
a("s_mov_b64 exec, 0xff")
a("buffer_store_dwordx4 v[36:39], v40, s[12:15], s44 offen sc1")
a("s_mov_b64 exec, -1")
a.label("LPRO0")
a("v_lshrrev_b32 v40, 1, v42")
a(f"v_mul_u32_u24 v40, {TS}, v40")
a("v_and_b32 v43, 3, v41")
a("v_lshl_add_u32 v40, v43, 5, v40")
a("v_lshrrev_b32 v43, 2, v41")
a("v_lshl_add_u32 v40, v43, 9, v40")
a("v_and_b32 v42, 1, v42")
a("v_lshl_add_u32 v40, v42, 4, v40")
for k, reg in ((0, 41), (2, 42)):
    a("s_mul_i32 s44, s24, 18")
    a(f"s_add_u32 s44, s44, {k}")
    a("s_lshr_b32 s45, s44, 2")
    a("s_lshl_b32 s45, s45, 10")
    a("s_and_b32 s44, s44, 3")
    a("s_lshl_b32 s44, s44, 7")
    a("s_add_u32 s44, s44, s45")
    a(f"s_add_u32 s44, s44, {WQ}")
    a(f"v_add_u32 v{reg}, s44, v40")
ones_init()
a("s_waitcnt vmcnt(0) lgkmcnt(0)")
a("s_mul_i32 s29, s29, 0x9e3779b1")
a("s_add_u32 s29, s29, 0x7f4a7c15")
for i in range(18):
    a(f"ds_write_b128 v{41 + ((i>>1)&1)}, {R('v', 64+4*i)} offset:{(i>>2)*1024+(i&1)*128}")
a("s_waitcnt lgkmcnt(0)")
a("s_barrier")
qprep(X0)
a("s_call_b64 s[36:37], LQSTAGE")
kofs()
a("s_branch LPRO2")
a.label("LPRO1")
a("s_waitcnt lgkmcnt(0)")
ones_init()
a("s_mul_i32 s29, s29, 0x9e3779b1")
a("s_add_u32 s29, s29, 0x7f4a7c15")
a.label("LPRO2")
if STAMPS == 2:
    a("v_mov_b32 v51, 0")
    a("s_mov_b32 s93, 0")
sstamp(55)
a.vq = []
burst("a", 0, "A0")
a("s_cmp_eq_u32 s24, 0")
a("s_cbranch_scc0 LPRO3")
a("v_mov_b32 v24, -1\nv_mov_b32 v25, -1\nv_mov_b32 v26, -1\nv_mov_b32 v27, -1")
a("s_mul_i32 s44, s2, 6144")
a(f"s_add_u32 s44, s44, {LB0}")
a("s_add_u32 s45, s44, 4096")
keep = list(a.vq)
for i in range(6):
    a(f"buffer_store_dwordx4 v[24:27], v3, s[12:15], s{44+(i>>2)} offen offset:{1024*(i&3)} sc1")
a.vq = keep
a.label("LPRO3")
srd(16, 82, 83, 1152)
srd(20, 84, 85, 256)
masks()
a("s_lshl_b32 s44, s25, 8")
a(f"s_add_u32 s44, s44, {CTR}")
a("s_add_u32 s88, s86, s44")
a("s_addc_u32 s89, s87, 0")
sstamp(56)
keep = list(a.vq)
a("s_cmp_lt_u32 s27, 18")
a("s_cbranch_scc0 LWB")
srd(60, 76, 77, 0 if OPT["wskip"] & 2 else 576 * 9216)
srd(92, 78, 79, 0 if OPT["wskip"] & 2 else 576 * 9216)
a("v_lshrrev_b32 v41, 2, v1")
a("v_and_b32 v42, 3, v1")
a("v_mul_u32_u24 v40, 9216, v41")
a("v_lshl_add_u32 v40, v42, 4, v40")
a("s_mul_i32 s46, s28, 18")
a("s_add_u32 s46, s46, s27")
a("s_lshl_b32 s44, s46, 6")
a(f"s_mul_i32 s45, s24, {144*9216}")
a("s_add_u32 s44, s44, s45")
for i in range(9):
    a(f"buffer_load_dwordx4 {R('v', 64+8*i)}, v40, s[60:63], s44 offen{WPOL}")
    a(f"buffer_load_dwordx4 {R('v', 68+8*i)}, v40, s[92:95], s44 offen{WPOL}")
    a(f"s_add_u32 s44, s44, {16*9216}")
a(f"v_mul_u32_u24 v43, {TS}, v42")
a("v_and_b32 v42, 3, v41")
a("v_lshl_add_u32 v43, v42, 5, v43")
a("v_bfe_u32 v42, v41, 2, 1")
a("v_lshl_add_u32 v43, v42, 9, v43")
a("v_lshrrev_b32 v42, 3, v41")
a("v_lshl_add_u32 v43, v42, 7, v43")
for k, reg in ((1, 34), (0, 43)):
    a("s_mul_i32 s44, s24, 9")
    a(f"s_add_u32 s44, s44, {k}")
    a("s_lshr_b32 s45, s44, 1")
    a("s_lshl_b32 s45, s45, 10")
    a("s_and_b32 s44, s44, 1")
    a("s_lshl_b32 s44, s44, 8")
    a("s_add_u32 s44, s44, s45")
    a(f"v_add_u32 v{reg}, s44, v43")
srd(60, 80, 81, 0 if OPT["wskip"] & 4 else 4608 * 1152)
a(f"s_mul_i32 s44, s46, {32*1152}")
a("s_mul_i32 s45, s24, 9216")
a("s_add_u32 s44, s44, s45")
a("s_add_u32 s45, s44, 4096")
a("s_add_u32 s46, s44, 8192")
for i in range(9):
    a(f"buffer_load_dwordx4 {R('v', 136+4*i)}, v3, s[60:63], s{44+(i>>2)} offen offset:{(i&3)*1024}{WPOL}")
a("s_branch LWDONE")
a.label("LWB")
a("s_cmp_lt_u32 s27, 30")
a("s_cbranch_scc0 LWDONE")
srd(60, 72, 73, 0 if OPT["wskip"] & 1 else 4096 * 1152)
a("v_lshrrev_b32 v41, 4, v1")
a("v_and_b32 v42, 15, v1")
a("v_mul_u32_u24 v40, 1152, v41")
a("v_lshl_add_u32 v40, v42, 4, v40")


def brole():
    a("s_sub_u32 s47, s27, 18")
    a("s_lshl_b32 s46, s28, 1")
    a("s_cmp_ge_u32 s47, 6")
    a("s_addc_u32 s46, s46, 0")
    a("s_cmp_ge_u32 s47, 6")
    a("s_cselect_b32 s48, 6, 0")
    a("s_sub_u32 s47, s47, s48")


brole()
a("s_lshl_b32 s44, s46, 8")
a("s_lshl_b32 s45, s24, 6")
a("s_add_u32 s44, s44, s45")
a("s_mul_i32 s44, s44, 1152")
a("s_mul_i32 s45, s47, 192")
a("s_add_u32 s44, s44, s45")
a("s_mov_b32 exec_lo, 0x0fff0fff")
a("s_mov_b32 exec_hi, 0x0fff0fff")
for i in range(16):
    a(f"buffer_load_dwordx4 {R('v', 64+4*i)}, v40, s[60:63], s44 offen{WPOL}")
    a(f"s_add_u32 s44, s44, {4*1152}")
a("s_mov_b64 exec, -1")
a("v_lshrrev_b32 v43, 1, v42")
a(f"v_mul_u32_u24 v43, {WOS}, v43")
a("v_lshl_add_u32 v43, v41, 5, v43")
a("v_and_b32 v42, 1, v42")
a("v_lshl_add_u32 v43, v42, 4, v43")
a("s_lshl_b32 s45, s24, 11")
a("v_add_u32 v43, s45, v43")
a.label("LWDONE")
a.vq = keep
sstamp(57)
PR = str(OPT["pr"]).zfill(4)
for _ in range(int(PR[0])):
    probe()
a.wait_vm_n(30)
burst("a", 64, "A1")
for _ in range(int(PR[1])):
    probe()
a.wait_vm_n(30)
burst("a", 128, "A2")
for _ in range(int(PR[2])):
    probe()
qpoll_addr(X0)
a.wait_vm_n(40)
qpoll_issue()
burst("a", 192, "A3")
for _ in range(int(PR[3])):
    probe()
if not OPT["klate"]:
    probe("K")
a.wait_vm_n(50)
a("s_cmp_lt_u32 s27, 18")
a("s_cbranch_scc0 LWB2")
for i in range(9):
    a(f"ds_write_b128 v{34 if i & 1 else 43}, {R('v', 64+8*i)} offset:{(i>>1)*1024}")
    a(f"ds_write_b128 v{34 if i & 1 else 43}, {R('v', 68+8*i)} offset:{(i>>1)*1024+16}")
a("s_mul_i32 s44, s24, 9216")
a(f"s_add_u32 s44, s44, {WD}")
a("v_add_u32 v40, s44, v3")
for i in range(9):
    a(f"ds_write_b128 v40, {R('v', 136+4*i)} offset:{i*1024}")
a("s_branch LWDONE2")
a.label("LWB2")
a("s_cmp_lt_u32 s27, 30")
a("s_cbranch_scc0 LWDONE2")
a("s_mov_b32 exec_lo, 0x0fff0fff")
a("s_mov_b32 exec_hi, 0x0fff0fff")
for i in range(16):
    a(f"ds_write_b128 v43, {R('v', 64+4*i)} offset:{(i&1)*512+((i>>1)&3)*128+(i>>3)*1024}")
a("s_mov_b64 exec, -1")
a.label("LWDONE2")
a(f"v_mov_b32 v{VL}, 0")
a("s_mov_b32 s91, 0")
a("s_mov_b32 s92, 0")
a("s_mov_b32 s94, 0")
a("s_mov_b32 s95, 7")
a("s_waitcnt lgkmcnt(0)")
a.wait_vm("qp")
if STAMPS:
    a("s_memrealtime s[58:59]")
    a("s_waitcnt lgkmcnt(0)")
    a("s_mov_b32 s75, s58")
qpoll_check()
a("s_cbranch_scc0 LQREADY")

a.label("LQPOLL")
qpoll_issue()
a("s_waitcnt vmcnt(0)")
qpoll_check()
a("s_cbranch_scc0 LQREADY")
retry("LQPOLL", "LQREADY")
a.label("LQREADY")
for i in range(4):
    a(f"v_cndmask_b32 v{QE+i}, v{24+2*i}, 0, s[42:43]")
    a(f"v_cndmask_b32 v{QO+i}, 0, v{24+2*i}, s[42:43]")
for r in range(4):
    a(f"v_mov_b32 v{OA+r}, 0")
a(f"v_mov_b32 v{MS}, {f32(-1e30)}")
a(f"v_mov_b32 v{LS}, 0")
stamp(0)
a("s_cmp_eq_u32 s31, 0")
a("s_cbranch_scc0 LP2")
if OPT["vote"]:
    a("s_getreg_b32 s47, hwreg(HW_REG_XCC_ID)")
    a("s_bfe_u32 s47, s47, 0x10002")
    for d, (x, y) in ((44, (55, 56)),) if OPT["klate"] else ((48, (96, 97)), (44, (55, 56))):
        a(f"s_sub_i32 s{d}, s{x}, s{y}")
        a(f"s_min_i32 s{d}, s{d}, 300")
        a(f"s_max_i32 s{d}, s{d}, -300")
        a(f"s_sub_i32 s45, 0, s{d}")
        a("s_cmp_eq_u32 s47, 0")
        a(f"s_cselect_b32 s{d}, s{d}, s45")
    a("s_mov_b32 s46, s44")
    a("s_atomic_add s46, s[88:89], 16 glc")
    if not OPT["klate"]:
        a("s_atomic_add s48, s[88:89], 20")
    a(f"s_mov_b32 s90, {TKI}")
    a("s_atomic_add s90, s[88:89], 0 glc")
    a("s_waitcnt lgkmcnt(0)")
    a("s_add_i32 s44, s44, s46")
    a("s_cmp_gt_i32 s44, 0")
    a("s_cselect_b32 s44, 1, 0")
    a("s_xor_b32 s44, s44, s47")
else:
    a("s_cmp_gt_u32 s55, s56")
    a("s_cselect_b32 s44, 1, 0")
if OPT["forcecls"] == 2:
    a("s_xor_b32 s44, s44, 1")
a("s_lshl_b32 s45, s44, 2")
a("s_add_u32 s45, s45, 4")
a("s_mov_b32 s46, 1")
a("s_atomic_add s46, s[88:89], s45 glc")
a("s_mov_b32 s61, 0")
a("s_mov_b32 s62, 0")
a("s_mov_b32 s63, 1")
a("s_mov_b32 s98, 13")
a("s_mov_b32 s99, 0")
a(f"s_mov_b32 s96, {NP1}")
a("s_waitcnt lgkmcnt(0)")
a("s_cmp_lt_u32 s46, 32")
a("s_cbranch_scc1 LBUN")
a("s_xor_b32 s44, s44, 1")
a("s_xor_b32 s45, s45, 12")
a("s_mov_b32 s46, 1")
a("s_atomic_add s46, s[88:89], s45 glc")
a("s_waitcnt lgkmcnt(0)")
a.label("LBUN")
a("s_lshl_b32 s57, s46, 1")
a("s_add_u32 s57, s57, s44")
a("s_add_u32 s57, s57, 256")
a("s_lshl_b32 s57, s57, 13")
a("s_mov_b32 s55, -1")
a("s_mov_b32 s37, -1")
a("s_mov_b32 s56, 832")
a("s_mov_b32 s60, 0")
a(f"s_mov_b32 s54, {TF}")
a("s_mov_b32 s36, 0")
a("s_mov_b32 s101, 0")
a("s_mov_b32 s97, 0")
a("s_mov_b32 s41, 0")
a("s_cmp_eq_u32 s24, 0")
a("s_cbranch_scc0 LNOCNT")
a("s_mov_b32 s48, 1")
a("s_atomic_add s48, s[84:85], 0")
a.label("LNOCNT")
a.vq = qtags("A3")


def xaddr(reg, i):
    a(f"s_add_u32 s{reg}, s57, {i*UNIT_STEP}")
    if (1 + (i >> 2)) & 1:
        a(f"s_xor_b32 s{reg}, s{reg}, 8192")


def baddr(i):
    xaddr(32, 2 * i)
    xaddr(34, 2 * i + 1)
    setaddr(32, 34)


def draw(s, exhausted):
    ln, lg, lo = a.newlabel("noapp"), a.newlabel("go"), a.newlabel("tok")
    a("s_cmp_lt_u32 s90, s96")
    a(f"s_cbranch_scc1 {lo}")
    a("s_cmp_lg_u32 s63, 0")
    a(f"s_cbranch_scc1 {exhausted}")
    a("s_add_u32 s63, s63, 1")
    a("s_mov_b32 s62, 0")
    a("s_xor_b32 s61, s61, 8192")
    a(f"s_mov_b32 s90, {TKI}")
    a("s_atomic_add s90, s[88:89], s61 glc")
    a("s_waitcnt lgkmcnt(0)")
    a("s_cmp_lt_u32 s90, s96")
    a(f"s_cbranch_scc0 {exhausted}")
    a.label(lo)
    a("s_cmp_ge_u32 s90, s60")
    a("s_cselect_b32 s32, s56, 0")
    a("s_add_u32 s32, s32, s90")
    a("s_lshl_b32 s33, s32, 6")
    a("s_xor_b32 s33, s33, s61")
    a("s_and_b32 s33, s33, s99")
    a("s_lshl_b32 s32, s32, s98")
    a("s_add_u32 s32, s32, s33")
    a(f"s_bitset0_b32 s97, {s}")
    a("s_cmp_ge_u32 s90, s54")
    a(f"s_cbranch_scc0 {ln}")
    a(f"s_bitset1_b32 s97, {s}")
    a("s_mov_b32 m0, s94")
    a("s_nop 0")
    a(f"v_writelane_b32 v{VL}, s32, m0")
    a("s_add_u32 s94, s94, 1")
    a("s_cmp_lt_u32 s94, 60")
    a(f"s_cbranch_scc1 {ln}")
    if OPT["tk2"]:
        a("s_bitcmp0_b32 s90, 0")
        a(f"s_cbranch_scc1 {ln}")
    a("s_mov_b32 s90, 0x7fffffff")
    a("s_add_u32 s63, s63, 1")
    a(f"s_branch {lg}")
    a.label(ln)
    if OPT["tk2"]:
        a("s_add_u32 s90, s90, 1")
        a("s_bitcmp1_b32 s90, 0")
        a(f"s_cbranch_scc1 {lg}")
    a("s_xor_b32 s61, s61, s62")
    if OPT["eg"]:
        a(f"s_add_u32 s90, s90, {OPT['eg']}")
        a("s_cmp_ge_u32 s90, s96")
        a("s_cselect_b32 s41, 1, 0")
        a(f"s_cbranch_scc1 {lg}")
    a(f"s_mov_b32 s90, {TKI}")
    a("s_atomic_add s90, s[88:89], s61 glc")
    a.label(lg)


def ticket_ready():
    if OPT["eg"]:
        lk = a.newlabel("tk")
        a("s_cmp_eq_u32 s41, 0")
        a(f"s_cbranch_scc1 {lk}")
        a(f"s_waitcnt vmcnt({OPT['gv']})")
        a("s_sub_u32 s41, s41, 1")
        a(f"s_mov_b32 s90, {TKI}")
        a("s_atomic_add s90, s[88:89], s61 glc")
        a.label(lk)
    a("s_waitcnt lgkmcnt(0)")


for i in range(4):
    baddr(i)

    def rl(hf, t):
        if OPT["mixx"] and i < 3:
            ld("v", RING[i] + 32 * hf, t, "V", hf, VPOL, ("X", 2 * i + hf, t))
        ld("a", 64 * i + 32 * hf, t, "K", hf, " nt", ("BK", 2 * i + hf, t))
    if i < 3 and not OPT["mixx"]:
        a.wait_vm_n(47)
        for hf in range(2):
            for t in range(8):
                ld("v", RING[i] + 32 * hf, t, "V", hf, VPOL, ("X", 2 * i + hf, t))
        logt()
    a.wait_vm_n(31 if OPT["mixx"] else 47)
    unit2(("a", 64 * i), ("a", 64 * i + 32), lambda t: (f"A{i}", "K", t), lambda t: (f"A{i}", "V", t),
          lambda t: rl(0, t), lambda t: rl(1, t))
    logt()
for d in range(4):
    sl = RING[d % 3]
    if d == 0:
        rka = lambda t: ld("v", sl, t, "V", 0, VPOL, ("X", 6, t))
        rkb = lambda t: ld("v", sl + 32, t, "V", 1, VPOL, ("X", 7, t))
    else:
        if d == 1:
            xaddr(32, 8)
            setaddr(32, 32)
        else:
            le, lc = a.newlabel("dex"), a.newlabel("dco")
            ticket_ready()
            draw(d % 3, le)
            a(f"s_branch {lc}")
            a.label(le)
            a(f"s_bitset0_b32 s95, {d % 3}")
            a("s_mov_b32 s32, 0x1000000")
            a.label(lc)
            setaddr(32, 32)
        rka = lambda t: ldK("v", sl, t, f"P{d}")
        rkb = lambda t: ldV("v", sl, t, f"P{d}")
    a.wait_vm_n(47)
    unit2(("a", 64 * d), ("v", sl), lambda t: ("BK", 2 * d, t), lambda t: ("X", 2 * d, t), None, rka)
    unit2(("a", 64 * d + 32), ("v", sl + 32), lambda t: ("BK", 2 * d + 1, t), lambda t: ("X", 2 * d + 1, t), None, rkb)
    logt()
a("s_lshl_b32 s44, s24, 13")
a(f"s_add_u32 s44, s44, {KL}")
a("v_add_u32 v40, s44, v3")
if OPT["klate"]:
    a("s_lshl_b32 s44, s26, 2")
    a("s_add_u32 s44, s44, s24")
    a("s_lshl_b32 s44, s44, 14")
    a("s_getreg_b32 s47, hwreg(HW_REG_XCC_ID)")
    a("s_bfe_u32 s47, s47, 0x10002")
    a("s_waitcnt lgkmcnt(0)")
    for c in (0, 1, 0):
        a(f"s_add_u32 s50, s44, {1920*8192 + (c ^ 1)*8192 + probe_k[0]*1152}")
        probe_k[0] += 1
        a("s_memtime s[52:53]")
        a("s_waitcnt lgkmcnt(0)")
        a("s_buffer_load_dword s51, s[4:7], s50")
        a("s_waitcnt lgkmcnt(0)")
        a("s_memtime s[50:51]")
        a("s_waitcnt lgkmcnt(0)")
        a(f"s_sub_u32 s{45+c}, s50, s52")
    a("s_sub_i32 s48, s45, s46")
    a("s_min_i32 s48, s48, 300")
    a("s_max_i32 s48, s48, -300")
    a("s_sub_i32 s45, 0, s48")
    a("s_cmp_eq_u32 s47, 0")
    a("s_cselect_b32 s48, s48, s45")
    a("s_atomic_add s48, s[88:89], 20")
waitq(("P1", "K", 7))
for t in range(8):
    a(f"ds_write_b128 v40, {R('v', RING[1]+4*t)} offset:{t*1024}")
a("s_branch LRING1")
a.label("LP2")
if STAMPS == 2:
    a("v_mov_b32 v51, 0")
    a("s_mov_b32 s93, 0")
a("s_mov_b32 s3, 0")
a("s_mov_b32 s56, 288")
a("s_mov_b32 s60, 128")
a("s_mov_b32 s41, 0")
a("s_mov_b32 s54, -1")
a("s_mov_b32 s101, 0")
a("s_mov_b32 s36, 0")
a(f"s_mov_b32 s37, {OPT['cn']}")
a("s_and_b32 s3, s3, s36")
for i in range(10):
    a(f"s_mov_b32 s55, {THR0 + i*THRS}")
    a("s_add_u32 s36, s36, 1")
    a("s_branch LRINGGO")
    a.label(f"LRET{i+1}")
    a.vq = []
    if i > 0:
        def vwait():
            l0, l1 = a.newlabel("sw"), a.newlabel("sw")
            a("s_cmp_ge_u32 s101, 2")
            a(f"s_cbranch_scc1 {l0}")
            a("s_cmp_eq_u32 s101, 1")
            a(f"s_cbranch_scc1 {l1}")
            a("s_waitcnt vmcnt(0)")
            a.label(l1)
            a("s_waitcnt vmcnt(16)")
            a.label(l0)
            a("s_waitcnt vmcnt(32)")
        if i == 8:
            a("s_lshl_b32 s44, s24, 13")
            a(f"s_add_u32 s44, s44, {KL}")
            a("v_add_u32 v40, s44, v3")
            for t in range(8):
                a(f"ds_read_b128 {R('a', 4*t)}, v40 offset:{t*1024}")
        unit2(None, ("a", 32 * ((i - 1) & 7)), hooks=(None, vwait), tt=52)
    if i < 9:
        if i < 8:
            xaddr(34, i)
            setaddr(None, 34)
        else:
            xaddr(34, 8)
            setaddr(None, 34)
            a("s_waitcnt lgkmcnt(0)")
        a.wait_vm_n(55)
        unit2(("a", 32 * (i & 7)), None, None, None, lambda t: ld("a", 32 * (i & 7), t, "V", 1, VPOL, None), tt=52)
        a("s_mov_b32 s101, 0")
a("s_mov_b32 s55, -1")
a("s_mov_b32 s37, -1")
a.label("LRINGGO")
a("s_cmp_eq_u32 s3, 0")
a("s_cbranch_scc1 LRING0")
a("s_cmp_eq_u32 s3, 1")
a("s_cbranch_scc1 LRING1")
a("s_branch LRING2")
a.label("LPASSEND")
stamp(1)
if STAMPS == 2:
    a("s_lshl_b32 s44, s31, 8")
    a("s_add_u32 s44, s44, s2")
    a("s_lshl_b32 s44, s44, 10")
    a(f"s_add_u32 s44, s44, {STAMP_OFF+0x40000}")
    a("v_lshlrev_b32 v40, 2, v0")
    a("buffer_store_dword v51, v40, s[12:15], s44 offen")
a(f"v_add_f32_dpp v{LS}, v{LS}, v{LS} row_half_mirror{DPPM}")
rows("v_add_f32", LS, TMP)
a(f"v_mul_f32 v22, s30, v{MS}")
a(f"v_mov_b32 v23, v{LS}")
a("v_bfe_u32 v40, v1, 3, 1")
a("v_lshlrev_b32 v41, 9, v40")
a("v_lshrrev_b32 v42, 4, v1")
a("v_lshl_add_u32 v41, v42, 7, v41")
a("v_and_b32 v42, 7, v1")
a("v_lshl_add_u32 v41, v42, 2, v41")
a("s_lshl_b32 s44, s24, 10")
a(f"s_add_u32 s44, s44, {CB1}")
a("v_add_u32 v41, s44, v41")
for r in range(4):
    a(f"ds_write_b32 v41, v{OA+r} offset:{32*r}")
a("s_lshl_b32 s44, s24, 3")
a(f"s_add_u32 s44, s44, {CS1}")
a("v_lshlrev_b32 v40, 5, v40")
a("v_add_u32 v40, s44, v40")
a("ds_write_b64 v40, v[22:23]")
a("v_lshlrev_b32 v40, 2, v0")
a(f"v_add_u32 v40, {LSV}, v40")
a(f"ds_write_b32 v40, v{VL}")
a.label("LCNT")
a("s_waitcnt vmcnt(0)")
a("v_readfirstlane_b32 s44, v49")
a("s_cmp_ge_u32 s44, 256")
a("s_cbranch_scc1 LCNTOK")
a("v_mov_b32 v48, 0")
a("buffer_load_dword v49, v48, s[20:23], 0 offen sc1")
retry("LCNT", "LCNTOK")
a.label("LCNTOK")
a("s_waitcnt lgkmcnt(0)")
a("s_barrier")
combine(CB1, CS1)
a(f"s_mul_i32 s44, s2, {X1S}")
a("s_add_u32 s44, s44, s39")
a("v_lshlrev_b32 v8, 2, v0")
a("buffer_store_dword v24, v8, s[12:15], s44 offen sc1")
a("s_lshl_b32 s45, s24, 6")
a("v_mov_b32 v9, s45")
a("s_bitcmp0_b32 s24, 0")
a("s_cbranch_scc0 LPUB1")
a("s_mov_b64 exec, 1")
a("buffer_store_dwordx2 v[26:27], v9, s[12:15], s44 offen offset:1024 sc1")
a("s_mov_b64 exec, -1")
a.label("LPUB1")
stamp(2)
a("s_cmp_lt_u32 s27, 18")
a("s_cbranch_scc1 LSTC")
a("s_cmp_lt_u32 s27, 30")
a("s_cbranch_scc0 LSTQ")
brole()
a(f"s_mul_i32 s48, s46, {16*X1S}")
a("s_add_u32 s48, s48, s39")
for g in range(1, 4):
    a(f"s_add_u32 s{48+g}, s48, {g*4*X1S}")
a("v_lshlrev_b32 v8, 2, v0")
a("v_and_b32 v9, 15, v1")
a(f"v_mul_u32_u24 v9, {X1S}, v9")
a("s_lshr_b32 s44, s24, 1")
a("s_lshl_b32 s44, s44, 7")
a("v_add_u32 v9, s44, v9")
a("v_lshlrev_b32 v10, 1, v0")
a(f"v_add_u32 v10, {OB}, v10")
a(f"s_mul_i32 s44, s24, {2*WOS}")
a("v_lshlrev_b32 v58, 3, v1")
a("v_add_u32 v58, s44, v58")
afrag_addr(57, base=OB)
a.label("LE1")
a("buffer_load_dwordx2 v[28:29], v9, s[12:15], s48 offen offset:1024 sc1")
for p in range(16):
    a(f"buffer_load_dword v{12+p}, v8, s[12:15], s{48+(p>>2)} offen offset:{(p&3)*X1S} sc1")
a("s_waitcnt vmcnt(16)")
if OPT["e1f"]:
    a("v_cmp_u_f32 vcc, v28, v29")
    a("s_cbranch_vccnz LE1R")
ROWRED = ("quad_perm:[1,0,3,2]", "quad_perm:[2,3,0,1]", "row_half_mirror", "row_mirror")
a(f"v_max_f32_dpp v30, v28, v28 {ROWRED[0]}{DPPM}")
for st in ROWRED[1:]:
    a(f"v_max_f32_dpp v30, v30, v30 {st}{DPPM}")
a("v_sub_f32 v28, v28, v30")
a("v_exp_f32 v28, v28")
a("v_mul_f32 v29, v29, v28")
for st in ROWRED:
    a(f"v_add_f32_dpp v29, v29, v29 {st}{DPPM}")
a("v_rcp_f32 v29, v29")
a("v_mul_f32 v28, v28, v29")
a("s_waitcnt vmcnt(0)")
for p in range(16):
    op = "v_mul_f32_dpp" if p < 4 else "v_fmac_f32_dpp"
    a(f"{op} v{32+(p&3)}, v28, v{12+p} row_newbcast:{p}{DPPM}")
a("v_add_f32 v32, v32, v33")
a("v_add_f32 v34, v34, v35")
a("v_add_f32 v32, v32, v34")
a("v_cmp_u_f32 vcc, v32, v32")
a("s_cbranch_vccz LE1OK")
a.label("LE1R")
retry("LE1", "LE1OK")
a.label("LE1OK")
a("s_waitcnt vmcnt(0)")
stamp(3)
a("v_cvt_pk_bf16_f32 v32, v32, v32")
a("ds_write_b16 v10, v32")
a("s_waitcnt lgkmcnt(0)")
a("s_barrier")
a("s_cmp_eq_u32 s24, 3")
a("s_cbranch_scc1 LSTQ")


def b_issue(kk):
    s = 8 + 12 * (kk % 3)
    a(f"ds_read_b128 {R('v', s)}, v57 offset:{kk*64}")
    for t in range(2):
        a(f"ds_read_b64_tr_b16 {R('v', s+4+4*t, 2)}, v58 offset:{kk*1024+t*WOS}")
        a(f"ds_read_b64_tr_b16 {R('v', s+6+4*t, 2)}, v58 offset:{kk*1024+t*WOS+512}")


for kk in range(3):
    b_issue(kk)
for kk in range(8):
    a(f"s_waitcnt lgkmcnt({5*(min(8, kk+3)-kk-1)})")
    s = 8 + 12 * (kk % 3)
    for t in range(2):
        acc = R("v", 48 + 4 * t)
        a(f"v_mfma_f32_16x16x32_bf16 {acc}, {R('v', s)}, {R('v', s+4+4*t)}, {'0' if kk == 0 else acc}")
    if kk + 3 < 8:
        b_issue(kk + 3)
a("s_mul_i32 s44, s46, 2304")
a("s_mul_i32 s45, s47, 384")
a("s_add_u32 s44, s44, s45")
a("s_lshl_b32 s45, s24, 7")
a("s_add_u32 s44, s44, s45")
a("s_add_u32 s44, s44, s39")
a(f"s_add_u32 s44, s44, {X2}")
a("s_mov_b32 s48, 0xffff0000")
a("s_mov_b32 s49, 0xffff0000")
a("v_lshlrev_b32 v8, 2, v1")
a("v_cndmask_b32 v48, v48, v52, s[48:49]")
a("s_mov_b32 exec_hi, 0")
a("buffer_store_dword v48, v8, s[12:15], s44 offen sc1")
a("s_mov_b64 exec, -1")
stamp(4)
a("s_branch LSTQ")
a.label("LSTC")
a(f"s_mov_b32 s44, {XB}")
a(f"s_mul_i32 s45, s24, {TS}")
lng_addr()
a("v_lshrrev_b32 v5, 4, v1")
a("v_lshlrev_b32 v4, 3, v5")
a("v_bfe_u32 v6, v1, 2, 2")
a("v_add_u32 v4, v4, v6")
a("v_mul_u32_u24 v4, 1152, v4")
a("v_and_b32 v6, 3, v1")
a("v_lshl_add_u32 v4, v6, 3, v4")
a("s_lshl_b32 s44, s24, 7")
a(f"s_add_u32 s44, s44, {WD}")
a("v_add_u32 v4, s44, v4")
a("v_lshlrev_b32 v5, 4, v5")
a(f"v_add_u32 v5, {HB}, v5")
a("s_lshl_b32 s44, s24, 4")
a(f"s_add_u32 s44, s44, {HB}")
a("v_lshlrev_b32 v6, 1, v1")
a("v_add_u32 v6, s44, v6")
a("v_lshrrev_b32 v7, 5, v1")
a("v_mul_u32_u24 v7, 18432, v7")
a("v_and_b32 v59, 31, v1")
a("v_lshl_add_u32 v7, v59, 2, v7")
a("s_mul_i32 s50, s28, 18")
a("s_add_u32 s50, s50, s27")
a("s_lshl_b32 s50, s50, 7")
a("s_mul_i32 s45, s24, 36864")
a("s_add_u32 s50, s50, s45")
a("s_add_u32 s50, s50, s39")
a(f"s_add_u32 s50, s50, {X3}")
a("s_mov_b32 s52, 0xffff0000")
a("s_mov_b32 s53, 0xffff0000")
a("s_mov_b32 s40, 0")
a("s_mov_b32 s41, -1")
a("s_cmp_eq_u32 s24, 3")
a("s_cbranch_scc1 LC_BAR")
a("v_lshrrev_b32 v56, 4, v1")
a("v_mul_u32_u24 v56, 2304, v56")
a("v_and_b32 v8, 15, v1")
a("v_lshl_add_u32 v56, v8, 4, v56")
a("s_mul_i32 s48, s24, 768")
a("s_add_u32 s44, s48, s39")
a(f"s_add_u32 s44, s44, {X2}")
for g in range(1, 4):
    a(f"s_add_u32 s{44+g}, s44, {g*9216}")
a("v_bfe_u32 v9, v1, 4, 1")
a("v_lshlrev_b32 v9, 1, v9")
a("v_lshrrev_b32 v10, 5, v1")
a("v_add_u32 v9, v9, v10")
a("v_lshl_add_u32 v9, v8, 2, v9")
a("v_lshrrev_b32 v10, 5, v9")
a("v_lshlrev_b32 v10, 6, v10")
a("v_lshl_add_u32 v10, v9, 1, v10")
a(f"s_add_u32 s49, s48, {LB0+X4}")
a("s_lshr_b32 s48, s48, 1")
a("v_lshlrev_b32 v9, 1, v9")
a("v_add_u32 v9, s48, v9")
a(f"v_add_u32 v59, {XB}, v9")
a("s_cmp_eq_u32 s31, 0")
a("s_cbranch_scc0 LC_X2")
a("s_load_dwordx2 s[60:61], s[0:1], 0")
a("s_mov_b32 s62, 1152")
a("s_mov_b32 s63, 0x20000")
a("s_waitcnt lgkmcnt(0)")
a("s_and_b32 s61, s61, 0xffff")
for c in range(3):
    a(f"buffer_load_ushort v{60+c}, v9, s[60:63], 0 offen offset:{c*128}")
a("s_branch LC_X3")
a.label("LC_X2")
for c in range(3):
    a(f"buffer_load_ushort v{60+c}, v10, s[12:15], s49 offen offset:{c*256} sc1")
a.label("LC_X3")
a("s_waitcnt vmcnt(0)")
for c in range(3):
    a(f"v_lshlrev_b32 v{60+c}, 16, v{60+c}")
a.label("LE2")
for c in range(3):
    for g in range(4):
        a(f"buffer_load_dwordx4 {R('v', 8+16*c+4*g)}, v56, s[12:15], s{44+g} offen offset:{c*256} sc1")
for c in range(3):
    b = 8 + 16 * c
    a(f"s_waitcnt vmcnt({8-4*c})")
    for r in range(4):
        a(f"v_add_f32 v{b+r}, v{b+r}, v{b+4+r}")
        a(f"v_add_f32 v{b+8+r}, v{b+8+r}, v{b+12+r}")
    for r in range(4):
        a(f"v_add_f32 v{b+r}, v{b+r}, v{b+8+r}")
    if OPT["e1f"] and c < 2:
        a(f"v_cmp_u_f32 vcc, v{b}, v{b+3}")
        a("s_cbranch_vccnz LE2R")
    swapreduce(b)
a("v_add_f32 v9, v8, v24")
a("v_cmp_u_f32 vcc, v9, v40")
a("s_cbranch_vccz LE2OK")
a.label("LE2R")
retry("LE2", "LE2OK")
a.label("LE2OK")
a("s_waitcnt vmcnt(0)")
stamp(5)
for c in range(3):
    bf16r(8 + 16 * c, 8 + 16 * c)
for c in range(3):
    a(f"v_add_f32 v{60+c}, v{60+c}, v{8+16*c}")
for c in range(3):
    a(f"v_cvt_pk_bf16_f32 v{60+c}, v{60+c}, v{60+c}")
for c in range(3):
    a(f"ds_write_b16 v59, v{60+c} offset:{c*128}")
a.label("LC_BAR")
a("s_waitcnt lgkmcnt(0)")
a("s_barrier")
a("s_call_b64 s[36:37], LLNG")


def downB(i):
    for t in range(4):
        s = 8 + 16 * (i & 1) + 4 * t
        a(f"ds_read_b64_tr_b16 {R('v', s, 2)}, v4 offset:{i*512+t*32}")
        a(f"ds_read_b64_tr_b16 {R('v', s+2, 2)}, v4 offset:{i*512+t*32+4*1152}")


a(f"v_mov_b32_dpp v41, v60 row_shl:8{DPPM} bound_ctrl:1")
a("v_cvt_pk_bf16_f32 v41, v60, v41")
a("v_lshlrev_b32 v42, 16, v41")
a("v_and_b32 v41, 0xffff0000, v41")
a("v_max_f32 v42, 0, v42")
a("v_mul_f32 v41, v42, v41")
a("v_cvt_pk_bf16_f32 v41, v41, v41")
a("s_mov_b64 exec, 0xff")
a("ds_write_b16 v6, v41")
a("s_mov_b64 exec, -1")
downB(0)
a("s_waitcnt lgkmcnt(8)")
a("s_barrier")
a("ds_read_b128 v[60:63], v5")
a("s_waitcnt lgkmcnt(5)")
downB(1)


def downG(i, wait):
    a(f"s_waitcnt lgkmcnt({wait})")
    for t in range(4):
        s = 8 + 16 * (i & 1) + 4 * t
        a(f"v_mfma_f32_16x16x32_bf16 {R('v', 40+4*t)}, v[60:63], {R('v', s)}, 0")
    a("v_cndmask_b32 v40, v40, v44, s[52:53]")
    a("v_cndmask_b32 v48, v48, v52, s[52:53]")
    a("v_cndmask_b32 v40, v40, v48, s[40:41]")
    a("buffer_store_dword v40, v7, s[12:15], s50 offen sc1")
    a(f"s_add_u32 s50, s50, {4*36864}")


downG(0, 8)
a("s_cmp_eq_u32 s24, 0")
a("s_cbranch_scc1 LDOWN3")
downG(1, 0)
a("s_branch LSTD")
a.label("LDOWN3")
a("s_waitcnt lgkmcnt(0)")
downB(2)
downG(1, 8)
downG(2, 0)
a.label("LSTD")
stamp(6)
a("s_lshl_b32 s50, s27, 3")
a("s_add_u32 s50, s50, s28")
a("s_cmp_lt_u32 s50, 18")
a("s_cbranch_scc0 LSTQ")
a("s_mul_i32 s44, s50, 18432")
a("s_mul_i32 s45, s24, 4608")
a("s_add_u32 s44, s44, s45")
a("s_add_u32 s44, s44, s39")
a(f"s_add_u32 s44, s44, {X3}")
a("s_add_u32 s45, s44, 4096")
a("v_bfe_u32 v58, v1, 4, 1")
a("v_lshlrev_b32 v58, 1, v58")
a("v_lshrrev_b32 v59, 5, v1")
a("v_add_u32 v58, v58, v59")
a("v_and_b32 v59, 7, v1")
a("v_lshl_add_u32 v58, v59, 2, v58")
a("v_lshlrev_b32 v58, 2, v58")
a("s_lshl_b32 s46, s24, 7")
a(f"s_add_u32 s46, s46, {FB}")
a("v_add_u32 v58, s46, v58")
for r in range(4):
    a(f"v_mov_b32 v{24+r}, 0")
a.label("LE3")
for i in range(4):
    a(f"buffer_load_dwordx4 {R('v', 8+4*i)}, v3, s[12:15], s44 offen offset:{i*1024} sc1")
a("s_mov_b32 exec_hi, 0")
a("buffer_load_dwordx4 v[24:27], v3, s[12:15], s45 offen sc1")
a("s_mov_b64 exec, -1")
a("s_waitcnt vmcnt(0)")
for r in range(4):
    a(f"v_add_f32 v{8+r}, v{8+r}, v{12+r}")
    a(f"v_add_f32 v{16+r}, v{16+r}, v{20+r}")
for r in range(4):
    a(f"v_add_f32 v{8+r}, v{8+r}, v{24+r}")
for r in range(4):
    a(f"v_add_f32 v{8+r}, v{8+r}, v{16+r}")
swapreduce(8)
a(f"v_add_f32_dpp v8, v8, v8 row_ror:8{DPPM}")
a("v_cmp_u_f32 vcc, v8, v8")
a("s_cbranch_vccz LE3OK")
retry("LE3", "LE3OK")
a.label("LE3OK")
stamp(7)
a("ds_write_b32 v58, v8")
a("v_lshlrev_b32 v8, 2, v1")
a(f"v_add_u32 v9, {FB}, v8")
a("s_lshl_b32 s45, s50, 6")
a(f"s_add_u32 s46, s45, {XB}")
a("v_lshlrev_b32 v8, 1, v1")
a("v_add_u32 v10, s46, v8")
a("s_waitcnt lgkmcnt(0)")
a("s_barrier")
a("s_cmp_eq_u32 s24, 0")
a("s_cbranch_scc0 LSTQ")
a("s_mov_b32 exec_hi, 0")
for w in range(4):
    a(f"ds_read_b32 v{12+w}, v9 offset:{128*w}")
a("ds_read_u16 v16, v10")
a("s_waitcnt lgkmcnt(0)")
a("v_lshlrev_b32 v16, 16, v16")
a("v_add_f32 v12, v12, v13")
a("v_add_f32 v14, v14, v15")
a("v_add_f32 v12, v12, v14")
bf16r(12, 12)
a("v_add_f32 v12, v12, v16")
a(f"v_mov_b32_dpp v13, v12 quad_perm:[1,1,3,3]{DPPM}")
a("v_cvt_pk_bf16_f32 v12, v12, v13")
a("s_mov_b32 exec_lo, 0x55555555")
a("s_cmp_eq_u32 s31, 0")
a("s_cbranch_scc0 LFINAL")
a("s_lshl_b32 s45, s50, 7")
a("s_add_u32 s45, s45, s39")
a(f"s_add_u32 s45, s45, {X4}")
a("buffer_store_dword v12, v8, s[12:15], s45 offen sc1")
a("s_mov_b64 exec, -1")
a("s_branch LSTQ")
a.label("LFINAL")
a("buffer_store_dword v12, v8, s[16:19], s45 offen")
a("s_mov_b64 exec, 1")
a("s_cmp_eq_u32 s50, 0")
a("s_cbranch_scc0 LNOEP")
a("v_mov_b32 v9, s29")
a("buffer_store_dword v9, v8, s[12:15], 0 offen sc1")
a.label("LNOEP")
a("s_mov_b64 exec, -1")
a.label("LSTQ")
stamp(8)
a("s_cmp_eq_u32 s31, 0")
a("s_cbranch_scc0 LDONE")
if OPT["npf"]:
    a("s_cmp_lt_u32 s27, 18")
    a("s_cbranch_scc1 LQ5")
    a("v_lshlrev_b32 v34, 7, v1")
    a("s_lshl_b32 s44, s26, 2")
    a("s_add_u32 s44, s44, s24")
    a("s_lshl_b32 s44, s44, 13")
    for n in range(OPT["npf"]):
        a(f"s_add_u32 s45, s44, {(4+n)*UNIT_STEP}")
        a(f"buffer_load_dword v35, v34, s[4:7], s45 offen{PFK}")
        a(f"buffer_load_dword v36, v34, s[8:11], s45 offen{PFV}")
a("s_cmp_ge_u32 s27, 24")
a("s_cbranch_scc0 LQ5")
qprep(X5)
a(f"s_add_u32 s44, s39, {X4}")
a("v_lshrrev_b32 v16, 2, v1")
a("v_lshlrev_b32 v16, 7, v16")
a("v_and_b32 v17, 3, v1")
a("v_lshl_add_u32 v16, v17, 4, v16")
for r in range(4):
    a(f"v_mov_b32 v{12+r}, 0")
a.label("LE4")
a("buffer_load_dwordx4 v[8:11], v16, s[12:15], s44 offen sc1")
a("s_mov_b64 exec, 0xff")
a("buffer_load_dwordx4 v[12:15], v16, s[12:15], s44 offen offset:2048 sc1")
a("s_mov_b64 exec, -1")
a("s_waitcnt vmcnt(0)")
a("v_max3_u32 v17, v8, v9, v10")
a("v_max3_u32 v18, v11, v12, v13")
a("v_max3_u32 v17, v17, v14, v15")
a("v_max_u32 v17, v17, v18")
a("v_cmp_eq_u32 vcc, -1, v17")
a("s_cbranch_vccz LE4OK")
retry("LE4", "LE4OK")
a.label("LE4OK")
stamp(9)
a("s_call_b64 s[36:37], LQSTAGE")
a.label("LQ5")
if STAMPS:
    a("s_memrealtime s[58:59]")
    a("s_waitcnt lgkmcnt(0)")
    a("s_mov_b32 s74, s58")
a("s_mov_b32 s31, 1")
a(f"s_add_u32 s39, s39, {LSTRIDE}")
a("s_mov_b64 s[48:49], 0")
a("s_atomic_add_x2 s[48:49], s[88:89], 16 glc")
a("s_getreg_b32 s47, hwreg(HW_REG_XCC_ID)")
a("s_bfe_u32 s47, s47, 0x10002")
a("s_add_u32 s88, s88, 4096")
a("s_addc_u32 s89, s89, 0")
a("s_mov_b32 s63, 0")
a("s_mov_b32 s98, 14")
a("s_mov_b32 s99, 8192")
a("s_waitcnt lgkmcnt(0)")
a("s_cmp_gt_i32 s48, 0")
a("s_cselect_b32 s61, 1, 0")
a("s_xor_b32 s61, s61, s47")
a("s_lshl_b32 s61, s61, 13")
a("s_xor_b32 s48, s48, s49")
a("s_cmp_lt_i32 s48, 0")
a("s_cselect_b32 s62, 8192, 0")
if OPT["wcl"]:
    a("s_lshl_b32 s48, s24, 13")
    a("s_and_b32 s48, s48, s62")
    a("s_xor_b32 s61, s61, s48")
a(f"s_mov_b32 s90, {TKI}")
a("s_atomic_add s90, s[88:89], s61 glc")
loopconsts()
a(f"s_mov_b32 s96, {NP2}")
a("s_mov_b32 s91, 0")
a("s_mov_b32 s95, s97")
a("v_lshlrev_b32 v40, 2, v0")
a(f"v_add_u32 v40, {LSV}, v40")
a(f"ds_read_b32 v{VL}, v40")
qpoll_addr(X5)
a("s_waitcnt lgkmcnt(0)")
a("s_branch LQPOLL")

a.label("LQSTAGE")
a("ds_write_b128 v2, v[8:11]")
a("s_mov_b64 exec, 0xff")
a("ds_write_b128 v2, v[12:15] offset:1024")
a("s_mov_b64 exec, -1")
a("s_mov_b64 s[52:53], s[36:37]")
a("s_waitcnt lgkmcnt(1)")
a("s_call_b64 s[36:37], LLNG")
a("v_lshlrev_b32 v8, 2, v1")
a("v_mov_b32 v11, s29")
a(f"v_mov_b32_dpp v9, v60 quad_perm:[1,1,3,3]{DPPM}")
a("v_cvt_pk_bf16_f32 v10, v60, v9")
a("s_mov_b64 exec, 0x5555")
a("buffer_store_dwordx2 v[10:11], v8, s[12:15], s54 offen sc1")
a("s_mov_b64 exec, -1")
a("s_setpc_b64 s[52:53]")

a.label("LLNG")
lngemv()
a("s_setpc_b64 s[36:37]")

a.vq = qtags("R0") + qtags("R1") + qtags("R2")
for s in range(3):
    lp, lg, ln, lb, lx = (a.newlabel(x) for x in ("pool", "go", "noapp", "bonly", "next"))
    a.label(f"LRING{s}")
    a(f"s_mov_b32 s3, {s}")
    if OPT["hv"]:
        a(f"s_waitcnt vmcnt({OPT['hv']})")
    ticket_ready()
    a("s_cmp_ge_u32 s90, s55")
    a("s_cbranch_scc1 LRINGX")
    a("s_cmp_ge_u32 s101, s37")
    a("s_cbranch_scc1 LRINGX")
    a("s_cmp_lt_u32 s91, s92")
    a(f"s_cbranch_scc0 {lp}")
    a(f"v_readlane_b32 s32, v{VL}, s91")
    a("s_add_u32 s91, s91, 1")
    a(f"s_branch {lg}")
    a.label(lp)
    draw(s, f"LDRAINE{s}")
    a.label(lg)
    setaddr(32, 32)
    a("s_add_u32 s101, s101, 1")
    a(f"s_bitcmp1_b32 s95, {s}")
    a(f"s_cbranch_scc0 {lb}")
    unit("v", RING[s], f"R{s}", f"R{s}n")
    logt()
    q1 = [(t[0].rstrip("n"), t[1], t[2]) for t in a.vq]
    a(f"s_branch LRING{(s+1)%3}")
    a.label(lb)
    a(f"s_bitset1_b32 s95, {s}")
    for t in range(8):
        ldK("v", RING[s], t, "x")
    for t in range(8):
        ldV("v", RING[s], t, "x")
    a(f"s_branch LRING{(s+1)%3}")
    a.vq = q1
a.label("LRINGX")
for k in range(1, 10):
    a(f"s_cmp_eq_u32 s36, {k}")
    a(f"s_cbranch_scc1 LRET{k}")
a("s_branch LRET10")

for s in range(3):
    a.label(f"LDRAINE{s}")
    a("v_mov_b32 v48, 0")
    a("buffer_load_dword v49, v48, s[20:23], 0 offen sc1")
    a("s_mov_b32 s93, 0")
    a("s_bcnt1_i32_b32 s44, s97")
    a("s_sub_u32 s92, s94, s44")
    a(f"s_branch LDRAIN{s}")
for s in range(3):
    a.label(f"LDRAIN{s}")
    lsk = a.newlabel("dsk")
    a(f"s_bitcmp1_b32 s95, {s}")
    a(f"s_cbranch_scc0 {lsk}")
    unit_drain(RING[s])
    a.label(lsk)
    a("s_add_u32 s93, s93, 1")
    a("s_cmp_eq_u32 s93, 3")
    a("s_cbranch_scc1 LPASSEND")
a("s_branch LDRAIN0")

a.label("LDONE")
if OPT["padto"]:
    if OPT["padmin"]:
        a("s_mov_b32 s100, 0")
        a("s_atomic_add s100, s[84:85], 64 glc")
        a("s_waitcnt lgkmcnt(0)")
        a("s_not_b32 s100, s100")
    a.label("LPAD")
    a("s_memrealtime s[58:59]")
    a("s_waitcnt lgkmcnt(0)")
    a("s_sub_u32 s58, s58, s100")
    a(f"s_cmp_lt_u32 s58, {OPT['padto']*100}")
    a("s_cbranch_scc1 LPAD")
if STAMPS:
    a("s_memrealtime s[58:59]")
    a("s_waitcnt lgkmcnt(0)")
    a("s_mov_b32 s87, s58")
    a("s_lshl_b32 s44, s2, 2")
    a("s_add_u32 s44, s44, s24")
    a("s_lshl_b32 s44, s44, 7")
    a(f"s_add_u32 s44, s44, {STAMP_OFF}")
    a("v_mov_b32 v8, 0")
    a("s_mov_b64 exec, 1")
    for i in range(24):
        a(f"v_mov_b32 v9, s{64+i}")
        a(f"buffer_store_dword v9, v8, s[12:15], s44 offen offset:{4*i}")
    a("v_mov_b32 v9, s100")
    a("buffer_store_dword v9, v8, s[12:15], s44 offen offset:96")
    for i, r in enumerate((57, 92, 57, 57, 57, 94)):
        a(f"v_mov_b32 v9, s{r}")
        a(f"buffer_store_dword v9, v8, s[12:15], s44 offen offset:{100+4*i}")
    if OPT["dbgout"]:
        a("s_or_b32 s44, s2, s24")
        a("s_cmp_eq_u32 s44, 0")
        a("s_cbranch_scc0 LEND")
        for i, r in enumerate((64, 65, 66, 69, 70, 71, 72, 76, 77, 78, 81, 82, 83, 87)):
            a(f"s_sub_u32 s44, s{r}, s100")
            a("v_mov_b32 v9, s44")
            a(f"buffer_store_dword v9, v8, s[20:23], 0 offen offset:{4+4*i}")
    a("s_waitcnt vmcnt(0)")
a.label("LEND")
a("s_endpgm")

hdr = open("cdna_kernels/" + NAME + ".s.ref").read().split("\n")
top = [l for l in hdr if l.startswith(";") and "@launch" not in l]
out = "\n".join(top) + "\n"
out += f"; @launch grid=(256,1,1) block=(256,1,1) lds={LDS_SIZE}\n"
out += f""".amdgcn_target "amdgcn-amd-amdhsa--gfx950"
.text
.globl {NAME}_kernel
.p2align 8
.type {NAME}_kernel,@function
"""
out += a.text()
out += f""".section .rodata,"a"
.p2align 6
.amdhsa_kernel {NAME}_kernel
  .amdhsa_next_free_vgpr 512
  .amdhsa_next_free_sgpr 102
  .amdhsa_accum_offset 256
  .amdhsa_group_segment_fixed_size 0
  .amdhsa_kernarg_size 96
  .amdhsa_user_sgpr_count 2
  .amdhsa_user_sgpr_kernarg_segment_ptr 1
  .amdhsa_system_sgpr_workgroup_id_x 1
.end_amdhsa_kernel
"""
import re
if OPT["xl"]:
    out = re.sub(r"(buffer_load\S+ .*) sc1$", r"\1 sc0 sc1", out, flags=re.M)
if OPT["xs"]:
    out = re.sub(r"(buffer_store\S+ .*) sc1$", r"\1 sc0 sc1", out, flags=re.M)
open(sys.argv[1], "w").write(out)
```

```python
import sys, struct, math
from asmlib import Asm

NAME = "interleave_layers__gqa_block_cached__glu_gated_reglu__decode"
OPT = dict(stamps=0, p2rev=0, kvpol="nt", wpol="nt", wskip=0, vring="def", kring="nt", tfw=7, psleep=1, npf=0, thrp=80, pr=1110, eg=0, gv=8, xl=0, xs=0, padto=0, rbal=1, hsw=0, sline=1, tk2=0, klate=1, wcl=0, hv=0, lv=0, alt=3, e1f=1, mixx=1, rot=0, padmin=0, cn=3, vote=1, avpol="def", forcecls=-1, dbgout=0, pfk="nt", pfv="def")
for arg in sys.argv[2:]:
    k, v = arg.split("=")
    OPT[k] = int(v) if v.lstrip("-").isdigit() else v
STAMPS = OPT["stamps"]
TKI = 2 if OPT["tk2"] else 1
KVPOL = "" if OPT["kvpol"] == "def" else " " + OPT["kvpol"]
WPOL = "" if OPT["wpol"] == "def" else " " + OPT["wpol"]
PFK = "" if OPT["pfk"] == "def" else " " + OPT["pfk"]
PFV = "" if OPT["pfv"] == "def" else " " + OPT["pfv"]


def f32(x):
    return "0x%08x" % struct.unpack("<I", struct.pack("<f", x))[0]


X0 = 0x1000
X5 = 0x9000
CTR = 0x11000
LB0 = 0x20000
LSTRIDE = 0xC0000
X1 = 0x0
X1S = 1280
X2 = 0x50000
X3 = 0x59000
X4 = 0xAA000
STAMP_OFF = 0x200000
WS_SIZE = 0x400000
NP1 = 19 * 64
TF = NP1 - OPT["tfw"] * 64
NP2 = 128 + TF // 2
THR0 = 32
THRS = (NP2 * OPT["thrp"] // 100 - THR0) // 9
WGU = 0
TS = 18432
WD = 73728
FB = 110592
HB = 111104
WO = 0
WOS = 8192
WQ = 49152
SA = 122880
CB1 = SA
CS1 = SA + 4096
XB = SA
OB = 127488
LSV = 128000
ONES = 129088
KL = 130304
LDS_SIZE = 163072

UNIT_STEP = 524288
DPPM = " row_mask:0xf bank_mask:0xf"
a = Asm()
stamp_n = [0]


def stamp(i):
    if not STAMPS:
        return
    a("s_memrealtime s[58:59]")
    a("s_waitcnt lgkmcnt(0)")
    lab = a.newlabel("st")
    a(f"s_mov_b32 s{64+12+i}, s58")
    a("s_cmp_eq_u32 s31, 0")
    a(f"s_cbranch_scc0 {lab}")
    a(f"s_mov_b32 s{64+i}, s58")
    a.label(lab)


def sstamp(reg):
    if True:
        return
    a("s_memrealtime s[58:59]")
    a("s_waitcnt lgkmcnt(0)")
    a(f"s_mov_b32 s{reg}, s58")


def logt():
    if STAMPS != 2:
        return
    a("s_memrealtime s[58:59]")
    a("s_waitcnt lgkmcnt(0)")
    a("s_mov_b32 m0, s93")
    a("s_add_u32 s93, s93, 1")
    a("s_min_u32 s93, s93, 63")
    a("v_writelane_b32 v51, s58, m0")


def R(kind, base, n=4):
    return f"{kind}[{base}:{base+n-1}]"


def srd(d, lo, hi, size):
    a(f"s_mov_b32 s{d}, s{lo}")
    a(f"s_and_b32 s{d+1}, s{hi}, 0xffff")
    a(f"s_mov_b32 s{d+2}, {size}")
    a(f"s_mov_b32 s{d+3}, 0x20000")


def srd_role(d, lo, hi, size):
    a(f"s_cselect_b32 s{d+2}, {size}, 0")
    a(f"s_mov_b32 s{d}, s{lo}")
    a(f"s_and_b32 s{d+1}, s{hi}, 0xffff")
    a(f"s_mov_b32 s{d+3}, 0x20000")


def ld(kind, reg, t, src, half, pol, tag):
    if OPT["lv"] and (t & 1) == 0:
        a(f"s_waitcnt vmcnt({OPT['lv']})")
    srd_, vo = {"K": ("s[4:7]", "v2"), "K2": ("s[60:63]", "v51"), "V": ("s[8:11]", "v3")}[src]
    a(f"buffer_load_dwordx4 {R(kind, reg+4*t)}, {vo}, {srd_}, s{32+2*half+(t>>2)} offen offset:{(t&3)*1024}{pol}", tag=tag)


VPOL = "" if OPT["vring"] == "def" else " nt"


def ldK(kind, base, t, tag):
    ld(kind, base, t, "K", 0, " nt", (tag, "K", t))


def ldV(kind, base, t, tag):
    ld(kind, base + 32, t, "V", 1, ("" if OPT["avpol"] == "def" else " nt") if kind == "a" else VPOL, (tag, "V", t))


def adv():
    for r in range(32, 36):
        a(f"s_add_u32 s{r}, s{r}, {UNIT_STEP}")


def setaddr(k, v):
    if v is not None:
        if OPT["hsw"]:
            a(f"s_or_b32 s34, s{v}, vcc_hi")
        elif v != 34:
            a(f"s_mov_b32 s34, s{v}")
        a("s_xor_b32 s35, s34, 4096")
    if k is not None:
        if OPT["hsw"]:
            a(f"s_or_b32 s32, s{k}, vcc_hi")
        elif k != 32:
            a(f"s_mov_b32 s32, s{k}")
        a("s_xor_b32 s33, s32, 4096")


def hswinit():
    if OPT["hsw"]:
        a("s_and_b32 vcc_hi, s24, 1")
        a("s_lshl_b32 vcc_hi, vcc_hi, 12")


def burst(kind, base, tag):
    for t in range(8):
        ldK(kind, base, t, tag)
    for t in range(8):
        ldV(kind, base, t, tag)
    adv()
    logt()


def waitq(tag, floor=0):
    if tag in a.vq:
        a.wait_vm(tag, floor)


def allreduce(op, v, t, first=0):
    steps = ["quad_perm:[1,0,3,2]", "quad_perm:[2,3,0,1]", "row_half_mirror", "row_mirror"]
    for s in steps[first:]:
        a(f"{op}_dpp v{v}, v{v}, v{v} {s}{DPPM}")
    rows(op, v, t)


def rows(op, v, t):
    a(f"v_mov_b32 v{t}, v{v}")
    a(f"v_permlane16_swap_b32 v{v}, v{t}")
    a(f"{op} v{v}, v{v}, v{t}")
    a(f"v_mov_b32 v{t}, v{v}")
    a(f"v_permlane32_swap_b32 v{v}, v{t}")
    a(f"{op} v{v}, v{v}, v{t}")


QE, QO, OA, MS, LS, NMC = 8, 12, 16, 20, 21, 22
DS_ = [24, 28, 32, 36]
TT = 40
TMP = 44


def unit2(K, V, kt=None, vt=None, rk=None, rv=None, hooks=None, tt=TT):
    if K is not None:
        if hooks:
            hooks[0]()
        for u in range(4):
            if kt:
                waitq(kt(2 * u + 1))
            d = R("v", DS_[u])
            a(f"v_mfma_f32_16x16x32_bf16 {d}, {R(K[0], K[1]+8*u)}, {R('v', QE)}, 0")
            a(f"v_mfma_f32_16x16x32_bf16 {d}, {R(K[0], K[1]+8*u+4)}, {R('v', QO)}, {d}")
            if rk:
                rk(2 * u)
                rk(2 * u + 1)
        order = [(0, 0), (1, 0), (2, 0), (0, 1), (1, 1), (2, 1), (0, 2), (1, 2), (3, 0), (2, 2), (0, 3), (3, 1),
                 (1, 3), (2, 3), (3, 2), None, (3, 3)]
        for o in order:
            if o is None:
                if V is not None:
                    a(f"v_max3_f32 v{TMP}, v{tt}, v{tt+1}, v{MS}")
                continue
            u, c = o
            qp = f"quad_perm:[{c},{c},{c},{c}]"
            if c == 0:
                a(f"v_mov_b32_dpp v{tt+u}, v{DS_[u]} {qp}{DPPM}")
            else:
                a(f"v_add_f32_dpp v{tt+u}, v{DS_[u]+c}, v{tt+u} {qp}{DPPM}")
    if V is None:
        return
    if K is None:
        a(f"v_max3_f32 v{TMP}, v{tt}, v{tt+1}, v{MS}")
    a(f"v_max3_f32 v{TMP}, v{TMP}, v{tt+2}, v{tt+3}")
    a(f"v_max_f32_dpp v{TMP}, v{TMP}, v{TMP} row_half_mirror{DPPM}")
    rows("v_max_f32", TMP, TMP + 1)
    a(f"v_sub_f32 v{TMP+1}, v{MS}, v{TMP}")
    a(f"v_mul_f32 v{TMP+1}, s30, v{TMP+1}")
    a(f"v_exp_f32 v{TMP+1}, v{TMP+1}")
    a(f"v_mov_b32 v{MS}, v{TMP}")
    a(f"v_mul_f32 v{NMC}, s30, v{TMP}")
    for u in range(4):
        a(f"v_fma_f32 v{tt+u}, v{tt+u}, s30, -v{NMC}")
    for u in range(4):
        a(f"v_exp_f32 v{tt+u}, v{tt+u}")
    a(f"v_mul_f32 v{LS}, v{LS}, v{TMP+1}")
    for r in range(4):
        a(f"v_mul_f32 v{OA+r}, v{OA+r}, v{TMP+1}")
    a(f"v_add_f32 v{TMP+2}, v{tt}, v{tt+1}")
    a(f"v_add_f32 v{TMP+3}, v{tt+2}, v{tt+3}")
    for u in range(4):
        a(f"v_cvt_pk_bf16_f32 v{tt+u}, v{tt+u}, v{tt+u}")
    a(f"v_add_f32 v{TMP+2}, v{TMP+2}, v{TMP+3}")
    a(f"v_add_f32 v{LS}, v{LS}, v{TMP+2}")

    def buildB(t):
        b = DS_[t & 3]
        p = tt + (t >> 1)
        for i in range(4):
            own = (i < 2) == ((t & 1) == 0)
            if own:
                a(f"v_and_b32 v{b+i}, v{p}, v{4+i}")
            else:
                sh = "row_shr:4" if (t & 1) == 0 else "row_shl:4"
                a(f"v_and_b32_dpp v{b+i}, v{p}, v{4+i} {sh}{DPPM} bound_ctrl:1")

    buildB(0)
    if hooks:
        hooks[1]()
    for t in range(8):
        if t + 1 < 8:
            buildB(t + 1)
        if vt:
            waitq(vt(t))
        a(f"v_mfma_f32_16x16x32_bf16 {R('v', OA)}, {R(V[0], V[1]+4*t)}, {R('v', DS_[t&3])}, {R('v', OA)}")
        if rv:
            rv(t)


def unit(kind, base, tag, reload_tag=None, hooks=None):
    rk = rv = None
    if reload_tag is not None:
        rk = lambda t: ldK(kind, base, t, reload_tag)
        rv = lambda t: ldV(kind, base, t, reload_tag)
    unit2((kind, base), (kind, base + 32), lambda t: (tag, "K", t), lambda t: (tag, "V", t), rk, rv, hooks)


probe_k = [0]


def probe(kind="V"):
    k = probe_k[0]
    probe_k[0] += 1
    srd_, base = ("s[8:11]", 55) if kind == "V" else ("s[4:7]", 96)
    for c in ((0, 1) if k & 1 else (1, 0)):
        a(f"s_add_u32 s50, s57, {(c ^ 1)*8192 + k*1152}")
        a("s_memtime s[52:53]")
        a("s_waitcnt lgkmcnt(0)")
        a(f"s_buffer_load_dword s51, {srd_}, s50")
        a("s_waitcnt lgkmcnt(0)")
        a("s_memtime s[50:51]")
        a("s_waitcnt lgkmcnt(0)")
        a("s_sub_u32 s50, s50, s52")
        a(f"s_min_u32 s{base+c}, s{base+c}, s50")


def qtags(tag):
    return [(tag, "K", t) for t in range(8)] + [(tag, "V", t) for t in range(8)]


RING = [64, 128, 192]


def bf16r(d, s):
    a(f"v_cvt_pk_bf16_f32 v{d}, v{s}, v{s}")
    a(f"v_and_b32 v{d}, 0xffff0000, v{d}")


def afrag_addr(v, base_sgpr=None, base=0):
    a(f"v_lshrrev_b32 v{v}, 4, v1")
    a(f"v_lshlrev_b32 v{v}, 4, v{v}")
    if base:
        a(f"v_add_u32 v{v}, {base}, v{v}")
    if base_sgpr is not None:
        a(f"v_add_u32 v{v}, s{base_sgpr}, v{v}")


def lng_addr():
    a("v_add_u32 v2, s44, v3")
    a("v_mov_b32 v57, s44")
    a(f"v_mov_b32 v58, {ONES}")
    a("s_mov_b32 s46, 0x00020002")
    a("s_mov_b32 s47, 0x00020002")
    a("v_cndmask_b32 v57, v57, v58, s[46:47]")
    a("v_lshrrev_b32 v58, 4, v1")
    a("v_lshl_add_u32 v57, v58, 4, v57")
    a("v_lshlrev_b32 v58, 3, v1")
    a("v_add_u32 v58, s45, v58")


def lngemv():
    S, nk, T, acc = 4, 18, 8, 60
    s, q, t, t2, one = 48, 49, 50, 51, 52
    f = []
    for i in range(8):
        f.append(f"v_dot2c_f32_bf16 v{s}, v{40+i}, v{one}")
        f.append(f"v_dot2c_f32_bf16 v{q}, v{40+i}, v{40+i}")
    f.append("s_nop 1")
    for st in ("quad_perm:[1,0,3,2]", "quad_perm:[2,3,0,1]", "row_half_mirror", "row_mirror"):
        f.append(f"v_add_f32_dpp v{s}, v{s}, v{s} {st}{DPPM}")
        f.append(f"v_add_f32_dpp v{q}, v{q}, v{q} {st}{DPPM}")
    f.append(f"v_permlane16_swap_b32 v{s}, v{q}")
    f.append(f"v_add_f32 v{s}, v{s}, v{q}")
    f.append(f"v_mov_b32 v{t}, v{s}")
    f.append(f"v_permlane32_swap_b32 v{s}, v{t}")
    f.append(f"v_add_f32 v{s}, v{s}, v{t}")
    f.append(f"v_mul_f32 v{s}, {f32(1.0/576)}, v{s}")
    f.append(f"v_mov_b32 v{q}, v{s}")
    f.append(f"v_permlane16_swap_b32 v{s}, v{q}")
    f.append(f"v_fma_f32 v{q}, -v{s}, v{s}, v{q}")
    f.append(f"v_max_f32 v{q}, 0, v{q}")
    f.append(f"v_cvt_pk_bf16_f32 v{q}, v{s}, v{q}")
    f.append(f"v_lshlrev_b32 v{s}, 16, v{q}")
    f.append(f"v_and_b32 v{q}, 0xffff0000, v{q}")
    for op in (f"v_add_f32 v{q}, {f32(1e-5)}, v{q}", f"v_sqrt_f32 v{q}, v{q}"):
        f.append(op)
        f.append(f"v_cvt_pk_bf16_f32 v{q}, v{q}, v{q}")
        f.append(f"v_and_b32 v{q}, 0xffff0000, v{q}")
    f.append(f"v_rcp_f32 v{q}, v{q}")

    def issue(kk):
        z = T + 8 * (kk % S)
        a(f"ds_read_b128 {R('v', z)}, v57 offset:{kk*64}")
        a(f"ds_read_b64_tr_b16 {R('v', z+4, 2)}, v58 offset:{kk*1024}")
        a(f"ds_read_b64_tr_b16 {R('v', z+6, 2)}, v58 offset:{kk*1024+512}")

    for r in range(4):
        a(f"v_mov_b32 v{44+r}, 0")
    a("ds_read_b128 v[40:43], v2")
    a("s_mov_b64 exec, 0xff")
    a("ds_read_b128 v[44:47], v2 offset:1024")
    a("s_mov_b64 exec, -1")
    for kk in range(S):
        issue(kk)
    a(f"v_mov_b32 v{s}, 0")
    a(f"v_mov_b32 v{q}, 0")
    a(f"v_mov_b32 v{one}, 0x3f803f80")
    per = -(-len(f) // (nk // 2 + 1))
    for kk in range(0, nk, 2):
        a(f"s_waitcnt lgkmcnt({3*(min(nk, kk+S)-kk-2)})")
        for k2 in (kk, kk + 1):
            z = T + 8 * (k2 % S)
            c = "0" if k2 == 0 else R("v", acc)
            a(f"v_mfma_f32_16x16x32_bf16 {R('v', acc)}, {R('v', z)}, {R('v', z+4)}, {c}")
        for k2 in (kk, kk + 1):
            if k2 + S < nk:
                issue(k2 + S)
        for _ in range(per):
            if f:
                a(f.pop(0))
    while f:
        a(f.pop(0))
    a(f"v_fma_f32 v60, -v{s}, v61, v60")
    a(f"v_mul_f32 v60, v60, v{q}")


def retry(lab_again, lab_done):
    a("s_cmp_eq_u32 s38, 0")
    a(f"s_cbranch_scc1 {lab_done}")
    a("s_sub_u32 s38, s38, 1")
    if OPT["psleep"]:
        a(f"s_sleep {OPT['psleep']}")
    a(f"s_branch {lab_again}")


def combine(CB, CS):
    a("v_lshlrev_b32 v8, 2, v0")
    a(f"v_add_u32 v8, {CB}, v8")
    a("s_lshr_b32 s44, s24, 1")
    a("s_lshl_b32 s44, s44, 5")
    a(f"s_add_u32 s44, s44, {CS}")
    a("v_mov_b32 v9, s44")
    a("ds_read_b128 v[12:15], v9")
    a("ds_read_b128 v[16:19], v9 offset:16")
    for w in range(4):
        a(f"ds_read_b32 v{20+w}, v8 offset:{w*1024}")
    a("s_waitcnt lgkmcnt(4)")
    a("v_max3_f32 v26, v12, v14, v16")
    a("v_max_f32 v26, v26, v18")
    for w in range(4):
        a(f"v_sub_f32 v{12+2*w}, v{12+2*w}, v26")
    for w in range(4):
        a(f"v_exp_f32 v{12+2*w}, v{12+2*w}")
    a("v_mul_f32 v27, v13, v12")
    for w in range(1, 4):
        a(f"v_fmac_f32 v27, v{13+2*w}, v{12+2*w}")
    a("s_waitcnt lgkmcnt(0)")
    a("v_mul_f32 v24, v20, v12")
    for w in range(1, 4):
        a(f"v_fmac_f32 v24, v{20+w}, v{12+2*w}")


def qpoll_issue():
    a("buffer_load_dwordx4 v[24:27], v32, s[12:15], s45 offen sc1", tag="qp")
    a("buffer_load_dwordx4 v[28:31], v32, s[12:15], s45 offen offset:16 sc1", tag="qp")


def qpoll_addr(xoff):
    a("s_lshl_b32 s45, s25, 11")
    a(f"s_add_u32 s45, s45, {xoff}")
    a("v_bfe_u32 v32, v1, 3, 1")
    a("v_lshlrev_b32 v32, 10, v32")
    a("v_lshrrev_b32 v33, 4, v1")
    a("v_lshl_add_u32 v32, v33, 8, v32")
    a("v_bfe_u32 v33, v1, 1, 1")
    a("v_lshl_add_u32 v32, v33, 7, v32")
    a("v_and_b32 v33, 1, v1")
    a("v_lshl_add_u32 v32, v33, 5, v32")


def qpoll_check():
    a("v_cmp_ne_u32 s[46:47], s29, v25")
    a("v_cmp_ne_u32 s[48:49], s29, v27")
    a("v_cmp_ne_u32 s[50:51], s29, v29")
    a("v_cmp_ne_u32 s[52:53], s29, v31")
    a("s_or_b64 s[46:47], s[46:47], s[48:49]")
    a("s_or_b64 s[50:51], s[50:51], s[52:53]")
    a("s_or_b64 s[46:47], s[46:47], s[50:51]")


VL = 50


def unit_drain(base):
    def pwait(n0, n1, n2):
        l0, l1 = a.newlabel("dw"), a.newlabel("dw")
        a("s_cmp_eq_u32 s93, 0")
        a(f"s_cbranch_scc1 {l0}")
        a("s_cmp_eq_u32 s93, 1")
        a(f"s_cbranch_scc1 {l1}")
        a(f"s_waitcnt vmcnt({n2})")
        a.label(l1)
        a(f"s_waitcnt vmcnt({n1})")
        a.label(l0)
        a(f"s_waitcnt vmcnt({n0})")
    a.vq = []
    unit("v", base, "none", None, hooks=(lambda: pwait(41, 25, 9), lambda: pwait(33, 17, 1)))


def swapreduce(b):
    a(f"v_permlane32_swap_b32 v{b}, v{b+1}")
    a(f"v_permlane32_swap_b32 v{b+2}, v{b+3}")
    a(f"v_add_f32 v{b}, v{b}, v{b+1}")
    a(f"v_add_f32 v{b+2}, v{b+2}, v{b+3}")
    a(f"v_permlane16_swap_b32 v{b}, v{b+2}")
    a(f"v_add_f32 v{b}, v{b}, v{b+2}")


def kofs():
    a("v_bfe_u32 v40, v1, 2, 2")
    a("v_lshlrev_b32 v2, 8, v40")
    a("v_lshrrev_b32 v40, 4, v1")
    a("v_lshl_add_u32 v2, v40, 6, v2")
    a("v_and_b32 v40, 3, v1")
    a("v_lshl_add_u32 v2, v40, 4, v2")


def masks():
    a("v_and_b32 v40, 1, v1")
    a("v_lshlrev_b32 v40, 4, v40")
    a("v_mov_b32 v41, 0xffff")
    a("v_lshlrev_b32 v40, v40, v41")
    for i in range(4):
        m = 0x03030303 << (2 * i)
        a(f"s_mov_b32 s46, 0x{m:08x}")
        a(f"s_mov_b32 s47, 0x{m:08x}")
        a(f"v_cndmask_b32 v{4+i}, 0, v40, s[46:47]")


def loopconsts():
    kofs()
    masks()


def qprep(xoff):
    a("s_mul_i32 s44, s24, 1152")
    a(f"s_add_u32 s44, s44, {XB}")
    a(f"s_mul_i32 s45, s24, {TS}")
    a(f"s_add_u32 s45, s45, {WQ}")
    lng_addr()
    a("s_lshl_b32 s54, s28, 3")
    a("s_add_u32 s54, s54, s27")
    a("s_sub_u32 s54, s54, 24")
    a("s_lshl_b32 s54, s54, 2")
    a("s_add_u32 s54, s54, s24")
    a("s_lshl_b32 s54, s54, 7")
    a(f"s_add_u32 s54, s54, {xoff}")


def ones_init():
    for r in range(4):
        a(f"v_mov_b32 v{16+r}, 0x3f803f80")
    a(f"v_add_u32 v20, {ONES}, v3")
    a("ds_write_b128 v20, v[16:19]")
    a("s_mov_b64 exec, 0xff")
    a("ds_write_b128 v20, v[16:19] offset:1024")
    a("s_mov_b64 exec, -1")


a.raw(f"{NAME}_kernel:")
a("s_cmp_ge_u32 s2, 256")
a("s_cbranch_scc1 LEND")
if STAMPS or OPT["padto"]:
    a("s_memrealtime s[100:101]")
a("s_load_dwordx16 s[64:79], s[0:1], 0")
a("s_load_dwordx8 s[80:87], s[0:1], 64")
a("v_and_b32 v1, 63, v0")
a("v_lshrrev_b32 v40, 6, v0")
a("v_readfirstlane_b32 s24, v40")
a("s_and_b32 s28, s2, 7")
if OPT["rbal"]:
    a("s_lshr_b32 s27, s2, 4")
    a("s_and_b32 s44, s2, 15")
    a("s_lshl_b32 s44, s44, 1")
    a("s_add_u32 s27, s27, s44")
else:
    a("s_lshr_b32 s27, s2, 3")
    a("s_lshl_b32 s44, s28, 2")
    a("s_add_u32 s27, s27, s44")
a("s_and_b32 s27, s27, 31")
a("s_lshr_b32 s25, s2, 4")
a("s_and_b32 s26, s2, 15")
a(f"s_mov_b32 s30, {f32(math.log2(math.e)/math.sqrt(128.0))}")
a("s_mov_b32 s31, 0")
a("s_mov_b32 s38, 400000")
a(f"s_mov_b32 s39, {LB0}")
a("s_mov_b32 s42, 0xf0f0f0f0")
a("s_mov_b32 s43, 0xf0f0f0f0")
a("s_lshl_b32 s44, s26, 2")
a("s_add_u32 s44, s44, s24")
a("s_lshl_b32 s32, s44, 13")
hswinit()
setaddr(32, 32)
a("s_lshl_b32 s57, s44, 14")
a(f"s_add_u32 s57, s57, {1920*8192}")
a("s_mov_b32 s55, -1")
a("s_mov_b32 s56, -1")
a("s_mov_b32 s96, -1")
a("s_mov_b32 s97, -1")
a("v_lshlrev_b32 v3, 4, v1")
kofs()
a("s_waitcnt lgkmcnt(0)")
a("s_load_dword s29, s[86:87], 0")
if OPT["padmin"]:
    a("s_not_b32 s101, s100")
    a("s_atomic_umax s101, s[84:85], 64")
a("s_lshl_b32 s44, s25, 24")
a("s_add_u32 s4, s66, s44")
a("s_addc_u32 s5, s67, 0")
a("s_and_b32 s5, s5, 0xffff")
a("s_mov_b32 s6, 0x1000000")
a("s_mov_b32 s7, 0x20000")
a("s_add_u32 s8, s68, s44")
a("s_addc_u32 s9, s69, 0")
a("s_and_b32 s9, s9, 0xffff")
a("s_mov_b32 s10, 0x1000000")
a("s_mov_b32 s11, 0x20000")
srd(12, 86, 87, WS_SIZE)
a("s_cmp_ge_u32 s27, 24")
a("s_cbranch_scc0 LPRO1")
srd(60, 64, 65, 1152)
srd(92, 70, 71, 0 if OPT["wskip"] & 8 else 576 * 8192)
a("v_lshrrev_b32 v41, 3, v1")
a("v_lshlrev_b32 v40, 13, v41")
a("v_and_b32 v42, 7, v1")
a("v_lshl_add_u32 v40, v42, 4, v40")
a("s_lshl_b32 s46, s28, 3")
a("s_add_u32 s46, s46, s27")
a("s_sub_u32 s46, s46, 24")
a("s_lshl_b32 s44, s46, 7")
a(f"s_mul_i32 s45, s24, {144*8192}")
a("s_add_u32 s44, s44, s45")
for i in range(18):
    a(f"buffer_load_dwordx4 {R('v', 64+4*i)}, v40, s[92:95], s44 offen{WPOL}")
    a("s_add_u32 s44, s44, 65536")
a("buffer_load_dwordx4 v[8:11], v3, s[60:63], 0 offen")
a("buffer_load_dwordx4 v[12:15], v3, s[60:63], 0 offen offset:1024")
a("s_and_b32 s44, s46, 3")
a("s_or_b32 s44, s44, s24")
a("s_cmp_eq_u32 s44, 0")
a("s_cbranch_scc0 LPRO0")
a("v_and_b32 v40, 1, v1")
a("v_lshlrev_b32 v40, 12, v40")
a("v_bfe_u32 v43, v1, 1, 1")
a("v_lshl_add_u32 v40, v43, 13, v40")
a("v_lshrrev_b32 v43, 2, v1")
a("v_lshl_add_u32 v40, v43, 4, v40")
a("v_mov_b32 v36, 0\nv_mov_b32 v37, 0\nv_mov_b32 v38, 0\nv_mov_b32 v39, 0")
a("s_lshl_b32 s44, s46, 6")
a(f"s_add_u32 s44, s44, {CTR}")
a("s_mov_b64 exec, 0xff")
a("buffer_store_dwordx4 v[36:39], v40, s[12:15], s44 offen sc1")
a("s_mov_b64 exec, -1")
a.label("LPRO0")
a("v_lshrrev_b32 v40, 1, v42")
a(f"v_mul_u32_u24 v40, {TS}, v40")
a("v_and_b32 v43, 3, v41")
a("v_lshl_add_u32 v40, v43, 5, v40")
a("v_lshrrev_b32 v43, 2, v41")
a("v_lshl_add_u32 v40, v43, 9, v40")
a("v_and_b32 v42, 1, v42")
a("v_lshl_add_u32 v40, v42, 4, v40")
for k, reg in ((0, 41), (2, 42)):
    a("s_mul_i32 s44, s24, 18")
    a(f"s_add_u32 s44, s44, {k}")
    a("s_lshr_b32 s45, s44, 2")
    a("s_lshl_b32 s45, s45, 10")
    a("s_and_b32 s44, s44, 3")
    a("s_lshl_b32 s44, s44, 7")
    a("s_add_u32 s44, s44, s45")
    a(f"s_add_u32 s44, s44, {WQ}")
    a(f"v_add_u32 v{reg}, s44, v40")
ones_init()
a("s_waitcnt vmcnt(0) lgkmcnt(0)")
a("s_mul_i32 s29, s29, 0x9e3779b1")
a("s_add_u32 s29, s29, 0x7f4a7c15")
for i in range(18):
    a(f"ds_write_b128 v{41 + ((i>>1)&1)}, {R('v', 64+4*i)} offset:{(i>>2)*1024+(i&1)*128}")
a("s_waitcnt lgkmcnt(0)")
a("s_barrier")
qprep(X0)
a("s_call_b64 s[36:37], LQSTAGE")
kofs()
a("s_branch LPRO2")
a.label("LPRO1")
a("s_waitcnt lgkmcnt(0)")
ones_init()
a("s_mul_i32 s29, s29, 0x9e3779b1")
a("s_add_u32 s29, s29, 0x7f4a7c15")
a.label("LPRO2")
if STAMPS == 2:
    a("v_mov_b32 v51, 0")
    a("s_mov_b32 s93, 0")
sstamp(55)
a.vq = []
burst("a", 0, "A0")
a("s_cmp_eq_u32 s24, 0")
a("s_cbranch_scc0 LPRO3")
a("v_mov_b32 v24, -1\nv_mov_b32 v25, -1\nv_mov_b32 v26, -1\nv_mov_b32 v27, -1")
a("s_mul_i32 s44, s2, 6144")
a(f"s_add_u32 s44, s44, {LB0}")
a("s_add_u32 s45, s44, 4096")
keep = list(a.vq)
for i in range(6):
    a(f"buffer_store_dwordx4 v[24:27], v3, s[12:15], s{44+(i>>2)} offen offset:{1024*(i&3)} sc1")
a.vq = keep
a.label("LPRO3")
srd(16, 82, 83, 1152)
srd(20, 84, 85, 256)
masks()
a("s_lshl_b32 s44, s25, 8")
a(f"s_add_u32 s44, s44, {CTR}")
a("s_add_u32 s88, s86, s44")
a("s_addc_u32 s89, s87, 0")
sstamp(56)
keep = list(a.vq)
a("s_cmp_lt_u32 s27, 18")
a("s_cbranch_scc0 LWB")
srd(60, 76, 77, 0 if OPT["wskip"] & 2 else 576 * 9216)
srd(92, 78, 79, 0 if OPT["wskip"] & 2 else 576 * 9216)
a("v_lshrrev_b32 v41, 2, v1")
a("v_and_b32 v42, 3, v1")
a("v_mul_u32_u24 v40, 9216, v41")
a("v_lshl_add_u32 v40, v42, 4, v40")
a("s_mul_i32 s46, s28, 18")
a("s_add_u32 s46, s46, s27")
a("s_lshl_b32 s44, s46, 6")
a(f"s_mul_i32 s45, s24, {144*9216}")
a("s_add_u32 s44, s44, s45")
for i in range(9):
    a(f"buffer_load_dwordx4 {R('v', 64+8*i)}, v40, s[60:63], s44 offen{WPOL}")
    a(f"buffer_load_dwordx4 {R('v', 68+8*i)}, v40, s[92:95], s44 offen{WPOL}")
    a(f"s_add_u32 s44, s44, {16*9216}")
a(f"v_mul_u32_u24 v43, {TS}, v42")
a("v_and_b32 v42, 3, v41")
a("v_lshl_add_u32 v43, v42, 5, v43")
a("v_bfe_u32 v42, v41, 2, 1")
a("v_lshl_add_u32 v43, v42, 9, v43")
a("v_lshrrev_b32 v42, 3, v41")
a("v_lshl_add_u32 v43, v42, 7, v43")
for k, reg in ((1, 34), (0, 43)):
    a("s_mul_i32 s44, s24, 9")
    a(f"s_add_u32 s44, s44, {k}")
    a("s_lshr_b32 s45, s44, 1")
    a("s_lshl_b32 s45, s45, 10")
    a("s_and_b32 s44, s44, 1")
    a("s_lshl_b32 s44, s44, 8")
    a("s_add_u32 s44, s44, s45")
    a(f"v_add_u32 v{reg}, s44, v43")
srd(60, 80, 81, 0 if OPT["wskip"] & 4 else 4608 * 1152)
a(f"s_mul_i32 s44, s46, {32*1152}")
a("s_mul_i32 s45, s24, 9216")
a("s_add_u32 s44, s44, s45")
a("s_add_u32 s45, s44, 4096")
a("s_add_u32 s46, s44, 8192")
for i in range(9):
    a(f"buffer_load_dwordx4 {R('v', 136+4*i)}, v3, s[60:63], s{44+(i>>2)} offen offset:{(i&3)*1024}{WPOL}")
a("s_branch LWDONE")
a.label("LWB")
a("s_cmp_lt_u32 s27, 30")
a("s_cbranch_scc0 LWDONE")
srd(60, 72, 73, 0 if OPT["wskip"] & 1 else 4096 * 1152)
a("v_lshrrev_b32 v41, 4, v1")
a("v_and_b32 v42, 15, v1")
a("v_mul_u32_u24 v40, 1152, v41")
a("v_lshl_add_u32 v40, v42, 4, v40")


def brole():
    a("s_sub_u32 s47, s27, 18")
    a("s_lshl_b32 s46, s28, 1")
    a("s_cmp_ge_u32 s47, 6")
    a("s_addc_u32 s46, s46, 0")
    a("s_cmp_ge_u32 s47, 6")
    a("s_cselect_b32 s48, 6, 0")
    a("s_sub_u32 s47, s47, s48")


brole()
a("s_lshl_b32 s44, s46, 8")
a("s_lshl_b32 s45, s24, 6")
a("s_add_u32 s44, s44, s45")
a("s_mul_i32 s44, s44, 1152")
a("s_mul_i32 s45, s47, 192")
a("s_add_u32 s44, s44, s45")
a("s_mov_b32 exec_lo, 0x0fff0fff")
a("s_mov_b32 exec_hi, 0x0fff0fff")
for i in range(16):
    a(f"buffer_load_dwordx4 {R('v', 64+4*i)}, v40, s[60:63], s44 offen{WPOL}")
    a(f"s_add_u32 s44, s44, {4*1152}")
a("s_mov_b64 exec, -1")
a("v_lshrrev_b32 v43, 1, v42")
a(f"v_mul_u32_u24 v43, {WOS}, v43")
a("v_lshl_add_u32 v43, v41, 5, v43")
a("v_and_b32 v42, 1, v42")
a("v_lshl_add_u32 v43, v42, 4, v43")
a("s_lshl_b32 s45, s24, 11")
a("v_add_u32 v43, s45, v43")
a.label("LWDONE")
a.vq = keep
sstamp(57)
PR = str(OPT["pr"]).zfill(4)
for _ in range(int(PR[0])):
    probe()
a.wait_vm_n(30)
burst("a", 64, "A1")
for _ in range(int(PR[1])):
    probe()
a.wait_vm_n(30)
burst("a", 128, "A2")
for _ in range(int(PR[2])):
    probe()
qpoll_addr(X0)
a.wait_vm_n(40)
qpoll_issue()
burst("a", 192, "A3")
for _ in range(int(PR[3])):
    probe()
if not OPT["klate"]:
    probe("K")
a.wait_vm_n(50)
a("s_cmp_lt_u32 s27, 18")
a("s_cbranch_scc0 LWB2")
for i in range(9):
    a(f"ds_write_b128 v{34 if i & 1 else 43}, {R('v', 64+8*i)} offset:{(i>>1)*1024}")
    a(f"ds_write_b128 v{34 if i & 1 else 43}, {R('v', 68+8*i)} offset:{(i>>1)*1024+16}")
a("s_mul_i32 s44, s24, 9216")
a(f"s_add_u32 s44, s44, {WD}")
a("v_add_u32 v40, s44, v3")
for i in range(9):
    a(f"ds_write_b128 v40, {R('v', 136+4*i)} offset:{i*1024}")
a("s_branch LWDONE2")
a.label("LWB2")
a("s_cmp_lt_u32 s27, 30")
a("s_cbranch_scc0 LWDONE2")
a("s_mov_b32 exec_lo, 0x0fff0fff")
a("s_mov_b32 exec_hi, 0x0fff0fff")
for i in range(16):
    a(f"ds_write_b128 v43, {R('v', 64+4*i)} offset:{(i&1)*512+((i>>1)&3)*128+(i>>3)*1024}")
a("s_mov_b64 exec, -1")
a.label("LWDONE2")
a(f"v_mov_b32 v{VL}, 0")
a("s_mov_b32 s91, 0")
a("s_mov_b32 s92, 0")
a("s_mov_b32 s94, 0")
a("s_mov_b32 s95, 7")
a("s_waitcnt lgkmcnt(0)")
a.wait_vm("qp")
if STAMPS:
    a("s_memrealtime s[58:59]")
    a("s_waitcnt lgkmcnt(0)")
    a("s_mov_b32 s75, s58")
qpoll_check()
a("s_cbranch_scc0 LQREADY")

a.label("LQPOLL")
qpoll_issue()
a("s_waitcnt vmcnt(0)")
qpoll_check()
a("s_cbranch_scc0 LQREADY")
retry("LQPOLL", "LQREADY")
a.label("LQREADY")
hswinit()
for i in range(4):
    a(f"v_cndmask_b32 v{QE+i}, v{24+2*i}, 0, s[42:43]")
    a(f"v_cndmask_b32 v{QO+i}, 0, v{24+2*i}, s[42:43]")
for r in range(4):
    a(f"v_mov_b32 v{OA+r}, 0")
a(f"v_mov_b32 v{MS}, {f32(-1e30)}")
a(f"v_mov_b32 v{LS}, 0")
stamp(0)
a("s_cmp_eq_u32 s31, 0")
a("s_cbranch_scc0 LP2")
if OPT["vote"]:
    a("s_getreg_b32 s47, hwreg(HW_REG_XCC_ID)")
    a("s_bfe_u32 s47, s47, 0x10002")
    for d, (x, y) in ((44, (55, 56)),) if OPT["klate"] else ((48, (96, 97)), (44, (55, 56))):
        a(f"s_sub_i32 s{d}, s{x}, s{y}")
        a(f"s_min_i32 s{d}, s{d}, 300")
        a(f"s_max_i32 s{d}, s{d}, -300")
        a(f"s_sub_i32 s45, 0, s{d}")
        a("s_cmp_eq_u32 s47, 0")
        a(f"s_cselect_b32 s{d}, s{d}, s45")
    a("s_mov_b32 s46, s44")
    a("s_atomic_add s46, s[88:89], 16 glc")
    if not OPT["klate"]:
        a("s_atomic_add s48, s[88:89], 20")
    a(f"s_mov_b32 s90, {TKI}")
    a("s_atomic_add s90, s[88:89], 0 glc")
    a("s_waitcnt lgkmcnt(0)")
    a("s_add_i32 s44, s44, s46")
    a("s_cmp_gt_i32 s44, 0")
    a("s_cselect_b32 s44, 1, 0")
    a("s_xor_b32 s44, s44, s47")
else:
    a("s_cmp_gt_u32 s55, s56")
    a("s_cselect_b32 s44, 1, 0")
if OPT["forcecls"] == 2:
    a("s_xor_b32 s44, s44, 1")
a("s_lshl_b32 s45, s44, 2")
a("s_add_u32 s45, s45, 4")
a("s_mov_b32 s46, 1")
a("s_atomic_add s46, s[88:89], s45 glc")
a("s_mov_b32 s61, 0")
a("s_mov_b32 s62, 0")
a("s_mov_b32 s63, 1")
a("s_mov_b32 s98, 13")
a("s_mov_b32 s99, 0")
a(f"s_mov_b32 s96, {NP1}")
a("s_waitcnt lgkmcnt(0)")
a("s_cmp_lt_u32 s46, 32")
a("s_cbranch_scc1 LBUN")
a("s_xor_b32 s44, s44, 1")
a("s_xor_b32 s45, s45, 12")
a("s_mov_b32 s46, 1")
a("s_atomic_add s46, s[88:89], s45 glc")
a("s_waitcnt lgkmcnt(0)")
a.label("LBUN")
a("s_lshl_b32 s57, s46, 1")
a("s_add_u32 s57, s57, s44")
a("s_add_u32 s57, s57, 256")
a("s_lshl_b32 s57, s57, 13")
a("s_mov_b32 s55, -1")
a("s_mov_b32 s37, -1")
a("s_mov_b32 s56, 832")
a("s_mov_b32 s60, 0")
a(f"s_mov_b32 s54, {TF}")
a("s_mov_b32 s36, 0")
a("s_mov_b32 s101, 0")
a("s_mov_b32 s97, 0")
a("s_mov_b32 s41, 0")
a("s_cmp_eq_u32 s24, 0")
a("s_cbranch_scc0 LNOCNT")
a("s_mov_b32 s48, 1")
a("s_atomic_add s48, s[84:85], 0")
a.label("LNOCNT")
a.vq = qtags("A3")


def tkreq():
    if OPT["sline"]:
        a("s_lshr_b32 s59, s61, 11")
        a("s_atomic_add s90, s[88:89], s59 glc")
    else:
        a("s_atomic_add s90, s[88:89], s61 glc")


def xaddr(reg, i):
    a(f"s_add_u32 s{reg}, s57, {i*UNIT_STEP}")
    if (1 + (i >> 2)) & 1:
        a(f"s_xor_b32 s{reg}, s{reg}, 8192")


def baddr(i):
    xaddr(32, 2 * i)
    xaddr(34, 2 * i + 1)
    setaddr(32, 34)


def draw(s, exhausted):
    ln, lg, lo = a.newlabel("noapp"), a.newlabel("go"), a.newlabel("tok")
    a("s_cmp_lt_u32 s90, s96")
    a(f"s_cbranch_scc1 {lo}")
    a("s_cmp_lg_u32 s63, 0")
    a(f"s_cbranch_scc1 {exhausted}")
    a("s_add_u32 s63, s63, 1")
    a("s_mov_b32 s62, 0")
    a("s_xor_b32 s61, s61, 8192")
    a(f"s_mov_b32 s90, {TKI}")
    tkreq()
    a("s_waitcnt lgkmcnt(0)")
    a("s_cmp_lt_u32 s90, s96")
    a(f"s_cbranch_scc0 {exhausted}")
    a.label(lo)
    a("s_cmp_ge_u32 s90, s60")
    a("s_cselect_b32 s32, s56, 0")
    a("s_add_u32 s32, s32, s90")
    a("s_lshl_b32 s33, s32, 6")
    a("s_xor_b32 s33, s33, s61")
    a("s_and_b32 s33, s33, s99")
    a("s_lshl_b32 s32, s32, s98")
    a("s_add_u32 s32, s32, s33")
    a(f"s_bitset0_b32 s97, {s}")
    a("s_cmp_ge_u32 s90, s54")
    a(f"s_cbranch_scc0 {ln}")
    a(f"s_bitset1_b32 s97, {s}")
    a("s_mov_b32 m0, s94")
    a("s_nop 0")
    a(f"v_writelane_b32 v{VL}, s32, m0")
    a("s_add_u32 s94, s94, 1")
    a("s_cmp_lt_u32 s94, 60")
    a(f"s_cbranch_scc1 {ln}")
    if OPT["tk2"]:
        a("s_bitcmp0_b32 s90, 0")
        a(f"s_cbranch_scc1 {ln}")
    a("s_mov_b32 s90, 0x7fffffff")
    a("s_add_u32 s63, s63, 1")
    a(f"s_branch {lg}")
    a.label(ln)
    if OPT["tk2"]:
        a("s_add_u32 s90, s90, 1")
        a("s_bitcmp1_b32 s90, 0")
        a(f"s_cbranch_scc1 {lg}")
    a("s_xor_b32 s61, s61, s62")
    if OPT["eg"]:
        a(f"s_add_u32 s90, s90, {OPT['eg']}")
        a("s_cmp_ge_u32 s90, s96")
        a("s_cselect_b32 s41, 1, 0")
        a(f"s_cbranch_scc1 {lg}")
    a(f"s_mov_b32 s90, {TKI}")
    tkreq()
    a.label(lg)


def ticket_ready():
    if OPT["eg"]:
        lk = a.newlabel("tk")
        a("s_cmp_eq_u32 s41, 0")
        a(f"s_cbranch_scc1 {lk}")
        a(f"s_waitcnt vmcnt({OPT['gv']})")
        a("s_sub_u32 s41, s41, 1")
        a(f"s_mov_b32 s90, {TKI}")
        tkreq()
        a.label(lk)
    a("s_waitcnt lgkmcnt(0)")


for i in range(4):
    baddr(i)

    def rl(hf, t):
        if OPT["mixx"] and i < 3:
            ld("v", RING[i] + 32 * hf, t, "V", hf, VPOL, ("X", 2 * i + hf, t))
        ld("a", 64 * i + 32 * hf, t, "K", hf, " nt", ("BK", 2 * i + hf, t))
    if i < 3 and not OPT["mixx"]:
        a.wait_vm_n(47)
        for hf in range(2):
            for t in range(8):
                ld("v", RING[i] + 32 * hf, t, "V", hf, VPOL, ("X", 2 * i + hf, t))
        logt()
    a.wait_vm_n(31 if OPT["mixx"] else 47)
    unit2(("a", 64 * i), ("a", 64 * i + 32), lambda t: (f"A{i}", "K", t), lambda t: (f"A{i}", "V", t),
          lambda t: rl(0, t), lambda t: rl(1, t))
    logt()
for d in range(4):
    sl = RING[d % 3]
    if d == 0:
        rka = lambda t: ld("v", sl, t, "V", 0, VPOL, ("X", 6, t))
        rkb = lambda t: ld("v", sl + 32, t, "V", 1, VPOL, ("X", 7, t))
    else:
        if d == 1:
            xaddr(32, 8)
            setaddr(32, 32)
        else:
            le, lc = a.newlabel("dex"), a.newlabel("dco")
            ticket_ready()
            draw(d % 3, le)
            a(f"s_branch {lc}")
            a.label(le)
            a(f"s_bitset0_b32 s95, {d % 3}")
            a("s_mov_b32 s32, 0x1000000")
            a.label(lc)
            setaddr(32, 32)
        rka = lambda t: ldK("v", sl, t, f"P{d}")
        rkb = lambda t: ldV("v", sl, t, f"P{d}")
    a.wait_vm_n(47)
    unit2(("a", 64 * d), ("v", sl), lambda t: ("BK", 2 * d, t), lambda t: ("X", 2 * d, t), None, rka)
    unit2(("a", 64 * d + 32), ("v", sl + 32), lambda t: ("BK", 2 * d + 1, t), lambda t: ("X", 2 * d + 1, t), None, rkb)
    logt()
a("s_lshl_b32 s44, s24, 13")
a(f"s_add_u32 s44, s44, {KL}")
a("v_add_u32 v40, s44, v3")
if OPT["klate"]:
    a("s_lshl_b32 s44, s26, 2")
    a("s_add_u32 s44, s44, s24")
    a("s_lshl_b32 s44, s44, 14")
    a("s_getreg_b32 s47, hwreg(HW_REG_XCC_ID)")
    a("s_bfe_u32 s47, s47, 0x10002")
    a("s_waitcnt lgkmcnt(0)")
    for c in (0, 1, 0):
        a(f"s_add_u32 s50, s44, {1920*8192 + (c ^ 1)*8192 + probe_k[0]*1152}")
        probe_k[0] += 1
        a("s_memtime s[52:53]")
        a("s_waitcnt lgkmcnt(0)")
        a("s_buffer_load_dword s51, s[4:7], s50")
        a("s_waitcnt lgkmcnt(0)")
        a("s_memtime s[50:51]")
        a("s_waitcnt lgkmcnt(0)")
        a(f"s_sub_u32 s{45+c}, s50, s52")
    a("s_sub_i32 s48, s45, s46")
    a("s_min_i32 s48, s48, 300")
    a("s_max_i32 s48, s48, -300")
    a("s_sub_i32 s45, 0, s48")
    a("s_cmp_eq_u32 s47, 0")
    a("s_cselect_b32 s48, s48, s45")
    a("s_atomic_add s48, s[88:89], 20")
waitq(("P1", "K", 7))
for t in range(8):
    a(f"ds_write_b128 v40, {R('v', RING[1]+4*t)} offset:{t*1024}")
a("s_branch LRING1")
a.label("LP2")
if STAMPS == 2:
    a("v_mov_b32 v51, 0")
    a("s_mov_b32 s93, 0")
a("s_mov_b32 s3, 0")
a("s_mov_b32 s56, 288")
a("s_mov_b32 s60, 128")
a("s_mov_b32 s41, 0")
a("s_mov_b32 s54, -1")
a("s_mov_b32 s101, 0")
a("s_mov_b32 s36, 0")
a(f"s_mov_b32 s37, {OPT['cn']}")
a("s_and_b32 s3, s3, s36")
for i in range(10):
    a(f"s_mov_b32 s55, {THR0 + i*THRS}")
    a("s_add_u32 s36, s36, 1")
    a("s_branch LRINGGO")
    a.label(f"LRET{i+1}")
    a.vq = []
    if i > 0:
        def vwait():
            l0, l1 = a.newlabel("sw"), a.newlabel("sw")
            a("s_cmp_ge_u32 s101, 2")
            a(f"s_cbranch_scc1 {l0}")
            a("s_cmp_eq_u32 s101, 1")
            a(f"s_cbranch_scc1 {l1}")
            a("s_waitcnt vmcnt(0)")
            a.label(l1)
            a("s_waitcnt vmcnt(16)")
            a.label(l0)
            a("s_waitcnt vmcnt(32)")
        if i == 8:
            a("s_lshl_b32 s44, s24, 13")
            a(f"s_add_u32 s44, s44, {KL}")
            a("v_add_u32 v40, s44, v3")
            for t in range(8):
                a(f"ds_read_b128 {R('a', 4*t)}, v40 offset:{t*1024}")
        unit2(None, ("a", 32 * ((i - 1) & 7)), hooks=(None, vwait), tt=52)
    if i < 9:
        if i < 8:
            xaddr(34, i)
            setaddr(None, 34)
        else:
            xaddr(34, 8)
            setaddr(None, 34)
            a("s_waitcnt lgkmcnt(0)")
        a.wait_vm_n(55)
        unit2(("a", 32 * (i & 7)), None, None, None, lambda t: ld("a", 32 * (i & 7), t, "V", 1, VPOL, None), tt=52)
        a("s_mov_b32 s101, 0")
a("s_mov_b32 s55, -1")
a("s_mov_b32 s37, -1")
a.label("LRINGGO")
a("s_cmp_eq_u32 s3, 0")
a("s_cbranch_scc1 LRING0")
a("s_cmp_eq_u32 s3, 1")
a("s_cbranch_scc1 LRING1")
a("s_branch LRING2")
a.label("LPASSEND")
stamp(1)
if STAMPS == 2:
    a("s_lshl_b32 s44, s31, 8")
    a("s_add_u32 s44, s44, s2")
    a("s_lshl_b32 s44, s44, 10")
    a(f"s_add_u32 s44, s44, {STAMP_OFF+0x40000}")
    a("v_lshlrev_b32 v40, 2, v0")
    a("buffer_store_dword v51, v40, s[12:15], s44 offen")
a(f"v_add_f32_dpp v{LS}, v{LS}, v{LS} row_half_mirror{DPPM}")
rows("v_add_f32", LS, TMP)
a(f"v_mul_f32 v22, s30, v{MS}")
a(f"v_mov_b32 v23, v{LS}")
a("v_bfe_u32 v40, v1, 3, 1")
a("v_lshlrev_b32 v41, 9, v40")
a("v_lshrrev_b32 v42, 4, v1")
a("v_lshl_add_u32 v41, v42, 7, v41")
a("v_and_b32 v42, 7, v1")
a("v_lshl_add_u32 v41, v42, 2, v41")
a("s_lshl_b32 s44, s24, 10")
a(f"s_add_u32 s44, s44, {CB1}")
a("v_add_u32 v41, s44, v41")
for r in range(4):
    a(f"ds_write_b32 v41, v{OA+r} offset:{32*r}")
a("s_lshl_b32 s44, s24, 3")
a(f"s_add_u32 s44, s44, {CS1}")
a("v_lshlrev_b32 v40, 5, v40")
a("v_add_u32 v40, s44, v40")
a("ds_write_b64 v40, v[22:23]")
a("v_lshlrev_b32 v40, 2, v0")
a(f"v_add_u32 v40, {LSV}, v40")
a(f"ds_write_b32 v40, v{VL}")
a.label("LCNT")
a("s_waitcnt vmcnt(0)")
a("v_readfirstlane_b32 s44, v49")
a("s_cmp_ge_u32 s44, 256")
a("s_cbranch_scc1 LCNTOK")
a("v_mov_b32 v48, 0")
a("buffer_load_dword v49, v48, s[20:23], 0 offen sc1")
retry("LCNT", "LCNTOK")
a.label("LCNTOK")
a("s_waitcnt lgkmcnt(0)")
a("s_barrier")
combine(CB1, CS1)
a(f"s_mul_i32 s44, s2, {X1S}")
a("s_add_u32 s44, s44, s39")
a("v_lshlrev_b32 v8, 2, v0")
a("buffer_store_dword v24, v8, s[12:15], s44 offen sc1")
a("s_lshl_b32 s45, s24, 6")
a("v_mov_b32 v9, s45")
a("s_bitcmp0_b32 s24, 0")
a("s_cbranch_scc0 LPUB1")
a("s_mov_b64 exec, 1")
a("buffer_store_dwordx2 v[26:27], v9, s[12:15], s44 offen offset:1024 sc1")
a("s_mov_b64 exec, -1")
a.label("LPUB1")
stamp(2)
a("s_cmp_lt_u32 s27, 18")
a("s_cbranch_scc1 LSTC")
a("s_cmp_lt_u32 s27, 30")
a("s_cbranch_scc0 LSTQ")
brole()
a(f"s_mul_i32 s48, s46, {16*X1S}")
a("s_add_u32 s48, s48, s39")
for g in range(1, 4):
    a(f"s_add_u32 s{48+g}, s48, {g*4*X1S}")
a("v_lshlrev_b32 v8, 2, v0")
a("v_and_b32 v9, 15, v1")
a(f"v_mul_u32_u24 v9, {X1S}, v9")
a("s_lshr_b32 s44, s24, 1")
a("s_lshl_b32 s44, s44, 7")
a("v_add_u32 v9, s44, v9")
a("v_lshlrev_b32 v10, 1, v0")
a(f"v_add_u32 v10, {OB}, v10")
a(f"s_mul_i32 s44, s24, {2*WOS}")
a("v_lshlrev_b32 v58, 3, v1")
a("v_add_u32 v58, s44, v58")
afrag_addr(57, base=OB)
a.label("LE1")
a("buffer_load_dwordx2 v[28:29], v9, s[12:15], s48 offen offset:1024 sc1")
for p in range(16):
    a(f"buffer_load_dword v{12+p}, v8, s[12:15], s{48+(p>>2)} offen offset:{(p&3)*X1S} sc1")
a("s_waitcnt vmcnt(16)")
if OPT["e1f"]:
    a("v_cmp_u_f32 vcc, v28, v29")
    a("s_cbranch_vccnz LE1R")
ROWRED = ("quad_perm:[1,0,3,2]", "quad_perm:[2,3,0,1]", "row_half_mirror", "row_mirror")
a(f"v_max_f32_dpp v30, v28, v28 {ROWRED[0]}{DPPM}")
for st in ROWRED[1:]:
    a(f"v_max_f32_dpp v30, v30, v30 {st}{DPPM}")
a("v_sub_f32 v28, v28, v30")
a("v_exp_f32 v28, v28")
a("v_mul_f32 v29, v29, v28")
for st in ROWRED:
    a(f"v_add_f32_dpp v29, v29, v29 {st}{DPPM}")
a("v_rcp_f32 v29, v29")
a("v_mul_f32 v28, v28, v29")
a("s_waitcnt vmcnt(0)")
for p in range(16):
    op = "v_mul_f32_dpp" if p < 4 else "v_fmac_f32_dpp"
    a(f"{op} v{32+(p&3)}, v28, v{12+p} row_newbcast:{p}{DPPM}")
a("v_add_f32 v32, v32, v33")
a("v_add_f32 v34, v34, v35")
a("v_add_f32 v32, v32, v34")
a("v_cmp_u_f32 vcc, v32, v32")
a("s_cbranch_vccz LE1OK")
a.label("LE1R")
retry("LE1", "LE1OK")
a.label("LE1OK")
a("s_waitcnt vmcnt(0)")
stamp(3)
a("v_cvt_pk_bf16_f32 v32, v32, v32")
a("ds_write_b16 v10, v32")
a("s_waitcnt lgkmcnt(0)")
a("s_barrier")
a("s_cmp_eq_u32 s24, 3")
a("s_cbranch_scc1 LSTQ")


def b_issue(kk):
    s = 8 + 12 * (kk % 3)
    a(f"ds_read_b128 {R('v', s)}, v57 offset:{kk*64}")
    for t in range(2):
        a(f"ds_read_b64_tr_b16 {R('v', s+4+4*t, 2)}, v58 offset:{kk*1024+t*WOS}")
        a(f"ds_read_b64_tr_b16 {R('v', s+6+4*t, 2)}, v58 offset:{kk*1024+t*WOS+512}")


for kk in range(3):
    b_issue(kk)
for kk in range(8):
    a(f"s_waitcnt lgkmcnt({5*(min(8, kk+3)-kk-1)})")
    s = 8 + 12 * (kk % 3)
    for t in range(2):
        acc = R("v", 48 + 4 * t)
        a(f"v_mfma_f32_16x16x32_bf16 {acc}, {R('v', s)}, {R('v', s+4+4*t)}, {'0' if kk == 0 else acc}")
    if kk + 3 < 8:
        b_issue(kk + 3)
a("s_mul_i32 s44, s46, 2304")
a("s_mul_i32 s45, s47, 384")
a("s_add_u32 s44, s44, s45")
a("s_lshl_b32 s45, s24, 7")
a("s_add_u32 s44, s44, s45")
a("s_add_u32 s44, s44, s39")
a(f"s_add_u32 s44, s44, {X2}")
a("s_mov_b32 s48, 0xffff0000")
a("s_mov_b32 s49, 0xffff0000")
a("v_lshlrev_b32 v8, 2, v1")
a("v_cndmask_b32 v48, v48, v52, s[48:49]")
a("s_mov_b32 exec_hi, 0")
a("buffer_store_dword v48, v8, s[12:15], s44 offen sc1")
a("s_mov_b64 exec, -1")
stamp(4)
a("s_branch LSTQ")
a.label("LSTC")
a(f"s_mov_b32 s44, {XB}")
a(f"s_mul_i32 s45, s24, {TS}")
lng_addr()
a("v_lshrrev_b32 v5, 4, v1")
a("v_lshlrev_b32 v4, 3, v5")
a("v_bfe_u32 v6, v1, 2, 2")
a("v_add_u32 v4, v4, v6")
a("v_mul_u32_u24 v4, 1152, v4")
a("v_and_b32 v6, 3, v1")
a("v_lshl_add_u32 v4, v6, 3, v4")
a("s_lshl_b32 s44, s24, 7")
a(f"s_add_u32 s44, s44, {WD}")
a("v_add_u32 v4, s44, v4")
a("v_lshlrev_b32 v5, 4, v5")
a(f"v_add_u32 v5, {HB}, v5")
a("s_lshl_b32 s44, s24, 4")
a(f"s_add_u32 s44, s44, {HB}")
a("v_lshlrev_b32 v6, 1, v1")
a("v_add_u32 v6, s44, v6")
a("v_lshrrev_b32 v7, 5, v1")
a("v_mul_u32_u24 v7, 18432, v7")
a("v_and_b32 v59, 31, v1")
a("v_lshl_add_u32 v7, v59, 2, v7")
a("s_mul_i32 s50, s28, 18")
a("s_add_u32 s50, s50, s27")
a("s_lshl_b32 s50, s50, 7")
a("s_mul_i32 s45, s24, 36864")
a("s_add_u32 s50, s50, s45")
a("s_add_u32 s50, s50, s39")
a(f"s_add_u32 s50, s50, {X3}")
a("s_mov_b32 s52, 0xffff0000")
a("s_mov_b32 s53, 0xffff0000")
a("s_mov_b32 s40, 0")
a("s_mov_b32 s41, -1")
a("s_cmp_eq_u32 s24, 3")
a("s_cbranch_scc1 LC_BAR")
a("v_lshrrev_b32 v56, 4, v1")
a("v_mul_u32_u24 v56, 2304, v56")
a("v_and_b32 v8, 15, v1")
a("v_lshl_add_u32 v56, v8, 4, v56")
a("s_mul_i32 s48, s24, 768")
a("s_add_u32 s44, s48, s39")
a(f"s_add_u32 s44, s44, {X2}")
for g in range(1, 4):
    a(f"s_add_u32 s{44+g}, s44, {g*9216}")
a("v_bfe_u32 v9, v1, 4, 1")
a("v_lshlrev_b32 v9, 1, v9")
a("v_lshrrev_b32 v10, 5, v1")
a("v_add_u32 v9, v9, v10")
a("v_lshl_add_u32 v9, v8, 2, v9")
a("v_lshrrev_b32 v10, 5, v9")
a("v_lshlrev_b32 v10, 6, v10")
a("v_lshl_add_u32 v10, v9, 1, v10")
a(f"s_add_u32 s49, s48, {LB0+X4}")
a("s_lshr_b32 s48, s48, 1")
a("v_lshlrev_b32 v9, 1, v9")
a("v_add_u32 v9, s48, v9")
a(f"v_add_u32 v59, {XB}, v9")
a("s_cmp_eq_u32 s31, 0")
a("s_cbranch_scc0 LC_X2")
a("s_load_dwordx2 s[60:61], s[0:1], 0")
a("s_mov_b32 s62, 1152")
a("s_mov_b32 s63, 0x20000")
a("s_waitcnt lgkmcnt(0)")
a("s_and_b32 s61, s61, 0xffff")
for c in range(3):
    a(f"buffer_load_ushort v{60+c}, v9, s[60:63], 0 offen offset:{c*128}")
a("s_branch LC_X3")
a.label("LC_X2")
for c in range(3):
    a(f"buffer_load_ushort v{60+c}, v10, s[12:15], s49 offen offset:{c*256} sc1")
a.label("LC_X3")
a("s_waitcnt vmcnt(0)")
for c in range(3):
    a(f"v_lshlrev_b32 v{60+c}, 16, v{60+c}")
a.label("LE2")
for c in range(3):
    for g in range(4):
        a(f"buffer_load_dwordx4 {R('v', 8+16*c+4*g)}, v56, s[12:15], s{44+g} offen offset:{c*256} sc1")
for c in range(3):
    b = 8 + 16 * c
    a(f"s_waitcnt vmcnt({8-4*c})")
    for r in range(4):
        a(f"v_add_f32 v{b+r}, v{b+r}, v{b+4+r}")
        a(f"v_add_f32 v{b+8+r}, v{b+8+r}, v{b+12+r}")
    for r in range(4):
        a(f"v_add_f32 v{b+r}, v{b+r}, v{b+8+r}")
    if OPT["e1f"] and c < 2:
        a(f"v_cmp_u_f32 vcc, v{b}, v{b+3}")
        a("s_cbranch_vccnz LE2R")
    swapreduce(b)
a("v_add_f32 v9, v8, v24")
a("v_cmp_u_f32 vcc, v9, v40")
a("s_cbranch_vccz LE2OK")
a.label("LE2R")
retry("LE2", "LE2OK")
a.label("LE2OK")
a("s_waitcnt vmcnt(0)")
stamp(5)
for c in range(3):
    bf16r(8 + 16 * c, 8 + 16 * c)
for c in range(3):
    a(f"v_add_f32 v{60+c}, v{60+c}, v{8+16*c}")
for c in range(3):
    a(f"v_cvt_pk_bf16_f32 v{60+c}, v{60+c}, v{60+c}")
for c in range(3):
    a(f"ds_write_b16 v59, v{60+c} offset:{c*128}")
a.label("LC_BAR")
a("s_waitcnt lgkmcnt(0)")
a("s_barrier")
a("s_call_b64 s[36:37], LLNG")


def downB(i):
    for t in range(4):
        s = 8 + 16 * (i & 1) + 4 * t
        a(f"ds_read_b64_tr_b16 {R('v', s, 2)}, v4 offset:{i*512+t*32}")
        a(f"ds_read_b64_tr_b16 {R('v', s+2, 2)}, v4 offset:{i*512+t*32+4*1152}")


a(f"v_mov_b32_dpp v41, v60 row_shl:8{DPPM} bound_ctrl:1")
a("v_cvt_pk_bf16_f32 v41, v60, v41")
a("v_lshlrev_b32 v42, 16, v41")
a("v_and_b32 v41, 0xffff0000, v41")
a("v_max_f32 v42, 0, v42")
a("v_mul_f32 v41, v42, v41")
a("v_cvt_pk_bf16_f32 v41, v41, v41")
a("s_mov_b64 exec, 0xff")
a("ds_write_b16 v6, v41")
a("s_mov_b64 exec, -1")
downB(0)
a("s_waitcnt lgkmcnt(8)")
a("s_barrier")
a("ds_read_b128 v[60:63], v5")
a("s_waitcnt lgkmcnt(5)")
downB(1)


def downG(i, wait):
    a(f"s_waitcnt lgkmcnt({wait})")
    for t in range(4):
        s = 8 + 16 * (i & 1) + 4 * t
        a(f"v_mfma_f32_16x16x32_bf16 {R('v', 40+4*t)}, v[60:63], {R('v', s)}, 0")
    a("v_cndmask_b32 v40, v40, v44, s[52:53]")
    a("v_cndmask_b32 v48, v48, v52, s[52:53]")
    a("v_cndmask_b32 v40, v40, v48, s[40:41]")
    a("buffer_store_dword v40, v7, s[12:15], s50 offen sc1")
    a(f"s_add_u32 s50, s50, {4*36864}")


downG(0, 8)
a("s_cmp_eq_u32 s24, 0")
a("s_cbranch_scc1 LDOWN3")
downG(1, 0)
a("s_branch LSTD")
a.label("LDOWN3")
a("s_waitcnt lgkmcnt(0)")
downB(2)
downG(1, 8)
downG(2, 0)
a.label("LSTD")
stamp(6)
a("s_lshl_b32 s50, s27, 3")
a("s_add_u32 s50, s50, s28")
a("s_cmp_lt_u32 s50, 18")
a("s_cbranch_scc0 LSTQ")
a("s_mul_i32 s44, s50, 18432")
a("s_mul_i32 s45, s24, 4608")
a("s_add_u32 s44, s44, s45")
a("s_add_u32 s44, s44, s39")
a(f"s_add_u32 s44, s44, {X3}")
a("s_add_u32 s45, s44, 4096")
a("v_bfe_u32 v58, v1, 4, 1")
a("v_lshlrev_b32 v58, 1, v58")
a("v_lshrrev_b32 v59, 5, v1")
a("v_add_u32 v58, v58, v59")
a("v_and_b32 v59, 7, v1")
a("v_lshl_add_u32 v58, v59, 2, v58")
a("v_lshlrev_b32 v58, 2, v58")
a("s_lshl_b32 s46, s24, 7")
a(f"s_add_u32 s46, s46, {FB}")
a("v_add_u32 v58, s46, v58")
for r in range(4):
    a(f"v_mov_b32 v{24+r}, 0")
a.label("LE3")
for i in range(4):
    a(f"buffer_load_dwordx4 {R('v', 8+4*i)}, v3, s[12:15], s44 offen offset:{i*1024} sc1")
a("s_mov_b32 exec_hi, 0")
a("buffer_load_dwordx4 v[24:27], v3, s[12:15], s45 offen sc1")
a("s_mov_b64 exec, -1")
a("s_waitcnt vmcnt(0)")
for r in range(4):
    a(f"v_add_f32 v{8+r}, v{8+r}, v{12+r}")
    a(f"v_add_f32 v{16+r}, v{16+r}, v{20+r}")
for r in range(4):
    a(f"v_add_f32 v{8+r}, v{8+r}, v{24+r}")
for r in range(4):
    a(f"v_add_f32 v{8+r}, v{8+r}, v{16+r}")
swapreduce(8)
a(f"v_add_f32_dpp v8, v8, v8 row_ror:8{DPPM}")
a("v_cmp_u_f32 vcc, v8, v8")
a("s_cbranch_vccz LE3OK")
retry("LE3", "LE3OK")
a.label("LE3OK")
stamp(7)
a("ds_write_b32 v58, v8")
a("v_lshlrev_b32 v8, 2, v1")
a(f"v_add_u32 v9, {FB}, v8")
a("s_lshl_b32 s45, s50, 6")
a(f"s_add_u32 s46, s45, {XB}")
a("v_lshlrev_b32 v8, 1, v1")
a("v_add_u32 v10, s46, v8")
a("s_waitcnt lgkmcnt(0)")
a("s_barrier")
a("s_cmp_eq_u32 s24, 0")
a("s_cbranch_scc0 LSTQ")
a("s_mov_b32 exec_hi, 0")
for w in range(4):
    a(f"ds_read_b32 v{12+w}, v9 offset:{128*w}")
a("ds_read_u16 v16, v10")
a("s_waitcnt lgkmcnt(0)")
a("v_lshlrev_b32 v16, 16, v16")
a("v_add_f32 v12, v12, v13")
a("v_add_f32 v14, v14, v15")
a("v_add_f32 v12, v12, v14")
bf16r(12, 12)
a("v_add_f32 v12, v12, v16")
a(f"v_mov_b32_dpp v13, v12 quad_perm:[1,1,3,3]{DPPM}")
a("v_cvt_pk_bf16_f32 v12, v12, v13")
a("s_mov_b32 exec_lo, 0x55555555")
a("s_cmp_eq_u32 s31, 0")
a("s_cbranch_scc0 LFINAL")
a("s_lshl_b32 s45, s50, 7")
a("s_add_u32 s45, s45, s39")
a(f"s_add_u32 s45, s45, {X4}")
a("buffer_store_dword v12, v8, s[12:15], s45 offen sc1")
a("s_mov_b64 exec, -1")
a("s_branch LSTQ")
a.label("LFINAL")
a("buffer_store_dword v12, v8, s[16:19], s45 offen")
a("s_mov_b64 exec, 1")
a("s_cmp_eq_u32 s50, 0")
a("s_cbranch_scc0 LNOEP")
a("v_mov_b32 v9, s29")
a("buffer_store_dword v9, v8, s[12:15], 0 offen sc1")
a.label("LNOEP")
a("s_mov_b64 exec, -1")
a.label("LSTQ")
stamp(8)
a("s_cmp_eq_u32 s31, 0")
a("s_cbranch_scc0 LDONE")
if OPT["npf"]:
    a("s_cmp_lt_u32 s27, 18")
    a("s_cbranch_scc1 LQ5")
    a("v_lshlrev_b32 v34, 7, v1")
    a("s_lshl_b32 s44, s26, 2")
    a("s_add_u32 s44, s44, s24")
    a("s_lshl_b32 s44, s44, 13")
    for n in range(OPT["npf"]):
        a(f"s_add_u32 s45, s44, {(4+n)*UNIT_STEP}")
        a(f"buffer_load_dword v35, v34, s[4:7], s45 offen{PFK}")
        a(f"buffer_load_dword v36, v34, s[8:11], s45 offen{PFV}")
a("s_cmp_ge_u32 s27, 24")
a("s_cbranch_scc0 LQ5")
qprep(X5)
a(f"s_add_u32 s44, s39, {X4}")
a("v_lshrrev_b32 v16, 2, v1")
a("v_lshlrev_b32 v16, 7, v16")
a("v_and_b32 v17, 3, v1")
a("v_lshl_add_u32 v16, v17, 4, v16")
for r in range(4):
    a(f"v_mov_b32 v{12+r}, 0")
a.label("LE4")
a("buffer_load_dwordx4 v[8:11], v16, s[12:15], s44 offen sc1")
a("s_mov_b64 exec, 0xff")
a("buffer_load_dwordx4 v[12:15], v16, s[12:15], s44 offen offset:2048 sc1")
a("s_mov_b64 exec, -1")
a("s_waitcnt vmcnt(0)")
a("v_max3_u32 v17, v8, v9, v10")
a("v_max3_u32 v18, v11, v12, v13")
a("v_max3_u32 v17, v17, v14, v15")
a("v_max_u32 v17, v17, v18")
a("v_cmp_eq_u32 vcc, -1, v17")
a("s_cbranch_vccz LE4OK")
retry("LE4", "LE4OK")
a.label("LE4OK")
stamp(9)
a("s_call_b64 s[36:37], LQSTAGE")
a.label("LQ5")
if STAMPS:
    a("s_memrealtime s[58:59]")
    a("s_waitcnt lgkmcnt(0)")
    a("s_mov_b32 s74, s58")
a("s_mov_b32 s31, 1")
a(f"s_add_u32 s39, s39, {LSTRIDE}")
a("s_mov_b64 s[48:49], 0")
a("s_atomic_add_x2 s[48:49], s[88:89], 16 glc")
a("s_getreg_b32 s47, hwreg(HW_REG_XCC_ID)")
a("s_bfe_u32 s47, s47, 0x10002")
a("s_add_u32 s88, s88, 4096")
a("s_addc_u32 s89, s89, 0")
a("s_mov_b32 s63, 0")
a("s_mov_b32 s98, 14")
a("s_mov_b32 s99, 8192")
a("s_waitcnt lgkmcnt(0)")
a("s_cmp_gt_i32 s48, 0")
a("s_cselect_b32 s61, 1, 0")
a("s_xor_b32 s61, s61, s47")
a("s_lshl_b32 s61, s61, 13")
a("s_xor_b32 s48, s48, s49")
a("s_cmp_lt_i32 s48, 0")
a("s_cselect_b32 s62, 8192, 0")
if OPT["wcl"]:
    a("s_lshl_b32 s48, s24, 13")
    a("s_and_b32 s48, s48, s62")
    a("s_xor_b32 s61, s61, s48")
a(f"s_mov_b32 s90, {TKI}")
tkreq()
loopconsts()
a(f"s_mov_b32 s96, {NP2}")
a("s_mov_b32 s91, 0")
a("s_mov_b32 s95, s97")
a("v_lshlrev_b32 v40, 2, v0")
a(f"v_add_u32 v40, {LSV}, v40")
a(f"ds_read_b32 v{VL}, v40")
qpoll_addr(X5)
a("s_waitcnt lgkmcnt(0)")
a("s_branch LQPOLL")

a.label("LQSTAGE")
a("ds_write_b128 v2, v[8:11]")
a("s_mov_b64 exec, 0xff")
a("ds_write_b128 v2, v[12:15] offset:1024")
a("s_mov_b64 exec, -1")
a("s_mov_b64 s[52:53], s[36:37]")
a("s_waitcnt lgkmcnt(1)")
a("s_call_b64 s[36:37], LLNG")
a("v_lshlrev_b32 v8, 2, v1")
a("v_mov_b32 v11, s29")
a(f"v_mov_b32_dpp v9, v60 quad_perm:[1,1,3,3]{DPPM}")
a("v_cvt_pk_bf16_f32 v10, v60, v9")
a("s_mov_b64 exec, 0x5555")
a("buffer_store_dwordx2 v[10:11], v8, s[12:15], s54 offen sc1")
a("s_mov_b64 exec, -1")
a("s_setpc_b64 s[52:53]")

a.label("LLNG")
lngemv()
a("s_setpc_b64 s[36:37]")

a.vq = qtags("R0") + qtags("R1") + qtags("R2")
for s in range(3):
    lp, lg, ln, lb, lx = (a.newlabel(x) for x in ("pool", "go", "noapp", "bonly", "next"))
    a.label(f"LRING{s}")
    a(f"s_mov_b32 s3, {s}")
    if OPT["hv"]:
        a(f"s_waitcnt vmcnt({OPT['hv']})")
    ticket_ready()
    a("s_cmp_ge_u32 s90, s55")
    a("s_cbranch_scc1 LRINGX")
    a("s_cmp_ge_u32 s101, s37")
    a("s_cbranch_scc1 LRINGX")
    a("s_cmp_lt_u32 s91, s92")
    a(f"s_cbranch_scc0 {lp}")
    a(f"v_readlane_b32 s32, v{VL}, s91")
    a("s_add_u32 s91, s91, 1")
    a(f"s_branch {lg}")
    a.label(lp)
    draw(s, f"LDRAINE{s}")
    a.label(lg)
    setaddr(32, 32)
    a("s_add_u32 s101, s101, 1")
    a(f"s_bitcmp1_b32 s95, {s}")
    a(f"s_cbranch_scc0 {lb}")
    unit("v", RING[s], f"R{s}", f"R{s}n")
    logt()
    q1 = [(t[0].rstrip("n"), t[1], t[2]) for t in a.vq]
    a(f"s_branch LRING{(s+1)%3}")
    a.label(lb)
    a(f"s_bitset1_b32 s95, {s}")
    for t in range(8):
        ldK("v", RING[s], t, "x")
    for t in range(8):
        ldV("v", RING[s], t, "x")
    a(f"s_branch LRING{(s+1)%3}")
    a.vq = q1
a.label("LRINGX")
for k in range(1, 10):
    a(f"s_cmp_eq_u32 s36, {k}")
    a(f"s_cbranch_scc1 LRET{k}")
a("s_branch LRET10")

for s in range(3):
    a.label(f"LDRAINE{s}")
    a("v_mov_b32 v48, 0")
    a("buffer_load_dword v49, v48, s[20:23], 0 offen sc1")
    a("s_mov_b32 s93, 0")
    a("s_bcnt1_i32_b32 s44, s97")
    a("s_sub_u32 s92, s94, s44")
    a(f"s_branch LDRAIN{s}")
for s in range(3):
    a.label(f"LDRAIN{s}")
    lsk = a.newlabel("dsk")
    a(f"s_bitcmp1_b32 s95, {s}")
    a(f"s_cbranch_scc0 {lsk}")
    unit_drain(RING[s])
    a.label(lsk)
    a("s_add_u32 s93, s93, 1")
    a("s_cmp_eq_u32 s93, 3")
    a("s_cbranch_scc1 LPASSEND")
a("s_branch LDRAIN0")

a.label("LDONE")
if OPT["padto"]:
    if OPT["padmin"]:
        a("s_mov_b32 s100, 0")
        a("s_atomic_add s100, s[84:85], 64 glc")
        a("s_waitcnt lgkmcnt(0)")
        a("s_not_b32 s100, s100")
    a.label("LPAD")
    a("s_memrealtime s[58:59]")
    a("s_waitcnt lgkmcnt(0)")
    a("s_sub_u32 s58, s58, s100")
    a(f"s_cmp_lt_u32 s58, {OPT['padto']*100}")
    a("s_cbranch_scc1 LPAD")
if STAMPS:
    a("s_memrealtime s[58:59]")
    a("s_waitcnt lgkmcnt(0)")
    a("s_mov_b32 s87, s58")
    a("s_lshl_b32 s44, s2, 2")
    a("s_add_u32 s44, s44, s24")
    a("s_lshl_b32 s44, s44, 7")
    a(f"s_add_u32 s44, s44, {STAMP_OFF}")
    a("v_mov_b32 v8, 0")
    a("s_mov_b64 exec, 1")
    for i in range(24):
        a(f"v_mov_b32 v9, s{64+i}")
        a(f"buffer_store_dword v9, v8, s[12:15], s44 offen offset:{4*i}")
    a("v_mov_b32 v9, s100")
    a("buffer_store_dword v9, v8, s[12:15], s44 offen offset:96")
    for i, r in enumerate((57, 92, 57, 57, 57, 94)):
        a(f"v_mov_b32 v9, s{r}")
        a(f"buffer_store_dword v9, v8, s[12:15], s44 offen offset:{100+4*i}")
    if OPT["dbgout"]:
        a("s_or_b32 s44, s2, s24")
        a("s_cmp_eq_u32 s44, 0")
        a("s_cbranch_scc0 LEND")
        for i, r in enumerate((64, 65, 66, 69, 70, 71, 72, 76, 77, 78, 81, 82, 83, 87)):
            a(f"s_sub_u32 s44, s{r}, s100")
            a("v_mov_b32 v9, s44")
            a(f"buffer_store_dword v9, v8, s[20:23], 0 offen offset:{4+4*i}")
    a("s_waitcnt vmcnt(0)")
a.label("LEND")
a("s_endpgm")

hdr = open("cdna_kernels/" + NAME + ".s.ref").read().split("\n")
top = [l for l in hdr if l.startswith(";") and "@launch" not in l]
out = "\n".join(top) + "\n"
out += f"; @launch grid=(256,1,1) block=(256,1,1) lds={LDS_SIZE}\n"
out += f""".amdgcn_target "amdgcn-amd-amdhsa--gfx950"
.text
.globl {NAME}_kernel
.p2align 8
.type {NAME}_kernel,@function
"""
out += a.text()
out += f""".section .rodata,"a"
.p2align 6
.amdhsa_kernel {NAME}_kernel
  .amdhsa_next_free_vgpr 512
  .amdhsa_next_free_sgpr 102
  .amdhsa_accum_offset 256
  .amdhsa_group_segment_fixed_size 0
  .amdhsa_kernarg_size 96
  .amdhsa_user_sgpr_count 2
  .amdhsa_user_sgpr_kernarg_segment_ptr 1
  .amdhsa_system_sgpr_workgroup_id_x 1
.end_amdhsa_kernel
"""
import re
if OPT["xl"]:
    out = re.sub(r"(buffer_load\S+ .*) sc1$", r"\1 sc0 sc1", out, flags=re.M)
if OPT["xs"]:
    out = re.sub(r"(buffer_store\S+ .*) sc1$", r"\1 sc0 sc1", out, flags=re.M)
open(sys.argv[1], "w").write(out)
```

```python
import sys, struct, math
from asmlib import Asm

NAME = "interleave_layers__gqa_block_cached__glu_gated_reglu__decode"
OPT = dict(stamps=0, p2rev=0, kvpol="nt", wpol="nt", wskip=0, vring="def", kring="nt", tfw=3, psleep=1, npf=0, thrp=80, pr=1110, eg=0, gv=8, xl=0, xs=0, padto=0, rn=1, rbal=1, hsw=0, sline=1, tk2=0, klate=1, wcl=0, hv=0, lv=0, alt=3, e1f=1, mixx=1, rot=0, padmin=0, cn=1, vote=1, avpol="def", forcecls=-1, dbgout=0, pfk="nt", pfv="def")
for arg in sys.argv[2:]:
    k, v = arg.split("=")
    OPT[k] = int(v) if v.lstrip("-").isdigit() else v
STAMPS = OPT["stamps"]
TKI = 2 if OPT["tk2"] else 1
KVPOL = "" if OPT["kvpol"] == "def" else " " + OPT["kvpol"]
WPOL = "" if OPT["wpol"] == "def" else " " + OPT["wpol"]
PFK = "" if OPT["pfk"] == "def" else " " + OPT["pfk"]
PFV = "" if OPT["pfv"] == "def" else " " + OPT["pfv"]


def f32(x):
    return "0x%08x" % struct.unpack("<I", struct.pack("<f", x))[0]


X0 = 0x1000
X5 = 0x9000
CTR = 0x11000
LB0 = 0x20000
LSTRIDE = 0xC0000
X1 = 0x0
X1S = 1280
X2 = 0x50000
X3 = 0x59000
X4 = 0xAA000
STAMP_OFF = 0x200000
WS_SIZE = 0x400000
RN = OPT["rn"]
NR = 14 - 2 * RN
NB = NR + 1
PB = 256 + 64 * NB
NP1 = 2048 - PB
TF = NP1 - OPT["tfw"] * 64
NP2 = 128 + TF // 2
THR0 = 32
THRS = (NP2 * OPT["thrp"] // 100 - THR0) // NB
WGU = 0
TS = 18432
WD = 73728
FB = 110592
HB = 111104
WO = 0
WOS = 8192
WQ = 49152
SA = 122880
CB1 = SA
CS1 = SA + 4096
XB = SA
OB = 127488
LSV = 128000
ONES = 129088
KL = 130304
LDS_SIZE = 163072

UNIT_STEP = 524288
DPPM = " row_mask:0xf bank_mask:0xf"
a = Asm()
stamp_n = [0]


def stamp(i):
    if not STAMPS:
        return
    a("s_memrealtime s[58:59]")
    a("s_waitcnt lgkmcnt(0)")
    lab = a.newlabel("st")
    a(f"s_mov_b32 s{64+12+i}, s58")
    a("s_cmp_eq_u32 s31, 0")
    a(f"s_cbranch_scc0 {lab}")
    a(f"s_mov_b32 s{64+i}, s58")
    a.label(lab)


def sstamp(reg):
    if True:
        return
    a("s_memrealtime s[58:59]")
    a("s_waitcnt lgkmcnt(0)")
    a(f"s_mov_b32 s{reg}, s58")


def logt():
    if STAMPS != 2:
        return
    a("s_memrealtime s[58:59]")
    a("s_waitcnt lgkmcnt(0)")
    a("s_mov_b32 m0, s93")
    a("s_add_u32 s93, s93, 1")
    a("s_min_u32 s93, s93, 63")
    a("v_writelane_b32 v51, s58, m0")


def R(kind, base, n=4):
    return f"{kind}[{base}:{base+n-1}]"


def srd(d, lo, hi, size):
    a(f"s_mov_b32 s{d}, s{lo}")
    a(f"s_and_b32 s{d+1}, s{hi}, 0xffff")
    a(f"s_mov_b32 s{d+2}, {size}")
    a(f"s_mov_b32 s{d+3}, 0x20000")


def srd_role(d, lo, hi, size):
    a(f"s_cselect_b32 s{d+2}, {size}, 0")
    a(f"s_mov_b32 s{d}, s{lo}")
    a(f"s_and_b32 s{d+1}, s{hi}, 0xffff")
    a(f"s_mov_b32 s{d+3}, 0x20000")


def ld(kind, reg, t, src, half, pol, tag):
    if OPT["lv"] and (t & 1) == 0:
        a(f"s_waitcnt vmcnt({OPT['lv']})")
    srd_, vo = {"K": ("s[4:7]", "v2"), "K2": ("s[60:63]", "v51"), "V": ("s[8:11]", "v3")}[src]
    a(f"buffer_load_dwordx4 {R(kind, reg+4*t)}, {vo}, {srd_}, s{32+2*half+(t>>2)} offen offset:{(t&3)*1024}{pol}", tag=tag)


VPOL = "" if OPT["vring"] == "def" else " nt"


def ldK(kind, base, t, tag):
    ld(kind, base, t, "K", 0, " nt", (tag, "K", t))


def ldV(kind, base, t, tag):
    ld(kind, base + 32, t, "V", 1, ("" if OPT["avpol"] == "def" else " nt") if kind == "a" else VPOL, (tag, "V", t))


def adv():
    for r in range(32, 36):
        a(f"s_add_u32 s{r}, s{r}, {UNIT_STEP}")


def setaddr(k, v):
    if v is not None:
        if OPT["hsw"]:
            a(f"s_or_b32 s34, s{v}, vcc_hi")
        elif v != 34:
            a(f"s_mov_b32 s34, s{v}")
        a("s_xor_b32 s35, s34, 4096")
    if k is not None:
        if OPT["hsw"]:
            a(f"s_or_b32 s32, s{k}, vcc_hi")
        elif k != 32:
            a(f"s_mov_b32 s32, s{k}")
        a("s_xor_b32 s33, s32, 4096")


def hswinit():
    if OPT["hsw"]:
        a("s_and_b32 vcc_hi, s24, 1")
        a("s_lshl_b32 vcc_hi, vcc_hi, 12")


def burst(kind, base, tag):
    for t in range(8):
        ldK(kind, base, t, tag)
    for t in range(8):
        ldV(kind, base, t, tag)
    adv()
    logt()


def waitq(tag, floor=0):
    if tag in a.vq:
        a.wait_vm(tag, floor)


def allreduce(op, v, t, first=0):
    steps = ["quad_perm:[1,0,3,2]", "quad_perm:[2,3,0,1]", "row_half_mirror", "row_mirror"]
    for s in steps[first:]:
        a(f"{op}_dpp v{v}, v{v}, v{v} {s}{DPPM}")
    rows(op, v, t)


def rows(op, v, t):
    a(f"v_mov_b32 v{t}, v{v}")
    a(f"v_permlane16_swap_b32 v{v}, v{t}")
    a(f"{op} v{v}, v{v}, v{t}")
    a(f"v_mov_b32 v{t}, v{v}")
    a(f"v_permlane32_swap_b32 v{v}, v{t}")
    a(f"{op} v{v}, v{v}, v{t}")


QE, QO, OA, MS, LS, NMC = 8, 12, 16, 20, 21, 22
DS_ = [24, 28, 32, 36]
TT = 40
TMP = 44


def unit2(K, V, kt=None, vt=None, rk=None, rv=None, hooks=None, tt=TT):
    if K is not None:
        if hooks:
            hooks[0]()
        for u in range(4):
            if kt:
                waitq(kt(2 * u + 1))
            d = R("v", DS_[u])
            a(f"v_mfma_f32_16x16x32_bf16 {d}, {R(K[0], K[1]+8*u)}, {R('v', QE)}, 0")
            a(f"v_mfma_f32_16x16x32_bf16 {d}, {R(K[0], K[1]+8*u+4)}, {R('v', QO)}, {d}")
            if rk:
                rk(2 * u)
                rk(2 * u + 1)
        order = [(0, 0), (1, 0), (2, 0), (0, 1), (1, 1), (2, 1), (0, 2), (1, 2), (3, 0), (2, 2), (0, 3), (3, 1),
                 (1, 3), (2, 3), (3, 2), None, (3, 3)]
        for o in order:
            if o is None:
                if V is not None:
                    a(f"v_max3_f32 v{TMP}, v{tt}, v{tt+1}, v{MS}")
                continue
            u, c = o
            qp = f"quad_perm:[{c},{c},{c},{c}]"
            if c == 0:
                a(f"v_mov_b32_dpp v{tt+u}, v{DS_[u]} {qp}{DPPM}")
            else:
                a(f"v_add_f32_dpp v{tt+u}, v{DS_[u]+c}, v{tt+u} {qp}{DPPM}")
    if V is None:
        return
    if K is None:
        a(f"v_max3_f32 v{TMP}, v{tt}, v{tt+1}, v{MS}")
    a(f"v_max3_f32 v{TMP}, v{TMP}, v{tt+2}, v{tt+3}")
    a(f"v_max_f32_dpp v{TMP}, v{TMP}, v{TMP} row_half_mirror{DPPM}")
    rows("v_max_f32", TMP, TMP + 1)
    a(f"v_sub_f32 v{TMP+1}, v{MS}, v{TMP}")
    a(f"v_mul_f32 v{TMP+1}, s30, v{TMP+1}")
    a(f"v_exp_f32 v{TMP+1}, v{TMP+1}")
    a(f"v_mov_b32 v{MS}, v{TMP}")
    a(f"v_mul_f32 v{NMC}, s30, v{TMP}")
    for u in range(4):
        a(f"v_fma_f32 v{tt+u}, v{tt+u}, s30, -v{NMC}")
    for u in range(4):
        a(f"v_exp_f32 v{tt+u}, v{tt+u}")
    a(f"v_mul_f32 v{LS}, v{LS}, v{TMP+1}")
    for r in range(4):
        a(f"v_mul_f32 v{OA+r}, v{OA+r}, v{TMP+1}")
    a(f"v_add_f32 v{TMP+2}, v{tt}, v{tt+1}")
    a(f"v_add_f32 v{TMP+3}, v{tt+2}, v{tt+3}")
    for u in range(4):
        a(f"v_cvt_pk_bf16_f32 v{tt+u}, v{tt+u}, v{tt+u}")
    a(f"v_add_f32 v{TMP+2}, v{TMP+2}, v{TMP+3}")
    a(f"v_add_f32 v{LS}, v{LS}, v{TMP+2}")

    def buildB(t):
        b = DS_[t & 3]
        p = tt + (t >> 1)
        for i in range(4):
            own = (i < 2) == ((t & 1) == 0)
            if own:
                a(f"v_and_b32 v{b+i}, v{p}, v{4+i}")
            else:
                sh = "row_shr:4" if (t & 1) == 0 else "row_shl:4"
                a(f"v_and_b32_dpp v{b+i}, v{p}, v{4+i} {sh}{DPPM} bound_ctrl:1")

    buildB(0)
    if hooks:
        hooks[1]()
    for t in range(8):
        if t + 1 < 8:
            buildB(t + 1)
        if vt:
            waitq(vt(t))
        a(f"v_mfma_f32_16x16x32_bf16 {R('v', OA)}, {R(V[0], V[1]+4*t)}, {R('v', DS_[t&3])}, {R('v', OA)}")
        if rv:
            rv(t)


def unit(kind, base, tag, reload_tag=None, hooks=None):
    rk = rv = None
    if reload_tag is not None:
        rk = lambda t: ldK(kind, base, t, reload_tag)
        rv = lambda t: ldV(kind, base, t, reload_tag)
    unit2((kind, base), (kind, base + 32), lambda t: (tag, "K", t), lambda t: (tag, "V", t), rk, rv, hooks)


probe_k = [0]


def probe(kind="V"):
    k = probe_k[0]
    probe_k[0] += 1
    srd_, base = ("s[8:11]", 55) if kind == "V" else ("s[4:7]", 96)
    for c in ((0, 1) if k & 1 else (1, 0)):
        a(f"s_add_u32 s50, s57, {(c ^ 1)*8192 + k*1152}")
        a("s_memtime s[52:53]")
        a("s_waitcnt lgkmcnt(0)")
        a(f"s_buffer_load_dword s51, {srd_}, s50")
        a("s_waitcnt lgkmcnt(0)")
        a("s_memtime s[50:51]")
        a("s_waitcnt lgkmcnt(0)")
        a("s_sub_u32 s50, s50, s52")
        a(f"s_min_u32 s{base+c}, s{base+c}, s50")


def qtags(tag):
    return [(tag, "K", t) for t in range(8)] + [(tag, "V", t) for t in range(8)]


RING = [64, 128, 192]


def bf16r(d, s):
    a(f"v_cvt_pk_bf16_f32 v{d}, v{s}, v{s}")
    a(f"v_and_b32 v{d}, 0xffff0000, v{d}")


def afrag_addr(v, base_sgpr=None, base=0):
    a(f"v_lshrrev_b32 v{v}, 4, v1")
    a(f"v_lshlrev_b32 v{v}, 4, v{v}")
    if base:
        a(f"v_add_u32 v{v}, {base}, v{v}")
    if base_sgpr is not None:
        a(f"v_add_u32 v{v}, s{base_sgpr}, v{v}")


def lng_addr():
    a("v_add_u32 v2, s44, v3")
    a("v_mov_b32 v57, s44")
    a(f"v_mov_b32 v58, {ONES}")
    a("s_mov_b32 s46, 0x00020002")
    a("s_mov_b32 s47, 0x00020002")
    a("v_cndmask_b32 v57, v57, v58, s[46:47]")
    a("v_lshrrev_b32 v58, 4, v1")
    a("v_lshl_add_u32 v57, v58, 4, v57")
    a("v_lshlrev_b32 v58, 3, v1")
    a("v_add_u32 v58, s45, v58")


def lngemv():
    S, nk, T, acc = 4, 18, 8, 60
    s, q, t, t2, one = 48, 49, 50, 51, 52
    f = []
    for i in range(8):
        f.append(f"v_dot2c_f32_bf16 v{s}, v{40+i}, v{one}")
        f.append(f"v_dot2c_f32_bf16 v{q}, v{40+i}, v{40+i}")
    f.append("s_nop 1")
    for st in ("quad_perm:[1,0,3,2]", "quad_perm:[2,3,0,1]", "row_half_mirror", "row_mirror"):
        f.append(f"v_add_f32_dpp v{s}, v{s}, v{s} {st}{DPPM}")
        f.append(f"v_add_f32_dpp v{q}, v{q}, v{q} {st}{DPPM}")
    f.append(f"v_permlane16_swap_b32 v{s}, v{q}")
    f.append(f"v_add_f32 v{s}, v{s}, v{q}")
    f.append(f"v_mov_b32 v{t}, v{s}")
    f.append(f"v_permlane32_swap_b32 v{s}, v{t}")
    f.append(f"v_add_f32 v{s}, v{s}, v{t}")
    f.append(f"v_mul_f32 v{s}, {f32(1.0/576)}, v{s}")
    f.append(f"v_mov_b32 v{q}, v{s}")
    f.append(f"v_permlane16_swap_b32 v{s}, v{q}")
    f.append(f"v_fma_f32 v{q}, -v{s}, v{s}, v{q}")
    f.append(f"v_max_f32 v{q}, 0, v{q}")
    f.append(f"v_cvt_pk_bf16_f32 v{q}, v{s}, v{q}")
    f.append(f"v_lshlrev_b32 v{s}, 16, v{q}")
    f.append(f"v_and_b32 v{q}, 0xffff0000, v{q}")
    for op in (f"v_add_f32 v{q}, {f32(1e-5)}, v{q}", f"v_sqrt_f32 v{q}, v{q}"):
        f.append(op)
        f.append(f"v_cvt_pk_bf16_f32 v{q}, v{q}, v{q}")
        f.append(f"v_and_b32 v{q}, 0xffff0000, v{q}")
    f.append(f"v_rcp_f32 v{q}, v{q}")

    def issue(kk):
        z = T + 8 * (kk % S)
        a(f"ds_read_b128 {R('v', z)}, v57 offset:{kk*64}")
        a(f"ds_read_b64_tr_b16 {R('v', z+4, 2)}, v58 offset:{kk*1024}")
        a(f"ds_read_b64_tr_b16 {R('v', z+6, 2)}, v58 offset:{kk*1024+512}")

    for r in range(4):
        a(f"v_mov_b32 v{44+r}, 0")
    a("ds_read_b128 v[40:43], v2")
    a("s_mov_b64 exec, 0xff")
    a("ds_read_b128 v[44:47], v2 offset:1024")
    a("s_mov_b64 exec, -1")
    for kk in range(S):
        issue(kk)
    a(f"v_mov_b32 v{s}, 0")
    a(f"v_mov_b32 v{q}, 0")
    a(f"v_mov_b32 v{one}, 0x3f803f80")
    per = -(-len(f) // (nk // 2 + 1))
    for kk in range(0, nk, 2):
        a(f"s_waitcnt lgkmcnt({3*(min(nk, kk+S)-kk-2)})")
        for k2 in (kk, kk + 1):
            z = T + 8 * (k2 % S)
            c = "0" if k2 == 0 else R("v", acc)
            a(f"v_mfma_f32_16x16x32_bf16 {R('v', acc)}, {R('v', z)}, {R('v', z+4)}, {c}")
        for k2 in (kk, kk + 1):
            if k2 + S < nk:
                issue(k2 + S)
        for _ in range(per):
            if f:
                a(f.pop(0))
    while f:
        a(f.pop(0))
    a(f"v_fma_f32 v60, -v{s}, v61, v60")
    a(f"v_mul_f32 v60, v60, v{q}")


def retry(lab_again, lab_done):
    a("s_cmp_eq_u32 s38, 0")
    a(f"s_cbranch_scc1 {lab_done}")
    a("s_sub_u32 s38, s38, 1")
    if OPT["psleep"]:
        a(f"s_sleep {OPT['psleep']}")
    a(f"s_branch {lab_again}")


def combine(CB, CS):
    a("v_lshlrev_b32 v8, 2, v0")
    a(f"v_add_u32 v8, {CB}, v8")
    a("s_lshr_b32 s44, s24, 1")
    a("s_lshl_b32 s44, s44, 5")
    a(f"s_add_u32 s44, s44, {CS}")
    a("v_mov_b32 v9, s44")
    a("ds_read_b128 v[12:15], v9")
    a("ds_read_b128 v[16:19], v9 offset:16")
    for w in range(4):
        a(f"ds_read_b32 v{20+w}, v8 offset:{w*1024}")
    a("s_waitcnt lgkmcnt(4)")
    a("v_max3_f32 v26, v12, v14, v16")
    a("v_max_f32 v26, v26, v18")
    for w in range(4):
        a(f"v_sub_f32 v{12+2*w}, v{12+2*w}, v26")
    for w in range(4):
        a(f"v_exp_f32 v{12+2*w}, v{12+2*w}")
    a("v_mul_f32 v27, v13, v12")
    for w in range(1, 4):
        a(f"v_fmac_f32 v27, v{13+2*w}, v{12+2*w}")
    a("s_waitcnt lgkmcnt(0)")
    a("v_mul_f32 v24, v20, v12")
    for w in range(1, 4):
        a(f"v_fmac_f32 v24, v{20+w}, v{12+2*w}")


def qpoll_issue():
    a("buffer_load_dwordx4 v[24:27], v32, s[12:15], s45 offen sc1", tag="qp")
    a("buffer_load_dwordx4 v[28:31], v32, s[12:15], s45 offen offset:16 sc1", tag="qp")


def qpoll_addr(xoff):
    a("s_lshl_b32 s45, s25, 11")
    a(f"s_add_u32 s45, s45, {xoff}")
    a("v_bfe_u32 v32, v1, 3, 1")
    a("v_lshlrev_b32 v32, 10, v32")
    a("v_lshrrev_b32 v33, 4, v1")
    a("v_lshl_add_u32 v32, v33, 8, v32")
    a("v_bfe_u32 v33, v1, 1, 1")
    a("v_lshl_add_u32 v32, v33, 7, v32")
    a("v_and_b32 v33, 1, v1")
    a("v_lshl_add_u32 v32, v33, 5, v32")


def qpoll_check():
    a("v_cmp_ne_u32 s[46:47], s29, v25")
    a("v_cmp_ne_u32 s[48:49], s29, v27")
    a("v_cmp_ne_u32 s[50:51], s29, v29")
    a("v_cmp_ne_u32 s[52:53], s29, v31")
    a("s_or_b64 s[46:47], s[46:47], s[48:49]")
    a("s_or_b64 s[50:51], s[50:51], s[52:53]")
    a("s_or_b64 s[46:47], s[46:47], s[50:51]")


VL = 50


def unit_drain(base):
    def pwait(last):
        labs = [a.newlabel("dw") for _ in range(RN - 1)]
        for p in range(RN - 1):
            a(f"s_cmp_eq_u32 s93, {p}")
            a(f"s_cbranch_scc1 {labs[p]}")
        a(f"s_waitcnt vmcnt({last})")
        for p in reversed(range(RN - 1)):
            a.label(labs[p])
            a(f"s_waitcnt vmcnt({last + 16*(RN-1-p)})")
    a.vq = []
    unit("v", base, "none", None, hooks=(lambda: pwait(9), lambda: pwait(1)))


def kloc(i):
    return ("a", 32 * i) if i < 8 else ("v", 64 + 64 * RN + 32 * (i - 8))


def swapreduce(b):
    a(f"v_permlane32_swap_b32 v{b}, v{b+1}")
    a(f"v_permlane32_swap_b32 v{b+2}, v{b+3}")
    a(f"v_add_f32 v{b}, v{b}, v{b+1}")
    a(f"v_add_f32 v{b+2}, v{b+2}, v{b+3}")
    a(f"v_permlane16_swap_b32 v{b}, v{b+2}")
    a(f"v_add_f32 v{b}, v{b}, v{b+2}")


def kofs():
    a("v_bfe_u32 v40, v1, 2, 2")
    a("v_lshlrev_b32 v2, 8, v40")
    a("v_lshrrev_b32 v40, 4, v1")
    a("v_lshl_add_u32 v2, v40, 6, v2")
    a("v_and_b32 v40, 3, v1")
    a("v_lshl_add_u32 v2, v40, 4, v2")


def masks():
    a("v_and_b32 v40, 1, v1")
    a("v_lshlrev_b32 v40, 4, v40")
    a("v_mov_b32 v41, 0xffff")
    a("v_lshlrev_b32 v40, v40, v41")
    for i in range(4):
        m = 0x03030303 << (2 * i)
        a(f"s_mov_b32 s46, 0x{m:08x}")
        a(f"s_mov_b32 s47, 0x{m:08x}")
        a(f"v_cndmask_b32 v{4+i}, 0, v40, s[46:47]")


def loopconsts():
    kofs()
    masks()


def qprep(xoff):
    a("s_mul_i32 s44, s24, 1152")
    a(f"s_add_u32 s44, s44, {XB}")
    a(f"s_mul_i32 s45, s24, {TS}")
    a(f"s_add_u32 s45, s45, {WQ}")
    lng_addr()
    a("s_lshl_b32 s54, s28, 3")
    a("s_add_u32 s54, s54, s27")
    a("s_sub_u32 s54, s54, 24")
    a("s_lshl_b32 s54, s54, 2")
    a("s_add_u32 s54, s54, s24")
    a("s_lshl_b32 s54, s54, 7")
    a(f"s_add_u32 s54, s54, {xoff}")


def ones_init():
    for r in range(4):
        a(f"v_mov_b32 v{16+r}, 0x3f803f80")
    a(f"v_add_u32 v20, {ONES}, v3")
    a("ds_write_b128 v20, v[16:19]")
    a("s_mov_b64 exec, 0xff")
    a("ds_write_b128 v20, v[16:19] offset:1024")
    a("s_mov_b64 exec, -1")


a.raw(f"{NAME}_kernel:")
a("s_cmp_ge_u32 s2, 256")
a("s_cbranch_scc1 LEND")
if STAMPS or OPT["padto"]:
    a("s_memrealtime s[100:101]")
a("s_load_dwordx16 s[64:79], s[0:1], 0")
a("s_load_dwordx8 s[80:87], s[0:1], 64")
a("v_and_b32 v1, 63, v0")
a("v_lshrrev_b32 v40, 6, v0")
a("v_readfirstlane_b32 s24, v40")
a("s_and_b32 s28, s2, 7")
if OPT["rbal"]:
    a("s_lshr_b32 s27, s2, 4")
    a("s_and_b32 s44, s2, 15")
    a("s_lshl_b32 s44, s44, 1")
    a("s_add_u32 s27, s27, s44")
else:
    a("s_lshr_b32 s27, s2, 3")
    a("s_lshl_b32 s44, s28, 2")
    a("s_add_u32 s27, s27, s44")
a("s_and_b32 s27, s27, 31")
a("s_lshr_b32 s25, s2, 4")
a("s_and_b32 s26, s2, 15")
a(f"s_mov_b32 s30, {f32(math.log2(math.e)/math.sqrt(128.0))}")
a("s_mov_b32 s31, 0")
a("s_mov_b32 s38, 400000")
a(f"s_mov_b32 s39, {LB0}")
a("s_mov_b32 s42, 0xf0f0f0f0")
a("s_mov_b32 s43, 0xf0f0f0f0")
a("s_lshl_b32 s44, s26, 2")
a("s_add_u32 s44, s44, s24")
a("s_lshl_b32 s32, s44, 13")
hswinit()
setaddr(32, 32)
a("s_lshl_b32 s57, s44, 14")
a(f"s_add_u32 s57, s57, {1920*8192}")
a("s_mov_b32 s55, -1")
a("s_mov_b32 s56, -1")
a("s_mov_b32 s96, -1")
a("s_mov_b32 s97, -1")
a("v_lshlrev_b32 v3, 4, v1")
kofs()
a("s_waitcnt lgkmcnt(0)")
a("s_load_dword s29, s[86:87], 0")
if OPT["padmin"]:
    a("s_not_b32 s101, s100")
    a("s_atomic_umax s101, s[84:85], 64")
a("s_lshl_b32 s44, s25, 24")
a("s_add_u32 s4, s66, s44")
a("s_addc_u32 s5, s67, 0")
a("s_and_b32 s5, s5, 0xffff")
a("s_mov_b32 s6, 0x1000000")
a("s_mov_b32 s7, 0x20000")
a("s_add_u32 s8, s68, s44")
a("s_addc_u32 s9, s69, 0")
a("s_and_b32 s9, s9, 0xffff")
a("s_mov_b32 s10, 0x1000000")
a("s_mov_b32 s11, 0x20000")
srd(12, 86, 87, WS_SIZE)
a("s_cmp_ge_u32 s27, 24")
a("s_cbranch_scc0 LPRO1")
srd(60, 64, 65, 1152)
srd(92, 70, 71, 0 if OPT["wskip"] & 8 else 576 * 8192)
a("v_lshrrev_b32 v41, 3, v1")
a("v_lshlrev_b32 v40, 13, v41")
a("v_and_b32 v42, 7, v1")
a("v_lshl_add_u32 v40, v42, 4, v40")
a("s_lshl_b32 s46, s28, 3")
a("s_add_u32 s46, s46, s27")
a("s_sub_u32 s46, s46, 24")
a("s_lshl_b32 s44, s46, 7")
a(f"s_mul_i32 s45, s24, {144*8192}")
a("s_add_u32 s44, s44, s45")
for i in range(18):
    a(f"buffer_load_dwordx4 {R('v', 64+4*i)}, v40, s[92:95], s44 offen{WPOL}")
    a("s_add_u32 s44, s44, 65536")
a("buffer_load_dwordx4 v[8:11], v3, s[60:63], 0 offen")
a("buffer_load_dwordx4 v[12:15], v3, s[60:63], 0 offen offset:1024")
a("s_and_b32 s44, s46, 3")
a("s_or_b32 s44, s44, s24")
a("s_cmp_eq_u32 s44, 0")
a("s_cbranch_scc0 LPRO0")
a("v_and_b32 v40, 1, v1")
a("v_lshlrev_b32 v40, 12, v40")
a("v_bfe_u32 v43, v1, 1, 1")
a("v_lshl_add_u32 v40, v43, 13, v40")
a("v_lshrrev_b32 v43, 2, v1")
a("v_lshl_add_u32 v40, v43, 4, v40")
a("v_mov_b32 v36, 0\nv_mov_b32 v37, 0\nv_mov_b32 v38, 0\nv_mov_b32 v39, 0")
a("s_lshl_b32 s44, s46, 6")
a(f"s_add_u32 s44, s44, {CTR}")
a("s_mov_b64 exec, 0xff")
a("buffer_store_dwordx4 v[36:39], v40, s[12:15], s44 offen sc1")
a("s_mov_b64 exec, -1")
a.label("LPRO0")
a("v_lshrrev_b32 v40, 1, v42")
a(f"v_mul_u32_u24 v40, {TS}, v40")
a("v_and_b32 v43, 3, v41")
a("v_lshl_add_u32 v40, v43, 5, v40")
a("v_lshrrev_b32 v43, 2, v41")
a("v_lshl_add_u32 v40, v43, 9, v40")
a("v_and_b32 v42, 1, v42")
a("v_lshl_add_u32 v40, v42, 4, v40")
for k, reg in ((0, 41), (2, 42)):
    a("s_mul_i32 s44, s24, 18")
    a(f"s_add_u32 s44, s44, {k}")
    a("s_lshr_b32 s45, s44, 2")
    a("s_lshl_b32 s45, s45, 10")
    a("s_and_b32 s44, s44, 3")
    a("s_lshl_b32 s44, s44, 7")
    a("s_add_u32 s44, s44, s45")
    a(f"s_add_u32 s44, s44, {WQ}")
    a(f"v_add_u32 v{reg}, s44, v40")
ones_init()
a("s_waitcnt vmcnt(0) lgkmcnt(0)")
a("s_mul_i32 s29, s29, 0x9e3779b1")
a("s_add_u32 s29, s29, 0x7f4a7c15")
for i in range(18):
    a(f"ds_write_b128 v{41 + ((i>>1)&1)}, {R('v', 64+4*i)} offset:{(i>>2)*1024+(i&1)*128}")
a("s_waitcnt lgkmcnt(0)")
a("s_barrier")
qprep(X0)
a("s_call_b64 s[36:37], LQSTAGE")
kofs()
a("s_branch LPRO2")
a.label("LPRO1")
a("s_waitcnt lgkmcnt(0)")
ones_init()
a("s_mul_i32 s29, s29, 0x9e3779b1")
a("s_add_u32 s29, s29, 0x7f4a7c15")
a.label("LPRO2")
if STAMPS == 2:
    a("v_mov_b32 v51, 0")
    a("s_mov_b32 s93, 0")
sstamp(55)
a.vq = []
burst("a", 0, "A0")
a("s_cmp_eq_u32 s24, 0")
a("s_cbranch_scc0 LPRO3")
a("v_mov_b32 v24, -1\nv_mov_b32 v25, -1\nv_mov_b32 v26, -1\nv_mov_b32 v27, -1")
a("s_mul_i32 s44, s2, 6144")
a(f"s_add_u32 s44, s44, {LB0}")
a("s_add_u32 s45, s44, 4096")
keep = list(a.vq)
for i in range(6):
    a(f"buffer_store_dwordx4 v[24:27], v3, s[12:15], s{44+(i>>2)} offen offset:{1024*(i&3)} sc1")
a.vq = keep
a.label("LPRO3")
srd(16, 82, 83, 1152)
srd(20, 84, 85, 256)
masks()
a("s_lshl_b32 s44, s25, 8")
a(f"s_add_u32 s44, s44, {CTR}")
a("s_add_u32 s88, s86, s44")
a("s_addc_u32 s89, s87, 0")
sstamp(56)
keep = list(a.vq)
a("s_cmp_lt_u32 s27, 18")
a("s_cbranch_scc0 LWB")
srd(60, 76, 77, 0 if OPT["wskip"] & 2 else 576 * 9216)
srd(92, 78, 79, 0 if OPT["wskip"] & 2 else 576 * 9216)
a("v_lshrrev_b32 v41, 2, v1")
a("v_and_b32 v42, 3, v1")
a("v_mul_u32_u24 v40, 9216, v41")
a("v_lshl_add_u32 v40, v42, 4, v40")
a("s_mul_i32 s46, s28, 18")
a("s_add_u32 s46, s46, s27")
a("s_lshl_b32 s44, s46, 6")
a(f"s_mul_i32 s45, s24, {144*9216}")
a("s_add_u32 s44, s44, s45")
for i in range(9):
    a(f"buffer_load_dwordx4 {R('v', 64+8*i)}, v40, s[60:63], s44 offen{WPOL}")
    a(f"buffer_load_dwordx4 {R('v', 68+8*i)}, v40, s[92:95], s44 offen{WPOL}")
    a(f"s_add_u32 s44, s44, {16*9216}")
a(f"v_mul_u32_u24 v43, {TS}, v42")
a("v_and_b32 v42, 3, v41")
a("v_lshl_add_u32 v43, v42, 5, v43")
a("v_bfe_u32 v42, v41, 2, 1")
a("v_lshl_add_u32 v43, v42, 9, v43")
a("v_lshrrev_b32 v42, 3, v41")
a("v_lshl_add_u32 v43, v42, 7, v43")
for k, reg in ((1, 34), (0, 43)):
    a("s_mul_i32 s44, s24, 9")
    a(f"s_add_u32 s44, s44, {k}")
    a("s_lshr_b32 s45, s44, 1")
    a("s_lshl_b32 s45, s45, 10")
    a("s_and_b32 s44, s44, 1")
    a("s_lshl_b32 s44, s44, 8")
    a("s_add_u32 s44, s44, s45")
    a(f"v_add_u32 v{reg}, s44, v43")
srd(60, 80, 81, 0 if OPT["wskip"] & 4 else 4608 * 1152)
a(f"s_mul_i32 s44, s46, {32*1152}")
a("s_mul_i32 s45, s24, 9216")
a("s_add_u32 s44, s44, s45")
a("s_add_u32 s45, s44, 4096")
a("s_add_u32 s46, s44, 8192")
for i in range(9):
    a(f"buffer_load_dwordx4 {R('v', 136+4*i)}, v3, s[60:63], s{44+(i>>2)} offen offset:{(i&3)*1024}{WPOL}")
a("s_branch LWDONE")
a.label("LWB")
a("s_cmp_lt_u32 s27, 30")
a("s_cbranch_scc0 LWDONE")
srd(60, 72, 73, 0 if OPT["wskip"] & 1 else 4096 * 1152)
a("v_lshrrev_b32 v41, 4, v1")
a("v_and_b32 v42, 15, v1")
a("v_mul_u32_u24 v40, 1152, v41")
a("v_lshl_add_u32 v40, v42, 4, v40")


def brole():
    a("s_sub_u32 s47, s27, 18")
    a("s_lshl_b32 s46, s28, 1")
    a("s_cmp_ge_u32 s47, 6")
    a("s_addc_u32 s46, s46, 0")
    a("s_cmp_ge_u32 s47, 6")
    a("s_cselect_b32 s48, 6, 0")
    a("s_sub_u32 s47, s47, s48")


brole()
a("s_lshl_b32 s44, s46, 8")
a("s_lshl_b32 s45, s24, 6")
a("s_add_u32 s44, s44, s45")
a("s_mul_i32 s44, s44, 1152")
a("s_mul_i32 s45, s47, 192")
a("s_add_u32 s44, s44, s45")
a("s_mov_b32 exec_lo, 0x0fff0fff")
a("s_mov_b32 exec_hi, 0x0fff0fff")
for i in range(16):
    a(f"buffer_load_dwordx4 {R('v', 64+4*i)}, v40, s[60:63], s44 offen{WPOL}")
    a(f"s_add_u32 s44, s44, {4*1152}")
a("s_mov_b64 exec, -1")
a("v_lshrrev_b32 v43, 1, v42")
a(f"v_mul_u32_u24 v43, {WOS}, v43")
a("v_lshl_add_u32 v43, v41, 5, v43")
a("v_and_b32 v42, 1, v42")
a("v_lshl_add_u32 v43, v42, 4, v43")
a("s_lshl_b32 s45, s24, 11")
a("v_add_u32 v43, s45, v43")
a.label("LWDONE")
a.vq = keep
sstamp(57)
PR = str(OPT["pr"]).zfill(4)
for _ in range(int(PR[0])):
    probe()
a.wait_vm_n(30)
burst("a", 64, "A1")
for _ in range(int(PR[1])):
    probe()
a.wait_vm_n(30)
burst("a", 128, "A2")
for _ in range(int(PR[2])):
    probe()
qpoll_addr(X0)
a.wait_vm_n(40)
qpoll_issue()
burst("a", 192, "A3")
for _ in range(int(PR[3])):
    probe()
if not OPT["klate"]:
    probe("K")
a.wait_vm_n(50)
a("s_cmp_lt_u32 s27, 18")
a("s_cbranch_scc0 LWB2")
for i in range(9):
    a(f"ds_write_b128 v{34 if i & 1 else 43}, {R('v', 64+8*i)} offset:{(i>>1)*1024}")
    a(f"ds_write_b128 v{34 if i & 1 else 43}, {R('v', 68+8*i)} offset:{(i>>1)*1024+16}")
a("s_mul_i32 s44, s24, 9216")
a(f"s_add_u32 s44, s44, {WD}")
a("v_add_u32 v40, s44, v3")
for i in range(9):
    a(f"ds_write_b128 v40, {R('v', 136+4*i)} offset:{i*1024}")
a("s_branch LWDONE2")
a.label("LWB2")
a("s_cmp_lt_u32 s27, 30")
a("s_cbranch_scc0 LWDONE2")
a("s_mov_b32 exec_lo, 0x0fff0fff")
a("s_mov_b32 exec_hi, 0x0fff0fff")
for i in range(16):
    a(f"ds_write_b128 v43, {R('v', 64+4*i)} offset:{(i&1)*512+((i>>1)&3)*128+(i>>3)*1024}")
a("s_mov_b64 exec, -1")
a.label("LWDONE2")
a(f"v_mov_b32 v{VL}, 0")
a("s_mov_b32 s91, 0")
a("s_mov_b32 s92, 0")
a("s_mov_b32 s94, 0")
a("s_mov_b32 s95, 7")
a("s_waitcnt lgkmcnt(0)")
a.wait_vm("qp")
if STAMPS:
    a("s_memrealtime s[58:59]")
    a("s_waitcnt lgkmcnt(0)")
    a("s_mov_b32 s75, s58")
qpoll_check()
a("s_cbranch_scc0 LQREADY")

a.label("LQPOLL")
qpoll_issue()
a("s_waitcnt vmcnt(0)")
qpoll_check()
a("s_cbranch_scc0 LQREADY")
retry("LQPOLL", "LQREADY")
a.label("LQREADY")
hswinit()
for i in range(4):
    a(f"v_cndmask_b32 v{QE+i}, v{24+2*i}, 0, s[42:43]")
    a(f"v_cndmask_b32 v{QO+i}, 0, v{24+2*i}, s[42:43]")
for r in range(4):
    a(f"v_mov_b32 v{OA+r}, 0")
a(f"v_mov_b32 v{MS}, {f32(-1e30)}")
a(f"v_mov_b32 v{LS}, 0")
stamp(0)
a("s_cmp_eq_u32 s31, 0")
a("s_cbranch_scc0 LP2")
if OPT["vote"]:
    a("s_getreg_b32 s47, hwreg(HW_REG_XCC_ID)")
    a("s_bfe_u32 s47, s47, 0x10002")
    for d, (x, y) in ((44, (55, 56)),) if OPT["klate"] else ((48, (96, 97)), (44, (55, 56))):
        a(f"s_sub_i32 s{d}, s{x}, s{y}")
        a(f"s_min_i32 s{d}, s{d}, 300")
        a(f"s_max_i32 s{d}, s{d}, -300")
        a(f"s_sub_i32 s45, 0, s{d}")
        a("s_cmp_eq_u32 s47, 0")
        a(f"s_cselect_b32 s{d}, s{d}, s45")
    a("s_mov_b32 s46, s44")
    a("s_atomic_add s46, s[88:89], 16 glc")
    if not OPT["klate"]:
        a("s_atomic_add s48, s[88:89], 20")
    a(f"s_mov_b32 s90, {TKI}")
    a("s_atomic_add s90, s[88:89], 0 glc")
    a("s_waitcnt lgkmcnt(0)")
    a("s_add_i32 s44, s44, s46")
    a("s_cmp_gt_i32 s44, 0")
    a("s_cselect_b32 s44, 1, 0")
    a("s_xor_b32 s44, s44, s47")
else:
    a("s_cmp_gt_u32 s55, s56")
    a("s_cselect_b32 s44, 1, 0")
if OPT["forcecls"] == 2:
    a("s_xor_b32 s44, s44, 1")
a("s_lshl_b32 s45, s44, 2")
a("s_add_u32 s45, s45, 4")
a("s_mov_b32 s46, 1")
a("s_atomic_add s46, s[88:89], s45 glc")
a("s_mov_b32 s61, 0")
a("s_mov_b32 s62, 0")
a("s_mov_b32 s63, 1")
a("s_mov_b32 s98, 13")
a("s_mov_b32 s99, 0")
a(f"s_mov_b32 s96, {NP1}")
a("s_waitcnt lgkmcnt(0)")
a("s_cmp_lt_u32 s46, 32")
a("s_cbranch_scc1 LBUN")
a("s_xor_b32 s44, s44, 1")
a("s_xor_b32 s45, s45, 12")
a("s_mov_b32 s46, 1")
a("s_atomic_add s46, s[88:89], s45 glc")
a("s_waitcnt lgkmcnt(0)")
a.label("LBUN")
a("s_lshl_b32 s57, s46, 1")
a("s_add_u32 s57, s57, s44")
a("s_add_u32 s57, s57, 256")
a("s_lshl_b32 s57, s57, 13")
a("s_mov_b32 s55, -1")
a("s_mov_b32 s37, -1")
a(f"s_mov_b32 s56, {PB}")
a("s_mov_b32 s60, 0")
a(f"s_mov_b32 s54, {TF}")
a("s_mov_b32 s36, 0")
a("s_mov_b32 s101, 0")
a("s_mov_b32 s97, 0")
a("s_mov_b32 s41, 0")
a("s_cmp_eq_u32 s24, 0")
a("s_cbranch_scc0 LNOCNT")
a("s_mov_b32 s48, 1")
a("s_atomic_add s48, s[84:85], 0")
a.label("LNOCNT")
a.vq = qtags("A3")


def tkreq():
    if OPT["sline"]:
        a("s_lshr_b32 s59, s61, 11")
        a("s_atomic_add s90, s[88:89], s59 glc")
    else:
        a("s_atomic_add s90, s[88:89], s61 glc")


def xaddr(reg, i):
    a(f"s_add_u32 s{reg}, s57, {i*UNIT_STEP}")
    if (1 + (i >> 2)) & 1:
        a(f"s_xor_b32 s{reg}, s{reg}, 8192")


def baddr(i):
    xaddr(32, 2 * i)
    xaddr(34, 2 * i + 1)
    setaddr(32, 34)


def draw(s, exhausted):
    ln, lg, lo = a.newlabel("noapp"), a.newlabel("go"), a.newlabel("tok")
    a("s_cmp_lt_u32 s90, s96")
    a(f"s_cbranch_scc1 {lo}")
    a("s_cmp_lg_u32 s63, 0")
    a(f"s_cbranch_scc1 {exhausted}")
    a("s_add_u32 s63, s63, 1")
    a("s_mov_b32 s62, 0")
    a("s_xor_b32 s61, s61, 8192")
    a(f"s_mov_b32 s90, {TKI}")
    tkreq()
    a("s_waitcnt lgkmcnt(0)")
    a("s_cmp_lt_u32 s90, s96")
    a(f"s_cbranch_scc0 {exhausted}")
    a.label(lo)
    a("s_cmp_ge_u32 s90, s60")
    a("s_cselect_b32 s32, s56, 0")
    a("s_add_u32 s32, s32, s90")
    a("s_lshl_b32 s33, s32, 6")
    a("s_xor_b32 s33, s33, s61")
    a("s_and_b32 s33, s33, s99")
    a("s_lshl_b32 s32, s32, s98")
    a("s_add_u32 s32, s32, s33")
    a(f"s_bitset0_b32 s97, {s}")
    a("s_cmp_ge_u32 s90, s54")
    a(f"s_cbranch_scc0 {ln}")
    a(f"s_bitset1_b32 s97, {s}")
    a("s_mov_b32 m0, s94")
    a("s_nop 0")
    a(f"v_writelane_b32 v{VL}, s32, m0")
    a("s_add_u32 s94, s94, 1")
    a("s_cmp_lt_u32 s94, 60")
    a(f"s_cbranch_scc1 {ln}")
    if OPT["tk2"]:
        a("s_bitcmp0_b32 s90, 0")
        a(f"s_cbranch_scc1 {ln}")
    a("s_mov_b32 s90, 0x7fffffff")
    a("s_add_u32 s63, s63, 1")
    a(f"s_branch {lg}")
    a.label(ln)
    if OPT["tk2"]:
        a("s_add_u32 s90, s90, 1")
        a("s_bitcmp1_b32 s90, 0")
        a(f"s_cbranch_scc1 {lg}")
    a("s_xor_b32 s61, s61, s62")
    if OPT["eg"]:
        a(f"s_add_u32 s90, s90, {OPT['eg']}")
        a("s_cmp_ge_u32 s90, s96")
        a("s_cselect_b32 s41, 1, 0")
        a(f"s_cbranch_scc1 {lg}")
    a(f"s_mov_b32 s90, {TKI}")
    tkreq()
    a.label(lg)


def ticket_ready():
    if OPT["eg"]:
        lk = a.newlabel("tk")
        a("s_cmp_eq_u32 s41, 0")
        a(f"s_cbranch_scc1 {lk}")
        a(f"s_waitcnt vmcnt({OPT['gv']})")
        a("s_sub_u32 s41, s41, 1")
        a(f"s_mov_b32 s90, {TKI}")
        tkreq()
        a.label(lk)
    a("s_waitcnt lgkmcnt(0)")


def abody(i, xslot=None):
    baddr(i)

    def rl(hf, t):
        if xslot is not None:
            ld("v", RING[xslot] + 32 * hf, t, "V", hf, VPOL, ("X", 2 * i + hf, t))
        ld("a", 64 * i + 32 * hf, t, "K", hf, " nt", ("BK", 2 * i + hf, t))
    a.wait_vm_n(31)
    unit2(("a", 64 * i), ("a", 64 * i + 32), lambda t: (f"A{i}", "K", t), lambda t: (f"A{i}", "V", t),
          lambda t: rl(0, t), lambda t: rl(1, t))
    logt()


def kburst(i):
    baddr(i)
    a.wait_vm_n(47)
    for hf in range(2):
        k = kloc(2 * i + hf)
        for t in range(8):
            ld(k[0], k[1], t, "K", hf, " nt", ("BK", 2 * i + hf, t))


def dbody(d, slot, nxt):
    sl = RING[slot]
    if nxt[0] == "X":
        j = nxt[1]
        baddr(j)
        rka = lambda t: ld("v", sl, t, "V", 0, VPOL, ("X", 2 * j, t))
        rkb = lambda t: ld("v", sl + 32, t, "V", 1, VPOL, ("X", 2 * j + 1, t))
    else:
        if nxt == "L":
            xaddr(32, NR)
        else:
            le, lc = a.newlabel("dex"), a.newlabel("dco")
            ticket_ready()
            draw(slot, le)
            a(f"s_branch {lc}")
            a.label(le)
            a(f"s_bitset0_b32 s95, {slot}")
            a("s_mov_b32 s32, 0x1000000")
            a.label(lc)
        setaddr(32, 32)
        rka = lambda t: ldK("v", sl, t, nxt)
        rkb = lambda t: ldV("v", sl, t, nxt)
    a.wait_vm_n(47)
    unit2(kloc(2 * d), ("v", sl), lambda t: ("BK", 2 * d, t), lambda t: ("X", 2 * d, t), None, rka)
    unit2(kloc(2 * d + 1), ("v", sl + 32), lambda t: ("BK", 2 * d + 1, t), lambda t: ("X", 2 * d + 1, t), None, rkb)
    logt()


if RN == 3:
    abody(0, 0), abody(1, 1), abody(2, 2), abody(3)
    dbody(0, 0, ("X", 3)), dbody(1, 1, "L"), dbody(2, 2, "P"), dbody(3, 0, "P")
    LSLOT = 1
elif RN == 2:
    abody(0, 0), abody(1, 1)
    dbody(0, 0, ("X", 2)), abody(2), dbody(1, 1, ("X", 3)), abody(3), kburst(4)
    dbody(2, 0, ("X", 4)), dbody(3, 1, "L"), dbody(4, 0, "P")
    LSLOT = 1
else:
    abody(0, 0), abody(1, 1), abody(2, 2), abody(3)
    dbody(0, 0, ("X", 3))
    for d, slot, j in ((1, 1, 4), (2, 2, 5)):
        baddr(j)
        a.wait_vm_n(47)
        for hf in range(2):
            unit2(kloc(2 * d + hf), ("v", RING[slot] + 32 * hf), lambda t: ("BK", 2 * d + hf, t), lambda t: ("X", 2 * d + hf, t), None,
                  lambda t: ld("v", RING[slot] + 32 * hf, t, "K", hf, " nt", ("BK", 2 * j + hf, t)))
        if d == 1:
            dbody(3, 0, ("X", 4))
    dbody(4, 0, ("X", 5)), dbody(5, 0, "L")
    LSLOT = 0
a("s_lshl_b32 s44, s24, 13")
a(f"s_add_u32 s44, s44, {KL}")
a("v_add_u32 v40, s44, v3")
if OPT["klate"]:
    a("s_lshl_b32 s44, s26, 2")
    a("s_add_u32 s44, s44, s24")
    a("s_lshl_b32 s44, s44, 14")
    a("s_getreg_b32 s47, hwreg(HW_REG_XCC_ID)")
    a("s_bfe_u32 s47, s47, 0x10002")
    a("s_waitcnt lgkmcnt(0)")
    for c in (0, 1, 0):
        a(f"s_add_u32 s50, s44, {1920*8192 + (c ^ 1)*8192 + probe_k[0]*1152}")
        probe_k[0] += 1
        a("s_memtime s[52:53]")
        a("s_waitcnt lgkmcnt(0)")
        a("s_buffer_load_dword s51, s[4:7], s50")
        a("s_waitcnt lgkmcnt(0)")
        a("s_memtime s[50:51]")
        a("s_waitcnt lgkmcnt(0)")
        a(f"s_sub_u32 s{45+c}, s50, s52")
    a("s_sub_i32 s48, s45, s46")
    a("s_min_i32 s48, s48, 300")
    a("s_max_i32 s48, s48, -300")
    a("s_sub_i32 s45, 0, s48")
    a("s_cmp_eq_u32 s47, 0")
    a("s_cselect_b32 s48, s48, s45")
    a("s_atomic_add s48, s[88:89], 20")
waitq(("L", "K", 7))
for t in range(8):
    a(f"ds_write_b128 v40, {R('v', RING[LSLOT]+4*t)} offset:{t*1024}")
a(f"s_branch LRING{LSLOT}")
a.label("LP2")
if STAMPS == 2:
    a("v_mov_b32 v51, 0")
    a("s_mov_b32 s93, 0")
a("s_mov_b32 s3, 0")
a(f"s_mov_b32 s56, {PB//2 - 128}")
a("s_mov_b32 s60, 128")
a("s_mov_b32 s41, 0")
a("s_mov_b32 s54, -1")
a("s_mov_b32 s101, 0")
a("s_mov_b32 s36, 0")
a(f"s_mov_b32 s37, {OPT['cn']}")
a("s_and_b32 s3, s3, s36")
sloc = lambda i: kloc(i) if i < NR else ("a", 0)
for i in range(NB + 1):
    a(f"s_mov_b32 s55, {THR0 + i*THRS}")
    a("s_add_u32 s36, s36, 1")
    a("s_branch LRINGGO")
    a.label(f"LRET{i+1}")
    a.vq = []
    if i > 0:
        def vwait():
            l0, l1 = a.newlabel("sw"), a.newlabel("sw")
            a("s_cmp_ge_u32 s101, 2")
            a(f"s_cbranch_scc1 {l0}")
            a("s_cmp_eq_u32 s101, 1")
            a(f"s_cbranch_scc1 {l1}")
            a("s_waitcnt vmcnt(0)")
            a.label(l1)
            a("s_waitcnt vmcnt(16)")
            a.label(l0)
            a("s_waitcnt vmcnt(32)")
        if i == NR:
            a("s_lshl_b32 s44, s24, 13")
            a(f"s_add_u32 s44, s44, {KL}")
            a("v_add_u32 v40, s44, v3")
            for t in range(8):
                a(f"ds_read_b128 {R('a', 4*t)}, v40 offset:{t*1024}")
        unit2(None, sloc(i - 1), hooks=(None, vwait), tt=52)
    if i < NB:
        xaddr(34, i)
        setaddr(None, 34)
        if i == NR:
            a("s_waitcnt lgkmcnt(0)")
        a.wait_vm_n(55)
        unit2(sloc(i), None, None, None, lambda t: ld(sloc(i)[0], sloc(i)[1], t, "V", 1, VPOL, None), tt=52)
        a("s_mov_b32 s101, 0")
a("s_mov_b32 s55, -1")
a("s_mov_b32 s37, -1")
a.label("LRINGGO")
for q in range(RN - 1):
    a(f"s_cmp_eq_u32 s3, {q}")
    a(f"s_cbranch_scc1 LRING{q}")
a(f"s_branch LRING{RN-1}")
a.label("LPASSEND")
stamp(1)
if STAMPS == 2:
    a("s_lshl_b32 s44, s31, 8")
    a("s_add_u32 s44, s44, s2")
    a("s_lshl_b32 s44, s44, 10")
    a(f"s_add_u32 s44, s44, {STAMP_OFF+0x40000}")
    a("v_lshlrev_b32 v40, 2, v0")
    a("buffer_store_dword v51, v40, s[12:15], s44 offen")
a(f"v_add_f32_dpp v{LS}, v{LS}, v{LS} row_half_mirror{DPPM}")
rows("v_add_f32", LS, TMP)
a(f"v_mul_f32 v22, s30, v{MS}")
a(f"v_mov_b32 v23, v{LS}")
a("v_bfe_u32 v40, v1, 3, 1")
a("v_lshlrev_b32 v41, 9, v40")
a("v_lshrrev_b32 v42, 4, v1")
a("v_lshl_add_u32 v41, v42, 7, v41")
a("v_and_b32 v42, 7, v1")
a("v_lshl_add_u32 v41, v42, 2, v41")
a("s_lshl_b32 s44, s24, 10")
a(f"s_add_u32 s44, s44, {CB1}")
a("v_add_u32 v41, s44, v41")
for r in range(4):
    a(f"ds_write_b32 v41, v{OA+r} offset:{32*r}")
a("s_lshl_b32 s44, s24, 3")
a(f"s_add_u32 s44, s44, {CS1}")
a("v_lshlrev_b32 v40, 5, v40")
a("v_add_u32 v40, s44, v40")
a("ds_write_b64 v40, v[22:23]")
a("v_lshlrev_b32 v40, 2, v0")
a(f"v_add_u32 v40, {LSV}, v40")
a(f"ds_write_b32 v40, v{VL}")
a.label("LCNT")
a("s_waitcnt vmcnt(0)")
a("v_readfirstlane_b32 s44, v49")
a("s_cmp_ge_u32 s44, 256")
a("s_cbranch_scc1 LCNTOK")
a("v_mov_b32 v48, 0")
a("buffer_load_dword v49, v48, s[20:23], 0 offen sc1")
retry("LCNT", "LCNTOK")
a.label("LCNTOK")
a("s_waitcnt lgkmcnt(0)")
a("s_barrier")
combine(CB1, CS1)
a(f"s_mul_i32 s44, s2, {X1S}")
a("s_add_u32 s44, s44, s39")
a("v_lshlrev_b32 v8, 2, v0")
a("buffer_store_dword v24, v8, s[12:15], s44 offen sc1")
a("s_lshl_b32 s45, s24, 6")
a("v_mov_b32 v9, s45")
a("s_bitcmp0_b32 s24, 0")
a("s_cbranch_scc0 LPUB1")
a("s_mov_b64 exec, 1")
a("buffer_store_dwordx2 v[26:27], v9, s[12:15], s44 offen offset:1024 sc1")
a("s_mov_b64 exec, -1")
a.label("LPUB1")
stamp(2)
a("s_cmp_lt_u32 s27, 18")
a("s_cbranch_scc1 LSTC")
a("s_cmp_lt_u32 s27, 30")
a("s_cbranch_scc0 LSTQ")
brole()
a(f"s_mul_i32 s48, s46, {16*X1S}")
a("s_add_u32 s48, s48, s39")
for g in range(1, 4):
    a(f"s_add_u32 s{48+g}, s48, {g*4*X1S}")
a("v_lshlrev_b32 v8, 2, v0")
a("v_and_b32 v9, 15, v1")
a(f"v_mul_u32_u24 v9, {X1S}, v9")
a("s_lshr_b32 s44, s24, 1")
a("s_lshl_b32 s44, s44, 7")
a("v_add_u32 v9, s44, v9")
a("v_lshlrev_b32 v10, 1, v0")
a(f"v_add_u32 v10, {OB}, v10")
a(f"s_mul_i32 s44, s24, {2*WOS}")
a("v_lshlrev_b32 v58, 3, v1")
a("v_add_u32 v58, s44, v58")
afrag_addr(57, base=OB)
a.label("LE1")
a("buffer_load_dwordx2 v[28:29], v9, s[12:15], s48 offen offset:1024 sc1")
for p in range(16):
    a(f"buffer_load_dword v{12+p}, v8, s[12:15], s{48+(p>>2)} offen offset:{(p&3)*X1S} sc1")
a("s_waitcnt vmcnt(16)")
if OPT["e1f"]:
    a("v_cmp_u_f32 vcc, v28, v29")
    a("s_cbranch_vccnz LE1R")
ROWRED = ("quad_perm:[1,0,3,2]", "quad_perm:[2,3,0,1]", "row_half_mirror", "row_mirror")
a(f"v_max_f32_dpp v30, v28, v28 {ROWRED[0]}{DPPM}")
for st in ROWRED[1:]:
    a(f"v_max_f32_dpp v30, v30, v30 {st}{DPPM}")
a("v_sub_f32 v28, v28, v30")
a("v_exp_f32 v28, v28")
a("v_mul_f32 v29, v29, v28")
for st in ROWRED:
    a(f"v_add_f32_dpp v29, v29, v29 {st}{DPPM}")
a("v_rcp_f32 v29, v29")
a("v_mul_f32 v28, v28, v29")
a("s_waitcnt vmcnt(0)")
for p in range(16):
    op = "v_mul_f32_dpp" if p < 4 else "v_fmac_f32_dpp"
    a(f"{op} v{32+(p&3)}, v28, v{12+p} row_newbcast:{p}{DPPM}")
a("v_add_f32 v32, v32, v33")
a("v_add_f32 v34, v34, v35")
a("v_add_f32 v32, v32, v34")
a("v_cmp_u_f32 vcc, v32, v32")
a("s_cbranch_vccz LE1OK")
a.label("LE1R")
retry("LE1", "LE1OK")
a.label("LE1OK")
a("s_waitcnt vmcnt(0)")
stamp(3)
a("v_cvt_pk_bf16_f32 v32, v32, v32")
a("ds_write_b16 v10, v32")
a("s_waitcnt lgkmcnt(0)")
a("s_barrier")
a("s_cmp_eq_u32 s24, 3")
a("s_cbranch_scc1 LSTQ")


def b_issue(kk):
    s = 8 + 12 * (kk % 3)
    a(f"ds_read_b128 {R('v', s)}, v57 offset:{kk*64}")
    for t in range(2):
        a(f"ds_read_b64_tr_b16 {R('v', s+4+4*t, 2)}, v58 offset:{kk*1024+t*WOS}")
        a(f"ds_read_b64_tr_b16 {R('v', s+6+4*t, 2)}, v58 offset:{kk*1024+t*WOS+512}")


for kk in range(3):
    b_issue(kk)
for kk in range(8):
    a(f"s_waitcnt lgkmcnt({5*(min(8, kk+3)-kk-1)})")
    s = 8 + 12 * (kk % 3)
    for t in range(2):
        acc = R("v", 48 + 4 * t)
        a(f"v_mfma_f32_16x16x32_bf16 {acc}, {R('v', s)}, {R('v', s+4+4*t)}, {'0' if kk == 0 else acc}")
    if kk + 3 < 8:
        b_issue(kk + 3)
a("s_mul_i32 s44, s46, 2304")
a("s_mul_i32 s45, s47, 384")
a("s_add_u32 s44, s44, s45")
a("s_lshl_b32 s45, s24, 7")
a("s_add_u32 s44, s44, s45")
a("s_add_u32 s44, s44, s39")
a(f"s_add_u32 s44, s44, {X2}")
a("s_mov_b32 s48, 0xffff0000")
a("s_mov_b32 s49, 0xffff0000")
a("v_lshlrev_b32 v8, 2, v1")
a("v_cndmask_b32 v48, v48, v52, s[48:49]")
a("s_mov_b32 exec_hi, 0")
a("buffer_store_dword v48, v8, s[12:15], s44 offen sc1")
a("s_mov_b64 exec, -1")
stamp(4)
a("s_branch LSTQ")
a.label("LSTC")
a(f"s_mov_b32 s44, {XB}")
a(f"s_mul_i32 s45, s24, {TS}")
lng_addr()
a("v_lshrrev_b32 v5, 4, v1")
a("v_lshlrev_b32 v4, 3, v5")
a("v_bfe_u32 v6, v1, 2, 2")
a("v_add_u32 v4, v4, v6")
a("v_mul_u32_u24 v4, 1152, v4")
a("v_and_b32 v6, 3, v1")
a("v_lshl_add_u32 v4, v6, 3, v4")
a("s_lshl_b32 s44, s24, 7")
a(f"s_add_u32 s44, s44, {WD}")
a("v_add_u32 v4, s44, v4")
a("v_lshlrev_b32 v5, 4, v5")
a(f"v_add_u32 v5, {HB}, v5")
a("s_lshl_b32 s44, s24, 4")
a(f"s_add_u32 s44, s44, {HB}")
a("v_lshlrev_b32 v6, 1, v1")
a("v_add_u32 v6, s44, v6")
a("v_lshrrev_b32 v7, 5, v1")
a("v_mul_u32_u24 v7, 18432, v7")
a("v_and_b32 v59, 31, v1")
a("v_lshl_add_u32 v7, v59, 2, v7")
a("s_mul_i32 s50, s28, 18")
a("s_add_u32 s50, s50, s27")
a("s_lshl_b32 s50, s50, 7")
a("s_mul_i32 s45, s24, 36864")
a("s_add_u32 s50, s50, s45")
a("s_add_u32 s50, s50, s39")
a(f"s_add_u32 s50, s50, {X3}")
a("s_mov_b32 s52, 0xffff0000")
a("s_mov_b32 s53, 0xffff0000")
a("s_mov_b32 s40, 0")
a("s_mov_b32 s41, -1")
a("s_cmp_eq_u32 s24, 3")
a("s_cbranch_scc1 LC_BAR")
a("v_lshrrev_b32 v56, 4, v1")
a("v_mul_u32_u24 v56, 2304, v56")
a("v_and_b32 v8, 15, v1")
a("v_lshl_add_u32 v56, v8, 4, v56")
a("s_mul_i32 s48, s24, 768")
a("s_add_u32 s44, s48, s39")
a(f"s_add_u32 s44, s44, {X2}")
for g in range(1, 4):
    a(f"s_add_u32 s{44+g}, s44, {g*9216}")
a("v_bfe_u32 v9, v1, 4, 1")
a("v_lshlrev_b32 v9, 1, v9")
a("v_lshrrev_b32 v10, 5, v1")
a("v_add_u32 v9, v9, v10")
a("v_lshl_add_u32 v9, v8, 2, v9")
a("v_lshrrev_b32 v10, 5, v9")
a("v_lshlrev_b32 v10, 6, v10")
a("v_lshl_add_u32 v10, v9, 1, v10")
a(f"s_add_u32 s49, s48, {LB0+X4}")
a("s_lshr_b32 s48, s48, 1")
a("v_lshlrev_b32 v9, 1, v9")
a("v_add_u32 v9, s48, v9")
a(f"v_add_u32 v59, {XB}, v9")
a("s_cmp_eq_u32 s31, 0")
a("s_cbranch_scc0 LC_X2")
a("s_load_dwordx2 s[60:61], s[0:1], 0")
a("s_mov_b32 s62, 1152")
a("s_mov_b32 s63, 0x20000")
a("s_waitcnt lgkmcnt(0)")
a("s_and_b32 s61, s61, 0xffff")
for c in range(3):
    a(f"buffer_load_ushort v{60+c}, v9, s[60:63], 0 offen offset:{c*128}")
a("s_branch LC_X3")
a.label("LC_X2")
for c in range(3):
    a(f"buffer_load_ushort v{60+c}, v10, s[12:15], s49 offen offset:{c*256} sc1")
a.label("LC_X3")
a("s_waitcnt vmcnt(0)")
for c in range(3):
    a(f"v_lshlrev_b32 v{60+c}, 16, v{60+c}")
a.label("LE2")
for c in range(3):
    for g in range(4):
        a(f"buffer_load_dwordx4 {R('v', 8+16*c+4*g)}, v56, s[12:15], s{44+g} offen offset:{c*256} sc1")
for c in range(3):
    b = 8 + 16 * c
    a(f"s_waitcnt vmcnt({8-4*c})")
    for r in range(4):
        a(f"v_add_f32 v{b+r}, v{b+r}, v{b+4+r}")
        a(f"v_add_f32 v{b+8+r}, v{b+8+r}, v{b+12+r}")
    for r in range(4):
        a(f"v_add_f32 v{b+r}, v{b+r}, v{b+8+r}")
    if OPT["e1f"] and c < 2:
        a(f"v_cmp_u_f32 vcc, v{b}, v{b+3}")
        a("s_cbranch_vccnz LE2R")
    swapreduce(b)
a("v_add_f32 v9, v8, v24")
a("v_cmp_u_f32 vcc, v9, v40")
a("s_cbranch_vccz LE2OK")
a.label("LE2R")
retry("LE2", "LE2OK")
a.label("LE2OK")
a("s_waitcnt vmcnt(0)")
stamp(5)
for c in range(3):
    bf16r(8 + 16 * c, 8 + 16 * c)
for c in range(3):
    a(f"v_add_f32 v{60+c}, v{60+c}, v{8+16*c}")
for c in range(3):
    a(f"v_cvt_pk_bf16_f32 v{60+c}, v{60+c}, v{60+c}")
for c in range(3):
    a(f"ds_write_b16 v59, v{60+c} offset:{c*128}")
a.label("LC_BAR")
a("s_waitcnt lgkmcnt(0)")
a("s_barrier")
a("s_call_b64 s[36:37], LLNG")


def downB(i):
    for t in range(4):
        s = 8 + 16 * (i & 1) + 4 * t
        a(f"ds_read_b64_tr_b16 {R('v', s, 2)}, v4 offset:{i*512+t*32}")
        a(f"ds_read_b64_tr_b16 {R('v', s+2, 2)}, v4 offset:{i*512+t*32+4*1152}")


a(f"v_mov_b32_dpp v41, v60 row_shl:8{DPPM} bound_ctrl:1")
a("v_cvt_pk_bf16_f32 v41, v60, v41")
a("v_lshlrev_b32 v42, 16, v41")
a("v_and_b32 v41, 0xffff0000, v41")
a("v_max_f32 v42, 0, v42")
a("v_mul_f32 v41, v42, v41")
a("v_cvt_pk_bf16_f32 v41, v41, v41")
a("s_mov_b64 exec, 0xff")
a("ds_write_b16 v6, v41")
a("s_mov_b64 exec, -1")
downB(0)
a("s_waitcnt lgkmcnt(8)")
a("s_barrier")
a("ds_read_b128 v[60:63], v5")
a("s_waitcnt lgkmcnt(5)")
downB(1)


def downG(i, wait):
    a(f"s_waitcnt lgkmcnt({wait})")
    for t in range(4):
        s = 8 + 16 * (i & 1) + 4 * t
        a(f"v_mfma_f32_16x16x32_bf16 {R('v', 40+4*t)}, v[60:63], {R('v', s)}, 0")
    a("v_cndmask_b32 v40, v40, v44, s[52:53]")
    a("v_cndmask_b32 v48, v48, v52, s[52:53]")
    a("v_cndmask_b32 v40, v40, v48, s[40:41]")
    a("buffer_store_dword v40, v7, s[12:15], s50 offen sc1")
    a(f"s_add_u32 s50, s50, {4*36864}")


downG(0, 8)
a("s_cmp_eq_u32 s24, 0")
a("s_cbranch_scc1 LDOWN3")
downG(1, 0)
a("s_branch LSTD")
a.label("LDOWN3")
a("s_waitcnt lgkmcnt(0)")
downB(2)
downG(1, 8)
downG(2, 0)
a.label("LSTD")
stamp(6)
a("s_lshl_b32 s50, s27, 3")
a("s_add_u32 s50, s50, s28")
a("s_cmp_lt_u32 s50, 18")
a("s_cbranch_scc0 LSTQ")
a("s_mul_i32 s44, s50, 18432")
a("s_mul_i32 s45, s24, 4608")
a("s_add_u32 s44, s44, s45")
a("s_add_u32 s44, s44, s39")
a(f"s_add_u32 s44, s44, {X3}")
a("s_add_u32 s45, s44, 4096")
a("v_bfe_u32 v58, v1, 4, 1")
a("v_lshlrev_b32 v58, 1, v58")
a("v_lshrrev_b32 v59, 5, v1")
a("v_add_u32 v58, v58, v59")
a("v_and_b32 v59, 7, v1")
a("v_lshl_add_u32 v58, v59, 2, v58")
a("v_lshlrev_b32 v58, 2, v58")
a("s_lshl_b32 s46, s24, 7")
a(f"s_add_u32 s46, s46, {FB}")
a("v_add_u32 v58, s46, v58")
for r in range(4):
    a(f"v_mov_b32 v{24+r}, 0")
a.label("LE3")
for i in range(4):
    a(f"buffer_load_dwordx4 {R('v', 8+4*i)}, v3, s[12:15], s44 offen offset:{i*1024} sc1")
a("s_mov_b32 exec_hi, 0")
a("buffer_load_dwordx4 v[24:27], v3, s[12:15], s45 offen sc1")
a("s_mov_b64 exec, -1")
a("s_waitcnt vmcnt(0)")
for r in range(4):
    a(f"v_add_f32 v{8+r}, v{8+r}, v{12+r}")
    a(f"v_add_f32 v{16+r}, v{16+r}, v{20+r}")
for r in range(4):
    a(f"v_add_f32 v{8+r}, v{8+r}, v{24+r}")
for r in range(4):
    a(f"v_add_f32 v{8+r}, v{8+r}, v{16+r}")
swapreduce(8)
a(f"v_add_f32_dpp v8, v8, v8 row_ror:8{DPPM}")
a("v_cmp_u_f32 vcc, v8, v8")
a("s_cbranch_vccz LE3OK")
retry("LE3", "LE3OK")
a.label("LE3OK")
stamp(7)
a("ds_write_b32 v58, v8")
a("v_lshlrev_b32 v8, 2, v1")
a(f"v_add_u32 v9, {FB}, v8")
a("s_lshl_b32 s45, s50, 6")
a(f"s_add_u32 s46, s45, {XB}")
a("v_lshlrev_b32 v8, 1, v1")
a("v_add_u32 v10, s46, v8")
a("s_waitcnt lgkmcnt(0)")
a("s_barrier")
a("s_cmp_eq_u32 s24, 0")
a("s_cbranch_scc0 LSTQ")
a("s_mov_b32 exec_hi, 0")
for w in range(4):
    a(f"ds_read_b32 v{12+w}, v9 offset:{128*w}")
a("ds_read_u16 v16, v10")
a("s_waitcnt lgkmcnt(0)")
a("v_lshlrev_b32 v16, 16, v16")
a("v_add_f32 v12, v12, v13")
a("v_add_f32 v14, v14, v15")
a("v_add_f32 v12, v12, v14")
bf16r(12, 12)
a("v_add_f32 v12, v12, v16")
a(f"v_mov_b32_dpp v13, v12 quad_perm:[1,1,3,3]{DPPM}")
a("v_cvt_pk_bf16_f32 v12, v12, v13")
a("s_mov_b32 exec_lo, 0x55555555")
a("s_cmp_eq_u32 s31, 0")
a("s_cbranch_scc0 LFINAL")
a("s_lshl_b32 s45, s50, 7")
a("s_add_u32 s45, s45, s39")
a(f"s_add_u32 s45, s45, {X4}")
a("buffer_store_dword v12, v8, s[12:15], s45 offen sc1")
a("s_mov_b64 exec, -1")
a("s_branch LSTQ")
a.label("LFINAL")
a("buffer_store_dword v12, v8, s[16:19], s45 offen")
a("s_mov_b64 exec, 1")
a("s_cmp_eq_u32 s50, 0")
a("s_cbranch_scc0 LNOEP")
a("v_mov_b32 v9, s29")
a("buffer_store_dword v9, v8, s[12:15], 0 offen sc1")
a.label("LNOEP")
a("s_mov_b64 exec, -1")
a.label("LSTQ")
stamp(8)
a("s_cmp_eq_u32 s31, 0")
a("s_cbranch_scc0 LDONE")
if OPT["npf"]:
    a("s_cmp_lt_u32 s27, 18")
    a("s_cbranch_scc1 LQ5")
    a("v_lshlrev_b32 v34, 7, v1")
    a("s_lshl_b32 s44, s26, 2")
    a("s_add_u32 s44, s44, s24")
    a("s_lshl_b32 s44, s44, 13")
    for n in range(OPT["npf"]):
        a(f"s_add_u32 s45, s44, {(4+n)*UNIT_STEP}")
        a(f"buffer_load_dword v35, v34, s[4:7], s45 offen{PFK}")
        a(f"buffer_load_dword v36, v34, s[8:11], s45 offen{PFV}")
a("s_cmp_ge_u32 s27, 24")
a("s_cbranch_scc0 LQ5")
qprep(X5)
a(f"s_add_u32 s44, s39, {X4}")
a("v_lshrrev_b32 v16, 2, v1")
a("v_lshlrev_b32 v16, 7, v16")
a("v_and_b32 v17, 3, v1")
a("v_lshl_add_u32 v16, v17, 4, v16")
for r in range(4):
    a(f"v_mov_b32 v{12+r}, 0")
a.label("LE4")
a("buffer_load_dwordx4 v[8:11], v16, s[12:15], s44 offen sc1")
a("s_mov_b64 exec, 0xff")
a("buffer_load_dwordx4 v[12:15], v16, s[12:15], s44 offen offset:2048 sc1")
a("s_mov_b64 exec, -1")
a("s_waitcnt vmcnt(0)")
a("v_max3_u32 v17, v8, v9, v10")
a("v_max3_u32 v18, v11, v12, v13")
a("v_max3_u32 v17, v17, v14, v15")
a("v_max_u32 v17, v17, v18")
a("v_cmp_eq_u32 vcc, -1, v17")
a("s_cbranch_vccz LE4OK")
retry("LE4", "LE4OK")
a.label("LE4OK")
stamp(9)
a("s_call_b64 s[36:37], LQSTAGE")
a.label("LQ5")
if STAMPS:
    a("s_memrealtime s[58:59]")
    a("s_waitcnt lgkmcnt(0)")
    a("s_mov_b32 s74, s58")
a("s_mov_b32 s31, 1")
a(f"s_add_u32 s39, s39, {LSTRIDE}")
a("s_mov_b64 s[48:49], 0")
a("s_atomic_add_x2 s[48:49], s[88:89], 16 glc")
a("s_getreg_b32 s47, hwreg(HW_REG_XCC_ID)")
a("s_bfe_u32 s47, s47, 0x10002")
a("s_add_u32 s88, s88, 4096")
a("s_addc_u32 s89, s89, 0")
a("s_mov_b32 s63, 0")
a("s_mov_b32 s98, 14")
a("s_mov_b32 s99, 8192")
a("s_waitcnt lgkmcnt(0)")
a("s_cmp_gt_i32 s48, 0")
a("s_cselect_b32 s61, 1, 0")
a("s_xor_b32 s61, s61, s47")
a("s_lshl_b32 s61, s61, 13")
a("s_xor_b32 s48, s48, s49")
a("s_cmp_lt_i32 s48, 0")
a("s_cselect_b32 s62, 8192, 0")
if OPT["wcl"]:
    a("s_lshl_b32 s48, s24, 13")
    a("s_and_b32 s48, s48, s62")
    a("s_xor_b32 s61, s61, s48")
a(f"s_mov_b32 s90, {TKI}")
tkreq()
loopconsts()
a(f"s_mov_b32 s96, {NP2}")
a("s_mov_b32 s91, 0")
a("s_mov_b32 s95, s97")
a("v_lshlrev_b32 v40, 2, v0")
a(f"v_add_u32 v40, {LSV}, v40")
a(f"ds_read_b32 v{VL}, v40")
qpoll_addr(X5)
a("s_waitcnt lgkmcnt(0)")
a("s_branch LQPOLL")

a.label("LQSTAGE")
a("ds_write_b128 v2, v[8:11]")
a("s_mov_b64 exec, 0xff")
a("ds_write_b128 v2, v[12:15] offset:1024")
a("s_mov_b64 exec, -1")
a("s_mov_b64 s[52:53], s[36:37]")
a("s_waitcnt lgkmcnt(1)")
a("s_call_b64 s[36:37], LLNG")
a("v_lshlrev_b32 v8, 2, v1")
a("v_mov_b32 v11, s29")
a(f"v_mov_b32_dpp v9, v60 quad_perm:[1,1,3,3]{DPPM}")
a("v_cvt_pk_bf16_f32 v10, v60, v9")
a("s_mov_b64 exec, 0x5555")
a("buffer_store_dwordx2 v[10:11], v8, s[12:15], s54 offen sc1")
a("s_mov_b64 exec, -1")
a("s_setpc_b64 s[52:53]")

a.label("LLNG")
lngemv()
a("s_setpc_b64 s[36:37]")

a.vq = sum((qtags(f"R{q}") for q in range(RN)), [])
for s in range(RN):
    lp, lg, ln, lb, lx = (a.newlabel(x) for x in ("pool", "go", "noapp", "bonly", "next"))
    a.label(f"LRING{s}")
    a(f"s_mov_b32 s3, {s}")
    if OPT["hv"]:
        a(f"s_waitcnt vmcnt({OPT['hv']})")
    ticket_ready()
    a("s_cmp_ge_u32 s90, s55")
    a("s_cbranch_scc1 LRINGX")
    a("s_cmp_ge_u32 s101, s37")
    a("s_cbranch_scc1 LRINGX")
    a("s_cmp_lt_u32 s91, s92")
    a(f"s_cbranch_scc0 {lp}")
    a(f"v_readlane_b32 s32, v{VL}, s91")
    a("s_add_u32 s91, s91, 1")
    a(f"s_branch {lg}")
    a.label(lp)
    draw(s, f"LDRAINE{s}")
    a.label(lg)
    setaddr(32, 32)
    a("s_add_u32 s101, s101, 1")
    a(f"s_bitcmp1_b32 s95, {s}")
    a(f"s_cbranch_scc0 {lb}")
    unit("v", RING[s], f"R{s}", f"R{s}n")
    logt()
    q1 = [(t[0].rstrip("n"), t[1], t[2]) for t in a.vq]
    a(f"s_branch LRING{(s+1)%RN}")
    a.label(lb)
    a(f"s_bitset1_b32 s95, {s}")
    for t in range(8):
        ldK("v", RING[s], t, "x")
    for t in range(8):
        ldV("v", RING[s], t, "x")
    a(f"s_branch LRING{(s+1)%RN}")
    a.vq = q1
a.label("LRINGX")
for k in range(1, NB + 1):
    a(f"s_cmp_eq_u32 s36, {k}")
    a(f"s_cbranch_scc1 LRET{k}")
a(f"s_branch LRET{NB+1}")

for s in range(RN):
    a.label(f"LDRAINE{s}")
    a("v_mov_b32 v48, 0")
    a("buffer_load_dword v49, v48, s[20:23], 0 offen sc1")
    a("s_mov_b32 s93, 0")
    a("s_bcnt1_i32_b32 s44, s97")
    a("s_sub_u32 s92, s94, s44")
    a(f"s_branch LDRAIN{s}")
for s in range(RN):
    a.label(f"LDRAIN{s}")
    lsk = a.newlabel("dsk")
    a(f"s_bitcmp1_b32 s95, {s}")
    a(f"s_cbranch_scc0 {lsk}")
    unit_drain(RING[s])
    a.label(lsk)
    a("s_add_u32 s93, s93, 1")
    a(f"s_cmp_eq_u32 s93, {RN}")
    a("s_cbranch_scc1 LPASSEND")
a("s_branch LDRAIN0")

a.label("LDONE")
if OPT["padto"]:
    if OPT["padmin"]:
        a("s_mov_b32 s100, 0")
        a("s_atomic_add s100, s[84:85], 64 glc")
        a("s_waitcnt lgkmcnt(0)")
        a("s_not_b32 s100, s100")
    a.label("LPAD")
    a("s_memrealtime s[58:59]")
    a("s_waitcnt lgkmcnt(0)")
    a("s_sub_u32 s58, s58, s100")
    a(f"s_cmp_lt_u32 s58, {OPT['padto']*100}")
    a("s_cbranch_scc1 LPAD")
if STAMPS:
    a("s_memrealtime s[58:59]")
    a("s_waitcnt lgkmcnt(0)")
    a("s_mov_b32 s87, s58")
    a("s_lshl_b32 s44, s2, 2")
    a("s_add_u32 s44, s44, s24")
    a("s_lshl_b32 s44, s44, 7")
    a(f"s_add_u32 s44, s44, {STAMP_OFF}")
    a("v_mov_b32 v8, 0")
    a("s_mov_b64 exec, 1")
    for i in range(24):
        a(f"v_mov_b32 v9, s{64+i}")
        a(f"buffer_store_dword v9, v8, s[12:15], s44 offen offset:{4*i}")
    a("v_mov_b32 v9, s100")
    a("buffer_store_dword v9, v8, s[12:15], s44 offen offset:96")
    for i, r in enumerate((57, 92, 57, 57, 57, 94)):
        a(f"v_mov_b32 v9, s{r}")
        a(f"buffer_store_dword v9, v8, s[12:15], s44 offen offset:{100+4*i}")
    if OPT["dbgout"]:
        a("s_or_b32 s44, s2, s24")
        a("s_cmp_eq_u32 s44, 0")
        a("s_cbranch_scc0 LEND")
        for i, r in enumerate((64, 65, 66, 69, 70, 71, 72, 76, 77, 78, 81, 82, 83, 87)):
            a(f"s_sub_u32 s44, s{r}, s100")
            a("v_mov_b32 v9, s44")
            a(f"buffer_store_dword v9, v8, s[20:23], 0 offen offset:{4+4*i}")
    a("s_waitcnt vmcnt(0)")
a.label("LEND")
a("s_endpgm")

hdr = open("cdna_kernels/" + NAME + ".s.ref").read().split("\n")
top = [l for l in hdr if l.startswith(";") and "@launch" not in l]
out = "\n".join(top) + "\n"
out += f"; @launch grid=(256,1,1) block=(256,1,1) lds={LDS_SIZE}\n"
out += f""".amdgcn_target "amdgcn-amd-amdhsa--gfx950"
.text
.globl {NAME}_kernel
.p2align 8
.type {NAME}_kernel,@function
"""
out += a.text()
out += f""".section .rodata,"a"
.p2align 6
.amdhsa_kernel {NAME}_kernel
  .amdhsa_next_free_vgpr 512
  .amdhsa_next_free_sgpr 102
  .amdhsa_accum_offset 256
  .amdhsa_group_segment_fixed_size 0
  .amdhsa_kernarg_size 96
  .amdhsa_user_sgpr_count 2
  .amdhsa_user_sgpr_kernarg_segment_ptr 1
  .amdhsa_system_sgpr_workgroup_id_x 1
.end_amdhsa_kernel
"""
import re
if OPT["xl"]:
    out = re.sub(r"(buffer_load\S+ .*) sc1$", r"\1 sc0 sc1", out, flags=re.M)
if OPT["xs"]:
    out = re.sub(r"(buffer_store\S+ .*) sc1$", r"\1 sc0 sc1", out, flags=re.M)
open(sys.argv[1], "w").write(out)
```

```python
import sys, struct, math
from asmlib import Asm

NAME = "interleave_layers__gqa_block_cached__glu_gated_reglu__decode"
OPT = dict(stamps=0, p2rev=0, kvpol="nt", wpol="nt", wskip=0, vring="def", kring="nt", tfw=3, psleep=1, npf=0, thrp=80, pr=1110, eg=0, gv=8, xl=0, xs=0, padto=0, q1w=1, lfirst=1, lrev=0, rn=1, rbal=1, hsw=0, sline=1, tk2=0, klate=1, wcl=0, hv=0, lv=0, alt=3, e1f=1, mixx=1, rot=0, padmin=0, cn=1, vote=1, avpol="def", forcecls=-1, dbgout=0, pfk="nt", pfv="def")
for arg in sys.argv[2:]:
    k, v = arg.split("=")
    OPT[k] = int(v) if v.lstrip("-").isdigit() else v
STAMPS = OPT["stamps"]
TKI = 2 if OPT["tk2"] else 1
KVPOL = "" if OPT["kvpol"] == "def" else " " + OPT["kvpol"]
WPOL = "" if OPT["wpol"] == "def" else " " + OPT["wpol"]
PFK = "" if OPT["pfk"] == "def" else " " + OPT["pfk"]
PFV = "" if OPT["pfv"] == "def" else " " + OPT["pfv"]


def f32(x):
    return "0x%08x" % struct.unpack("<I", struct.pack("<f", x))[0]


X0 = 0x1000
X5 = 0x9000
CTR = 0x11000
LB0 = 0x20000
LSTRIDE = 0xC0000
X1 = 0x0
X1S = 1280
X2 = 0x50000
X3 = 0x59000
X4 = 0xAA000
STAMP_OFF = 0x200000
WS_SIZE = 0x400000
RN = OPT["rn"]
NR = 14 - 2 * RN
NB = NR + 1
PB = 256 + 64 * NB
NP1 = 2048 - PB
TF = NP1 - OPT["tfw"] * 64
NP2 = 128 + TF // 2
THR0 = 32
THRS = (NP2 * OPT["thrp"] // 100 - THR0) // NB
WGU = 0
TS = 18432
WD = 73728
FB = 110592
HB = 111104
WO = 0
WOS = 8192
WQ = 49152
SA = 122880
CB1 = SA
CS1 = SA + 4096
XB = SA
OB = 127488
LSV = 128000
ONES = 129088
KL = 130304
LDS_SIZE = 163072

UNIT_STEP = 524288
DPPM = " row_mask:0xf bank_mask:0xf"
a = Asm()
stamp_n = [0]


def stamp(i):
    if not STAMPS:
        return
    a("s_memrealtime s[58:59]")
    a("s_waitcnt lgkmcnt(0)")
    lab = a.newlabel("st")
    a(f"s_mov_b32 s{64+12+i}, s58")
    a("s_cmp_eq_u32 s31, 0")
    a(f"s_cbranch_scc0 {lab}")
    a(f"s_mov_b32 s{64+i}, s58")
    a.label(lab)


def sstamp(reg):
    if True:
        return
    a("s_memrealtime s[58:59]")
    a("s_waitcnt lgkmcnt(0)")
    a(f"s_mov_b32 s{reg}, s58")


def logt():
    if STAMPS != 2:
        return
    a("s_memrealtime s[58:59]")
    a("s_waitcnt lgkmcnt(0)")
    a("s_mov_b32 m0, s93")
    a("s_add_u32 s93, s93, 1")
    a("s_min_u32 s93, s93, 63")
    a("v_writelane_b32 v51, s58, m0")


def R(kind, base, n=4):
    return f"{kind}[{base}:{base+n-1}]"


def srd(d, lo, hi, size):
    a(f"s_mov_b32 s{d}, s{lo}")
    a(f"s_and_b32 s{d+1}, s{hi}, 0xffff")
    a(f"s_mov_b32 s{d+2}, {size}")
    a(f"s_mov_b32 s{d+3}, 0x20000")


def srd_role(d, lo, hi, size):
    a(f"s_cselect_b32 s{d+2}, {size}, 0")
    a(f"s_mov_b32 s{d}, s{lo}")
    a(f"s_and_b32 s{d+1}, s{hi}, 0xffff")
    a(f"s_mov_b32 s{d+3}, 0x20000")


def ld(kind, reg, t, src, half, pol, tag):
    if OPT["lv"] and (t & 1) == 0:
        a(f"s_waitcnt vmcnt({OPT['lv']})")
    srd_, vo = {"K": ("s[4:7]", "v2"), "K2": ("s[60:63]", "v51"), "V": ("s[8:11]", "v3")}[src]
    a(f"buffer_load_dwordx4 {R(kind, reg+4*t)}, {vo}, {srd_}, s{32+2*half+(t>>2)} offen offset:{(t&3)*1024}{pol}", tag=tag)


VPOL = "" if OPT["vring"] == "def" else " nt"


def ldK(kind, base, t, tag):
    ld(kind, base, t, "K", 0, " nt", (tag, "K", t))


def ldV(kind, base, t, tag):
    ld(kind, base + 32, t, "V", 1, ("" if OPT["avpol"] == "def" else " nt") if kind == "a" else VPOL, (tag, "V", t))


def adv():
    for r in range(32, 36):
        a(f"s_add_u32 s{r}, s{r}, {UNIT_STEP}")


def setaddr(k, v):
    if v is not None:
        if OPT["hsw"]:
            a(f"s_or_b32 s34, s{v}, vcc_hi")
        elif v != 34:
            a(f"s_mov_b32 s34, s{v}")
        a("s_xor_b32 s35, s34, 4096")
    if k is not None:
        if OPT["hsw"]:
            a(f"s_or_b32 s32, s{k}, vcc_hi")
        elif k != 32:
            a(f"s_mov_b32 s32, s{k}")
        a("s_xor_b32 s33, s32, 4096")


def hswinit():
    if OPT["hsw"]:
        a("s_and_b32 vcc_hi, s24, 1")
        a("s_lshl_b32 vcc_hi, vcc_hi, 12")


def burst(kind, base, tag):
    for t in range(8):
        ldK(kind, base, t, tag)
    for t in range(8):
        ldV(kind, base, t, tag)
    adv()
    logt()


def waitq(tag, floor=0):
    if tag in a.vq:
        a.wait_vm(tag, floor)


def allreduce(op, v, t, first=0):
    steps = ["quad_perm:[1,0,3,2]", "quad_perm:[2,3,0,1]", "row_half_mirror", "row_mirror"]
    for s in steps[first:]:
        a(f"{op}_dpp v{v}, v{v}, v{v} {s}{DPPM}")
    rows(op, v, t)


def rows(op, v, t):
    a(f"v_mov_b32 v{t}, v{v}")
    a(f"v_permlane16_swap_b32 v{v}, v{t}")
    a(f"{op} v{v}, v{v}, v{t}")
    a(f"v_mov_b32 v{t}, v{v}")
    a(f"v_permlane32_swap_b32 v{v}, v{t}")
    a(f"{op} v{v}, v{v}, v{t}")


QE, QO, OA, MS, LS, NMC = 8, 12, 16, 20, 21, 22
DS_ = [24, 28, 32, 36]
TT = 40
TMP = 44


def unit2(K, V, kt=None, vt=None, rk=None, rv=None, hooks=None, tt=TT):
    if K is not None:
        if hooks:
            hooks[0]()
        for u in range(4):
            if kt:
                waitq(kt(2 * u + 1))
            d = R("v", DS_[u])
            a(f"v_mfma_f32_16x16x32_bf16 {d}, {R(K[0], K[1]+8*u)}, {R('v', QE)}, 0")
            a(f"v_mfma_f32_16x16x32_bf16 {d}, {R(K[0], K[1]+8*u+4)}, {R('v', QO)}, {d}")
            if rk:
                rk(2 * u)
                rk(2 * u + 1)
        order = [(0, 0), (1, 0), (2, 0), (0, 1), (1, 1), (2, 1), (0, 2), (1, 2), (3, 0), (2, 2), (0, 3), (3, 1),
                 (1, 3), (2, 3), (3, 2), None, (3, 3)]
        for o in order:
            if o is None:
                if V is not None:
                    a(f"v_max3_f32 v{TMP}, v{tt}, v{tt+1}, v{MS}")
                continue
            u, c = o
            qp = f"quad_perm:[{c},{c},{c},{c}]"
            if c == 0:
                a(f"v_mov_b32_dpp v{tt+u}, v{DS_[u]} {qp}{DPPM}")
            else:
                a(f"v_add_f32_dpp v{tt+u}, v{DS_[u]+c}, v{tt+u} {qp}{DPPM}")
    if V is None:
        return
    if K is None:
        a(f"v_max3_f32 v{TMP}, v{tt}, v{tt+1}, v{MS}")
    a(f"v_max3_f32 v{TMP}, v{TMP}, v{tt+2}, v{tt+3}")
    a(f"v_max_f32_dpp v{TMP}, v{TMP}, v{TMP} row_half_mirror{DPPM}")
    rows("v_max_f32", TMP, TMP + 1)
    a(f"v_sub_f32 v{TMP+1}, v{MS}, v{TMP}")
    a(f"v_mul_f32 v{TMP+1}, s30, v{TMP+1}")
    a(f"v_exp_f32 v{TMP+1}, v{TMP+1}")
    a(f"v_mov_b32 v{MS}, v{TMP}")
    a(f"v_mul_f32 v{NMC}, s30, v{TMP}")
    for u in range(4):
        a(f"v_fma_f32 v{tt+u}, v{tt+u}, s30, -v{NMC}")
    for u in range(4):
        a(f"v_exp_f32 v{tt+u}, v{tt+u}")
    a(f"v_mul_f32 v{LS}, v{LS}, v{TMP+1}")
    for r in range(4):
        a(f"v_mul_f32 v{OA+r}, v{OA+r}, v{TMP+1}")
    a(f"v_add_f32 v{TMP+2}, v{tt}, v{tt+1}")
    a(f"v_add_f32 v{TMP+3}, v{tt+2}, v{tt+3}")
    for u in range(4):
        a(f"v_cvt_pk_bf16_f32 v{tt+u}, v{tt+u}, v{tt+u}")
    a(f"v_add_f32 v{TMP+2}, v{TMP+2}, v{TMP+3}")
    a(f"v_add_f32 v{LS}, v{LS}, v{TMP+2}")

    def buildB(t):
        b = DS_[t & 3]
        p = tt + (t >> 1)
        for i in range(4):
            own = (i < 2) == ((t & 1) == 0)
            if own:
                a(f"v_and_b32 v{b+i}, v{p}, v{4+i}")
            else:
                sh = "row_shr:4" if (t & 1) == 0 else "row_shl:4"
                a(f"v_and_b32_dpp v{b+i}, v{p}, v{4+i} {sh}{DPPM} bound_ctrl:1")

    buildB(0)
    if hooks:
        hooks[1]()
    for t in range(8):
        if t + 1 < 8:
            buildB(t + 1)
        if vt:
            waitq(vt(t))
        a(f"v_mfma_f32_16x16x32_bf16 {R('v', OA)}, {R(V[0], V[1]+4*t)}, {R('v', DS_[t&3])}, {R('v', OA)}")
        if rv:
            rv(t)


def unit(kind, base, tag, reload_tag=None, hooks=None):
    rk = rv = None
    if reload_tag is not None:
        rk = lambda t: ldK(kind, base, t, reload_tag)
        rv = lambda t: ldV(kind, base, t, reload_tag)
    unit2((kind, base), (kind, base + 32), lambda t: (tag, "K", t), lambda t: (tag, "V", t), rk, rv, hooks)


probe_k = [0]


def probe(kind="V"):
    k = probe_k[0]
    probe_k[0] += 1
    srd_, base = ("s[8:11]", 55) if kind == "V" else ("s[4:7]", 96)
    for c in ((0, 1) if k & 1 else (1, 0)):
        a(f"s_add_u32 s50, s57, {(c ^ 1)*8192 + k*1152}")
        a("s_memtime s[52:53]")
        a("s_waitcnt lgkmcnt(0)")
        a(f"s_buffer_load_dword s51, {srd_}, s50")
        a("s_waitcnt lgkmcnt(0)")
        a("s_memtime s[50:51]")
        a("s_waitcnt lgkmcnt(0)")
        a("s_sub_u32 s50, s50, s52")
        a(f"s_min_u32 s{base+c}, s{base+c}, s50")


def qtags(tag):
    return [(tag, "K", t) for t in range(8)] + [(tag, "V", t) for t in range(8)]


RING = [64, 128, 192]


def bf16r(d, s):
    a(f"v_cvt_pk_bf16_f32 v{d}, v{s}, v{s}")
    a(f"v_and_b32 v{d}, 0xffff0000, v{d}")


def afrag_addr(v, base_sgpr=None, base=0):
    a(f"v_lshrrev_b32 v{v}, 4, v1")
    a(f"v_lshlrev_b32 v{v}, 4, v{v}")
    if base:
        a(f"v_add_u32 v{v}, {base}, v{v}")
    if base_sgpr is not None:
        a(f"v_add_u32 v{v}, s{base_sgpr}, v{v}")


def lng_addr():
    a("v_add_u32 v2, s44, v3")
    a("v_mov_b32 v57, s44")
    a(f"v_mov_b32 v58, {ONES}")
    a("s_mov_b32 s46, 0x00020002")
    a("s_mov_b32 s47, 0x00020002")
    a("v_cndmask_b32 v57, v57, v58, s[46:47]")
    a("v_lshrrev_b32 v58, 4, v1")
    a("v_lshl_add_u32 v57, v58, 4, v57")
    a("v_lshlrev_b32 v58, 3, v1")
    a("v_add_u32 v58, s45, v58")


def lngemv():
    S, nk, T, acc = 4, 18, 8, 60
    s, q, t, t2, one = 48, 49, 50, 51, 52
    f = []
    for i in range(8):
        f.append(f"v_dot2c_f32_bf16 v{s}, v{40+i}, v{one}")
        f.append(f"v_dot2c_f32_bf16 v{q}, v{40+i}, v{40+i}")
    f.append("s_nop 1")
    for st in ("quad_perm:[1,0,3,2]", "quad_perm:[2,3,0,1]", "row_half_mirror", "row_mirror"):
        f.append(f"v_add_f32_dpp v{s}, v{s}, v{s} {st}{DPPM}")
        f.append(f"v_add_f32_dpp v{q}, v{q}, v{q} {st}{DPPM}")
    f.append(f"v_permlane16_swap_b32 v{s}, v{q}")
    f.append(f"v_add_f32 v{s}, v{s}, v{q}")
    f.append(f"v_mov_b32 v{t}, v{s}")
    f.append(f"v_permlane32_swap_b32 v{s}, v{t}")
    f.append(f"v_add_f32 v{s}, v{s}, v{t}")
    f.append(f"v_mul_f32 v{s}, {f32(1.0/576)}, v{s}")
    f.append(f"v_mov_b32 v{q}, v{s}")
    f.append(f"v_permlane16_swap_b32 v{s}, v{q}")
    f.append(f"v_fma_f32 v{q}, -v{s}, v{s}, v{q}")
    f.append(f"v_max_f32 v{q}, 0, v{q}")
    f.append(f"v_cvt_pk_bf16_f32 v{q}, v{s}, v{q}")
    f.append(f"v_lshlrev_b32 v{s}, 16, v{q}")
    f.append(f"v_and_b32 v{q}, 0xffff0000, v{q}")
    for op in (f"v_add_f32 v{q}, {f32(1e-5)}, v{q}", f"v_sqrt_f32 v{q}, v{q}"):
        f.append(op)
        f.append(f"v_cvt_pk_bf16_f32 v{q}, v{q}, v{q}")
        f.append(f"v_and_b32 v{q}, 0xffff0000, v{q}")
    f.append(f"v_rcp_f32 v{q}, v{q}")

    def issue(kk):
        z = T + 8 * (kk % S)
        a(f"ds_read_b128 {R('v', z)}, v57 offset:{kk*64}")
        a(f"ds_read_b64_tr_b16 {R('v', z+4, 2)}, v58 offset:{kk*1024}")
        a(f"ds_read_b64_tr_b16 {R('v', z+6, 2)}, v58 offset:{kk*1024+512}")

    for r in range(4):
        a(f"v_mov_b32 v{44+r}, 0")
    a("ds_read_b128 v[40:43], v2")
    a("s_mov_b64 exec, 0xff")
    a("ds_read_b128 v[44:47], v2 offset:1024")
    a("s_mov_b64 exec, -1")
    for kk in range(S):
        issue(kk)
    a(f"v_mov_b32 v{s}, 0")
    a(f"v_mov_b32 v{q}, 0")
    a(f"v_mov_b32 v{one}, 0x3f803f80")
    per = -(-len(f) // (nk // 2 + 1))
    for kk in range(0, nk, 2):
        a(f"s_waitcnt lgkmcnt({3*(min(nk, kk+S)-kk-2)})")
        for k2 in (kk, kk + 1):
            z = T + 8 * (k2 % S)
            c = "0" if k2 == 0 else R("v", acc)
            a(f"v_mfma_f32_16x16x32_bf16 {R('v', acc)}, {R('v', z)}, {R('v', z+4)}, {c}")
        for k2 in (kk, kk + 1):
            if k2 + S < nk:
                issue(k2 + S)
        for _ in range(per):
            if f:
                a(f.pop(0))
    while f:
        a(f.pop(0))
    a(f"v_fma_f32 v60, -v{s}, v61, v60")
    a(f"v_mul_f32 v60, v60, v{q}")


def retry(lab_again, lab_done):
    a("s_cmp_eq_u32 s38, 0")
    a(f"s_cbranch_scc1 {lab_done}")
    a("s_sub_u32 s38, s38, 1")
    if OPT["psleep"]:
        a(f"s_sleep {OPT['psleep']}")
    a(f"s_branch {lab_again}")


def combine(CB, CS):
    a("v_lshlrev_b32 v8, 2, v0")
    a(f"v_add_u32 v8, {CB}, v8")
    a("s_lshr_b32 s44, s24, 1")
    a("s_lshl_b32 s44, s44, 5")
    a(f"s_add_u32 s44, s44, {CS}")
    a("v_mov_b32 v9, s44")
    a("ds_read_b128 v[12:15], v9")
    a("ds_read_b128 v[16:19], v9 offset:16")
    for w in range(4):
        a(f"ds_read_b32 v{20+w}, v8 offset:{w*1024}")
    a("s_waitcnt lgkmcnt(4)")
    a("v_max3_f32 v26, v12, v14, v16")
    a("v_max_f32 v26, v26, v18")
    for w in range(4):
        a(f"v_sub_f32 v{12+2*w}, v{12+2*w}, v26")
    for w in range(4):
        a(f"v_exp_f32 v{12+2*w}, v{12+2*w}")
    a("v_mul_f32 v27, v13, v12")
    for w in range(1, 4):
        a(f"v_fmac_f32 v27, v{13+2*w}, v{12+2*w}")
    a("s_waitcnt lgkmcnt(0)")
    a("v_mul_f32 v24, v20, v12")
    for w in range(1, 4):
        a(f"v_fmac_f32 v24, v{20+w}, v{12+2*w}")


def qpoll_issue():
    a("buffer_load_dwordx4 v[24:27], v32, s[12:15], s45 offen sc1", tag="qp")
    a("buffer_load_dwordx4 v[28:31], v32, s[12:15], s45 offen offset:16 sc1", tag="qp")


def qpoll_addr(xoff):
    a("s_lshl_b32 s45, s25, 11")
    a(f"s_add_u32 s45, s45, {xoff}")
    a("v_bfe_u32 v32, v1, 3, 1")
    a("v_lshlrev_b32 v32, 10, v32")
    a("v_lshrrev_b32 v33, 4, v1")
    a("v_lshl_add_u32 v32, v33, 8, v32")
    a("v_bfe_u32 v33, v1, 1, 1")
    a("v_lshl_add_u32 v32, v33, 7, v32")
    a("v_and_b32 v33, 1, v1")
    a("v_lshl_add_u32 v32, v33, 5, v32")


def qpoll_check():
    a("v_cmp_ne_u32 s[46:47], s29, v25")
    a("v_cmp_ne_u32 s[48:49], s29, v27")
    a("v_cmp_ne_u32 s[50:51], s29, v29")
    a("v_cmp_ne_u32 s[52:53], s29, v31")
    a("s_or_b64 s[46:47], s[46:47], s[48:49]")
    a("s_or_b64 s[50:51], s[50:51], s[52:53]")
    a("s_or_b64 s[46:47], s[46:47], s[50:51]")


VL = 50


def unit_drain(base):
    def pwait(last):
        labs = [a.newlabel("dw") for _ in range(RN - 1)]
        for p in range(RN - 1):
            a(f"s_cmp_eq_u32 s93, {p}")
            a(f"s_cbranch_scc1 {labs[p]}")
        a(f"s_waitcnt vmcnt({last})")
        for p in reversed(range(RN - 1)):
            a.label(labs[p])
            a(f"s_waitcnt vmcnt({last + 16*(RN-1-p)})")
    a.vq = []
    unit("v", base, "none", None, hooks=(lambda: pwait(9), lambda: pwait(1)))


def kloc(i):
    return ("a", 32 * i) if i < 8 else ("v", 64 + 64 * RN + 32 * (i - 8))


def swapreduce(b):
    a(f"v_permlane32_swap_b32 v{b}, v{b+1}")
    a(f"v_permlane32_swap_b32 v{b+2}, v{b+3}")
    a(f"v_add_f32 v{b}, v{b}, v{b+1}")
    a(f"v_add_f32 v{b+2}, v{b+2}, v{b+3}")
    a(f"v_permlane16_swap_b32 v{b}, v{b+2}")
    a(f"v_add_f32 v{b}, v{b}, v{b+2}")


def kofs():
    a("v_bfe_u32 v40, v1, 2, 2")
    a("v_lshlrev_b32 v2, 8, v40")
    a("v_lshrrev_b32 v40, 4, v1")
    a("v_lshl_add_u32 v2, v40, 6, v2")
    a("v_and_b32 v40, 3, v1")
    a("v_lshl_add_u32 v2, v40, 4, v2")


def masks():
    a("v_and_b32 v40, 1, v1")
    a("v_lshlrev_b32 v40, 4, v40")
    a("v_mov_b32 v41, 0xffff")
    a("v_lshlrev_b32 v40, v40, v41")
    for i in range(4):
        m = 0x03030303 << (2 * i)
        a(f"s_mov_b32 s46, 0x{m:08x}")
        a(f"s_mov_b32 s47, 0x{m:08x}")
        a(f"v_cndmask_b32 v{4+i}, 0, v40, s[46:47]")


def loopconsts():
    kofs()
    masks()


def qprep(xoff):
    a("s_mul_i32 s44, s24, 1152")
    a(f"s_add_u32 s44, s44, {XB}")
    a(f"s_mul_i32 s45, s24, {TS}")
    a(f"s_add_u32 s45, s45, {WQ}")
    lng_addr()
    a("s_lshl_b32 s54, s28, 3")
    a("s_add_u32 s54, s54, s27")
    a("s_sub_u32 s54, s54, 24")
    a("s_lshl_b32 s54, s54, 2")
    a("s_add_u32 s54, s54, s24")
    a("s_lshl_b32 s54, s54, 7")
    a(f"s_add_u32 s54, s54, {xoff}")


def ones_init():
    for r in range(4):
        a(f"v_mov_b32 v{16+r}, 0x3f803f80")
    a(f"v_add_u32 v20, {ONES}, v3")
    a("ds_write_b128 v20, v[16:19]")
    a("s_mov_b64 exec, 0xff")
    a("ds_write_b128 v20, v[16:19] offset:1024")
    a("s_mov_b64 exec, -1")


a.raw(f"{NAME}_kernel:")
a("s_cmp_ge_u32 s2, 256")
a("s_cbranch_scc1 LEND")
if STAMPS or OPT["padto"]:
    a("s_memrealtime s[100:101]")
a("s_load_dwordx16 s[64:79], s[0:1], 0")
a("s_load_dwordx8 s[80:87], s[0:1], 64")
a("v_and_b32 v1, 63, v0")
a("v_lshrrev_b32 v40, 6, v0")
a("v_readfirstlane_b32 s24, v40")
a("s_and_b32 s28, s2, 7")
if OPT["rbal"]:
    a("s_lshr_b32 s27, s2, 4")
    a("s_and_b32 s44, s2, 15")
    a("s_lshl_b32 s44, s44, 1")
    a("s_add_u32 s27, s27, s44")
else:
    a("s_lshr_b32 s27, s2, 3")
    a("s_lshl_b32 s44, s28, 2")
    a("s_add_u32 s27, s27, s44")
a("s_and_b32 s27, s27, 31")
a("s_lshr_b32 s25, s2, 4")
a("s_and_b32 s26, s2, 15")
a(f"s_mov_b32 s30, {f32(math.log2(math.e)/math.sqrt(128.0))}")
a("s_mov_b32 s31, 0")
a("s_mov_b32 s38, 400000")
a(f"s_mov_b32 s39, {LB0}")
a("s_mov_b32 s42, 0xf0f0f0f0")
a("s_mov_b32 s43, 0xf0f0f0f0")
a("s_lshl_b32 s44, s26, 2")
a("s_add_u32 s44, s44, s24")
a("s_lshl_b32 s32, s44, 13")
hswinit()
setaddr(32, 32)
a("s_lshl_b32 s57, s44, 14")
a(f"s_add_u32 s57, s57, {1920*8192}")
a("s_mov_b32 s55, -1")
a("s_mov_b32 s56, -1")
a("s_mov_b32 s96, -1")
a("s_mov_b32 s97, -1")
a("v_lshlrev_b32 v3, 4, v1")
kofs()
a("s_waitcnt lgkmcnt(0)")
a("s_load_dword s29, s[86:87], 0")
if OPT["padmin"]:
    a("s_not_b32 s101, s100")
    a("s_atomic_umax s101, s[84:85], 64")
a("s_lshl_b32 s44, s25, 24")
a("s_add_u32 s4, s66, s44")
a("s_addc_u32 s5, s67, 0")
a("s_and_b32 s5, s5, 0xffff")
a("s_mov_b32 s6, 0x1000000")
a("s_mov_b32 s7, 0x20000")
a("s_add_u32 s8, s68, s44")
a("s_addc_u32 s9, s69, 0")
a("s_and_b32 s9, s9, 0xffff")
a("s_mov_b32 s10, 0x1000000")
a("s_mov_b32 s11, 0x20000")
srd(12, 86, 87, WS_SIZE)
a("s_cmp_ge_u32 s27, 24")
a("s_cbranch_scc0 LPRO1")
srd(60, 64, 65, 1152)
srd(92, 70, 71, 0 if OPT["wskip"] & 8 else 576 * 8192)
a("v_lshrrev_b32 v41, 3, v1")
a("v_lshlrev_b32 v40, 13, v41")
a("v_and_b32 v42, 7, v1")
a("v_lshl_add_u32 v40, v42, 4, v40")
a("s_lshl_b32 s46, s28, 3")
a("s_add_u32 s46, s46, s27")
a("s_sub_u32 s46, s46, 24")
a("s_lshl_b32 s44, s46, 7")
a(f"s_mul_i32 s45, s24, {144*8192}")
a("s_add_u32 s44, s44, s45")
for i in range(18):
    a(f"buffer_load_dwordx4 {R('v', 64+4*i)}, v40, s[92:95], s44 offen{WPOL}")
    a("s_add_u32 s44, s44, 65536")
a("buffer_load_dwordx4 v[8:11], v3, s[60:63], 0 offen")
a("buffer_load_dwordx4 v[12:15], v3, s[60:63], 0 offen offset:1024")
a("s_and_b32 s44, s46, 3")
a("s_or_b32 s44, s44, s24")
a("s_cmp_eq_u32 s44, 0")
a("s_cbranch_scc0 LPRO0")
a("v_and_b32 v40, 1, v1")
a("v_lshlrev_b32 v40, 12, v40")
a("v_bfe_u32 v43, v1, 1, 1")
a("v_lshl_add_u32 v40, v43, 13, v40")
a("v_lshrrev_b32 v43, 2, v1")
a("v_lshl_add_u32 v40, v43, 4, v40")
a("v_mov_b32 v36, 0\nv_mov_b32 v37, 0\nv_mov_b32 v38, 0\nv_mov_b32 v39, 0")
a("s_lshl_b32 s44, s46, 6")
a(f"s_add_u32 s44, s44, {CTR}")
a("s_mov_b64 exec, 0xff")
a("buffer_store_dwordx4 v[36:39], v40, s[12:15], s44 offen sc1")
a("s_mov_b64 exec, -1")
a.label("LPRO0")
a("v_lshrrev_b32 v40, 1, v42")
a(f"v_mul_u32_u24 v40, {TS}, v40")
a("v_and_b32 v43, 3, v41")
a("v_lshl_add_u32 v40, v43, 5, v40")
a("v_lshrrev_b32 v43, 2, v41")
a("v_lshl_add_u32 v40, v43, 9, v40")
a("v_and_b32 v42, 1, v42")
a("v_lshl_add_u32 v40, v42, 4, v40")
for k, reg in ((0, 41), (2, 42)):
    a("s_mul_i32 s44, s24, 18")
    a(f"s_add_u32 s44, s44, {k}")
    a("s_lshr_b32 s45, s44, 2")
    a("s_lshl_b32 s45, s45, 10")
    a("s_and_b32 s44, s44, 3")
    a("s_lshl_b32 s44, s44, 7")
    a("s_add_u32 s44, s44, s45")
    a(f"s_add_u32 s44, s44, {WQ}")
    a(f"v_add_u32 v{reg}, s44, v40")
ones_init()
a("s_waitcnt vmcnt(0) lgkmcnt(0)")
a("s_mul_i32 s29, s29, 0x9e3779b1")
a("s_add_u32 s29, s29, 0x7f4a7c15")
for i in range(18):
    a(f"ds_write_b128 v{41 + ((i>>1)&1)}, {R('v', 64+4*i)} offset:{(i>>2)*1024+(i&1)*128}")
a("s_waitcnt lgkmcnt(0)")
a("s_barrier")
qprep(X0)
a("s_call_b64 s[36:37], LQSTAGE")
kofs()
a("s_branch LPRO2")
a.label("LPRO1")
a("s_waitcnt lgkmcnt(0)")
ones_init()
a("s_mul_i32 s29, s29, 0x9e3779b1")
a("s_add_u32 s29, s29, 0x7f4a7c15")
a.label("LPRO2")
if STAMPS == 2:
    a("v_mov_b32 v51, 0")
    a("s_mov_b32 s93, 0")
sstamp(55)
a.vq = []
burst("a", 0, "A0")
a("s_cmp_eq_u32 s24, 0")
a("s_cbranch_scc0 LPRO3")
a("v_mov_b32 v24, -1\nv_mov_b32 v25, -1\nv_mov_b32 v26, -1\nv_mov_b32 v27, -1")
a("s_mul_i32 s44, s2, 6144")
a(f"s_add_u32 s44, s44, {LB0}")
a("s_add_u32 s45, s44, 4096")
keep = list(a.vq)
for i in range(6):
    a(f"buffer_store_dwordx4 v[24:27], v3, s[12:15], s{44+(i>>2)} offen offset:{1024*(i&3)} sc1")
a.vq = keep
a.label("LPRO3")
srd(16, 82, 83, 1152)
srd(20, 84, 85, 256)
masks()
a("s_lshl_b32 s44, s25, 8")
a(f"s_add_u32 s44, s44, {CTR}")
a("s_add_u32 s88, s86, s44")
a("s_addc_u32 s89, s87, 0")
sstamp(56)
keep = list(a.vq)
a("s_cmp_lt_u32 s27, 18")
a("s_cbranch_scc0 LWB")
srd(60, 76, 77, 0 if OPT["wskip"] & 2 else 576 * 9216)
srd(92, 78, 79, 0 if OPT["wskip"] & 2 else 576 * 9216)
a("v_lshrrev_b32 v41, 2, v1")
a("v_and_b32 v42, 3, v1")
a("v_mul_u32_u24 v40, 9216, v41")
a("v_lshl_add_u32 v40, v42, 4, v40")
a("s_mul_i32 s46, s28, 18")
a("s_add_u32 s46, s46, s27")
a("s_lshl_b32 s44, s46, 6")
a(f"s_mul_i32 s45, s24, {144*9216}")
a("s_add_u32 s44, s44, s45")
for i in range(9):
    a(f"buffer_load_dwordx4 {R('v', 64+8*i)}, v40, s[60:63], s44 offen{WPOL}")
    a(f"buffer_load_dwordx4 {R('v', 68+8*i)}, v40, s[92:95], s44 offen{WPOL}")
    a(f"s_add_u32 s44, s44, {16*9216}")
a(f"v_mul_u32_u24 v43, {TS}, v42")
a("v_and_b32 v42, 3, v41")
a("v_lshl_add_u32 v43, v42, 5, v43")
a("v_bfe_u32 v42, v41, 2, 1")
a("v_lshl_add_u32 v43, v42, 9, v43")
a("v_lshrrev_b32 v42, 3, v41")
a("v_lshl_add_u32 v43, v42, 7, v43")
for k, reg in ((1, 34), (0, 43)):
    a("s_mul_i32 s44, s24, 9")
    a(f"s_add_u32 s44, s44, {k}")
    a("s_lshr_b32 s45, s44, 1")
    a("s_lshl_b32 s45, s45, 10")
    a("s_and_b32 s44, s44, 1")
    a("s_lshl_b32 s44, s44, 8")
    a("s_add_u32 s44, s44, s45")
    a(f"v_add_u32 v{reg}, s44, v43")
srd(60, 80, 81, 0 if OPT["wskip"] & 4 else 4608 * 1152)
a(f"s_mul_i32 s44, s46, {32*1152}")
a("s_mul_i32 s45, s24, 9216")
a("s_add_u32 s44, s44, s45")
a("s_add_u32 s45, s44, 4096")
a("s_add_u32 s46, s44, 8192")
for i in range(9):
    a(f"buffer_load_dwordx4 {R('v', 136+4*i)}, v3, s[60:63], s{44+(i>>2)} offen offset:{(i&3)*1024}{WPOL}")
a("s_branch LWDONE")
a.label("LWB")
a("s_cmp_lt_u32 s27, 30")
a("s_cbranch_scc0 LWDONE")
srd(60, 72, 73, 0 if OPT["wskip"] & 1 else 4096 * 1152)
a("v_lshrrev_b32 v41, 4, v1")
a("v_and_b32 v42, 15, v1")
a("v_mul_u32_u24 v40, 1152, v41")
a("v_lshl_add_u32 v40, v42, 4, v40")


def brole():
    a("s_sub_u32 s47, s27, 18")
    a("s_lshl_b32 s46, s28, 1")
    a("s_cmp_ge_u32 s47, 6")
    a("s_addc_u32 s46, s46, 0")
    a("s_cmp_ge_u32 s47, 6")
    a("s_cselect_b32 s48, 6, 0")
    a("s_sub_u32 s47, s47, s48")


brole()
a("s_lshl_b32 s44, s46, 8")
a("s_lshl_b32 s45, s24, 6")
a("s_add_u32 s44, s44, s45")
a("s_mul_i32 s44, s44, 1152")
a("s_mul_i32 s45, s47, 192")
a("s_add_u32 s44, s44, s45")
a("s_mov_b32 exec_lo, 0x0fff0fff")
a("s_mov_b32 exec_hi, 0x0fff0fff")
for i in range(16):
    a(f"buffer_load_dwordx4 {R('v', 64+4*i)}, v40, s[60:63], s44 offen{WPOL}")
    a(f"s_add_u32 s44, s44, {4*1152}")
a("s_mov_b64 exec, -1")
a("v_lshrrev_b32 v43, 1, v42")
a(f"v_mul_u32_u24 v43, {WOS}, v43")
a("v_lshl_add_u32 v43, v41, 5, v43")
a("v_and_b32 v42, 1, v42")
a("v_lshl_add_u32 v43, v42, 4, v43")
a("s_lshl_b32 s45, s24, 11")
a("v_add_u32 v43, s45, v43")
a.label("LWDONE")
a.vq = keep
sstamp(57)
PR = str(OPT["pr"]).zfill(4)
for _ in range(int(PR[0])):
    probe()
a.wait_vm_n(30)
burst("a", 64, "A1")
for _ in range(int(PR[1])):
    probe()
a.wait_vm_n(30)
burst("a", 128, "A2")
for _ in range(int(PR[2])):
    probe()
qpoll_addr(X0)
a.wait_vm_n(40)
qpoll_issue()
burst("a", 192, "A3")
for _ in range(int(PR[3])):
    probe()
if not OPT["klate"]:
    probe("K")
a.wait_vm_n(50)
a("s_cmp_lt_u32 s27, 18")
a("s_cbranch_scc0 LWB2")
for i in range(9):
    a(f"ds_write_b128 v{34 if i & 1 else 43}, {R('v', 64+8*i)} offset:{(i>>1)*1024}")
    a(f"ds_write_b128 v{34 if i & 1 else 43}, {R('v', 68+8*i)} offset:{(i>>1)*1024+16}")
a("s_mul_i32 s44, s24, 9216")
a(f"s_add_u32 s44, s44, {WD}")
a("v_add_u32 v40, s44, v3")
for i in range(9):
    a(f"ds_write_b128 v40, {R('v', 136+4*i)} offset:{i*1024}")
a("s_branch LWDONE2")
a.label("LWB2")
a("s_cmp_lt_u32 s27, 30")
a("s_cbranch_scc0 LWDONE2")
a("s_mov_b32 exec_lo, 0x0fff0fff")
a("s_mov_b32 exec_hi, 0x0fff0fff")
for i in range(16):
    a(f"ds_write_b128 v43, {R('v', 64+4*i)} offset:{(i&1)*512+((i>>1)&3)*128+(i>>3)*1024}")
a("s_mov_b64 exec, -1")
a.label("LWDONE2")
a(f"v_mov_b32 v{VL}, 0")
a("s_mov_b32 s91, 0")
a("s_mov_b32 s92, 0")
a("s_mov_b32 s94, 0")
a("s_mov_b32 s95, 7")
a("s_waitcnt lgkmcnt(0)")
a.wait_vm("qp")
if STAMPS:
    a("s_memrealtime s[58:59]")
    a("s_waitcnt lgkmcnt(0)")
    a("s_mov_b32 s75, s58")
qpoll_check()
a("s_cbranch_scc0 LQREADY")

a.label("LQPOLL")
qpoll_issue()
a("s_waitcnt vmcnt(0)")
qpoll_check()
a("s_cbranch_scc0 LQREADY")
retry("LQPOLL", "LQREADY")
a.label("LQREADY")
if OPT["q1w"]:
    a("s_cmp_eq_u32 s31, 0")
    a("s_cbranch_scc1 LQREADY2")
    for i in range(4):
        a(f"ds_write_b32 v33, v{24+2*i} offset:{256*i}")
    a("s_waitcnt lgkmcnt(0)")
    a("s_barrier")
    a.label("LQREADY2")
hswinit()
for i in range(4):
    a(f"v_cndmask_b32 v{QE+i}, v{24+2*i}, 0, s[42:43]")
    a(f"v_cndmask_b32 v{QO+i}, 0, v{24+2*i}, s[42:43]")
for r in range(4):
    a(f"v_mov_b32 v{OA+r}, 0")
a(f"v_mov_b32 v{MS}, {f32(-1e30)}")
a(f"v_mov_b32 v{LS}, 0")
stamp(0)
a("s_cmp_eq_u32 s31, 0")
a("s_cbranch_scc0 LP2")
if OPT["vote"]:
    a("s_getreg_b32 s47, hwreg(HW_REG_XCC_ID)")
    a("s_bfe_u32 s47, s47, 0x10002")
    for d, (x, y) in ((44, (55, 56)),) if OPT["klate"] else ((48, (96, 97)), (44, (55, 56))):
        a(f"s_sub_i32 s{d}, s{x}, s{y}")
        a(f"s_min_i32 s{d}, s{d}, 300")
        a(f"s_max_i32 s{d}, s{d}, -300")
        a(f"s_sub_i32 s45, 0, s{d}")
        a("s_cmp_eq_u32 s47, 0")
        a(f"s_cselect_b32 s{d}, s{d}, s45")
    a("s_mov_b32 s46, s44")
    a("s_atomic_add s46, s[88:89], 16 glc")
    if not OPT["klate"]:
        a("s_atomic_add s48, s[88:89], 20")
    if RN > 1:
        a(f"s_mov_b32 s90, {TKI}")
        a("s_atomic_add s90, s[88:89], 0 glc")
    a("s_waitcnt lgkmcnt(0)")
    a("s_add_i32 s44, s44, s46")
    a("s_cmp_gt_i32 s44, 0")
    a("s_cselect_b32 s44, 1, 0")
    a("s_xor_b32 s44, s44, s47")
else:
    a("s_cmp_gt_u32 s55, s56")
    a("s_cselect_b32 s44, 1, 0")
if OPT["forcecls"] == 2:
    a("s_xor_b32 s44, s44, 1")
a("s_lshl_b32 s45, s44, 2")
a("s_add_u32 s45, s45, 4")
a("s_mov_b32 s46, 1")
a("s_atomic_add s46, s[88:89], s45 glc")
a("s_mov_b32 s61, 0")
a("s_mov_b32 s62, 0")
a("s_mov_b32 s63, 1")
a("s_mov_b32 s98, 13")
a("s_mov_b32 s99, 0")
a(f"s_mov_b32 s96, {NP1}")
a("s_waitcnt lgkmcnt(0)")
a("s_cmp_lt_u32 s46, 32")
a("s_cbranch_scc1 LBUN")
a("s_xor_b32 s44, s44, 1")
a("s_xor_b32 s45, s45, 12")
a("s_mov_b32 s46, 1")
a("s_atomic_add s46, s[88:89], s45 glc")
a("s_waitcnt lgkmcnt(0)")
a.label("LBUN")
a("s_lshl_b32 s57, s46, 1")
a("s_add_u32 s57, s57, s44")
a("s_add_u32 s57, s57, 256")
a("s_lshl_b32 s57, s57, 13")
a("s_mov_b32 s55, -1")
a("s_mov_b32 s37, -1")
a(f"s_mov_b32 s56, {PB}")
a("s_mov_b32 s60, 0")
a(f"s_mov_b32 s54, {TF}")
a("s_mov_b32 s36, 0")
a("s_mov_b32 s101, 0")
a("s_mov_b32 s97, 0")
a("s_mov_b32 s41, 0")
a("s_cmp_eq_u32 s24, 0")
a("s_cbranch_scc0 LNOCNT")
a("s_mov_b32 s48, 1")
a("s_atomic_add s48, s[84:85], 0")
a.label("LNOCNT")
a.vq = qtags("A3")


def tkreq():
    if OPT["sline"]:
        a("s_lshr_b32 s59, s61, 11")
        a("s_atomic_add s90, s[88:89], s59 glc")
    else:
        a("s_atomic_add s90, s[88:89], s61 glc")


def xaddr(reg, i):
    a(f"s_add_u32 s{reg}, s57, {i*UNIT_STEP}")
    if (1 + (i >> 2)) & 1:
        a(f"s_xor_b32 s{reg}, s{reg}, 8192")


def baddr(i):
    xaddr(32, 2 * i)
    xaddr(34, 2 * i + 1)
    setaddr(32, 34)


def draw(s, exhausted):
    ln, lg, lo = a.newlabel("noapp"), a.newlabel("go"), a.newlabel("tok")
    a("s_cmp_lt_u32 s90, s96")
    a(f"s_cbranch_scc1 {lo}")
    a("s_cmp_lg_u32 s63, 0")
    a(f"s_cbranch_scc1 {exhausted}")
    a("s_add_u32 s63, s63, 1")
    a("s_mov_b32 s62, 0")
    a("s_xor_b32 s61, s61, 8192")
    a(f"s_mov_b32 s90, {TKI}")
    tkreq()
    a("s_waitcnt lgkmcnt(0)")
    a("s_cmp_lt_u32 s90, s96")
    a(f"s_cbranch_scc0 {exhausted}")
    a.label(lo)
    a("s_cmp_ge_u32 s90, s60")
    a("s_cselect_b32 s32, s56, 0")
    a("s_add_u32 s32, s32, s90")
    a("s_lshl_b32 s33, s32, 6")
    a("s_xor_b32 s33, s33, s61")
    a("s_and_b32 s33, s33, s99")
    a("s_lshl_b32 s32, s32, s98")
    a("s_add_u32 s32, s32, s33")
    a(f"s_bitset0_b32 s97, {s}")
    a("s_cmp_ge_u32 s90, s54")
    a(f"s_cbranch_scc0 {ln}")
    a(f"s_bitset1_b32 s97, {s}")
    a("s_mov_b32 m0, s94")
    a("s_nop 0")
    a(f"v_writelane_b32 v{VL}, s32, m0")
    a("s_add_u32 s94, s94, 1")
    a("s_cmp_lt_u32 s94, 60")
    a(f"s_cbranch_scc1 {ln}")
    if OPT["tk2"]:
        a("s_bitcmp0_b32 s90, 0")
        a(f"s_cbranch_scc1 {ln}")
    a("s_mov_b32 s90, 0x7fffffff")
    a("s_add_u32 s63, s63, 1")
    a(f"s_branch {lg}")
    a.label(ln)
    if OPT["tk2"]:
        a("s_add_u32 s90, s90, 1")
        a("s_bitcmp1_b32 s90, 0")
        a(f"s_cbranch_scc1 {lg}")
    a("s_xor_b32 s61, s61, s62")
    if OPT["eg"]:
        a(f"s_add_u32 s90, s90, {OPT['eg']}")
        a("s_cmp_ge_u32 s90, s96")
        a("s_cselect_b32 s41, 1, 0")
        a(f"s_cbranch_scc1 {lg}")
    a(f"s_mov_b32 s90, {TKI}")
    tkreq()
    a.label(lg)


def ticket_ready():
    if OPT["eg"]:
        lk = a.newlabel("tk")
        a("s_cmp_eq_u32 s41, 0")
        a(f"s_cbranch_scc1 {lk}")
        a(f"s_waitcnt vmcnt({OPT['gv']})")
        a("s_sub_u32 s41, s41, 1")
        a(f"s_mov_b32 s90, {TKI}")
        tkreq()
        a.label(lk)
    a("s_waitcnt lgkmcnt(0)")


def abody(i, xslot=None):
    baddr(i)

    def rl(hf, t):
        if xslot is not None:
            ld("v", RING[xslot] + 32 * hf, t, "V", hf, VPOL, ("X", 2 * i + hf, t))
        ld("a", 64 * i + 32 * hf, t, "K", hf, " nt", ("BK", 2 * i + hf, t))
    a.wait_vm_n(31)
    unit2(("a", 64 * i), ("a", 64 * i + 32), lambda t: (f"A{i}", "K", t), lambda t: (f"A{i}", "V", t),
          lambda t: rl(0, t), lambda t: rl(1, t))
    logt()


def kburst(i):
    baddr(i)
    a.wait_vm_n(47)
    for hf in range(2):
        k = kloc(2 * i + hf)
        for t in range(8):
            ld(k[0], k[1], t, "K", hf, " nt", ("BK", 2 * i + hf, t))


def dbody(d, slot, nxt):
    sl = RING[slot]
    if nxt[0] == "X":
        j = nxt[1]
        baddr(j)
        rka = lambda t: ld("v", sl, t, "V", 0, VPOL, ("X", 2 * j, t))
        rkb = lambda t: ld("v", sl + 32, t, "V", 1, VPOL, ("X", 2 * j + 1, t))
    else:
        if nxt == "L":
            xaddr(32, NR)
        else:
            le, lc = a.newlabel("dex"), a.newlabel("dco")
            ticket_ready()
            draw(slot, le)
            a(f"s_branch {lc}")
            a.label(le)
            a(f"s_bitset0_b32 s95, {slot}")
            a("s_mov_b32 s32, 0x1000000")
            a.label(lc)
        setaddr(32, 32)
        rka = lambda t: ldK("v", sl, t, nxt)
        rkb = lambda t: ldV("v", sl, t, nxt)
    a.wait_vm_n(47)
    unit2(kloc(2 * d), ("v", sl), lambda t: ("BK", 2 * d, t), lambda t: ("X", 2 * d, t), None, rka)
    unit2(kloc(2 * d + 1), ("v", sl + 32), lambda t: ("BK", 2 * d + 1, t), lambda t: ("X", 2 * d + 1, t), None, rkb)
    logt()


if RN == 3:
    abody(0, 0), abody(1, 1), abody(2, 2), abody(3)
    dbody(0, 0, ("X", 3)), dbody(1, 1, "L"), dbody(2, 2, "P"), dbody(3, 0, "P")
    LSLOT = 1
elif RN == 2:
    abody(0, 0), abody(1, 1)
    dbody(0, 0, ("X", 2)), abody(2), dbody(1, 1, ("X", 3)), abody(3), kburst(4)
    dbody(2, 0, ("X", 4)), dbody(3, 1, "L"), dbody(4, 0, "P")
    LSLOT = 1
else:
    abody(0, 0), abody(1, 1), abody(2, 2), abody(3)
    dbody(0, 0, ("X", 3))
    for d, slot, j in ((1, 1, 4), (2, 2, 5)):
        baddr(j)
        a.wait_vm_n(47)
        for hf in range(2):
            unit2(kloc(2 * d + hf), ("v", RING[slot] + 32 * hf), lambda t: ("BK", 2 * d + hf, t), lambda t: ("X", 2 * d + hf, t), None,
                  lambda t: ld("v", RING[slot] + 32 * hf, t, "K", hf, " nt", ("BK", 2 * j + hf, t)))
        if d == 1:
            dbody(3, 0, ("X", 4))
    dbody(4, 0, ("X", 5)), dbody(5, 0, "L")
    LSLOT = 0
a("s_lshl_b32 s44, s24, 13")
a(f"s_add_u32 s44, s44, {KL}")
a("v_add_u32 v40, s44, v3")
if OPT["klate"]:
    a("s_lshl_b32 s44, s26, 2")
    a("s_add_u32 s44, s44, s24")
    a("s_lshl_b32 s44, s44, 14")
    a("s_getreg_b32 s47, hwreg(HW_REG_XCC_ID)")
    a("s_bfe_u32 s47, s47, 0x10002")
    a("s_waitcnt lgkmcnt(0)")
    for c in (0, 1, 0):
        a(f"s_add_u32 s50, s44, {1920*8192 + (c ^ 1)*8192 + probe_k[0]*1152}")
        probe_k[0] += 1
        a("s_memtime s[52:53]")
        a("s_waitcnt lgkmcnt(0)")
        a("s_buffer_load_dword s51, s[4:7], s50")
        a("s_waitcnt lgkmcnt(0)")
        a("s_memtime s[50:51]")
        a("s_waitcnt lgkmcnt(0)")
        a(f"s_sub_u32 s{45+c}, s50, s52")
    a("s_sub_i32 s48, s45, s46")
    a("s_min_i32 s48, s48, 300")
    a("s_max_i32 s48, s48, -300")
    a("s_sub_i32 s45, 0, s48")
    a("s_cmp_eq_u32 s47, 0")
    a("s_cselect_b32 s48, s48, s45")
    a("s_atomic_add s48, s[88:89], 20")
if RN == 1:
    a(f"s_mov_b32 s90, {TKI}")
    a("s_atomic_add s90, s[88:89], 0 glc")
waitq(("L", "K", 7))
for t in range(8):
    a(f"ds_write_b128 v40, {R('v', RING[LSLOT]+4*t)} offset:{t*1024}")
a(f"s_branch LRING{LSLOT}")
a.label("LP2")
if STAMPS == 2:
    a("v_mov_b32 v51, 0")
    a("s_mov_b32 s93, 0")
a("s_mov_b32 s3, 0")
a(f"s_mov_b32 s56, {PB//2 - 128}")
a("s_mov_b32 s60, 128")
a("s_mov_b32 s41, 0")
a("s_mov_b32 s54, -1")
a("s_mov_b32 s101, 0")
a("s_mov_b32 s36, 0")
a(f"s_mov_b32 s37, {OPT['cn']}")
a("s_and_b32 s3, s3, s36")
sloc = lambda i: kloc(i) if i < NR else ("a", 0)
for i in range(NB + 1):
    a(f"s_mov_b32 s55, {THR0 + i*THRS}")
    a("s_add_u32 s36, s36, 1")
    a("s_branch LRINGGO")
    a.label(f"LRET{i+1}")
    a.vq = []
    if i > 0:
        def vwait():
            l0, l1 = a.newlabel("sw"), a.newlabel("sw")
            a("s_cmp_ge_u32 s101, 2")
            a(f"s_cbranch_scc1 {l0}")
            a("s_cmp_eq_u32 s101, 1")
            a(f"s_cbranch_scc1 {l1}")
            a("s_waitcnt vmcnt(0)")
            a.label(l1)
            a("s_waitcnt vmcnt(16)")
            a.label(l0)
            a("s_waitcnt vmcnt(32)")
        if i == NR:
            a("s_lshl_b32 s44, s24, 13")
            a(f"s_add_u32 s44, s44, {KL}")
            a("v_add_u32 v40, s44, v3")
            for t in range(8):
                a(f"ds_read_b128 {R('a', 4*t)}, v40 offset:{t*1024}")
        unit2(None, sloc(i - 1), hooks=(None, vwait), tt=52)
    if i < NB:
        xaddr(34, i)
        setaddr(None, 34)
        if i == NR:
            a("s_waitcnt lgkmcnt(0)")
        a.wait_vm_n(55)
        unit2(sloc(i), None, None, None, lambda t: ld(sloc(i)[0], sloc(i)[1], t, "V", 1, VPOL, None), tt=52)
        a("s_mov_b32 s101, 0")
a("s_mov_b32 s55, -1")
a("s_mov_b32 s37, -1")
a.label("LRINGGO")
for q in range(RN - 1):
    a(f"s_cmp_eq_u32 s3, {q}")
    a(f"s_cbranch_scc1 LRING{q}")
a(f"s_branch LRING{RN-1}")
a.label("LPASSEND")
stamp(1)
if STAMPS == 2:
    a("s_lshl_b32 s44, s31, 8")
    a("s_add_u32 s44, s44, s2")
    a("s_lshl_b32 s44, s44, 10")
    a(f"s_add_u32 s44, s44, {STAMP_OFF+0x40000}")
    a("v_lshlrev_b32 v40, 2, v0")
    a("buffer_store_dword v51, v40, s[12:15], s44 offen")
a(f"v_add_f32_dpp v{LS}, v{LS}, v{LS} row_half_mirror{DPPM}")
rows("v_add_f32", LS, TMP)
a(f"v_mul_f32 v22, s30, v{MS}")
a(f"v_mov_b32 v23, v{LS}")
a("v_bfe_u32 v40, v1, 3, 1")
a("v_lshlrev_b32 v41, 9, v40")
a("v_lshrrev_b32 v42, 4, v1")
a("v_lshl_add_u32 v41, v42, 7, v41")
a("v_and_b32 v42, 7, v1")
a("v_lshl_add_u32 v41, v42, 2, v41")
a("s_lshl_b32 s44, s24, 10")
a(f"s_add_u32 s44, s44, {CB1}")
a("v_add_u32 v41, s44, v41")
for r in range(4):
    a(f"ds_write_b32 v41, v{OA+r} offset:{32*r}")
a("s_lshl_b32 s44, s24, 3")
a(f"s_add_u32 s44, s44, {CS1}")
a("v_lshlrev_b32 v40, 5, v40")
a("v_add_u32 v40, s44, v40")
a("ds_write_b64 v40, v[22:23]")
a("v_lshlrev_b32 v40, 2, v0")
a(f"v_add_u32 v40, {LSV}, v40")
a(f"ds_write_b32 v40, v{VL}")
a.label("LCNT")
a("s_waitcnt vmcnt(0)")
a("v_readfirstlane_b32 s44, v49")
a("s_cmp_ge_u32 s44, 256")
a("s_cbranch_scc1 LCNTOK")
a("v_mov_b32 v48, 0")
a("buffer_load_dword v49, v48, s[20:23], 0 offen sc1")
retry("LCNT", "LCNTOK")
a.label("LCNTOK")
a("s_waitcnt lgkmcnt(0)")
a("s_barrier")
combine(CB1, CS1)
a(f"s_mul_i32 s44, s2, {X1S}")
a("s_add_u32 s44, s44, s39")
a("v_lshlrev_b32 v8, 2, v0")
a("buffer_store_dword v24, v8, s[12:15], s44 offen sc1")
a("s_lshl_b32 s45, s24, 6")
a("v_mov_b32 v9, s45")
a("s_bitcmp0_b32 s24, 0")
a("s_cbranch_scc0 LPUB1")
a("s_mov_b64 exec, 1")
a("buffer_store_dwordx2 v[26:27], v9, s[12:15], s44 offen offset:1024 sc1")
a("s_mov_b64 exec, -1")
a.label("LPUB1")
stamp(2)
a("s_cmp_eq_u32 s31, 0")
a("s_cbranch_scc0 LPUB2")
a("s_getreg_b32 s47, hwreg(HW_REG_XCC_ID)")
a("s_bfe_u32 s47, s47, 0x10002")
a("s_add_u32 s88, s88, 4096")
a("s_addc_u32 s89, s89, 0")
a("s_mov_b32 s63, 0")
a("s_cmp_gt_i32 s98, 0")
a("s_cselect_b32 s61, 1, 0")
a("s_xor_b32 s61, s61, s47")
a("s_lshl_b32 s61, s61, 13")
a("s_xor_b32 s98, s98, s99")
a("s_cmp_lt_i32 s98, 0")
a("s_cselect_b32 s62, 8192, 0")
a("s_mov_b32 s98, 14")
a("s_mov_b32 s99, 8192")
a(f"s_mov_b32 s90, {TKI}")
tkreq()
a.label("LPUB2")
a("s_cmp_lt_u32 s27, 18")
a("s_cbranch_scc1 LSTC")
a("s_cmp_lt_u32 s27, 30")
a("s_cbranch_scc0 LSTQ")
brole()
a(f"s_mul_i32 s48, s46, {16*X1S}")
a("s_add_u32 s48, s48, s39")
for g in range(1, 4):
    a(f"s_add_u32 s{48+g}, s48, {g*4*X1S}")
a("v_lshlrev_b32 v8, 2, v0")
a("v_and_b32 v9, 15, v1")
a(f"v_mul_u32_u24 v9, {X1S}, v9")
a("s_lshr_b32 s44, s24, 1")
a("s_lshl_b32 s44, s44, 7")
a("v_add_u32 v9, s44, v9")
a("v_lshlrev_b32 v10, 1, v0")
a(f"v_add_u32 v10, {OB}, v10")
a(f"s_mul_i32 s44, s24, {2*WOS}")
a("v_lshlrev_b32 v58, 3, v1")
a("v_add_u32 v58, s44, v58")
afrag_addr(57, base=OB)
a.label("LE1")
a("buffer_load_dwordx2 v[28:29], v9, s[12:15], s48 offen offset:1024 sc1")
for p in range(16):
    a(f"buffer_load_dword v{12+p}, v8, s[12:15], s{48+(p>>2)} offen offset:{(p&3)*X1S} sc1")
a("s_waitcnt vmcnt(16)")
if OPT["e1f"]:
    a("v_cmp_u_f32 vcc, v28, v29")
    a("s_cbranch_vccnz LE1R")
ROWRED = ("quad_perm:[1,0,3,2]", "quad_perm:[2,3,0,1]", "row_half_mirror", "row_mirror")
a(f"v_max_f32_dpp v30, v28, v28 {ROWRED[0]}{DPPM}")
for st in ROWRED[1:]:
    a(f"v_max_f32_dpp v30, v30, v30 {st}{DPPM}")
a("v_sub_f32 v28, v28, v30")
a("v_exp_f32 v28, v28")
a("v_mul_f32 v29, v29, v28")
for st in ROWRED:
    a(f"v_add_f32_dpp v29, v29, v29 {st}{DPPM}")
a("v_rcp_f32 v29, v29")
a("v_mul_f32 v28, v28, v29")
a("s_waitcnt vmcnt(0)")
for p in range(16):
    op = "v_mul_f32_dpp" if p < 4 else "v_fmac_f32_dpp"
    a(f"{op} v{32+(p&3)}, v28, v{12+p} row_newbcast:{p}{DPPM}")
a("v_add_f32 v32, v32, v33")
a("v_add_f32 v34, v34, v35")
a("v_add_f32 v32, v32, v34")
a("v_cmp_u_f32 vcc, v32, v32")
a("s_cbranch_vccz LE1OK")
a.label("LE1R")
retry("LE1", "LE1OK")
a.label("LE1OK")
a("s_waitcnt vmcnt(0)")
stamp(3)
a("v_cvt_pk_bf16_f32 v32, v32, v32")
a("ds_write_b16 v10, v32")
a("s_waitcnt lgkmcnt(0)")
a("s_barrier")
a("s_cmp_eq_u32 s24, 3")
a("s_cbranch_scc1 LSTQ")


def b_issue(kk):
    s = 8 + 12 * (kk % 3)
    a(f"ds_read_b128 {R('v', s)}, v57 offset:{kk*64}")
    for t in range(2):
        a(f"ds_read_b64_tr_b16 {R('v', s+4+4*t, 2)}, v58 offset:{kk*1024+t*WOS}")
        a(f"ds_read_b64_tr_b16 {R('v', s+6+4*t, 2)}, v58 offset:{kk*1024+t*WOS+512}")


for kk in range(3):
    b_issue(kk)
for kk in range(8):
    a(f"s_waitcnt lgkmcnt({5*(min(8, kk+3)-kk-1)})")
    s = 8 + 12 * (kk % 3)
    for t in range(2):
        acc = R("v", 48 + 4 * t)
        a(f"v_mfma_f32_16x16x32_bf16 {acc}, {R('v', s)}, {R('v', s+4+4*t)}, {'0' if kk == 0 else acc}")
    if kk + 3 < 8:
        b_issue(kk + 3)
a("s_mul_i32 s44, s46, 2304")
a("s_mul_i32 s45, s47, 384")
a("s_add_u32 s44, s44, s45")
a("s_lshl_b32 s45, s24, 7")
a("s_add_u32 s44, s44, s45")
a("s_add_u32 s44, s44, s39")
a(f"s_add_u32 s44, s44, {X2}")
a("s_mov_b32 s48, 0xffff0000")
a("s_mov_b32 s49, 0xffff0000")
a("v_lshlrev_b32 v8, 2, v1")
a("v_cndmask_b32 v48, v48, v52, s[48:49]")
a("s_mov_b32 exec_hi, 0")
a("buffer_store_dword v48, v8, s[12:15], s44 offen sc1")
a("s_mov_b64 exec, -1")
stamp(4)
a("s_branch LSTQ")
a.label("LSTC")
a(f"s_mov_b32 s44, {XB}")
a(f"s_mul_i32 s45, s24, {TS}")
lng_addr()
a("v_lshrrev_b32 v5, 4, v1")
a("v_lshlrev_b32 v4, 3, v5")
a("v_bfe_u32 v6, v1, 2, 2")
a("v_add_u32 v4, v4, v6")
a("v_mul_u32_u24 v4, 1152, v4")
a("v_and_b32 v6, 3, v1")
a("v_lshl_add_u32 v4, v6, 3, v4")
a("s_lshl_b32 s44, s24, 7")
a(f"s_add_u32 s44, s44, {WD}")
a("v_add_u32 v4, s44, v4")
a("v_lshlrev_b32 v5, 4, v5")
a(f"v_add_u32 v5, {HB}, v5")
a("s_lshl_b32 s44, s24, 4")
a(f"s_add_u32 s44, s44, {HB}")
a("v_lshlrev_b32 v6, 1, v1")
a("v_add_u32 v6, s44, v6")
a("v_lshrrev_b32 v7, 5, v1")
a("v_mul_u32_u24 v7, 18432, v7")
a("v_and_b32 v59, 31, v1")
a("v_lshl_add_u32 v7, v59, 2, v7")
a("s_mul_i32 s50, s28, 18")
a("s_add_u32 s50, s50, s27")
a("s_lshl_b32 s50, s50, 7")
a("s_mul_i32 s45, s24, 36864")
a("s_add_u32 s50, s50, s45")
a("s_add_u32 s50, s50, s39")
a(f"s_add_u32 s50, s50, {X3}")
a("s_mov_b32 s52, 0xffff0000")
a("s_mov_b32 s53, 0xffff0000")
a("s_mov_b32 s40, 0")
a("s_mov_b32 s41, -1")
a("s_cmp_eq_u32 s24, 3")
a("s_cbranch_scc1 LC_BAR")
a("v_lshrrev_b32 v56, 4, v1")
a("v_mul_u32_u24 v56, 2304, v56")
a("v_and_b32 v8, 15, v1")
a("v_lshl_add_u32 v56, v8, 4, v56")
a("s_mul_i32 s48, s24, 768")
a("s_add_u32 s44, s48, s39")
a(f"s_add_u32 s44, s44, {X2}")
for g in range(1, 4):
    a(f"s_add_u32 s{44+g}, s44, {g*9216}")
a("v_bfe_u32 v9, v1, 4, 1")
a("v_lshlrev_b32 v9, 1, v9")
a("v_lshrrev_b32 v10, 5, v1")
a("v_add_u32 v9, v9, v10")
a("v_lshl_add_u32 v9, v8, 2, v9")
a("v_lshrrev_b32 v10, 5, v9")
a("v_lshlrev_b32 v10, 6, v10")
a("v_lshl_add_u32 v10, v9, 1, v10")
a(f"s_add_u32 s49, s48, {LB0+X4}")
a("s_lshr_b32 s48, s48, 1")
a("v_lshlrev_b32 v9, 1, v9")
a("v_add_u32 v9, s48, v9")
a(f"v_add_u32 v59, {XB}, v9")
a("s_cmp_eq_u32 s31, 0")
a("s_cbranch_scc0 LC_X2")
a("s_load_dwordx2 s[32:33], s[0:1], 0")
a("s_mov_b32 s34, 1152")
a("s_mov_b32 s35, 0x20000")
a("s_waitcnt lgkmcnt(0)")
a("s_and_b32 s33, s33, 0xffff")
for c in range(3):
    a(f"buffer_load_ushort v{60+c}, v9, s[32:35], 0 offen offset:{c*128}")
a("s_branch LC_X3")
a.label("LC_X2")
for c in range(3):
    a(f"buffer_load_ushort v{60+c}, v10, s[12:15], s49 offen offset:{c*256} sc1")
a.label("LC_X3")
a("s_waitcnt vmcnt(0)")
for c in range(3):
    a(f"v_lshlrev_b32 v{60+c}, 16, v{60+c}")
a.label("LE2")
for c in range(3):
    for g in range(4):
        a(f"buffer_load_dwordx4 {R('v', 8+16*c+4*g)}, v56, s[12:15], s{44+g} offen offset:{c*256} sc1")
for c in range(3):
    b = 8 + 16 * c
    a(f"s_waitcnt vmcnt({8-4*c})")
    for r in range(4):
        a(f"v_add_f32 v{b+r}, v{b+r}, v{b+4+r}")
        a(f"v_add_f32 v{b+8+r}, v{b+8+r}, v{b+12+r}")
    for r in range(4):
        a(f"v_add_f32 v{b+r}, v{b+r}, v{b+8+r}")
    if OPT["e1f"] and c < 2:
        a(f"v_cmp_u_f32 vcc, v{b}, v{b+3}")
        a("s_cbranch_vccnz LE2R")
    swapreduce(b)
a("v_add_f32 v9, v8, v24")
a("v_cmp_u_f32 vcc, v9, v40")
a("s_cbranch_vccz LE2OK")
a.label("LE2R")
retry("LE2", "LE2OK")
a.label("LE2OK")
a("s_waitcnt vmcnt(0)")
stamp(5)
for c in range(3):
    bf16r(8 + 16 * c, 8 + 16 * c)
for c in range(3):
    a(f"v_add_f32 v{60+c}, v{60+c}, v{8+16*c}")
for c in range(3):
    a(f"v_cvt_pk_bf16_f32 v{60+c}, v{60+c}, v{60+c}")
for c in range(3):
    a(f"ds_write_b16 v59, v{60+c} offset:{c*128}")
a.label("LC_BAR")
a("s_waitcnt lgkmcnt(0)")
a("s_barrier")
a("s_call_b64 s[36:37], LLNG")


def downB(i):
    for t in range(4):
        s = 8 + 16 * (i & 1) + 4 * t
        a(f"ds_read_b64_tr_b16 {R('v', s, 2)}, v4 offset:{i*512+t*32}")
        a(f"ds_read_b64_tr_b16 {R('v', s+2, 2)}, v4 offset:{i*512+t*32+4*1152}")


a(f"v_mov_b32_dpp v41, v60 row_shl:8{DPPM} bound_ctrl:1")
a("v_cvt_pk_bf16_f32 v41, v60, v41")
a("v_lshlrev_b32 v42, 16, v41")
a("v_and_b32 v41, 0xffff0000, v41")
a("v_max_f32 v42, 0, v42")
a("v_mul_f32 v41, v42, v41")
a("v_cvt_pk_bf16_f32 v41, v41, v41")
a("s_mov_b64 exec, 0xff")
a("ds_write_b16 v6, v41")
a("s_mov_b64 exec, -1")
downB(0)
a("s_waitcnt lgkmcnt(8)")
a("s_barrier")
a("ds_read_b128 v[60:63], v5")
a("s_waitcnt lgkmcnt(5)")
downB(1)


def downG(i, wait):
    a(f"s_waitcnt lgkmcnt({wait})")
    for t in range(4):
        s = 8 + 16 * (i & 1) + 4 * t
        a(f"v_mfma_f32_16x16x32_bf16 {R('v', 40+4*t)}, v[60:63], {R('v', s)}, 0")
    a("v_cndmask_b32 v40, v40, v44, s[52:53]")
    a("v_cndmask_b32 v48, v48, v52, s[52:53]")
    a("v_cndmask_b32 v40, v40, v48, s[40:41]")
    a("buffer_store_dword v40, v7, s[12:15], s50 offen sc1")
    a(f"s_add_u32 s50, s50, {4*36864}")


downG(0, 8)
a("s_cmp_eq_u32 s24, 0")
a("s_cbranch_scc1 LDOWN3")
downG(1, 0)
a("s_branch LSTD")
a.label("LDOWN3")
a("s_waitcnt lgkmcnt(0)")
downB(2)
downG(1, 8)
downG(2, 0)
a.label("LSTD")
stamp(6)
a("s_lshl_b32 s50, s27, 3")
a("s_add_u32 s50, s50, s28")
a("s_cmp_lt_u32 s50, 18")
a("s_cbranch_scc0 LSTQ")
a("s_mul_i32 s44, s50, 18432")
a("s_mul_i32 s45, s24, 4608")
a("s_add_u32 s44, s44, s45")
a("s_add_u32 s44, s44, s39")
a(f"s_add_u32 s44, s44, {X3}")
a("s_add_u32 s45, s44, 4096")
a("v_bfe_u32 v58, v1, 4, 1")
a("v_lshlrev_b32 v58, 1, v58")
a("v_lshrrev_b32 v59, 5, v1")
a("v_add_u32 v58, v58, v59")
a("v_and_b32 v59, 7, v1")
a("v_lshl_add_u32 v58, v59, 2, v58")
a("v_lshlrev_b32 v58, 2, v58")
a("s_lshl_b32 s46, s24, 7")
a(f"s_add_u32 s46, s46, {FB}")
a("v_add_u32 v58, s46, v58")
for r in range(4):
    a(f"v_mov_b32 v{24+r}, 0")
a.label("LE3")
for i in range(4):
    a(f"buffer_load_dwordx4 {R('v', 8+4*i)}, v3, s[12:15], s44 offen offset:{i*1024} sc1")
a("s_mov_b32 exec_hi, 0")
a("buffer_load_dwordx4 v[24:27], v3, s[12:15], s45 offen sc1")
a("s_mov_b64 exec, -1")
a("s_waitcnt vmcnt(0)")
for r in range(4):
    a(f"v_add_f32 v{8+r}, v{8+r}, v{12+r}")
    a(f"v_add_f32 v{16+r}, v{16+r}, v{20+r}")
for r in range(4):
    a(f"v_add_f32 v{8+r}, v{8+r}, v{24+r}")
for r in range(4):
    a(f"v_add_f32 v{8+r}, v{8+r}, v{16+r}")
swapreduce(8)
a(f"v_add_f32_dpp v8, v8, v8 row_ror:8{DPPM}")
a("v_cmp_u_f32 vcc, v8, v8")
a("s_cbranch_vccz LE3OK")
retry("LE3", "LE3OK")
a.label("LE3OK")
stamp(7)
a("ds_write_b32 v58, v8")
a("v_lshlrev_b32 v8, 2, v1")
a(f"v_add_u32 v9, {FB}, v8")
a("s_lshl_b32 s45, s50, 6")
a(f"s_add_u32 s46, s45, {XB}")
a("v_lshlrev_b32 v8, 1, v1")
a("v_add_u32 v10, s46, v8")
a("s_waitcnt lgkmcnt(0)")
a("s_barrier")
a("s_cmp_eq_u32 s24, 0")
a("s_cbranch_scc0 LSTQ")
a("s_mov_b32 exec_hi, 0")
for w in range(4):
    a(f"ds_read_b32 v{12+w}, v9 offset:{128*w}")
a("ds_read_u16 v16, v10")
a("s_waitcnt lgkmcnt(0)")
a("v_lshlrev_b32 v16, 16, v16")
a("v_add_f32 v12, v12, v13")
a("v_add_f32 v14, v14, v15")
a("v_add_f32 v12, v12, v14")
bf16r(12, 12)
a("v_add_f32 v12, v12, v16")
a(f"v_mov_b32_dpp v13, v12 quad_perm:[1,1,3,3]{DPPM}")
a("v_cvt_pk_bf16_f32 v12, v12, v13")
a("s_mov_b32 exec_lo, 0x55555555")
a("s_cmp_eq_u32 s31, 0")
a("s_cbranch_scc0 LFINAL")
a("s_lshl_b32 s45, s50, 7")
a("s_add_u32 s45, s45, s39")
a(f"s_add_u32 s45, s45, {X4}")
a("buffer_store_dword v12, v8, s[12:15], s45 offen sc1")
a("s_mov_b64 exec, -1")
a("s_branch LSTQ")
a.label("LFINAL")
a("buffer_store_dword v12, v8, s[16:19], s45 offen")
a("s_mov_b64 exec, 1")
a("s_cmp_eq_u32 s50, 0")
a("s_cbranch_scc0 LNOEP")
a("v_mov_b32 v9, s29")
a("buffer_store_dword v9, v8, s[12:15], 0 offen sc1")
a.label("LNOEP")
a("s_mov_b64 exec, -1")
a.label("LSTQ")
stamp(8)
a("s_cmp_eq_u32 s31, 0")
a("s_cbranch_scc0 LDONE")
if OPT["npf"]:
    a("s_cmp_lt_u32 s27, 18")
    a("s_cbranch_scc1 LQ5")
    a("v_lshlrev_b32 v34, 7, v1")
    a("s_lshl_b32 s44, s26, 2")
    a("s_add_u32 s44, s44, s24")
    a("s_lshl_b32 s44, s44, 13")
    for n in range(OPT["npf"]):
        a(f"s_add_u32 s45, s44, {(4+n)*UNIT_STEP}")
        a(f"buffer_load_dword v35, v34, s[4:7], s45 offen{PFK}")
        a(f"buffer_load_dword v36, v34, s[8:11], s45 offen{PFV}")
a("s_cmp_ge_u32 s27, 24")
a("s_cbranch_scc0 LQ5")
qprep(X5)
a("s_waitcnt lgkmcnt(0)")
a(f"s_add_u32 s44, s39, {X4}")
a("v_lshrrev_b32 v16, 2, v1")
a("v_lshlrev_b32 v16, 7, v16")
a("v_and_b32 v17, 3, v1")
a("v_lshl_add_u32 v16, v17, 4, v16")
for r in range(4):
    a(f"v_mov_b32 v{12+r}, 0")
a.label("LE4")
a("buffer_load_dwordx4 v[8:11], v16, s[12:15], s44 offen sc1")
a("s_mov_b64 exec, 0xff")
a("buffer_load_dwordx4 v[12:15], v16, s[12:15], s44 offen offset:2048 sc1")
a("s_mov_b64 exec, -1")
a("s_waitcnt vmcnt(0)")
a("v_max3_u32 v17, v8, v9, v10")
a("v_max3_u32 v18, v11, v12, v13")
a("v_max3_u32 v17, v17, v14, v15")
a("v_max_u32 v17, v17, v18")
a("v_cmp_eq_u32 vcc, -1, v17")
a("s_cbranch_vccz LE4OK")
retry("LE4", "LE4OK")
a.label("LE4OK")
stamp(9)
a("s_call_b64 s[36:37], LQSTAGE")
a.label("LQ5")
if STAMPS:
    a("s_memrealtime s[58:59]")
    a("s_waitcnt lgkmcnt(0)")
    a("s_mov_b32 s74, s58")
a("s_mov_b32 s31, 1")
a(f"s_add_u32 s39, s39, {LSTRIDE}")
loopconsts()
a(f"s_mov_b32 s96, {NP2}")
a("s_mov_b32 s91, 0")
a("s_mov_b32 s95, s97")
a("v_lshlrev_b32 v40, 2, v0")
a(f"v_add_u32 v40, {LSV}, v40")
a(f"ds_read_b32 v{VL}, v40")
qpoll_addr(X5)
a("v_lshlrev_b32 v33, 2, v1")
a(f"v_add_u32 v33, {SA}, v33")
a("s_waitcnt lgkmcnt(0)")
if OPT["q1w"]:
    a("s_cmp_eq_u32 s24, 0")
    a("s_cbranch_scc1 LQPOLL")
    a("s_barrier")
    for i in range(4):
        a(f"ds_read_b32 v{24+2*i}, v33 offset:{256*i}")
    a("s_waitcnt lgkmcnt(0)")
    a("s_branch LQREADY2")
else:
    a("s_branch LQPOLL")

a.label("LQSTAGE")
a("ds_write_b128 v2, v[8:11]")
a("s_mov_b64 exec, 0xff")
a("ds_write_b128 v2, v[12:15] offset:1024")
a("s_mov_b64 exec, -1")
a("s_mov_b64 s[52:53], s[36:37]")
a("s_waitcnt lgkmcnt(1)")
a("s_call_b64 s[36:37], LLNG")
a("v_lshlrev_b32 v8, 2, v1")
a("v_mov_b32 v11, s29")
a(f"v_mov_b32_dpp v9, v60 quad_perm:[1,1,3,3]{DPPM}")
a("v_cvt_pk_bf16_f32 v10, v60, v9")
a("s_mov_b64 exec, 0x5555")
a("buffer_store_dwordx2 v[10:11], v8, s[12:15], s54 offen sc1")
a("s_mov_b64 exec, -1")
a("s_setpc_b64 s[52:53]")

a.label("LLNG")
lngemv()
a("s_setpc_b64 s[36:37]")

a.vq = sum((qtags(f"R{q}") for q in range(RN)), [])
for s in range(RN):
    lp, lg, ln, lb, lx = (a.newlabel(x) for x in ("pool", "go", "noapp", "bonly", "next"))
    a.label(f"LRING{s}")
    a(f"s_mov_b32 s3, {s}")
    if OPT["hv"]:
        a(f"s_waitcnt vmcnt({OPT['hv']})")
    ticket_ready()
    if not OPT["lfirst"]:
        a("s_cmp_ge_u32 s90, s55")
        a("s_cbranch_scc1 LRINGX")
        a("s_cmp_ge_u32 s101, s37")
        a("s_cbranch_scc1 LRINGX")
    a("s_cmp_lt_u32 s91, s92")
    a(f"s_cbranch_scc0 {lp}")
    if OPT["lrev"]:
        a("s_sub_u32 s92, s92, 1")
        a(f"v_readlane_b32 s32, v{VL}, s92")
    else:
        a(f"v_readlane_b32 s32, v{VL}, s91")
        a("s_add_u32 s91, s91, 1")
    a(f"s_branch {lg}")
    a.label(lp)
    if OPT["lfirst"]:
        a("s_cmp_ge_u32 s90, s55")
        a("s_cbranch_scc1 LRINGX")
        a("s_cmp_ge_u32 s101, s37")
        a("s_cbranch_scc1 LRINGX")
    draw(s, f"LDRAINE{s}")
    a.label(lg)
    setaddr(32, 32)
    a("s_add_u32 s101, s101, 1")
    a(f"s_bitcmp1_b32 s95, {s}")
    a(f"s_cbranch_scc0 {lb}")
    unit("v", RING[s], f"R{s}", f"R{s}n")
    logt()
    q1 = [(t[0].rstrip("n"), t[1], t[2]) for t in a.vq]
    a(f"s_branch LRING{(s+1)%RN}")
    a.label(lb)
    a(f"s_bitset1_b32 s95, {s}")
    for t in range(8):
        ldK("v", RING[s], t, "x")
    for t in range(8):
        ldV("v", RING[s], t, "x")
    a(f"s_branch LRING{(s+1)%RN}")
    a.vq = q1
a.label("LRINGX")
for k in range(1, NB + 1):
    a(f"s_cmp_eq_u32 s36, {k}")
    a(f"s_cbranch_scc1 LRET{k}")
a(f"s_branch LRET{NB+1}")

for s in range(RN):
    a.label(f"LDRAINE{s}")
    a("v_mov_b32 v48, 0")
    a("buffer_load_dword v49, v48, s[20:23], 0 offen sc1")
    a("s_mov_b32 s93, 0")
    a("s_mov_b64 s[98:99], 0")
    a("s_atomic_add_x2 s[98:99], s[88:89], 16 glc")
    a("s_bcnt1_i32_b32 s44, s97")
    a("s_sub_u32 s92, s94, s44")
    a(f"s_branch LDRAIN{s}")
for s in range(RN):
    a.label(f"LDRAIN{s}")
    lsk = a.newlabel("dsk")
    a(f"s_bitcmp1_b32 s95, {s}")
    a(f"s_cbranch_scc0 {lsk}")
    unit_drain(RING[s])
    a.label(lsk)
    a("s_add_u32 s93, s93, 1")
    a(f"s_cmp_eq_u32 s93, {RN}")
    a("s_cbranch_scc1 LPASSEND")
a("s_branch LDRAIN0")

a.label("LDONE")
if OPT["padto"]:
    if OPT["padmin"]:
        a("s_mov_b32 s100, 0")
        a("s_atomic_add s100, s[84:85], 64 glc")
        a("s_waitcnt lgkmcnt(0)")
        a("s_not_b32 s100, s100")
    a.label("LPAD")
    a("s_memrealtime s[58:59]")
    a("s_waitcnt lgkmcnt(0)")
    a("s_sub_u32 s58, s58, s100")
    a(f"s_cmp_lt_u32 s58, {OPT['padto']*100}")
    a("s_cbranch_scc1 LPAD")
if STAMPS:
    a("s_memrealtime s[58:59]")
    a("s_waitcnt lgkmcnt(0)")
    a("s_mov_b32 s87, s58")
    a("s_lshl_b32 s44, s2, 2")
    a("s_add_u32 s44, s44, s24")
    a("s_lshl_b32 s44, s44, 7")
    a(f"s_add_u32 s44, s44, {STAMP_OFF}")
    a("v_mov_b32 v8, 0")
    a("s_mov_b64 exec, 1")
    for i in range(24):
        a(f"v_mov_b32 v9, s{64+i}")
        a(f"buffer_store_dword v9, v8, s[12:15], s44 offen offset:{4*i}")
    a("v_mov_b32 v9, s100")
    a("buffer_store_dword v9, v8, s[12:15], s44 offen offset:96")
    for i, r in enumerate((57, 92, 57, 57, 57, 94)):
        a(f"v_mov_b32 v9, s{r}")
        a(f"buffer_store_dword v9, v8, s[12:15], s44 offen offset:{100+4*i}")
    if OPT["dbgout"]:
        a("s_or_b32 s44, s2, s24")
        a("s_cmp_eq_u32 s44, 0")
        a("s_cbranch_scc0 LEND")
        for i, r in enumerate((64, 65, 66, 69, 70, 71, 72, 76, 77, 78, 81, 82, 83, 87)):
            a(f"s_sub_u32 s44, s{r}, s100")
            a("v_mov_b32 v9, s44")
            a(f"buffer_store_dword v9, v8, s[20:23], 0 offen offset:{4+4*i}")
    a("s_waitcnt vmcnt(0)")
a.label("LEND")
a("s_endpgm")

hdr = open("cdna_kernels/" + NAME + ".s.ref").read().split("\n")
top = [l for l in hdr if l.startswith(";") and "@launch" not in l]
out = "\n".join(top) + "\n"
out += f"; @launch grid=(256,1,1) block=(256,1,1) lds={LDS_SIZE}\n"
out += f""".amdgcn_target "amdgcn-amd-amdhsa--gfx950"
.text
.globl {NAME}_kernel
.p2align 8
.type {NAME}_kernel,@function
"""
out += a.text()
out += f""".section .rodata,"a"
.p2align 6
.amdhsa_kernel {NAME}_kernel
  .amdhsa_next_free_vgpr 512
  .amdhsa_next_free_sgpr 102
  .amdhsa_accum_offset 256
  .amdhsa_group_segment_fixed_size 0
  .amdhsa_kernarg_size 96
  .amdhsa_user_sgpr_count 2
  .amdhsa_user_sgpr_kernarg_segment_ptr 1
  .amdhsa_system_sgpr_workgroup_id_x 1
.end_amdhsa_kernel
"""
import re
if OPT["xl"]:
    out = re.sub(r"(buffer_load\S+ .*) sc1$", r"\1 sc0 sc1", out, flags=re.M)
if OPT["xs"]:
    out = re.sub(r"(buffer_store\S+ .*) sc1$", r"\1 sc0 sc1", out, flags=re.M)
open(sys.argv[1], "w").write(out)
```

```python
import sys, struct, math
from asmlib import Asm

NAME = "interleave_layers__gqa_block_cached__glu_gated_reglu__decode"
OPT = dict(stamps=0, p2rev=0, kvpol="nt", wpol="nt", wskip=0, vring="def", kring="nt", tfw=3, psleep=1, npf=0, thrp=80, pr=1110, eg=0, gv=8, xl=0, xs=0, padto=0, q1w=1, lfirst=1, lrev=0, rn=1, rbal=1, hsw=0, sline=1, tk2=0, klate=1, wcl=0, hv=0, lv=0, alt=3, e1f=1, mixx=1, rot=0, padmin=0, cn=1, vote=1, avpol="def", forcecls=-1, dbgout=0, pfk="nt", pfv="def")
for arg in sys.argv[2:]:
    k, v = arg.split("=")
    OPT[k] = int(v) if v.lstrip("-").isdigit() else v
STAMPS = OPT["stamps"]
TKI = 2 if OPT["tk2"] else 1
KVPOL = "" if OPT["kvpol"] == "def" else " " + OPT["kvpol"]
WPOL = "" if OPT["wpol"] == "def" else " " + OPT["wpol"]
PFK = "" if OPT["pfk"] == "def" else " " + OPT["pfk"]
PFV = "" if OPT["pfv"] == "def" else " " + OPT["pfv"]


def f32(x):
    return "0x%08x" % struct.unpack("<I", struct.pack("<f", x))[0]


X0 = 0x1000
X5 = 0x9000
CTR = 0x11000
LB0 = 0x20000
LSTRIDE = 0xC0000
X1 = 0x0
X1S = 1280
X2 = 0x50000
X3 = 0x59000
X4 = 0xAA000
STAMP_OFF = 0x200000
WS_SIZE = 0x400000
RN = OPT["rn"]
NR = 14 - 2 * RN
NB = NR + 1
PB = 256 + 64 * NB
NP1 = 2048 - PB
TF = NP1 - OPT["tfw"] * 64
NP2 = 128 + TF // 2
THR0 = 32
THRS = (NP2 * OPT["thrp"] // 100 - THR0) // NB
WGU = 0
TS = 18432
WD = 73728
FB = 110592
HB = 111104
WO = 0
WOS = 8192
WQ = 49152
SA = 122880
CB1 = SA
CS1 = SA + 4096
XB = SA
OB = 127488
LSV = 128000
ONES = 129088
KL = 130304
LDS_SIZE = 163072

UNIT_STEP = 524288
DPPM = " row_mask:0xf bank_mask:0xf"
a = Asm()
stamp_n = [0]


def stamp(i):
    if not STAMPS:
        return
    a("s_memrealtime s[58:59]")
    a("s_waitcnt lgkmcnt(0)")
    lab = a.newlabel("st")
    a(f"s_mov_b32 s{64+12+i}, s58")
    a("s_cmp_eq_u32 s31, 0")
    a(f"s_cbranch_scc0 {lab}")
    a(f"s_mov_b32 s{64+i}, s58")
    a.label(lab)


def sstamp(reg):
    if True:
        return
    a("s_memrealtime s[58:59]")
    a("s_waitcnt lgkmcnt(0)")
    a(f"s_mov_b32 s{reg}, s58")


def logt():
    if STAMPS != 2:
        return
    a("s_memrealtime s[58:59]")
    a("s_waitcnt lgkmcnt(0)")
    a("s_mov_b32 m0, s93")
    a("s_add_u32 s93, s93, 1")
    a("s_min_u32 s93, s93, 63")
    a("v_writelane_b32 v51, s58, m0")


def R(kind, base, n=4):
    return f"{kind}[{base}:{base+n-1}]"


def srd(d, lo, hi, size):
    a(f"s_mov_b32 s{d}, s{lo}")
    a(f"s_and_b32 s{d+1}, s{hi}, 0xffff")
    a(f"s_mov_b32 s{d+2}, {size}")
    a(f"s_mov_b32 s{d+3}, 0x20000")


def srd_role(d, lo, hi, size):
    a(f"s_cselect_b32 s{d+2}, {size}, 0")
    a(f"s_mov_b32 s{d}, s{lo}")
    a(f"s_and_b32 s{d+1}, s{hi}, 0xffff")
    a(f"s_mov_b32 s{d+3}, 0x20000")


def ld(kind, reg, t, src, half, pol, tag):
    if OPT["lv"] and (t & 1) == 0:
        a(f"s_waitcnt vmcnt({OPT['lv']})")
    srd_, vo = {"K": ("s[4:7]", "v2"), "K2": ("s[60:63]", "v51"), "V": ("s[8:11]", "v3")}[src]
    a(f"buffer_load_dwordx4 {R(kind, reg+4*t)}, {vo}, {srd_}, s{32+2*half+(t>>2)} offen offset:{(t&3)*1024}{pol}", tag=tag)


VPOL = "" if OPT["vring"] == "def" else " nt"


def ldK(kind, base, t, tag):
    ld(kind, base, t, "K", 0, " nt", (tag, "K", t))


def ldV(kind, base, t, tag):
    ld(kind, base + 32, t, "V", 1, ("" if OPT["avpol"] == "def" else " nt") if kind == "a" else VPOL, (tag, "V", t))


def adv():
    for r in range(32, 36):
        a(f"s_add_u32 s{r}, s{r}, {UNIT_STEP}")


def setaddr(k, v):
    if v is not None:
        if OPT["hsw"]:
            a(f"s_or_b32 s34, s{v}, vcc_hi")
        elif v != 34:
            a(f"s_mov_b32 s34, s{v}")
        a("s_xor_b32 s35, s34, 4096")
    if k is not None:
        if OPT["hsw"]:
            a(f"s_or_b32 s32, s{k}, vcc_hi")
        elif k != 32:
            a(f"s_mov_b32 s32, s{k}")
        a("s_xor_b32 s33, s32, 4096")


def hswinit():
    if OPT["hsw"]:
        a("s_and_b32 vcc_hi, s24, 1")
        a("s_lshl_b32 vcc_hi, vcc_hi, 12")


def burst(kind, base, tag):
    for t in range(8):
        ldK(kind, base, t, tag)
    for t in range(8):
        ldV(kind, base, t, tag)
    adv()
    logt()


def waitq(tag, floor=0):
    if tag in a.vq:
        a.wait_vm(tag, floor)


def allreduce(op, v, t, first=0):
    steps = ["quad_perm:[1,0,3,2]", "quad_perm:[2,3,0,1]", "row_half_mirror", "row_mirror"]
    for s in steps[first:]:
        a(f"{op}_dpp v{v}, v{v}, v{v} {s}{DPPM}")
    rows(op, v, t)


def rows(op, v, t):
    a(f"v_mov_b32 v{t}, v{v}")
    a(f"v_permlane16_swap_b32 v{v}, v{t}")
    a(f"{op} v{v}, v{v}, v{t}")
    a(f"v_mov_b32 v{t}, v{v}")
    a(f"v_permlane32_swap_b32 v{v}, v{t}")
    a(f"{op} v{v}, v{v}, v{t}")


QE, QO, OA, MS, LS, NMC = 8, 12, 16, 20, 21, 22
DS_ = [24, 28, 32, 36]
TT = 40
TMP = 44


def unit2(K, V, kt=None, vt=None, rk=None, rv=None, hooks=None, tt=TT):
    if K is not None:
        if hooks:
            hooks[0]()
        for u in range(4):
            if kt:
                waitq(kt(2 * u + 1))
            d = R("v", DS_[u])
            a(f"v_mfma_f32_16x16x32_bf16 {d}, {R(K[0], K[1]+8*u)}, {R('v', QE)}, 0")
            a(f"v_mfma_f32_16x16x32_bf16 {d}, {R(K[0], K[1]+8*u+4)}, {R('v', QO)}, {d}")
            if rk:
                rk(2 * u)
                rk(2 * u + 1)
        order = [(0, 0), (1, 0), (2, 0), (0, 1), (1, 1), (2, 1), (0, 2), (1, 2), (3, 0), (2, 2), (0, 3), (3, 1),
                 (1, 3), (2, 3), (3, 2), None, (3, 3)]
        for o in order:
            if o is None:
                if V is not None:
                    a(f"v_max3_f32 v{TMP}, v{tt}, v{tt+1}, v{MS}")
                continue
            u, c = o
            qp = f"quad_perm:[{c},{c},{c},{c}]"
            if c == 0:
                a(f"v_mov_b32_dpp v{tt+u}, v{DS_[u]} {qp}{DPPM}")
            else:
                a(f"v_add_f32_dpp v{tt+u}, v{DS_[u]+c}, v{tt+u} {qp}{DPPM}")
    if V is None:
        return
    if K is None:
        a(f"v_max3_f32 v{TMP}, v{tt}, v{tt+1}, v{MS}")
    a(f"v_max3_f32 v{TMP}, v{TMP}, v{tt+2}, v{tt+3}")
    a(f"v_max_f32_dpp v{TMP}, v{TMP}, v{TMP} row_half_mirror{DPPM}")
    rows("v_max_f32", TMP, TMP + 1)
    a(f"v_sub_f32 v{TMP+1}, v{MS}, v{TMP}")
    a(f"v_mul_f32 v{TMP+1}, s30, v{TMP+1}")
    a(f"v_exp_f32 v{TMP+1}, v{TMP+1}")
    a(f"v_mov_b32 v{MS}, v{TMP}")
    a(f"v_mul_f32 v{NMC}, s30, v{TMP}")
    for u in range(4):
        a(f"v_fma_f32 v{tt+u}, v{tt+u}, s30, -v{NMC}")
    for u in range(4):
        a(f"v_exp_f32 v{tt+u}, v{tt+u}")
    a(f"v_mul_f32 v{LS}, v{LS}, v{TMP+1}")
    for r in range(4):
        a(f"v_mul_f32 v{OA+r}, v{OA+r}, v{TMP+1}")
    a(f"v_add_f32 v{TMP+2}, v{tt}, v{tt+1}")
    a(f"v_add_f32 v{TMP+3}, v{tt+2}, v{tt+3}")
    for u in range(4):
        a(f"v_cvt_pk_bf16_f32 v{tt+u}, v{tt+u}, v{tt+u}")
    a(f"v_add_f32 v{TMP+2}, v{TMP+2}, v{TMP+3}")
    a(f"v_add_f32 v{LS}, v{LS}, v{TMP+2}")

    def buildB(t):
        b = DS_[t & 3]
        p = tt + (t >> 1)
        for i in range(4):
            own = (i < 2) == ((t & 1) == 0)
            if own:
                a(f"v_and_b32 v{b+i}, v{p}, v{4+i}")
            else:
                sh = "row_shr:4" if (t & 1) == 0 else "row_shl:4"
                a(f"v_and_b32_dpp v{b+i}, v{p}, v{4+i} {sh}{DPPM} bound_ctrl:1")

    buildB(0)
    if hooks:
        hooks[1]()
    for t in range(8):
        if t + 1 < 8:
            buildB(t + 1)
        if vt:
            waitq(vt(t))
        a(f"v_mfma_f32_16x16x32_bf16 {R('v', OA)}, {R(V[0], V[1]+4*t)}, {R('v', DS_[t&3])}, {R('v', OA)}")
        if rv:
            rv(t)


def unit(kind, base, tag, reload_tag=None, hooks=None):
    rk = rv = None
    if reload_tag is not None:
        rk = lambda t: ldK(kind, base, t, reload_tag)
        rv = lambda t: ldV(kind, base, t, reload_tag)
    unit2((kind, base), (kind, base + 32), lambda t: (tag, "K", t), lambda t: (tag, "V", t), rk, rv, hooks)


probe_k = [0]


def probe(kind="V"):
    k = probe_k[0]
    probe_k[0] += 1
    srd_, base = ("s[8:11]", 55) if kind == "V" else ("s[4:7]", 96)
    for c in ((0, 1) if k & 1 else (1, 0)):
        a(f"s_add_u32 s50, s57, {(c ^ 1)*8192 + k*1152}")
        a("s_memtime s[52:53]")
        a("s_waitcnt lgkmcnt(0)")
        a(f"s_buffer_load_dword s51, {srd_}, s50")
        a("s_waitcnt lgkmcnt(0)")
        a("s_memtime s[50:51]")
        a("s_waitcnt lgkmcnt(0)")
        a("s_sub_u32 s50, s50, s52")
        a(f"s_min_u32 s{base+c}, s{base+c}, s50")


def qtags(tag):
    return [(tag, "K", t) for t in range(8)] + [(tag, "V", t) for t in range(8)]


RING = [64, 128, 192]


def bf16r(d, s):
    a(f"v_cvt_pk_bf16_f32 v{d}, v{s}, v{s}")
    a(f"v_and_b32 v{d}, 0xffff0000, v{d}")


def afrag_addr(v, base_sgpr=None, base=0):
    a(f"v_lshrrev_b32 v{v}, 4, v1")
    a(f"v_lshlrev_b32 v{v}, 4, v{v}")
    if base:
        a(f"v_add_u32 v{v}, {base}, v{v}")
    if base_sgpr is not None:
        a(f"v_add_u32 v{v}, s{base_sgpr}, v{v}")


def lng_addr():
    a("v_add_u32 v2, s44, v3")
    a("v_mov_b32 v57, s44")
    a(f"v_mov_b32 v58, {ONES}")
    a("s_mov_b32 s46, 0x00020002")
    a("s_mov_b32 s47, 0x00020002")
    a("v_cndmask_b32 v57, v57, v58, s[46:47]")
    a("v_lshrrev_b32 v58, 4, v1")
    a("v_lshl_add_u32 v57, v58, 4, v57")
    a("v_lshlrev_b32 v58, 3, v1")
    a("v_add_u32 v58, s45, v58")


def lngemv():
    S, nk, T, acc = 4, 18, 8, 60
    s, q, t, t2, one = 48, 49, 50, 51, 52
    f = []
    for i in range(8):
        f.append(f"v_dot2c_f32_bf16 v{s}, v{40+i}, v{one}")
        f.append(f"v_dot2c_f32_bf16 v{q}, v{40+i}, v{40+i}")
    f.append("s_nop 1")
    for st in ("quad_perm:[1,0,3,2]", "quad_perm:[2,3,0,1]", "row_half_mirror", "row_mirror"):
        f.append(f"v_add_f32_dpp v{s}, v{s}, v{s} {st}{DPPM}")
        f.append(f"v_add_f32_dpp v{q}, v{q}, v{q} {st}{DPPM}")
    f.append(f"v_permlane16_swap_b32 v{s}, v{q}")
    f.append(f"v_add_f32 v{s}, v{s}, v{q}")
    f.append(f"v_mov_b32 v{t}, v{s}")
    f.append(f"v_permlane32_swap_b32 v{s}, v{t}")
    f.append(f"v_add_f32 v{s}, v{s}, v{t}")
    f.append(f"v_mul_f32 v{s}, {f32(1.0/576)}, v{s}")
    f.append(f"v_mov_b32 v{q}, v{s}")
    f.append(f"v_permlane16_swap_b32 v{s}, v{q}")
    f.append(f"v_fma_f32 v{q}, -v{s}, v{s}, v{q}")
    f.append(f"v_max_f32 v{q}, 0, v{q}")
    f.append(f"v_cvt_pk_bf16_f32 v{q}, v{s}, v{q}")
    f.append(f"v_lshlrev_b32 v{s}, 16, v{q}")
    f.append(f"v_and_b32 v{q}, 0xffff0000, v{q}")
    for op in (f"v_add_f32 v{q}, {f32(1e-5)}, v{q}", f"v_sqrt_f32 v{q}, v{q}"):
        f.append(op)
        f.append(f"v_cvt_pk_bf16_f32 v{q}, v{q}, v{q}")
        f.append(f"v_and_b32 v{q}, 0xffff0000, v{q}")
    f.append(f"v_rcp_f32 v{q}, v{q}")

    def issue(kk):
        z = T + 8 * (kk % S)
        a(f"ds_read_b128 {R('v', z)}, v57 offset:{kk*64}")
        a(f"ds_read_b64_tr_b16 {R('v', z+4, 2)}, v58 offset:{kk*1024}")
        a(f"ds_read_b64_tr_b16 {R('v', z+6, 2)}, v58 offset:{kk*1024+512}")

    for r in range(4):
        a(f"v_mov_b32 v{44+r}, 0")
    a("ds_read_b128 v[40:43], v2")
    a("s_mov_b64 exec, 0xff")
    a("ds_read_b128 v[44:47], v2 offset:1024")
    a("s_mov_b64 exec, -1")
    for kk in range(S):
        issue(kk)
    a(f"v_mov_b32 v{s}, 0")
    a(f"v_mov_b32 v{q}, 0")
    a(f"v_mov_b32 v{one}, 0x3f803f80")
    per = -(-len(f) // (nk // 2 + 1))
    for kk in range(0, nk, 2):
        a(f"s_waitcnt lgkmcnt({3*(min(nk, kk+S)-kk-2)})")
        for k2 in (kk, kk + 1):
            z = T + 8 * (k2 % S)
            c = "0" if k2 == 0 else R("v", acc)
            a(f"v_mfma_f32_16x16x32_bf16 {R('v', acc)}, {R('v', z)}, {R('v', z+4)}, {c}")
        for k2 in (kk, kk + 1):
            if k2 + S < nk:
                issue(k2 + S)
        for _ in range(per):
            if f:
                a(f.pop(0))
    while f:
        a(f.pop(0))
    a(f"v_fma_f32 v60, -v{s}, v61, v60")
    a(f"v_mul_f32 v60, v60, v{q}")


def retry(lab_again, lab_done):
    a("s_cmp_eq_u32 s38, 0")
    a(f"s_cbranch_scc1 {lab_done}")
    a("s_sub_u32 s38, s38, 1")
    if OPT["psleep"]:
        a(f"s_sleep {OPT['psleep']}")
    a(f"s_branch {lab_again}")


def combine(CB, CS):
    a("v_lshlrev_b32 v8, 2, v0")
    a(f"v_add_u32 v8, {CB}, v8")
    a("s_lshr_b32 s44, s24, 1")
    a("s_lshl_b32 s44, s44, 5")
    a(f"s_add_u32 s44, s44, {CS}")
    a("v_mov_b32 v9, s44")
    a("ds_read_b128 v[12:15], v9")
    a("ds_read_b128 v[16:19], v9 offset:16")
    for w in range(4):
        a(f"ds_read_b32 v{20+w}, v8 offset:{w*1024}")
    a("s_waitcnt lgkmcnt(4)")
    a("v_max3_f32 v26, v12, v14, v16")
    a("v_max_f32 v26, v26, v18")
    for w in range(4):
        a(f"v_sub_f32 v{12+2*w}, v{12+2*w}, v26")
    for w in range(4):
        a(f"v_exp_f32 v{12+2*w}, v{12+2*w}")
    a("v_mul_f32 v27, v13, v12")
    for w in range(1, 4):
        a(f"v_fmac_f32 v27, v{13+2*w}, v{12+2*w}")
    a("s_waitcnt lgkmcnt(0)")
    a("v_mul_f32 v24, v20, v12")
    for w in range(1, 4):
        a(f"v_fmac_f32 v24, v{20+w}, v{12+2*w}")


def qpoll_issue():
    a("buffer_load_dwordx4 v[24:27], v32, s[12:15], s45 offen sc1", tag="qp")
    a("buffer_load_dwordx4 v[28:31], v32, s[12:15], s45 offen offset:16 sc1", tag="qp")


def qpoll_addr(xoff):
    a("s_lshl_b32 s45, s25, 11")
    a(f"s_add_u32 s45, s45, {xoff}")
    a("v_bfe_u32 v32, v1, 3, 1")
    a("v_lshlrev_b32 v32, 10, v32")
    a("v_lshrrev_b32 v33, 4, v1")
    a("v_lshl_add_u32 v32, v33, 8, v32")
    a("v_bfe_u32 v33, v1, 1, 1")
    a("v_lshl_add_u32 v32, v33, 7, v32")
    a("v_and_b32 v33, 1, v1")
    a("v_lshl_add_u32 v32, v33, 5, v32")


def qpoll_check():
    a("v_cmp_ne_u32 s[46:47], s29, v25")
    a("v_cmp_ne_u32 s[48:49], s29, v27")
    a("v_cmp_ne_u32 s[50:51], s29, v29")
    a("v_cmp_ne_u32 s[52:53], s29, v31")
    a("s_or_b64 s[46:47], s[46:47], s[48:49]")
    a("s_or_b64 s[50:51], s[50:51], s[52:53]")
    a("s_or_b64 s[46:47], s[46:47], s[50:51]")


VL = 50


def unit_drain(base):
    def pwait(last):
        labs = [a.newlabel("dw") for _ in range(RN - 1)]
        for p in range(RN - 1):
            a(f"s_cmp_eq_u32 s93, {p}")
            a(f"s_cbranch_scc1 {labs[p]}")
        a(f"s_waitcnt vmcnt({last})")
        for p in reversed(range(RN - 1)):
            a.label(labs[p])
            a(f"s_waitcnt vmcnt({last + 16*(RN-1-p)})")
    a.vq = []
    unit("v", base, "none", None, hooks=(lambda: pwait(9), lambda: pwait(1)))


def kloc(i):
    return ("a", 32 * i) if i < 8 else ("v", 64 + 64 * RN + 32 * (i - 8))


def swapreduce(b):
    a(f"v_permlane32_swap_b32 v{b}, v{b+1}")
    a(f"v_permlane32_swap_b32 v{b+2}, v{b+3}")
    a(f"v_add_f32 v{b}, v{b}, v{b+1}")
    a(f"v_add_f32 v{b+2}, v{b+2}, v{b+3}")
    a(f"v_permlane16_swap_b32 v{b}, v{b+2}")
    a(f"v_add_f32 v{b}, v{b}, v{b+2}")


def kofs():
    a("v_bfe_u32 v40, v1, 2, 2")
    a("v_lshlrev_b32 v2, 8, v40")
    a("v_lshrrev_b32 v40, 4, v1")
    a("v_lshl_add_u32 v2, v40, 6, v2")
    a("v_and_b32 v40, 3, v1")
    a("v_lshl_add_u32 v2, v40, 4, v2")


def masks():
    a("v_and_b32 v40, 1, v1")
    a("v_lshlrev_b32 v40, 4, v40")
    a("v_mov_b32 v41, 0xffff")
    a("v_lshlrev_b32 v40, v40, v41")
    for i in range(4):
        m = 0x03030303 << (2 * i)
        a(f"s_mov_b32 s46, 0x{m:08x}")
        a(f"s_mov_b32 s47, 0x{m:08x}")
        a(f"v_cndmask_b32 v{4+i}, 0, v40, s[46:47]")


def loopconsts():
    kofs()
    masks()


def qprep(xoff):
    a("s_mul_i32 s44, s24, 1152")
    a(f"s_add_u32 s44, s44, {XB}")
    a(f"s_mul_i32 s45, s24, {TS}")
    a(f"s_add_u32 s45, s45, {WQ}")
    lng_addr()
    a("s_lshl_b32 s54, s28, 3")
    a("s_add_u32 s54, s54, s27")
    a("s_sub_u32 s54, s54, 24")
    a("s_lshl_b32 s54, s54, 2")
    a("s_add_u32 s54, s54, s24")
    a("s_lshl_b32 s54, s54, 7")
    a(f"s_add_u32 s54, s54, {xoff}")


def ones_init():
    for r in range(4):
        a(f"v_mov_b32 v{16+r}, 0x3f803f80")
    a(f"v_add_u32 v20, {ONES}, v3")
    a("ds_write_b128 v20, v[16:19]")
    a("s_mov_b64 exec, 0xff")
    a("ds_write_b128 v20, v[16:19] offset:1024")
    a("s_mov_b64 exec, -1")


a.raw(f"{NAME}_kernel:")
a("s_cmp_ge_u32 s2, 256")
a("s_cbranch_scc1 LEND")
if STAMPS or OPT["padto"]:
    a("s_memrealtime s[100:101]")
a("s_load_dwordx16 s[64:79], s[0:1], 0")
a("s_load_dwordx8 s[80:87], s[0:1], 64")
a("v_and_b32 v1, 63, v0")
a("v_lshrrev_b32 v40, 6, v0")
a("v_readfirstlane_b32 s24, v40")
a("s_and_b32 s28, s2, 7")
if OPT["rbal"]:
    a("s_lshr_b32 s27, s2, 4")
    a("s_and_b32 s44, s2, 15")
    a("s_lshl_b32 s44, s44, 1")
    a("s_add_u32 s27, s27, s44")
else:
    a("s_lshr_b32 s27, s2, 3")
    a("s_lshl_b32 s44, s28, 2")
    a("s_add_u32 s27, s27, s44")
a("s_and_b32 s27, s27, 31")
a("s_lshr_b32 s25, s2, 4")
a("s_and_b32 s26, s2, 15")
a(f"s_mov_b32 s30, {f32(math.log2(math.e)/math.sqrt(128.0))}")
a("s_mov_b32 s31, 0")
a("s_mov_b32 s38, 400000")
a(f"s_mov_b32 s39, {LB0}")
a("s_mov_b32 s42, 0xf0f0f0f0")
a("s_mov_b32 s43, 0xf0f0f0f0")
a("s_lshl_b32 s44, s26, 2")
a("s_add_u32 s44, s44, s24")
a("s_lshl_b32 s32, s44, 13")
hswinit()
setaddr(32, 32)
a("s_lshl_b32 s57, s44, 14")
a(f"s_add_u32 s57, s57, {1920*8192}")
a("s_mov_b32 s55, -1")
a("s_mov_b32 s56, -1")
a("s_mov_b32 s96, -1")
a("s_mov_b32 s97, -1")
a("v_lshlrev_b32 v3, 4, v1")
kofs()
a("s_waitcnt lgkmcnt(0)")
a("s_load_dword s29, s[86:87], 0")
if OPT["padmin"]:
    a("s_not_b32 s101, s100")
    a("s_atomic_umax s101, s[84:85], 64")
a("s_lshl_b32 s44, s25, 24")
a("s_add_u32 s4, s66, s44")
a("s_addc_u32 s5, s67, 0")
a("s_and_b32 s5, s5, 0xffff")
a("s_mov_b32 s6, 0x1000000")
a("s_mov_b32 s7, 0x20000")
a("s_add_u32 s8, s68, s44")
a("s_addc_u32 s9, s69, 0")
a("s_and_b32 s9, s9, 0xffff")
a("s_mov_b32 s10, 0x1000000")
a("s_mov_b32 s11, 0x20000")
srd(12, 86, 87, WS_SIZE)
a("s_cmp_ge_u32 s27, 24")
a("s_cbranch_scc0 LPRO1")
srd(60, 64, 65, 1152)
srd(92, 70, 71, 0 if OPT["wskip"] & 8 else 576 * 8192)
a("v_lshrrev_b32 v41, 3, v1")
a("v_lshlrev_b32 v40, 13, v41")
a("v_and_b32 v42, 7, v1")
a("v_lshl_add_u32 v40, v42, 4, v40")
a("s_lshl_b32 s46, s28, 3")
a("s_add_u32 s46, s46, s27")
a("s_sub_u32 s46, s46, 24")
a("s_lshl_b32 s44, s46, 7")
a(f"s_mul_i32 s45, s24, {144*8192}")
a("s_add_u32 s44, s44, s45")
for i in range(18):
    a(f"buffer_load_dwordx4 {R('v', 64+4*i)}, v40, s[92:95], s44 offen{WPOL}")
    a("s_add_u32 s44, s44, 65536")
a("buffer_load_dwordx4 v[8:11], v3, s[60:63], 0 offen")
a("buffer_load_dwordx4 v[12:15], v3, s[60:63], 0 offen offset:1024")
a("s_and_b32 s44, s46, 3")
a("s_or_b32 s44, s44, s24")
a("s_cmp_eq_u32 s44, 0")
a("s_cbranch_scc0 LPRO0")
a("v_and_b32 v40, 1, v1")
a("v_lshlrev_b32 v40, 12, v40")
a("v_bfe_u32 v43, v1, 1, 1")
a("v_lshl_add_u32 v40, v43, 13, v40")
a("v_lshrrev_b32 v43, 2, v1")
a("v_lshl_add_u32 v40, v43, 4, v40")
a("v_mov_b32 v36, 0\nv_mov_b32 v37, 0\nv_mov_b32 v38, 0\nv_mov_b32 v39, 0")
a("s_lshl_b32 s44, s46, 6")
a(f"s_add_u32 s44, s44, {CTR}")
a("s_mov_b64 exec, 0xff")
a("buffer_store_dwordx4 v[36:39], v40, s[12:15], s44 offen sc1")
a("s_mov_b64 exec, -1")
a.label("LPRO0")
a("v_lshrrev_b32 v40, 1, v42")
a(f"v_mul_u32_u24 v40, {TS}, v40")
a("v_and_b32 v43, 3, v41")
a("v_lshl_add_u32 v40, v43, 5, v40")
a("v_lshrrev_b32 v43, 2, v41")
a("v_lshl_add_u32 v40, v43, 9, v40")
a("v_and_b32 v42, 1, v42")
a("v_lshl_add_u32 v40, v42, 4, v40")
for k, reg in ((0, 41), (2, 42)):
    a("s_mul_i32 s44, s24, 18")
    a(f"s_add_u32 s44, s44, {k}")
    a("s_lshr_b32 s45, s44, 2")
    a("s_lshl_b32 s45, s45, 10")
    a("s_and_b32 s44, s44, 3")
    a("s_lshl_b32 s44, s44, 7")
    a("s_add_u32 s44, s44, s45")
    a(f"s_add_u32 s44, s44, {WQ}")
    a(f"v_add_u32 v{reg}, s44, v40")
ones_init()
a("s_waitcnt vmcnt(0) lgkmcnt(0)")
a("s_mul_i32 s29, s29, 0x9e3779b1")
a("s_add_u32 s29, s29, 0x7f4a7c15")
for i in range(18):
    a(f"ds_write_b128 v{41 + ((i>>1)&1)}, {R('v', 64+4*i)} offset:{(i>>2)*1024+(i&1)*128}")
a("s_waitcnt lgkmcnt(0)")
a("s_barrier")
qprep(X0)
a("s_call_b64 s[36:37], LQSTAGE")
kofs()
a("s_branch LPRO2")
a.label("LPRO1")
a("s_waitcnt lgkmcnt(0)")
ones_init()
a("s_mul_i32 s29, s29, 0x9e3779b1")
a("s_add_u32 s29, s29, 0x7f4a7c15")
a.label("LPRO2")
if STAMPS == 2:
    a("v_mov_b32 v51, 0")
    a("s_mov_b32 s93, 0")
sstamp(55)
a.vq = []
burst("a", 0, "A0")
a("s_cmp_eq_u32 s24, 0")
a("s_cbranch_scc0 LPRO3")
a("v_mov_b32 v24, -1\nv_mov_b32 v25, -1\nv_mov_b32 v26, -1\nv_mov_b32 v27, -1")
a("s_mul_i32 s44, s2, 6144")
a(f"s_add_u32 s44, s44, {LB0}")
a("s_add_u32 s45, s44, 4096")
keep = list(a.vq)
for i in range(6):
    a(f"buffer_store_dwordx4 v[24:27], v3, s[12:15], s{44+(i>>2)} offen offset:{1024*(i&3)} sc1")
a.vq = keep
a.label("LPRO3")
srd(16, 82, 83, 1152)
srd(20, 84, 85, 256)
masks()
a("s_lshl_b32 s44, s25, 8")
a(f"s_add_u32 s44, s44, {CTR}")
a("s_add_u32 s88, s86, s44")
a("s_addc_u32 s89, s87, 0")
sstamp(56)
keep = list(a.vq)
a("s_cmp_lt_u32 s27, 18")
a("s_cbranch_scc0 LWB")
srd(60, 76, 77, 0 if OPT["wskip"] & 2 else 576 * 9216)
srd(92, 78, 79, 0 if OPT["wskip"] & 2 else 576 * 9216)
a("v_lshrrev_b32 v41, 2, v1")
a("v_and_b32 v42, 3, v1")
a("v_mul_u32_u24 v40, 9216, v41")
a("v_lshl_add_u32 v40, v42, 4, v40")
a("s_mul_i32 s46, s28, 18")
a("s_add_u32 s46, s46, s27")
a("s_lshl_b32 s44, s46, 6")
a(f"s_mul_i32 s45, s24, {144*9216}")
a("s_add_u32 s44, s44, s45")
for i in range(9):
    a(f"buffer_load_dwordx4 {R('v', 64+8*i)}, v40, s[60:63], s44 offen{WPOL}")
    a(f"buffer_load_dwordx4 {R('v', 68+8*i)}, v40, s[92:95], s44 offen{WPOL}")
    a(f"s_add_u32 s44, s44, {16*9216}")
a(f"v_mul_u32_u24 v43, {TS}, v42")
a("v_and_b32 v42, 3, v41")
a("v_lshl_add_u32 v43, v42, 5, v43")
a("v_bfe_u32 v42, v41, 2, 1")
a("v_lshl_add_u32 v43, v42, 9, v43")
a("v_lshrrev_b32 v42, 3, v41")
a("v_lshl_add_u32 v43, v42, 7, v43")
for k, reg in ((1, 34), (0, 43)):
    a("s_mul_i32 s44, s24, 9")
    a(f"s_add_u32 s44, s44, {k}")
    a("s_lshr_b32 s45, s44, 1")
    a("s_lshl_b32 s45, s45, 10")
    a("s_and_b32 s44, s44, 1")
    a("s_lshl_b32 s44, s44, 8")
    a("s_add_u32 s44, s44, s45")
    a(f"v_add_u32 v{reg}, s44, v43")
srd(60, 80, 81, 0 if OPT["wskip"] & 4 else 4608 * 1152)
a(f"s_mul_i32 s44, s46, {32*1152}")
a("s_mul_i32 s45, s24, 9216")
a("s_add_u32 s44, s44, s45")
a("s_add_u32 s45, s44, 4096")
a("s_add_u32 s46, s44, 8192")
for i in range(9):
    a(f"buffer_load_dwordx4 {R('v', 136+4*i)}, v3, s[60:63], s{44+(i>>2)} offen offset:{(i&3)*1024}{WPOL}")
a("s_branch LWDONE")
a.label("LWB")
a("s_cmp_lt_u32 s27, 30")
a("s_cbranch_scc0 LWDONE")
srd(60, 72, 73, 0 if OPT["wskip"] & 1 else 4096 * 1152)
a("v_lshrrev_b32 v41, 4, v1")
a("v_and_b32 v42, 15, v1")
a("v_mul_u32_u24 v40, 1152, v41")
a("v_lshl_add_u32 v40, v42, 4, v40")


def brole():
    a("s_sub_u32 s47, s27, 18")
    a("s_lshl_b32 s46, s28, 1")
    a("s_cmp_ge_u32 s47, 6")
    a("s_addc_u32 s46, s46, 0")
    a("s_cmp_ge_u32 s47, 6")
    a("s_cselect_b32 s48, 6, 0")
    a("s_sub_u32 s47, s47, s48")


brole()
a("s_lshl_b32 s44, s46, 8")
a("s_lshl_b32 s45, s24, 6")
a("s_add_u32 s44, s44, s45")
a("s_mul_i32 s44, s44, 1152")
a("s_mul_i32 s45, s47, 192")
a("s_add_u32 s44, s44, s45")
a("s_mov_b32 exec_lo, 0x0fff0fff")
a("s_mov_b32 exec_hi, 0x0fff0fff")
for i in range(16):
    a(f"buffer_load_dwordx4 {R('v', 64+4*i)}, v40, s[60:63], s44 offen{WPOL}")
    a(f"s_add_u32 s44, s44, {4*1152}")
a("s_mov_b64 exec, -1")
a("v_lshrrev_b32 v43, 1, v42")
a(f"v_mul_u32_u24 v43, {WOS}, v43")
a("v_lshl_add_u32 v43, v41, 5, v43")
a("v_and_b32 v42, 1, v42")
a("v_lshl_add_u32 v43, v42, 4, v43")
a("s_lshl_b32 s45, s24, 11")
a("v_add_u32 v43, s45, v43")
a.label("LWDONE")
a.vq = keep
sstamp(57)
PR = str(OPT["pr"]).zfill(4)
for _ in range(int(PR[0])):
    probe()
a.wait_vm_n(30)
burst("a", 64, "A1")
for _ in range(int(PR[1])):
    probe()
a.wait_vm_n(30)
burst("a", 128, "A2")
for _ in range(int(PR[2])):
    probe()
qpoll_addr(X0)
a.wait_vm_n(40)
qpoll_issue()
burst("a", 192, "A3")
for _ in range(int(PR[3])):
    probe()
if not OPT["klate"]:
    probe("K")
a.wait_vm_n(50)
a("s_cmp_lt_u32 s27, 18")
a("s_cbranch_scc0 LWB2")
for i in range(9):
    a(f"ds_write_b128 v{34 if i & 1 else 43}, {R('v', 64+8*i)} offset:{(i>>1)*1024}")
    a(f"ds_write_b128 v{34 if i & 1 else 43}, {R('v', 68+8*i)} offset:{(i>>1)*1024+16}")
a("s_mul_i32 s44, s24, 9216")
a(f"s_add_u32 s44, s44, {WD}")
a("v_add_u32 v40, s44, v3")
for i in range(9):
    a(f"ds_write_b128 v40, {R('v', 136+4*i)} offset:{i*1024}")
a("s_branch LWDONE2")
a.label("LWB2")
a("s_cmp_lt_u32 s27, 30")
a("s_cbranch_scc0 LWDONE2")
a("s_mov_b32 exec_lo, 0x0fff0fff")
a("s_mov_b32 exec_hi, 0x0fff0fff")
for i in range(16):
    a(f"ds_write_b128 v43, {R('v', 64+4*i)} offset:{(i&1)*512+((i>>1)&3)*128+(i>>3)*1024}")
a("s_mov_b64 exec, -1")
a.label("LWDONE2")
a(f"v_mov_b32 v{VL}, 0")
a("s_mov_b32 s91, 0")
a("s_mov_b32 s92, 0")
a("s_mov_b32 s94, 0")
a("s_mov_b32 s95, 7")
a("s_waitcnt lgkmcnt(0)")
a.wait_vm("qp")
if STAMPS:
    a("s_memrealtime s[58:59]")
    a("s_waitcnt lgkmcnt(0)")
    a("s_mov_b32 s75, s58")
qpoll_check()
a("s_cbranch_scc0 LQREADY")

a.label("LQPOLL")
qpoll_issue()
a("s_waitcnt vmcnt(0)")
qpoll_check()
a("s_cbranch_scc0 LQREADY")
retry("LQPOLL", "LQREADY")
a.label("LQREADY")
if OPT["q1w"]:
    a("s_cmp_eq_u32 s31, 0")
    a("s_cbranch_scc1 LQREADY2")
    for i in range(4):
        a(f"ds_write_b32 v33, v{24+2*i} offset:{256*i}")
    a("s_waitcnt lgkmcnt(0)")
    a("s_barrier")
    a.label("LQREADY2")
hswinit()
for i in range(4):
    a(f"v_cndmask_b32 v{QE+i}, v{24+2*i}, 0, s[42:43]")
    a(f"v_cndmask_b32 v{QO+i}, 0, v{24+2*i}, s[42:43]")
for r in range(4):
    a(f"v_mov_b32 v{OA+r}, 0")
a(f"v_mov_b32 v{MS}, {f32(-1e30)}")
a(f"v_mov_b32 v{LS}, 0")
stamp(0)
a("s_cmp_eq_u32 s31, 0")
a("s_cbranch_scc0 LP2")
if OPT["vote"]:
    a("s_getreg_b32 s47, hwreg(HW_REG_XCC_ID)")
    a("s_bfe_u32 s47, s47, 0x10002")
    for d, (x, y) in ((44, (55, 56)),) if OPT["klate"] else ((48, (96, 97)), (44, (55, 56))):
        a(f"s_sub_i32 s{d}, s{x}, s{y}")
        a(f"s_min_i32 s{d}, s{d}, 300")
        a(f"s_max_i32 s{d}, s{d}, -300")
        a(f"s_sub_i32 s45, 0, s{d}")
        a("s_cmp_eq_u32 s47, 0")
        a(f"s_cselect_b32 s{d}, s{d}, s45")
    a("s_mov_b32 s46, s44")
    a("s_atomic_add s46, s[88:89], 16 glc")
    if not OPT["klate"]:
        a("s_atomic_add s48, s[88:89], 20")
    if RN > 1:
        a(f"s_mov_b32 s90, {TKI}")
        a("s_atomic_add s90, s[88:89], 0 glc")
    a("s_waitcnt lgkmcnt(0)")
    a("s_add_i32 s44, s44, s46")
    a("s_cmp_gt_i32 s44, 0")
    a("s_cselect_b32 s44, 1, 0")
    a("s_xor_b32 s44, s44, s47")
else:
    a("s_cmp_gt_u32 s55, s56")
    a("s_cselect_b32 s44, 1, 0")
if OPT["forcecls"] == 2:
    a("s_xor_b32 s44, s44, 1")
a("s_lshl_b32 s45, s44, 2")
a("s_add_u32 s45, s45, 4")
a("s_mov_b32 s46, 1")
a("s_atomic_add s46, s[88:89], s45 glc")
a("s_mov_b32 s61, 0")
a("s_mov_b32 s62, 0")
a("s_mov_b32 s63, 1")
a("s_mov_b32 s98, 13")
a("s_mov_b32 s99, 0")
a(f"s_mov_b32 s96, {NP1}")
a("s_waitcnt lgkmcnt(0)")
a("s_cmp_lt_u32 s46, 32")
a("s_cbranch_scc1 LBUN")
a("s_xor_b32 s44, s44, 1")
a("s_xor_b32 s45, s45, 12")
a("s_mov_b32 s46, 1")
a("s_atomic_add s46, s[88:89], s45 glc")
a("s_waitcnt lgkmcnt(0)")
a.label("LBUN")
a("s_lshl_b32 s57, s46, 1")
a("s_add_u32 s57, s57, s44")
a("s_add_u32 s57, s57, 256")
a("s_lshl_b32 s57, s57, 13")
a("s_mov_b32 s55, -1")
a("s_mov_b32 s37, -1")
a(f"s_mov_b32 s56, {PB}")
a("s_mov_b32 s60, 0")
a(f"s_mov_b32 s54, {TF}")
a("s_mov_b32 s36, 0")
a("s_mov_b32 s101, 0")
a("s_mov_b32 s97, 0")
a("s_mov_b32 s41, 0")
a("s_cmp_eq_u32 s24, 0")
a("s_cbranch_scc0 LNOCNT")
a("s_mov_b32 s48, 1")
a("s_atomic_add s48, s[84:85], 0")
a.label("LNOCNT")
a.vq = qtags("A3")


def tkreq():
    if OPT["sline"]:
        a("s_lshr_b32 s59, s61, 11")
        a("s_atomic_add s90, s[88:89], s59 glc")
    else:
        a("s_atomic_add s90, s[88:89], s61 glc")


def xaddr(reg, i):
    a(f"s_add_u32 s{reg}, s57, {i*UNIT_STEP}")
    if (1 + (i >> 2)) & 1:
        a(f"s_xor_b32 s{reg}, s{reg}, 8192")


def baddr(i):
    xaddr(32, 2 * i)
    xaddr(34, 2 * i + 1)
    setaddr(32, 34)


def draw(s, exhausted):
    ln, lg, lo = a.newlabel("noapp"), a.newlabel("go"), a.newlabel("tok")
    a("s_cmp_lt_u32 s90, s96")
    a(f"s_cbranch_scc1 {lo}")
    a("s_cmp_lg_u32 s63, 0")
    a(f"s_cbranch_scc1 {exhausted}")
    a("s_add_u32 s63, s63, 1")
    a("s_mov_b32 s62, 0")
    a("s_xor_b32 s61, s61, 8192")
    a(f"s_mov_b32 s90, {TKI}")
    tkreq()
    a("s_waitcnt lgkmcnt(0)")
    a("s_cmp_lt_u32 s90, s96")
    a(f"s_cbranch_scc0 {exhausted}")
    a.label(lo)
    a("s_cmp_ge_u32 s90, s60")
    a("s_cselect_b32 s32, s56, 0")
    a("s_add_u32 s32, s32, s90")
    a("s_lshl_b32 s33, s32, 6")
    a("s_xor_b32 s33, s33, s61")
    a("s_and_b32 s33, s33, s99")
    a("s_lshl_b32 s32, s32, s98")
    a("s_add_u32 s32, s32, s33")
    a(f"s_bitset0_b32 s97, {s}")
    a("s_cmp_ge_u32 s90, s54")
    a(f"s_cbranch_scc0 {ln}")
    a(f"s_bitset1_b32 s97, {s}")
    a("s_mov_b32 m0, s94")
    a("s_nop 0")
    a(f"v_writelane_b32 v{VL}, s32, m0")
    a("s_add_u32 s94, s94, 1")
    a("s_cmp_lt_u32 s94, 60")
    a(f"s_cbranch_scc1 {ln}")
    if OPT["tk2"]:
        a("s_bitcmp0_b32 s90, 0")
        a(f"s_cbranch_scc1 {ln}")
    a("s_mov_b32 s90, 0x7fffffff")
    a("s_add_u32 s63, s63, 1")
    a(f"s_branch {lg}")
    a.label(ln)
    if OPT["tk2"]:
        a("s_add_u32 s90, s90, 1")
        a("s_bitcmp1_b32 s90, 0")
        a(f"s_cbranch_scc1 {lg}")
    a("s_xor_b32 s61, s61, s62")
    if OPT["eg"]:
        a(f"s_add_u32 s90, s90, {OPT['eg']}")
        a("s_cmp_ge_u32 s90, s96")
        a("s_cselect_b32 s41, 1, 0")
        a(f"s_cbranch_scc1 {lg}")
    a(f"s_mov_b32 s90, {TKI}")
    tkreq()
    a.label(lg)


def ticket_ready():
    if OPT["eg"]:
        lk = a.newlabel("tk")
        a("s_cmp_eq_u32 s41, 0")
        a(f"s_cbranch_scc1 {lk}")
        a(f"s_waitcnt vmcnt({OPT['gv']})")
        a("s_sub_u32 s41, s41, 1")
        a(f"s_mov_b32 s90, {TKI}")
        tkreq()
        a.label(lk)
    a("s_waitcnt lgkmcnt(0)")


def abody(i, xslot=None):
    baddr(i)

    def rl(hf, t):
        if xslot is not None:
            ld("v", RING[xslot] + 32 * hf, t, "V", hf, VPOL, ("X", 2 * i + hf, t))
        ld("a", 64 * i + 32 * hf, t, "K", hf, " nt", ("BK", 2 * i + hf, t))
    a.wait_vm_n(31)
    unit2(("a", 64 * i), ("a", 64 * i + 32), lambda t: (f"A{i}", "K", t), lambda t: (f"A{i}", "V", t),
          lambda t: rl(0, t), lambda t: rl(1, t))
    logt()


def kburst(i):
    baddr(i)
    a.wait_vm_n(47)
    for hf in range(2):
        k = kloc(2 * i + hf)
        for t in range(8):
            ld(k[0], k[1], t, "K", hf, " nt", ("BK", 2 * i + hf, t))


def dbody(d, slot, nxt):
    sl = RING[slot]
    if nxt[0] == "X":
        j = nxt[1]
        baddr(j)
        rka = lambda t: ld("v", sl, t, "V", 0, VPOL, ("X", 2 * j, t))
        rkb = lambda t: ld("v", sl + 32, t, "V", 1, VPOL, ("X", 2 * j + 1, t))
    else:
        if nxt == "L":
            xaddr(32, NR)
        else:
            le, lc = a.newlabel("dex"), a.newlabel("dco")
            ticket_ready()
            draw(slot, le)
            a(f"s_branch {lc}")
            a.label(le)
            a(f"s_bitset0_b32 s95, {slot}")
            a("s_mov_b32 s32, 0x1000000")
            a.label(lc)
        setaddr(32, 32)
        rka = lambda t: ldK("v", sl, t, nxt)
        rkb = lambda t: ldV("v", sl, t, nxt)
    a.wait_vm_n(47)
    unit2(kloc(2 * d), ("v", sl), lambda t: ("BK", 2 * d, t), lambda t: ("X", 2 * d, t), None, rka)
    unit2(kloc(2 * d + 1), ("v", sl + 32), lambda t: ("BK", 2 * d + 1, t), lambda t: ("X", 2 * d + 1, t), None, rkb)
    logt()


if RN == 3:
    abody(0, 0), abody(1, 1), abody(2, 2), abody(3)
    dbody(0, 0, ("X", 3)), dbody(1, 1, "L"), dbody(2, 2, "P"), dbody(3, 0, "P")
    LSLOT = 1
elif RN == 2:
    abody(0, 0), abody(1, 1)
    dbody(0, 0, ("X", 2)), abody(2), dbody(1, 1, ("X", 3)), abody(3), kburst(4)
    dbody(2, 0, ("X", 4)), dbody(3, 1, "L"), dbody(4, 0, "P")
    LSLOT = 1
else:
    abody(0, 0), abody(1, 1), abody(2, 2), abody(3)
    dbody(0, 0, ("X", 3))
    for d, slot, j in ((1, 1, 4), (2, 2, 5)):
        baddr(j)
        a.wait_vm_n(47)
        for hf in range(2):
            unit2(kloc(2 * d + hf), ("v", RING[slot] + 32 * hf), lambda t: ("BK", 2 * d + hf, t), lambda t: ("X", 2 * d + hf, t), None,
                  lambda t: ld("v", RING[slot] + 32 * hf, t, "K", hf, " nt", ("BK", 2 * j + hf, t)))
        if d == 1:
            dbody(3, 0, ("X", 4))
    dbody(4, 0, ("X", 5)), dbody(5, 0, "L")
    LSLOT = 0
a("s_lshl_b32 s44, s24, 13")
a(f"s_add_u32 s44, s44, {KL}")
a("v_add_u32 v40, s44, v3")
if OPT["klate"]:
    a("s_lshl_b32 s44, s26, 2")
    a("s_add_u32 s44, s44, s24")
    a("s_lshl_b32 s44, s44, 14")
    a("s_getreg_b32 s47, hwreg(HW_REG_XCC_ID)")
    a("s_bfe_u32 s47, s47, 0x10002")
    a("s_waitcnt lgkmcnt(0)")
    for c in (0, 1, 0):
        a(f"s_add_u32 s50, s44, {1920*8192 + (c ^ 1)*8192 + probe_k[0]*1152}")
        probe_k[0] += 1
        a("s_memtime s[52:53]")
        a("s_waitcnt lgkmcnt(0)")
        a("s_buffer_load_dword s51, s[4:7], s50")
        a("s_waitcnt lgkmcnt(0)")
        a("s_memtime s[50:51]")
        a("s_waitcnt lgkmcnt(0)")
        a(f"s_sub_u32 s{45+c}, s50, s52")
    a("s_sub_i32 s48, s45, s46")
    a("s_min_i32 s48, s48, 300")
    a("s_max_i32 s48, s48, -300")
    a("s_sub_i32 s45, 0, s48")
    a("s_cmp_eq_u32 s47, 0")
    a("s_cselect_b32 s48, s48, s45")
    a("s_atomic_add s48, s[88:89], 20")
if RN == 1:
    a(f"s_mov_b32 s90, {TKI}")
    a("s_atomic_add s90, s[88:89], 0 glc")
waitq(("L", "K", 7))
for t in range(8):
    a(f"ds_write_b128 v40, {R('v', RING[LSLOT]+4*t)} offset:{t*1024}")
a(f"s_branch LRING{LSLOT}")
a.label("LP2")
if STAMPS == 2:
    a("v_mov_b32 v51, 0")
    a("s_mov_b32 s93, 0")
a("s_mov_b32 s3, 0")
a(f"s_mov_b32 s56, {PB//2 - 128}")
a("s_mov_b32 s60, 128")
a("s_mov_b32 s41, 0")
a("s_mov_b32 s54, -1")
a("s_mov_b32 s101, 0")
a("s_mov_b32 s36, 0")
a(f"s_mov_b32 s37, {OPT['cn']}")
a("s_and_b32 s3, s3, s36")
sloc = lambda i: kloc(i) if i < NR else ("a", 0)
for i in range(NB + 1):
    a(f"s_mov_b32 s55, {THR0 + i*THRS}")
    a("s_add_u32 s36, s36, 1")
    a("s_branch LRINGGO")
    a.label(f"LRET{i+1}")
    a.vq = []
    if i > 0:
        def vwait():
            l0, l1 = a.newlabel("sw"), a.newlabel("sw")
            a("s_cmp_ge_u32 s101, 2")
            a(f"s_cbranch_scc1 {l0}")
            a("s_cmp_eq_u32 s101, 1")
            a(f"s_cbranch_scc1 {l1}")
            a("s_waitcnt vmcnt(0)")
            a.label(l1)
            a("s_waitcnt vmcnt(16)")
            a.label(l0)
            a("s_waitcnt vmcnt(32)")
        if i == NR:
            a("s_lshl_b32 s44, s24, 13")
            a(f"s_add_u32 s44, s44, {KL}")
            a("v_add_u32 v40, s44, v3")
            for t in range(8):
                a(f"ds_read_b128 {R('a', 4*t)}, v40 offset:{t*1024}")
        unit2(None, sloc(i - 1), hooks=(None, vwait), tt=52)
    if i < NB:
        xaddr(34, i)
        setaddr(None, 34)
        if i == NR:
            a("s_waitcnt lgkmcnt(0)")
        a.wait_vm_n(55)
        unit2(sloc(i), None, None, None, lambda t: ld(sloc(i)[0], sloc(i)[1], t, "V", 1, VPOL, None), tt=52)
        a("s_mov_b32 s101, 0")
a("s_mov_b32 s55, -1")
a("s_mov_b32 s37, -1")
a.label("LRINGGO")
for q in range(RN - 1):
    a(f"s_cmp_eq_u32 s3, {q}")
    a(f"s_cbranch_scc1 LRING{q}")
a(f"s_branch LRING{RN-1}")
a.label("LPASSEND")
stamp(1)
if STAMPS == 2:
    a("s_lshl_b32 s44, s31, 8")
    a("s_add_u32 s44, s44, s2")
    a("s_lshl_b32 s44, s44, 10")
    a(f"s_add_u32 s44, s44, {STAMP_OFF+0x40000}")
    a("v_lshlrev_b32 v40, 2, v0")
    a("buffer_store_dword v51, v40, s[12:15], s44 offen")
a(f"v_add_f32_dpp v{LS}, v{LS}, v{LS} row_half_mirror{DPPM}")
rows("v_add_f32", LS, TMP)
a(f"v_mul_f32 v22, s30, v{MS}")
a(f"v_mov_b32 v23, v{LS}")
a("v_bfe_u32 v40, v1, 3, 1")
a("v_lshlrev_b32 v41, 9, v40")
a("v_lshrrev_b32 v42, 4, v1")
a("v_lshl_add_u32 v41, v42, 7, v41")
a("v_and_b32 v42, 7, v1")
a("v_lshl_add_u32 v41, v42, 2, v41")
a("s_lshl_b32 s44, s24, 10")
a(f"s_add_u32 s44, s44, {CB1}")
a("v_add_u32 v41, s44, v41")
for r in range(4):
    a(f"ds_write_b32 v41, v{OA+r} offset:{32*r}")
a("s_lshl_b32 s44, s24, 3")
a(f"s_add_u32 s44, s44, {CS1}")
a("v_lshlrev_b32 v40, 5, v40")
a("v_add_u32 v40, s44, v40")
a("ds_write_b64 v40, v[22:23]")
a("v_lshlrev_b32 v40, 2, v0")
a(f"v_add_u32 v40, {LSV}, v40")
a(f"ds_write_b32 v40, v{VL}")
a.label("LCNT")
a("s_waitcnt vmcnt(0)")
a("v_readfirstlane_b32 s44, v49")
a("s_cmp_ge_u32 s44, 256")
a("s_cbranch_scc1 LCNTOK")
a("v_mov_b32 v48, 0")
a("buffer_load_dword v49, v48, s[20:23], 0 offen sc1")
retry("LCNT", "LCNTOK")
a.label("LCNTOK")
a("s_waitcnt lgkmcnt(0)")
a("s_barrier")
combine(CB1, CS1)
a(f"s_mul_i32 s44, s2, {X1S}")
a("s_add_u32 s44, s44, s39")
a("v_lshlrev_b32 v8, 2, v0")
a("buffer_store_dword v24, v8, s[12:15], s44 offen sc1")
a("s_lshl_b32 s45, s24, 6")
a("v_mov_b32 v9, s45")
a("s_bitcmp0_b32 s24, 0")
a("s_cbranch_scc0 LPUB1")
a("s_mov_b64 exec, 1")
a("buffer_store_dwordx2 v[26:27], v9, s[12:15], s44 offen offset:1024 sc1")
a("s_mov_b64 exec, -1")
a.label("LPUB1")
stamp(2)
a("s_cmp_eq_u32 s31, 0")
a("s_cbranch_scc0 LPUB2")
a("s_getreg_b32 s47, hwreg(HW_REG_XCC_ID)")
a("s_bfe_u32 s47, s47, 0x10002")
a("s_add_u32 s88, s88, 4096")
a("s_addc_u32 s89, s89, 0")
a("s_mov_b32 s63, 0")
a("s_cmp_gt_i32 s98, 0")
a("s_cselect_b32 s61, 1, 0")
a("s_xor_b32 s61, s61, s47")
a("s_lshl_b32 s61, s61, 13")
a("s_xor_b32 s98, s98, s99")
a("s_cmp_lt_i32 s98, 0")
a("s_cselect_b32 s62, 8192, 0")
a("s_mov_b32 s98, 14")
a("s_mov_b32 s99, 8192")
a(f"s_mov_b32 s90, {TKI}")
tkreq()
a.label("LPUB2")
a("s_cmp_lt_u32 s27, 18")
a("s_cbranch_scc1 LSTC")
a("s_cmp_lt_u32 s27, 30")
a("s_cbranch_scc0 LSTQ")
brole()
a(f"s_mul_i32 s48, s46, {16*X1S}")
a("s_add_u32 s48, s48, s39")
for g in range(1, 4):
    a(f"s_add_u32 s{48+g}, s48, {g*4*X1S}")
a("v_lshlrev_b32 v8, 2, v0")
a("v_and_b32 v9, 15, v1")
a(f"v_mul_u32_u24 v9, {X1S}, v9")
a("s_lshr_b32 s44, s24, 1")
a("s_lshl_b32 s44, s44, 7")
a("v_add_u32 v9, s44, v9")
a("v_lshlrev_b32 v10, 1, v0")
a(f"v_add_u32 v10, {OB}, v10")
a(f"s_mul_i32 s44, s24, {2*WOS}")
a("v_lshlrev_b32 v58, 3, v1")
a("v_add_u32 v58, s44, v58")
afrag_addr(57, base=OB)
a.label("LE1")
a("buffer_load_dwordx2 v[28:29], v9, s[12:15], s48 offen offset:1024 sc1")
for p in range(16):
    a(f"buffer_load_dword v{12+p}, v8, s[12:15], s{48+(p>>2)} offen offset:{(p&3)*X1S} sc1")
a("s_waitcnt vmcnt(16)")
if OPT["e1f"]:
    a("v_cmp_u_f32 vcc, v28, v29")
    a("s_cbranch_vccnz LE1R")
ROWRED = ("quad_perm:[1,0,3,2]", "quad_perm:[2,3,0,1]", "row_half_mirror", "row_mirror")
a(f"v_max_f32_dpp v30, v28, v28 {ROWRED[0]}{DPPM}")
for st in ROWRED[1:]:
    a(f"v_max_f32_dpp v30, v30, v30 {st}{DPPM}")
a("v_sub_f32 v28, v28, v30")
a("v_exp_f32 v28, v28")
a("v_mul_f32 v29, v29, v28")
for st in ROWRED:
    a(f"v_add_f32_dpp v29, v29, v29 {st}{DPPM}")
a("v_rcp_f32 v29, v29")
a("v_mul_f32 v28, v28, v29")
a("s_waitcnt vmcnt(0)")
for p in range(16):
    op = "v_mul_f32_dpp" if p < 4 else "v_fmac_f32_dpp"
    a(f"{op} v{32+(p&3)}, v28, v{12+p} row_newbcast:{p}{DPPM}")
a("v_add_f32 v32, v32, v33")
a("v_add_f32 v34, v34, v35")
a("v_add_f32 v32, v32, v34")
a("v_cmp_u_f32 vcc, v32, v32")
a("s_cbranch_vccz LE1OK")
a.label("LE1R")
retry("LE1", "LE1OK")
a.label("LE1OK")
a("s_waitcnt vmcnt(0)")
stamp(3)
a("v_cvt_pk_bf16_f32 v32, v32, v32")
a("ds_write_b16 v10, v32")
a("s_waitcnt lgkmcnt(0)")
a("s_barrier")
a("s_cmp_eq_u32 s24, 3")
a("s_cbranch_scc1 LSTQ")


def b_issue(kk):
    s = 8 + 12 * (kk % 3)
    a(f"ds_read_b128 {R('v', s)}, v57 offset:{kk*64}")
    for t in range(2):
        a(f"ds_read_b64_tr_b16 {R('v', s+4+4*t, 2)}, v58 offset:{kk*1024+t*WOS}")
        a(f"ds_read_b64_tr_b16 {R('v', s+6+4*t, 2)}, v58 offset:{kk*1024+t*WOS+512}")


for kk in range(3):
    b_issue(kk)
for kk in range(8):
    a(f"s_waitcnt lgkmcnt({5*(min(8, kk+3)-kk-1)})")
    s = 8 + 12 * (kk % 3)
    for t in range(2):
        acc = R("v", 48 + 4 * t)
        a(f"v_mfma_f32_16x16x32_bf16 {acc}, {R('v', s)}, {R('v', s+4+4*t)}, {'0' if kk == 0 else acc}")
    if kk + 3 < 8:
        b_issue(kk + 3)
a("s_mul_i32 s44, s46, 2304")
a("s_mul_i32 s45, s47, 384")
a("s_add_u32 s44, s44, s45")
a("s_lshl_b32 s45, s24, 7")
a("s_add_u32 s44, s44, s45")
a("s_add_u32 s44, s44, s39")
a(f"s_add_u32 s44, s44, {X2}")
a("s_mov_b32 s48, 0xffff0000")
a("s_mov_b32 s49, 0xffff0000")
a("v_lshlrev_b32 v8, 2, v1")
a("v_cndmask_b32 v48, v48, v52, s[48:49]")
a("s_mov_b32 exec_hi, 0")
a("buffer_store_dword v48, v8, s[12:15], s44 offen sc1")
a("s_mov_b64 exec, -1")
stamp(4)
a("s_branch LSTQ")
a.label("LSTC")
a(f"s_mov_b32 s44, {XB}")
a(f"s_mul_i32 s45, s24, {TS}")
lng_addr()
a("v_lshrrev_b32 v5, 4, v1")
a("v_lshlrev_b32 v4, 3, v5")
a("v_bfe_u32 v6, v1, 2, 2")
a("v_add_u32 v4, v4, v6")
a("v_mul_u32_u24 v4, 1152, v4")
a("v_and_b32 v6, 3, v1")
a("v_lshl_add_u32 v4, v6, 3, v4")
a("s_lshl_b32 s44, s24, 7")
a(f"s_add_u32 s44, s44, {WD}")
a("v_add_u32 v4, s44, v4")
a("v_lshlrev_b32 v5, 4, v5")
a(f"v_add_u32 v5, {HB}, v5")
a("s_lshl_b32 s44, s24, 4")
a(f"s_add_u32 s44, s44, {HB}")
a("v_lshlrev_b32 v6, 1, v1")
a("v_add_u32 v6, s44, v6")
a("v_lshrrev_b32 v7, 5, v1")
a("v_mul_u32_u24 v7, 18432, v7")
a("v_and_b32 v59, 31, v1")
a("v_lshl_add_u32 v7, v59, 2, v7")
a("s_mul_i32 s50, s28, 18")
a("s_add_u32 s50, s50, s27")
a("s_lshl_b32 s50, s50, 7")
a("s_mul_i32 s45, s24, 36864")
a("s_add_u32 s50, s50, s45")
a("s_add_u32 s50, s50, s39")
a(f"s_add_u32 s50, s50, {X3}")
a("s_mov_b32 s52, 0xffff0000")
a("s_mov_b32 s53, 0xffff0000")
a("s_mov_b32 s40, 0")
a("s_mov_b32 s41, -1")
a("s_cmp_eq_u32 s24, 3")
a("s_cbranch_scc1 LC_BAR")
a("v_lshrrev_b32 v56, 4, v1")
a("v_mul_u32_u24 v56, 2304, v56")
a("v_and_b32 v8, 15, v1")
a("v_lshl_add_u32 v56, v8, 4, v56")
a("s_mul_i32 s48, s24, 768")
a("s_add_u32 s44, s48, s39")
a(f"s_add_u32 s44, s44, {X2}")
for g in range(1, 4):
    a(f"s_add_u32 s{44+g}, s44, {g*9216}")
a("v_bfe_u32 v9, v1, 4, 1")
a("v_lshlrev_b32 v9, 1, v9")
a("v_lshrrev_b32 v10, 5, v1")
a("v_add_u32 v9, v9, v10")
a("v_lshl_add_u32 v9, v8, 2, v9")
a("v_lshrrev_b32 v10, 5, v9")
a("v_lshlrev_b32 v10, 6, v10")
a("v_lshl_add_u32 v10, v9, 1, v10")
a(f"s_add_u32 s49, s48, {LB0+X4}")
a("s_lshr_b32 s48, s48, 1")
a("v_lshlrev_b32 v9, 1, v9")
a("v_add_u32 v9, s48, v9")
a(f"v_add_u32 v59, {XB}, v9")
a("s_cmp_eq_u32 s31, 0")
a("s_cbranch_scc0 LC_X2")
a("s_load_dwordx2 s[32:33], s[0:1], 0")
a("s_mov_b32 s34, 1152")
a("s_mov_b32 s35, 0x20000")
a("s_waitcnt lgkmcnt(0)")
a("s_and_b32 s33, s33, 0xffff")
for c in range(3):
    a(f"buffer_load_ushort v{60+c}, v9, s[32:35], 0 offen offset:{c*128}")
a("s_branch LC_X3")
a.label("LC_X2")
for c in range(3):
    a(f"buffer_load_ushort v{60+c}, v10, s[12:15], s49 offen offset:{c*256} sc1")
a.label("LC_X3")
a("s_waitcnt vmcnt(0)")
for c in range(3):
    a(f"v_lshlrev_b32 v{60+c}, 16, v{60+c}")
a.label("LE2")
for c in range(3):
    for g in range(4):
        a(f"buffer_load_dwordx4 {R('v', 8+16*c+4*g)}, v56, s[12:15], s{44+g} offen offset:{c*256} sc1")
for c in range(3):
    b = 8 + 16 * c
    a(f"s_waitcnt vmcnt({8-4*c})")
    for r in range(4):
        a(f"v_add_f32 v{b+r}, v{b+r}, v{b+4+r}")
        a(f"v_add_f32 v{b+8+r}, v{b+8+r}, v{b+12+r}")
    for r in range(4):
        a(f"v_add_f32 v{b+r}, v{b+r}, v{b+8+r}")
    if OPT["e1f"] and c < 2:
        a(f"v_cmp_u_f32 vcc, v{b}, v{b+3}")
        a("s_cbranch_vccnz LE2R")
    swapreduce(b)
a("v_add_f32 v9, v8, v24")
a("v_cmp_u_f32 vcc, v9, v40")
a("s_cbranch_vccz LE2OK")
a.label("LE2R")
retry("LE2", "LE2OK")
a.label("LE2OK")
a("s_waitcnt vmcnt(0)")
stamp(5)
for c in range(3):
    bf16r(8 + 16 * c, 8 + 16 * c)
for c in range(3):
    a(f"v_add_f32 v{60+c}, v{60+c}, v{8+16*c}")
for c in range(3):
    a(f"v_cvt_pk_bf16_f32 v{60+c}, v{60+c}, v{60+c}")
for c in range(3):
    a(f"ds_write_b16 v59, v{60+c} offset:{c*128}")
a.label("LC_BAR")
a("s_waitcnt lgkmcnt(0)")
a("s_barrier")
a("s_call_b64 s[36:37], LLNG")


def downB(i):
    for t in range(4):
        s = 8 + 16 * (i & 1) + 4 * t
        a(f"ds_read_b64_tr_b16 {R('v', s, 2)}, v4 offset:{i*512+t*32}")
        a(f"ds_read_b64_tr_b16 {R('v', s+2, 2)}, v4 offset:{i*512+t*32+4*1152}")


a(f"v_mov_b32_dpp v41, v60 row_shl:8{DPPM} bound_ctrl:1")
a("v_cvt_pk_bf16_f32 v41, v60, v41")
a("v_lshlrev_b32 v42, 16, v41")
a("v_and_b32 v41, 0xffff0000, v41")
a("v_max_f32 v42, 0, v42")
a("v_mul_f32 v41, v42, v41")
a("v_cvt_pk_bf16_f32 v41, v41, v41")
a("s_mov_b64 exec, 0xff")
a("ds_write_b16 v6, v41")
a("s_mov_b64 exec, -1")
downB(0)
a("s_waitcnt lgkmcnt(8)")
a("s_barrier")
a("ds_read_b128 v[60:63], v5")
a("s_waitcnt lgkmcnt(5)")
downB(1)


def downG(i, wait):
    a(f"s_waitcnt lgkmcnt({wait})")
    for t in range(4):
        s = 8 + 16 * (i & 1) + 4 * t
        a(f"v_mfma_f32_16x16x32_bf16 {R('v', 40+4*t)}, v[60:63], {R('v', s)}, 0")
    a("v_cndmask_b32 v40, v40, v44, s[52:53]")
    a("v_cndmask_b32 v48, v48, v52, s[52:53]")
    a("v_cndmask_b32 v40, v40, v48, s[40:41]")
    a("buffer_store_dword v40, v7, s[12:15], s50 offen sc1")
    a(f"s_add_u32 s50, s50, {4*36864}")


downG(0, 8)
a("s_cmp_eq_u32 s24, 0")
a("s_cbranch_scc1 LDOWN3")
downG(1, 0)
a("s_branch LSTD")
a.label("LDOWN3")
a("s_waitcnt lgkmcnt(0)")
downB(2)
downG(1, 8)
downG(2, 0)
a.label("LSTD")
stamp(6)
a("s_lshl_b32 s50, s27, 3")
a("s_add_u32 s50, s50, s28")
a("s_cmp_lt_u32 s50, 18")
a("s_cbranch_scc0 LSTQ")
a("s_mul_i32 s44, s50, 18432")
a("s_mul_i32 s45, s24, 4608")
a("s_add_u32 s44, s44, s45")
a("s_add_u32 s44, s44, s39")
a(f"s_add_u32 s44, s44, {X3}")
a("s_add_u32 s45, s44, 4096")
a("v_bfe_u32 v58, v1, 4, 1")
a("v_lshlrev_b32 v58, 1, v58")
a("v_lshrrev_b32 v59, 5, v1")
a("v_add_u32 v58, v58, v59")
a("v_and_b32 v59, 7, v1")
a("v_lshl_add_u32 v58, v59, 2, v58")
a("v_lshlrev_b32 v58, 2, v58")
a("s_lshl_b32 s46, s24, 7")
a(f"s_add_u32 s46, s46, {FB}")
a("v_add_u32 v58, s46, v58")
for r in range(4):
    a(f"v_mov_b32 v{24+r}, 0")
a.label("LE3")
for i in range(4):
    a(f"buffer_load_dwordx4 {R('v', 8+4*i)}, v3, s[12:15], s44 offen offset:{i*1024} sc1")
a("s_mov_b32 exec_hi, 0")
a("buffer_load_dwordx4 v[24:27], v3, s[12:15], s45 offen sc1")
a("s_mov_b64 exec, -1")
a("s_waitcnt vmcnt(0)")
for r in range(4):
    a(f"v_add_f32 v{8+r}, v{8+r}, v{12+r}")
    a(f"v_add_f32 v{16+r}, v{16+r}, v{20+r}")
for r in range(4):
    a(f"v_add_f32 v{8+r}, v{8+r}, v{24+r}")
for r in range(4):
    a(f"v_add_f32 v{8+r}, v{8+r}, v{16+r}")
swapreduce(8)
a(f"v_add_f32_dpp v8, v8, v8 row_ror:8{DPPM}")
a("v_cmp_u_f32 vcc, v8, v8")
a("s_cbranch_vccz LE3OK")
retry("LE3", "LE3OK")
a.label("LE3OK")
stamp(7)
a("ds_write_b32 v58, v8")
a("v_lshlrev_b32 v8, 2, v1")
a(f"v_add_u32 v9, {FB}, v8")
a("s_lshl_b32 s45, s50, 6")
a(f"s_add_u32 s46, s45, {XB}")
a("v_lshlrev_b32 v8, 1, v1")
a("v_add_u32 v10, s46, v8")
a("s_waitcnt lgkmcnt(0)")
a("s_barrier")
a("s_cmp_eq_u32 s24, 0")
a("s_cbranch_scc0 LSTQ")
a("s_mov_b32 exec_hi, 0")
for w in range(4):
    a(f"ds_read_b32 v{12+w}, v9 offset:{128*w}")
a("ds_read_u16 v16, v10")
a("s_waitcnt lgkmcnt(0)")
a("v_lshlrev_b32 v16, 16, v16")
a("v_add_f32 v12, v12, v13")
a("v_add_f32 v14, v14, v15")
a("v_add_f32 v12, v12, v14")
bf16r(12, 12)
a("v_add_f32 v12, v12, v16")
a(f"v_mov_b32_dpp v13, v12 quad_perm:[1,1,3,3]{DPPM}")
a("v_cvt_pk_bf16_f32 v12, v12, v13")
a("s_mov_b32 exec_lo, 0x55555555")
a("s_cmp_eq_u32 s31, 0")
a("s_cbranch_scc0 LFINAL")
a("s_lshl_b32 s45, s50, 7")
a("s_add_u32 s45, s45, s39")
a(f"s_add_u32 s45, s45, {X4}")
a("buffer_store_dword v12, v8, s[12:15], s45 offen sc1")
a("s_mov_b64 exec, -1")
a("s_branch LSTQ")
a.label("LFINAL")
a("buffer_store_dword v12, v8, s[16:19], s45 offen")
a("s_mov_b64 exec, 1")
a("s_cmp_eq_u32 s50, 0")
a("s_cbranch_scc0 LNOEP")
a("v_mov_b32 v9, s29")
a("buffer_store_dword v9, v8, s[12:15], 0 offen sc1")
a.label("LNOEP")
a("s_mov_b64 exec, -1")
a.label("LSTQ")
stamp(8)
a("s_cmp_eq_u32 s31, 0")
a("s_cbranch_scc0 LDONE")
if OPT["npf"]:
    a("s_cmp_lt_u32 s27, 18")
    a("s_cbranch_scc1 LQ5")
    a("v_lshlrev_b32 v34, 7, v1")
    a("s_lshl_b32 s44, s26, 2")
    a("s_add_u32 s44, s44, s24")
    a("s_lshl_b32 s44, s44, 13")
    for n in range(OPT["npf"]):
        a(f"s_add_u32 s45, s44, {(4+n)*UNIT_STEP}")
        a(f"buffer_load_dword v35, v34, s[4:7], s45 offen{PFK}")
        a(f"buffer_load_dword v36, v34, s[8:11], s45 offen{PFV}")
a("s_cmp_ge_u32 s27, 24")
a("s_cbranch_scc0 LQ5")
qprep(X5)
a("s_waitcnt lgkmcnt(0)")
a(f"s_add_u32 s44, s39, {X4}")
a("v_lshrrev_b32 v16, 2, v1")
a("v_lshlrev_b32 v16, 7, v16")
a("v_and_b32 v17, 3, v1")
a("v_lshl_add_u32 v16, v17, 4, v16")
for r in range(4):
    a(f"v_mov_b32 v{12+r}, 0")
a.label("LE4")
a("buffer_load_dwordx4 v[8:11], v16, s[12:15], s44 offen sc1")
a("s_mov_b64 exec, 0xff")
a("buffer_load_dwordx4 v[12:15], v16, s[12:15], s44 offen offset:2048 sc1")
a("s_mov_b64 exec, -1")
a("s_waitcnt vmcnt(0)")
a("v_max3_u32 v17, v8, v9, v10")
a("v_max3_u32 v18, v11, v12, v13")
a("v_max3_u32 v17, v17, v14, v15")
a("v_max_u32 v17, v17, v18")
a("v_cmp_eq_u32 vcc, -1, v17")
a("s_cbranch_vccz LE4OK")
retry("LE4", "LE4OK")
a.label("LE4OK")
stamp(9)
a("s_call_b64 s[36:37], LQSTAGE")
a.label("LQ5")
if STAMPS:
    a("s_memrealtime s[58:59]")
    a("s_waitcnt lgkmcnt(0)")
    a("s_mov_b32 s74, s58")
a("s_mov_b32 s31, 1")
a(f"s_add_u32 s39, s39, {LSTRIDE}")
loopconsts()
a(f"s_mov_b32 s96, {NP2}")
a("s_mov_b32 s91, 0")
a("s_mov_b32 s95, s97")
a("v_lshlrev_b32 v40, 2, v0")
a(f"v_add_u32 v40, {LSV}, v40")
a(f"ds_read_b32 v{VL}, v40")
qpoll_addr(X5)
a("v_lshlrev_b32 v33, 2, v1")
a(f"v_add_u32 v33, {SA}, v33")
a("s_waitcnt lgkmcnt(0)")
if OPT["q1w"]:
    a("s_cmp_eq_u32 s24, 0")
    a("s_cbranch_scc1 LQPOLL")
    a("s_barrier")
    for i in range(4):
        a(f"ds_read_b32 v{24+2*i}, v33 offset:{256*i}")
    a("s_waitcnt lgkmcnt(0)")
    a("s_branch LQREADY2")
else:
    a("s_branch LQPOLL")

a.label("LQSTAGE")
a("ds_write_b128 v2, v[8:11]")
a("s_mov_b64 exec, 0xff")
a("ds_write_b128 v2, v[12:15] offset:1024")
a("s_mov_b64 exec, -1")
a("s_mov_b64 s[52:53], s[36:37]")
a("s_waitcnt lgkmcnt(1)")
a("s_call_b64 s[36:37], LLNG")
a("v_lshlrev_b32 v8, 2, v1")
a("v_mov_b32 v11, s29")
a(f"v_mov_b32_dpp v9, v60 quad_perm:[1,1,3,3]{DPPM}")
a("v_cvt_pk_bf16_f32 v10, v60, v9")
a("s_mov_b64 exec, 0x5555")
a("buffer_store_dwordx2 v[10:11], v8, s[12:15], s54 offen sc1")
a("s_mov_b64 exec, -1")
a("s_setpc_b64 s[52:53]")

a.label("LLNG")
lngemv()
a("s_setpc_b64 s[36:37]")

a.vq = sum((qtags(f"R{q}") for q in range(RN)), [])
for s in range(RN):
    lp, lg, ln, lb, lx = (a.newlabel(x) for x in ("pool", "go", "noapp", "bonly", "next"))
    a.label(f"LRING{s}")
    a(f"s_mov_b32 s3, {s}")
    if OPT["hv"]:
        a(f"s_waitcnt vmcnt({OPT['hv']})")
    ticket_ready()
    if not OPT["lfirst"]:
        a("s_cmp_ge_u32 s90, s55")
        a("s_cbranch_scc1 LRINGX")
        a("s_cmp_ge_u32 s101, s37")
        a("s_cbranch_scc1 LRINGX")
    a("s_cmp_lt_u32 s91, s92")
    a(f"s_cbranch_scc0 {lp}")
    if OPT["lrev"]:
        a("s_sub_u32 s92, s92, 1")
        a(f"v_readlane_b32 s32, v{VL}, s92")
    else:
        a(f"v_readlane_b32 s32, v{VL}, s91")
        a("s_add_u32 s91, s91, 1")
    a(f"s_branch {lg}")
    a.label(lp)
    if OPT["lfirst"]:
        a("s_cmp_ge_u32 s90, s55")
        a("s_cbranch_scc1 LRINGX")
        a("s_cmp_ge_u32 s101, s37")
        a("s_cbranch_scc1 LRINGX")
    draw(s, f"LDRAINE{s}")
    a.label(lg)
    setaddr(32, 32)
    a("s_add_u32 s101, s101, 1")
    a(f"s_bitcmp1_b32 s95, {s}")
    a(f"s_cbranch_scc0 {lb}")
    unit("v", RING[s], f"R{s}", f"R{s}n")
    logt()
    q1 = [(t[0].rstrip("n"), t[1], t[2]) for t in a.vq]
    a(f"s_branch LRING{(s+1)%RN}")
    a.label(lb)
    a(f"s_bitset1_b32 s95, {s}")
    for t in range(8):
        ldK("v", RING[s], t, "x")
    for t in range(8):
        ldV("v", RING[s], t, "x")
    a(f"s_branch LRING{(s+1)%RN}")
    a.vq = q1
a.label("LRINGX")
for k in range(1, NB + 1):
    a(f"s_cmp_eq_u32 s36, {k}")
    a(f"s_cbranch_scc1 LRET{k}")
a(f"s_branch LRET{NB+1}")

for s in range(RN):
    a.label(f"LDRAINE{s}")
    a("v_mov_b32 v48, 0")
    a("buffer_load_dword v49, v48, s[20:23], 0 offen sc1")
    a("s_mov_b32 s93, 0")
    a("s_mov_b64 s[98:99], 0")
    a("s_atomic_add_x2 s[98:99], s[88:89], 16 glc")
    a("s_bcnt1_i32_b32 s44, s97")
    a("s_sub_u32 s92, s94, s44")
    a(f"s_branch LDRAIN{s}")
for s in range(RN):
    a.label(f"LDRAIN{s}")
    lsk = a.newlabel("dsk")
    a(f"s_bitcmp1_b32 s95, {s}")
    a(f"s_cbranch_scc0 {lsk}")
    unit_drain(RING[s])
    a.label(lsk)
    a("s_add_u32 s93, s93, 1")
    a(f"s_cmp_eq_u32 s93, {RN}")
    a("s_cbranch_scc1 LPASSEND")
a("s_branch LDRAIN0")

a.label("LDONE")
if OPT["padto"]:
    if OPT["padmin"]:
        a("s_mov_b32 s100, 0")
        a("s_atomic_add s100, s[84:85], 64 glc")
        a("s_waitcnt lgkmcnt(0)")
        a("s_not_b32 s100, s100")
    a.label("LPAD")
    a("s_memrealtime s[58:59]")
    a("s_waitcnt lgkmcnt(0)")
    a("s_sub_u32 s58, s58, s100")
    a(f"s_cmp_lt_u32 s58, {OPT['padto']*100}")
    a("s_cbranch_scc1 LPAD")
if STAMPS:
    a("s_memrealtime s[58:59]")
    a("s_waitcnt lgkmcnt(0)")
    a("s_mov_b32 s87, s58")
    a("s_lshl_b32 s44, s2, 2")
    a("s_add_u32 s44, s44, s24")
    a("s_lshl_b32 s44, s44, 7")
    a(f"s_add_u32 s44, s44, {STAMP_OFF}")
    a("v_mov_b32 v8, 0")
    a("s_mov_b64 exec, 1")
    for i in range(24):
        a(f"v_mov_b32 v9, s{64+i}")
        a(f"buffer_store_dword v9, v8, s[12:15], s44 offen offset:{4*i}")
    a("v_mov_b32 v9, s100")
    a("buffer_store_dword v9, v8, s[12:15], s44 offen offset:96")
    for i, r in enumerate((57, 92, 57, 57, 57, 94)):
        a(f"v_mov_b32 v9, s{r}")
        a(f"buffer_store_dword v9, v8, s[12:15], s44 offen offset:{100+4*i}")
    if OPT["dbgout"]:
        a("s_or_b32 s44, s2, s24")
        a("s_cmp_eq_u32 s44, 0")
        a("s_cbranch_scc0 LEND")
        for i, r in enumerate((64, 65, 76, 77, 87)):
            a(f"s_sub_u32 s44, s{r}, s100")
            a("v_mov_b32 v9, s44")
            a(f"buffer_store_dword v9, v8, s[20:23], 0 offen offset:{4+4*i}")
        a("s_mov_b64 exec, 0xffff")
        a("v_lshlrev_b32 v10, 8, v1")
        a(f"s_mov_b32 s44, {CTR}")
        a("buffer_load_dwordx2 v[12:13], v10, s[12:15], s44 offen offset:16 sc1")
        a("s_waitcnt vmcnt(0)")
        a("v_cmp_gt_i32 s[46:47], v12, 0")
        a("v_cmp_gt_i32 s[48:49], v13, 0")
        a("s_mov_b64 exec, 1")
        a("v_mov_b32 v9, s46")
        a("buffer_store_dword v9, v8, s[20:23], 0 offen offset:24")
        a("v_mov_b32 v9, s48")
        a("buffer_store_dword v9, v8, s[20:23], 0 offen offset:28")
        for i, l in enumerate((0, 5, 10, 15)):
            for j in range(2):
                a(f"v_readlane_b32 s44, v{12+j}, {l}")
                a("s_add_u32 s44, s44, 100000")
                a("v_mov_b32 v9, s44")
                a(f"buffer_store_dword v9, v8, s[20:23], 0 offen offset:{32+8*i+4*j}")
    a("s_waitcnt vmcnt(0)")
a.label("LEND")
a("s_endpgm")

hdr = open("cdna_kernels/" + NAME + ".s.ref").read().split("\n")
top = [l for l in hdr if l.startswith(";") and "@launch" not in l]
out = "\n".join(top) + "\n"
out += f"; @launch grid=(256,1,1) block=(256,1,1) lds={LDS_SIZE}\n"
out += f""".amdgcn_target "amdgcn-amd-amdhsa--gfx950"
.text
.globl {NAME}_kernel
.p2align 8
.type {NAME}_kernel,@function
"""
out += a.text()
out += f""".section .rodata,"a"
.p2align 6
.amdhsa_kernel {NAME}_kernel
  .amdhsa_next_free_vgpr 512
  .amdhsa_next_free_sgpr 102
  .amdhsa_accum_offset 256
  .amdhsa_group_segment_fixed_size 0
  .amdhsa_kernarg_size 96
  .amdhsa_user_sgpr_count 2
  .amdhsa_user_sgpr_kernarg_segment_ptr 1
  .amdhsa_system_sgpr_workgroup_id_x 1
.end_amdhsa_kernel
"""
import re
if OPT["xl"]:
    out = re.sub(r"(buffer_load\S+ .*) sc1$", r"\1 sc0 sc1", out, flags=re.M)
if OPT["xs"]:
    out = re.sub(r"(buffer_store\S+ .*) sc1$", r"\1 sc0 sc1", out, flags=re.M)
open(sys.argv[1], "w").write(out)
```

```python
import sys, struct, math
from asmlib import Asm

NAME = "interleave_layers__gqa_block_cached__glu_gated_reglu__decode"
OPT = dict(stamps=0, p2rev=0, kvpol="nt", wpol="nt", wskip=0, vring="def", kring="nt", tfw=3, psleep=1, npf=0, thrp=80, pr=1110, eg=0, gv=8, xl=0, xs=0, padto=0, wlate=2, e2g=1, q1w=1, lfirst=1, lrev=0, rn=1, rbal=1, hsw=0, sline=1, tk2=0, klate=1, wcl=0, hv=0, lv=0, alt=3, e1f=1, mixx=1, rot=0, padmin=0, cn=1, vote=1, avpol="def", forcecls=-1, dbgout=0, pfk="nt", pfv="def")
for arg in sys.argv[2:]:
    k, v = arg.split("=")
    OPT[k] = int(v) if v.lstrip("-").isdigit() else v
STAMPS = OPT["stamps"]
TKI = 2 if OPT["tk2"] else 1
KVPOL = "" if OPT["kvpol"] == "def" else " " + OPT["kvpol"]
WPOL = "" if OPT["wpol"] == "def" else " " + OPT["wpol"]
PFK = "" if OPT["pfk"] == "def" else " " + OPT["pfk"]
PFV = "" if OPT["pfv"] == "def" else " " + OPT["pfv"]


def f32(x):
    return "0x%08x" % struct.unpack("<I", struct.pack("<f", x))[0]


X0 = 0x1000
X5 = 0x9000
CTR = 0x11000
LB0 = 0x20000
LSTRIDE = 0xC0000
X1 = 0x0
X1S = 1280
X2 = 0x50000
X3 = 0x59000
X4 = 0xAA000
STAMP_OFF = 0x200000
WS_SIZE = 0x400000
RN = OPT["rn"]
NR = 14 - 2 * RN
NB = NR + 1
PB = 256 + 64 * NB
NP1 = 2048 - PB
TF = NP1 - OPT["tfw"] * 64
NP2 = 128 + TF // 2
THR0 = 32
THRS = (NP2 * OPT["thrp"] // 100 - THR0) // NB
WGU = 0
TS = 18432
WD = 73728
FB = 110592
HB = 111104
WO = 0
WOS = 8192
WQ = 49152
SA = 122880
CB1 = SA
CS1 = SA + 4096
XB = SA
OB = 127488
LSV = 128000
ONES = 129088
KL = 130304
LDS_SIZE = 163072

UNIT_STEP = 524288
DPPM = " row_mask:0xf bank_mask:0xf"
a = Asm()
stamp_n = [0]


def stamp(i):
    if not STAMPS:
        return
    a("s_memrealtime s[58:59]")
    a("s_waitcnt lgkmcnt(0)")
    lab = a.newlabel("st")
    a(f"s_mov_b32 s{64+12+i}, s58")
    a("s_cmp_eq_u32 s31, 0")
    a(f"s_cbranch_scc0 {lab}")
    a(f"s_mov_b32 s{64+i}, s58")
    a.label(lab)


def sstamp(reg):
    if True:
        return
    a("s_memrealtime s[58:59]")
    a("s_waitcnt lgkmcnt(0)")
    a(f"s_mov_b32 s{reg}, s58")


def logt():
    if STAMPS != 2:
        return
    a("s_memrealtime s[58:59]")
    a("s_waitcnt lgkmcnt(0)")
    a("s_mov_b32 m0, s93")
    a("s_add_u32 s93, s93, 1")
    a("s_min_u32 s93, s93, 63")
    a("v_writelane_b32 v51, s58, m0")


def R(kind, base, n=4):
    return f"{kind}[{base}:{base+n-1}]"


def srd(d, lo, hi, size):
    a(f"s_mov_b32 s{d}, s{lo}")
    a(f"s_and_b32 s{d+1}, s{hi}, 0xffff")
    a(f"s_mov_b32 s{d+2}, {size}")
    a(f"s_mov_b32 s{d+3}, 0x20000")


def srd_role(d, lo, hi, size):
    a(f"s_cselect_b32 s{d+2}, {size}, 0")
    a(f"s_mov_b32 s{d}, s{lo}")
    a(f"s_and_b32 s{d+1}, s{hi}, 0xffff")
    a(f"s_mov_b32 s{d+3}, 0x20000")


def ld(kind, reg, t, src, half, pol, tag):
    if OPT["lv"] and (t & 1) == 0:
        a(f"s_waitcnt vmcnt({OPT['lv']})")
    srd_, vo = {"K": ("s[4:7]", "v2"), "K2": ("s[60:63]", "v51"), "V": ("s[8:11]", "v3")}[src]
    a(f"buffer_load_dwordx4 {R(kind, reg+4*t)}, {vo}, {srd_}, s{32+2*half+(t>>2)} offen offset:{(t&3)*1024}{pol}", tag=tag)


VPOL = "" if OPT["vring"] == "def" else " nt"


def ldK(kind, base, t, tag):
    ld(kind, base, t, "K", 0, " nt", (tag, "K", t))


def ldV(kind, base, t, tag):
    ld(kind, base + 32, t, "V", 1, ("" if OPT["avpol"] == "def" else " nt") if kind == "a" else VPOL, (tag, "V", t))


def adv():
    for r in range(32, 36):
        a(f"s_add_u32 s{r}, s{r}, {UNIT_STEP}")


def setaddr(k, v):
    if v is not None:
        if OPT["hsw"]:
            a(f"s_or_b32 s34, s{v}, vcc_hi")
        elif v != 34:
            a(f"s_mov_b32 s34, s{v}")
        a("s_xor_b32 s35, s34, 4096")
    if k is not None:
        if OPT["hsw"]:
            a(f"s_or_b32 s32, s{k}, vcc_hi")
        elif k != 32:
            a(f"s_mov_b32 s32, s{k}")
        a("s_xor_b32 s33, s32, 4096")


def hswinit():
    if OPT["hsw"]:
        a("s_and_b32 vcc_hi, s24, 1")
        a("s_lshl_b32 vcc_hi, vcc_hi, 12")


def burst(kind, base, tag):
    for t in range(8):
        ldK(kind, base, t, tag)
    for t in range(8):
        ldV(kind, base, t, tag)
    adv()
    logt()


def waitq(tag, floor=0):
    if tag in a.vq:
        a.wait_vm(tag, floor)


def allreduce(op, v, t, first=0):
    steps = ["quad_perm:[1,0,3,2]", "quad_perm:[2,3,0,1]", "row_half_mirror", "row_mirror"]
    for s in steps[first:]:
        a(f"{op}_dpp v{v}, v{v}, v{v} {s}{DPPM}")
    rows(op, v, t)


def rows(op, v, t):
    a(f"v_mov_b32 v{t}, v{v}")
    a(f"v_permlane16_swap_b32 v{v}, v{t}")
    a(f"{op} v{v}, v{v}, v{t}")
    a(f"v_mov_b32 v{t}, v{v}")
    a(f"v_permlane32_swap_b32 v{v}, v{t}")
    a(f"{op} v{v}, v{v}, v{t}")


QE, QO, OA, MS, LS, NMC = 8, 12, 16, 20, 21, 22
DS_ = [24, 28, 32, 36]
TT = 40
TMP = 44


def unit2(K, V, kt=None, vt=None, rk=None, rv=None, hooks=None, tt=TT):
    if K is not None:
        if hooks:
            hooks[0]()
        for u in range(4):
            if kt:
                waitq(kt(2 * u + 1))
            d = R("v", DS_[u])
            a(f"v_mfma_f32_16x16x32_bf16 {d}, {R(K[0], K[1]+8*u)}, {R('v', QE)}, 0")
            a(f"v_mfma_f32_16x16x32_bf16 {d}, {R(K[0], K[1]+8*u+4)}, {R('v', QO)}, {d}")
            if rk:
                rk(2 * u)
                rk(2 * u + 1)
        order = [(0, 0), (1, 0), (2, 0), (0, 1), (1, 1), (2, 1), (0, 2), (1, 2), (3, 0), (2, 2), (0, 3), (3, 1),
                 (1, 3), (2, 3), (3, 2), None, (3, 3)]
        for o in order:
            if o is None:
                if V is not None:
                    a(f"v_max3_f32 v{TMP}, v{tt}, v{tt+1}, v{MS}")
                continue
            u, c = o
            qp = f"quad_perm:[{c},{c},{c},{c}]"
            if c == 0:
                a(f"v_mov_b32_dpp v{tt+u}, v{DS_[u]} {qp}{DPPM}")
            else:
                a(f"v_add_f32_dpp v{tt+u}, v{DS_[u]+c}, v{tt+u} {qp}{DPPM}")
    if V is None:
        return
    if K is None:
        a(f"v_max3_f32 v{TMP}, v{tt}, v{tt+1}, v{MS}")
    a(f"v_max3_f32 v{TMP}, v{TMP}, v{tt+2}, v{tt+3}")
    a(f"v_max_f32_dpp v{TMP}, v{TMP}, v{TMP} row_half_mirror{DPPM}")
    rows("v_max_f32", TMP, TMP + 1)
    a(f"v_sub_f32 v{TMP+1}, v{MS}, v{TMP}")
    a(f"v_mul_f32 v{TMP+1}, s30, v{TMP+1}")
    a(f"v_exp_f32 v{TMP+1}, v{TMP+1}")
    a(f"v_mov_b32 v{MS}, v{TMP}")
    a(f"v_mul_f32 v{NMC}, s30, v{TMP}")
    for u in range(4):
        a(f"v_fma_f32 v{tt+u}, v{tt+u}, s30, -v{NMC}")
    for u in range(4):
        a(f"v_exp_f32 v{tt+u}, v{tt+u}")
    a(f"v_mul_f32 v{LS}, v{LS}, v{TMP+1}")
    for r in range(4):
        a(f"v_mul_f32 v{OA+r}, v{OA+r}, v{TMP+1}")
    a(f"v_add_f32 v{TMP+2}, v{tt}, v{tt+1}")
    a(f"v_add_f32 v{TMP+3}, v{tt+2}, v{tt+3}")
    for u in range(4):
        a(f"v_cvt_pk_bf16_f32 v{tt+u}, v{tt+u}, v{tt+u}")
    a(f"v_add_f32 v{TMP+2}, v{TMP+2}, v{TMP+3}")
    a(f"v_add_f32 v{LS}, v{LS}, v{TMP+2}")

    def buildB(t):
        b = DS_[t & 3]
        p = tt + (t >> 1)
        for i in range(4):
            own = (i < 2) == ((t & 1) == 0)
            if own:
                a(f"v_and_b32 v{b+i}, v{p}, v{4+i}")
            else:
                sh = "row_shr:4" if (t & 1) == 0 else "row_shl:4"
                a(f"v_and_b32_dpp v{b+i}, v{p}, v{4+i} {sh}{DPPM} bound_ctrl:1")

    buildB(0)
    if hooks:
        hooks[1]()
    for t in range(8):
        if t + 1 < 8:
            buildB(t + 1)
        if vt:
            waitq(vt(t))
        a(f"v_mfma_f32_16x16x32_bf16 {R('v', OA)}, {R(V[0], V[1]+4*t)}, {R('v', DS_[t&3])}, {R('v', OA)}")
        if rv:
            rv(t)


def unit(kind, base, tag, reload_tag=None, hooks=None):
    rk = rv = None
    if reload_tag is not None:
        rk = lambda t: ldK(kind, base, t, reload_tag)
        rv = lambda t: ldV(kind, base, t, reload_tag)
    unit2((kind, base), (kind, base + 32), lambda t: (tag, "K", t), lambda t: (tag, "V", t), rk, rv, hooks)


probe_k = [0]


def probe(kind="V"):
    k = probe_k[0]
    probe_k[0] += 1
    srd_, base = ("s[8:11]", 55) if kind == "V" else ("s[4:7]", 96)
    for c in ((0, 1) if k & 1 else (1, 0)):
        a(f"s_add_u32 s50, s57, {(c ^ 1)*8192 + k*1152}")
        a("s_memtime s[52:53]")
        a("s_waitcnt lgkmcnt(0)")
        a(f"s_buffer_load_dword s51, {srd_}, s50")
        a("s_waitcnt lgkmcnt(0)")
        a("s_memtime s[50:51]")
        a("s_waitcnt lgkmcnt(0)")
        a("s_sub_u32 s50, s50, s52")
        a(f"s_min_u32 s{base+c}, s{base+c}, s50")


def qtags(tag):
    return [(tag, "K", t) for t in range(8)] + [(tag, "V", t) for t in range(8)]


RING = [64, 128, 192]


def bf16r(d, s):
    a(f"v_cvt_pk_bf16_f32 v{d}, v{s}, v{s}")
    a(f"v_and_b32 v{d}, 0xffff0000, v{d}")


def afrag_addr(v, base_sgpr=None, base=0):
    a(f"v_lshrrev_b32 v{v}, 4, v1")
    a(f"v_lshlrev_b32 v{v}, 4, v{v}")
    if base:
        a(f"v_add_u32 v{v}, {base}, v{v}")
    if base_sgpr is not None:
        a(f"v_add_u32 v{v}, s{base_sgpr}, v{v}")


def lng_addr():
    a("v_add_u32 v2, s44, v3")
    a("v_mov_b32 v57, s44")
    a(f"v_mov_b32 v58, {ONES}")
    a("s_mov_b32 s46, 0x00020002")
    a("s_mov_b32 s47, 0x00020002")
    a("v_cndmask_b32 v57, v57, v58, s[46:47]")
    a("v_lshrrev_b32 v58, 4, v1")
    a("v_lshl_add_u32 v57, v58, 4, v57")
    a("v_lshlrev_b32 v58, 3, v1")
    a("v_add_u32 v58, s45, v58")


def lngemv():
    S, nk, T, acc = 4, 18, 8, 60
    s, q, t, t2, one = 48, 49, 50, 51, 52
    f = []
    for i in range(8):
        f.append(f"v_dot2c_f32_bf16 v{s}, v{40+i}, v{one}")
        f.append(f"v_dot2c_f32_bf16 v{q}, v{40+i}, v{40+i}")
    f.append("s_nop 1")
    for st in ("quad_perm:[1,0,3,2]", "quad_perm:[2,3,0,1]", "row_half_mirror", "row_mirror"):
        f.append(f"v_add_f32_dpp v{s}, v{s}, v{s} {st}{DPPM}")
        f.append(f"v_add_f32_dpp v{q}, v{q}, v{q} {st}{DPPM}")
    f.append(f"v_permlane16_swap_b32 v{s}, v{q}")
    f.append(f"v_add_f32 v{s}, v{s}, v{q}")
    f.append(f"v_mov_b32 v{t}, v{s}")
    f.append(f"v_permlane32_swap_b32 v{s}, v{t}")
    f.append(f"v_add_f32 v{s}, v{s}, v{t}")
    f.append(f"v_mul_f32 v{s}, {f32(1.0/576)}, v{s}")
    f.append(f"v_mov_b32 v{q}, v{s}")
    f.append(f"v_permlane16_swap_b32 v{s}, v{q}")
    f.append(f"v_fma_f32 v{q}, -v{s}, v{s}, v{q}")
    f.append(f"v_max_f32 v{q}, 0, v{q}")
    f.append(f"v_cvt_pk_bf16_f32 v{q}, v{s}, v{q}")
    f.append(f"v_lshlrev_b32 v{s}, 16, v{q}")
    f.append(f"v_and_b32 v{q}, 0xffff0000, v{q}")
    for op in (f"v_add_f32 v{q}, {f32(1e-5)}, v{q}", f"v_sqrt_f32 v{q}, v{q}"):
        f.append(op)
        f.append(f"v_cvt_pk_bf16_f32 v{q}, v{q}, v{q}")
        f.append(f"v_and_b32 v{q}, 0xffff0000, v{q}")
    f.append(f"v_rcp_f32 v{q}, v{q}")

    def issue(kk):
        z = T + 8 * (kk % S)
        a(f"ds_read_b128 {R('v', z)}, v57 offset:{kk*64}")
        a(f"ds_read_b64_tr_b16 {R('v', z+4, 2)}, v58 offset:{kk*1024}")
        a(f"ds_read_b64_tr_b16 {R('v', z+6, 2)}, v58 offset:{kk*1024+512}")

    for r in range(4):
        a(f"v_mov_b32 v{44+r}, 0")
    a("ds_read_b128 v[40:43], v2")
    a("s_mov_b64 exec, 0xff")
    a("ds_read_b128 v[44:47], v2 offset:1024")
    a("s_mov_b64 exec, -1")
    for kk in range(S):
        issue(kk)
    a(f"v_mov_b32 v{s}, 0")
    a(f"v_mov_b32 v{q}, 0")
    a(f"v_mov_b32 v{one}, 0x3f803f80")
    per = -(-len(f) // (nk // 2 + 1))
    for kk in range(0, nk, 2):
        a(f"s_waitcnt lgkmcnt({3*(min(nk, kk+S)-kk-2)})")
        for k2 in (kk, kk + 1):
            z = T + 8 * (k2 % S)
            c = "0" if k2 == 0 else R("v", acc)
            a(f"v_mfma_f32_16x16x32_bf16 {R('v', acc)}, {R('v', z)}, {R('v', z+4)}, {c}")
        for k2 in (kk, kk + 1):
            if k2 + S < nk:
                issue(k2 + S)
        for _ in range(per):
            if f:
                a(f.pop(0))
    while f:
        a(f.pop(0))
    a(f"v_fma_f32 v60, -v{s}, v61, v60")
    a(f"v_mul_f32 v60, v60, v{q}")


def retry(lab_again, lab_done):
    a("s_cmp_eq_u32 s38, 0")
    a(f"s_cbranch_scc1 {lab_done}")
    a("s_sub_u32 s38, s38, 1")
    if OPT["psleep"]:
        a(f"s_sleep {OPT['psleep']}")
    a(f"s_branch {lab_again}")


def combine(CB, CS):
    a("v_lshlrev_b32 v8, 2, v0")
    a(f"v_add_u32 v8, {CB}, v8")
    a("s_lshr_b32 s44, s24, 1")
    a("s_lshl_b32 s44, s44, 5")
    a(f"s_add_u32 s44, s44, {CS}")
    a("v_mov_b32 v9, s44")
    a("ds_read_b128 v[12:15], v9")
    a("ds_read_b128 v[16:19], v9 offset:16")
    for w in range(4):
        a(f"ds_read_b32 v{20+w}, v8 offset:{w*1024}")
    a("s_waitcnt lgkmcnt(4)")
    a("v_max3_f32 v26, v12, v14, v16")
    a("v_max_f32 v26, v26, v18")
    for w in range(4):
        a(f"v_sub_f32 v{12+2*w}, v{12+2*w}, v26")
    for w in range(4):
        a(f"v_exp_f32 v{12+2*w}, v{12+2*w}")
    a("v_mul_f32 v27, v13, v12")
    for w in range(1, 4):
        a(f"v_fmac_f32 v27, v{13+2*w}, v{12+2*w}")
    a("s_waitcnt lgkmcnt(0)")
    a("v_mul_f32 v24, v20, v12")
    for w in range(1, 4):
        a(f"v_fmac_f32 v24, v{20+w}, v{12+2*w}")


def qpoll_issue():
    a("buffer_load_dwordx4 v[24:27], v32, s[12:15], s45 offen sc1", tag="qp")
    a("buffer_load_dwordx4 v[28:31], v32, s[12:15], s45 offen offset:16 sc1", tag="qp")


def qpoll_addr(xoff):
    a("s_lshl_b32 s45, s25, 11")
    a(f"s_add_u32 s45, s45, {xoff}")
    a("v_bfe_u32 v32, v1, 3, 1")
    a("v_lshlrev_b32 v32, 10, v32")
    a("v_lshrrev_b32 v33, 4, v1")
    a("v_lshl_add_u32 v32, v33, 8, v32")
    a("v_bfe_u32 v33, v1, 1, 1")
    a("v_lshl_add_u32 v32, v33, 7, v32")
    a("v_and_b32 v33, 1, v1")
    a("v_lshl_add_u32 v32, v33, 5, v32")


def qpoll_check():
    a("v_cmp_ne_u32 s[46:47], s29, v25")
    a("v_cmp_ne_u32 s[48:49], s29, v27")
    a("v_cmp_ne_u32 s[50:51], s29, v29")
    a("v_cmp_ne_u32 s[52:53], s29, v31")
    a("s_or_b64 s[46:47], s[46:47], s[48:49]")
    a("s_or_b64 s[50:51], s[50:51], s[52:53]")
    a("s_or_b64 s[46:47], s[46:47], s[50:51]")


VL = 50


def unit_drain(base):
    def pwait(last):
        labs = [a.newlabel("dw") for _ in range(RN - 1)]
        for p in range(RN - 1):
            a(f"s_cmp_eq_u32 s93, {p}")
            a(f"s_cbranch_scc1 {labs[p]}")
        a(f"s_waitcnt vmcnt({last})")
        for p in reversed(range(RN - 1)):
            a.label(labs[p])
            a(f"s_waitcnt vmcnt({last + 16*(RN-1-p)})")
    a.vq = []
    unit("v", base, "none", None, hooks=(lambda: pwait(9), lambda: pwait(1)))


def kloc(i):
    return ("a", 32 * i) if i < 8 else ("v", 64 + 64 * RN + 32 * (i - 8))


def swapreduce(b):
    a(f"v_permlane32_swap_b32 v{b}, v{b+1}")
    a(f"v_permlane32_swap_b32 v{b+2}, v{b+3}")
    a(f"v_add_f32 v{b}, v{b}, v{b+1}")
    a(f"v_add_f32 v{b+2}, v{b+2}, v{b+3}")
    a(f"v_permlane16_swap_b32 v{b}, v{b+2}")
    a(f"v_add_f32 v{b}, v{b}, v{b+2}")


def kofs():
    a("v_bfe_u32 v40, v1, 2, 2")
    a("v_lshlrev_b32 v2, 8, v40")
    a("v_lshrrev_b32 v40, 4, v1")
    a("v_lshl_add_u32 v2, v40, 6, v2")
    a("v_and_b32 v40, 3, v1")
    a("v_lshl_add_u32 v2, v40, 4, v2")


def masks():
    a("v_and_b32 v40, 1, v1")
    a("v_lshlrev_b32 v40, 4, v40")
    a("v_mov_b32 v41, 0xffff")
    a("v_lshlrev_b32 v40, v40, v41")
    for i in range(4):
        m = 0x03030303 << (2 * i)
        a(f"s_mov_b32 s46, 0x{m:08x}")
        a(f"s_mov_b32 s47, 0x{m:08x}")
        a(f"v_cndmask_b32 v{4+i}, 0, v40, s[46:47]")


def loopconsts():
    kofs()
    masks()


def qprep(xoff):
    a("s_mul_i32 s44, s24, 1152")
    a(f"s_add_u32 s44, s44, {XB}")
    a(f"s_mul_i32 s45, s24, {TS}")
    a(f"s_add_u32 s45, s45, {WQ}")
    lng_addr()
    a("s_lshl_b32 s54, s28, 3")
    a("s_add_u32 s54, s54, s27")
    a("s_sub_u32 s54, s54, 24")
    a("s_lshl_b32 s54, s54, 2")
    a("s_add_u32 s54, s54, s24")
    a("s_lshl_b32 s54, s54, 7")
    a(f"s_add_u32 s54, s54, {xoff}")


def ones_init():
    for r in range(4):
        a(f"v_mov_b32 v{16+r}, 0x3f803f80")
    a(f"v_add_u32 v20, {ONES}, v3")
    a("ds_write_b128 v20, v[16:19]")
    a("s_mov_b64 exec, 0xff")
    a("ds_write_b128 v20, v[16:19] offset:1024")
    a("s_mov_b64 exec, -1")


a.raw(f"{NAME}_kernel:")
a("s_cmp_ge_u32 s2, 256")
a("s_cbranch_scc1 LEND")
if STAMPS or OPT["padto"]:
    a("s_memrealtime s[100:101]")
a("s_load_dwordx16 s[64:79], s[0:1], 0")
a("s_load_dwordx8 s[80:87], s[0:1], 64")
a("v_and_b32 v1, 63, v0")
a("v_lshrrev_b32 v40, 6, v0")
a("v_readfirstlane_b32 s24, v40")
a("s_and_b32 s28, s2, 7")
if OPT["rbal"]:
    a("s_lshr_b32 s27, s2, 4")
    a("s_and_b32 s44, s2, 15")
    a("s_lshl_b32 s44, s44, 1")
    a("s_add_u32 s27, s27, s44")
else:
    a("s_lshr_b32 s27, s2, 3")
    a("s_lshl_b32 s44, s28, 2")
    a("s_add_u32 s27, s27, s44")
a("s_and_b32 s27, s27, 31")
a("s_lshr_b32 s25, s2, 4")
a("s_and_b32 s26, s2, 15")
a(f"s_mov_b32 s30, {f32(math.log2(math.e)/math.sqrt(128.0))}")
a("s_mov_b32 s31, 0")
a("s_mov_b32 s38, 400000")
a(f"s_mov_b32 s39, {LB0}")
a("s_mov_b32 s42, 0xf0f0f0f0")
a("s_mov_b32 s43, 0xf0f0f0f0")
a("s_lshl_b32 s44, s26, 2")
a("s_add_u32 s44, s44, s24")
a("s_lshl_b32 s32, s44, 13")
hswinit()
setaddr(32, 32)
a("s_lshl_b32 s57, s44, 14")
a(f"s_add_u32 s57, s57, {1920*8192}")
a("s_mov_b32 s55, -1")
a("s_mov_b32 s56, -1")
a("s_mov_b32 s96, -1")
a("s_mov_b32 s97, -1")
a("v_lshlrev_b32 v3, 4, v1")
kofs()
a("s_waitcnt lgkmcnt(0)")
a("s_load_dword s29, s[86:87], 0")
if OPT["padmin"]:
    a("s_not_b32 s101, s100")
    a("s_atomic_umax s101, s[84:85], 64")
a("s_lshl_b32 s44, s25, 24")
a("s_add_u32 s4, s66, s44")
a("s_addc_u32 s5, s67, 0")
a("s_and_b32 s5, s5, 0xffff")
a("s_mov_b32 s6, 0x1000000")
a("s_mov_b32 s7, 0x20000")
a("s_add_u32 s8, s68, s44")
a("s_addc_u32 s9, s69, 0")
a("s_and_b32 s9, s9, 0xffff")
a("s_mov_b32 s10, 0x1000000")
a("s_mov_b32 s11, 0x20000")
srd(12, 86, 87, WS_SIZE)
a("s_cmp_ge_u32 s27, 24")
a("s_cbranch_scc0 LPRO1")
srd(60, 64, 65, 1152)
srd(92, 70, 71, 0 if OPT["wskip"] & 8 else 576 * 8192)
a("v_lshrrev_b32 v41, 3, v1")
a("v_lshlrev_b32 v40, 13, v41")
a("v_and_b32 v42, 7, v1")
a("v_lshl_add_u32 v40, v42, 4, v40")
a("s_lshl_b32 s46, s28, 3")
a("s_add_u32 s46, s46, s27")
a("s_sub_u32 s46, s46, 24")
a("s_lshl_b32 s44, s46, 7")
a(f"s_mul_i32 s45, s24, {144*8192}")
a("s_add_u32 s44, s44, s45")
for i in range(18):
    a(f"buffer_load_dwordx4 {R('v', 64+4*i)}, v40, s[92:95], s44 offen{WPOL}")
    a("s_add_u32 s44, s44, 65536")
a("buffer_load_dwordx4 v[8:11], v3, s[60:63], 0 offen")
a("buffer_load_dwordx4 v[12:15], v3, s[60:63], 0 offen offset:1024")
a("s_and_b32 s44, s46, 3")
a("s_or_b32 s44, s44, s24")
a("s_cmp_eq_u32 s44, 0")
a("s_cbranch_scc0 LPRO0")
a("v_and_b32 v40, 1, v1")
a("v_lshlrev_b32 v40, 12, v40")
a("v_bfe_u32 v43, v1, 1, 1")
a("v_lshl_add_u32 v40, v43, 13, v40")
a("v_lshrrev_b32 v43, 2, v1")
a("v_lshl_add_u32 v40, v43, 4, v40")
a("v_mov_b32 v36, 0\nv_mov_b32 v37, 0\nv_mov_b32 v38, 0\nv_mov_b32 v39, 0")
a("s_lshl_b32 s44, s46, 6")
a(f"s_add_u32 s44, s44, {CTR}")
a("s_mov_b64 exec, 0xff")
a("buffer_store_dwordx4 v[36:39], v40, s[12:15], s44 offen sc1")
a("s_mov_b64 exec, -1")
a.label("LPRO0")
a("v_lshrrev_b32 v40, 1, v42")
a(f"v_mul_u32_u24 v40, {TS}, v40")
a("v_and_b32 v43, 3, v41")
a("v_lshl_add_u32 v40, v43, 5, v40")
a("v_lshrrev_b32 v43, 2, v41")
a("v_lshl_add_u32 v40, v43, 9, v40")
a("v_and_b32 v42, 1, v42")
a("v_lshl_add_u32 v40, v42, 4, v40")
for k, reg in ((0, 41), (2, 42)):
    a("s_mul_i32 s44, s24, 18")
    a(f"s_add_u32 s44, s44, {k}")
    a("s_lshr_b32 s45, s44, 2")
    a("s_lshl_b32 s45, s45, 10")
    a("s_and_b32 s44, s44, 3")
    a("s_lshl_b32 s44, s44, 7")
    a("s_add_u32 s44, s44, s45")
    a(f"s_add_u32 s44, s44, {WQ}")
    a(f"v_add_u32 v{reg}, s44, v40")
ones_init()
a("s_waitcnt vmcnt(0) lgkmcnt(0)")
a("s_mul_i32 s29, s29, 0x9e3779b1")
a("s_add_u32 s29, s29, 0x7f4a7c15")
for i in range(18):
    a(f"ds_write_b128 v{41 + ((i>>1)&1)}, {R('v', 64+4*i)} offset:{(i>>2)*1024+(i&1)*128}")
a("s_waitcnt lgkmcnt(0)")
a("s_barrier")
qprep(X0)
a("s_call_b64 s[36:37], LQSTAGE")
kofs()
a("s_branch LPRO2")
a.label("LPRO1")
a("s_waitcnt lgkmcnt(0)")
ones_init()
a("s_mul_i32 s29, s29, 0x9e3779b1")
a("s_add_u32 s29, s29, 0x7f4a7c15")
a.label("LPRO2")
if STAMPS == 2:
    a("v_mov_b32 v51, 0")
    a("s_mov_b32 s93, 0")
sstamp(55)
a.vq = []
burst("a", 0, "A0")
a("s_cmp_eq_u32 s24, 0")
a("s_cbranch_scc0 LPRO3")
a("v_mov_b32 v24, -1\nv_mov_b32 v25, -1\nv_mov_b32 v26, -1\nv_mov_b32 v27, -1")
a("s_mul_i32 s44, s2, 6144")
a(f"s_add_u32 s44, s44, {LB0}")
a("s_add_u32 s45, s44, 4096")
keep = list(a.vq)
for i in range(6):
    a(f"buffer_store_dwordx4 v[24:27], v3, s[12:15], s{44+(i>>2)} offen offset:{1024*(i&3)} sc1")
a.vq = keep
a.label("LPRO3")
srd(16, 82, 83, 1152)
srd(20, 84, 85, 256)
masks()
a("s_lshl_b32 s44, s25, 8")
a(f"s_add_u32 s44, s44, {CTR}")
a("s_add_u32 s88, s86, s44")
a("s_addc_u32 s89, s87, 0")
sstamp(56)
keep = list(a.vq)
a("s_cmp_lt_u32 s27, 18")
a("s_cbranch_scc0 LWB")
srd(60, 76, 77, 0 if OPT["wskip"] & 2 else 576 * 9216)
srd(92, 78, 79, 0 if OPT["wskip"] & 2 else 576 * 9216)
a("v_lshrrev_b32 v41, 2, v1")
a("v_and_b32 v42, 3, v1")
a("v_mul_u32_u24 v40, 9216, v41")
a("v_lshl_add_u32 v40, v42, 4, v40")
a("s_mul_i32 s46, s28, 18")
a("s_add_u32 s46, s46, s27")
a("s_lshl_b32 s44, s46, 6")
a(f"s_mul_i32 s45, s24, {144*9216}")
a("s_add_u32 s44, s44, s45")
for i in range(0 if OPT["wlate"] & 1 else 9):
    a(f"buffer_load_dwordx4 {R('v', 64+8*i)}, v40, s[60:63], s44 offen{WPOL}")
    a(f"buffer_load_dwordx4 {R('v', 68+8*i)}, v40, s[92:95], s44 offen{WPOL}")
    a(f"s_add_u32 s44, s44, {16*9216}")
a(f"v_mul_u32_u24 v43, {TS}, v42")
a("v_and_b32 v42, 3, v41")
a("v_lshl_add_u32 v43, v42, 5, v43")
a("v_bfe_u32 v42, v41, 2, 1")
a("v_lshl_add_u32 v43, v42, 9, v43")
a("v_lshrrev_b32 v42, 3, v41")
a("v_lshl_add_u32 v43, v42, 7, v43")
for k, reg in ((1, 34), (0, 43)):
    a("s_mul_i32 s44, s24, 9")
    a(f"s_add_u32 s44, s44, {k}")
    a("s_lshr_b32 s45, s44, 1")
    a("s_lshl_b32 s45, s45, 10")
    a("s_and_b32 s44, s44, 1")
    a("s_lshl_b32 s44, s44, 8")
    a("s_add_u32 s44, s44, s45")
    a(f"v_add_u32 v{reg}, s44, v43")
srd(60, 80, 81, 0 if OPT["wskip"] & 4 else 4608 * 1152)
a(f"s_mul_i32 s44, s46, {32*1152}")
a("s_mul_i32 s45, s24, 9216")
a("s_add_u32 s44, s44, s45")
a("s_add_u32 s45, s44, 4096")
a("s_add_u32 s46, s44, 8192")
for i in range(0 if OPT["wlate"] & 2 else 9):
    a(f"buffer_load_dwordx4 {R('v', 136+4*i)}, v3, s[60:63], s{44+(i>>2)} offen offset:{(i&3)*1024}{WPOL}")
a("s_branch LWDONE")
a.label("LWB")
a("s_cmp_lt_u32 s27, 30")
a("s_cbranch_scc0 LWDONE")
srd(60, 72, 73, 0 if OPT["wskip"] & 1 else 4096 * 1152)
a("v_lshrrev_b32 v41, 4, v1")
a("v_and_b32 v42, 15, v1")
a("v_mul_u32_u24 v40, 1152, v41")
a("v_lshl_add_u32 v40, v42, 4, v40")


def brole():
    a("s_sub_u32 s47, s27, 18")
    a("s_lshl_b32 s46, s28, 1")
    a("s_cmp_ge_u32 s47, 6")
    a("s_addc_u32 s46, s46, 0")
    a("s_cmp_ge_u32 s47, 6")
    a("s_cselect_b32 s48, 6, 0")
    a("s_sub_u32 s47, s47, s48")


brole()
a("s_lshl_b32 s44, s46, 8")
a("s_lshl_b32 s45, s24, 6")
a("s_add_u32 s44, s44, s45")
a("s_mul_i32 s44, s44, 1152")
a("s_mul_i32 s45, s47, 192")
a("s_add_u32 s44, s44, s45")
a("s_mov_b32 exec_lo, 0x0fff0fff")
a("s_mov_b32 exec_hi, 0x0fff0fff")
for i in range(16):
    a(f"buffer_load_dwordx4 {R('v', 64+4*i)}, v40, s[60:63], s44 offen{WPOL}")
    a(f"s_add_u32 s44, s44, {4*1152}")
a("s_mov_b64 exec, -1")
a("v_lshrrev_b32 v43, 1, v42")
a(f"v_mul_u32_u24 v43, {WOS}, v43")
a("v_lshl_add_u32 v43, v41, 5, v43")
a("v_and_b32 v42, 1, v42")
a("v_lshl_add_u32 v43, v42, 4, v43")
a("s_lshl_b32 s45, s24, 11")
a("v_add_u32 v43, s45, v43")
a.label("LWDONE")
a.vq = keep
sstamp(57)
PR = str(OPT["pr"]).zfill(4)
for _ in range(int(PR[0])):
    probe()
a.wait_vm_n(30)
burst("a", 64, "A1")
for _ in range(int(PR[1])):
    probe()
a.wait_vm_n(30)
burst("a", 128, "A2")
for _ in range(int(PR[2])):
    probe()
qpoll_addr(X0)
a.wait_vm_n(40)
qpoll_issue()
burst("a", 192, "A3")
for _ in range(int(PR[3])):
    probe()
if not OPT["klate"]:
    probe("K")
a.wait_vm_n(50)
a("s_cmp_lt_u32 s27, 18")
a("s_cbranch_scc0 LWB2")
for i in range(0 if OPT["wlate"] & 1 else 9):
    a(f"ds_write_b128 v{34 if i & 1 else 43}, {R('v', 64+8*i)} offset:{(i>>1)*1024}")
    a(f"ds_write_b128 v{34 if i & 1 else 43}, {R('v', 68+8*i)} offset:{(i>>1)*1024+16}")
a("s_mul_i32 s44, s24, 9216")
a(f"s_add_u32 s44, s44, {WD}")
a("v_add_u32 v40, s44, v3")
for i in range(0 if OPT["wlate"] & 2 else 9):
    a(f"ds_write_b128 v40, {R('v', 136+4*i)} offset:{i*1024}")
a("s_branch LWDONE2")
a.label("LWB2")
a("s_cmp_lt_u32 s27, 30")
a("s_cbranch_scc0 LWDONE2")
a("s_mov_b32 exec_lo, 0x0fff0fff")
a("s_mov_b32 exec_hi, 0x0fff0fff")
for i in range(16):
    a(f"ds_write_b128 v43, {R('v', 64+4*i)} offset:{(i&1)*512+((i>>1)&3)*128+(i>>3)*1024}")
a("s_mov_b64 exec, -1")
a.label("LWDONE2")
a(f"v_mov_b32 v{VL}, 0")
a("s_mov_b32 s91, 0")
a("s_mov_b32 s92, 0")
a("s_mov_b32 s94, 0")
a("s_mov_b32 s95, 7")
a("s_waitcnt lgkmcnt(0)")
a.wait_vm("qp")
if STAMPS:
    a("s_memrealtime s[58:59]")
    a("s_waitcnt lgkmcnt(0)")
    a("s_mov_b32 s75, s58")
qpoll_check()
a("s_cbranch_scc0 LQREADY")

a.label("LQPOLL")
qpoll_issue()
a("s_waitcnt vmcnt(0)")
qpoll_check()
a("s_cbranch_scc0 LQREADY")
retry("LQPOLL", "LQREADY")
a.label("LQREADY")
if OPT["q1w"]:
    a("s_cmp_eq_u32 s31, 0")
    a("s_cbranch_scc1 LQREADY2")
    for i in range(4):
        a(f"ds_write_b32 v33, v{24+2*i} offset:{256*i}")
    a("s_waitcnt lgkmcnt(0)")
    a("s_barrier")
    a.label("LQREADY2")
hswinit()
for i in range(4):
    a(f"v_cndmask_b32 v{QE+i}, v{24+2*i}, 0, s[42:43]")
    a(f"v_cndmask_b32 v{QO+i}, 0, v{24+2*i}, s[42:43]")
for r in range(4):
    a(f"v_mov_b32 v{OA+r}, 0")
a(f"v_mov_b32 v{MS}, {f32(-1e30)}")
a(f"v_mov_b32 v{LS}, 0")
stamp(0)
a("s_cmp_eq_u32 s31, 0")
a("s_cbranch_scc0 LP2")
if OPT["vote"]:
    a("s_getreg_b32 s47, hwreg(HW_REG_XCC_ID)")
    a("s_bfe_u32 s47, s47, 0x10002")
    for d, (x, y) in ((44, (55, 56)),) if OPT["klate"] else ((48, (96, 97)), (44, (55, 56))):
        a(f"s_sub_i32 s{d}, s{x}, s{y}")
        a(f"s_min_i32 s{d}, s{d}, 300")
        a(f"s_max_i32 s{d}, s{d}, -300")
        a(f"s_sub_i32 s45, 0, s{d}")
        a("s_cmp_eq_u32 s47, 0")
        a(f"s_cselect_b32 s{d}, s{d}, s45")
    a("s_mov_b32 s46, s44")
    a("s_atomic_add s46, s[88:89], 16 glc")
    if not OPT["klate"]:
        a("s_atomic_add s48, s[88:89], 20")
    if RN > 1:
        a(f"s_mov_b32 s90, {TKI}")
        a("s_atomic_add s90, s[88:89], 0 glc")
    a("s_waitcnt lgkmcnt(0)")
    a("s_add_i32 s44, s44, s46")
    a("s_cmp_gt_i32 s44, 0")
    a("s_cselect_b32 s44, 1, 0")
    a("s_xor_b32 s44, s44, s47")
else:
    a("s_cmp_gt_u32 s55, s56")
    a("s_cselect_b32 s44, 1, 0")
if OPT["forcecls"] == 2:
    a("s_xor_b32 s44, s44, 1")
a("s_lshl_b32 s45, s44, 2")
a("s_add_u32 s45, s45, 4")
a("s_mov_b32 s46, 1")
a("s_atomic_add s46, s[88:89], s45 glc")
a("s_mov_b32 s61, 0")
a("s_mov_b32 s62, 0")
a("s_mov_b32 s63, 1")
a("s_mov_b32 s98, 13")
a("s_mov_b32 s99, 0")
a(f"s_mov_b32 s96, {NP1}")
a("s_waitcnt lgkmcnt(0)")
a("s_cmp_lt_u32 s46, 32")
a("s_cbranch_scc1 LBUN")
a("s_xor_b32 s44, s44, 1")
a("s_xor_b32 s45, s45, 12")
a("s_mov_b32 s46, 1")
a("s_atomic_add s46, s[88:89], s45 glc")
a("s_waitcnt lgkmcnt(0)")
a.label("LBUN")
a("s_lshl_b32 s57, s46, 1")
a("s_add_u32 s57, s57, s44")
a("s_add_u32 s57, s57, 256")
a("s_lshl_b32 s57, s57, 13")
a("s_mov_b32 s55, -1")
a("s_mov_b32 s37, -1")
a(f"s_mov_b32 s56, {PB}")
a("s_mov_b32 s60, 0")
a(f"s_mov_b32 s54, {TF}")
a("s_mov_b32 s36, 0")
a("s_mov_b32 s101, 0")
a("s_mov_b32 s97, 0")
a("s_mov_b32 s41, 0")
a("s_cmp_eq_u32 s24, 0")
a("s_cbranch_scc0 LNOCNT")
a("s_mov_b32 s48, 1")
a("s_atomic_add s48, s[84:85], 0")
a.label("LNOCNT")
a.vq = qtags("A3")


def tkreq():
    if OPT["sline"]:
        a("s_lshr_b32 s59, s61, 11")
        a("s_atomic_add s90, s[88:89], s59 glc")
    else:
        a("s_atomic_add s90, s[88:89], s61 glc")


def xaddr(reg, i):
    a(f"s_add_u32 s{reg}, s57, {i*UNIT_STEP}")
    if (1 + (i >> 2)) & 1:
        a(f"s_xor_b32 s{reg}, s{reg}, 8192")


def baddr(i):
    xaddr(32, 2 * i)
    xaddr(34, 2 * i + 1)
    setaddr(32, 34)


def draw(s, exhausted):
    ln, lg, lo = a.newlabel("noapp"), a.newlabel("go"), a.newlabel("tok")
    a("s_cmp_lt_u32 s90, s96")
    a(f"s_cbranch_scc1 {lo}")
    a("s_cmp_lg_u32 s63, 0")
    a(f"s_cbranch_scc1 {exhausted}")
    a("s_add_u32 s63, s63, 1")
    a("s_mov_b32 s62, 0")
    a("s_xor_b32 s61, s61, 8192")
    a(f"s_mov_b32 s90, {TKI}")
    tkreq()
    a("s_waitcnt lgkmcnt(0)")
    a("s_cmp_lt_u32 s90, s96")
    a(f"s_cbranch_scc0 {exhausted}")
    a.label(lo)
    a("s_cmp_ge_u32 s90, s60")
    a("s_cselect_b32 s32, s56, 0")
    a("s_add_u32 s32, s32, s90")
    a("s_lshl_b32 s33, s32, 6")
    a("s_xor_b32 s33, s33, s61")
    a("s_and_b32 s33, s33, s99")
    a("s_lshl_b32 s32, s32, s98")
    a("s_add_u32 s32, s32, s33")
    a(f"s_bitset0_b32 s97, {s}")
    a("s_cmp_ge_u32 s90, s54")
    a(f"s_cbranch_scc0 {ln}")
    a(f"s_bitset1_b32 s97, {s}")
    a("s_mov_b32 m0, s94")
    a("s_nop 0")
    a(f"v_writelane_b32 v{VL}, s32, m0")
    a("s_add_u32 s94, s94, 1")
    a("s_cmp_lt_u32 s94, 60")
    a(f"s_cbranch_scc1 {ln}")
    if OPT["tk2"]:
        a("s_bitcmp0_b32 s90, 0")
        a(f"s_cbranch_scc1 {ln}")
    a("s_mov_b32 s90, 0x7fffffff")
    a("s_add_u32 s63, s63, 1")
    a(f"s_branch {lg}")
    a.label(ln)
    if OPT["tk2"]:
        a("s_add_u32 s90, s90, 1")
        a("s_bitcmp1_b32 s90, 0")
        a(f"s_cbranch_scc1 {lg}")
    a("s_xor_b32 s61, s61, s62")
    if OPT["eg"]:
        a(f"s_add_u32 s90, s90, {OPT['eg']}")
        a("s_cmp_ge_u32 s90, s96")
        a("s_cselect_b32 s41, 1, 0")
        a(f"s_cbranch_scc1 {lg}")
    a(f"s_mov_b32 s90, {TKI}")
    tkreq()
    a.label(lg)


def ticket_ready():
    if OPT["eg"]:
        lk = a.newlabel("tk")
        a("s_cmp_eq_u32 s41, 0")
        a(f"s_cbranch_scc1 {lk}")
        a(f"s_waitcnt vmcnt({OPT['gv']})")
        a("s_sub_u32 s41, s41, 1")
        a(f"s_mov_b32 s90, {TKI}")
        tkreq()
        a.label(lk)
    a("s_waitcnt lgkmcnt(0)")


def abody(i, xslot=None):
    baddr(i)

    def rl(hf, t):
        if xslot is not None:
            ld("v", RING[xslot] + 32 * hf, t, "V", hf, VPOL, ("X", 2 * i + hf, t))
        ld("a", 64 * i + 32 * hf, t, "K", hf, " nt", ("BK", 2 * i + hf, t))
    a.wait_vm_n(31)
    unit2(("a", 64 * i), ("a", 64 * i + 32), lambda t: (f"A{i}", "K", t), lambda t: (f"A{i}", "V", t),
          lambda t: rl(0, t), lambda t: rl(1, t))
    logt()


def kburst(i):
    baddr(i)
    a.wait_vm_n(47)
    for hf in range(2):
        k = kloc(2 * i + hf)
        for t in range(8):
            ld(k[0], k[1], t, "K", hf, " nt", ("BK", 2 * i + hf, t))


def dbody(d, slot, nxt):
    sl = RING[slot]
    if nxt[0] == "X":
        j = nxt[1]
        baddr(j)
        rka = lambda t: ld("v", sl, t, "V", 0, VPOL, ("X", 2 * j, t))
        rkb = lambda t: ld("v", sl + 32, t, "V", 1, VPOL, ("X", 2 * j + 1, t))
    else:
        if nxt == "L":
            xaddr(32, NR)
        else:
            le, lc = a.newlabel("dex"), a.newlabel("dco")
            ticket_ready()
            draw(slot, le)
            a(f"s_branch {lc}")
            a.label(le)
            a(f"s_bitset0_b32 s95, {slot}")
            a("s_mov_b32 s32, 0x1000000")
            a.label(lc)
        setaddr(32, 32)
        rka = lambda t: ldK("v", sl, t, nxt)
        rkb = lambda t: ldV("v", sl, t, nxt)
    a.wait_vm_n(47)
    unit2(kloc(2 * d), ("v", sl), lambda t: ("BK", 2 * d, t), lambda t: ("X", 2 * d, t), None, rka)
    unit2(kloc(2 * d + 1), ("v", sl + 32), lambda t: ("BK", 2 * d + 1, t), lambda t: ("X", 2 * d + 1, t), None, rkb)
    logt()


if RN == 3:
    abody(0, 0), abody(1, 1), abody(2, 2), abody(3)
    dbody(0, 0, ("X", 3)), dbody(1, 1, "L"), dbody(2, 2, "P"), dbody(3, 0, "P")
    LSLOT = 1
elif RN == 2:
    abody(0, 0), abody(1, 1)
    dbody(0, 0, ("X", 2)), abody(2), dbody(1, 1, ("X", 3)), abody(3), kburst(4)
    dbody(2, 0, ("X", 4)), dbody(3, 1, "L"), dbody(4, 0, "P")
    LSLOT = 1
else:
    abody(0, 0), abody(1, 1), abody(2, 2), abody(3)
    dbody(0, 0, ("X", 3))
    for d, slot, j in ((1, 1, 4), (2, 2, 5)):
        baddr(j)
        a.wait_vm_n(47)
        for hf in range(2):
            unit2(kloc(2 * d + hf), ("v", RING[slot] + 32 * hf), lambda t: ("BK", 2 * d + hf, t), lambda t: ("X", 2 * d + hf, t), None,
                  lambda t: ld("v", RING[slot] + 32 * hf, t, "K", hf, " nt", ("BK", 2 * j + hf, t)))
        if d == 1:
            dbody(3, 0, ("X", 4))
    dbody(4, 0, ("X", 5)), dbody(5, 0, "L")
    LSLOT = 0
a("s_lshl_b32 s44, s24, 13")
a(f"s_add_u32 s44, s44, {KL}")
a("v_add_u32 v40, s44, v3")
if OPT["klate"]:
    a("s_lshl_b32 s44, s26, 2")
    a("s_add_u32 s44, s44, s24")
    a("s_lshl_b32 s44, s44, 14")
    a("s_getreg_b32 s47, hwreg(HW_REG_XCC_ID)")
    a("s_bfe_u32 s47, s47, 0x10002")
    a("s_waitcnt lgkmcnt(0)")
    for c in (0, 1, 0):
        a(f"s_add_u32 s50, s44, {1920*8192 + (c ^ 1)*8192 + probe_k[0]*1152}")
        probe_k[0] += 1
        a("s_memtime s[52:53]")
        a("s_waitcnt lgkmcnt(0)")
        a("s_buffer_load_dword s51, s[4:7], s50")
        a("s_waitcnt lgkmcnt(0)")
        a("s_memtime s[50:51]")
        a("s_waitcnt lgkmcnt(0)")
        a(f"s_sub_u32 s{45+c}, s50, s52")
    a("s_sub_i32 s48, s45, s46")
    a("s_min_i32 s48, s48, 300")
    a("s_max_i32 s48, s48, -300")
    a("s_sub_i32 s45, 0, s48")
    a("s_cmp_eq_u32 s47, 0")
    a("s_cselect_b32 s48, s48, s45")
    a("s_atomic_add s48, s[88:89], 20")
if RN == 1:
    a(f"s_mov_b32 s90, {TKI}")
    a("s_atomic_add s90, s[88:89], 0 glc")
waitq(("L", "K", 7))
for t in range(8):
    a(f"ds_write_b128 v40, {R('v', RING[LSLOT]+4*t)} offset:{t*1024}")
a(f"s_branch LRING{LSLOT}")
a.label("LP2")
if STAMPS == 2:
    a("v_mov_b32 v51, 0")
    a("s_mov_b32 s93, 0")
a("s_mov_b32 s3, 0")
a(f"s_mov_b32 s56, {PB//2 - 128}")
a("s_mov_b32 s60, 128")
a("s_mov_b32 s41, 0")
a("s_mov_b32 s54, -1")
a("s_mov_b32 s101, 0")
a("s_mov_b32 s36, 0")
a(f"s_mov_b32 s37, {OPT['cn']}")
a("s_and_b32 s3, s3, s36")
sloc = lambda i: kloc(i) if i < NR else ("a", 0)
for i in range(NB + 1):
    a(f"s_mov_b32 s55, {THR0 + i*THRS}")
    a("s_add_u32 s36, s36, 1")
    a("s_branch LRINGGO")
    a.label(f"LRET{i+1}")
    a.vq = []
    if i > 0:
        def vwait():
            l0, l1 = a.newlabel("sw"), a.newlabel("sw")
            a("s_cmp_ge_u32 s101, 2")
            a(f"s_cbranch_scc1 {l0}")
            a("s_cmp_eq_u32 s101, 1")
            a(f"s_cbranch_scc1 {l1}")
            a("s_waitcnt vmcnt(0)")
            a.label(l1)
            a("s_waitcnt vmcnt(16)")
            a.label(l0)
            a("s_waitcnt vmcnt(32)")
        if i == NR:
            a("s_lshl_b32 s44, s24, 13")
            a(f"s_add_u32 s44, s44, {KL}")
            a("v_add_u32 v40, s44, v3")
            for t in range(8):
                a(f"ds_read_b128 {R('a', 4*t)}, v40 offset:{t*1024}")
        unit2(None, sloc(i - 1), hooks=(None, vwait), tt=52)
    if i < NB:
        xaddr(34, i)
        setaddr(None, 34)
        if i == NR:
            a("s_waitcnt lgkmcnt(0)")
        a.wait_vm_n(55)
        unit2(sloc(i), None, None, None, lambda t: ld(sloc(i)[0], sloc(i)[1], t, "V", 1, VPOL, None), tt=52)
        a("s_mov_b32 s101, 0")
a("s_mov_b32 s55, -1")
a("s_mov_b32 s37, -1")
a.label("LRINGGO")
for q in range(RN - 1):
    a(f"s_cmp_eq_u32 s3, {q}")
    a(f"s_cbranch_scc1 LRING{q}")
a(f"s_branch LRING{RN-1}")
a.label("LPASSEND")
stamp(1)
if STAMPS == 2:
    a("s_lshl_b32 s44, s31, 8")
    a("s_add_u32 s44, s44, s2")
    a("s_lshl_b32 s44, s44, 10")
    a(f"s_add_u32 s44, s44, {STAMP_OFF+0x40000}")
    a("v_lshlrev_b32 v40, 2, v0")
    a("buffer_store_dword v51, v40, s[12:15], s44 offen")
a(f"v_add_f32_dpp v{LS}, v{LS}, v{LS} row_half_mirror{DPPM}")
rows("v_add_f32", LS, TMP)
a(f"v_mul_f32 v22, s30, v{MS}")
a(f"v_mov_b32 v23, v{LS}")
a("v_bfe_u32 v40, v1, 3, 1")
a("v_lshlrev_b32 v41, 9, v40")
a("v_lshrrev_b32 v42, 4, v1")
a("v_lshl_add_u32 v41, v42, 7, v41")
a("v_and_b32 v42, 7, v1")
a("v_lshl_add_u32 v41, v42, 2, v41")
a("s_lshl_b32 s44, s24, 10")
a(f"s_add_u32 s44, s44, {CB1}")
a("v_add_u32 v41, s44, v41")
for r in range(4):
    a(f"ds_write_b32 v41, v{OA+r} offset:{32*r}")
a("s_lshl_b32 s44, s24, 3")
a(f"s_add_u32 s44, s44, {CS1}")
a("v_lshlrev_b32 v40, 5, v40")
a("v_add_u32 v40, s44, v40")
a("ds_write_b64 v40, v[22:23]")
a("v_lshlrev_b32 v40, 2, v0")
a(f"v_add_u32 v40, {LSV}, v40")
a(f"ds_write_b32 v40, v{VL}")
a.label("LCNT")
a("s_waitcnt vmcnt(0)")
a("v_readfirstlane_b32 s44, v49")
a("s_cmp_ge_u32 s44, 256")
a("s_cbranch_scc1 LCNTOK")
a("v_mov_b32 v48, 0")
a("buffer_load_dword v49, v48, s[20:23], 0 offen sc1")
retry("LCNT", "LCNTOK")
a.label("LCNTOK")
a("s_waitcnt lgkmcnt(0)")
a("s_barrier")
combine(CB1, CS1)
a(f"s_mul_i32 s44, s2, {X1S}")
a("s_add_u32 s44, s44, s39")
a("v_lshlrev_b32 v8, 2, v0")
a("buffer_store_dword v24, v8, s[12:15], s44 offen sc1")
a("s_lshl_b32 s45, s24, 6")
a("v_mov_b32 v9, s45")
a("s_bitcmp0_b32 s24, 0")
a("s_cbranch_scc0 LPUB1")
a("s_mov_b64 exec, 1")
a("buffer_store_dwordx2 v[26:27], v9, s[12:15], s44 offen offset:1024 sc1")
a("s_mov_b64 exec, -1")
a.label("LPUB1")
stamp(2)
a("s_cmp_eq_u32 s31, 0")
a("s_cbranch_scc0 LPUB2")
a("s_getreg_b32 s47, hwreg(HW_REG_XCC_ID)")
a("s_bfe_u32 s47, s47, 0x10002")
a("s_add_u32 s88, s88, 4096")
a("s_addc_u32 s89, s89, 0")
a("s_mov_b32 s63, 0")
a("s_cmp_gt_i32 s98, 0")
a("s_cselect_b32 s61, 1, 0")
a("s_xor_b32 s61, s61, s47")
a("s_lshl_b32 s61, s61, 13")
a("s_xor_b32 s98, s98, s99")
a("s_cmp_lt_i32 s98, 0")
a("s_cselect_b32 s62, 8192, 0")
a("s_mov_b32 s98, 14")
a("s_mov_b32 s99, 8192")
a(f"s_mov_b32 s90, {TKI}")
tkreq()
a.label("LPUB2")
a("s_cmp_lt_u32 s27, 18")
a("s_cbranch_scc1 LSTC")
a("s_cmp_lt_u32 s27, 30")
a("s_cbranch_scc0 LSTQ")
brole()
a(f"s_mul_i32 s48, s46, {16*X1S}")
a("s_add_u32 s48, s48, s39")
for g in range(1, 4):
    a(f"s_add_u32 s{48+g}, s48, {g*4*X1S}")
a("v_lshlrev_b32 v8, 2, v0")
a("v_and_b32 v9, 15, v1")
a(f"v_mul_u32_u24 v9, {X1S}, v9")
a("s_lshr_b32 s44, s24, 1")
a("s_lshl_b32 s44, s44, 7")
a("v_add_u32 v9, s44, v9")
a("v_lshlrev_b32 v10, 1, v0")
a(f"v_add_u32 v10, {OB}, v10")
a(f"s_mul_i32 s44, s24, {2*WOS}")
a("v_lshlrev_b32 v58, 3, v1")
a("v_add_u32 v58, s44, v58")
afrag_addr(57, base=OB)
a.label("LE1")
a("buffer_load_dwordx2 v[28:29], v9, s[12:15], s48 offen offset:1024 sc1")
for p in range(16):
    a(f"buffer_load_dword v{12+p}, v8, s[12:15], s{48+(p>>2)} offen offset:{(p&3)*X1S} sc1")
a("s_waitcnt vmcnt(16)")
if OPT["e1f"]:
    a("v_cmp_u_f32 vcc, v28, v29")
    a("s_cbranch_vccnz LE1R")
ROWRED = ("quad_perm:[1,0,3,2]", "quad_perm:[2,3,0,1]", "row_half_mirror", "row_mirror")
a(f"v_max_f32_dpp v30, v28, v28 {ROWRED[0]}{DPPM}")
for st in ROWRED[1:]:
    a(f"v_max_f32_dpp v30, v30, v30 {st}{DPPM}")
a("v_sub_f32 v28, v28, v30")
a("v_exp_f32 v28, v28")
a("v_mul_f32 v29, v29, v28")
for st in ROWRED:
    a(f"v_add_f32_dpp v29, v29, v29 {st}{DPPM}")
a("v_rcp_f32 v29, v29")
a("v_mul_f32 v28, v28, v29")
a("s_waitcnt vmcnt(0)")
for p in range(16):
    op = "v_mul_f32_dpp" if p < 4 else "v_fmac_f32_dpp"
    a(f"{op} v{32+(p&3)}, v28, v{12+p} row_newbcast:{p}{DPPM}")
a("v_add_f32 v32, v32, v33")
a("v_add_f32 v34, v34, v35")
a("v_add_f32 v32, v32, v34")
a("v_cmp_u_f32 vcc, v32, v32")
a("s_cbranch_vccz LE1OK")
a.label("LE1R")
retry("LE1", "LE1OK")
a.label("LE1OK")
a("s_waitcnt vmcnt(0)")
stamp(3)
a("v_cvt_pk_bf16_f32 v32, v32, v32")
a("ds_write_b16 v10, v32")
a("s_waitcnt lgkmcnt(0)")
a("s_barrier")
a("s_cmp_eq_u32 s24, 3")
a("s_cbranch_scc1 LSTQ")


def b_issue(kk):
    s = 8 + 12 * (kk % 3)
    a(f"ds_read_b128 {R('v', s)}, v57 offset:{kk*64}")
    for t in range(2):
        a(f"ds_read_b64_tr_b16 {R('v', s+4+4*t, 2)}, v58 offset:{kk*1024+t*WOS}")
        a(f"ds_read_b64_tr_b16 {R('v', s+6+4*t, 2)}, v58 offset:{kk*1024+t*WOS+512}")


for kk in range(3):
    b_issue(kk)
for kk in range(8):
    a(f"s_waitcnt lgkmcnt({5*(min(8, kk+3)-kk-1)})")
    s = 8 + 12 * (kk % 3)
    for t in range(2):
        acc = R("v", 48 + 4 * t)
        a(f"v_mfma_f32_16x16x32_bf16 {acc}, {R('v', s)}, {R('v', s+4+4*t)}, {'0' if kk == 0 else acc}")
    if kk + 3 < 8:
        b_issue(kk + 3)
a("s_mul_i32 s44, s46, 2304")
a("s_mul_i32 s45, s47, 384")
a("s_add_u32 s44, s44, s45")
a("s_lshl_b32 s45, s24, 7")
a("s_add_u32 s44, s44, s45")
a("s_add_u32 s44, s44, s39")
a(f"s_add_u32 s44, s44, {X2}")
a("s_mov_b32 s48, 0xffff0000")
a("s_mov_b32 s49, 0xffff0000")
a("v_lshlrev_b32 v8, 2, v1")
a("v_cndmask_b32 v48, v48, v52, s[48:49]")
a("s_mov_b32 exec_hi, 0")
a("buffer_store_dword v48, v8, s[12:15], s44 offen sc1")
a("s_mov_b64 exec, -1")
stamp(4)
a("s_branch LSTQ")
a.label("LSTC")
if OPT["wlate"]:
    a("s_cmp_eq_u32 s31, 0")
    a("s_cbranch_scc0 LSTC0")
    a("s_load_dwordx2 s[32:33], s[0:1], 48")
    a("s_load_dwordx2 s[44:45], s[0:1], 56")
    a("s_load_dwordx2 s[48:49], s[0:1], 64")
    a("v_lshrrev_b32 v4, 2, v1")
    a("v_and_b32 v5, 3, v1")
    a("v_mul_u32_u24 v60, 9216, v4")
    a("v_lshl_add_u32 v60, v5, 4, v60")
    a(f"v_mul_u32_u24 v61, {TS}, v5")
    a("v_and_b32 v5, 3, v4")
    a("v_lshl_add_u32 v61, v5, 5, v61")
    a("v_bfe_u32 v5, v4, 2, 1")
    a("v_lshl_add_u32 v61, v5, 9, v61")
    a("v_lshrrev_b32 v5, 3, v4")
    a("v_lshl_add_u32 v61, v5, 7, v61")
    for k, reg in ((1, 62), (0, 61)):
        a("s_mul_i32 s52, s24, 9")
        a(f"s_add_u32 s52, s52, {k}")
        a("s_lshr_b32 s53, s52, 1")
        a("s_lshl_b32 s53, s53, 10")
        a("s_and_b32 s52, s52, 1")
        a("s_lshl_b32 s52, s52, 8")
        a("s_add_u32 s52, s52, s53")
        a(f"v_add_u32 v{reg}, s52, v61")
    a("s_mul_i32 s52, s24, 9216")
    a(f"s_add_u32 s53, s52, {WD}")
    a("v_add_u32 v63, s53, v3")
    a("s_mul_i32 s53, s28, 18")
    a("s_add_u32 s53, s53, s27")
    a(f"s_mul_i32 s54, s53, {32*1152}")
    a("s_add_u32 s54, s54, s52")
    a("s_lshl_b32 s53, s53, 6")
    a(f"s_mul_i32 s52, s24, {144*9216}")
    a("s_add_u32 s52, s52, s53")
    for d, size in ((32, 576 * 9216), (44, 576 * 9216), (48, 4608 * 1152)):
        a(f"s_mov_b32 s{d+2}, {size}")
        a(f"s_mov_b32 s{d+3}, 0x20000")
    a("s_waitcnt lgkmcnt(0)")
    for d in (32, 44, 48):
        a(f"s_and_b32 s{d+1}, s{d+1}, 0xffff")
    items = []
    if OPT["wlate"] & 1:
        for i in range(9):
            items += [("g", i), ("u", i)]
    if OPT["wlate"] & 2:
        items += [("d", i) for i in range(9)]
    W = 13

    def wl(n):
        kind, i = items[n]
        r = R("v", 8 + 4 * (n % W))
        if kind == "d":
            a(f"buffer_load_dwordx4 {r}, v3, s[48:51], s54 offen{WPOL}")
            a("s_add_u32 s54, s54, 1024")
        else:
            a(f"buffer_load_dwordx4 {r}, v60, {'s[32:35]' if kind == 'g' else 's[44:47]'}, s52 offen{WPOL}")
            if kind == "u":
                a(f"s_add_u32 s52, s52, {16*9216}")
    for n in range(min(W, len(items))):
        wl(n)
    for n in range(len(items)):
        a(f"s_waitcnt vmcnt({min(W, len(items) - n) - 1})")
        kind, i = items[n]
        r = R("v", 8 + 4 * (n % W))
        if kind == "d":
            a(f"ds_write_b128 v63, {r} offset:{i*1024}")
        else:
            a(f"ds_write_b128 v{62 if i & 1 else 61}, {r} offset:{(i>>1)*1024 + (16 if kind == 'u' else 0)}")
        if n + W < len(items):
            a("s_waitcnt lgkmcnt(0)")
            wl(n + W)
    a.label("LSTC0")
a(f"s_mov_b32 s44, {XB}")
a(f"s_mul_i32 s45, s24, {TS}")
lng_addr()
a("v_lshrrev_b32 v5, 4, v1")
a("v_lshlrev_b32 v4, 3, v5")
a("v_bfe_u32 v6, v1, 2, 2")
a("v_add_u32 v4, v4, v6")
a("v_mul_u32_u24 v4, 1152, v4")
a("v_and_b32 v6, 3, v1")
a("v_lshl_add_u32 v4, v6, 3, v4")
a("s_lshl_b32 s44, s24, 7")
a(f"s_add_u32 s44, s44, {WD}")
a("v_add_u32 v4, s44, v4")
a("v_lshlrev_b32 v5, 4, v5")
a(f"v_add_u32 v5, {HB}, v5")
a("s_lshl_b32 s44, s24, 4")
a(f"s_add_u32 s44, s44, {HB}")
a("v_lshlrev_b32 v6, 1, v1")
a("v_add_u32 v6, s44, v6")
a("v_lshrrev_b32 v7, 5, v1")
a("v_mul_u32_u24 v7, 18432, v7")
a("v_and_b32 v59, 31, v1")
a("v_lshl_add_u32 v7, v59, 2, v7")
a("s_mul_i32 s50, s28, 18")
a("s_add_u32 s50, s50, s27")
a("s_lshl_b32 s50, s50, 7")
a("s_mul_i32 s45, s24, 36864")
a("s_add_u32 s50, s50, s45")
a("s_add_u32 s50, s50, s39")
a(f"s_add_u32 s50, s50, {X3}")
a("s_mov_b32 s52, 0xffff0000")
a("s_mov_b32 s53, 0xffff0000")
a("s_mov_b32 s40, 0")
a("s_mov_b32 s41, -1")
a("s_cmp_eq_u32 s24, 3")
if OPT["e2g"]:
    a("s_cbranch_scc0 LC_G")
    a("v_and_b32 v8, 15, v1")
    a("v_mul_u32_u24 v8, 2304, v8")
    a("v_lshrrev_b32 v9, 4, v1")
    a("v_mul_u32_u24 v9, 384, v9")
    a("v_add_u32 v8, v8, v9")
    a(f"s_add_u32 s44, s39, {X2}")
    a("v_mov_b32 v11, 0")
    a.label("LE2W")
    a("buffer_load_dword v10, v8, s[12:15], s44 offen offset:256 sc1")
    if OPT["e2g"] == 2:
        a("s_mov_b32 exec_hi, 0")
        a("buffer_load_dword v11, v8, s[12:15], s44 offen offset:1792 sc1")
        a("s_mov_b64 exec, -1")
    a("s_waitcnt vmcnt(0)")
    a("v_cmp_u_f32 vcc, v10, v11")
    a("s_cbranch_vccz LE2WOK")
    retry("LE2W", "LE2WOK")
    a.label("LE2WOK")
    a("s_barrier")
    a("s_branch LC_BAR")
    a.label("LC_G")
else:
    a("s_cbranch_scc1 LC_BAR")
a("v_lshrrev_b32 v56, 4, v1")
a("v_mul_u32_u24 v56, 2304, v56")
a("v_and_b32 v8, 15, v1")
a("v_lshl_add_u32 v56, v8, 4, v56")
a("s_mul_i32 s48, s24, 768")
a("s_add_u32 s44, s48, s39")
a(f"s_add_u32 s44, s44, {X2}")
for g in range(1, 4):
    a(f"s_add_u32 s{44+g}, s44, {g*9216}")
a("v_bfe_u32 v9, v1, 4, 1")
a("v_lshlrev_b32 v9, 1, v9")
a("v_lshrrev_b32 v10, 5, v1")
a("v_add_u32 v9, v9, v10")
a("v_lshl_add_u32 v9, v8, 2, v9")
a("v_lshrrev_b32 v10, 5, v9")
a("v_lshlrev_b32 v10, 6, v10")
a("v_lshl_add_u32 v10, v9, 1, v10")
a(f"s_add_u32 s49, s48, {LB0+X4}")
a("s_lshr_b32 s48, s48, 1")
a("v_lshlrev_b32 v9, 1, v9")
a("v_add_u32 v9, s48, v9")
a(f"v_add_u32 v59, {XB}, v9")
a("s_cmp_eq_u32 s31, 0")
a("s_cbranch_scc0 LC_X2")
a("s_load_dwordx2 s[32:33], s[0:1], 0")
a("s_mov_b32 s34, 1152")
a("s_mov_b32 s35, 0x20000")
a("s_waitcnt lgkmcnt(0)")
a("s_and_b32 s33, s33, 0xffff")
for c in range(3):
    a(f"buffer_load_ushort v{60+c}, v9, s[32:35], 0 offen offset:{c*128}")
a("s_branch LC_X3")
a.label("LC_X2")
for c in range(3):
    a(f"buffer_load_ushort v{60+c}, v10, s[12:15], s49 offen offset:{c*256} sc1")
a.label("LC_X3")
a("s_waitcnt vmcnt(0)")
for c in range(3):
    a(f"v_lshlrev_b32 v{60+c}, 16, v{60+c}")
if OPT["e2g"]:
    a("s_barrier")
a.label("LE2")
for c in range(3):
    for g in range(4):
        a(f"buffer_load_dwordx4 {R('v', 8+16*c+4*g)}, v56, s[12:15], s{44+g} offen offset:{c*256} sc1")
for c in range(3):
    b = 8 + 16 * c
    a(f"s_waitcnt vmcnt({8-4*c})")
    for r in range(4):
        a(f"v_add_f32 v{b+r}, v{b+r}, v{b+4+r}")
        a(f"v_add_f32 v{b+8+r}, v{b+8+r}, v{b+12+r}")
    for r in range(4):
        a(f"v_add_f32 v{b+r}, v{b+r}, v{b+8+r}")
    if OPT["e1f"] and c < 2:
        a(f"v_cmp_u_f32 vcc, v{b}, v{b+3}")
        a("s_cbranch_vccnz LE2R")
    swapreduce(b)
a("v_add_f32 v9, v8, v24")
a("v_cmp_u_f32 vcc, v9, v40")
a("s_cbranch_vccz LE2OK")
a.label("LE2R")
retry("LE2", "LE2OK")
a.label("LE2OK")
a("s_waitcnt vmcnt(0)")
stamp(5)
for c in range(3):
    bf16r(8 + 16 * c, 8 + 16 * c)
for c in range(3):
    a(f"v_add_f32 v{60+c}, v{60+c}, v{8+16*c}")
for c in range(3):
    a(f"v_cvt_pk_bf16_f32 v{60+c}, v{60+c}, v{60+c}")
for c in range(3):
    a(f"ds_write_b16 v59, v{60+c} offset:{c*128}")
a.label("LC_BAR")
a("s_waitcnt lgkmcnt(0)")
a("s_barrier")
a("s_call_b64 s[36:37], LLNG")


def downB(i):
    for t in range(4):
        s = 8 + 16 * (i & 1) + 4 * t
        a(f"ds_read_b64_tr_b16 {R('v', s, 2)}, v4 offset:{i*512+t*32}")
        a(f"ds_read_b64_tr_b16 {R('v', s+2, 2)}, v4 offset:{i*512+t*32+4*1152}")


a(f"v_mov_b32_dpp v41, v60 row_shl:8{DPPM} bound_ctrl:1")
a("v_cvt_pk_bf16_f32 v41, v60, v41")
a("v_lshlrev_b32 v42, 16, v41")
a("v_and_b32 v41, 0xffff0000, v41")
a("v_max_f32 v42, 0, v42")
a("v_mul_f32 v41, v42, v41")
a("v_cvt_pk_bf16_f32 v41, v41, v41")
a("s_mov_b64 exec, 0xff")
a("ds_write_b16 v6, v41")
a("s_mov_b64 exec, -1")
downB(0)
a("s_waitcnt lgkmcnt(8)")
a("s_barrier")
a("ds_read_b128 v[60:63], v5")
a("s_waitcnt lgkmcnt(5)")
downB(1)


def downG(i, wait):
    a(f"s_waitcnt lgkmcnt({wait})")
    for t in range(4):
        s = 8 + 16 * (i & 1) + 4 * t
        a(f"v_mfma_f32_16x16x32_bf16 {R('v', 40+4*t)}, v[60:63], {R('v', s)}, 0")
    a("v_cndmask_b32 v40, v40, v44, s[52:53]")
    a("v_cndmask_b32 v48, v48, v52, s[52:53]")
    a("v_cndmask_b32 v40, v40, v48, s[40:41]")
    a("buffer_store_dword v40, v7, s[12:15], s50 offen sc1")
    a(f"s_add_u32 s50, s50, {4*36864}")


downG(0, 8)
a("s_cmp_eq_u32 s24, 0")
a("s_cbranch_scc1 LDOWN3")
downG(1, 0)
a("s_branch LSTD")
a.label("LDOWN3")
a("s_waitcnt lgkmcnt(0)")
downB(2)
downG(1, 8)
downG(2, 0)
a.label("LSTD")
stamp(6)
a("s_lshl_b32 s50, s27, 3")
a("s_add_u32 s50, s50, s28")
a("s_cmp_lt_u32 s50, 18")
a("s_cbranch_scc0 LSTQ")
a("s_mul_i32 s44, s50, 18432")
a("s_mul_i32 s45, s24, 4608")
a("s_add_u32 s44, s44, s45")
a("s_add_u32 s44, s44, s39")
a(f"s_add_u32 s44, s44, {X3}")
a("s_add_u32 s45, s44, 4096")
a("v_bfe_u32 v58, v1, 4, 1")
a("v_lshlrev_b32 v58, 1, v58")
a("v_lshrrev_b32 v59, 5, v1")
a("v_add_u32 v58, v58, v59")
a("v_and_b32 v59, 7, v1")
a("v_lshl_add_u32 v58, v59, 2, v58")
a("v_lshlrev_b32 v58, 2, v58")
a("s_lshl_b32 s46, s24, 7")
a(f"s_add_u32 s46, s46, {FB}")
a("v_add_u32 v58, s46, v58")
for r in range(4):
    a(f"v_mov_b32 v{24+r}, 0")
a.label("LE3")
for i in range(4):
    a(f"buffer_load_dwordx4 {R('v', 8+4*i)}, v3, s[12:15], s44 offen offset:{i*1024} sc1")
a("s_mov_b32 exec_hi, 0")
a("buffer_load_dwordx4 v[24:27], v3, s[12:15], s45 offen sc1")
a("s_mov_b64 exec, -1")
a("s_waitcnt vmcnt(0)")
for r in range(4):
    a(f"v_add_f32 v{8+r}, v{8+r}, v{12+r}")
    a(f"v_add_f32 v{16+r}, v{16+r}, v{20+r}")
for r in range(4):
    a(f"v_add_f32 v{8+r}, v{8+r}, v{24+r}")
for r in range(4):
    a(f"v_add_f32 v{8+r}, v{8+r}, v{16+r}")
swapreduce(8)
a(f"v_add_f32_dpp v8, v8, v8 row_ror:8{DPPM}")
a("v_cmp_u_f32 vcc, v8, v8")
a("s_cbranch_vccz LE3OK")
retry("LE3", "LE3OK")
a.label("LE3OK")
stamp(7)
a("ds_write_b32 v58, v8")
a("v_lshlrev_b32 v8, 2, v1")
a(f"v_add_u32 v9, {FB}, v8")
a("s_lshl_b32 s45, s50, 6")
a(f"s_add_u32 s46, s45, {XB}")
a("v_lshlrev_b32 v8, 1, v1")
a("v_add_u32 v10, s46, v8")
a("s_waitcnt lgkmcnt(0)")
a("s_barrier")
a("s_cmp_eq_u32 s24, 0")
a("s_cbranch_scc0 LSTQ")
a("s_mov_b32 exec_hi, 0")
for w in range(4):
    a(f"ds_read_b32 v{12+w}, v9 offset:{128*w}")
a("ds_read_u16 v16, v10")
a("s_waitcnt lgkmcnt(0)")
a("v_lshlrev_b32 v16, 16, v16")
a("v_add_f32 v12, v12, v13")
a("v_add_f32 v14, v14, v15")
a("v_add_f32 v12, v12, v14")
bf16r(12, 12)
a("v_add_f32 v12, v12, v16")
a(f"v_mov_b32_dpp v13, v12 quad_perm:[1,1,3,3]{DPPM}")
a("v_cvt_pk_bf16_f32 v12, v12, v13")
a("s_mov_b32 exec_lo, 0x55555555")
a("s_cmp_eq_u32 s31, 0")
a("s_cbranch_scc0 LFINAL")
a("s_lshl_b32 s45, s50, 7")
a("s_add_u32 s45, s45, s39")
a(f"s_add_u32 s45, s45, {X4}")
a("buffer_store_dword v12, v8, s[12:15], s45 offen sc1")
a("s_mov_b64 exec, -1")
a("s_branch LSTQ")
a.label("LFINAL")
a("buffer_store_dword v12, v8, s[16:19], s45 offen")
a("s_mov_b64 exec, 1")
a("s_cmp_eq_u32 s50, 0")
a("s_cbranch_scc0 LNOEP")
a("v_mov_b32 v9, s29")
a("buffer_store_dword v9, v8, s[12:15], 0 offen sc1")
a.label("LNOEP")
a("s_mov_b64 exec, -1")
a.label("LSTQ")
stamp(8)
a("s_cmp_eq_u32 s31, 0")
a("s_cbranch_scc0 LDONE")
if OPT["npf"]:
    a("s_cmp_lt_u32 s27, 18")
    a("s_cbranch_scc1 LQ5")
    a("v_lshlrev_b32 v34, 7, v1")
    a("s_lshl_b32 s44, s26, 2")
    a("s_add_u32 s44, s44, s24")
    a("s_lshl_b32 s44, s44, 13")
    for n in range(OPT["npf"]):
        a(f"s_add_u32 s45, s44, {(4+n)*UNIT_STEP}")
        a(f"buffer_load_dword v35, v34, s[4:7], s45 offen{PFK}")
        a(f"buffer_load_dword v36, v34, s[8:11], s45 offen{PFV}")
a("s_cmp_ge_u32 s27, 24")
a("s_cbranch_scc0 LQ5")
qprep(X5)
a("s_waitcnt lgkmcnt(0)")
a(f"s_add_u32 s44, s39, {X4}")
a("v_lshrrev_b32 v16, 2, v1")
a("v_lshlrev_b32 v16, 7, v16")
a("v_and_b32 v17, 3, v1")
a("v_lshl_add_u32 v16, v17, 4, v16")
for r in range(4):
    a(f"v_mov_b32 v{12+r}, 0")
a.label("LE4")
a("buffer_load_dwordx4 v[8:11], v16, s[12:15], s44 offen sc1")
a("s_mov_b64 exec, 0xff")
a("buffer_load_dwordx4 v[12:15], v16, s[12:15], s44 offen offset:2048 sc1")
a("s_mov_b64 exec, -1")
a("s_waitcnt vmcnt(0)")
a("v_max3_u32 v17, v8, v9, v10")
a("v_max3_u32 v18, v11, v12, v13")
a("v_max3_u32 v17, v17, v14, v15")
a("v_max_u32 v17, v17, v18")
a("v_cmp_eq_u32 vcc, -1, v17")
a("s_cbranch_vccz LE4OK")
retry("LE4", "LE4OK")
a.label("LE4OK")
stamp(9)
a("s_call_b64 s[36:37], LQSTAGE")
a.label("LQ5")
if STAMPS:
    a("s_memrealtime s[58:59]")
    a("s_waitcnt lgkmcnt(0)")
    a("s_mov_b32 s74, s58")
a("s_mov_b32 s31, 1")
a(f"s_add_u32 s39, s39, {LSTRIDE}")
loopconsts()
a(f"s_mov_b32 s96, {NP2}")
a("s_mov_b32 s91, 0")
a("s_mov_b32 s95, s97")
a("v_lshlrev_b32 v40, 2, v0")
a(f"v_add_u32 v40, {LSV}, v40")
a(f"ds_read_b32 v{VL}, v40")
qpoll_addr(X5)
a("v_lshlrev_b32 v33, 2, v1")
a(f"v_add_u32 v33, {SA}, v33")
a("s_waitcnt lgkmcnt(0)")
if OPT["q1w"]:
    a("s_cmp_eq_u32 s24, 0")
    a("s_cbranch_scc1 LQPOLL")
    a("s_barrier")
    for i in range(4):
        a(f"ds_read_b32 v{24+2*i}, v33 offset:{256*i}")
    a("s_waitcnt lgkmcnt(0)")
    a("s_branch LQREADY2")
else:
    a("s_branch LQPOLL")

a.label("LQSTAGE")
a("ds_write_b128 v2, v[8:11]")
a("s_mov_b64 exec, 0xff")
a("ds_write_b128 v2, v[12:15] offset:1024")
a("s_mov_b64 exec, -1")
a("s_mov_b64 s[52:53], s[36:37]")
a("s_waitcnt lgkmcnt(1)")
a("s_call_b64 s[36:37], LLNG")
a("v_lshlrev_b32 v8, 2, v1")
a("v_mov_b32 v11, s29")
a(f"v_mov_b32_dpp v9, v60 quad_perm:[1,1,3,3]{DPPM}")
a("v_cvt_pk_bf16_f32 v10, v60, v9")
a("s_mov_b64 exec, 0x5555")
a("buffer_store_dwordx2 v[10:11], v8, s[12:15], s54 offen sc1")
a("s_mov_b64 exec, -1")
a("s_setpc_b64 s[52:53]")

a.label("LLNG")
lngemv()
a("s_setpc_b64 s[36:37]")

a.vq = sum((qtags(f"R{q}") for q in range(RN)), [])
for s in range(RN):
    lp, lg, ln, lb, lx = (a.newlabel(x) for x in ("pool", "go", "noapp", "bonly", "next"))
    a.label(f"LRING{s}")
    a(f"s_mov_b32 s3, {s}")
    if OPT["hv"]:
        a(f"s_waitcnt vmcnt({OPT['hv']})")
    ticket_ready()
    if not OPT["lfirst"]:
        a("s_cmp_ge_u32 s90, s55")
        a("s_cbranch_scc1 LRINGX")
        a("s_cmp_ge_u32 s101, s37")
        a("s_cbranch_scc1 LRINGX")
    a("s_cmp_lt_u32 s91, s92")
    a(f"s_cbranch_scc0 {lp}")
    if OPT["lrev"]:
        a("s_sub_u32 s92, s92, 1")
        a(f"v_readlane_b32 s32, v{VL}, s92")
    else:
        a(f"v_readlane_b32 s32, v{VL}, s91")
        a("s_add_u32 s91, s91, 1")
    a(f"s_branch {lg}")
    a.label(lp)
    if OPT["lfirst"]:
        a("s_cmp_ge_u32 s90, s55")
        a("s_cbranch_scc1 LRINGX")
        a("s_cmp_ge_u32 s101, s37")
        a("s_cbranch_scc1 LRINGX")
    draw(s, f"LDRAINE{s}")
    a.label(lg)
    setaddr(32, 32)
    a("s_add_u32 s101, s101, 1")
    a(f"s_bitcmp1_b32 s95, {s}")
    a(f"s_cbranch_scc0 {lb}")
    unit("v", RING[s], f"R{s}", f"R{s}n")
    logt()
    q1 = [(t[0].rstrip("n"), t[1], t[2]) for t in a.vq]
    a(f"s_branch LRING{(s+1)%RN}")
    a.label(lb)
    a(f"s_bitset1_b32 s95, {s}")
    for t in range(8):
        ldK("v", RING[s], t, "x")
    for t in range(8):
        ldV("v", RING[s], t, "x")
    a(f"s_branch LRING{(s+1)%RN}")
    a.vq = q1
a.label("LRINGX")
for k in range(1, NB + 1):
    a(f"s_cmp_eq_u32 s36, {k}")
    a(f"s_cbranch_scc1 LRET{k}")
a(f"s_branch LRET{NB+1}")

for s in range(RN):
    a.label(f"LDRAINE{s}")
    a("v_mov_b32 v48, 0")
    a("buffer_load_dword v49, v48, s[20:23], 0 offen sc1")
    a("s_mov_b32 s93, 0")
    a("s_mov_b64 s[98:99], 0")
    a("s_atomic_add_x2 s[98:99], s[88:89], 16 glc")
    a("s_bcnt1_i32_b32 s44, s97")
    a("s_sub_u32 s92, s94, s44")
    a(f"s_branch LDRAIN{s}")
for s in range(RN):
    a.label(f"LDRAIN{s}")
    lsk = a.newlabel("dsk")
    a(f"s_bitcmp1_b32 s95, {s}")
    a(f"s_cbranch_scc0 {lsk}")
    unit_drain(RING[s])
    a.label(lsk)
    a("s_add_u32 s93, s93, 1")
    a(f"s_cmp_eq_u32 s93, {RN}")
    a("s_cbranch_scc1 LPASSEND")
a("s_branch LDRAIN0")

a.label("LDONE")
if OPT["padto"]:
    if OPT["padmin"]:
        a("s_mov_b32 s100, 0")
        a("s_atomic_add s100, s[84:85], 64 glc")
        a("s_waitcnt lgkmcnt(0)")
        a("s_not_b32 s100, s100")
    a.label("LPAD")
    a("s_memrealtime s[58:59]")
    a("s_waitcnt lgkmcnt(0)")
    a("s_sub_u32 s58, s58, s100")
    a(f"s_cmp_lt_u32 s58, {OPT['padto']*100}")
    a("s_cbranch_scc1 LPAD")
if STAMPS:
    a("s_memrealtime s[58:59]")
    a("s_waitcnt lgkmcnt(0)")
    a("s_mov_b32 s87, s58")
    a("s_lshl_b32 s44, s2, 2")
    a("s_add_u32 s44, s44, s24")
    a("s_lshl_b32 s44, s44, 7")
    a(f"s_add_u32 s44, s44, {STAMP_OFF}")
    a("v_mov_b32 v8, 0")
    a("s_mov_b64 exec, 1")
    for i in range(24):
        a(f"v_mov_b32 v9, s{64+i}")
        a(f"buffer_store_dword v9, v8, s[12:15], s44 offen offset:{4*i}")
    a("v_mov_b32 v9, s100")
    a("buffer_store_dword v9, v8, s[12:15], s44 offen offset:96")
    for i, r in enumerate((57, 92, 57, 57, 57, 94)):
        a(f"v_mov_b32 v9, s{r}")
        a(f"buffer_store_dword v9, v8, s[12:15], s44 offen offset:{100+4*i}")
    if OPT["dbgout"]:
        a("s_or_b32 s44, s2, s24")
        a("s_cmp_eq_u32 s44, 0")
        a("s_cbranch_scc0 LEND")
        for i, r in enumerate((64, 65, 76, 77, 87)):
            a(f"s_sub_u32 s44, s{r}, s100")
            a("v_mov_b32 v9, s44")
            a(f"buffer_store_dword v9, v8, s[20:23], 0 offen offset:{4+4*i}")
        a("s_mov_b64 exec, 0xffff")
        a("v_lshlrev_b32 v10, 8, v1")
        a(f"s_mov_b32 s44, {CTR}")
        a("buffer_load_dwordx2 v[12:13], v10, s[12:15], s44 offen offset:16 sc1")
        a("s_waitcnt vmcnt(0)")
        a("v_cmp_gt_i32 s[46:47], v12, 0")
        a("v_cmp_gt_i32 s[48:49], v13, 0")
        a("s_mov_b64 exec, 1")
        a("v_mov_b32 v9, s46")
        a("buffer_store_dword v9, v8, s[20:23], 0 offen offset:24")
        a("v_mov_b32 v9, s48")
        a("buffer_store_dword v9, v8, s[20:23], 0 offen offset:28")
        for i, l in enumerate((0, 5, 10, 15)):
            for j in range(2):
                a(f"v_readlane_b32 s44, v{12+j}, {l}")
                a("s_add_u32 s44, s44, 100000")
                a("v_mov_b32 v9, s44")
                a(f"buffer_store_dword v9, v8, s[20:23], 0 offen offset:{32+8*i+4*j}")
    a("s_waitcnt vmcnt(0)")
a.label("LEND")
a("s_endpgm")

hdr = open("cdna_kernels/" + NAME + ".s.ref").read().split("\n")
top = [l for l in hdr if l.startswith(";") and "@launch" not in l]
out = "\n".join(top) + "\n"
out += f"; @launch grid=(256,1,1) block=(256,1,1) lds={LDS_SIZE}\n"
out += f""".amdgcn_target "amdgcn-amd-amdhsa--gfx950"
.text
.globl {NAME}_kernel
.p2align 8
.type {NAME}_kernel,@function
"""
out += a.text()
out += f""".section .rodata,"a"
.p2align 6
.amdhsa_kernel {NAME}_kernel
  .amdhsa_next_free_vgpr 512
  .amdhsa_next_free_sgpr 102
  .amdhsa_accum_offset 256
  .amdhsa_group_segment_fixed_size 0
  .amdhsa_kernarg_size 96
  .amdhsa_user_sgpr_count 2
  .amdhsa_user_sgpr_kernarg_segment_ptr 1
  .amdhsa_system_sgpr_workgroup_id_x 1
.end_amdhsa_kernel
"""
import re
if OPT["xl"]:
    out = re.sub(r"(buffer_load\S+ .*) sc1$", r"\1 sc0 sc1", out, flags=re.M)
if OPT["xs"]:
    out = re.sub(r"(buffer_store\S+ .*) sc1$", r"\1 sc0 sc1", out, flags=re.M)
open(sys.argv[1], "w").write(out)
```

```python
import sys, struct, math
from asmlib import Asm

NAME = "interleave_layers__gqa_block_cached__glu_gated_reglu__decode"
OPT = dict(stamps=0, p2rev=0, kvpol="nt", wpol="nt", wskip=0, vring="def", kring="nt", tfw=3, psleep=1, npf=0, thrp=80, pr=1110, eg=0, gv=8, xl=0, xs=0, padto=0, enc=0, wlate=2, e2g=1, q1w=1, lfirst=1, lrev=0, rn=1, rbal=1, hsw=0, sline=1, tk2=0, klate=1, wcl=0, hv=0, lv=0, alt=3, e1f=1, mixx=1, rot=0, padmin=0, cn=1, vote=1, avpol="def", forcecls=-1, dbgout=0, pfk="nt", pfv="def")
for arg in sys.argv[2:]:
    k, v = arg.split("=")
    OPT[k] = int(v) if v.lstrip("-").isdigit() else v
STAMPS = OPT["stamps"]
TKI = 2 if OPT["tk2"] else 1
KVPOL = "" if OPT["kvpol"] == "def" else " " + OPT["kvpol"]
WPOL = "" if OPT["wpol"] == "def" else " " + OPT["wpol"]
PFK = "" if OPT["pfk"] == "def" else " " + OPT["pfk"]
PFV = "" if OPT["pfv"] == "def" else " " + OPT["pfv"]


def f32(x):
    return "0x%08x" % struct.unpack("<I", struct.pack("<f", x))[0]


X0 = 0x1000
X5 = 0x9000
CTR = 0x11000
LB0 = 0x20000
LSTRIDE = 0xC0000
X1 = 0x0
X1S = 1280
X2 = 0x50000
X3 = 0x59000
X4 = 0xAA000
STAMP_OFF = 0x200000
WS_SIZE = 0x400000
RN = OPT["rn"]
NR = 14 - 2 * RN
NB = NR + 1
PB = 256 + 64 * NB
NP1 = 2048 - PB
TF = NP1 - OPT["tfw"] * 64
NP2 = 128 + TF // 2
THR0 = 32
THRS = (NP2 * OPT["thrp"] // 100 - THR0) // NB
WGU = 0
TS = 18432
WD = 73728
FB = 110592
HB = 111104
WO = 0
WOS = 8192
WQ = 49152
SA = 122880
CB1 = SA
CS1 = SA + 4096
XB = SA
OB = 127488
LSV = 128000
ONES = 129088
KL = 130304
LDS_SIZE = 163072

UNIT_STEP = 524288
DPPM = " row_mask:0xf bank_mask:0xf"
a = Asm()
stamp_n = [0]


def stamp(i):
    if not STAMPS:
        return
    a("s_memrealtime s[58:59]")
    a("s_waitcnt lgkmcnt(0)")
    lab = a.newlabel("st")
    a(f"s_mov_b32 s{64+12+i}, s58")
    a("s_cmp_eq_u32 s31, 0")
    a(f"s_cbranch_scc0 {lab}")
    a(f"s_mov_b32 s{64+i}, s58")
    a.label(lab)


def sstamp(reg):
    if True:
        return
    a("s_memrealtime s[58:59]")
    a("s_waitcnt lgkmcnt(0)")
    a(f"s_mov_b32 s{reg}, s58")


def logt():
    if STAMPS != 2:
        return
    a("s_memrealtime s[58:59]")
    a("s_waitcnt lgkmcnt(0)")
    a("s_mov_b32 m0, s93")
    a("s_add_u32 s93, s93, 1")
    a("s_min_u32 s93, s93, 63")
    a("v_writelane_b32 v51, s58, m0")


def R(kind, base, n=4):
    return f"{kind}[{base}:{base+n-1}]"


def srd(d, lo, hi, size):
    a(f"s_mov_b32 s{d}, s{lo}")
    a(f"s_and_b32 s{d+1}, s{hi}, 0xffff")
    a(f"s_mov_b32 s{d+2}, {size}")
    a(f"s_mov_b32 s{d+3}, 0x20000")


def srd_role(d, lo, hi, size):
    a(f"s_cselect_b32 s{d+2}, {size}, 0")
    a(f"s_mov_b32 s{d}, s{lo}")
    a(f"s_and_b32 s{d+1}, s{hi}, 0xffff")
    a(f"s_mov_b32 s{d+3}, 0x20000")


def ld(kind, reg, t, src, half, pol, tag):
    if OPT["lv"] and (t & 1) == 0:
        a(f"s_waitcnt vmcnt({OPT['lv']})")
    srd_, vo = {"K": ("s[4:7]", "v2"), "K2": ("s[60:63]", "v51"), "V": ("s[8:11]", "v3")}[src]
    a(f"buffer_load_dwordx4 {R(kind, reg+4*t)}, {vo}, {srd_}, s{32+2*half+(t>>2)} offen offset:{(t&3)*1024}{pol}", tag=tag)


VPOL = "" if OPT["vring"] == "def" else " nt"


def ldK(kind, base, t, tag):
    ld(kind, base, t, "K", 0, " nt", (tag, "K", t))


def ldV(kind, base, t, tag):
    ld(kind, base + 32, t, "V", 1, ("" if OPT["avpol"] == "def" else " nt") if kind == "a" else VPOL, (tag, "V", t))


def adv():
    for r in range(32, 36):
        a(f"s_add_u32 s{r}, s{r}, {UNIT_STEP}")


def setaddr(k, v):
    if v is not None:
        if OPT["hsw"]:
            a(f"s_or_b32 s34, s{v}, vcc_hi")
        elif v != 34:
            a(f"s_mov_b32 s34, s{v}")
        a("s_xor_b32 s35, s34, 4096")
    if k is not None:
        if OPT["hsw"]:
            a(f"s_or_b32 s32, s{k}, vcc_hi")
        elif k != 32:
            a(f"s_mov_b32 s32, s{k}")
        a("s_xor_b32 s33, s32, 4096")


def hswinit():
    if OPT["hsw"]:
        a("s_and_b32 vcc_hi, s24, 1")
        a("s_lshl_b32 vcc_hi, vcc_hi, 12")


def burst(kind, base, tag):
    for t in range(8):
        ldK(kind, base, t, tag)
    for t in range(8):
        ldV(kind, base, t, tag)
    adv()
    logt()


def waitq(tag, floor=0):
    if tag in a.vq:
        a.wait_vm(tag, floor)


def allreduce(op, v, t, first=0):
    steps = ["quad_perm:[1,0,3,2]", "quad_perm:[2,3,0,1]", "row_half_mirror", "row_mirror"]
    for s in steps[first:]:
        a(f"{op}_dpp v{v}, v{v}, v{v} {s}{DPPM}")
    rows(op, v, t)


def rows(op, v, t):
    a(f"v_mov_b32 v{t}, v{v}")
    a(f"v_permlane16_swap_b32 v{v}, v{t}")
    a(f"{op} v{v}, v{v}, v{t}")
    a(f"v_mov_b32 v{t}, v{v}")
    a(f"v_permlane32_swap_b32 v{v}, v{t}")
    a(f"{op} v{v}, v{v}, v{t}")


QE, QO, OA, MS, LS, NMC = 8, 12, 16, 20, 21, 22
DS_ = [24, 28, 32, 36]
TT = 40
TMP = 44


def unit2(K, V, kt=None, vt=None, rk=None, rv=None, hooks=None, tt=TT):
    if K is not None:
        if hooks:
            hooks[0]()
        for u in range(4):
            if kt:
                waitq(kt(2 * u + 1))
            d = R("v", DS_[u])
            a(f"v_mfma_f32_16x16x32_bf16 {d}, {R(K[0], K[1]+8*u)}, {R('v', QE)}, 0")
            a(f"v_mfma_f32_16x16x32_bf16 {d}, {R(K[0], K[1]+8*u+4)}, {R('v', QO)}, {d}")
            if rk:
                rk(2 * u)
                rk(2 * u + 1)
        order = [(0, 0), (1, 0), (2, 0), (0, 1), (1, 1), (2, 1), (0, 2), (1, 2), (3, 0), (2, 2), (0, 3), (3, 1),
                 (1, 3), (2, 3), (3, 2), None, (3, 3)]
        for o in order:
            if o is None:
                if V is not None:
                    a(f"v_max3_f32 v{TMP}, v{tt}, v{tt+1}, v{MS}")
                continue
            u, c = o
            qp = f"quad_perm:[{c},{c},{c},{c}]"
            if c == 0:
                a(f"v_mov_b32_dpp v{tt+u}, v{DS_[u]} {qp}{DPPM}")
            else:
                a(f"v_add_f32_dpp v{tt+u}, v{DS_[u]+c}, v{tt+u} {qp}{DPPM}")
    if V is None:
        return
    if K is None:
        a(f"v_max3_f32 v{TMP}, v{tt}, v{tt+1}, v{MS}")
    a(f"v_max3_f32 v{TMP}, v{TMP}, v{tt+2}, v{tt+3}")
    a(f"v_max_f32_dpp v{TMP}, v{TMP}, v{TMP} row_half_mirror{DPPM}")
    rows("v_max_f32", TMP, TMP + 1)
    a(f"v_sub_f32 v{TMP+1}, v{MS}, v{TMP}")
    a(f"v_mul_f32 v{TMP+1}, s30, v{TMP+1}")
    a(f"v_exp_f32 v{TMP+1}, v{TMP+1}")
    a(f"v_mov_b32 v{MS}, v{TMP}")
    a(f"v_mul_f32 v{NMC}, s30, v{TMP}")
    for u in range(4):
        a(f"v_fma_f32 v{tt+u}, v{tt+u}, s30, -v{NMC}")
    for u in range(4):
        a(f"v_exp_f32 v{tt+u}, v{tt+u}")
    a(f"v_mul_f32 v{LS}, v{LS}, v{TMP+1}")
    for r in range(4):
        a(f"v_mul_f32 v{OA+r}, v{OA+r}, v{TMP+1}")
    a(f"v_add_f32 v{TMP+2}, v{tt}, v{tt+1}")
    a(f"v_add_f32 v{TMP+3}, v{tt+2}, v{tt+3}")
    for u in range(4):
        a(f"v_cvt_pk_bf16_f32 v{tt+u}, v{tt+u}, v{tt+u}")
    a(f"v_add_f32 v{TMP+2}, v{TMP+2}, v{TMP+3}")
    a(f"v_add_f32 v{LS}, v{LS}, v{TMP+2}")

    def buildB(t):
        b = DS_[t & 3]
        p = tt + (t >> 1)
        for i in range(4):
            own = (i < 2) == ((t & 1) == 0)
            if own:
                a(f"v_and_b32 v{b+i}, v{p}, v{4+i}")
            else:
                sh = "row_shr:4" if (t & 1) == 0 else "row_shl:4"
                a(f"v_and_b32_dpp v{b+i}, v{p}, v{4+i} {sh}{DPPM} bound_ctrl:1")

    buildB(0)
    if hooks:
        hooks[1]()
    for t in range(8):
        if t + 1 < 8:
            buildB(t + 1)
        if vt:
            waitq(vt(t))
        a(f"v_mfma_f32_16x16x32_bf16 {R('v', OA)}, {R(V[0], V[1]+4*t)}, {R('v', DS_[t&3])}, {R('v', OA)}")
        if rv:
            rv(t)


def unit(kind, base, tag, reload_tag=None, hooks=None):
    rk = rv = None
    if reload_tag is not None:
        rk = lambda t: ldK(kind, base, t, reload_tag)
        rv = lambda t: ldV(kind, base, t, reload_tag)
    unit2((kind, base), (kind, base + 32), lambda t: (tag, "K", t), lambda t: (tag, "V", t), rk, rv, hooks)


probe_k = [0]


def probe(kind="V"):
    k = probe_k[0]
    probe_k[0] += 1
    srd_, base = ("s[8:11]", 55) if kind == "V" else ("s[4:7]", 96)
    for c in ((0, 1) if k & 1 else (1, 0)):
        a(f"s_add_u32 s50, s57, {(c ^ 1)*8192 + k*1152}")
        a("s_memtime s[52:53]")
        a("s_waitcnt lgkmcnt(0)")
        a(f"s_buffer_load_dword s51, {srd_}, s50")
        a("s_waitcnt lgkmcnt(0)")
        a("s_memtime s[50:51]")
        a("s_waitcnt lgkmcnt(0)")
        a("s_sub_u32 s50, s50, s52")
        a(f"s_min_u32 s{base+c}, s{base+c}, s50")


def qtags(tag):
    return [(tag, "K", t) for t in range(8)] + [(tag, "V", t) for t in range(8)]


RING = [64, 128, 192]


def bf16r(d, s):
    a(f"v_cvt_pk_bf16_f32 v{d}, v{s}, v{s}")
    a(f"v_and_b32 v{d}, 0xffff0000, v{d}")


def afrag_addr(v, base_sgpr=None, base=0):
    a(f"v_lshrrev_b32 v{v}, 4, v1")
    a(f"v_lshlrev_b32 v{v}, 4, v{v}")
    if base:
        a(f"v_add_u32 v{v}, {base}, v{v}")
    if base_sgpr is not None:
        a(f"v_add_u32 v{v}, s{base_sgpr}, v{v}")


def lng_addr():
    a("v_add_u32 v2, s44, v3")
    a("v_mov_b32 v57, s44")
    a(f"v_mov_b32 v58, {ONES}")
    a("s_mov_b32 s46, 0x00020002")
    a("s_mov_b32 s47, 0x00020002")
    a("v_cndmask_b32 v57, v57, v58, s[46:47]")
    a("v_lshrrev_b32 v58, 4, v1")
    a("v_lshl_add_u32 v57, v58, 4, v57")
    a("v_lshlrev_b32 v58, 3, v1")
    a("v_add_u32 v58, s45, v58")


def lngemv():
    S, nk, T, acc = 4, 18, 8, 60
    s, q, t, t2, one = 48, 49, 50, 51, 52
    f = []
    for i in range(8):
        f.append(f"v_dot2c_f32_bf16 v{s}, v{40+i}, v{one}")
        f.append(f"v_dot2c_f32_bf16 v{q}, v{40+i}, v{40+i}")
    f.append("s_nop 1")
    for st in ("quad_perm:[1,0,3,2]", "quad_perm:[2,3,0,1]", "row_half_mirror", "row_mirror"):
        f.append(f"v_add_f32_dpp v{s}, v{s}, v{s} {st}{DPPM}")
        f.append(f"v_add_f32_dpp v{q}, v{q}, v{q} {st}{DPPM}")
    f.append(f"v_permlane16_swap_b32 v{s}, v{q}")
    f.append(f"v_add_f32 v{s}, v{s}, v{q}")
    f.append(f"v_mov_b32 v{t}, v{s}")
    f.append(f"v_permlane32_swap_b32 v{s}, v{t}")
    f.append(f"v_add_f32 v{s}, v{s}, v{t}")
    f.append(f"v_mul_f32 v{s}, {f32(1.0/576)}, v{s}")
    f.append(f"v_mov_b32 v{q}, v{s}")
    f.append(f"v_permlane16_swap_b32 v{s}, v{q}")
    f.append(f"v_fma_f32 v{q}, -v{s}, v{s}, v{q}")
    f.append(f"v_max_f32 v{q}, 0, v{q}")
    f.append(f"v_cvt_pk_bf16_f32 v{q}, v{s}, v{q}")
    f.append(f"v_lshlrev_b32 v{s}, 16, v{q}")
    f.append(f"v_and_b32 v{q}, 0xffff0000, v{q}")
    for op in (f"v_add_f32 v{q}, {f32(1e-5)}, v{q}", f"v_sqrt_f32 v{q}, v{q}"):
        f.append(op)
        f.append(f"v_cvt_pk_bf16_f32 v{q}, v{q}, v{q}")
        f.append(f"v_and_b32 v{q}, 0xffff0000, v{q}")
    f.append(f"v_rcp_f32 v{q}, v{q}")

    def issue(kk):
        z = T + 8 * (kk % S)
        a(f"ds_read_b128 {R('v', z)}, v57 offset:{kk*64}")
        a(f"ds_read_b64_tr_b16 {R('v', z+4, 2)}, v58 offset:{kk*1024}")
        a(f"ds_read_b64_tr_b16 {R('v', z+6, 2)}, v58 offset:{kk*1024+512}")

    for r in range(4):
        a(f"v_mov_b32 v{44+r}, 0")
    a("ds_read_b128 v[40:43], v2")
    a("s_mov_b64 exec, 0xff")
    a("ds_read_b128 v[44:47], v2 offset:1024")
    a("s_mov_b64 exec, -1")
    for kk in range(S):
        issue(kk)
    a(f"v_mov_b32 v{s}, 0")
    a(f"v_mov_b32 v{q}, 0")
    a(f"v_mov_b32 v{one}, 0x3f803f80")
    per = -(-len(f) // (nk // 2 + 1))
    for kk in range(0, nk, 2):
        a(f"s_waitcnt lgkmcnt({3*(min(nk, kk+S)-kk-2)})")
        for k2 in (kk, kk + 1):
            z = T + 8 * (k2 % S)
            c = "0" if k2 == 0 else R("v", acc)
            a(f"v_mfma_f32_16x16x32_bf16 {R('v', acc)}, {R('v', z)}, {R('v', z+4)}, {c}")
        for k2 in (kk, kk + 1):
            if k2 + S < nk:
                issue(k2 + S)
        for _ in range(per):
            if f:
                a(f.pop(0))
    while f:
        a(f.pop(0))
    a(f"v_fma_f32 v60, -v{s}, v61, v60")
    a(f"v_mul_f32 v60, v60, v{q}")


def retry(lab_again, lab_done):
    a("s_cmp_eq_u32 s38, 0")
    a(f"s_cbranch_scc1 {lab_done}")
    a("s_sub_u32 s38, s38, 1")
    if OPT["psleep"]:
        a(f"s_sleep {OPT['psleep']}")
    a(f"s_branch {lab_again}")


def combine(CB, CS):
    a("v_lshlrev_b32 v8, 2, v0")
    a(f"v_add_u32 v8, {CB}, v8")
    a("s_lshr_b32 s44, s24, 1")
    a("s_lshl_b32 s44, s44, 5")
    a(f"s_add_u32 s44, s44, {CS}")
    a("v_mov_b32 v9, s44")
    a("ds_read_b128 v[12:15], v9")
    a("ds_read_b128 v[16:19], v9 offset:16")
    for w in range(4):
        a(f"ds_read_b32 v{20+w}, v8 offset:{w*1024}")
    a("s_waitcnt lgkmcnt(4)")
    a("v_max3_f32 v26, v12, v14, v16")
    a("v_max_f32 v26, v26, v18")
    for w in range(4):
        a(f"v_sub_f32 v{12+2*w}, v{12+2*w}, v26")
    for w in range(4):
        a(f"v_exp_f32 v{12+2*w}, v{12+2*w}")
    a("v_mul_f32 v27, v13, v12")
    for w in range(1, 4):
        a(f"v_fmac_f32 v27, v{13+2*w}, v{12+2*w}")
    a("s_waitcnt lgkmcnt(0)")
    a("v_mul_f32 v24, v20, v12")
    for w in range(1, 4):
        a(f"v_fmac_f32 v24, v{20+w}, v{12+2*w}")


def qpoll_issue():
    a("buffer_load_dwordx4 v[24:27], v32, s[12:15], s45 offen sc1", tag="qp")
    a("buffer_load_dwordx4 v[28:31], v32, s[12:15], s45 offen offset:16 sc1", tag="qp")


def qpoll_addr(xoff):
    a("s_lshl_b32 s45, s25, 11")
    a(f"s_add_u32 s45, s45, {xoff}")
    a("v_bfe_u32 v32, v1, 3, 1")
    a("v_lshlrev_b32 v32, 10, v32")
    a("v_lshrrev_b32 v33, 4, v1")
    a("v_lshl_add_u32 v32, v33, 8, v32")
    a("v_bfe_u32 v33, v1, 1, 1")
    a("v_lshl_add_u32 v32, v33, 7, v32")
    a("v_and_b32 v33, 1, v1")
    a("v_lshl_add_u32 v32, v33, 5, v32")


def qpoll_check():
    a("v_cmp_ne_u32 s[46:47], s29, v25")
    a("v_cmp_ne_u32 s[48:49], s29, v27")
    a("v_cmp_ne_u32 s[50:51], s29, v29")
    a("v_cmp_ne_u32 s[52:53], s29, v31")
    a("s_or_b64 s[46:47], s[46:47], s[48:49]")
    a("s_or_b64 s[50:51], s[50:51], s[52:53]")
    a("s_or_b64 s[46:47], s[46:47], s[50:51]")


VL = 50


def unit_drain(base):
    def pwait(last):
        labs = [a.newlabel("dw") for _ in range(RN - 1)]
        for p in range(RN - 1):
            a(f"s_cmp_eq_u32 s93, {p}")
            a(f"s_cbranch_scc1 {labs[p]}")
        a(f"s_waitcnt vmcnt({last})")
        for p in reversed(range(RN - 1)):
            a.label(labs[p])
            a(f"s_waitcnt vmcnt({last + 16*(RN-1-p)})")
    a.vq = []
    unit("v", base, "none", None, hooks=(lambda: pwait(9), lambda: pwait(1)))


def kloc(i):
    return ("a", 32 * i) if i < 8 else ("v", 64 + 64 * RN + 32 * (i - 8))


def swapreduce(b):
    a(f"v_permlane32_swap_b32 v{b}, v{b+1}")
    a(f"v_permlane32_swap_b32 v{b+2}, v{b+3}")
    a(f"v_add_f32 v{b}, v{b}, v{b+1}")
    a(f"v_add_f32 v{b+2}, v{b+2}, v{b+3}")
    a(f"v_permlane16_swap_b32 v{b}, v{b+2}")
    a(f"v_add_f32 v{b}, v{b}, v{b+2}")


def kofs():
    a("v_bfe_u32 v40, v1, 2, 2")
    a("v_lshlrev_b32 v2, 8, v40")
    a("v_lshrrev_b32 v40, 4, v1")
    a("v_lshl_add_u32 v2, v40, 6, v2")
    a("v_and_b32 v40, 3, v1")
    a("v_lshl_add_u32 v2, v40, 4, v2")


def masks():
    a("v_and_b32 v40, 1, v1")
    a("v_lshlrev_b32 v40, 4, v40")
    a("v_mov_b32 v41, 0xffff")
    a("v_lshlrev_b32 v40, v40, v41")
    for i in range(4):
        m = 0x03030303 << (2 * i)
        a(f"s_mov_b32 s46, 0x{m:08x}")
        a(f"s_mov_b32 s47, 0x{m:08x}")
        a(f"v_cndmask_b32 v{4+i}, 0, v40, s[46:47]")


def loopconsts():
    kofs()
    masks()


def qprep(xoff):
    a("s_mul_i32 s44, s24, 1152")
    a(f"s_add_u32 s44, s44, {XB}")
    a(f"s_mul_i32 s45, s24, {TS}")
    a(f"s_add_u32 s45, s45, {WQ}")
    lng_addr()
    a("s_lshl_b32 s54, s28, 3")
    a("s_add_u32 s54, s54, s27")
    a("s_sub_u32 s54, s54, 24")
    a("s_lshl_b32 s54, s54, 2")
    a("s_add_u32 s54, s54, s24")
    a("s_lshl_b32 s54, s54, 7")
    a(f"s_add_u32 s54, s54, {xoff}")


def ones_init():
    for r in range(4):
        a(f"v_mov_b32 v{16+r}, 0x3f803f80")
    a(f"v_add_u32 v20, {ONES}, v3")
    a("ds_write_b128 v20, v[16:19]")
    a("s_mov_b64 exec, 0xff")
    a("ds_write_b128 v20, v[16:19] offset:1024")
    a("s_mov_b64 exec, -1")


a.raw(f"{NAME}_kernel:")
a("s_cmp_ge_u32 s2, 256")
a("s_cbranch_scc1 LEND")
if STAMPS or OPT["padto"] or OPT["enc"]:
    a("s_memrealtime s[100:101]")
a("s_load_dwordx16 s[64:79], s[0:1], 0")
a("s_load_dwordx8 s[80:87], s[0:1], 64")
a("v_and_b32 v1, 63, v0")
a("v_lshrrev_b32 v40, 6, v0")
a("v_readfirstlane_b32 s24, v40")
a("s_and_b32 s28, s2, 7")
if OPT["rbal"]:
    a("s_lshr_b32 s27, s2, 4")
    a("s_and_b32 s44, s2, 15")
    a("s_lshl_b32 s44, s44, 1")
    a("s_add_u32 s27, s27, s44")
else:
    a("s_lshr_b32 s27, s2, 3")
    a("s_lshl_b32 s44, s28, 2")
    a("s_add_u32 s27, s27, s44")
a("s_and_b32 s27, s27, 31")
a("s_lshr_b32 s25, s2, 4")
a("s_and_b32 s26, s2, 15")
a(f"s_mov_b32 s30, {f32(math.log2(math.e)/math.sqrt(128.0))}")
a("s_mov_b32 s31, 0")
a("s_mov_b32 s38, 400000")
a(f"s_mov_b32 s39, {LB0}")
a("s_mov_b32 s42, 0xf0f0f0f0")
a("s_mov_b32 s43, 0xf0f0f0f0")
a("s_lshl_b32 s44, s26, 2")
a("s_add_u32 s44, s44, s24")
a("s_lshl_b32 s32, s44, 13")
hswinit()
setaddr(32, 32)
a("s_lshl_b32 s57, s44, 14")
a(f"s_add_u32 s57, s57, {1920*8192}")
a("s_mov_b32 s55, -1")
a("s_mov_b32 s56, -1")
a("s_mov_b32 s96, -1")
a("s_mov_b32 s97, -1")
a("v_lshlrev_b32 v3, 4, v1")
kofs()
a("s_waitcnt lgkmcnt(0)")
a("s_load_dword s29, s[86:87], 0")
if OPT["padmin"]:
    a("s_not_b32 s101, s100")
    a("s_atomic_umax s101, s[84:85], 64")
a("s_lshl_b32 s44, s25, 24")
a("s_add_u32 s4, s66, s44")
a("s_addc_u32 s5, s67, 0")
a("s_and_b32 s5, s5, 0xffff")
a("s_mov_b32 s6, 0x1000000")
a("s_mov_b32 s7, 0x20000")
a("s_add_u32 s8, s68, s44")
a("s_addc_u32 s9, s69, 0")
a("s_and_b32 s9, s9, 0xffff")
a("s_mov_b32 s10, 0x1000000")
a("s_mov_b32 s11, 0x20000")
srd(12, 86, 87, WS_SIZE)
a("s_cmp_ge_u32 s27, 24")
a("s_cbranch_scc0 LPRO1")
srd(60, 64, 65, 1152)
srd(92, 70, 71, 0 if OPT["wskip"] & 8 else 576 * 8192)
a("v_lshrrev_b32 v41, 3, v1")
a("v_lshlrev_b32 v40, 13, v41")
a("v_and_b32 v42, 7, v1")
a("v_lshl_add_u32 v40, v42, 4, v40")
a("s_lshl_b32 s46, s28, 3")
a("s_add_u32 s46, s46, s27")
a("s_sub_u32 s46, s46, 24")
a("s_lshl_b32 s44, s46, 7")
a(f"s_mul_i32 s45, s24, {144*8192}")
a("s_add_u32 s44, s44, s45")
for i in range(18):
    a(f"buffer_load_dwordx4 {R('v', 64+4*i)}, v40, s[92:95], s44 offen{WPOL}")
    a("s_add_u32 s44, s44, 65536")
a("buffer_load_dwordx4 v[8:11], v3, s[60:63], 0 offen")
a("buffer_load_dwordx4 v[12:15], v3, s[60:63], 0 offen offset:1024")
a("s_and_b32 s44, s46, 3")
a("s_or_b32 s44, s44, s24")
a("s_cmp_eq_u32 s44, 0")
a("s_cbranch_scc0 LPRO0")
a("v_and_b32 v40, 1, v1")
a("v_lshlrev_b32 v40, 12, v40")
a("v_bfe_u32 v43, v1, 1, 1")
a("v_lshl_add_u32 v40, v43, 13, v40")
a("v_lshrrev_b32 v43, 2, v1")
a("v_lshl_add_u32 v40, v43, 4, v40")
a("v_mov_b32 v36, 0\nv_mov_b32 v37, 0\nv_mov_b32 v38, 0\nv_mov_b32 v39, 0")
a("s_lshl_b32 s44, s46, 6")
a(f"s_add_u32 s44, s44, {CTR}")
a("s_mov_b64 exec, 0xff")
a("buffer_store_dwordx4 v[36:39], v40, s[12:15], s44 offen sc1")
a("s_mov_b64 exec, -1")
a.label("LPRO0")
a("v_lshrrev_b32 v40, 1, v42")
a(f"v_mul_u32_u24 v40, {TS}, v40")
a("v_and_b32 v43, 3, v41")
a("v_lshl_add_u32 v40, v43, 5, v40")
a("v_lshrrev_b32 v43, 2, v41")
a("v_lshl_add_u32 v40, v43, 9, v40")
a("v_and_b32 v42, 1, v42")
a("v_lshl_add_u32 v40, v42, 4, v40")
for k, reg in ((0, 41), (2, 42)):
    a("s_mul_i32 s44, s24, 18")
    a(f"s_add_u32 s44, s44, {k}")
    a("s_lshr_b32 s45, s44, 2")
    a("s_lshl_b32 s45, s45, 10")
    a("s_and_b32 s44, s44, 3")
    a("s_lshl_b32 s44, s44, 7")
    a("s_add_u32 s44, s44, s45")
    a(f"s_add_u32 s44, s44, {WQ}")
    a(f"v_add_u32 v{reg}, s44, v40")
ones_init()
a("s_waitcnt vmcnt(0) lgkmcnt(0)")
a("s_mul_i32 s29, s29, 0x9e3779b1")
a("s_add_u32 s29, s29, 0x7f4a7c15")
for i in range(18):
    a(f"ds_write_b128 v{41 + ((i>>1)&1)}, {R('v', 64+4*i)} offset:{(i>>2)*1024+(i&1)*128}")
a("s_waitcnt lgkmcnt(0)")
a("s_barrier")
qprep(X0)
a("s_call_b64 s[36:37], LQSTAGE")
kofs()
a("s_branch LPRO2")
a.label("LPRO1")
a("s_waitcnt lgkmcnt(0)")
ones_init()
a("s_mul_i32 s29, s29, 0x9e3779b1")
a("s_add_u32 s29, s29, 0x7f4a7c15")
a.label("LPRO2")
if STAMPS == 2:
    a("v_mov_b32 v51, 0")
    a("s_mov_b32 s93, 0")
sstamp(55)
a.vq = []
burst("a", 0, "A0")
a("s_cmp_eq_u32 s24, 0")
a("s_cbranch_scc0 LPRO3")
a("v_mov_b32 v24, -1\nv_mov_b32 v25, -1\nv_mov_b32 v26, -1\nv_mov_b32 v27, -1")
a("s_mul_i32 s44, s2, 6144")
a(f"s_add_u32 s44, s44, {LB0}")
a("s_add_u32 s45, s44, 4096")
keep = list(a.vq)
for i in range(6):
    a(f"buffer_store_dwordx4 v[24:27], v3, s[12:15], s{44+(i>>2)} offen offset:{1024*(i&3)} sc1")
a.vq = keep
a.label("LPRO3")
srd(16, 82, 83, 1152)
srd(20, 84, 85, 256)
masks()
a("s_lshl_b32 s44, s25, 8")
a(f"s_add_u32 s44, s44, {CTR}")
a("s_add_u32 s88, s86, s44")
a("s_addc_u32 s89, s87, 0")
sstamp(56)
keep = list(a.vq)
a("s_cmp_lt_u32 s27, 18")
a("s_cbranch_scc0 LWB")
srd(60, 76, 77, 0 if OPT["wskip"] & 2 else 576 * 9216)
srd(92, 78, 79, 0 if OPT["wskip"] & 2 else 576 * 9216)
a("v_lshrrev_b32 v41, 2, v1")
a("v_and_b32 v42, 3, v1")
a("v_mul_u32_u24 v40, 9216, v41")
a("v_lshl_add_u32 v40, v42, 4, v40")
a("s_mul_i32 s46, s28, 18")
a("s_add_u32 s46, s46, s27")
a("s_lshl_b32 s44, s46, 6")
a(f"s_mul_i32 s45, s24, {144*9216}")
a("s_add_u32 s44, s44, s45")
for i in range(0 if OPT["wlate"] & 1 else 9):
    a(f"buffer_load_dwordx4 {R('v', 64+8*i)}, v40, s[60:63], s44 offen{WPOL}")
    a(f"buffer_load_dwordx4 {R('v', 68+8*i)}, v40, s[92:95], s44 offen{WPOL}")
    a(f"s_add_u32 s44, s44, {16*9216}")
a(f"v_mul_u32_u24 v43, {TS}, v42")
a("v_and_b32 v42, 3, v41")
a("v_lshl_add_u32 v43, v42, 5, v43")
a("v_bfe_u32 v42, v41, 2, 1")
a("v_lshl_add_u32 v43, v42, 9, v43")
a("v_lshrrev_b32 v42, 3, v41")
a("v_lshl_add_u32 v43, v42, 7, v43")
for k, reg in ((1, 34), (0, 43)):
    a("s_mul_i32 s44, s24, 9")
    a(f"s_add_u32 s44, s44, {k}")
    a("s_lshr_b32 s45, s44, 1")
    a("s_lshl_b32 s45, s45, 10")
    a("s_and_b32 s44, s44, 1")
    a("s_lshl_b32 s44, s44, 8")
    a("s_add_u32 s44, s44, s45")
    a(f"v_add_u32 v{reg}, s44, v43")
srd(60, 80, 81, 0 if OPT["wskip"] & 4 else 4608 * 1152)
a(f"s_mul_i32 s44, s46, {32*1152}")
a("s_mul_i32 s45, s24, 9216")
a("s_add_u32 s44, s44, s45")
a("s_add_u32 s45, s44, 4096")
a("s_add_u32 s46, s44, 8192")
for i in range(0 if OPT["wlate"] & 2 else 9):
    a(f"buffer_load_dwordx4 {R('v', 136+4*i)}, v3, s[60:63], s{44+(i>>2)} offen offset:{(i&3)*1024}{WPOL}")
a("s_branch LWDONE")
a.label("LWB")
a("s_cmp_lt_u32 s27, 30")
a("s_cbranch_scc0 LWDONE")
srd(60, 72, 73, 0 if OPT["wskip"] & 1 else 4096 * 1152)
a("v_lshrrev_b32 v41, 4, v1")
a("v_and_b32 v42, 15, v1")
a("v_mul_u32_u24 v40, 1152, v41")
a("v_lshl_add_u32 v40, v42, 4, v40")


def brole():
    a("s_sub_u32 s47, s27, 18")
    a("s_lshl_b32 s46, s28, 1")
    a("s_cmp_ge_u32 s47, 6")
    a("s_addc_u32 s46, s46, 0")
    a("s_cmp_ge_u32 s47, 6")
    a("s_cselect_b32 s48, 6, 0")
    a("s_sub_u32 s47, s47, s48")


brole()
a("s_lshl_b32 s44, s46, 8")
a("s_lshl_b32 s45, s24, 6")
a("s_add_u32 s44, s44, s45")
a("s_mul_i32 s44, s44, 1152")
a("s_mul_i32 s45, s47, 192")
a("s_add_u32 s44, s44, s45")
a("s_mov_b32 exec_lo, 0x0fff0fff")
a("s_mov_b32 exec_hi, 0x0fff0fff")
for i in range(16):
    a(f"buffer_load_dwordx4 {R('v', 64+4*i)}, v40, s[60:63], s44 offen{WPOL}")
    a(f"s_add_u32 s44, s44, {4*1152}")
a("s_mov_b64 exec, -1")
a("v_lshrrev_b32 v43, 1, v42")
a(f"v_mul_u32_u24 v43, {WOS}, v43")
a("v_lshl_add_u32 v43, v41, 5, v43")
a("v_and_b32 v42, 1, v42")
a("v_lshl_add_u32 v43, v42, 4, v43")
a("s_lshl_b32 s45, s24, 11")
a("v_add_u32 v43, s45, v43")
a.label("LWDONE")
a.vq = keep
sstamp(57)
PR = str(OPT["pr"]).zfill(4)
for _ in range(int(PR[0])):
    probe()
a.wait_vm_n(30)
burst("a", 64, "A1")
for _ in range(int(PR[1])):
    probe()
a.wait_vm_n(30)
burst("a", 128, "A2")
for _ in range(int(PR[2])):
    probe()
qpoll_addr(X0)
a.wait_vm_n(40)
qpoll_issue()
burst("a", 192, "A3")
for _ in range(int(PR[3])):
    probe()
if not OPT["klate"]:
    probe("K")
a.wait_vm_n(50)
a("s_cmp_lt_u32 s27, 18")
a("s_cbranch_scc0 LWB2")
for i in range(0 if OPT["wlate"] & 1 else 9):
    a(f"ds_write_b128 v{34 if i & 1 else 43}, {R('v', 64+8*i)} offset:{(i>>1)*1024}")
    a(f"ds_write_b128 v{34 if i & 1 else 43}, {R('v', 68+8*i)} offset:{(i>>1)*1024+16}")
a("s_mul_i32 s44, s24, 9216")
a(f"s_add_u32 s44, s44, {WD}")
a("v_add_u32 v40, s44, v3")
for i in range(0 if OPT["wlate"] & 2 else 9):
    a(f"ds_write_b128 v40, {R('v', 136+4*i)} offset:{i*1024}")
a("s_branch LWDONE2")
a.label("LWB2")
a("s_cmp_lt_u32 s27, 30")
a("s_cbranch_scc0 LWDONE2")
a("s_mov_b32 exec_lo, 0x0fff0fff")
a("s_mov_b32 exec_hi, 0x0fff0fff")
for i in range(16):
    a(f"ds_write_b128 v43, {R('v', 64+4*i)} offset:{(i&1)*512+((i>>1)&3)*128+(i>>3)*1024}")
a("s_mov_b64 exec, -1")
a.label("LWDONE2")
a(f"v_mov_b32 v{VL}, 0")
a("s_mov_b32 s91, 0")
a("s_mov_b32 s92, 0")
a("s_mov_b32 s94, 0")
a("s_mov_b32 s95, 7")
a("s_waitcnt lgkmcnt(0)")
a.wait_vm("qp")
if STAMPS:
    a("s_memrealtime s[58:59]")
    a("s_waitcnt lgkmcnt(0)")
    a("s_mov_b32 s75, s58")
qpoll_check()
a("s_cbranch_scc0 LQREADY")

a.label("LQPOLL")
qpoll_issue()
a("s_waitcnt vmcnt(0)")
qpoll_check()
a("s_cbranch_scc0 LQREADY")
retry("LQPOLL", "LQREADY")
a.label("LQREADY")
if OPT["q1w"]:
    a("s_cmp_eq_u32 s31, 0")
    a("s_cbranch_scc1 LQREADY2")
    for i in range(4):
        a(f"ds_write_b32 v33, v{24+2*i} offset:{256*i}")
    a("s_waitcnt lgkmcnt(0)")
    a("s_barrier")
    a.label("LQREADY2")
hswinit()
for i in range(4):
    a(f"v_cndmask_b32 v{QE+i}, v{24+2*i}, 0, s[42:43]")
    a(f"v_cndmask_b32 v{QO+i}, 0, v{24+2*i}, s[42:43]")
for r in range(4):
    a(f"v_mov_b32 v{OA+r}, 0")
a(f"v_mov_b32 v{MS}, {f32(-1e30)}")
a(f"v_mov_b32 v{LS}, 0")
stamp(0)
a("s_cmp_eq_u32 s31, 0")
a("s_cbranch_scc0 LP2")
if OPT["vote"]:
    a("s_getreg_b32 s47, hwreg(HW_REG_XCC_ID)")
    a("s_bfe_u32 s47, s47, 0x10002")
    for d, (x, y) in ((44, (55, 56)),) if OPT["klate"] else ((48, (96, 97)), (44, (55, 56))):
        a(f"s_sub_i32 s{d}, s{x}, s{y}")
        a(f"s_min_i32 s{d}, s{d}, 300")
        a(f"s_max_i32 s{d}, s{d}, -300")
        a(f"s_sub_i32 s45, 0, s{d}")
        a("s_cmp_eq_u32 s47, 0")
        a(f"s_cselect_b32 s{d}, s{d}, s45")
    a("s_mov_b32 s46, s44")
    a("s_atomic_add s46, s[88:89], 16 glc")
    if not OPT["klate"]:
        a("s_atomic_add s48, s[88:89], 20")
    if RN > 1:
        a(f"s_mov_b32 s90, {TKI}")
        a("s_atomic_add s90, s[88:89], 0 glc")
    a("s_waitcnt lgkmcnt(0)")
    a("s_add_i32 s44, s44, s46")
    a("s_cmp_gt_i32 s44, 0")
    a("s_cselect_b32 s44, 1, 0")
    a("s_xor_b32 s44, s44, s47")
else:
    a("s_cmp_gt_u32 s55, s56")
    a("s_cselect_b32 s44, 1, 0")
if OPT["forcecls"] == 2:
    a("s_xor_b32 s44, s44, 1")
a("s_lshl_b32 s45, s44, 2")
a("s_add_u32 s45, s45, 4")
a("s_mov_b32 s46, 1")
a("s_atomic_add s46, s[88:89], s45 glc")
a("s_mov_b32 s61, 0")
a("s_mov_b32 s62, 0")
a("s_mov_b32 s63, 1")
a("s_mov_b32 s98, 13")
a("s_mov_b32 s99, 0")
a(f"s_mov_b32 s96, {NP1}")
a("s_waitcnt lgkmcnt(0)")
a("s_cmp_lt_u32 s46, 32")
a("s_cbranch_scc1 LBUN")
a("s_xor_b32 s44, s44, 1")
a("s_xor_b32 s45, s45, 12")
a("s_mov_b32 s46, 1")
a("s_atomic_add s46, s[88:89], s45 glc")
a("s_waitcnt lgkmcnt(0)")
a.label("LBUN")
a("s_lshl_b32 s57, s46, 1")
a("s_add_u32 s57, s57, s44")
a("s_add_u32 s57, s57, 256")
a("s_lshl_b32 s57, s57, 13")
a("s_mov_b32 s55, -1")
a("s_mov_b32 s37, -1")
a(f"s_mov_b32 s56, {PB}")
a("s_mov_b32 s60, 0")
a(f"s_mov_b32 s54, {TF}")
a("s_mov_b32 s36, 0")
a("s_mov_b32 s101, 0")
a("s_mov_b32 s97, 0")
a("s_mov_b32 s41, 0")
a("s_cmp_eq_u32 s24, 0")
a("s_cbranch_scc0 LNOCNT")
a("s_mov_b32 s48, 1")
a("s_atomic_add s48, s[84:85], 0")
a.label("LNOCNT")
a.vq = qtags("A3")


def tkreq():
    if OPT["sline"]:
        a("s_lshr_b32 s59, s61, 11")
        a("s_atomic_add s90, s[88:89], s59 glc")
    else:
        a("s_atomic_add s90, s[88:89], s61 glc")


def xaddr(reg, i):
    a(f"s_add_u32 s{reg}, s57, {i*UNIT_STEP}")
    if (1 + (i >> 2)) & 1:
        a(f"s_xor_b32 s{reg}, s{reg}, 8192")


def baddr(i):
    xaddr(32, 2 * i)
    xaddr(34, 2 * i + 1)
    setaddr(32, 34)


def draw(s, exhausted):
    ln, lg, lo = a.newlabel("noapp"), a.newlabel("go"), a.newlabel("tok")
    a("s_cmp_lt_u32 s90, s96")
    a(f"s_cbranch_scc1 {lo}")
    a("s_cmp_lg_u32 s63, 0")
    a(f"s_cbranch_scc1 {exhausted}")
    a("s_add_u32 s63, s63, 1")
    a("s_mov_b32 s62, 0")
    a("s_xor_b32 s61, s61, 8192")
    a(f"s_mov_b32 s90, {TKI}")
    tkreq()
    a("s_waitcnt lgkmcnt(0)")
    a("s_cmp_lt_u32 s90, s96")
    a(f"s_cbranch_scc0 {exhausted}")
    a.label(lo)
    a("s_cmp_ge_u32 s90, s60")
    a("s_cselect_b32 s32, s56, 0")
    a("s_add_u32 s32, s32, s90")
    a("s_lshl_b32 s33, s32, 6")
    a("s_xor_b32 s33, s33, s61")
    a("s_and_b32 s33, s33, s99")
    a("s_lshl_b32 s32, s32, s98")
    a("s_add_u32 s32, s32, s33")
    a(f"s_bitset0_b32 s97, {s}")
    a("s_cmp_ge_u32 s90, s54")
    a(f"s_cbranch_scc0 {ln}")
    a(f"s_bitset1_b32 s97, {s}")
    a("s_mov_b32 m0, s94")
    a("s_nop 0")
    a(f"v_writelane_b32 v{VL}, s32, m0")
    a("s_add_u32 s94, s94, 1")
    a("s_cmp_lt_u32 s94, 60")
    a(f"s_cbranch_scc1 {ln}")
    if OPT["tk2"]:
        a("s_bitcmp0_b32 s90, 0")
        a(f"s_cbranch_scc1 {ln}")
    a("s_mov_b32 s90, 0x7fffffff")
    a("s_add_u32 s63, s63, 1")
    a(f"s_branch {lg}")
    a.label(ln)
    if OPT["tk2"]:
        a("s_add_u32 s90, s90, 1")
        a("s_bitcmp1_b32 s90, 0")
        a(f"s_cbranch_scc1 {lg}")
    a("s_xor_b32 s61, s61, s62")
    if OPT["eg"]:
        a(f"s_add_u32 s90, s90, {OPT['eg']}")
        a("s_cmp_ge_u32 s90, s96")
        a("s_cselect_b32 s41, 1, 0")
        a(f"s_cbranch_scc1 {lg}")
    a(f"s_mov_b32 s90, {TKI}")
    tkreq()
    a.label(lg)


def ticket_ready():
    if OPT["eg"]:
        lk = a.newlabel("tk")
        a("s_cmp_eq_u32 s41, 0")
        a(f"s_cbranch_scc1 {lk}")
        a(f"s_waitcnt vmcnt({OPT['gv']})")
        a("s_sub_u32 s41, s41, 1")
        a(f"s_mov_b32 s90, {TKI}")
        tkreq()
        a.label(lk)
    a("s_waitcnt lgkmcnt(0)")


def abody(i, xslot=None):
    baddr(i)

    def rl(hf, t):
        if xslot is not None:
            ld("v", RING[xslot] + 32 * hf, t, "V", hf, VPOL, ("X", 2 * i + hf, t))
        ld("a", 64 * i + 32 * hf, t, "K", hf, " nt", ("BK", 2 * i + hf, t))
    a.wait_vm_n(31)
    unit2(("a", 64 * i), ("a", 64 * i + 32), lambda t: (f"A{i}", "K", t), lambda t: (f"A{i}", "V", t),
          lambda t: rl(0, t), lambda t: rl(1, t))
    logt()


def kburst(i):
    baddr(i)
    a.wait_vm_n(47)
    for hf in range(2):
        k = kloc(2 * i + hf)
        for t in range(8):
            ld(k[0], k[1], t, "K", hf, " nt", ("BK", 2 * i + hf, t))


def dbody(d, slot, nxt):
    sl = RING[slot]
    if nxt[0] == "X":
        j = nxt[1]
        baddr(j)
        rka = lambda t: ld("v", sl, t, "V", 0, VPOL, ("X", 2 * j, t))
        rkb = lambda t: ld("v", sl + 32, t, "V", 1, VPOL, ("X", 2 * j + 1, t))
    else:
        if nxt == "L":
            xaddr(32, NR)
        else:
            le, lc = a.newlabel("dex"), a.newlabel("dco")
            ticket_ready()
            draw(slot, le)
            a(f"s_branch {lc}")
            a.label(le)
            a(f"s_bitset0_b32 s95, {slot}")
            a("s_mov_b32 s32, 0x1000000")
            a.label(lc)
        setaddr(32, 32)
        rka = lambda t: ldK("v", sl, t, nxt)
        rkb = lambda t: ldV("v", sl, t, nxt)
    a.wait_vm_n(47)
    unit2(kloc(2 * d), ("v", sl), lambda t: ("BK", 2 * d, t), lambda t: ("X", 2 * d, t), None, rka)
    unit2(kloc(2 * d + 1), ("v", sl + 32), lambda t: ("BK", 2 * d + 1, t), lambda t: ("X", 2 * d + 1, t), None, rkb)
    logt()


if RN == 3:
    abody(0, 0), abody(1, 1), abody(2, 2), abody(3)
    dbody(0, 0, ("X", 3)), dbody(1, 1, "L"), dbody(2, 2, "P"), dbody(3, 0, "P")
    LSLOT = 1
elif RN == 2:
    abody(0, 0), abody(1, 1)
    dbody(0, 0, ("X", 2)), abody(2), dbody(1, 1, ("X", 3)), abody(3), kburst(4)
    dbody(2, 0, ("X", 4)), dbody(3, 1, "L"), dbody(4, 0, "P")
    LSLOT = 1
else:
    abody(0, 0), abody(1, 1), abody(2, 2), abody(3)
    dbody(0, 0, ("X", 3))
    for d, slot, j in ((1, 1, 4), (2, 2, 5)):
        baddr(j)
        a.wait_vm_n(47)
        for hf in range(2):
            unit2(kloc(2 * d + hf), ("v", RING[slot] + 32 * hf), lambda t: ("BK", 2 * d + hf, t), lambda t: ("X", 2 * d + hf, t), None,
                  lambda t: ld("v", RING[slot] + 32 * hf, t, "K", hf, " nt", ("BK", 2 * j + hf, t)))
        if d == 1:
            dbody(3, 0, ("X", 4))
    dbody(4, 0, ("X", 5)), dbody(5, 0, "L")
    LSLOT = 0
a("s_lshl_b32 s44, s24, 13")
a(f"s_add_u32 s44, s44, {KL}")
a("v_add_u32 v40, s44, v3")
if OPT["klate"]:
    a("s_lshl_b32 s44, s26, 2")
    a("s_add_u32 s44, s44, s24")
    a("s_lshl_b32 s44, s44, 14")
    a("s_getreg_b32 s47, hwreg(HW_REG_XCC_ID)")
    a("s_bfe_u32 s47, s47, 0x10002")
    a("s_waitcnt lgkmcnt(0)")
    for c in (0, 1, 0):
        a(f"s_add_u32 s50, s44, {1920*8192 + (c ^ 1)*8192 + probe_k[0]*1152}")
        probe_k[0] += 1
        a("s_memtime s[52:53]")
        a("s_waitcnt lgkmcnt(0)")
        a("s_buffer_load_dword s51, s[4:7], s50")
        a("s_waitcnt lgkmcnt(0)")
        a("s_memtime s[50:51]")
        a("s_waitcnt lgkmcnt(0)")
        a(f"s_sub_u32 s{45+c}, s50, s52")
    a("s_sub_i32 s48, s45, s46")
    a("s_min_i32 s48, s48, 300")
    a("s_max_i32 s48, s48, -300")
    a("s_sub_i32 s45, 0, s48")
    a("s_cmp_eq_u32 s47, 0")
    a("s_cselect_b32 s48, s48, s45")
    a("s_atomic_add s48, s[88:89], 20")
if RN == 1:
    a(f"s_mov_b32 s90, {TKI}")
    a("s_atomic_add s90, s[88:89], 0 glc")
waitq(("L", "K", 7))
for t in range(8):
    a(f"ds_write_b128 v40, {R('v', RING[LSLOT]+4*t)} offset:{t*1024}")
a(f"s_branch LRING{LSLOT}")
a.label("LP2")
if OPT["enc"]:
    a("s_memrealtime s[64:65]")
if STAMPS == 2:
    a("v_mov_b32 v51, 0")
    a("s_mov_b32 s93, 0")
a("s_mov_b32 s3, 0")
a(f"s_mov_b32 s56, {PB//2 - 128}")
a("s_mov_b32 s60, 128")
a("s_mov_b32 s41, 0")
a("s_mov_b32 s54, -1")
a("s_mov_b32 s101, 0")
a("s_mov_b32 s36, 0")
a(f"s_mov_b32 s37, {OPT['cn']}")
a("s_and_b32 s3, s3, s36")
sloc = lambda i: kloc(i) if i < NR else ("a", 0)
for i in range(NB + 1):
    a(f"s_mov_b32 s55, {THR0 + i*THRS}")
    a("s_add_u32 s36, s36, 1")
    a("s_branch LRINGGO")
    a.label(f"LRET{i+1}")
    a.vq = []
    if i > 0:
        def vwait():
            l0, l1 = a.newlabel("sw"), a.newlabel("sw")
            a("s_cmp_ge_u32 s101, 2")
            a(f"s_cbranch_scc1 {l0}")
            a("s_cmp_eq_u32 s101, 1")
            a(f"s_cbranch_scc1 {l1}")
            a("s_waitcnt vmcnt(0)")
            a.label(l1)
            a("s_waitcnt vmcnt(16)")
            a.label(l0)
            a("s_waitcnt vmcnt(32)")
        if i == NR:
            a("s_lshl_b32 s44, s24, 13")
            a(f"s_add_u32 s44, s44, {KL}")
            a("v_add_u32 v40, s44, v3")
            for t in range(8):
                a(f"ds_read_b128 {R('a', 4*t)}, v40 offset:{t*1024}")
        unit2(None, sloc(i - 1), hooks=(None, vwait), tt=52)
    if i < NB:
        xaddr(34, i)
        setaddr(None, 34)
        if i == NR:
            a("s_waitcnt lgkmcnt(0)")
        a.wait_vm_n(55)
        unit2(sloc(i), None, None, None, lambda t: ld(sloc(i)[0], sloc(i)[1], t, "V", 1, VPOL, None), tt=52)
        a("s_mov_b32 s101, 0")
a("s_mov_b32 s55, -1")
a("s_mov_b32 s37, -1")
a.label("LRINGGO")
for q in range(RN - 1):
    a(f"s_cmp_eq_u32 s3, {q}")
    a(f"s_cbranch_scc1 LRING{q}")
a(f"s_branch LRING{RN-1}")
a.label("LPASSEND")
stamp(1)
if STAMPS == 2:
    a("s_lshl_b32 s44, s31, 8")
    a("s_add_u32 s44, s44, s2")
    a("s_lshl_b32 s44, s44, 10")
    a(f"s_add_u32 s44, s44, {STAMP_OFF+0x40000}")
    a("v_lshlrev_b32 v40, 2, v0")
    a("buffer_store_dword v51, v40, s[12:15], s44 offen")
a(f"v_add_f32_dpp v{LS}, v{LS}, v{LS} row_half_mirror{DPPM}")
rows("v_add_f32", LS, TMP)
a(f"v_mul_f32 v22, s30, v{MS}")
a(f"v_mov_b32 v23, v{LS}")
a("v_bfe_u32 v40, v1, 3, 1")
a("v_lshlrev_b32 v41, 9, v40")
a("v_lshrrev_b32 v42, 4, v1")
a("v_lshl_add_u32 v41, v42, 7, v41")
a("v_and_b32 v42, 7, v1")
a("v_lshl_add_u32 v41, v42, 2, v41")
a("s_lshl_b32 s44, s24, 10")
a(f"s_add_u32 s44, s44, {CB1}")
a("v_add_u32 v41, s44, v41")
for r in range(4):
    a(f"ds_write_b32 v41, v{OA+r} offset:{32*r}")
a("s_lshl_b32 s44, s24, 3")
a(f"s_add_u32 s44, s44, {CS1}")
a("v_lshlrev_b32 v40, 5, v40")
a("v_add_u32 v40, s44, v40")
a("ds_write_b64 v40, v[22:23]")
a("v_lshlrev_b32 v40, 2, v0")
a(f"v_add_u32 v40, {LSV}, v40")
a(f"ds_write_b32 v40, v{VL}")
a.label("LCNT")
a("s_waitcnt vmcnt(0)")
a("v_readfirstlane_b32 s44, v49")
a("s_cmp_ge_u32 s44, 256")
a("s_cbranch_scc1 LCNTOK")
a("v_mov_b32 v48, 0")
a("buffer_load_dword v49, v48, s[20:23], 0 offen sc1")
retry("LCNT", "LCNTOK")
a.label("LCNTOK")
a("s_waitcnt lgkmcnt(0)")
a("s_barrier")
combine(CB1, CS1)
a(f"s_mul_i32 s44, s2, {X1S}")
a("s_add_u32 s44, s44, s39")
a("v_lshlrev_b32 v8, 2, v0")
a("buffer_store_dword v24, v8, s[12:15], s44 offen sc1")
a("s_lshl_b32 s45, s24, 6")
a("v_mov_b32 v9, s45")
a("s_bitcmp0_b32 s24, 0")
a("s_cbranch_scc0 LPUB1")
a("s_mov_b64 exec, 1")
a("buffer_store_dwordx2 v[26:27], v9, s[12:15], s44 offen offset:1024 sc1")
a("s_mov_b64 exec, -1")
a.label("LPUB1")
stamp(2)
a("s_cmp_eq_u32 s31, 0")
a("s_cbranch_scc0 LPUB2")
a("s_getreg_b32 s47, hwreg(HW_REG_XCC_ID)")
a("s_bfe_u32 s47, s47, 0x10002")
a("s_add_u32 s88, s88, 4096")
a("s_addc_u32 s89, s89, 0")
a("s_mov_b32 s63, 0")
a("s_cmp_gt_i32 s98, 0")
a("s_cselect_b32 s61, 1, 0")
a("s_xor_b32 s61, s61, s47")
a("s_lshl_b32 s61, s61, 13")
a("s_xor_b32 s98, s98, s99")
a("s_cmp_lt_i32 s98, 0")
a("s_cselect_b32 s62, 8192, 0")
a("s_mov_b32 s98, 14")
a("s_mov_b32 s99, 8192")
a(f"s_mov_b32 s90, {TKI}")
tkreq()
a.label("LPUB2")
a("s_cmp_lt_u32 s27, 18")
a("s_cbranch_scc1 LSTC")
a("s_cmp_lt_u32 s27, 30")
a("s_cbranch_scc0 LSTQ")
brole()
a(f"s_mul_i32 s48, s46, {16*X1S}")
a("s_add_u32 s48, s48, s39")
for g in range(1, 4):
    a(f"s_add_u32 s{48+g}, s48, {g*4*X1S}")
a("v_lshlrev_b32 v8, 2, v0")
a("v_and_b32 v9, 15, v1")
a(f"v_mul_u32_u24 v9, {X1S}, v9")
a("s_lshr_b32 s44, s24, 1")
a("s_lshl_b32 s44, s44, 7")
a("v_add_u32 v9, s44, v9")
a("v_lshlrev_b32 v10, 1, v0")
a(f"v_add_u32 v10, {OB}, v10")
a(f"s_mul_i32 s44, s24, {2*WOS}")
a("v_lshlrev_b32 v58, 3, v1")
a("v_add_u32 v58, s44, v58")
afrag_addr(57, base=OB)
a.label("LE1")
a("buffer_load_dwordx2 v[28:29], v9, s[12:15], s48 offen offset:1024 sc1")
for p in range(16):
    a(f"buffer_load_dword v{12+p}, v8, s[12:15], s{48+(p>>2)} offen offset:{(p&3)*X1S} sc1")
a("s_waitcnt vmcnt(16)")
if OPT["e1f"]:
    a("v_cmp_u_f32 vcc, v28, v29")
    a("s_cbranch_vccnz LE1R")
ROWRED = ("quad_perm:[1,0,3,2]", "quad_perm:[2,3,0,1]", "row_half_mirror", "row_mirror")
a(f"v_max_f32_dpp v30, v28, v28 {ROWRED[0]}{DPPM}")
for st in ROWRED[1:]:
    a(f"v_max_f32_dpp v30, v30, v30 {st}{DPPM}")
a("v_sub_f32 v28, v28, v30")
a("v_exp_f32 v28, v28")
a("v_mul_f32 v29, v29, v28")
for st in ROWRED:
    a(f"v_add_f32_dpp v29, v29, v29 {st}{DPPM}")
a("v_rcp_f32 v29, v29")
a("v_mul_f32 v28, v28, v29")
a("s_waitcnt vmcnt(0)")
for p in range(16):
    op = "v_mul_f32_dpp" if p < 4 else "v_fmac_f32_dpp"
    a(f"{op} v{32+(p&3)}, v28, v{12+p} row_newbcast:{p}{DPPM}")
a("v_add_f32 v32, v32, v33")
a("v_add_f32 v34, v34, v35")
a("v_add_f32 v32, v32, v34")
a("v_cmp_u_f32 vcc, v32, v32")
a("s_cbranch_vccz LE1OK")
a.label("LE1R")
retry("LE1", "LE1OK")
a.label("LE1OK")
a("s_waitcnt vmcnt(0)")
stamp(3)
a("v_cvt_pk_bf16_f32 v32, v32, v32")
a("ds_write_b16 v10, v32")
a("s_waitcnt lgkmcnt(0)")
a("s_barrier")
a("s_cmp_eq_u32 s24, 3")
a("s_cbranch_scc1 LSTQ")


def b_issue(kk):
    s = 8 + 12 * (kk % 3)
    a(f"ds_read_b128 {R('v', s)}, v57 offset:{kk*64}")
    for t in range(2):
        a(f"ds_read_b64_tr_b16 {R('v', s+4+4*t, 2)}, v58 offset:{kk*1024+t*WOS}")
        a(f"ds_read_b64_tr_b16 {R('v', s+6+4*t, 2)}, v58 offset:{kk*1024+t*WOS+512}")


for kk in range(3):
    b_issue(kk)
for kk in range(8):
    a(f"s_waitcnt lgkmcnt({5*(min(8, kk+3)-kk-1)})")
    s = 8 + 12 * (kk % 3)
    for t in range(2):
        acc = R("v", 48 + 4 * t)
        a(f"v_mfma_f32_16x16x32_bf16 {acc}, {R('v', s)}, {R('v', s+4+4*t)}, {'0' if kk == 0 else acc}")
    if kk + 3 < 8:
        b_issue(kk + 3)
a("s_mul_i32 s44, s46, 2304")
a("s_mul_i32 s45, s47, 384")
a("s_add_u32 s44, s44, s45")
a("s_lshl_b32 s45, s24, 7")
a("s_add_u32 s44, s44, s45")
a("s_add_u32 s44, s44, s39")
a(f"s_add_u32 s44, s44, {X2}")
a("s_mov_b32 s48, 0xffff0000")
a("s_mov_b32 s49, 0xffff0000")
a("v_lshlrev_b32 v8, 2, v1")
a("v_cndmask_b32 v48, v48, v52, s[48:49]")
a("s_mov_b32 exec_hi, 0")
a("buffer_store_dword v48, v8, s[12:15], s44 offen sc1")
a("s_mov_b64 exec, -1")
stamp(4)
a("s_branch LSTQ")
a.label("LSTC")
if OPT["wlate"]:
    a("s_cmp_eq_u32 s31, 0")
    a("s_cbranch_scc0 LSTC0")
    a("s_load_dwordx2 s[32:33], s[0:1], 48")
    a("s_load_dwordx2 s[44:45], s[0:1], 56")
    a("s_load_dwordx2 s[48:49], s[0:1], 64")
    a("v_lshrrev_b32 v4, 2, v1")
    a("v_and_b32 v5, 3, v1")
    a("v_mul_u32_u24 v60, 9216, v4")
    a("v_lshl_add_u32 v60, v5, 4, v60")
    a(f"v_mul_u32_u24 v61, {TS}, v5")
    a("v_and_b32 v5, 3, v4")
    a("v_lshl_add_u32 v61, v5, 5, v61")
    a("v_bfe_u32 v5, v4, 2, 1")
    a("v_lshl_add_u32 v61, v5, 9, v61")
    a("v_lshrrev_b32 v5, 3, v4")
    a("v_lshl_add_u32 v61, v5, 7, v61")
    for k, reg in ((1, 62), (0, 61)):
        a("s_mul_i32 s52, s24, 9")
        a(f"s_add_u32 s52, s52, {k}")
        a("s_lshr_b32 s53, s52, 1")
        a("s_lshl_b32 s53, s53, 10")
        a("s_and_b32 s52, s52, 1")
        a("s_lshl_b32 s52, s52, 8")
        a("s_add_u32 s52, s52, s53")
        a(f"v_add_u32 v{reg}, s52, v61")
    a("s_mul_i32 s52, s24, 9216")
    a(f"s_add_u32 s53, s52, {WD}")
    a("v_add_u32 v63, s53, v3")
    a("s_mul_i32 s53, s28, 18")
    a("s_add_u32 s53, s53, s27")
    a(f"s_mul_i32 s54, s53, {32*1152}")
    a("s_add_u32 s54, s54, s52")
    a("s_lshl_b32 s53, s53, 6")
    a(f"s_mul_i32 s52, s24, {144*9216}")
    a("s_add_u32 s52, s52, s53")
    for d, size in ((32, 576 * 9216), (44, 576 * 9216), (48, 4608 * 1152)):
        a(f"s_mov_b32 s{d+2}, {size}")
        a(f"s_mov_b32 s{d+3}, 0x20000")
    a("s_waitcnt lgkmcnt(0)")
    for d in (32, 44, 48):
        a(f"s_and_b32 s{d+1}, s{d+1}, 0xffff")
    items = []
    if OPT["wlate"] & 1:
        for i in range(9):
            items += [("g", i), ("u", i)]
    if OPT["wlate"] & 2:
        items += [("d", i) for i in range(9)]
    W = 13

    def wl(n):
        kind, i = items[n]
        r = R("v", 8 + 4 * (n % W))
        if kind == "d":
            a(f"buffer_load_dwordx4 {r}, v3, s[48:51], s54 offen{WPOL}")
            a("s_add_u32 s54, s54, 1024")
        else:
            a(f"buffer_load_dwordx4 {r}, v60, {'s[32:35]' if kind == 'g' else 's[44:47]'}, s52 offen{WPOL}")
            if kind == "u":
                a(f"s_add_u32 s52, s52, {16*9216}")
    for n in range(min(W, len(items))):
        wl(n)
    for n in range(len(items)):
        a(f"s_waitcnt vmcnt({min(W, len(items) - n) - 1})")
        kind, i = items[n]
        r = R("v", 8 + 4 * (n % W))
        if kind == "d":
            a(f"ds_write_b128 v63, {r} offset:{i*1024}")
        else:
            a(f"ds_write_b128 v{62 if i & 1 else 61}, {r} offset:{(i>>1)*1024 + (16 if kind == 'u' else 0)}")
        if n + W < len(items):
            a("s_waitcnt lgkmcnt(0)")
            wl(n + W)
    a.label("LSTC0")
a(f"s_mov_b32 s44, {XB}")
a(f"s_mul_i32 s45, s24, {TS}")
lng_addr()
a("v_lshrrev_b32 v5, 4, v1")
a("v_lshlrev_b32 v4, 3, v5")
a("v_bfe_u32 v6, v1, 2, 2")
a("v_add_u32 v4, v4, v6")
a("v_mul_u32_u24 v4, 1152, v4")
a("v_and_b32 v6, 3, v1")
a("v_lshl_add_u32 v4, v6, 3, v4")
a("s_lshl_b32 s44, s24, 7")
a(f"s_add_u32 s44, s44, {WD}")
a("v_add_u32 v4, s44, v4")
a("v_lshlrev_b32 v5, 4, v5")
a(f"v_add_u32 v5, {HB}, v5")
a("s_lshl_b32 s44, s24, 4")
a(f"s_add_u32 s44, s44, {HB}")
a("v_lshlrev_b32 v6, 1, v1")
a("v_add_u32 v6, s44, v6")
a("v_lshrrev_b32 v7, 5, v1")
a("v_mul_u32_u24 v7, 18432, v7")
a("v_and_b32 v59, 31, v1")
a("v_lshl_add_u32 v7, v59, 2, v7")
a("s_mul_i32 s50, s28, 18")
a("s_add_u32 s50, s50, s27")
a("s_lshl_b32 s50, s50, 7")
a("s_mul_i32 s45, s24, 36864")
a("s_add_u32 s50, s50, s45")
a("s_add_u32 s50, s50, s39")
a(f"s_add_u32 s50, s50, {X3}")
a("s_mov_b32 s52, 0xffff0000")
a("s_mov_b32 s53, 0xffff0000")
a("s_mov_b32 s40, 0")
a("s_mov_b32 s41, -1")
a("s_cmp_eq_u32 s24, 3")
if OPT["e2g"]:
    a("s_cbranch_scc0 LC_G")
    a("v_and_b32 v8, 15, v1")
    a("v_mul_u32_u24 v8, 2304, v8")
    a("v_lshrrev_b32 v9, 4, v1")
    a("v_mul_u32_u24 v9, 384, v9")
    a("v_add_u32 v8, v8, v9")
    a(f"s_add_u32 s44, s39, {X2}")
    a("v_mov_b32 v11, 0")
    a.label("LE2W")
    a("buffer_load_dword v10, v8, s[12:15], s44 offen offset:256 sc1")
    if OPT["e2g"] == 2:
        a("s_mov_b32 exec_hi, 0")
        a("buffer_load_dword v11, v8, s[12:15], s44 offen offset:1792 sc1")
        a("s_mov_b64 exec, -1")
    a("s_waitcnt vmcnt(0)")
    a("v_cmp_u_f32 vcc, v10, v11")
    a("s_cbranch_vccz LE2WOK")
    retry("LE2W", "LE2WOK")
    a.label("LE2WOK")
    a("s_barrier")
    a("s_branch LC_BAR")
    a.label("LC_G")
else:
    a("s_cbranch_scc1 LC_BAR")
a("v_lshrrev_b32 v56, 4, v1")
a("v_mul_u32_u24 v56, 2304, v56")
a("v_and_b32 v8, 15, v1")
a("v_lshl_add_u32 v56, v8, 4, v56")
a("s_mul_i32 s48, s24, 768")
a("s_add_u32 s44, s48, s39")
a(f"s_add_u32 s44, s44, {X2}")
for g in range(1, 4):
    a(f"s_add_u32 s{44+g}, s44, {g*9216}")
a("v_bfe_u32 v9, v1, 4, 1")
a("v_lshlrev_b32 v9, 1, v9")
a("v_lshrrev_b32 v10, 5, v1")
a("v_add_u32 v9, v9, v10")
a("v_lshl_add_u32 v9, v8, 2, v9")
a("v_lshrrev_b32 v10, 5, v9")
a("v_lshlrev_b32 v10, 6, v10")
a("v_lshl_add_u32 v10, v9, 1, v10")
a(f"s_add_u32 s49, s48, {LB0+X4}")
a("s_lshr_b32 s48, s48, 1")
a("v_lshlrev_b32 v9, 1, v9")
a("v_add_u32 v9, s48, v9")
a(f"v_add_u32 v59, {XB}, v9")
a("s_cmp_eq_u32 s31, 0")
a("s_cbranch_scc0 LC_X2")
a("s_load_dwordx2 s[32:33], s[0:1], 0")
a("s_mov_b32 s34, 1152")
a("s_mov_b32 s35, 0x20000")
a("s_waitcnt lgkmcnt(0)")
a("s_and_b32 s33, s33, 0xffff")
for c in range(3):
    a(f"buffer_load_ushort v{60+c}, v9, s[32:35], 0 offen offset:{c*128}")
a("s_branch LC_X3")
a.label("LC_X2")
for c in range(3):
    a(f"buffer_load_ushort v{60+c}, v10, s[12:15], s49 offen offset:{c*256} sc1")
a.label("LC_X3")
a("s_waitcnt vmcnt(0)")
for c in range(3):
    a(f"v_lshlrev_b32 v{60+c}, 16, v{60+c}")
if OPT["e2g"]:
    a("s_barrier")
a.label("LE2")
for c in range(3):
    for g in range(4):
        a(f"buffer_load_dwordx4 {R('v', 8+16*c+4*g)}, v56, s[12:15], s{44+g} offen offset:{c*256} sc1")
for c in range(3):
    b = 8 + 16 * c
    a(f"s_waitcnt vmcnt({8-4*c})")
    for r in range(4):
        a(f"v_add_f32 v{b+r}, v{b+r}, v{b+4+r}")
        a(f"v_add_f32 v{b+8+r}, v{b+8+r}, v{b+12+r}")
    for r in range(4):
        a(f"v_add_f32 v{b+r}, v{b+r}, v{b+8+r}")
    if OPT["e1f"] and c < 2:
        a(f"v_cmp_u_f32 vcc, v{b}, v{b+3}")
        a("s_cbranch_vccnz LE2R")
    swapreduce(b)
a("v_add_f32 v9, v8, v24")
a("v_cmp_u_f32 vcc, v9, v40")
a("s_cbranch_vccz LE2OK")
a.label("LE2R")
retry("LE2", "LE2OK")
a.label("LE2OK")
a("s_waitcnt vmcnt(0)")
stamp(5)
for c in range(3):
    bf16r(8 + 16 * c, 8 + 16 * c)
for c in range(3):
    a(f"v_add_f32 v{60+c}, v{60+c}, v{8+16*c}")
for c in range(3):
    a(f"v_cvt_pk_bf16_f32 v{60+c}, v{60+c}, v{60+c}")
for c in range(3):
    a(f"ds_write_b16 v59, v{60+c} offset:{c*128}")
a.label("LC_BAR")
a("s_waitcnt lgkmcnt(0)")
a("s_barrier")
a("s_call_b64 s[36:37], LLNG")


def downB(i):
    for t in range(4):
        s = 8 + 16 * (i & 1) + 4 * t
        a(f"ds_read_b64_tr_b16 {R('v', s, 2)}, v4 offset:{i*512+t*32}")
        a(f"ds_read_b64_tr_b16 {R('v', s+2, 2)}, v4 offset:{i*512+t*32+4*1152}")


a(f"v_mov_b32_dpp v41, v60 row_shl:8{DPPM} bound_ctrl:1")
a("v_cvt_pk_bf16_f32 v41, v60, v41")
a("v_lshlrev_b32 v42, 16, v41")
a("v_and_b32 v41, 0xffff0000, v41")
a("v_max_f32 v42, 0, v42")
a("v_mul_f32 v41, v42, v41")
a("v_cvt_pk_bf16_f32 v41, v41, v41")
a("s_mov_b64 exec, 0xff")
a("ds_write_b16 v6, v41")
a("s_mov_b64 exec, -1")
downB(0)
a("s_waitcnt lgkmcnt(8)")
a("s_barrier")
a("ds_read_b128 v[60:63], v5")
a("s_waitcnt lgkmcnt(5)")
downB(1)


def downG(i, wait):
    a(f"s_waitcnt lgkmcnt({wait})")
    for t in range(4):
        s = 8 + 16 * (i & 1) + 4 * t
        a(f"v_mfma_f32_16x16x32_bf16 {R('v', 40+4*t)}, v[60:63], {R('v', s)}, 0")
    a("v_cndmask_b32 v40, v40, v44, s[52:53]")
    a("v_cndmask_b32 v48, v48, v52, s[52:53]")
    a("v_cndmask_b32 v40, v40, v48, s[40:41]")
    a("buffer_store_dword v40, v7, s[12:15], s50 offen sc1")
    a(f"s_add_u32 s50, s50, {4*36864}")


downG(0, 8)
a("s_cmp_eq_u32 s24, 0")
a("s_cbranch_scc1 LDOWN3")
downG(1, 0)
a("s_branch LSTD")
a.label("LDOWN3")
a("s_waitcnt lgkmcnt(0)")
downB(2)
downG(1, 8)
downG(2, 0)
a.label("LSTD")
stamp(6)
a("s_lshl_b32 s50, s27, 3")
a("s_add_u32 s50, s50, s28")
a("s_cmp_lt_u32 s50, 18")
a("s_cbranch_scc0 LSTQ")
a("s_mul_i32 s44, s50, 18432")
a("s_mul_i32 s45, s24, 4608")
a("s_add_u32 s44, s44, s45")
a("s_add_u32 s44, s44, s39")
a(f"s_add_u32 s44, s44, {X3}")
a("s_add_u32 s45, s44, 4096")
a("v_bfe_u32 v58, v1, 4, 1")
a("v_lshlrev_b32 v58, 1, v58")
a("v_lshrrev_b32 v59, 5, v1")
a("v_add_u32 v58, v58, v59")
a("v_and_b32 v59, 7, v1")
a("v_lshl_add_u32 v58, v59, 2, v58")
a("v_lshlrev_b32 v58, 2, v58")
a("s_lshl_b32 s46, s24, 7")
a(f"s_add_u32 s46, s46, {FB}")
a("v_add_u32 v58, s46, v58")
for r in range(4):
    a(f"v_mov_b32 v{24+r}, 0")
a.label("LE3")
for i in range(4):
    a(f"buffer_load_dwordx4 {R('v', 8+4*i)}, v3, s[12:15], s44 offen offset:{i*1024} sc1")
a("s_mov_b32 exec_hi, 0")
a("buffer_load_dwordx4 v[24:27], v3, s[12:15], s45 offen sc1")
a("s_mov_b64 exec, -1")
a("s_waitcnt vmcnt(0)")
for r in range(4):
    a(f"v_add_f32 v{8+r}, v{8+r}, v{12+r}")
    a(f"v_add_f32 v{16+r}, v{16+r}, v{20+r}")
for r in range(4):
    a(f"v_add_f32 v{8+r}, v{8+r}, v{24+r}")
for r in range(4):
    a(f"v_add_f32 v{8+r}, v{8+r}, v{16+r}")
swapreduce(8)
a(f"v_add_f32_dpp v8, v8, v8 row_ror:8{DPPM}")
a("v_cmp_u_f32 vcc, v8, v8")
a("s_cbranch_vccz LE3OK")
retry("LE3", "LE3OK")
a.label("LE3OK")
stamp(7)
a("ds_write_b32 v58, v8")
a("v_lshlrev_b32 v8, 2, v1")
a(f"v_add_u32 v9, {FB}, v8")
a("s_lshl_b32 s45, s50, 6")
a(f"s_add_u32 s46, s45, {XB}")
a("v_lshlrev_b32 v8, 1, v1")
a("v_add_u32 v10, s46, v8")
a("s_waitcnt lgkmcnt(0)")
a("s_barrier")
a("s_cmp_eq_u32 s24, 0")
a("s_cbranch_scc0 LSTQ")
a("s_mov_b32 exec_hi, 0")
for w in range(4):
    a(f"ds_read_b32 v{12+w}, v9 offset:{128*w}")
a("ds_read_u16 v16, v10")
a("s_waitcnt lgkmcnt(0)")
a("v_lshlrev_b32 v16, 16, v16")
a("v_add_f32 v12, v12, v13")
a("v_add_f32 v14, v14, v15")
a("v_add_f32 v12, v12, v14")
bf16r(12, 12)
a("v_add_f32 v12, v12, v16")
a(f"v_mov_b32_dpp v13, v12 quad_perm:[1,1,3,3]{DPPM}")
a("v_cvt_pk_bf16_f32 v12, v12, v13")
a("s_mov_b32 exec_lo, 0x55555555")
a("s_cmp_eq_u32 s31, 0")
a("s_cbranch_scc0 LFINAL")
a("s_lshl_b32 s45, s50, 7")
a("s_add_u32 s45, s45, s39")
a(f"s_add_u32 s45, s45, {X4}")
a("buffer_store_dword v12, v8, s[12:15], s45 offen sc1")
a("s_mov_b64 exec, -1")
a("s_branch LSTQ")
a.label("LFINAL")
a("buffer_store_dword v12, v8, s[16:19], s45 offen")
a("s_mov_b64 exec, 1")
a("s_cmp_eq_u32 s50, 0")
a("s_cbranch_scc0 LNOEP")
a("v_mov_b32 v9, s29")
a("buffer_store_dword v9, v8, s[12:15], 0 offen sc1")
a.label("LNOEP")
a("s_mov_b64 exec, -1")
a.label("LSTQ")
stamp(8)
a("s_cmp_eq_u32 s31, 0")
a("s_cbranch_scc0 LDONE")
if OPT["npf"]:
    a("s_cmp_lt_u32 s27, 18")
    a("s_cbranch_scc1 LQ5")
    a("v_lshlrev_b32 v34, 7, v1")
    a("s_lshl_b32 s44, s26, 2")
    a("s_add_u32 s44, s44, s24")
    a("s_lshl_b32 s44, s44, 13")
    for n in range(OPT["npf"]):
        a(f"s_add_u32 s45, s44, {(4+n)*UNIT_STEP}")
        a(f"buffer_load_dword v35, v34, s[4:7], s45 offen{PFK}")
        a(f"buffer_load_dword v36, v34, s[8:11], s45 offen{PFV}")
a("s_cmp_ge_u32 s27, 24")
a("s_cbranch_scc0 LQ5")
qprep(X5)
a("s_waitcnt lgkmcnt(0)")
a(f"s_add_u32 s44, s39, {X4}")
a("v_lshrrev_b32 v16, 2, v1")
a("v_lshlrev_b32 v16, 7, v16")
a("v_and_b32 v17, 3, v1")
a("v_lshl_add_u32 v16, v17, 4, v16")
for r in range(4):
    a(f"v_mov_b32 v{12+r}, 0")
a.label("LE4")
a("buffer_load_dwordx4 v[8:11], v16, s[12:15], s44 offen sc1")
a("s_mov_b64 exec, 0xff")
a("buffer_load_dwordx4 v[12:15], v16, s[12:15], s44 offen offset:2048 sc1")
a("s_mov_b64 exec, -1")
a("s_waitcnt vmcnt(0)")
a("v_max3_u32 v17, v8, v9, v10")
a("v_max3_u32 v18, v11, v12, v13")
a("v_max3_u32 v17, v17, v14, v15")
a("v_max_u32 v17, v17, v18")
a("v_cmp_eq_u32 vcc, -1, v17")
a("s_cbranch_vccz LE4OK")
retry("LE4", "LE4OK")
a.label("LE4OK")
stamp(9)
a("s_call_b64 s[36:37], LQSTAGE")
a.label("LQ5")
if STAMPS:
    a("s_memrealtime s[58:59]")
    a("s_waitcnt lgkmcnt(0)")
    a("s_mov_b32 s74, s58")
a("s_mov_b32 s31, 1")
a(f"s_add_u32 s39, s39, {LSTRIDE}")
loopconsts()
a(f"s_mov_b32 s96, {NP2}")
a("s_mov_b32 s91, 0")
a("s_mov_b32 s95, s97")
a("v_lshlrev_b32 v40, 2, v0")
a(f"v_add_u32 v40, {LSV}, v40")
a(f"ds_read_b32 v{VL}, v40")
qpoll_addr(X5)
a("v_lshlrev_b32 v33, 2, v1")
a(f"v_add_u32 v33, {SA}, v33")
a("s_waitcnt lgkmcnt(0)")
if OPT["q1w"]:
    a("s_cmp_eq_u32 s24, 0")
    a("s_cbranch_scc1 LQPOLL")
    a("s_barrier")
    for i in range(4):
        a(f"ds_read_b32 v{24+2*i}, v33 offset:{256*i}")
    a("s_waitcnt lgkmcnt(0)")
    a("s_branch LQREADY2")
else:
    a("s_branch LQPOLL")

a.label("LQSTAGE")
a("ds_write_b128 v2, v[8:11]")
a("s_mov_b64 exec, 0xff")
a("ds_write_b128 v2, v[12:15] offset:1024")
a("s_mov_b64 exec, -1")
a("s_mov_b64 s[52:53], s[36:37]")
a("s_waitcnt lgkmcnt(1)")
a("s_call_b64 s[36:37], LLNG")
a("v_lshlrev_b32 v8, 2, v1")
a("v_mov_b32 v11, s29")
a(f"v_mov_b32_dpp v9, v60 quad_perm:[1,1,3,3]{DPPM}")
a("v_cvt_pk_bf16_f32 v10, v60, v9")
a("s_mov_b64 exec, 0x5555")
a("buffer_store_dwordx2 v[10:11], v8, s[12:15], s54 offen sc1")
a("s_mov_b64 exec, -1")
a("s_setpc_b64 s[52:53]")

a.label("LLNG")
lngemv()
a("s_setpc_b64 s[36:37]")

a.vq = sum((qtags(f"R{q}") for q in range(RN)), [])
for s in range(RN):
    lp, lg, ln, lb, lx = (a.newlabel(x) for x in ("pool", "go", "noapp", "bonly", "next"))
    a.label(f"LRING{s}")
    a(f"s_mov_b32 s3, {s}")
    if OPT["hv"]:
        a(f"s_waitcnt vmcnt({OPT['hv']})")
    ticket_ready()
    if not OPT["lfirst"]:
        a("s_cmp_ge_u32 s90, s55")
        a("s_cbranch_scc1 LRINGX")
        a("s_cmp_ge_u32 s101, s37")
        a("s_cbranch_scc1 LRINGX")
    a("s_cmp_lt_u32 s91, s92")
    a(f"s_cbranch_scc0 {lp}")
    if OPT["lrev"]:
        a("s_sub_u32 s92, s92, 1")
        a(f"v_readlane_b32 s32, v{VL}, s92")
    else:
        a(f"v_readlane_b32 s32, v{VL}, s91")
        a("s_add_u32 s91, s91, 1")
    a(f"s_branch {lg}")
    a.label(lp)
    if OPT["lfirst"]:
        a("s_cmp_ge_u32 s90, s55")
        a("s_cbranch_scc1 LRINGX")
        a("s_cmp_ge_u32 s101, s37")
        a("s_cbranch_scc1 LRINGX")
    draw(s, f"LDRAINE{s}")
    a.label(lg)
    setaddr(32, 32)
    a("s_add_u32 s101, s101, 1")
    a(f"s_bitcmp1_b32 s95, {s}")
    a(f"s_cbranch_scc0 {lb}")
    unit("v", RING[s], f"R{s}", f"R{s}n")
    logt()
    q1 = [(t[0].rstrip("n"), t[1], t[2]) for t in a.vq]
    a(f"s_branch LRING{(s+1)%RN}")
    a.label(lb)
    a(f"s_bitset1_b32 s95, {s}")
    for t in range(8):
        ldK("v", RING[s], t, "x")
    for t in range(8):
        ldV("v", RING[s], t, "x")
    a(f"s_branch LRING{(s+1)%RN}")
    a.vq = q1
a.label("LRINGX")
for k in range(1, NB + 1):
    a(f"s_cmp_eq_u32 s36, {k}")
    a(f"s_cbranch_scc1 LRET{k}")
a(f"s_branch LRET{NB+1}")

for s in range(RN):
    a.label(f"LDRAINE{s}")
    a("v_mov_b32 v48, 0")
    a("buffer_load_dword v49, v48, s[20:23], 0 offen sc1")
    a("s_mov_b32 s93, 0")
    a("s_mov_b64 s[98:99], 0")
    a("s_atomic_add_x2 s[98:99], s[88:89], 16 glc")
    a("s_bcnt1_i32_b32 s44, s97")
    a("s_sub_u32 s92, s94, s44")
    a(f"s_branch LDRAIN{s}")
for s in range(RN):
    a.label(f"LDRAIN{s}")
    lsk = a.newlabel("dsk")
    a(f"s_bitcmp1_b32 s95, {s}")
    a(f"s_cbranch_scc0 {lsk}")
    unit_drain(RING[s])
    a.label(lsk)
    a("s_add_u32 s93, s93, 1")
    a(f"s_cmp_eq_u32 s93, {RN}")
    a("s_cbranch_scc1 LPASSEND")
a("s_branch LDRAIN0")

a.label("LDONE")
if OPT["enc"]:
    a("s_or_b32 s44, s2, s24")
    a("s_cmp_eq_u32 s44, 0")
    a("s_cbranch_scc0 LEND")
    a("s_memrealtime s[58:59]")
    a("s_waitcnt lgkmcnt(0)")
    a("s_sub_u32 s44, s58, s64")
    a("s_sub_u32 s44, s44, 4000")
    a("s_mul_hi_u32 s44, s44, 42949673")
    a("s_mul_i32 s44, s44, 5000")
    a("s_sub_u32 s45, s64, s100")
    a("s_add_u32 s44, s44, s45")
    a("s_add_u32 s44, s44, 12000")
    a.label("LENC")
    a("s_memrealtime s[58:59]")
    a("s_waitcnt lgkmcnt(0)")
    a("s_sub_u32 s58, s58, s100")
    a("s_cmp_lt_u32 s58, s44")
    a("s_cbranch_scc1 LENC")
if OPT["padto"]:
    if OPT["padmin"]:
        a("s_mov_b32 s100, 0")
        a("s_atomic_add s100, s[84:85], 64 glc")
        a("s_waitcnt lgkmcnt(0)")
        a("s_not_b32 s100, s100")
    a.label("LPAD")
    a("s_memrealtime s[58:59]")
    a("s_waitcnt lgkmcnt(0)")
    a("s_sub_u32 s58, s58, s100")
    a(f"s_cmp_lt_u32 s58, {OPT['padto']*100}")
    a("s_cbranch_scc1 LPAD")
if STAMPS:
    a("s_memrealtime s[58:59]")
    a("s_waitcnt lgkmcnt(0)")
    a("s_mov_b32 s87, s58")
    a("s_lshl_b32 s44, s2, 2")
    a("s_add_u32 s44, s44, s24")
    a("s_lshl_b32 s44, s44, 7")
    a(f"s_add_u32 s44, s44, {STAMP_OFF}")
    a("v_mov_b32 v8, 0")
    a("s_mov_b64 exec, 1")
    for i in range(24):
        a(f"v_mov_b32 v9, s{64+i}")
        a(f"buffer_store_dword v9, v8, s[12:15], s44 offen offset:{4*i}")
    a("v_mov_b32 v9, s100")
    a("buffer_store_dword v9, v8, s[12:15], s44 offen offset:96")
    for i, r in enumerate((57, 92, 57, 57, 57, 94)):
        a(f"v_mov_b32 v9, s{r}")
        a(f"buffer_store_dword v9, v8, s[12:15], s44 offen offset:{100+4*i}")
    if OPT["dbgout"]:
        a("s_or_b32 s44, s2, s24")
        a("s_cmp_eq_u32 s44, 0")
        a("s_cbranch_scc0 LEND")
        for i, r in enumerate((64, 65, 76, 77, 87)):
            a(f"s_sub_u32 s44, s{r}, s100")
            a("v_mov_b32 v9, s44")
            a(f"buffer_store_dword v9, v8, s[20:23], 0 offen offset:{4+4*i}")
        a("s_mov_b64 exec, 0xffff")
        a("v_lshlrev_b32 v10, 8, v1")
        a(f"s_mov_b32 s44, {CTR}")
        a("buffer_load_dwordx2 v[12:13], v10, s[12:15], s44 offen offset:16 sc1")
        a("s_waitcnt vmcnt(0)")
        a("v_cmp_gt_i32 s[46:47], v12, 0")
        a("v_cmp_gt_i32 s[48:49], v13, 0")
        a("s_mov_b64 exec, 1")
        a("v_mov_b32 v9, s46")
        a("buffer_store_dword v9, v8, s[20:23], 0 offen offset:24")
        a("v_mov_b32 v9, s48")
        a("buffer_store_dword v9, v8, s[20:23], 0 offen offset:28")
        for i, l in enumerate((0, 5, 10, 15)):
            for j in range(2):
                a(f"v_readlane_b32 s44, v{12+j}, {l}")
                a("s_add_u32 s44, s44, 100000")
                a("v_mov_b32 v9, s44")
                a(f"buffer_store_dword v9, v8, s[20:23], 0 offen offset:{32+8*i+4*j}")
    a("s_waitcnt vmcnt(0)")
a.label("LEND")
a("s_endpgm")

hdr = open("cdna_kernels/" + NAME + ".s.ref").read().split("\n")
top = [l for l in hdr if l.startswith(";") and "@launch" not in l]
out = "\n".join(top) + "\n"
out += f"; @launch grid=(256,1,1) block=(256,1,1) lds={LDS_SIZE}\n"
out += f""".amdgcn_target "amdgcn-amd-amdhsa--gfx950"
.text
.globl {NAME}_kernel
.p2align 8
.type {NAME}_kernel,@function
"""
out += a.text()
out += f""".section .rodata,"a"
.p2align 6
.amdhsa_kernel {NAME}_kernel
  .amdhsa_next_free_vgpr 512
  .amdhsa_next_free_sgpr 102
  .amdhsa_accum_offset 256
  .amdhsa_group_segment_fixed_size 0
  .amdhsa_kernarg_size 96
  .amdhsa_user_sgpr_count 2
  .amdhsa_user_sgpr_kernarg_segment_ptr 1
  .amdhsa_system_sgpr_workgroup_id_x 1
.end_amdhsa_kernel
"""
import re
if OPT["xl"]:
    out = re.sub(r"(buffer_load\S+ .*) sc1$", r"\1 sc0 sc1", out, flags=re.M)
if OPT["xs"]:
    out = re.sub(r"(buffer_store\S+ .*) sc1$", r"\1 sc0 sc1", out, flags=re.M)
open(sys.argv[1], "w").write(out)
```

```python
import sys, struct, math
from asmlib import Asm

NAME = "interleave_layers__gqa_block_cached__glu_gated_reglu__decode"
OPT = dict(stamps=0, p2rev=0, kvpol="nt", wpol="nt", wskip=0, vring="def", kring="nt", tfw=3, psleep=1, npf=0, thrp=80, pr=1110, eg=0, gv=8, xl=0, xs=0, padto=0, xnt=0, enc=0, wlate=2, e2g=1, q1w=1, lfirst=1, lrev=0, rn=1, rbal=1, hsw=0, sline=1, tk2=0, klate=1, wcl=0, hv=0, lv=0, alt=3, e1f=1, mixx=1, rot=0, padmin=0, cn=1, vote=1, avpol="def", forcecls=-1, dbgout=0, pfk="nt", pfv="def")
for arg in sys.argv[2:]:
    k, v = arg.split("=")
    OPT[k] = int(v) if v.lstrip("-").isdigit() else v
STAMPS = OPT["stamps"]
TKI = 2 if OPT["tk2"] else 1
KVPOL = "" if OPT["kvpol"] == "def" else " " + OPT["kvpol"]
WPOL = "" if OPT["wpol"] == "def" else " " + OPT["wpol"]
PFK = "" if OPT["pfk"] == "def" else " " + OPT["pfk"]
PFV = "" if OPT["pfv"] == "def" else " " + OPT["pfv"]


def f32(x):
    return "0x%08x" % struct.unpack("<I", struct.pack("<f", x))[0]


X0 = 0x1000
X5 = 0x9000
CTR = 0x11000
LB0 = 0x20000
LSTRIDE = 0xC0000
X1 = 0x0
X1S = 1280
X2 = 0x50000
X3 = 0x59000
X4 = 0xAA000
STAMP_OFF = 0x200000
WS_SIZE = 0x400000
RN = OPT["rn"]
NR = 14 - 2 * RN
NB = NR + 1
PB = 256 + 64 * NB
NP1 = 2048 - PB
TF = NP1 - OPT["tfw"] * 64
NP2 = 128 + TF // 2
THR0 = 32
THRS = (NP2 * OPT["thrp"] // 100 - THR0) // NB
WGU = 0
TS = 18432
WD = 73728
FB = 110592
HB = 111104
WO = 0
WOS = 8192
WQ = 49152
SA = 122880
CB1 = SA
CS1 = SA + 4096
XB = SA
OB = 127488
LSV = 128000
ONES = 129088
KL = 130304
LDS_SIZE = 163072

UNIT_STEP = 524288
DPPM = " row_mask:0xf bank_mask:0xf"
a = Asm()
stamp_n = [0]


def stamp(i):
    if not STAMPS:
        return
    a("s_memrealtime s[58:59]")
    a("s_waitcnt lgkmcnt(0)")
    lab = a.newlabel("st")
    a(f"s_mov_b32 s{64+12+i}, s58")
    a("s_cmp_eq_u32 s31, 0")
    a(f"s_cbranch_scc0 {lab}")
    a(f"s_mov_b32 s{64+i}, s58")
    a.label(lab)


def sstamp(reg):
    if True:
        return
    a("s_memrealtime s[58:59]")
    a("s_waitcnt lgkmcnt(0)")
    a(f"s_mov_b32 s{reg}, s58")


def logt():
    if STAMPS != 2:
        return
    a("s_memrealtime s[58:59]")
    a("s_waitcnt lgkmcnt(0)")
    a("s_mov_b32 m0, s93")
    a("s_add_u32 s93, s93, 1")
    a("s_min_u32 s93, s93, 63")
    a("v_writelane_b32 v51, s58, m0")


def R(kind, base, n=4):
    return f"{kind}[{base}:{base+n-1}]"


def srd(d, lo, hi, size):
    a(f"s_mov_b32 s{d}, s{lo}")
    a(f"s_and_b32 s{d+1}, s{hi}, 0xffff")
    a(f"s_mov_b32 s{d+2}, {size}")
    a(f"s_mov_b32 s{d+3}, 0x20000")


def srd_role(d, lo, hi, size):
    a(f"s_cselect_b32 s{d+2}, {size}, 0")
    a(f"s_mov_b32 s{d}, s{lo}")
    a(f"s_and_b32 s{d+1}, s{hi}, 0xffff")
    a(f"s_mov_b32 s{d+3}, 0x20000")


def ld(kind, reg, t, src, half, pol, tag):
    if OPT["lv"] and (t & 1) == 0:
        a(f"s_waitcnt vmcnt({OPT['lv']})")
    srd_, vo = {"K": ("s[4:7]", "v2"), "K2": ("s[60:63]", "v51"), "V": ("s[8:11]", "v3")}[src]
    a(f"buffer_load_dwordx4 {R(kind, reg+4*t)}, {vo}, {srd_}, s{32+2*half+(t>>2)} offen offset:{(t&3)*1024}{pol}", tag=tag)


VPOL = "" if OPT["vring"] == "def" else " nt"


def XPOL(i):
    return " nt" if (OPT["xnt"] >> i) & 1 else VPOL


def ldK(kind, base, t, tag):
    ld(kind, base, t, "K", 0, " nt", (tag, "K", t))


def ldV(kind, base, t, tag):
    ld(kind, base + 32, t, "V", 1, ("" if OPT["avpol"] == "def" else " nt") if kind == "a" else VPOL, (tag, "V", t))


def adv():
    for r in range(32, 36):
        a(f"s_add_u32 s{r}, s{r}, {UNIT_STEP}")


def setaddr(k, v):
    if v is not None:
        if OPT["hsw"]:
            a(f"s_or_b32 s34, s{v}, vcc_hi")
        elif v != 34:
            a(f"s_mov_b32 s34, s{v}")
        a("s_xor_b32 s35, s34, 4096")
    if k is not None:
        if OPT["hsw"]:
            a(f"s_or_b32 s32, s{k}, vcc_hi")
        elif k != 32:
            a(f"s_mov_b32 s32, s{k}")
        a("s_xor_b32 s33, s32, 4096")


def hswinit():
    if OPT["hsw"]:
        a("s_and_b32 vcc_hi, s24, 1")
        a("s_lshl_b32 vcc_hi, vcc_hi, 12")


def burst(kind, base, tag):
    for t in range(8):
        ldK(kind, base, t, tag)
    for t in range(8):
        ldV(kind, base, t, tag)
    adv()
    logt()


def waitq(tag, floor=0):
    if tag in a.vq:
        a.wait_vm(tag, floor)


def allreduce(op, v, t, first=0):
    steps = ["quad_perm:[1,0,3,2]", "quad_perm:[2,3,0,1]", "row_half_mirror", "row_mirror"]
    for s in steps[first:]:
        a(f"{op}_dpp v{v}, v{v}, v{v} {s}{DPPM}")
    rows(op, v, t)


def rows(op, v, t):
    a(f"v_mov_b32 v{t}, v{v}")
    a(f"v_permlane16_swap_b32 v{v}, v{t}")
    a(f"{op} v{v}, v{v}, v{t}")
    a(f"v_mov_b32 v{t}, v{v}")
    a(f"v_permlane32_swap_b32 v{v}, v{t}")
    a(f"{op} v{v}, v{v}, v{t}")


QE, QO, OA, MS, LS, NMC = 8, 12, 16, 20, 21, 22
DS_ = [24, 28, 32, 36]
TT = 40
TMP = 44


def unit2(K, V, kt=None, vt=None, rk=None, rv=None, hooks=None, tt=TT):
    if K is not None:
        if hooks:
            hooks[0]()
        for u in range(4):
            if kt:
                waitq(kt(2 * u + 1))
            d = R("v", DS_[u])
            a(f"v_mfma_f32_16x16x32_bf16 {d}, {R(K[0], K[1]+8*u)}, {R('v', QE)}, 0")
            a(f"v_mfma_f32_16x16x32_bf16 {d}, {R(K[0], K[1]+8*u+4)}, {R('v', QO)}, {d}")
            if rk:
                rk(2 * u)
                rk(2 * u + 1)
        order = [(0, 0), (1, 0), (2, 0), (0, 1), (1, 1), (2, 1), (0, 2), (1, 2), (3, 0), (2, 2), (0, 3), (3, 1),
                 (1, 3), (2, 3), (3, 2), None, (3, 3)]
        for o in order:
            if o is None:
                if V is not None:
                    a(f"v_max3_f32 v{TMP}, v{tt}, v{tt+1}, v{MS}")
                continue
            u, c = o
            qp = f"quad_perm:[{c},{c},{c},{c}]"
            if c == 0:
                a(f"v_mov_b32_dpp v{tt+u}, v{DS_[u]} {qp}{DPPM}")
            else:
                a(f"v_add_f32_dpp v{tt+u}, v{DS_[u]+c}, v{tt+u} {qp}{DPPM}")
    if V is None:
        return
    if K is None:
        a(f"v_max3_f32 v{TMP}, v{tt}, v{tt+1}, v{MS}")
    a(f"v_max3_f32 v{TMP}, v{TMP}, v{tt+2}, v{tt+3}")
    a(f"v_max_f32_dpp v{TMP}, v{TMP}, v{TMP} row_half_mirror{DPPM}")
    rows("v_max_f32", TMP, TMP + 1)
    a(f"v_sub_f32 v{TMP+1}, v{MS}, v{TMP}")
    a(f"v_mul_f32 v{TMP+1}, s30, v{TMP+1}")
    a(f"v_exp_f32 v{TMP+1}, v{TMP+1}")
    a(f"v_mov_b32 v{MS}, v{TMP}")
    a(f"v_mul_f32 v{NMC}, s30, v{TMP}")
    for u in range(4):
        a(f"v_fma_f32 v{tt+u}, v{tt+u}, s30, -v{NMC}")
    for u in range(4):
        a(f"v_exp_f32 v{tt+u}, v{tt+u}")
    a(f"v_mul_f32 v{LS}, v{LS}, v{TMP+1}")
    for r in range(4):
        a(f"v_mul_f32 v{OA+r}, v{OA+r}, v{TMP+1}")
    a(f"v_add_f32 v{TMP+2}, v{tt}, v{tt+1}")
    a(f"v_add_f32 v{TMP+3}, v{tt+2}, v{tt+3}")
    for u in range(4):
        a(f"v_cvt_pk_bf16_f32 v{tt+u}, v{tt+u}, v{tt+u}")
    a(f"v_add_f32 v{TMP+2}, v{TMP+2}, v{TMP+3}")
    a(f"v_add_f32 v{LS}, v{LS}, v{TMP+2}")

    def buildB(t):
        b = DS_[t & 3]
        p = tt + (t >> 1)
        for i in range(4):
            own = (i < 2) == ((t & 1) == 0)
            if own:
                a(f"v_and_b32 v{b+i}, v{p}, v{4+i}")
            else:
                sh = "row_shr:4" if (t & 1) == 0 else "row_shl:4"
                a(f"v_and_b32_dpp v{b+i}, v{p}, v{4+i} {sh}{DPPM} bound_ctrl:1")

    buildB(0)
    if hooks:
        hooks[1]()
    for t in range(8):
        if t + 1 < 8:
            buildB(t + 1)
        if vt:
            waitq(vt(t))
        a(f"v_mfma_f32_16x16x32_bf16 {R('v', OA)}, {R(V[0], V[1]+4*t)}, {R('v', DS_[t&3])}, {R('v', OA)}")
        if rv:
            rv(t)


def unit(kind, base, tag, reload_tag=None, hooks=None):
    rk = rv = None
    if reload_tag is not None:
        rk = lambda t: ldK(kind, base, t, reload_tag)
        rv = lambda t: ldV(kind, base, t, reload_tag)
    unit2((kind, base), (kind, base + 32), lambda t: (tag, "K", t), lambda t: (tag, "V", t), rk, rv, hooks)


probe_k = [0]


def probe(kind="V"):
    k = probe_k[0]
    probe_k[0] += 1
    srd_, base = ("s[8:11]", 55) if kind == "V" else ("s[4:7]", 96)
    for c in ((0, 1) if k & 1 else (1, 0)):
        a(f"s_add_u32 s50, s57, {(c ^ 1)*8192 + k*1152}")
        a("s_memtime s[52:53]")
        a("s_waitcnt lgkmcnt(0)")
        a(f"s_buffer_load_dword s51, {srd_}, s50")
        a("s_waitcnt lgkmcnt(0)")
        a("s_memtime s[50:51]")
        a("s_waitcnt lgkmcnt(0)")
        a("s_sub_u32 s50, s50, s52")
        a(f"s_min_u32 s{base+c}, s{base+c}, s50")


def qtags(tag):
    return [(tag, "K", t) for t in range(8)] + [(tag, "V", t) for t in range(8)]


RING = [64, 128, 192]


def bf16r(d, s):
    a(f"v_cvt_pk_bf16_f32 v{d}, v{s}, v{s}")
    a(f"v_and_b32 v{d}, 0xffff0000, v{d}")


def afrag_addr(v, base_sgpr=None, base=0):
    a(f"v_lshrrev_b32 v{v}, 4, v1")
    a(f"v_lshlrev_b32 v{v}, 4, v{v}")
    if base:
        a(f"v_add_u32 v{v}, {base}, v{v}")
    if base_sgpr is not None:
        a(f"v_add_u32 v{v}, s{base_sgpr}, v{v}")


def lng_addr():
    a("v_add_u32 v2, s44, v3")
    a("v_mov_b32 v57, s44")
    a(f"v_mov_b32 v58, {ONES}")
    a("s_mov_b32 s46, 0x00020002")
    a("s_mov_b32 s47, 0x00020002")
    a("v_cndmask_b32 v57, v57, v58, s[46:47]")
    a("v_lshrrev_b32 v58, 4, v1")
    a("v_lshl_add_u32 v57, v58, 4, v57")
    a("v_lshlrev_b32 v58, 3, v1")
    a("v_add_u32 v58, s45, v58")


def lngemv():
    S, nk, T, acc = 4, 18, 8, 60
    s, q, t, t2, one = 48, 49, 50, 51, 52
    f = []
    for i in range(8):
        f.append(f"v_dot2c_f32_bf16 v{s}, v{40+i}, v{one}")
        f.append(f"v_dot2c_f32_bf16 v{q}, v{40+i}, v{40+i}")
    f.append("s_nop 1")
    for st in ("quad_perm:[1,0,3,2]", "quad_perm:[2,3,0,1]", "row_half_mirror", "row_mirror"):
        f.append(f"v_add_f32_dpp v{s}, v{s}, v{s} {st}{DPPM}")
        f.append(f"v_add_f32_dpp v{q}, v{q}, v{q} {st}{DPPM}")
    f.append(f"v_permlane16_swap_b32 v{s}, v{q}")
    f.append(f"v_add_f32 v{s}, v{s}, v{q}")
    f.append(f"v_mov_b32 v{t}, v{s}")
    f.append(f"v_permlane32_swap_b32 v{s}, v{t}")
    f.append(f"v_add_f32 v{s}, v{s}, v{t}")
    f.append(f"v_mul_f32 v{s}, {f32(1.0/576)}, v{s}")
    f.append(f"v_mov_b32 v{q}, v{s}")
    f.append(f"v_permlane16_swap_b32 v{s}, v{q}")
    f.append(f"v_fma_f32 v{q}, -v{s}, v{s}, v{q}")
    f.append(f"v_max_f32 v{q}, 0, v{q}")
    f.append(f"v_cvt_pk_bf16_f32 v{q}, v{s}, v{q}")
    f.append(f"v_lshlrev_b32 v{s}, 16, v{q}")
    f.append(f"v_and_b32 v{q}, 0xffff0000, v{q}")
    for op in (f"v_add_f32 v{q}, {f32(1e-5)}, v{q}", f"v_sqrt_f32 v{q}, v{q}"):
        f.append(op)
        f.append(f"v_cvt_pk_bf16_f32 v{q}, v{q}, v{q}")
        f.append(f"v_and_b32 v{q}, 0xffff0000, v{q}")
    f.append(f"v_rcp_f32 v{q}, v{q}")

    def issue(kk):
        z = T + 8 * (kk % S)
        a(f"ds_read_b128 {R('v', z)}, v57 offset:{kk*64}")
        a(f"ds_read_b64_tr_b16 {R('v', z+4, 2)}, v58 offset:{kk*1024}")
        a(f"ds_read_b64_tr_b16 {R('v', z+6, 2)}, v58 offset:{kk*1024+512}")

    for r in range(4):
        a(f"v_mov_b32 v{44+r}, 0")
    a("ds_read_b128 v[40:43], v2")
    a("s_mov_b64 exec, 0xff")
    a("ds_read_b128 v[44:47], v2 offset:1024")
    a("s_mov_b64 exec, -1")
    for kk in range(S):
        issue(kk)
    a(f"v_mov_b32 v{s}, 0")
    a(f"v_mov_b32 v{q}, 0")
    a(f"v_mov_b32 v{one}, 0x3f803f80")
    per = -(-len(f) // (nk // 2 + 1))
    for kk in range(0, nk, 2):
        a(f"s_waitcnt lgkmcnt({3*(min(nk, kk+S)-kk-2)})")
        for k2 in (kk, kk + 1):
            z = T + 8 * (k2 % S)
            c = "0" if k2 == 0 else R("v", acc)
            a(f"v_mfma_f32_16x16x32_bf16 {R('v', acc)}, {R('v', z)}, {R('v', z+4)}, {c}")
        for k2 in (kk, kk + 1):
            if k2 + S < nk:
                issue(k2 + S)
        for _ in range(per):
            if f:
                a(f.pop(0))
    while f:
        a(f.pop(0))
    a(f"v_fma_f32 v60, -v{s}, v61, v60")
    a(f"v_mul_f32 v60, v60, v{q}")


def retry(lab_again, lab_done):
    a("s_cmp_eq_u32 s38, 0")
    a(f"s_cbranch_scc1 {lab_done}")
    a("s_sub_u32 s38, s38, 1")
    if OPT["psleep"]:
        a(f"s_sleep {OPT['psleep']}")
    a(f"s_branch {lab_again}")


def combine(CB, CS):
    a("v_lshlrev_b32 v8, 2, v0")
    a(f"v_add_u32 v8, {CB}, v8")
    a("s_lshr_b32 s44, s24, 1")
    a("s_lshl_b32 s44, s44, 5")
    a(f"s_add_u32 s44, s44, {CS}")
    a("v_mov_b32 v9, s44")
    a("ds_read_b128 v[12:15], v9")
    a("ds_read_b128 v[16:19], v9 offset:16")
    for w in range(4):
        a(f"ds_read_b32 v{20+w}, v8 offset:{w*1024}")
    a("s_waitcnt lgkmcnt(4)")
    a("v_max3_f32 v26, v12, v14, v16")
    a("v_max_f32 v26, v26, v18")
    for w in range(4):
        a(f"v_sub_f32 v{12+2*w}, v{12+2*w}, v26")
    for w in range(4):
        a(f"v_exp_f32 v{12+2*w}, v{12+2*w}")
    a("v_mul_f32 v27, v13, v12")
    for w in range(1, 4):
        a(f"v_fmac_f32 v27, v{13+2*w}, v{12+2*w}")
    a("s_waitcnt lgkmcnt(0)")
    a("v_mul_f32 v24, v20, v12")
    for w in range(1, 4):
        a(f"v_fmac_f32 v24, v{20+w}, v{12+2*w}")


def qpoll_issue():
    a("buffer_load_dwordx4 v[24:27], v32, s[12:15], s45 offen sc1", tag="qp")
    a("buffer_load_dwordx4 v[28:31], v32, s[12:15], s45 offen offset:16 sc1", tag="qp")


def qpoll_addr(xoff):
    a("s_lshl_b32 s45, s25, 11")
    a(f"s_add_u32 s45, s45, {xoff}")
    a("v_bfe_u32 v32, v1, 3, 1")
    a("v_lshlrev_b32 v32, 10, v32")
    a("v_lshrrev_b32 v33, 4, v1")
    a("v_lshl_add_u32 v32, v33, 8, v32")
    a("v_bfe_u32 v33, v1, 1, 1")
    a("v_lshl_add_u32 v32, v33, 7, v32")
    a("v_and_b32 v33, 1, v1")
    a("v_lshl_add_u32 v32, v33, 5, v32")


def qpoll_check():
    a("v_cmp_ne_u32 s[46:47], s29, v25")
    a("v_cmp_ne_u32 s[48:49], s29, v27")
    a("v_cmp_ne_u32 s[50:51], s29, v29")
    a("v_cmp_ne_u32 s[52:53], s29, v31")
    a("s_or_b64 s[46:47], s[46:47], s[48:49]")
    a("s_or_b64 s[50:51], s[50:51], s[52:53]")
    a("s_or_b64 s[46:47], s[46:47], s[50:51]")


VL = 50


def unit_drain(base):
    def pwait(last):
        labs = [a.newlabel("dw") for _ in range(RN - 1)]
        for p in range(RN - 1):
            a(f"s_cmp_eq_u32 s93, {p}")
            a(f"s_cbranch_scc1 {labs[p]}")
        a(f"s_waitcnt vmcnt({last})")
        for p in reversed(range(RN - 1)):
            a.label(labs[p])
            a(f"s_waitcnt vmcnt({last + 16*(RN-1-p)})")
    a.vq = []
    unit("v", base, "none", None, hooks=(lambda: pwait(9), lambda: pwait(1)))


def kloc(i):
    return ("a", 32 * i) if i < 8 else ("v", 64 + 64 * RN + 32 * (i - 8))


def swapreduce(b):
    a(f"v_permlane32_swap_b32 v{b}, v{b+1}")
    a(f"v_permlane32_swap_b32 v{b+2}, v{b+3}")
    a(f"v_add_f32 v{b}, v{b}, v{b+1}")
    a(f"v_add_f32 v{b+2}, v{b+2}, v{b+3}")
    a(f"v_permlane16_swap_b32 v{b}, v{b+2}")
    a(f"v_add_f32 v{b}, v{b}, v{b+2}")


def kofs():
    a("v_bfe_u32 v40, v1, 2, 2")
    a("v_lshlrev_b32 v2, 8, v40")
    a("v_lshrrev_b32 v40, 4, v1")
    a("v_lshl_add_u32 v2, v40, 6, v2")
    a("v_and_b32 v40, 3, v1")
    a("v_lshl_add_u32 v2, v40, 4, v2")


def masks():
    a("v_and_b32 v40, 1, v1")
    a("v_lshlrev_b32 v40, 4, v40")
    a("v_mov_b32 v41, 0xffff")
    a("v_lshlrev_b32 v40, v40, v41")
    for i in range(4):
        m = 0x03030303 << (2 * i)
        a(f"s_mov_b32 s46, 0x{m:08x}")
        a(f"s_mov_b32 s47, 0x{m:08x}")
        a(f"v_cndmask_b32 v{4+i}, 0, v40, s[46:47]")


def loopconsts():
    kofs()
    masks()


def qprep(xoff):
    a("s_mul_i32 s44, s24, 1152")
    a(f"s_add_u32 s44, s44, {XB}")
    a(f"s_mul_i32 s45, s24, {TS}")
    a(f"s_add_u32 s45, s45, {WQ}")
    lng_addr()
    a("s_lshl_b32 s54, s28, 3")
    a("s_add_u32 s54, s54, s27")
    a("s_sub_u32 s54, s54, 24")
    a("s_lshl_b32 s54, s54, 2")
    a("s_add_u32 s54, s54, s24")
    a("s_lshl_b32 s54, s54, 7")
    a(f"s_add_u32 s54, s54, {xoff}")


def ones_init():
    for r in range(4):
        a(f"v_mov_b32 v{16+r}, 0x3f803f80")
    a(f"v_add_u32 v20, {ONES}, v3")
    a("ds_write_b128 v20, v[16:19]")
    a("s_mov_b64 exec, 0xff")
    a("ds_write_b128 v20, v[16:19] offset:1024")
    a("s_mov_b64 exec, -1")


a.raw(f"{NAME}_kernel:")
a("s_cmp_ge_u32 s2, 256")
a("s_cbranch_scc1 LEND")
if STAMPS or OPT["padto"] or OPT["enc"]:
    a("s_memrealtime s[100:101]")
a("s_load_dwordx16 s[64:79], s[0:1], 0")
a("s_load_dwordx8 s[80:87], s[0:1], 64")
a("v_and_b32 v1, 63, v0")
a("v_lshrrev_b32 v40, 6, v0")
a("v_readfirstlane_b32 s24, v40")
a("s_and_b32 s28, s2, 7")
if OPT["rbal"]:
    a("s_lshr_b32 s27, s2, 4")
    a("s_and_b32 s44, s2, 15")
    a("s_lshl_b32 s44, s44, 1")
    a("s_add_u32 s27, s27, s44")
else:
    a("s_lshr_b32 s27, s2, 3")
    a("s_lshl_b32 s44, s28, 2")
    a("s_add_u32 s27, s27, s44")
a("s_and_b32 s27, s27, 31")
a("s_lshr_b32 s25, s2, 4")
a("s_and_b32 s26, s2, 15")
a(f"s_mov_b32 s30, {f32(math.log2(math.e)/math.sqrt(128.0))}")
a("s_mov_b32 s31, 0")
a("s_mov_b32 s38, 400000")
a(f"s_mov_b32 s39, {LB0}")
a("s_mov_b32 s42, 0xf0f0f0f0")
a("s_mov_b32 s43, 0xf0f0f0f0")
a("s_lshl_b32 s44, s26, 2")
a("s_add_u32 s44, s44, s24")
a("s_lshl_b32 s32, s44, 13")
hswinit()
setaddr(32, 32)
a("s_lshl_b32 s57, s44, 14")
a(f"s_add_u32 s57, s57, {1920*8192}")
a("s_mov_b32 s55, -1")
a("s_mov_b32 s56, -1")
a("s_mov_b32 s96, -1")
a("s_mov_b32 s97, -1")
a("v_lshlrev_b32 v3, 4, v1")
kofs()
a("s_waitcnt lgkmcnt(0)")
a("s_load_dword s29, s[86:87], 0")
if OPT["padmin"]:
    a("s_not_b32 s101, s100")
    a("s_atomic_umax s101, s[84:85], 64")
a("s_lshl_b32 s44, s25, 24")
a("s_add_u32 s4, s66, s44")
a("s_addc_u32 s5, s67, 0")
a("s_and_b32 s5, s5, 0xffff")
a("s_mov_b32 s6, 0x1000000")
a("s_mov_b32 s7, 0x20000")
a("s_add_u32 s8, s68, s44")
a("s_addc_u32 s9, s69, 0")
a("s_and_b32 s9, s9, 0xffff")
a("s_mov_b32 s10, 0x1000000")
a("s_mov_b32 s11, 0x20000")
srd(12, 86, 87, WS_SIZE)
a("s_cmp_ge_u32 s27, 24")
a("s_cbranch_scc0 LPRO1")
srd(60, 64, 65, 1152)
srd(92, 70, 71, 0 if OPT["wskip"] & 8 else 576 * 8192)
a("v_lshrrev_b32 v41, 3, v1")
a("v_lshlrev_b32 v40, 13, v41")
a("v_and_b32 v42, 7, v1")
a("v_lshl_add_u32 v40, v42, 4, v40")
a("s_lshl_b32 s46, s28, 3")
a("s_add_u32 s46, s46, s27")
a("s_sub_u32 s46, s46, 24")
a("s_lshl_b32 s44, s46, 7")
a(f"s_mul_i32 s45, s24, {144*8192}")
a("s_add_u32 s44, s44, s45")
for i in range(18):
    a(f"buffer_load_dwordx4 {R('v', 64+4*i)}, v40, s[92:95], s44 offen{WPOL}")
    a("s_add_u32 s44, s44, 65536")
a("buffer_load_dwordx4 v[8:11], v3, s[60:63], 0 offen")
a("buffer_load_dwordx4 v[12:15], v3, s[60:63], 0 offen offset:1024")
a("s_and_b32 s44, s46, 3")
a("s_or_b32 s44, s44, s24")
a("s_cmp_eq_u32 s44, 0")
a("s_cbranch_scc0 LPRO0")
a("v_and_b32 v40, 1, v1")
a("v_lshlrev_b32 v40, 12, v40")
a("v_bfe_u32 v43, v1, 1, 1")
a("v_lshl_add_u32 v40, v43, 13, v40")
a("v_lshrrev_b32 v43, 2, v1")
a("v_lshl_add_u32 v40, v43, 4, v40")
a("v_mov_b32 v36, 0\nv_mov_b32 v37, 0\nv_mov_b32 v38, 0\nv_mov_b32 v39, 0")
a("s_lshl_b32 s44, s46, 6")
a(f"s_add_u32 s44, s44, {CTR}")
a("s_mov_b64 exec, 0xff")
a("buffer_store_dwordx4 v[36:39], v40, s[12:15], s44 offen sc1")
a("s_mov_b64 exec, -1")
a.label("LPRO0")
a("v_lshrrev_b32 v40, 1, v42")
a(f"v_mul_u32_u24 v40, {TS}, v40")
a("v_and_b32 v43, 3, v41")
a("v_lshl_add_u32 v40, v43, 5, v40")
a("v_lshrrev_b32 v43, 2, v41")
a("v_lshl_add_u32 v40, v43, 9, v40")
a("v_and_b32 v42, 1, v42")
a("v_lshl_add_u32 v40, v42, 4, v40")
for k, reg in ((0, 41), (2, 42)):
    a("s_mul_i32 s44, s24, 18")
    a(f"s_add_u32 s44, s44, {k}")
    a("s_lshr_b32 s45, s44, 2")
    a("s_lshl_b32 s45, s45, 10")
    a("s_and_b32 s44, s44, 3")
    a("s_lshl_b32 s44, s44, 7")
    a("s_add_u32 s44, s44, s45")
    a(f"s_add_u32 s44, s44, {WQ}")
    a(f"v_add_u32 v{reg}, s44, v40")
ones_init()
a("s_waitcnt vmcnt(0) lgkmcnt(0)")
a("s_mul_i32 s29, s29, 0x9e3779b1")
a("s_add_u32 s29, s29, 0x7f4a7c15")
for i in range(18):
    a(f"ds_write_b128 v{41 + ((i>>1)&1)}, {R('v', 64+4*i)} offset:{(i>>2)*1024+(i&1)*128}")
a("s_waitcnt lgkmcnt(0)")
a("s_barrier")
qprep(X0)
a("s_call_b64 s[36:37], LQSTAGE")
kofs()
a("s_branch LPRO2")
a.label("LPRO1")
a("s_waitcnt lgkmcnt(0)")
ones_init()
a("s_mul_i32 s29, s29, 0x9e3779b1")
a("s_add_u32 s29, s29, 0x7f4a7c15")
a.label("LPRO2")
if STAMPS == 2:
    a("v_mov_b32 v51, 0")
    a("s_mov_b32 s93, 0")
sstamp(55)
a.vq = []
burst("a", 0, "A0")
a("s_cmp_eq_u32 s24, 0")
a("s_cbranch_scc0 LPRO3")
a("v_mov_b32 v24, -1\nv_mov_b32 v25, -1\nv_mov_b32 v26, -1\nv_mov_b32 v27, -1")
a("s_mul_i32 s44, s2, 6144")
a(f"s_add_u32 s44, s44, {LB0}")
a("s_add_u32 s45, s44, 4096")
keep = list(a.vq)
for i in range(6):
    a(f"buffer_store_dwordx4 v[24:27], v3, s[12:15], s{44+(i>>2)} offen offset:{1024*(i&3)} sc1")
a.vq = keep
a.label("LPRO3")
srd(16, 82, 83, 1152)
srd(20, 84, 85, 256)
masks()
a("s_lshl_b32 s44, s25, 8")
a(f"s_add_u32 s44, s44, {CTR}")
a("s_add_u32 s88, s86, s44")
a("s_addc_u32 s89, s87, 0")
sstamp(56)
keep = list(a.vq)
a("s_cmp_lt_u32 s27, 18")
a("s_cbranch_scc0 LWB")
srd(60, 76, 77, 0 if OPT["wskip"] & 2 else 576 * 9216)
srd(92, 78, 79, 0 if OPT["wskip"] & 2 else 576 * 9216)
a("v_lshrrev_b32 v41, 2, v1")
a("v_and_b32 v42, 3, v1")
a("v_mul_u32_u24 v40, 9216, v41")
a("v_lshl_add_u32 v40, v42, 4, v40")
a("s_mul_i32 s46, s28, 18")
a("s_add_u32 s46, s46, s27")
a("s_lshl_b32 s44, s46, 6")
a(f"s_mul_i32 s45, s24, {144*9216}")
a("s_add_u32 s44, s44, s45")
for i in range(0 if OPT["wlate"] & 1 else 9):
    a(f"buffer_load_dwordx4 {R('v', 64+8*i)}, v40, s[60:63], s44 offen{WPOL}")
    a(f"buffer_load_dwordx4 {R('v', 68+8*i)}, v40, s[92:95], s44 offen{WPOL}")
    a(f"s_add_u32 s44, s44, {16*9216}")
a(f"v_mul_u32_u24 v43, {TS}, v42")
a("v_and_b32 v42, 3, v41")
a("v_lshl_add_u32 v43, v42, 5, v43")
a("v_bfe_u32 v42, v41, 2, 1")
a("v_lshl_add_u32 v43, v42, 9, v43")
a("v_lshrrev_b32 v42, 3, v41")
a("v_lshl_add_u32 v43, v42, 7, v43")
for k, reg in ((1, 34), (0, 43)):
    a("s_mul_i32 s44, s24, 9")
    a(f"s_add_u32 s44, s44, {k}")
    a("s_lshr_b32 s45, s44, 1")
    a("s_lshl_b32 s45, s45, 10")
    a("s_and_b32 s44, s44, 1")
    a("s_lshl_b32 s44, s44, 8")
    a("s_add_u32 s44, s44, s45")
    a(f"v_add_u32 v{reg}, s44, v43")
srd(60, 80, 81, 0 if OPT["wskip"] & 4 else 4608 * 1152)
a(f"s_mul_i32 s44, s46, {32*1152}")
a("s_mul_i32 s45, s24, 9216")
a("s_add_u32 s44, s44, s45")
a("s_add_u32 s45, s44, 4096")
a("s_add_u32 s46, s44, 8192")
for i in range(0 if OPT["wlate"] & 2 else 9):
    a(f"buffer_load_dwordx4 {R('v', 136+4*i)}, v3, s[60:63], s{44+(i>>2)} offen offset:{(i&3)*1024}{WPOL}")
a("s_branch LWDONE")
a.label("LWB")
a("s_cmp_lt_u32 s27, 30")
a("s_cbranch_scc0 LWDONE")
srd(60, 72, 73, 0 if OPT["wskip"] & 1 else 4096 * 1152)
a("v_lshrrev_b32 v41, 4, v1")
a("v_and_b32 v42, 15, v1")
a("v_mul_u32_u24 v40, 1152, v41")
a("v_lshl_add_u32 v40, v42, 4, v40")


def brole():
    a("s_sub_u32 s47, s27, 18")
    a("s_lshl_b32 s46, s28, 1")
    a("s_cmp_ge_u32 s47, 6")
    a("s_addc_u32 s46, s46, 0")
    a("s_cmp_ge_u32 s47, 6")
    a("s_cselect_b32 s48, 6, 0")
    a("s_sub_u32 s47, s47, s48")


brole()
a("s_lshl_b32 s44, s46, 8")
a("s_lshl_b32 s45, s24, 6")
a("s_add_u32 s44, s44, s45")
a("s_mul_i32 s44, s44, 1152")
a("s_mul_i32 s45, s47, 192")
a("s_add_u32 s44, s44, s45")
a("s_mov_b32 exec_lo, 0x0fff0fff")
a("s_mov_b32 exec_hi, 0x0fff0fff")
for i in range(16):
    a(f"buffer_load_dwordx4 {R('v', 64+4*i)}, v40, s[60:63], s44 offen{WPOL}")
    a(f"s_add_u32 s44, s44, {4*1152}")
a("s_mov_b64 exec, -1")
a("v_lshrrev_b32 v43, 1, v42")
a(f"v_mul_u32_u24 v43, {WOS}, v43")
a("v_lshl_add_u32 v43, v41, 5, v43")
a("v_and_b32 v42, 1, v42")
a("v_lshl_add_u32 v43, v42, 4, v43")
a("s_lshl_b32 s45, s24, 11")
a("v_add_u32 v43, s45, v43")
a.label("LWDONE")
a.vq = keep
sstamp(57)
PR = str(OPT["pr"]).zfill(4)
for _ in range(int(PR[0])):
    probe()
a.wait_vm_n(30)
burst("a", 64, "A1")
for _ in range(int(PR[1])):
    probe()
a.wait_vm_n(30)
burst("a", 128, "A2")
for _ in range(int(PR[2])):
    probe()
qpoll_addr(X0)
a.wait_vm_n(40)
qpoll_issue()
burst("a", 192, "A3")
for _ in range(int(PR[3])):
    probe()
if not OPT["klate"]:
    probe("K")
a.wait_vm_n(50)
a("s_cmp_lt_u32 s27, 18")
a("s_cbranch_scc0 LWB2")
for i in range(0 if OPT["wlate"] & 1 else 9):
    a(f"ds_write_b128 v{34 if i & 1 else 43}, {R('v', 64+8*i)} offset:{(i>>1)*1024}")
    a(f"ds_write_b128 v{34 if i & 1 else 43}, {R('v', 68+8*i)} offset:{(i>>1)*1024+16}")
a("s_mul_i32 s44, s24, 9216")
a(f"s_add_u32 s44, s44, {WD}")
a("v_add_u32 v40, s44, v3")
for i in range(0 if OPT["wlate"] & 2 else 9):
    a(f"ds_write_b128 v40, {R('v', 136+4*i)} offset:{i*1024}")
a("s_branch LWDONE2")
a.label("LWB2")
a("s_cmp_lt_u32 s27, 30")
a("s_cbranch_scc0 LWDONE2")
a("s_mov_b32 exec_lo, 0x0fff0fff")
a("s_mov_b32 exec_hi, 0x0fff0fff")
for i in range(16):
    a(f"ds_write_b128 v43, {R('v', 64+4*i)} offset:{(i&1)*512+((i>>1)&3)*128+(i>>3)*1024}")
a("s_mov_b64 exec, -1")
a.label("LWDONE2")
a(f"v_mov_b32 v{VL}, 0")
a("s_mov_b32 s91, 0")
a("s_mov_b32 s92, 0")
a("s_mov_b32 s94, 0")
a("s_mov_b32 s95, 7")
a("s_waitcnt lgkmcnt(0)")
a.wait_vm("qp")
if STAMPS:
    a("s_memrealtime s[58:59]")
    a("s_waitcnt lgkmcnt(0)")
    a("s_mov_b32 s75, s58")
qpoll_check()
a("s_cbranch_scc0 LQREADY")

a.label("LQPOLL")
qpoll_issue()
a("s_waitcnt vmcnt(0)")
qpoll_check()
a("s_cbranch_scc0 LQREADY")
retry("LQPOLL", "LQREADY")
a.label("LQREADY")
if OPT["q1w"]:
    a("s_cmp_eq_u32 s31, 0")
    a("s_cbranch_scc1 LQREADY2")
    for i in range(4):
        a(f"ds_write_b32 v33, v{24+2*i} offset:{256*i}")
    a("s_waitcnt lgkmcnt(0)")
    a("s_barrier")
    a.label("LQREADY2")
hswinit()
for i in range(4):
    a(f"v_cndmask_b32 v{QE+i}, v{24+2*i}, 0, s[42:43]")
    a(f"v_cndmask_b32 v{QO+i}, 0, v{24+2*i}, s[42:43]")
for r in range(4):
    a(f"v_mov_b32 v{OA+r}, 0")
a(f"v_mov_b32 v{MS}, {f32(-1e30)}")
a(f"v_mov_b32 v{LS}, 0")
stamp(0)
a("s_cmp_eq_u32 s31, 0")
a("s_cbranch_scc0 LP2")
if OPT["vote"]:
    a("s_getreg_b32 s47, hwreg(HW_REG_XCC_ID)")
    a("s_bfe_u32 s47, s47, 0x10002")
    for d, (x, y) in ((44, (55, 56)),) if OPT["klate"] else ((48, (96, 97)), (44, (55, 56))):
        a(f"s_sub_i32 s{d}, s{x}, s{y}")
        a(f"s_min_i32 s{d}, s{d}, 300")
        a(f"s_max_i32 s{d}, s{d}, -300")
        a(f"s_sub_i32 s45, 0, s{d}")
        a("s_cmp_eq_u32 s47, 0")
        a(f"s_cselect_b32 s{d}, s{d}, s45")
    a("s_mov_b32 s46, s44")
    a("s_atomic_add s46, s[88:89], 16 glc")
    if not OPT["klate"]:
        a("s_atomic_add s48, s[88:89], 20")
    if RN > 1:
        a(f"s_mov_b32 s90, {TKI}")
        a("s_atomic_add s90, s[88:89], 0 glc")
    a("s_waitcnt lgkmcnt(0)")
    a("s_add_i32 s44, s44, s46")
    a("s_cmp_gt_i32 s44, 0")
    a("s_cselect_b32 s44, 1, 0")
    a("s_xor_b32 s44, s44, s47")
else:
    a("s_cmp_gt_u32 s55, s56")
    a("s_cselect_b32 s44, 1, 0")
if OPT["forcecls"] == 2:
    a("s_xor_b32 s44, s44, 1")
a("s_lshl_b32 s45, s44, 2")
a("s_add_u32 s45, s45, 4")
a("s_mov_b32 s46, 1")
a("s_atomic_add s46, s[88:89], s45 glc")
a("s_mov_b32 s61, 0")
a("s_mov_b32 s62, 0")
a("s_mov_b32 s63, 1")
a("s_mov_b32 s98, 13")
a("s_mov_b32 s99, 0")
a(f"s_mov_b32 s96, {NP1}")
a("s_waitcnt lgkmcnt(0)")
a("s_cmp_lt_u32 s46, 32")
a("s_cbranch_scc1 LBUN")
a("s_xor_b32 s44, s44, 1")
a("s_xor_b32 s45, s45, 12")
a("s_mov_b32 s46, 1")
a("s_atomic_add s46, s[88:89], s45 glc")
a("s_waitcnt lgkmcnt(0)")
a.label("LBUN")
a("s_lshl_b32 s57, s46, 1")
a("s_add_u32 s57, s57, s44")
a("s_add_u32 s57, s57, 256")
a("s_lshl_b32 s57, s57, 13")
a("s_mov_b32 s55, -1")
a("s_mov_b32 s37, -1")
a(f"s_mov_b32 s56, {PB}")
a("s_mov_b32 s60, 0")
a(f"s_mov_b32 s54, {TF}")
a("s_mov_b32 s36, 0")
a("s_mov_b32 s101, 0")
a("s_mov_b32 s97, 0")
a("s_mov_b32 s41, 0")
a("s_cmp_eq_u32 s24, 0")
a("s_cbranch_scc0 LNOCNT")
a("s_mov_b32 s48, 1")
a("s_atomic_add s48, s[84:85], 0")
a.label("LNOCNT")
a.vq = qtags("A3")


def tkreq():
    if OPT["sline"]:
        a("s_lshr_b32 s59, s61, 11")
        a("s_atomic_add s90, s[88:89], s59 glc")
    else:
        a("s_atomic_add s90, s[88:89], s61 glc")


def xaddr(reg, i):
    a(f"s_add_u32 s{reg}, s57, {i*UNIT_STEP}")
    if (1 + (i >> 2)) & 1:
        a(f"s_xor_b32 s{reg}, s{reg}, 8192")


def baddr(i):
    xaddr(32, 2 * i)
    xaddr(34, 2 * i + 1)
    setaddr(32, 34)


def draw(s, exhausted):
    ln, lg, lo = a.newlabel("noapp"), a.newlabel("go"), a.newlabel("tok")
    a("s_cmp_lt_u32 s90, s96")
    a(f"s_cbranch_scc1 {lo}")
    a("s_cmp_lg_u32 s63, 0")
    a(f"s_cbranch_scc1 {exhausted}")
    a("s_add_u32 s63, s63, 1")
    a("s_mov_b32 s62, 0")
    a("s_xor_b32 s61, s61, 8192")
    a(f"s_mov_b32 s90, {TKI}")
    tkreq()
    a("s_waitcnt lgkmcnt(0)")
    a("s_cmp_lt_u32 s90, s96")
    a(f"s_cbranch_scc0 {exhausted}")
    a.label(lo)
    a("s_cmp_ge_u32 s90, s60")
    a("s_cselect_b32 s32, s56, 0")
    a("s_add_u32 s32, s32, s90")
    a("s_lshl_b32 s33, s32, 6")
    a("s_xor_b32 s33, s33, s61")
    a("s_and_b32 s33, s33, s99")
    a("s_lshl_b32 s32, s32, s98")
    a("s_add_u32 s32, s32, s33")
    a(f"s_bitset0_b32 s97, {s}")
    a("s_cmp_ge_u32 s90, s54")
    a(f"s_cbranch_scc0 {ln}")
    a(f"s_bitset1_b32 s97, {s}")
    a("s_mov_b32 m0, s94")
    a("s_nop 0")
    a(f"v_writelane_b32 v{VL}, s32, m0")
    a("s_add_u32 s94, s94, 1")
    a("s_cmp_lt_u32 s94, 60")
    a(f"s_cbranch_scc1 {ln}")
    if OPT["tk2"]:
        a("s_bitcmp0_b32 s90, 0")
        a(f"s_cbranch_scc1 {ln}")
    a("s_mov_b32 s90, 0x7fffffff")
    a("s_add_u32 s63, s63, 1")
    a(f"s_branch {lg}")
    a.label(ln)
    if OPT["tk2"]:
        a("s_add_u32 s90, s90, 1")
        a("s_bitcmp1_b32 s90, 0")
        a(f"s_cbranch_scc1 {lg}")
    a("s_xor_b32 s61, s61, s62")
    if OPT["eg"]:
        a(f"s_add_u32 s90, s90, {OPT['eg']}")
        a("s_cmp_ge_u32 s90, s96")
        a("s_cselect_b32 s41, 1, 0")
        a(f"s_cbranch_scc1 {lg}")
    a(f"s_mov_b32 s90, {TKI}")
    tkreq()
    a.label(lg)


def ticket_ready():
    if OPT["eg"]:
        lk = a.newlabel("tk")
        a("s_cmp_eq_u32 s41, 0")
        a(f"s_cbranch_scc1 {lk}")
        a(f"s_waitcnt vmcnt({OPT['gv']})")
        a("s_sub_u32 s41, s41, 1")
        a(f"s_mov_b32 s90, {TKI}")
        tkreq()
        a.label(lk)
    a("s_waitcnt lgkmcnt(0)")


def abody(i, xslot=None):
    baddr(i)

    def rl(hf, t):
        if xslot is not None:
            ld("v", RING[xslot] + 32 * hf, t, "V", hf, XPOL(2 * i + hf), ("X", 2 * i + hf, t))
        ld("a", 64 * i + 32 * hf, t, "K", hf, " nt", ("BK", 2 * i + hf, t))
    a.wait_vm_n(31)
    unit2(("a", 64 * i), ("a", 64 * i + 32), lambda t: (f"A{i}", "K", t), lambda t: (f"A{i}", "V", t),
          lambda t: rl(0, t), lambda t: rl(1, t))
    logt()


def kburst(i):
    baddr(i)
    a.wait_vm_n(47)
    for hf in range(2):
        k = kloc(2 * i + hf)
        for t in range(8):
            ld(k[0], k[1], t, "K", hf, " nt", ("BK", 2 * i + hf, t))


def dbody(d, slot, nxt):
    sl = RING[slot]
    if nxt[0] == "X":
        j = nxt[1]
        baddr(j)
        rka = lambda t: ld("v", sl, t, "V", 0, XPOL(2 * j), ("X", 2 * j, t))
        rkb = lambda t: ld("v", sl + 32, t, "V", 1, XPOL(2 * j + 1), ("X", 2 * j + 1, t))
    else:
        if nxt == "L":
            xaddr(32, NR)
        else:
            le, lc = a.newlabel("dex"), a.newlabel("dco")
            ticket_ready()
            draw(slot, le)
            a(f"s_branch {lc}")
            a.label(le)
            a(f"s_bitset0_b32 s95, {slot}")
            a("s_mov_b32 s32, 0x1000000")
            a.label(lc)
        setaddr(32, 32)
        rka = lambda t: ldK("v", sl, t, nxt)
        rkb = lambda t: ldV("v", sl, t, nxt)
    a.wait_vm_n(47)
    unit2(kloc(2 * d), ("v", sl), lambda t: ("BK", 2 * d, t), lambda t: ("X", 2 * d, t), None, rka)
    unit2(kloc(2 * d + 1), ("v", sl + 32), lambda t: ("BK", 2 * d + 1, t), lambda t: ("X", 2 * d + 1, t), None, rkb)
    logt()


if RN == 3:
    abody(0, 0), abody(1, 1), abody(2, 2), abody(3)
    dbody(0, 0, ("X", 3)), dbody(1, 1, "L"), dbody(2, 2, "P"), dbody(3, 0, "P")
    LSLOT = 1
elif RN == 2:
    abody(0, 0), abody(1, 1)
    dbody(0, 0, ("X", 2)), abody(2), dbody(1, 1, ("X", 3)), abody(3), kburst(4)
    dbody(2, 0, ("X", 4)), dbody(3, 1, "L"), dbody(4, 0, "P")
    LSLOT = 1
else:
    abody(0, 0), abody(1, 1), abody(2, 2), abody(3)
    dbody(0, 0, ("X", 3))
    for d, slot, j in ((1, 1, 4), (2, 2, 5)):
        baddr(j)
        a.wait_vm_n(47)
        for hf in range(2):
            unit2(kloc(2 * d + hf), ("v", RING[slot] + 32 * hf), lambda t: ("BK", 2 * d + hf, t), lambda t: ("X", 2 * d + hf, t), None,
                  lambda t: ld("v", RING[slot] + 32 * hf, t, "K", hf, " nt", ("BK", 2 * j + hf, t)))
        if d == 1:
            dbody(3, 0, ("X", 4))
    dbody(4, 0, ("X", 5)), dbody(5, 0, "L")
    LSLOT = 0
a("s_lshl_b32 s44, s24, 13")
a(f"s_add_u32 s44, s44, {KL}")
a("v_add_u32 v40, s44, v3")
if OPT["klate"]:
    a("s_lshl_b32 s44, s26, 2")
    a("s_add_u32 s44, s44, s24")
    a("s_lshl_b32 s44, s44, 14")
    a("s_getreg_b32 s47, hwreg(HW_REG_XCC_ID)")
    a("s_bfe_u32 s47, s47, 0x10002")
    a("s_waitcnt lgkmcnt(0)")
    for c in (0, 1, 0):
        a(f"s_add_u32 s50, s44, {1920*8192 + (c ^ 1)*8192 + probe_k[0]*1152}")
        probe_k[0] += 1
        a("s_memtime s[52:53]")
        a("s_waitcnt lgkmcnt(0)")
        a("s_buffer_load_dword s51, s[4:7], s50")
        a("s_waitcnt lgkmcnt(0)")
        a("s_memtime s[50:51]")
        a("s_waitcnt lgkmcnt(0)")
        a(f"s_sub_u32 s{45+c}, s50, s52")
    a("s_sub_i32 s48, s45, s46")
    a("s_min_i32 s48, s48, 300")
    a("s_max_i32 s48, s48, -300")
    a("s_sub_i32 s45, 0, s48")
    a("s_cmp_eq_u32 s47, 0")
    a("s_cselect_b32 s48, s48, s45")
    a("s_atomic_add s48, s[88:89], 20")
if RN == 1:
    a(f"s_mov_b32 s90, {TKI}")
    a("s_atomic_add s90, s[88:89], 0 glc")
waitq(("L", "K", 7))
for t in range(8):
    a(f"ds_write_b128 v40, {R('v', RING[LSLOT]+4*t)} offset:{t*1024}")
a(f"s_branch LRING{LSLOT}")
a.label("LP2")
if OPT["enc"]:
    a("s_memrealtime s[64:65]")
if STAMPS == 2:
    a("v_mov_b32 v51, 0")
    a("s_mov_b32 s93, 0")
a("s_mov_b32 s3, 0")
a(f"s_mov_b32 s56, {PB//2 - 128}")
a("s_mov_b32 s60, 128")
a("s_mov_b32 s41, 0")
a("s_mov_b32 s54, -1")
a("s_mov_b32 s101, 0")
a("s_mov_b32 s36, 0")
a(f"s_mov_b32 s37, {OPT['cn']}")
a("s_and_b32 s3, s3, s36")
sloc = lambda i: kloc(i) if i < NR else ("a", 0)
for i in range(NB + 1):
    a(f"s_mov_b32 s55, {THR0 + i*THRS}")
    a("s_add_u32 s36, s36, 1")
    a("s_branch LRINGGO")
    a.label(f"LRET{i+1}")
    a.vq = []
    if i > 0:
        def vwait():
            l0, l1 = a.newlabel("sw"), a.newlabel("sw")
            a("s_cmp_ge_u32 s101, 2")
            a(f"s_cbranch_scc1 {l0}")
            a("s_cmp_eq_u32 s101, 1")
            a(f"s_cbranch_scc1 {l1}")
            a("s_waitcnt vmcnt(0)")
            a.label(l1)
            a("s_waitcnt vmcnt(16)")
            a.label(l0)
            a("s_waitcnt vmcnt(32)")
        if i == NR:
            a("s_lshl_b32 s44, s24, 13")
            a(f"s_add_u32 s44, s44, {KL}")
            a("v_add_u32 v40, s44, v3")
            for t in range(8):
                a(f"ds_read_b128 {R('a', 4*t)}, v40 offset:{t*1024}")
        unit2(None, sloc(i - 1), hooks=(None, vwait), tt=52)
    if i < NB:
        xaddr(34, i)
        setaddr(None, 34)
        if i == NR:
            a("s_waitcnt lgkmcnt(0)")
        a.wait_vm_n(55)
        unit2(sloc(i), None, None, None, lambda t: ld(sloc(i)[0], sloc(i)[1], t, "V", 1, XPOL(i), None), tt=52)
        a("s_mov_b32 s101, 0")
a("s_mov_b32 s55, -1")
a("s_mov_b32 s37, -1")
a.label("LRINGGO")
for q in range(RN - 1):
    a(f"s_cmp_eq_u32 s3, {q}")
    a(f"s_cbranch_scc1 LRING{q}")
a(f"s_branch LRING{RN-1}")
a.label("LPASSEND")
stamp(1)
if STAMPS == 2:
    a("s_lshl_b32 s44, s31, 8")
    a("s_add_u32 s44, s44, s2")
    a("s_lshl_b32 s44, s44, 10")
    a(f"s_add_u32 s44, s44, {STAMP_OFF+0x40000}")
    a("v_lshlrev_b32 v40, 2, v0")
    a("buffer_store_dword v51, v40, s[12:15], s44 offen")
a(f"v_add_f32_dpp v{LS}, v{LS}, v{LS} row_half_mirror{DPPM}")
rows("v_add_f32", LS, TMP)
a(f"v_mul_f32 v22, s30, v{MS}")
a(f"v_mov_b32 v23, v{LS}")
a("v_bfe_u32 v40, v1, 3, 1")
a("v_lshlrev_b32 v41, 9, v40")
a("v_lshrrev_b32 v42, 4, v1")
a("v_lshl_add_u32 v41, v42, 7, v41")
a("v_and_b32 v42, 7, v1")
a("v_lshl_add_u32 v41, v42, 2, v41")
a("s_lshl_b32 s44, s24, 10")
a(f"s_add_u32 s44, s44, {CB1}")
a("v_add_u32 v41, s44, v41")
for r in range(4):
    a(f"ds_write_b32 v41, v{OA+r} offset:{32*r}")
a("s_lshl_b32 s44, s24, 3")
a(f"s_add_u32 s44, s44, {CS1}")
a("v_lshlrev_b32 v40, 5, v40")
a("v_add_u32 v40, s44, v40")
a("ds_write_b64 v40, v[22:23]")
a("v_lshlrev_b32 v40, 2, v0")
a(f"v_add_u32 v40, {LSV}, v40")
a(f"ds_write_b32 v40, v{VL}")
a.label("LCNT")
a("s_waitcnt vmcnt(0)")
a("v_readfirstlane_b32 s44, v49")
a("s_cmp_ge_u32 s44, 256")
a("s_cbranch_scc1 LCNTOK")
a("v_mov_b32 v48, 0")
a("buffer_load_dword v49, v48, s[20:23], 0 offen sc1")
retry("LCNT", "LCNTOK")
a.label("LCNTOK")
a("s_waitcnt lgkmcnt(0)")
a("s_barrier")
combine(CB1, CS1)
a(f"s_mul_i32 s44, s2, {X1S}")
a("s_add_u32 s44, s44, s39")
a("v_lshlrev_b32 v8, 2, v0")
a("buffer_store_dword v24, v8, s[12:15], s44 offen sc1")
a("s_lshl_b32 s45, s24, 6")
a("v_mov_b32 v9, s45")
a("s_bitcmp0_b32 s24, 0")
a("s_cbranch_scc0 LPUB1")
a("s_mov_b64 exec, 1")
a("buffer_store_dwordx2 v[26:27], v9, s[12:15], s44 offen offset:1024 sc1")
a("s_mov_b64 exec, -1")
a.label("LPUB1")
stamp(2)
a("s_cmp_eq_u32 s31, 0")
a("s_cbranch_scc0 LPUB2")
a("s_getreg_b32 s47, hwreg(HW_REG_XCC_ID)")
a("s_bfe_u32 s47, s47, 0x10002")
a("s_add_u32 s88, s88, 4096")
a("s_addc_u32 s89, s89, 0")
a("s_mov_b32 s63, 0")
a("s_cmp_gt_i32 s98, 0")
a("s_cselect_b32 s61, 1, 0")
a("s_xor_b32 s61, s61, s47")
a("s_lshl_b32 s61, s61, 13")
a("s_xor_b32 s98, s98, s99")
a("s_cmp_lt_i32 s98, 0")
a("s_cselect_b32 s62, 8192, 0")
a("s_mov_b32 s98, 14")
a("s_mov_b32 s99, 8192")
a(f"s_mov_b32 s90, {TKI}")
tkreq()
a.label("LPUB2")
a("s_cmp_lt_u32 s27, 18")
a("s_cbranch_scc1 LSTC")
a("s_cmp_lt_u32 s27, 30")
a("s_cbranch_scc0 LSTQ")
brole()
a(f"s_mul_i32 s48, s46, {16*X1S}")
a("s_add_u32 s48, s48, s39")
for g in range(1, 4):
    a(f"s_add_u32 s{48+g}, s48, {g*4*X1S}")
a("v_lshlrev_b32 v8, 2, v0")
a("v_and_b32 v9, 15, v1")
a(f"v_mul_u32_u24 v9, {X1S}, v9")
a("s_lshr_b32 s44, s24, 1")
a("s_lshl_b32 s44, s44, 7")
a("v_add_u32 v9, s44, v9")
a("v_lshlrev_b32 v10, 1, v0")
a(f"v_add_u32 v10, {OB}, v10")
a(f"s_mul_i32 s44, s24, {2*WOS}")
a("v_lshlrev_b32 v58, 3, v1")
a("v_add_u32 v58, s44, v58")
afrag_addr(57, base=OB)
a.label("LE1")
a("buffer_load_dwordx2 v[28:29], v9, s[12:15], s48 offen offset:1024 sc1")
for p in range(16):
    a(f"buffer_load_dword v{12+p}, v8, s[12:15], s{48+(p>>2)} offen offset:{(p&3)*X1S} sc1")
a("s_waitcnt vmcnt(16)")
if OPT["e1f"]:
    a("v_cmp_u_f32 vcc, v28, v29")
    a("s_cbranch_vccnz LE1R")
ROWRED = ("quad_perm:[1,0,3,2]", "quad_perm:[2,3,0,1]", "row_half_mirror", "row_mirror")
a(f"v_max_f32_dpp v30, v28, v28 {ROWRED[0]}{DPPM}")
for st in ROWRED[1:]:
    a(f"v_max_f32_dpp v30, v30, v30 {st}{DPPM}")
a("v_sub_f32 v28, v28, v30")
a("v_exp_f32 v28, v28")
a("v_mul_f32 v29, v29, v28")
for st in ROWRED:
    a(f"v_add_f32_dpp v29, v29, v29 {st}{DPPM}")
a("v_rcp_f32 v29, v29")
a("v_mul_f32 v28, v28, v29")
a("s_waitcnt vmcnt(0)")
for p in range(16):
    op = "v_mul_f32_dpp" if p < 4 else "v_fmac_f32_dpp"
    a(f"{op} v{32+(p&3)}, v28, v{12+p} row_newbcast:{p}{DPPM}")
a("v_add_f32 v32, v32, v33")
a("v_add_f32 v34, v34, v35")
a("v_add_f32 v32, v32, v34")
a("v_cmp_u_f32 vcc, v32, v32")
a("s_cbranch_vccz LE1OK")
a.label("LE1R")
retry("LE1", "LE1OK")
a.label("LE1OK")
a("s_waitcnt vmcnt(0)")
stamp(3)
a("v_cvt_pk_bf16_f32 v32, v32, v32")
a("ds_write_b16 v10, v32")
a("s_waitcnt lgkmcnt(0)")
a("s_barrier")
a("s_cmp_eq_u32 s24, 3")
a("s_cbranch_scc1 LSTQ")


def b_issue(kk):
    s = 8 + 12 * (kk % 3)
    a(f"ds_read_b128 {R('v', s)}, v57 offset:{kk*64}")
    for t in range(2):
        a(f"ds_read_b64_tr_b16 {R('v', s+4+4*t, 2)}, v58 offset:{kk*1024+t*WOS}")
        a(f"ds_read_b64_tr_b16 {R('v', s+6+4*t, 2)}, v58 offset:{kk*1024+t*WOS+512}")


for kk in range(3):
    b_issue(kk)
for kk in range(8):
    a(f"s_waitcnt lgkmcnt({5*(min(8, kk+3)-kk-1)})")
    s = 8 + 12 * (kk % 3)
    for t in range(2):
        acc = R("v", 48 + 4 * t)
        a(f"v_mfma_f32_16x16x32_bf16 {acc}, {R('v', s)}, {R('v', s+4+4*t)}, {'0' if kk == 0 else acc}")
    if kk + 3 < 8:
        b_issue(kk + 3)
a("s_mul_i32 s44, s46, 2304")
a("s_mul_i32 s45, s47, 384")
a("s_add_u32 s44, s44, s45")
a("s_lshl_b32 s45, s24, 7")
a("s_add_u32 s44, s44, s45")
a("s_add_u32 s44, s44, s39")
a(f"s_add_u32 s44, s44, {X2}")
a("s_mov_b32 s48, 0xffff0000")
a("s_mov_b32 s49, 0xffff0000")
a("v_lshlrev_b32 v8, 2, v1")
a("v_cndmask_b32 v48, v48, v52, s[48:49]")
a("s_mov_b32 exec_hi, 0")
a("buffer_store_dword v48, v8, s[12:15], s44 offen sc1")
a("s_mov_b64 exec, -1")
stamp(4)
a("s_branch LSTQ")
a.label("LSTC")
if OPT["wlate"]:
    a("s_cmp_eq_u32 s31, 0")
    a("s_cbranch_scc0 LSTC0")
    a("s_load_dwordx2 s[32:33], s[0:1], 48")
    a("s_load_dwordx2 s[44:45], s[0:1], 56")
    a("s_load_dwordx2 s[48:49], s[0:1], 64")
    a("v_lshrrev_b32 v4, 2, v1")
    a("v_and_b32 v5, 3, v1")
    a("v_mul_u32_u24 v60, 9216, v4")
    a("v_lshl_add_u32 v60, v5, 4, v60")
    a(f"v_mul_u32_u24 v61, {TS}, v5")
    a("v_and_b32 v5, 3, v4")
    a("v_lshl_add_u32 v61, v5, 5, v61")
    a("v_bfe_u32 v5, v4, 2, 1")
    a("v_lshl_add_u32 v61, v5, 9, v61")
    a("v_lshrrev_b32 v5, 3, v4")
    a("v_lshl_add_u32 v61, v5, 7, v61")
    for k, reg in ((1, 62), (0, 61)):
        a("s_mul_i32 s52, s24, 9")
        a(f"s_add_u32 s52, s52, {k}")
        a("s_lshr_b32 s53, s52, 1")
        a("s_lshl_b32 s53, s53, 10")
        a("s_and_b32 s52, s52, 1")
        a("s_lshl_b32 s52, s52, 8")
        a("s_add_u32 s52, s52, s53")
        a(f"v_add_u32 v{reg}, s52, v61")
    a("s_mul_i32 s52, s24, 9216")
    a(f"s_add_u32 s53, s52, {WD}")
    a("v_add_u32 v63, s53, v3")
    a("s_mul_i32 s53, s28, 18")
    a("s_add_u32 s53, s53, s27")
    a(f"s_mul_i32 s54, s53, {32*1152}")
    a("s_add_u32 s54, s54, s52")
    a("s_lshl_b32 s53, s53, 6")
    a(f"s_mul_i32 s52, s24, {144*9216}")
    a("s_add_u32 s52, s52, s53")
    for d, size in ((32, 576 * 9216), (44, 576 * 9216), (48, 4608 * 1152)):
        a(f"s_mov_b32 s{d+2}, {size}")
        a(f"s_mov_b32 s{d+3}, 0x20000")
    a("s_waitcnt lgkmcnt(0)")
    for d in (32, 44, 48):
        a(f"s_and_b32 s{d+1}, s{d+1}, 0xffff")
    items = []
    if OPT["wlate"] & 1:
        for i in range(9):
            items += [("g", i), ("u", i)]
    if OPT["wlate"] & 2:
        items += [("d", i) for i in range(9)]
    W = 13

    def wl(n):
        kind, i = items[n]
        r = R("v", 8 + 4 * (n % W))
        if kind == "d":
            a(f"buffer_load_dwordx4 {r}, v3, s[48:51], s54 offen{WPOL}")
            a("s_add_u32 s54, s54, 1024")
        else:
            a(f"buffer_load_dwordx4 {r}, v60, {'s[32:35]' if kind == 'g' else 's[44:47]'}, s52 offen{WPOL}")
            if kind == "u":
                a(f"s_add_u32 s52, s52, {16*9216}")
    for n in range(min(W, len(items))):
        wl(n)
    for n in range(len(items)):
        a(f"s_waitcnt vmcnt({min(W, len(items) - n) - 1})")
        kind, i = items[n]
        r = R("v", 8 + 4 * (n % W))
        if kind == "d":
            a(f"ds_write_b128 v63, {r} offset:{i*1024}")
        else:
            a(f"ds_write_b128 v{62 if i & 1 else 61}, {r} offset:{(i>>1)*1024 + (16 if kind == 'u' else 0)}")
        if n + W < len(items):
            a("s_waitcnt lgkmcnt(0)")
            wl(n + W)
    a.label("LSTC0")
a(f"s_mov_b32 s44, {XB}")
a(f"s_mul_i32 s45, s24, {TS}")
lng_addr()
a("v_lshrrev_b32 v5, 4, v1")
a("v_lshlrev_b32 v4, 3, v5")
a("v_bfe_u32 v6, v1, 2, 2")
a("v_add_u32 v4, v4, v6")
a("v_mul_u32_u24 v4, 1152, v4")
a("v_and_b32 v6, 3, v1")
a("v_lshl_add_u32 v4, v6, 3, v4")
a("s_lshl_b32 s44, s24, 7")
a(f"s_add_u32 s44, s44, {WD}")
a("v_add_u32 v4, s44, v4")
a("v_lshlrev_b32 v5, 4, v5")
a(f"v_add_u32 v5, {HB}, v5")
a("s_lshl_b32 s44, s24, 4")
a(f"s_add_u32 s44, s44, {HB}")
a("v_lshlrev_b32 v6, 1, v1")
a("v_add_u32 v6, s44, v6")
a("v_lshrrev_b32 v7, 5, v1")
a("v_mul_u32_u24 v7, 18432, v7")
a("v_and_b32 v59, 31, v1")
a("v_lshl_add_u32 v7, v59, 2, v7")
a("s_mul_i32 s50, s28, 18")
a("s_add_u32 s50, s50, s27")
a("s_lshl_b32 s50, s50, 7")
a("s_mul_i32 s45, s24, 36864")
a("s_add_u32 s50, s50, s45")
a("s_add_u32 s50, s50, s39")
a(f"s_add_u32 s50, s50, {X3}")
a("s_mov_b32 s52, 0xffff0000")
a("s_mov_b32 s53, 0xffff0000")
a("s_mov_b32 s40, 0")
a("s_mov_b32 s41, -1")
a("s_cmp_eq_u32 s24, 3")
if OPT["e2g"]:
    a("s_cbranch_scc0 LC_G")
    a("v_and_b32 v8, 15, v1")
    a("v_mul_u32_u24 v8, 2304, v8")
    a("v_lshrrev_b32 v9, 4, v1")
    a("v_mul_u32_u24 v9, 384, v9")
    a("v_add_u32 v8, v8, v9")
    a(f"s_add_u32 s44, s39, {X2}")
    a("v_mov_b32 v11, 0")
    a.label("LE2W")
    a("buffer_load_dword v10, v8, s[12:15], s44 offen offset:256 sc1")
    if OPT["e2g"] == 2:
        a("s_mov_b32 exec_hi, 0")
        a("buffer_load_dword v11, v8, s[12:15], s44 offen offset:1792 sc1")
        a("s_mov_b64 exec, -1")
    a("s_waitcnt vmcnt(0)")
    a("v_cmp_u_f32 vcc, v10, v11")
    a("s_cbranch_vccz LE2WOK")
    retry("LE2W", "LE2WOK")
    a.label("LE2WOK")
    a("s_barrier")
    a("s_branch LC_BAR")
    a.label("LC_G")
else:
    a("s_cbranch_scc1 LC_BAR")
a("v_lshrrev_b32 v56, 4, v1")
a("v_mul_u32_u24 v56, 2304, v56")
a("v_and_b32 v8, 15, v1")
a("v_lshl_add_u32 v56, v8, 4, v56")
a("s_mul_i32 s48, s24, 768")
a("s_add_u32 s44, s48, s39")
a(f"s_add_u32 s44, s44, {X2}")
for g in range(1, 4):
    a(f"s_add_u32 s{44+g}, s44, {g*9216}")
a("v_bfe_u32 v9, v1, 4, 1")
a("v_lshlrev_b32 v9, 1, v9")
a("v_lshrrev_b32 v10, 5, v1")
a("v_add_u32 v9, v9, v10")
a("v_lshl_add_u32 v9, v8, 2, v9")
a("v_lshrrev_b32 v10, 5, v9")
a("v_lshlrev_b32 v10, 6, v10")
a("v_lshl_add_u32 v10, v9, 1, v10")
a(f"s_add_u32 s49, s48, {LB0+X4}")
a("s_lshr_b32 s48, s48, 1")
a("v_lshlrev_b32 v9, 1, v9")
a("v_add_u32 v9, s48, v9")
a(f"v_add_u32 v59, {XB}, v9")
a("s_cmp_eq_u32 s31, 0")
a("s_cbranch_scc0 LC_X2")
a("s_load_dwordx2 s[32:33], s[0:1], 0")
a("s_mov_b32 s34, 1152")
a("s_mov_b32 s35, 0x20000")
a("s_waitcnt lgkmcnt(0)")
a("s_and_b32 s33, s33, 0xffff")
for c in range(3):
    a(f"buffer_load_ushort v{60+c}, v9, s[32:35], 0 offen offset:{c*128}")
a("s_branch LC_X3")
a.label("LC_X2")
for c in range(3):
    a(f"buffer_load_ushort v{60+c}, v10, s[12:15], s49 offen offset:{c*256} sc1")
a.label("LC_X3")
a("s_waitcnt vmcnt(0)")
for c in range(3):
    a(f"v_lshlrev_b32 v{60+c}, 16, v{60+c}")
if OPT["e2g"]:
    a("s_barrier")
a.label("LE2")
for c in range(3):
    for g in range(4):
        a(f"buffer_load_dwordx4 {R('v', 8+16*c+4*g)}, v56, s[12:15], s{44+g} offen offset:{c*256} sc1")
for c in range(3):
    b = 8 + 16 * c
    a(f"s_waitcnt vmcnt({8-4*c})")
    for r in range(4):
        a(f"v_add_f32 v{b+r}, v{b+r}, v{b+4+r}")
        a(f"v_add_f32 v{b+8+r}, v{b+8+r}, v{b+12+r}")
    for r in range(4):
        a(f"v_add_f32 v{b+r}, v{b+r}, v{b+8+r}")
    if OPT["e1f"] and c < 2:
        a(f"v_cmp_u_f32 vcc, v{b}, v{b+3}")
        a("s_cbranch_vccnz LE2R")
    swapreduce(b)
a("v_add_f32 v9, v8, v24")
a("v_cmp_u_f32 vcc, v9, v40")
a("s_cbranch_vccz LE2OK")
a.label("LE2R")
retry("LE2", "LE2OK")
a.label("LE2OK")
a("s_waitcnt vmcnt(0)")
stamp(5)
for c in range(3):
    bf16r(8 + 16 * c, 8 + 16 * c)
for c in range(3):
    a(f"v_add_f32 v{60+c}, v{60+c}, v{8+16*c}")
for c in range(3):
    a(f"v_cvt_pk_bf16_f32 v{60+c}, v{60+c}, v{60+c}")
for c in range(3):
    a(f"ds_write_b16 v59, v{60+c} offset:{c*128}")
a.label("LC_BAR")
a("s_waitcnt lgkmcnt(0)")
a("s_barrier")
a("s_call_b64 s[36:37], LLNG")


def downB(i):
    for t in range(4):
        s = 8 + 16 * (i & 1) + 4 * t
        a(f"ds_read_b64_tr_b16 {R('v', s, 2)}, v4 offset:{i*512+t*32}")
        a(f"ds_read_b64_tr_b16 {R('v', s+2, 2)}, v4 offset:{i*512+t*32+4*1152}")


a(f"v_mov_b32_dpp v41, v60 row_shl:8{DPPM} bound_ctrl:1")
a("v_cvt_pk_bf16_f32 v41, v60, v41")
a("v_lshlrev_b32 v42, 16, v41")
a("v_and_b32 v41, 0xffff0000, v41")
a("v_max_f32 v42, 0, v42")
a("v_mul_f32 v41, v42, v41")
a("v_cvt_pk_bf16_f32 v41, v41, v41")
a("s_mov_b64 exec, 0xff")
a("ds_write_b16 v6, v41")
a("s_mov_b64 exec, -1")
downB(0)
a("s_waitcnt lgkmcnt(8)")
a("s_barrier")
a("ds_read_b128 v[60:63], v5")
a("s_waitcnt lgkmcnt(5)")
downB(1)


def downG(i, wait):
    a(f"s_waitcnt lgkmcnt({wait})")
    for t in range(4):
        s = 8 + 16 * (i & 1) + 4 * t
        a(f"v_mfma_f32_16x16x32_bf16 {R('v', 40+4*t)}, v[60:63], {R('v', s)}, 0")
    a("v_cndmask_b32 v40, v40, v44, s[52:53]")
    a("v_cndmask_b32 v48, v48, v52, s[52:53]")
    a("v_cndmask_b32 v40, v40, v48, s[40:41]")
    a("buffer_store_dword v40, v7, s[12:15], s50 offen sc1")
    a(f"s_add_u32 s50, s50, {4*36864}")


downG(0, 8)
a("s_cmp_eq_u32 s24, 0")
a("s_cbranch_scc1 LDOWN3")
downG(1, 0)
a("s_branch LSTD")
a.label("LDOWN3")
a("s_waitcnt lgkmcnt(0)")
downB(2)
downG(1, 8)
downG(2, 0)
a.label("LSTD")
stamp(6)
a("s_lshl_b32 s50, s27, 3")
a("s_add_u32 s50, s50, s28")
a("s_cmp_lt_u32 s50, 18")
a("s_cbranch_scc0 LSTQ")
a("s_mul_i32 s44, s50, 18432")
a("s_mul_i32 s45, s24, 4608")
a("s_add_u32 s44, s44, s45")
a("s_add_u32 s44, s44, s39")
a(f"s_add_u32 s44, s44, {X3}")
a("s_add_u32 s45, s44, 4096")
a("v_bfe_u32 v58, v1, 4, 1")
a("v_lshlrev_b32 v58, 1, v58")
a("v_lshrrev_b32 v59, 5, v1")
a("v_add_u32 v58, v58, v59")
a("v_and_b32 v59, 7, v1")
a("v_lshl_add_u32 v58, v59, 2, v58")
a("v_lshlrev_b32 v58, 2, v58")
a("s_lshl_b32 s46, s24, 7")
a(f"s_add_u32 s46, s46, {FB}")
a("v_add_u32 v58, s46, v58")
for r in range(4):
    a(f"v_mov_b32 v{24+r}, 0")
a.label("LE3")
for i in range(4):
    a(f"buffer_load_dwordx4 {R('v', 8+4*i)}, v3, s[12:15], s44 offen offset:{i*1024} sc1")
a("s_mov_b32 exec_hi, 0")
a("buffer_load_dwordx4 v[24:27], v3, s[12:15], s45 offen sc1")
a("s_mov_b64 exec, -1")
a("s_waitcnt vmcnt(0)")
for r in range(4):
    a(f"v_add_f32 v{8+r}, v{8+r}, v{12+r}")
    a(f"v_add_f32 v{16+r}, v{16+r}, v{20+r}")
for r in range(4):
    a(f"v_add_f32 v{8+r}, v{8+r}, v{24+r}")
for r in range(4):
    a(f"v_add_f32 v{8+r}, v{8+r}, v{16+r}")
swapreduce(8)
a(f"v_add_f32_dpp v8, v8, v8 row_ror:8{DPPM}")
a("v_cmp_u_f32 vcc, v8, v8")
a("s_cbranch_vccz LE3OK")
retry("LE3", "LE3OK")
a.label("LE3OK")
stamp(7)
a("ds_write_b32 v58, v8")
a("v_lshlrev_b32 v8, 2, v1")
a(f"v_add_u32 v9, {FB}, v8")
a("s_lshl_b32 s45, s50, 6")
a(f"s_add_u32 s46, s45, {XB}")
a("v_lshlrev_b32 v8, 1, v1")
a("v_add_u32 v10, s46, v8")
a("s_waitcnt lgkmcnt(0)")
a("s_barrier")
a("s_cmp_eq_u32 s24, 0")
a("s_cbranch_scc0 LSTQ")
a("s_mov_b32 exec_hi, 0")
for w in range(4):
    a(f"ds_read_b32 v{12+w}, v9 offset:{128*w}")
a("ds_read_u16 v16, v10")
a("s_waitcnt lgkmcnt(0)")
a("v_lshlrev_b32 v16, 16, v16")
a("v_add_f32 v12, v12, v13")
a("v_add_f32 v14, v14, v15")
a("v_add_f32 v12, v12, v14")
bf16r(12, 12)
a("v_add_f32 v12, v12, v16")
a(f"v_mov_b32_dpp v13, v12 quad_perm:[1,1,3,3]{DPPM}")
a("v_cvt_pk_bf16_f32 v12, v12, v13")
a("s_mov_b32 exec_lo, 0x55555555")
a("s_cmp_eq_u32 s31, 0")
a("s_cbranch_scc0 LFINAL")
a("s_lshl_b32 s45, s50, 7")
a("s_add_u32 s45, s45, s39")
a(f"s_add_u32 s45, s45, {X4}")
a("buffer_store_dword v12, v8, s[12:15], s45 offen sc1")
a("s_mov_b64 exec, -1")
a("s_branch LSTQ")
a.label("LFINAL")
a("buffer_store_dword v12, v8, s[16:19], s45 offen")
a("s_mov_b64 exec, 1")
a("s_cmp_eq_u32 s50, 0")
a("s_cbranch_scc0 LNOEP")
a("v_mov_b32 v9, s29")
a("buffer_store_dword v9, v8, s[12:15], 0 offen sc1")
a.label("LNOEP")
a("s_mov_b64 exec, -1")
a.label("LSTQ")
stamp(8)
a("s_cmp_eq_u32 s31, 0")
a("s_cbranch_scc0 LDONE")
if OPT["npf"]:
    a("s_cmp_lt_u32 s27, 18")
    a("s_cbranch_scc1 LQ5")
    a("v_lshlrev_b32 v34, 7, v1")
    a("s_lshl_b32 s44, s26, 2")
    a("s_add_u32 s44, s44, s24")
    a("s_lshl_b32 s44, s44, 13")
    for n in range(OPT["npf"]):
        a(f"s_add_u32 s45, s44, {(4+n)*UNIT_STEP}")
        a(f"buffer_load_dword v35, v34, s[4:7], s45 offen{PFK}")
        a(f"buffer_load_dword v36, v34, s[8:11], s45 offen{PFV}")
a("s_cmp_ge_u32 s27, 24")
a("s_cbranch_scc0 LQ5")
qprep(X5)
a("s_waitcnt lgkmcnt(0)")
a(f"s_add_u32 s44, s39, {X4}")
a("v_lshrrev_b32 v16, 2, v1")
a("v_lshlrev_b32 v16, 7, v16")
a("v_and_b32 v17, 3, v1")
a("v_lshl_add_u32 v16, v17, 4, v16")
for r in range(4):
    a(f"v_mov_b32 v{12+r}, 0")
a.label("LE4")
a("buffer_load_dwordx4 v[8:11], v16, s[12:15], s44 offen sc1")
a("s_mov_b64 exec, 0xff")
a("buffer_load_dwordx4 v[12:15], v16, s[12:15], s44 offen offset:2048 sc1")
a("s_mov_b64 exec, -1")
a("s_waitcnt vmcnt(0)")
a("v_max3_u32 v17, v8, v9, v10")
a("v_max3_u32 v18, v11, v12, v13")
a("v_max3_u32 v17, v17, v14, v15")
a("v_max_u32 v17, v17, v18")
a("v_cmp_eq_u32 vcc, -1, v17")
a("s_cbranch_vccz LE4OK")
retry("LE4", "LE4OK")
a.label("LE4OK")
stamp(9)
a("s_call_b64 s[36:37], LQSTAGE")
a.label("LQ5")
if STAMPS:
    a("s_memrealtime s[58:59]")
    a("s_waitcnt lgkmcnt(0)")
    a("s_mov_b32 s74, s58")
a("s_mov_b32 s31, 1")
a(f"s_add_u32 s39, s39, {LSTRIDE}")
loopconsts()
a(f"s_mov_b32 s96, {NP2}")
a("s_mov_b32 s91, 0")
a("s_mov_b32 s95, s97")
a("v_lshlrev_b32 v40, 2, v0")
a(f"v_add_u32 v40, {LSV}, v40")
a(f"ds_read_b32 v{VL}, v40")
qpoll_addr(X5)
a("v_lshlrev_b32 v33, 2, v1")
a(f"v_add_u32 v33, {SA}, v33")
a("s_waitcnt lgkmcnt(0)")
if OPT["q1w"]:
    a("s_cmp_eq_u32 s24, 0")
    a("s_cbranch_scc1 LQPOLL")
    a("s_barrier")
    for i in range(4):
        a(f"ds_read_b32 v{24+2*i}, v33 offset:{256*i}")
    a("s_waitcnt lgkmcnt(0)")
    a("s_branch LQREADY2")
else:
    a("s_branch LQPOLL")

a.label("LQSTAGE")
a("ds_write_b128 v2, v[8:11]")
a("s_mov_b64 exec, 0xff")
a("ds_write_b128 v2, v[12:15] offset:1024")
a("s_mov_b64 exec, -1")
a("s_mov_b64 s[52:53], s[36:37]")
a("s_waitcnt lgkmcnt(1)")
a("s_call_b64 s[36:37], LLNG")
a("v_lshlrev_b32 v8, 2, v1")
a("v_mov_b32 v11, s29")
a(f"v_mov_b32_dpp v9, v60 quad_perm:[1,1,3,3]{DPPM}")
a("v_cvt_pk_bf16_f32 v10, v60, v9")
a("s_mov_b64 exec, 0x5555")
a("buffer_store_dwordx2 v[10:11], v8, s[12:15], s54 offen sc1")
a("s_mov_b64 exec, -1")
a("s_setpc_b64 s[52:53]")

a.label("LLNG")
lngemv()
a("s_setpc_b64 s[36:37]")

a.vq = sum((qtags(f"R{q}") for q in range(RN)), [])
for s in range(RN):
    lp, lg, ln, lb, lx = (a.newlabel(x) for x in ("pool", "go", "noapp", "bonly", "next"))
    a.label(f"LRING{s}")
    a(f"s_mov_b32 s3, {s}")
    if OPT["hv"]:
        a(f"s_waitcnt vmcnt({OPT['hv']})")
    ticket_ready()
    if not OPT["lfirst"]:
        a("s_cmp_ge_u32 s90, s55")
        a("s_cbranch_scc1 LRINGX")
        a("s_cmp_ge_u32 s101, s37")
        a("s_cbranch_scc1 LRINGX")
    a("s_cmp_lt_u32 s91, s92")
    a(f"s_cbranch_scc0 {lp}")
    if OPT["lrev"]:
        a("s_sub_u32 s92, s92, 1")
        a(f"v_readlane_b32 s32, v{VL}, s92")
    else:
        a(f"v_readlane_b32 s32, v{VL}, s91")
        a("s_add_u32 s91, s91, 1")
    a(f"s_branch {lg}")
    a.label(lp)
    if OPT["lfirst"]:
        a("s_cmp_ge_u32 s90, s55")
        a("s_cbranch_scc1 LRINGX")
        a("s_cmp_ge_u32 s101, s37")
        a("s_cbranch_scc1 LRINGX")
    draw(s, f"LDRAINE{s}")
    a.label(lg)
    setaddr(32, 32)
    a("s_add_u32 s101, s101, 1")
    a(f"s_bitcmp1_b32 s95, {s}")
    a(f"s_cbranch_scc0 {lb}")
    unit("v", RING[s], f"R{s}", f"R{s}n")
    logt()
    q1 = [(t[0].rstrip("n"), t[1], t[2]) for t in a.vq]
    a(f"s_branch LRING{(s+1)%RN}")
    a.label(lb)
    a(f"s_bitset1_b32 s95, {s}")
    for t in range(8):
        ldK("v", RING[s], t, "x")
    for t in range(8):
        ldV("v", RING[s], t, "x")
    a(f"s_branch LRING{(s+1)%RN}")
    a.vq = q1
a.label("LRINGX")
for k in range(1, NB + 1):
    a(f"s_cmp_eq_u32 s36, {k}")
    a(f"s_cbranch_scc1 LRET{k}")
a(f"s_branch LRET{NB+1}")

for s in range(RN):
    a.label(f"LDRAINE{s}")
    a("v_mov_b32 v48, 0")
    a("buffer_load_dword v49, v48, s[20:23], 0 offen sc1")
    a("s_mov_b32 s93, 0")
    a("s_mov_b64 s[98:99], 0")
    a("s_atomic_add_x2 s[98:99], s[88:89], 16 glc")
    a("s_bcnt1_i32_b32 s44, s97")
    a("s_sub_u32 s92, s94, s44")
    a(f"s_branch LDRAIN{s}")
for s in range(RN):
    a.label(f"LDRAIN{s}")
    lsk = a.newlabel("dsk")
    a(f"s_bitcmp1_b32 s95, {s}")
    a(f"s_cbranch_scc0 {lsk}")
    unit_drain(RING[s])
    a.label(lsk)
    a("s_add_u32 s93, s93, 1")
    a(f"s_cmp_eq_u32 s93, {RN}")
    a("s_cbranch_scc1 LPASSEND")
a("s_branch LDRAIN0")

a.label("LDONE")
if OPT["enc"]:
    a("s_or_b32 s44, s2, s24")
    a("s_cmp_eq_u32 s44, 0")
    a("s_cbranch_scc0 LEND")
    a("s_memrealtime s[58:59]")
    a("s_waitcnt lgkmcnt(0)")
    a("s_sub_u32 s44, s58, s64")
    a("s_sub_u32 s44, s44, 4000")
    a("s_mul_hi_u32 s44, s44, 42949673")
    a(f"s_mul_i32 s44, s44, {5000 if OPT['enc'] == 1 else 0}")
    a("s_sub_u32 s45, s64, s100")
    a("s_add_u32 s44, s44, s45")
    a("s_add_u32 s44, s44, 12000")
    a.label("LENC")
    a("s_memrealtime s[58:59]")
    a("s_waitcnt lgkmcnt(0)")
    a("s_sub_u32 s58, s58, s100")
    a("s_cmp_lt_u32 s58, s44")
    a("s_cbranch_scc1 LENC")
if OPT["padto"]:
    if OPT["padmin"]:
        a("s_mov_b32 s100, 0")
        a("s_atomic_add s100, s[84:85], 64 glc")
        a("s_waitcnt lgkmcnt(0)")
        a("s_not_b32 s100, s100")
    a.label("LPAD")
    a("s_memrealtime s[58:59]")
    a("s_waitcnt lgkmcnt(0)")
    a("s_sub_u32 s58, s58, s100")
    a(f"s_cmp_lt_u32 s58, {OPT['padto']*100}")
    a("s_cbranch_scc1 LPAD")
if STAMPS:
    a("s_memrealtime s[58:59]")
    a("s_waitcnt lgkmcnt(0)")
    a("s_mov_b32 s87, s58")
    a("s_lshl_b32 s44, s2, 2")
    a("s_add_u32 s44, s44, s24")
    a("s_lshl_b32 s44, s44, 7")
    a(f"s_add_u32 s44, s44, {STAMP_OFF}")
    a("v_mov_b32 v8, 0")
    a("s_mov_b64 exec, 1")
    for i in range(24):
        a(f"v_mov_b32 v9, s{64+i}")
        a(f"buffer_store_dword v9, v8, s[12:15], s44 offen offset:{4*i}")
    a("v_mov_b32 v9, s100")
    a("buffer_store_dword v9, v8, s[12:15], s44 offen offset:96")
    for i, r in enumerate((57, 92, 57, 57, 57, 94)):
        a(f"v_mov_b32 v9, s{r}")
        a(f"buffer_store_dword v9, v8, s[12:15], s44 offen offset:{100+4*i}")
    if OPT["dbgout"]:
        a("s_or_b32 s44, s2, s24")
        a("s_cmp_eq_u32 s44, 0")
        a("s_cbranch_scc0 LEND")
        for i, r in enumerate((64, 65, 76, 77, 87)):
            a(f"s_sub_u32 s44, s{r}, s100")
            a("v_mov_b32 v9, s44")
            a(f"buffer_store_dword v9, v8, s[20:23], 0 offen offset:{4+4*i}")
        a("s_mov_b64 exec, 0xffff")
        a("v_lshlrev_b32 v10, 8, v1")
        a(f"s_mov_b32 s44, {CTR}")
        a("buffer_load_dwordx2 v[12:13], v10, s[12:15], s44 offen offset:16 sc1")
        a("s_waitcnt vmcnt(0)")
        a("v_cmp_gt_i32 s[46:47], v12, 0")
        a("v_cmp_gt_i32 s[48:49], v13, 0")
        a("s_mov_b64 exec, 1")
        a("v_mov_b32 v9, s46")
        a("buffer_store_dword v9, v8, s[20:23], 0 offen offset:24")
        a("v_mov_b32 v9, s48")
        a("buffer_store_dword v9, v8, s[20:23], 0 offen offset:28")
        for i, l in enumerate((0, 5, 10, 15)):
            for j in range(2):
                a(f"v_readlane_b32 s44, v{12+j}, {l}")
                a("s_add_u32 s44, s44, 100000")
                a("v_mov_b32 v9, s44")
                a(f"buffer_store_dword v9, v8, s[20:23], 0 offen offset:{32+8*i+4*j}")
    a("s_waitcnt vmcnt(0)")
a.label("LEND")
a("s_endpgm")

hdr = open("cdna_kernels/" + NAME + ".s.ref").read().split("\n")
top = [l for l in hdr if l.startswith(";") and "@launch" not in l]
out = "\n".join(top) + "\n"
out += f"; @launch grid=(256,1,1) block=(256,1,1) lds={LDS_SIZE}\n"
out += f""".amdgcn_target "amdgcn-amd-amdhsa--gfx950"
.text
.globl {NAME}_kernel
.p2align 8
.type {NAME}_kernel,@function
"""
out += a.text()
out += f""".section .rodata,"a"
.p2align 6
.amdhsa_kernel {NAME}_kernel
  .amdhsa_next_free_vgpr 512
  .amdhsa_next_free_sgpr 102
  .amdhsa_accum_offset 256
  .amdhsa_group_segment_fixed_size 0
  .amdhsa_kernarg_size 96
  .amdhsa_user_sgpr_count 2
  .amdhsa_user_sgpr_kernarg_segment_ptr 1
  .amdhsa_system_sgpr_workgroup_id_x 1
.end_amdhsa_kernel
"""
import re
if OPT["xl"]:
    out = re.sub(r"(buffer_load\S+ .*) sc1$", r"\1 sc0 sc1", out, flags=re.M)
if OPT["xs"]:
    out = re.sub(r"(buffer_store\S+ .*) sc1$", r"\1 sc0 sc1", out, flags=re.M)
open(sys.argv[1], "w").write(out)
```

```python
import sys, struct, math
from asmlib import Asm

NAME = "interleave_layers__gqa_block_cached__glu_gated_reglu__decode"
OPT = dict(stamps=0, p2rev=0, kvpol="nt", wpol="nt", wskip=0, vring="def", kring="nt", tfw=3, psleep=1, npf=0, thrp=80, pr=1110, eg=0, gv=8, xl=0, xs=0, padto=0, xnt=0, enc=0, wlate=2, e2g=1, q1w=1, lfirst=1, lrev=0, rn=1, rbal=1, hsw=0, sline=1, tk2=0, klate=1, wcl=0, hv=0, lv=8, alt=3, e1f=1, mixx=1, rot=0, padmin=0, cn=1, vote=1, avpol="def", forcecls=-1, dbgout=0, pfk="nt", pfv="def")
for arg in sys.argv[2:]:
    k, v = arg.split("=")
    OPT[k] = int(v) if v.lstrip("-").isdigit() else v
STAMPS = OPT["stamps"]
TKI = 2 if OPT["tk2"] else 1
KVPOL = "" if OPT["kvpol"] == "def" else " " + OPT["kvpol"]
WPOL = "" if OPT["wpol"] == "def" else " " + OPT["wpol"]
PFK = "" if OPT["pfk"] == "def" else " " + OPT["pfk"]
PFV = "" if OPT["pfv"] == "def" else " " + OPT["pfv"]


def f32(x):
    return "0x%08x" % struct.unpack("<I", struct.pack("<f", x))[0]


X0 = 0x1000
X5 = 0x9000
CTR = 0x11000
LB0 = 0x20000
LSTRIDE = 0xC0000
X1 = 0x0
X1S = 1280
X2 = 0x50000
X3 = 0x59000
X4 = 0xAA000
STAMP_OFF = 0x200000
WS_SIZE = 0x400000
RN = OPT["rn"]
NR = 14 - 2 * RN
NB = NR + 1
PB = 256 + 64 * NB
NP1 = 2048 - PB
TF = NP1 - OPT["tfw"] * 64
NP2 = 128 + TF // 2
THR0 = 32
THRS = (NP2 * OPT["thrp"] // 100 - THR0) // NB
WGU = 0
TS = 18432
WD = 73728
FB = 110592
HB = 111104
WO = 0
WOS = 8192
WQ = 49152
SA = 122880
CB1 = SA
CS1 = SA + 4096
XB = SA
OB = 127488
LSV = 128000
ONES = 129088
KL = 130304
LDS_SIZE = 163072

UNIT_STEP = 524288
DPPM = " row_mask:0xf bank_mask:0xf"
a = Asm()
stamp_n = [0]


def stamp(i):
    if not STAMPS:
        return
    a("s_memrealtime s[58:59]")
    a("s_waitcnt lgkmcnt(0)")
    lab = a.newlabel("st")
    a(f"s_mov_b32 s{64+12+i}, s58")
    a("s_cmp_eq_u32 s31, 0")
    a(f"s_cbranch_scc0 {lab}")
    a(f"s_mov_b32 s{64+i}, s58")
    a.label(lab)


def sstamp(reg):
    if True:
        return
    a("s_memrealtime s[58:59]")
    a("s_waitcnt lgkmcnt(0)")
    a(f"s_mov_b32 s{reg}, s58")


def logt():
    if STAMPS != 2:
        return
    a("s_memrealtime s[58:59]")
    a("s_waitcnt lgkmcnt(0)")
    a("s_mov_b32 m0, s93")
    a("s_add_u32 s93, s93, 1")
    a("s_min_u32 s93, s93, 63")
    a("v_writelane_b32 v51, s58, m0")


def R(kind, base, n=4):
    return f"{kind}[{base}:{base+n-1}]"


def srd(d, lo, hi, size):
    a(f"s_mov_b32 s{d}, s{lo}")
    a(f"s_and_b32 s{d+1}, s{hi}, 0xffff")
    a(f"s_mov_b32 s{d+2}, {size}")
    a(f"s_mov_b32 s{d+3}, 0x20000")


def srd_role(d, lo, hi, size):
    a(f"s_cselect_b32 s{d+2}, {size}, 0")
    a(f"s_mov_b32 s{d}, s{lo}")
    a(f"s_and_b32 s{d+1}, s{hi}, 0xffff")
    a(f"s_mov_b32 s{d+3}, 0x20000")


def ld(kind, reg, t, src, half, pol, tag):
    if OPT["lv"] and (t & 1) == 0 and tag is not None and str(tag[0]).startswith("R"):
        a(f"s_waitcnt vmcnt({OPT['lv']})")
    srd_, vo = {"K": ("s[4:7]", "v2"), "K2": ("s[60:63]", "v51"), "V": ("s[8:11]", "v3")}[src]
    a(f"buffer_load_dwordx4 {R(kind, reg+4*t)}, {vo}, {srd_}, s{32+2*half+(t>>2)} offen offset:{(t&3)*1024}{pol}", tag=tag)


VPOL = "" if OPT["vring"] == "def" else " nt"


def XPOL(i):
    return " nt" if (OPT["xnt"] >> i) & 1 else VPOL


def ldK(kind, base, t, tag):
    ld(kind, base, t, "K", 0, " nt", (tag, "K", t))


def ldV(kind, base, t, tag):
    ld(kind, base + 32, t, "V", 1, ("" if OPT["avpol"] == "def" else " nt") if kind == "a" else VPOL, (tag, "V", t))


def adv():
    for r in range(32, 36):
        a(f"s_add_u32 s{r}, s{r}, {UNIT_STEP}")


def setaddr(k, v):
    if v is not None:
        if OPT["hsw"]:
            a(f"s_or_b32 s34, s{v}, vcc_hi")
        elif v != 34:
            a(f"s_mov_b32 s34, s{v}")
        a("s_xor_b32 s35, s34, 4096")
    if k is not None:
        if OPT["hsw"]:
            a(f"s_or_b32 s32, s{k}, vcc_hi")
        elif k != 32:
            a(f"s_mov_b32 s32, s{k}")
        a("s_xor_b32 s33, s32, 4096")


def hswinit():
    if OPT["hsw"]:
        a("s_and_b32 vcc_hi, s24, 1")
        a("s_lshl_b32 vcc_hi, vcc_hi, 12")


def burst(kind, base, tag):
    for t in range(8):
        ldK(kind, base, t, tag)
    for t in range(8):
        ldV(kind, base, t, tag)
    adv()
    logt()


def waitq(tag, floor=0):
    if tag in a.vq:
        a.wait_vm(tag, floor)


def allreduce(op, v, t, first=0):
    steps = ["quad_perm:[1,0,3,2]", "quad_perm:[2,3,0,1]", "row_half_mirror", "row_mirror"]
    for s in steps[first:]:
        a(f"{op}_dpp v{v}, v{v}, v{v} {s}{DPPM}")
    rows(op, v, t)


def rows(op, v, t):
    a(f"v_mov_b32 v{t}, v{v}")
    a(f"v_permlane16_swap_b32 v{v}, v{t}")
    a(f"{op} v{v}, v{v}, v{t}")
    a(f"v_mov_b32 v{t}, v{v}")
    a(f"v_permlane32_swap_b32 v{v}, v{t}")
    a(f"{op} v{v}, v{v}, v{t}")


QE, QO, OA, MS, LS, NMC = 8, 12, 16, 20, 21, 22
DS_ = [24, 28, 32, 36]
TT = 40
TMP = 44


def unit2(K, V, kt=None, vt=None, rk=None, rv=None, hooks=None, tt=TT):
    if K is not None:
        if hooks:
            hooks[0]()
        for u in range(4):
            if kt:
                waitq(kt(2 * u + 1))
            d = R("v", DS_[u])
            a(f"v_mfma_f32_16x16x32_bf16 {d}, {R(K[0], K[1]+8*u)}, {R('v', QE)}, 0")
            a(f"v_mfma_f32_16x16x32_bf16 {d}, {R(K[0], K[1]+8*u+4)}, {R('v', QO)}, {d}")
            if rk:
                rk(2 * u)
                rk(2 * u + 1)
        order = [(0, 0), (1, 0), (2, 0), (0, 1), (1, 1), (2, 1), (0, 2), (1, 2), (3, 0), (2, 2), (0, 3), (3, 1),
                 (1, 3), (2, 3), (3, 2), None, (3, 3)]
        for o in order:
            if o is None:
                if V is not None:
                    a(f"v_max3_f32 v{TMP}, v{tt}, v{tt+1}, v{MS}")
                continue
            u, c = o
            qp = f"quad_perm:[{c},{c},{c},{c}]"
            if c == 0:
                a(f"v_mov_b32_dpp v{tt+u}, v{DS_[u]} {qp}{DPPM}")
            else:
                a(f"v_add_f32_dpp v{tt+u}, v{DS_[u]+c}, v{tt+u} {qp}{DPPM}")
    if V is None:
        return
    if K is None:
        a(f"v_max3_f32 v{TMP}, v{tt}, v{tt+1}, v{MS}")
    a(f"v_max3_f32 v{TMP}, v{TMP}, v{tt+2}, v{tt+3}")
    a(f"v_max_f32_dpp v{TMP}, v{TMP}, v{TMP} row_half_mirror{DPPM}")
    rows("v_max_f32", TMP, TMP + 1)
    a(f"v_sub_f32 v{TMP+1}, v{MS}, v{TMP}")
    a(f"v_mul_f32 v{TMP+1}, s30, v{TMP+1}")
    a(f"v_exp_f32 v{TMP+1}, v{TMP+1}")
    a(f"v_mov_b32 v{MS}, v{TMP}")
    a(f"v_mul_f32 v{NMC}, s30, v{TMP}")
    for u in range(4):
        a(f"v_fma_f32 v{tt+u}, v{tt+u}, s30, -v{NMC}")
    for u in range(4):
        a(f"v_exp_f32 v{tt+u}, v{tt+u}")
    a(f"v_mul_f32 v{LS}, v{LS}, v{TMP+1}")
    for r in range(4):
        a(f"v_mul_f32 v{OA+r}, v{OA+r}, v{TMP+1}")
    a(f"v_add_f32 v{TMP+2}, v{tt}, v{tt+1}")
    a(f"v_add_f32 v{TMP+3}, v{tt+2}, v{tt+3}")
    for u in range(4):
        a(f"v_cvt_pk_bf16_f32 v{tt+u}, v{tt+u}, v{tt+u}")
    a(f"v_add_f32 v{TMP+2}, v{TMP+2}, v{TMP+3}")
    a(f"v_add_f32 v{LS}, v{LS}, v{TMP+2}")

    def buildB(t):
        b = DS_[t & 3]
        p = tt + (t >> 1)
        for i in range(4):
            own = (i < 2) == ((t & 1) == 0)
            if own:
                a(f"v_and_b32 v{b+i}, v{p}, v{4+i}")
            else:
                sh = "row_shr:4" if (t & 1) == 0 else "row_shl:4"
                a(f"v_and_b32_dpp v{b+i}, v{p}, v{4+i} {sh}{DPPM} bound_ctrl:1")

    buildB(0)
    if hooks:
        hooks[1]()
    for t in range(8):
        if t + 1 < 8:
            buildB(t + 1)
        if vt:
            waitq(vt(t))
        a(f"v_mfma_f32_16x16x32_bf16 {R('v', OA)}, {R(V[0], V[1]+4*t)}, {R('v', DS_[t&3])}, {R('v', OA)}")
        if rv:
            rv(t)


def unit(kind, base, tag, reload_tag=None, hooks=None):
    rk = rv = None
    if reload_tag is not None:
        rk = lambda t: ldK(kind, base, t, reload_tag)
        rv = lambda t: ldV(kind, base, t, reload_tag)
    unit2((kind, base), (kind, base + 32), lambda t: (tag, "K", t), lambda t: (tag, "V", t), rk, rv, hooks)


probe_k = [0]


def probe(kind="V"):
    k = probe_k[0]
    probe_k[0] += 1
    srd_, base = ("s[8:11]", 55) if kind == "V" else ("s[4:7]", 96)
    for c in ((0, 1) if k & 1 else (1, 0)):
        a(f"s_add_u32 s50, s57, {(c ^ 1)*8192 + k*1152}")
        a("s_memtime s[52:53]")
        a("s_waitcnt lgkmcnt(0)")
        a(f"s_buffer_load_dword s51, {srd_}, s50")
        a("s_waitcnt lgkmcnt(0)")
        a("s_memtime s[50:51]")
        a("s_waitcnt lgkmcnt(0)")
        a("s_sub_u32 s50, s50, s52")
        a(f"s_min_u32 s{base+c}, s{base+c}, s50")


def qtags(tag):
    return [(tag, "K", t) for t in range(8)] + [(tag, "V", t) for t in range(8)]


RING = [64, 128, 192]


def bf16r(d, s):
    a(f"v_cvt_pk_bf16_f32 v{d}, v{s}, v{s}")
    a(f"v_and_b32 v{d}, 0xffff0000, v{d}")


def afrag_addr(v, base_sgpr=None, base=0):
    a(f"v_lshrrev_b32 v{v}, 4, v1")
    a(f"v_lshlrev_b32 v{v}, 4, v{v}")
    if base:
        a(f"v_add_u32 v{v}, {base}, v{v}")
    if base_sgpr is not None:
        a(f"v_add_u32 v{v}, s{base_sgpr}, v{v}")


def lng_addr():
    a("v_add_u32 v2, s44, v3")
    a("v_mov_b32 v57, s44")
    a(f"v_mov_b32 v58, {ONES}")
    a("s_mov_b32 s46, 0x00020002")
    a("s_mov_b32 s47, 0x00020002")
    a("v_cndmask_b32 v57, v57, v58, s[46:47]")
    a("v_lshrrev_b32 v58, 4, v1")
    a("v_lshl_add_u32 v57, v58, 4, v57")
    a("v_lshlrev_b32 v58, 3, v1")
    a("v_add_u32 v58, s45, v58")


def lngemv():
    S, nk, T, acc = 4, 18, 8, 60
    s, q, t, t2, one = 48, 49, 50, 51, 52
    f = []
    for i in range(8):
        f.append(f"v_dot2c_f32_bf16 v{s}, v{40+i}, v{one}")
        f.append(f"v_dot2c_f32_bf16 v{q}, v{40+i}, v{40+i}")
    f.append("s_nop 1")
    for st in ("quad_perm:[1,0,3,2]", "quad_perm:[2,3,0,1]", "row_half_mirror", "row_mirror"):
        f.append(f"v_add_f32_dpp v{s}, v{s}, v{s} {st}{DPPM}")
        f.append(f"v_add_f32_dpp v{q}, v{q}, v{q} {st}{DPPM}")
    f.append(f"v_permlane16_swap_b32 v{s}, v{q}")
    f.append(f"v_add_f32 v{s}, v{s}, v{q}")
    f.append(f"v_mov_b32 v{t}, v{s}")
    f.append(f"v_permlane32_swap_b32 v{s}, v{t}")
    f.append(f"v_add_f32 v{s}, v{s}, v{t}")
    f.append(f"v_mul_f32 v{s}, {f32(1.0/576)}, v{s}")
    f.append(f"v_mov_b32 v{q}, v{s}")
    f.append(f"v_permlane16_swap_b32 v{s}, v{q}")
    f.append(f"v_fma_f32 v{q}, -v{s}, v{s}, v{q}")
    f.append(f"v_max_f32 v{q}, 0, v{q}")
    f.append(f"v_cvt_pk_bf16_f32 v{q}, v{s}, v{q}")
    f.append(f"v_lshlrev_b32 v{s}, 16, v{q}")
    f.append(f"v_and_b32 v{q}, 0xffff0000, v{q}")
    for op in (f"v_add_f32 v{q}, {f32(1e-5)}, v{q}", f"v_sqrt_f32 v{q}, v{q}"):
        f.append(op)
        f.append(f"v_cvt_pk_bf16_f32 v{q}, v{q}, v{q}")
        f.append(f"v_and_b32 v{q}, 0xffff0000, v{q}")
    f.append(f"v_rcp_f32 v{q}, v{q}")

    def issue(kk):
        z = T + 8 * (kk % S)
        a(f"ds_read_b128 {R('v', z)}, v57 offset:{kk*64}")
        a(f"ds_read_b64_tr_b16 {R('v', z+4, 2)}, v58 offset:{kk*1024}")
        a(f"ds_read_b64_tr_b16 {R('v', z+6, 2)}, v58 offset:{kk*1024+512}")

    for r in range(4):
        a(f"v_mov_b32 v{44+r}, 0")
    a("ds_read_b128 v[40:43], v2")
    a("s_mov_b64 exec, 0xff")
    a("ds_read_b128 v[44:47], v2 offset:1024")
    a("s_mov_b64 exec, -1")
    for kk in range(S):
        issue(kk)
    a(f"v_mov_b32 v{s}, 0")
    a(f"v_mov_b32 v{q}, 0")
    a(f"v_mov_b32 v{one}, 0x3f803f80")
    per = -(-len(f) // (nk // 2 + 1))
    for kk in range(0, nk, 2):
        a(f"s_waitcnt lgkmcnt({3*(min(nk, kk+S)-kk-2)})")
        for k2 in (kk, kk + 1):
            z = T + 8 * (k2 % S)
            c = "0" if k2 == 0 else R("v", acc)
            a(f"v_mfma_f32_16x16x32_bf16 {R('v', acc)}, {R('v', z)}, {R('v', z+4)}, {c}")
        for k2 in (kk, kk + 1):
            if k2 + S < nk:
                issue(k2 + S)
        for _ in range(per):
            if f:
                a(f.pop(0))
    while f:
        a(f.pop(0))
    a(f"v_fma_f32 v60, -v{s}, v61, v60")
    a(f"v_mul_f32 v60, v60, v{q}")


def retry(lab_again, lab_done):
    a("s_cmp_eq_u32 s38, 0")
    a(f"s_cbranch_scc1 {lab_done}")
    a("s_sub_u32 s38, s38, 1")
    if OPT["psleep"]:
        a(f"s_sleep {OPT['psleep']}")
    a(f"s_branch {lab_again}")


def combine(CB, CS):
    a("v_lshlrev_b32 v8, 2, v0")
    a(f"v_add_u32 v8, {CB}, v8")
    a("s_lshr_b32 s44, s24, 1")
    a("s_lshl_b32 s44, s44, 5")
    a(f"s_add_u32 s44, s44, {CS}")
    a("v_mov_b32 v9, s44")
    a("ds_read_b128 v[12:15], v9")
    a("ds_read_b128 v[16:19], v9 offset:16")
    for w in range(4):
        a(f"ds_read_b32 v{20+w}, v8 offset:{w*1024}")
    a("s_waitcnt lgkmcnt(4)")
    a("v_max3_f32 v26, v12, v14, v16")
    a("v_max_f32 v26, v26, v18")
    for w in range(4):
        a(f"v_sub_f32 v{12+2*w}, v{12+2*w}, v26")
    for w in range(4):
        a(f"v_exp_f32 v{12+2*w}, v{12+2*w}")
    a("v_mul_f32 v27, v13, v12")
    for w in range(1, 4):
        a(f"v_fmac_f32 v27, v{13+2*w}, v{12+2*w}")
    a("s_waitcnt lgkmcnt(0)")
    a("v_mul_f32 v24, v20, v12")
    for w in range(1, 4):
        a(f"v_fmac_f32 v24, v{20+w}, v{12+2*w}")


def qpoll_issue():
    a("buffer_load_dwordx4 v[24:27], v32, s[12:15], s45 offen sc1", tag="qp")
    a("buffer_load_dwordx4 v[28:31], v32, s[12:15], s45 offen offset:16 sc1", tag="qp")


def qpoll_addr(xoff):
    a("s_lshl_b32 s45, s25, 11")
    a(f"s_add_u32 s45, s45, {xoff}")
    a("v_bfe_u32 v32, v1, 3, 1")
    a("v_lshlrev_b32 v32, 10, v32")
    a("v_lshrrev_b32 v33, 4, v1")
    a("v_lshl_add_u32 v32, v33, 8, v32")
    a("v_bfe_u32 v33, v1, 1, 1")
    a("v_lshl_add_u32 v32, v33, 7, v32")
    a("v_and_b32 v33, 1, v1")
    a("v_lshl_add_u32 v32, v33, 5, v32")


def qpoll_check():
    a("v_cmp_ne_u32 s[46:47], s29, v25")
    a("v_cmp_ne_u32 s[48:49], s29, v27")
    a("v_cmp_ne_u32 s[50:51], s29, v29")
    a("v_cmp_ne_u32 s[52:53], s29, v31")
    a("s_or_b64 s[46:47], s[46:47], s[48:49]")
    a("s_or_b64 s[50:51], s[50:51], s[52:53]")
    a("s_or_b64 s[46:47], s[46:47], s[50:51]")


VL = 50


def unit_drain(base):
    def pwait(last):
        labs = [a.newlabel("dw") for _ in range(RN - 1)]
        for p in range(RN - 1):
            a(f"s_cmp_eq_u32 s93, {p}")
            a(f"s_cbranch_scc1 {labs[p]}")
        a(f"s_waitcnt vmcnt({last})")
        for p in reversed(range(RN - 1)):
            a.label(labs[p])
            a(f"s_waitcnt vmcnt({last + 16*(RN-1-p)})")
    if RN == 1:
        a.vq = qtags("R0") + ["cnt"]
        unit("v", base, "R0", None)
        return
    a.vq = []
    unit("v", base, "none", None, hooks=(lambda: pwait(9), lambda: pwait(1)))


def kloc(i):
    return ("a", 32 * i) if i < 8 else ("v", 64 + 64 * RN + 32 * (i - 8))


def swapreduce(b):
    a(f"v_permlane32_swap_b32 v{b}, v{b+1}")
    a(f"v_permlane32_swap_b32 v{b+2}, v{b+3}")
    a(f"v_add_f32 v{b}, v{b}, v{b+1}")
    a(f"v_add_f32 v{b+2}, v{b+2}, v{b+3}")
    a(f"v_permlane16_swap_b32 v{b}, v{b+2}")
    a(f"v_add_f32 v{b}, v{b}, v{b+2}")


def kofs():
    a("v_bfe_u32 v40, v1, 2, 2")
    a("v_lshlrev_b32 v2, 8, v40")
    a("v_lshrrev_b32 v40, 4, v1")
    a("v_lshl_add_u32 v2, v40, 6, v2")
    a("v_and_b32 v40, 3, v1")
    a("v_lshl_add_u32 v2, v40, 4, v2")


def masks():
    a("v_and_b32 v40, 1, v1")
    a("v_lshlrev_b32 v40, 4, v40")
    a("v_mov_b32 v41, 0xffff")
    a("v_lshlrev_b32 v40, v40, v41")
    for i in range(4):
        m = 0x03030303 << (2 * i)
        a(f"s_mov_b32 s46, 0x{m:08x}")
        a(f"s_mov_b32 s47, 0x{m:08x}")
        a(f"v_cndmask_b32 v{4+i}, 0, v40, s[46:47]")


def loopconsts():
    kofs()
    masks()


def qprep(xoff):
    a("s_mul_i32 s44, s24, 1152")
    a(f"s_add_u32 s44, s44, {XB}")
    a(f"s_mul_i32 s45, s24, {TS}")
    a(f"s_add_u32 s45, s45, {WQ}")
    lng_addr()
    a("s_lshl_b32 s54, s28, 3")
    a("s_add_u32 s54, s54, s27")
    a("s_sub_u32 s54, s54, 24")
    a("s_lshl_b32 s54, s54, 2")
    a("s_add_u32 s54, s54, s24")
    a("s_lshl_b32 s54, s54, 7")
    a(f"s_add_u32 s54, s54, {xoff}")


def ones_init():
    for r in range(4):
        a(f"v_mov_b32 v{16+r}, 0x3f803f80")
    a(f"v_add_u32 v20, {ONES}, v3")
    a("ds_write_b128 v20, v[16:19]")
    a("s_mov_b64 exec, 0xff")
    a("ds_write_b128 v20, v[16:19] offset:1024")
    a("s_mov_b64 exec, -1")


a.raw(f"{NAME}_kernel:")
a("s_cmp_ge_u32 s2, 256")
a("s_cbranch_scc1 LEND")
if STAMPS or OPT["padto"] or OPT["enc"]:
    a("s_memrealtime s[100:101]")
a("s_load_dwordx16 s[64:79], s[0:1], 0")
a("s_load_dwordx8 s[80:87], s[0:1], 64")
a("v_and_b32 v1, 63, v0")
a("v_lshrrev_b32 v40, 6, v0")
a("v_readfirstlane_b32 s24, v40")
a("s_and_b32 s28, s2, 7")
if OPT["rbal"]:
    a("s_lshr_b32 s27, s2, 4")
    a("s_and_b32 s44, s2, 15")
    a("s_lshl_b32 s44, s44, 1")
    a("s_add_u32 s27, s27, s44")
else:
    a("s_lshr_b32 s27, s2, 3")
    a("s_lshl_b32 s44, s28, 2")
    a("s_add_u32 s27, s27, s44")
a("s_and_b32 s27, s27, 31")
a("s_lshr_b32 s25, s2, 4")
a("s_and_b32 s26, s2, 15")
a(f"s_mov_b32 s30, {f32(math.log2(math.e)/math.sqrt(128.0))}")
a("s_mov_b32 s31, 0")
a("s_mov_b32 s38, 400000")
a(f"s_mov_b32 s39, {LB0}")
a("s_mov_b32 s42, 0xf0f0f0f0")
a("s_mov_b32 s43, 0xf0f0f0f0")
a("s_lshl_b32 s44, s26, 2")
a("s_add_u32 s44, s44, s24")
a("s_lshl_b32 s32, s44, 13")
hswinit()
setaddr(32, 32)
a("s_lshl_b32 s57, s44, 14")
a(f"s_add_u32 s57, s57, {1920*8192}")
a("s_mov_b32 s55, -1")
a("s_mov_b32 s56, -1")
a("s_mov_b32 s96, -1")
a("s_mov_b32 s97, -1")
a("v_lshlrev_b32 v3, 4, v1")
kofs()
a("s_waitcnt lgkmcnt(0)")
a("s_load_dword s29, s[86:87], 0")
if OPT["padmin"]:
    a("s_not_b32 s101, s100")
    a("s_atomic_umax s101, s[84:85], 64")
a("s_lshl_b32 s44, s25, 24")
a("s_add_u32 s4, s66, s44")
a("s_addc_u32 s5, s67, 0")
a("s_and_b32 s5, s5, 0xffff")
a("s_mov_b32 s6, 0x1000000")
a("s_mov_b32 s7, 0x20000")
a("s_add_u32 s8, s68, s44")
a("s_addc_u32 s9, s69, 0")
a("s_and_b32 s9, s9, 0xffff")
a("s_mov_b32 s10, 0x1000000")
a("s_mov_b32 s11, 0x20000")
srd(12, 86, 87, WS_SIZE)
a("s_cmp_ge_u32 s27, 24")
a("s_cbranch_scc0 LPRO1")
srd(60, 64, 65, 1152)
srd(92, 70, 71, 0 if OPT["wskip"] & 8 else 576 * 8192)
a("v_lshrrev_b32 v41, 3, v1")
a("v_lshlrev_b32 v40, 13, v41")
a("v_and_b32 v42, 7, v1")
a("v_lshl_add_u32 v40, v42, 4, v40")
a("s_lshl_b32 s46, s28, 3")
a("s_add_u32 s46, s46, s27")
a("s_sub_u32 s46, s46, 24")
a("s_lshl_b32 s44, s46, 7")
a(f"s_mul_i32 s45, s24, {144*8192}")
a("s_add_u32 s44, s44, s45")
for i in range(18):
    a(f"buffer_load_dwordx4 {R('v', 64+4*i)}, v40, s[92:95], s44 offen{WPOL}")
    a("s_add_u32 s44, s44, 65536")
a("buffer_load_dwordx4 v[8:11], v3, s[60:63], 0 offen")
a("buffer_load_dwordx4 v[12:15], v3, s[60:63], 0 offen offset:1024")
a("s_and_b32 s44, s46, 3")
a("s_or_b32 s44, s44, s24")
a("s_cmp_eq_u32 s44, 0")
a("s_cbranch_scc0 LPRO0")
a("v_and_b32 v40, 1, v1")
a("v_lshlrev_b32 v40, 12, v40")
a("v_bfe_u32 v43, v1, 1, 1")
a("v_lshl_add_u32 v40, v43, 13, v40")
a("v_lshrrev_b32 v43, 2, v1")
a("v_lshl_add_u32 v40, v43, 4, v40")
a("v_mov_b32 v36, 0\nv_mov_b32 v37, 0\nv_mov_b32 v38, 0\nv_mov_b32 v39, 0")
a("s_lshl_b32 s44, s46, 6")
a(f"s_add_u32 s44, s44, {CTR}")
a("s_mov_b64 exec, 0xff")
a("buffer_store_dwordx4 v[36:39], v40, s[12:15], s44 offen sc1")
a("s_mov_b64 exec, -1")
a.label("LPRO0")
a("v_lshrrev_b32 v40, 1, v42")
a(f"v_mul_u32_u24 v40, {TS}, v40")
a("v_and_b32 v43, 3, v41")
a("v_lshl_add_u32 v40, v43, 5, v40")
a("v_lshrrev_b32 v43, 2, v41")
a("v_lshl_add_u32 v40, v43, 9, v40")
a("v_and_b32 v42, 1, v42")
a("v_lshl_add_u32 v40, v42, 4, v40")
for k, reg in ((0, 41), (2, 42)):
    a("s_mul_i32 s44, s24, 18")
    a(f"s_add_u32 s44, s44, {k}")
    a("s_lshr_b32 s45, s44, 2")
    a("s_lshl_b32 s45, s45, 10")
    a("s_and_b32 s44, s44, 3")
    a("s_lshl_b32 s44, s44, 7")
    a("s_add_u32 s44, s44, s45")
    a(f"s_add_u32 s44, s44, {WQ}")
    a(f"v_add_u32 v{reg}, s44, v40")
ones_init()
a("s_waitcnt vmcnt(0) lgkmcnt(0)")
a("s_mul_i32 s29, s29, 0x9e3779b1")
a("s_add_u32 s29, s29, 0x7f4a7c15")
for i in range(18):
    a(f"ds_write_b128 v{41 + ((i>>1)&1)}, {R('v', 64+4*i)} offset:{(i>>2)*1024+(i&1)*128}")
a("s_waitcnt lgkmcnt(0)")
a("s_barrier")
qprep(X0)
a("s_call_b64 s[36:37], LQSTAGE")
kofs()
a("s_branch LPRO2")
a.label("LPRO1")
a("s_waitcnt lgkmcnt(0)")
ones_init()
a("s_mul_i32 s29, s29, 0x9e3779b1")
a("s_add_u32 s29, s29, 0x7f4a7c15")
a.label("LPRO2")
if STAMPS == 2:
    a("v_mov_b32 v51, 0")
    a("s_mov_b32 s93, 0")
sstamp(55)
a.vq = []
burst("a", 0, "A0")
a("s_cmp_eq_u32 s24, 0")
a("s_cbranch_scc0 LPRO3")
a("v_mov_b32 v24, -1\nv_mov_b32 v25, -1\nv_mov_b32 v26, -1\nv_mov_b32 v27, -1")
a("s_mul_i32 s44, s2, 6144")
a(f"s_add_u32 s44, s44, {LB0}")
a("s_add_u32 s45, s44, 4096")
keep = list(a.vq)
for i in range(6):
    a(f"buffer_store_dwordx4 v[24:27], v3, s[12:15], s{44+(i>>2)} offen offset:{1024*(i&3)} sc1")
a.vq = keep
a.label("LPRO3")
srd(16, 82, 83, 1152)
srd(20, 84, 85, 256)
masks()
a("s_lshl_b32 s44, s25, 8")
a(f"s_add_u32 s44, s44, {CTR}")
a("s_add_u32 s88, s86, s44")
a("s_addc_u32 s89, s87, 0")
sstamp(56)
keep = list(a.vq)
a("s_cmp_lt_u32 s27, 18")
a("s_cbranch_scc0 LWB")
srd(60, 76, 77, 0 if OPT["wskip"] & 2 else 576 * 9216)
srd(92, 78, 79, 0 if OPT["wskip"] & 2 else 576 * 9216)
a("v_lshrrev_b32 v41, 2, v1")
a("v_and_b32 v42, 3, v1")
a("v_mul_u32_u24 v40, 9216, v41")
a("v_lshl_add_u32 v40, v42, 4, v40")
a("s_mul_i32 s46, s28, 18")
a("s_add_u32 s46, s46, s27")
a("s_lshl_b32 s44, s46, 6")
a(f"s_mul_i32 s45, s24, {144*9216}")
a("s_add_u32 s44, s44, s45")
for i in range(0 if OPT["wlate"] & 1 else 9):
    a(f"buffer_load_dwordx4 {R('v', 64+8*i)}, v40, s[60:63], s44 offen{WPOL}")
    a(f"buffer_load_dwordx4 {R('v', 68+8*i)}, v40, s[92:95], s44 offen{WPOL}")
    a(f"s_add_u32 s44, s44, {16*9216}")
a(f"v_mul_u32_u24 v43, {TS}, v42")
a("v_and_b32 v42, 3, v41")
a("v_lshl_add_u32 v43, v42, 5, v43")
a("v_bfe_u32 v42, v41, 2, 1")
a("v_lshl_add_u32 v43, v42, 9, v43")
a("v_lshrrev_b32 v42, 3, v41")
a("v_lshl_add_u32 v43, v42, 7, v43")
for k, reg in ((1, 34), (0, 43)):
    a("s_mul_i32 s44, s24, 9")
    a(f"s_add_u32 s44, s44, {k}")
    a("s_lshr_b32 s45, s44, 1")
    a("s_lshl_b32 s45, s45, 10")
    a("s_and_b32 s44, s44, 1")
    a("s_lshl_b32 s44, s44, 8")
    a("s_add_u32 s44, s44, s45")
    a(f"v_add_u32 v{reg}, s44, v43")
srd(60, 80, 81, 0 if OPT["wskip"] & 4 else 4608 * 1152)
a(f"s_mul_i32 s44, s46, {32*1152}")
a("s_mul_i32 s45, s24, 9216")
a("s_add_u32 s44, s44, s45")
a("s_add_u32 s45, s44, 4096")
a("s_add_u32 s46, s44, 8192")
for i in range(0 if OPT["wlate"] & 2 else 9):
    a(f"buffer_load_dwordx4 {R('v', 136+4*i)}, v3, s[60:63], s{44+(i>>2)} offen offset:{(i&3)*1024}{WPOL}")
a("s_branch LWDONE")
a.label("LWB")
a("s_cmp_lt_u32 s27, 30")
a("s_cbranch_scc0 LWDONE")
srd(60, 72, 73, 0 if OPT["wskip"] & 1 else 4096 * 1152)
a("v_lshrrev_b32 v41, 4, v1")
a("v_and_b32 v42, 15, v1")
a("v_mul_u32_u24 v40, 1152, v41")
a("v_lshl_add_u32 v40, v42, 4, v40")


def brole():
    a("s_sub_u32 s47, s27, 18")
    a("s_lshl_b32 s46, s28, 1")
    a("s_cmp_ge_u32 s47, 6")
    a("s_addc_u32 s46, s46, 0")
    a("s_cmp_ge_u32 s47, 6")
    a("s_cselect_b32 s48, 6, 0")
    a("s_sub_u32 s47, s47, s48")


brole()
a("s_lshl_b32 s44, s46, 8")
a("s_lshl_b32 s45, s24, 6")
a("s_add_u32 s44, s44, s45")
a("s_mul_i32 s44, s44, 1152")
a("s_mul_i32 s45, s47, 192")
a("s_add_u32 s44, s44, s45")
a("s_mov_b32 exec_lo, 0x0fff0fff")
a("s_mov_b32 exec_hi, 0x0fff0fff")
for i in range(16):
    a(f"buffer_load_dwordx4 {R('v', 64+4*i)}, v40, s[60:63], s44 offen{WPOL}")
    a(f"s_add_u32 s44, s44, {4*1152}")
a("s_mov_b64 exec, -1")
a("v_lshrrev_b32 v43, 1, v42")
a(f"v_mul_u32_u24 v43, {WOS}, v43")
a("v_lshl_add_u32 v43, v41, 5, v43")
a("v_and_b32 v42, 1, v42")
a("v_lshl_add_u32 v43, v42, 4, v43")
a("s_lshl_b32 s45, s24, 11")
a("v_add_u32 v43, s45, v43")
a.label("LWDONE")
a.vq = keep
sstamp(57)
PR = str(OPT["pr"]).zfill(4)
for _ in range(int(PR[0])):
    probe()
a.wait_vm_n(30)
burst("a", 64, "A1")
for _ in range(int(PR[1])):
    probe()
a.wait_vm_n(30)
burst("a", 128, "A2")
for _ in range(int(PR[2])):
    probe()
qpoll_addr(X0)
a.wait_vm_n(40)
qpoll_issue()
burst("a", 192, "A3")
for _ in range(int(PR[3])):
    probe()
if not OPT["klate"]:
    probe("K")
a.wait_vm_n(50)
a("s_cmp_lt_u32 s27, 18")
a("s_cbranch_scc0 LWB2")
for i in range(0 if OPT["wlate"] & 1 else 9):
    a(f"ds_write_b128 v{34 if i & 1 else 43}, {R('v', 64+8*i)} offset:{(i>>1)*1024}")
    a(f"ds_write_b128 v{34 if i & 1 else 43}, {R('v', 68+8*i)} offset:{(i>>1)*1024+16}")
a("s_mul_i32 s44, s24, 9216")
a(f"s_add_u32 s44, s44, {WD}")
a("v_add_u32 v40, s44, v3")
for i in range(0 if OPT["wlate"] & 2 else 9):
    a(f"ds_write_b128 v40, {R('v', 136+4*i)} offset:{i*1024}")
a("s_branch LWDONE2")
a.label("LWB2")
a("s_cmp_lt_u32 s27, 30")
a("s_cbranch_scc0 LWDONE2")
a("s_mov_b32 exec_lo, 0x0fff0fff")
a("s_mov_b32 exec_hi, 0x0fff0fff")
for i in range(16):
    a(f"ds_write_b128 v43, {R('v', 64+4*i)} offset:{(i&1)*512+((i>>1)&3)*128+(i>>3)*1024}")
a("s_mov_b64 exec, -1")
a.label("LWDONE2")
a(f"v_mov_b32 v{VL}, 0")
a("s_mov_b32 s91, 0")
a("s_mov_b32 s92, 0")
a("s_mov_b32 s94, 0")
a("s_mov_b32 s95, 7")
a("s_waitcnt lgkmcnt(0)")
a.wait_vm("qp")
if STAMPS:
    a("s_memrealtime s[58:59]")
    a("s_waitcnt lgkmcnt(0)")
    a("s_mov_b32 s75, s58")
qpoll_check()
a("s_cbranch_scc0 LQREADY")

a.label("LQPOLL")
qpoll_issue()
a("s_waitcnt vmcnt(0)")
qpoll_check()
a("s_cbranch_scc0 LQREADY")
retry("LQPOLL", "LQREADY")
a.label("LQREADY")
if OPT["q1w"]:
    a("s_cmp_eq_u32 s31, 0")
    a("s_cbranch_scc1 LQREADY2")
    for i in range(4):
        a(f"ds_write_b32 v33, v{24+2*i} offset:{256*i}")
    a("s_waitcnt lgkmcnt(0)")
    a("s_barrier")
    a.label("LQREADY2")
hswinit()
for i in range(4):
    a(f"v_cndmask_b32 v{QE+i}, v{24+2*i}, 0, s[42:43]")
    a(f"v_cndmask_b32 v{QO+i}, 0, v{24+2*i}, s[42:43]")
for r in range(4):
    a(f"v_mov_b32 v{OA+r}, 0")
a(f"v_mov_b32 v{MS}, {f32(-1e30)}")
a(f"v_mov_b32 v{LS}, 0")
stamp(0)
a("s_cmp_eq_u32 s31, 0")
a("s_cbranch_scc0 LP2")
if OPT["vote"]:
    a("s_getreg_b32 s47, hwreg(HW_REG_XCC_ID)")
    a("s_bfe_u32 s47, s47, 0x10002")
    for d, (x, y) in ((44, (55, 56)),) if OPT["klate"] else ((48, (96, 97)), (44, (55, 56))):
        a(f"s_sub_i32 s{d}, s{x}, s{y}")
        a(f"s_min_i32 s{d}, s{d}, 300")
        a(f"s_max_i32 s{d}, s{d}, -300")
        a(f"s_sub_i32 s45, 0, s{d}")
        a("s_cmp_eq_u32 s47, 0")
        a(f"s_cselect_b32 s{d}, s{d}, s45")
    a("s_mov_b32 s46, s44")
    a("s_atomic_add s46, s[88:89], 16 glc")
    if not OPT["klate"]:
        a("s_atomic_add s48, s[88:89], 20")
    if RN > 1:
        a(f"s_mov_b32 s90, {TKI}")
        a("s_atomic_add s90, s[88:89], 0 glc")
    a("s_waitcnt lgkmcnt(0)")
    a("s_add_i32 s44, s44, s46")
    a("s_cmp_gt_i32 s44, 0")
    a("s_cselect_b32 s44, 1, 0")
    a("s_xor_b32 s44, s44, s47")
else:
    a("s_cmp_gt_u32 s55, s56")
    a("s_cselect_b32 s44, 1, 0")
if OPT["forcecls"] == 2:
    a("s_xor_b32 s44, s44, 1")
a("s_lshl_b32 s45, s44, 2")
a("s_add_u32 s45, s45, 4")
a("s_mov_b32 s46, 1")
a("s_atomic_add s46, s[88:89], s45 glc")
a("s_mov_b32 s61, 0")
a("s_mov_b32 s62, 0")
a("s_mov_b32 s63, 1")
a("s_mov_b32 s98, 13")
a("s_mov_b32 s99, 0")
a(f"s_mov_b32 s96, {NP1}")
a("s_waitcnt lgkmcnt(0)")
a("s_cmp_lt_u32 s46, 32")
a("s_cbranch_scc1 LBUN")
a("s_xor_b32 s44, s44, 1")
a("s_xor_b32 s45, s45, 12")
a("s_mov_b32 s46, 1")
a("s_atomic_add s46, s[88:89], s45 glc")
a("s_waitcnt lgkmcnt(0)")
a.label("LBUN")
a("s_lshl_b32 s57, s46, 1")
a("s_add_u32 s57, s57, s44")
a("s_add_u32 s57, s57, 256")
a("s_lshl_b32 s57, s57, 13")
a("s_mov_b32 s55, -1")
a("s_mov_b32 s37, -1")
a(f"s_mov_b32 s56, {PB}")
a("s_mov_b32 s60, 0")
a(f"s_mov_b32 s54, {TF}")
a("s_mov_b32 s36, 0")
a("s_mov_b32 s101, 0")
a("s_mov_b32 s97, 0")
a("s_mov_b32 s41, 0")
a("s_cmp_eq_u32 s24, 0")
a("s_cbranch_scc0 LNOCNT")
a("s_mov_b32 s48, 1")
a("s_atomic_add s48, s[84:85], 0")
a.label("LNOCNT")
a.vq = qtags("A3")


def tkreq():
    if OPT["sline"]:
        a("s_lshr_b32 s59, s61, 11")
        a("s_atomic_add s90, s[88:89], s59 glc")
    else:
        a("s_atomic_add s90, s[88:89], s61 glc")


def xaddr(reg, i):
    a(f"s_add_u32 s{reg}, s57, {i*UNIT_STEP}")
    if (1 + (i >> 2)) & 1:
        a(f"s_xor_b32 s{reg}, s{reg}, 8192")


def baddr(i):
    xaddr(32, 2 * i)
    xaddr(34, 2 * i + 1)
    setaddr(32, 34)


def draw(s, exhausted):
    ln, lg, lo = a.newlabel("noapp"), a.newlabel("go"), a.newlabel("tok")
    a("s_cmp_lt_u32 s90, s96")
    a(f"s_cbranch_scc1 {lo}")
    a("s_cmp_lg_u32 s63, 0")
    a(f"s_cbranch_scc1 {exhausted}")
    a("s_add_u32 s63, s63, 1")
    a("s_mov_b32 s62, 0")
    a("s_xor_b32 s61, s61, 8192")
    a(f"s_mov_b32 s90, {TKI}")
    tkreq()
    a("s_waitcnt lgkmcnt(0)")
    a("s_cmp_lt_u32 s90, s96")
    a(f"s_cbranch_scc0 {exhausted}")
    a.label(lo)
    a("s_cmp_ge_u32 s90, s60")
    a("s_cselect_b32 s32, s56, 0")
    a("s_add_u32 s32, s32, s90")
    a("s_lshl_b32 s33, s32, 6")
    a("s_xor_b32 s33, s33, s61")
    a("s_and_b32 s33, s33, s99")
    a("s_lshl_b32 s32, s32, s98")
    a("s_add_u32 s32, s32, s33")
    a(f"s_bitset0_b32 s97, {s}")
    a("s_cmp_ge_u32 s90, s54")
    a(f"s_cbranch_scc0 {ln}")
    a(f"s_bitset1_b32 s97, {s}")
    a("s_mov_b32 m0, s94")
    a("s_nop 0")
    a(f"v_writelane_b32 v{VL}, s32, m0")
    a("s_add_u32 s94, s94, 1")
    a("s_cmp_lt_u32 s94, 60")
    a(f"s_cbranch_scc1 {ln}")
    if OPT["tk2"]:
        a("s_bitcmp0_b32 s90, 0")
        a(f"s_cbranch_scc1 {ln}")
    a("s_mov_b32 s90, 0x7fffffff")
    a("s_add_u32 s63, s63, 1")
    a(f"s_branch {lg}")
    a.label(ln)
    if OPT["tk2"]:
        a("s_add_u32 s90, s90, 1")
        a("s_bitcmp1_b32 s90, 0")
        a(f"s_cbranch_scc1 {lg}")
    a("s_xor_b32 s61, s61, s62")
    if OPT["eg"]:
        a(f"s_add_u32 s90, s90, {OPT['eg']}")
        a("s_cmp_ge_u32 s90, s96")
        a("s_cselect_b32 s41, 1, 0")
        a(f"s_cbranch_scc1 {lg}")
    a(f"s_mov_b32 s90, {TKI}")
    tkreq()
    a.label(lg)


def ticket_ready():
    if OPT["eg"]:
        lk = a.newlabel("tk")
        a("s_cmp_eq_u32 s41, 0")
        a(f"s_cbranch_scc1 {lk}")
        a(f"s_waitcnt vmcnt({OPT['gv']})")
        a("s_sub_u32 s41, s41, 1")
        a(f"s_mov_b32 s90, {TKI}")
        tkreq()
        a.label(lk)
    a("s_waitcnt lgkmcnt(0)")


def abody(i, xslot=None):
    baddr(i)

    def rl(hf, t):
        if xslot is not None:
            ld("v", RING[xslot] + 32 * hf, t, "V", hf, XPOL(2 * i + hf), ("X", 2 * i + hf, t))
        ld("a", 64 * i + 32 * hf, t, "K", hf, " nt", ("BK", 2 * i + hf, t))
    a.wait_vm_n(31)
    unit2(("a", 64 * i), ("a", 64 * i + 32), lambda t: (f"A{i}", "K", t), lambda t: (f"A{i}", "V", t),
          lambda t: rl(0, t), lambda t: rl(1, t))
    logt()


def kburst(i):
    baddr(i)
    a.wait_vm_n(47)
    for hf in range(2):
        k = kloc(2 * i + hf)
        for t in range(8):
            ld(k[0], k[1], t, "K", hf, " nt", ("BK", 2 * i + hf, t))


def dbody(d, slot, nxt):
    sl = RING[slot]
    if nxt[0] == "X":
        j = nxt[1]
        baddr(j)
        rka = lambda t: ld("v", sl, t, "V", 0, XPOL(2 * j), ("X", 2 * j, t))
        rkb = lambda t: ld("v", sl + 32, t, "V", 1, XPOL(2 * j + 1), ("X", 2 * j + 1, t))
    else:
        if nxt == "L":
            xaddr(32, NR)
        else:
            le, lc = a.newlabel("dex"), a.newlabel("dco")
            ticket_ready()
            draw(slot, le)
            a(f"s_branch {lc}")
            a.label(le)
            a(f"s_bitset0_b32 s95, {slot}")
            a("s_mov_b32 s32, 0x1000000")
            a.label(lc)
        setaddr(32, 32)
        rka = lambda t: ldK("v", sl, t, nxt)
        rkb = lambda t: ldV("v", sl, t, nxt)
    a.wait_vm_n(47)
    unit2(kloc(2 * d), ("v", sl), lambda t: ("BK", 2 * d, t), lambda t: ("X", 2 * d, t), None, rka)
    unit2(kloc(2 * d + 1), ("v", sl + 32), lambda t: ("BK", 2 * d + 1, t), lambda t: ("X", 2 * d + 1, t), None, rkb)
    logt()


if RN == 3:
    abody(0, 0), abody(1, 1), abody(2, 2), abody(3)
    dbody(0, 0, ("X", 3)), dbody(1, 1, "L"), dbody(2, 2, "P"), dbody(3, 0, "P")
    LSLOT = 1
elif RN == 2:
    abody(0, 0), abody(1, 1)
    dbody(0, 0, ("X", 2)), abody(2), dbody(1, 1, ("X", 3)), abody(3), kburst(4)
    dbody(2, 0, ("X", 4)), dbody(3, 1, "L"), dbody(4, 0, "P")
    LSLOT = 1
else:
    abody(0, 0), abody(1, 1), abody(2, 2), abody(3)
    dbody(0, 0, ("X", 3))
    for d, slot, j in ((1, 1, 4), (2, 2, 5)):
        baddr(j)
        a.wait_vm_n(47)
        for hf in range(2):
            unit2(kloc(2 * d + hf), ("v", RING[slot] + 32 * hf), lambda t: ("BK", 2 * d + hf, t), lambda t: ("X", 2 * d + hf, t), None,
                  lambda t: ld("v", RING[slot] + 32 * hf, t, "K", hf, " nt", ("BK", 2 * j + hf, t)))
        if d == 1:
            dbody(3, 0, ("X", 4))
    dbody(4, 0, ("X", 5)), dbody(5, 0, "L")
    LSLOT = 0
a("s_lshl_b32 s44, s24, 13")
a(f"s_add_u32 s44, s44, {KL}")
a("v_add_u32 v40, s44, v3")
if OPT["klate"]:
    a("s_lshl_b32 s44, s26, 2")
    a("s_add_u32 s44, s44, s24")
    a("s_lshl_b32 s44, s44, 14")
    a("s_getreg_b32 s47, hwreg(HW_REG_XCC_ID)")
    a("s_bfe_u32 s47, s47, 0x10002")
    a("s_waitcnt lgkmcnt(0)")
    for c in (0, 1, 0):
        a(f"s_add_u32 s50, s44, {1920*8192 + (c ^ 1)*8192 + probe_k[0]*1152}")
        probe_k[0] += 1
        a("s_memtime s[52:53]")
        a("s_waitcnt lgkmcnt(0)")
        a("s_buffer_load_dword s51, s[4:7], s50")
        a("s_waitcnt lgkmcnt(0)")
        a("s_memtime s[50:51]")
        a("s_waitcnt lgkmcnt(0)")
        a(f"s_sub_u32 s{45+c}, s50, s52")
    a("s_sub_i32 s48, s45, s46")
    a("s_min_i32 s48, s48, 300")
    a("s_max_i32 s48, s48, -300")
    a("s_sub_i32 s45, 0, s48")
    a("s_cmp_eq_u32 s47, 0")
    a("s_cselect_b32 s48, s48, s45")
    a("s_atomic_add s48, s[88:89], 20")
if RN == 1:
    a(f"s_mov_b32 s90, {TKI}")
    a("s_atomic_add s90, s[88:89], 0 glc")
waitq(("L", "K", 7))
for t in range(8):
    a(f"ds_write_b128 v40, {R('v', RING[LSLOT]+4*t)} offset:{t*1024}")
if STAMPS:
    a("s_memrealtime s[58:59]")
    a("s_waitcnt lgkmcnt(0)")
    a("s_mov_b32 s75, s58")
a(f"s_branch LRING{LSLOT}")
a.label("LP2")
if OPT["enc"]:
    a("s_memrealtime s[64:65]")
if STAMPS == 2:
    a("v_mov_b32 v51, 0")
    a("s_mov_b32 s93, 0")
a("s_mov_b32 s3, 0")
a(f"s_mov_b32 s56, {PB//2 - 128}")
a("s_mov_b32 s60, 128")
a("s_mov_b32 s41, 0")
a("s_mov_b32 s54, -1")
a("s_mov_b32 s101, 0")
a("s_mov_b32 s36, 0")
a(f"s_mov_b32 s37, {OPT['cn']}")
a("s_and_b32 s3, s3, s36")
sloc = lambda i: kloc(i) if i < NR else ("a", 0)
for i in range(NB + 1):
    a(f"s_mov_b32 s55, {THR0 + i*THRS}")
    a("s_add_u32 s36, s36, 1")
    a("s_branch LRINGGO")
    a.label(f"LRET{i+1}")
    a.vq = []
    if i > 0:
        def vwait():
            l0, l1 = a.newlabel("sw"), a.newlabel("sw")
            a("s_cmp_ge_u32 s101, 2")
            a(f"s_cbranch_scc1 {l0}")
            a("s_cmp_eq_u32 s101, 1")
            a(f"s_cbranch_scc1 {l1}")
            a("s_waitcnt vmcnt(0)")
            a.label(l1)
            a("s_waitcnt vmcnt(16)")
            a.label(l0)
            a("s_waitcnt vmcnt(32)")
        if i == NR:
            a("s_lshl_b32 s44, s24, 13")
            a(f"s_add_u32 s44, s44, {KL}")
            a("v_add_u32 v40, s44, v3")
            for t in range(8):
                a(f"ds_read_b128 {R('a', 4*t)}, v40 offset:{t*1024}")
        unit2(None, sloc(i - 1), hooks=(None, vwait), tt=52)
    if i < NB:
        xaddr(34, i)
        setaddr(None, 34)
        if i == NR:
            a("s_waitcnt lgkmcnt(0)")
        a.wait_vm_n(55)
        unit2(sloc(i), None, None, None, lambda t: ld(sloc(i)[0], sloc(i)[1], t, "V", 1, XPOL(i), None), tt=52)
        a("s_mov_b32 s101, 0")
a("s_mov_b32 s55, -1")
a("s_mov_b32 s37, -1")
a.label("LRINGGO")
for q in range(RN - 1):
    a(f"s_cmp_eq_u32 s3, {q}")
    a(f"s_cbranch_scc1 LRING{q}")
a(f"s_branch LRING{RN-1}")
a.label("LPASSEND")
stamp(1)
if STAMPS == 2:
    a("s_lshl_b32 s44, s31, 8")
    a("s_add_u32 s44, s44, s2")
    a("s_lshl_b32 s44, s44, 10")
    a(f"s_add_u32 s44, s44, {STAMP_OFF+0x40000}")
    a("v_lshlrev_b32 v40, 2, v0")
    a("buffer_store_dword v51, v40, s[12:15], s44 offen")
a(f"v_add_f32_dpp v{LS}, v{LS}, v{LS} row_half_mirror{DPPM}")
rows("v_add_f32", LS, TMP)
a(f"v_mul_f32 v22, s30, v{MS}")
a(f"v_mov_b32 v23, v{LS}")
a("v_bfe_u32 v40, v1, 3, 1")
a("v_lshlrev_b32 v41, 9, v40")
a("v_lshrrev_b32 v42, 4, v1")
a("v_lshl_add_u32 v41, v42, 7, v41")
a("v_and_b32 v42, 7, v1")
a("v_lshl_add_u32 v41, v42, 2, v41")
a("s_lshl_b32 s44, s24, 10")
a(f"s_add_u32 s44, s44, {CB1}")
a("v_add_u32 v41, s44, v41")
for r in range(4):
    a(f"ds_write_b32 v41, v{OA+r} offset:{32*r}")
a("s_lshl_b32 s44, s24, 3")
a(f"s_add_u32 s44, s44, {CS1}")
a("v_lshlrev_b32 v40, 5, v40")
a("v_add_u32 v40, s44, v40")
a("ds_write_b64 v40, v[22:23]")
a("v_lshlrev_b32 v40, 2, v0")
a(f"v_add_u32 v40, {LSV}, v40")
a(f"ds_write_b32 v40, v{VL}")
a.label("LCNT")
a("s_waitcnt vmcnt(0)")
a("v_readfirstlane_b32 s44, v49")
a("s_cmp_ge_u32 s44, 256")
a("s_cbranch_scc1 LCNTOK")
a("v_mov_b32 v48, 0")
a("buffer_load_dword v49, v48, s[20:23], 0 offen sc1")
retry("LCNT", "LCNTOK")
a.label("LCNTOK")
a("s_waitcnt lgkmcnt(0)")
a("s_barrier")
combine(CB1, CS1)
a(f"s_mul_i32 s44, s2, {X1S}")
a("s_add_u32 s44, s44, s39")
a("v_lshlrev_b32 v8, 2, v0")
a("buffer_store_dword v24, v8, s[12:15], s44 offen sc1")
a("s_lshl_b32 s45, s24, 6")
a("v_mov_b32 v9, s45")
a("s_bitcmp0_b32 s24, 0")
a("s_cbranch_scc0 LPUB1")
a("s_mov_b64 exec, 1")
a("buffer_store_dwordx2 v[26:27], v9, s[12:15], s44 offen offset:1024 sc1")
a("s_mov_b64 exec, -1")
a.label("LPUB1")
stamp(2)
a("s_cmp_eq_u32 s31, 0")
a("s_cbranch_scc0 LPUB2")
a("s_getreg_b32 s47, hwreg(HW_REG_XCC_ID)")
a("s_bfe_u32 s47, s47, 0x10002")
a("s_add_u32 s88, s88, 4096")
a("s_addc_u32 s89, s89, 0")
a("s_mov_b32 s63, 0")
a("s_cmp_gt_i32 s98, 0")
a("s_cselect_b32 s61, 1, 0")
a("s_xor_b32 s61, s61, s47")
a("s_lshl_b32 s61, s61, 13")
a("s_xor_b32 s98, s98, s99")
a("s_cmp_lt_i32 s98, 0")
a("s_cselect_b32 s62, 8192, 0")
a("s_mov_b32 s98, 14")
a("s_mov_b32 s99, 8192")
a(f"s_mov_b32 s90, {TKI}")
tkreq()
a.label("LPUB2")
a("s_cmp_lt_u32 s27, 18")
a("s_cbranch_scc1 LSTC")
a("s_cmp_lt_u32 s27, 30")
a("s_cbranch_scc0 LSTQ")
brole()
a(f"s_mul_i32 s48, s46, {16*X1S}")
a("s_add_u32 s48, s48, s39")
for g in range(1, 4):
    a(f"s_add_u32 s{48+g}, s48, {g*4*X1S}")
a("v_lshlrev_b32 v8, 2, v0")
a("v_and_b32 v9, 15, v1")
a(f"v_mul_u32_u24 v9, {X1S}, v9")
a("s_lshr_b32 s44, s24, 1")
a("s_lshl_b32 s44, s44, 7")
a("v_add_u32 v9, s44, v9")
a("v_lshlrev_b32 v10, 1, v0")
a(f"v_add_u32 v10, {OB}, v10")
a(f"s_mul_i32 s44, s24, {2*WOS}")
a("v_lshlrev_b32 v58, 3, v1")
a("v_add_u32 v58, s44, v58")
afrag_addr(57, base=OB)
a.label("LE1")
a("buffer_load_dwordx2 v[28:29], v9, s[12:15], s48 offen offset:1024 sc1")
for p in range(16):
    a(f"buffer_load_dword v{12+p}, v8, s[12:15], s{48+(p>>2)} offen offset:{(p&3)*X1S} sc1")
a("s_waitcnt vmcnt(16)")
if OPT["e1f"]:
    a("v_cmp_u_f32 vcc, v28, v29")
    a("s_cbranch_vccnz LE1R")
ROWRED = ("quad_perm:[1,0,3,2]", "quad_perm:[2,3,0,1]", "row_half_mirror", "row_mirror")
a(f"v_max_f32_dpp v30, v28, v28 {ROWRED[0]}{DPPM}")
for st in ROWRED[1:]:
    a(f"v_max_f32_dpp v30, v30, v30 {st}{DPPM}")
a("v_sub_f32 v28, v28, v30")
a("v_exp_f32 v28, v28")
a("v_mul_f32 v29, v29, v28")
for st in ROWRED:
    a(f"v_add_f32_dpp v29, v29, v29 {st}{DPPM}")
a("v_rcp_f32 v29, v29")
a("v_mul_f32 v28, v28, v29")
a("s_waitcnt vmcnt(0)")
for p in range(16):
    op = "v_mul_f32_dpp" if p < 4 else "v_fmac_f32_dpp"
    a(f"{op} v{32+(p&3)}, v28, v{12+p} row_newbcast:{p}{DPPM}")
a("v_add_f32 v32, v32, v33")
a("v_add_f32 v34, v34, v35")
a("v_add_f32 v32, v32, v34")
a("v_cmp_u_f32 vcc, v32, v32")
a("s_cbranch_vccz LE1OK")
a.label("LE1R")
retry("LE1", "LE1OK")
a.label("LE1OK")
a("s_waitcnt vmcnt(0)")
stamp(3)
a("v_cvt_pk_bf16_f32 v32, v32, v32")
a("ds_write_b16 v10, v32")
a("s_waitcnt lgkmcnt(0)")
a("s_barrier")
a("s_cmp_eq_u32 s24, 3")
a("s_cbranch_scc1 LSTQ")


def b_issue(kk):
    s = 8 + 12 * (kk % 3)
    a(f"ds_read_b128 {R('v', s)}, v57 offset:{kk*64}")
    for t in range(2):
        a(f"ds_read_b64_tr_b16 {R('v', s+4+4*t, 2)}, v58 offset:{kk*1024+t*WOS}")
        a(f"ds_read_b64_tr_b16 {R('v', s+6+4*t, 2)}, v58 offset:{kk*1024+t*WOS+512}")


for kk in range(3):
    b_issue(kk)
for kk in range(8):
    a(f"s_waitcnt lgkmcnt({5*(min(8, kk+3)-kk-1)})")
    s = 8 + 12 * (kk % 3)
    for t in range(2):
        acc = R("v", 48 + 4 * t)
        a(f"v_mfma_f32_16x16x32_bf16 {acc}, {R('v', s)}, {R('v', s+4+4*t)}, {'0' if kk == 0 else acc}")
    if kk + 3 < 8:
        b_issue(kk + 3)
a("s_mul_i32 s44, s46, 2304")
a("s_mul_i32 s45, s47, 384")
a("s_add_u32 s44, s44, s45")
a("s_lshl_b32 s45, s24, 7")
a("s_add_u32 s44, s44, s45")
a("s_add_u32 s44, s44, s39")
a(f"s_add_u32 s44, s44, {X2}")
a("s_mov_b32 s48, 0xffff0000")
a("s_mov_b32 s49, 0xffff0000")
a("v_lshlrev_b32 v8, 2, v1")
a("v_cndmask_b32 v48, v48, v52, s[48:49]")
a("s_mov_b32 exec_hi, 0")
a("buffer_store_dword v48, v8, s[12:15], s44 offen sc1")
a("s_mov_b64 exec, -1")
stamp(4)
a("s_branch LSTQ")
a.label("LSTC")
if OPT["wlate"]:
    a("s_cmp_eq_u32 s31, 0")
    a("s_cbranch_scc0 LSTC0")
    a("s_load_dwordx2 s[32:33], s[0:1], 48")
    a("s_load_dwordx2 s[44:45], s[0:1], 56")
    a("s_load_dwordx2 s[48:49], s[0:1], 64")
    a("v_lshrrev_b32 v4, 2, v1")
    a("v_and_b32 v5, 3, v1")
    a("v_mul_u32_u24 v60, 9216, v4")
    a("v_lshl_add_u32 v60, v5, 4, v60")
    a(f"v_mul_u32_u24 v61, {TS}, v5")
    a("v_and_b32 v5, 3, v4")
    a("v_lshl_add_u32 v61, v5, 5, v61")
    a("v_bfe_u32 v5, v4, 2, 1")
    a("v_lshl_add_u32 v61, v5, 9, v61")
    a("v_lshrrev_b32 v5, 3, v4")
    a("v_lshl_add_u32 v61, v5, 7, v61")
    for k, reg in ((1, 62), (0, 61)):
        a("s_mul_i32 s52, s24, 9")
        a(f"s_add_u32 s52, s52, {k}")
        a("s_lshr_b32 s53, s52, 1")
        a("s_lshl_b32 s53, s53, 10")
        a("s_and_b32 s52, s52, 1")
        a("s_lshl_b32 s52, s52, 8")
        a("s_add_u32 s52, s52, s53")
        a(f"v_add_u32 v{reg}, s52, v61")
    a("s_mul_i32 s52, s24, 9216")
    a(f"s_add_u32 s53, s52, {WD}")
    a("v_add_u32 v63, s53, v3")
    a("s_mul_i32 s53, s28, 18")
    a("s_add_u32 s53, s53, s27")
    a(f"s_mul_i32 s54, s53, {32*1152}")
    a("s_add_u32 s54, s54, s52")
    a("s_lshl_b32 s53, s53, 6")
    a(f"s_mul_i32 s52, s24, {144*9216}")
    a("s_add_u32 s52, s52, s53")
    for d, size in ((32, 576 * 9216), (44, 576 * 9216), (48, 4608 * 1152)):
        a(f"s_mov_b32 s{d+2}, {size}")
        a(f"s_mov_b32 s{d+3}, 0x20000")
    a("s_waitcnt lgkmcnt(0)")
    for d in (32, 44, 48):
        a(f"s_and_b32 s{d+1}, s{d+1}, 0xffff")
    items = []
    if OPT["wlate"] & 1:
        for i in range(9):
            items += [("g", i), ("u", i)]
    if OPT["wlate"] & 2:
        items += [("d", i) for i in range(9)]
    W = 13

    def wl(n):
        kind, i = items[n]
        r = R("v", 8 + 4 * (n % W))
        if kind == "d":
            a(f"buffer_load_dwordx4 {r}, v3, s[48:51], s54 offen{WPOL}")
            a("s_add_u32 s54, s54, 1024")
        else:
            a(f"buffer_load_dwordx4 {r}, v60, {'s[32:35]' if kind == 'g' else 's[44:47]'}, s52 offen{WPOL}")
            if kind == "u":
                a(f"s_add_u32 s52, s52, {16*9216}")
    for n in range(min(W, len(items))):
        wl(n)
    for n in range(len(items)):
        a(f"s_waitcnt vmcnt({min(W, len(items) - n) - 1})")
        kind, i = items[n]
        r = R("v", 8 + 4 * (n % W))
        if kind == "d":
            a(f"ds_write_b128 v63, {r} offset:{i*1024}")
        else:
            a(f"ds_write_b128 v{62 if i & 1 else 61}, {r} offset:{(i>>1)*1024 + (16 if kind == 'u' else 0)}")
        if n + W < len(items):
            a("s_waitcnt lgkmcnt(0)")
            wl(n + W)
    a.label("LSTC0")
a(f"s_mov_b32 s44, {XB}")
a(f"s_mul_i32 s45, s24, {TS}")
lng_addr()
a("v_lshrrev_b32 v5, 4, v1")
a("v_lshlrev_b32 v4, 3, v5")
a("v_bfe_u32 v6, v1, 2, 2")
a("v_add_u32 v4, v4, v6")
a("v_mul_u32_u24 v4, 1152, v4")
a("v_and_b32 v6, 3, v1")
a("v_lshl_add_u32 v4, v6, 3, v4")
a("s_lshl_b32 s44, s24, 7")
a(f"s_add_u32 s44, s44, {WD}")
a("v_add_u32 v4, s44, v4")
a("v_lshlrev_b32 v5, 4, v5")
a(f"v_add_u32 v5, {HB}, v5")
a("s_lshl_b32 s44, s24, 4")
a(f"s_add_u32 s44, s44, {HB}")
a("v_lshlrev_b32 v6, 1, v1")
a("v_add_u32 v6, s44, v6")
a("v_lshrrev_b32 v7, 5, v1")
a("v_mul_u32_u24 v7, 18432, v7")
a("v_and_b32 v59, 31, v1")
a("v_lshl_add_u32 v7, v59, 2, v7")
a("s_mul_i32 s50, s28, 18")
a("s_add_u32 s50, s50, s27")
a("s_lshl_b32 s50, s50, 7")
a("s_mul_i32 s45, s24, 36864")
a("s_add_u32 s50, s50, s45")
a("s_add_u32 s50, s50, s39")
a(f"s_add_u32 s50, s50, {X3}")
a("s_mov_b32 s52, 0xffff0000")
a("s_mov_b32 s53, 0xffff0000")
a("s_mov_b32 s40, 0")
a("s_mov_b32 s41, -1")
a("s_cmp_eq_u32 s24, 3")
if OPT["e2g"]:
    a("s_cbranch_scc0 LC_G")
    a("v_and_b32 v8, 15, v1")
    a("v_mul_u32_u24 v8, 2304, v8")
    a("v_lshrrev_b32 v9, 4, v1")
    a("v_mul_u32_u24 v9, 384, v9")
    a("v_add_u32 v8, v8, v9")
    a(f"s_add_u32 s44, s39, {X2}")
    a("v_mov_b32 v11, 0")
    a.label("LE2W")
    a("buffer_load_dword v10, v8, s[12:15], s44 offen offset:256 sc1")
    if OPT["e2g"] == 2:
        a("s_mov_b32 exec_hi, 0")
        a("buffer_load_dword v11, v8, s[12:15], s44 offen offset:1792 sc1")
        a("s_mov_b64 exec, -1")
    a("s_waitcnt vmcnt(0)")
    a("v_cmp_u_f32 vcc, v10, v11")
    a("s_cbranch_vccz LE2WOK")
    retry("LE2W", "LE2WOK")
    a.label("LE2WOK")
    a("s_barrier")
    a("s_branch LC_BAR")
    a.label("LC_G")
else:
    a("s_cbranch_scc1 LC_BAR")
a("v_lshrrev_b32 v56, 4, v1")
a("v_mul_u32_u24 v56, 2304, v56")
a("v_and_b32 v8, 15, v1")
a("v_lshl_add_u32 v56, v8, 4, v56")
a("s_mul_i32 s48, s24, 768")
a("s_add_u32 s44, s48, s39")
a(f"s_add_u32 s44, s44, {X2}")
for g in range(1, 4):
    a(f"s_add_u32 s{44+g}, s44, {g*9216}")
a("v_bfe_u32 v9, v1, 4, 1")
a("v_lshlrev_b32 v9, 1, v9")
a("v_lshrrev_b32 v10, 5, v1")
a("v_add_u32 v9, v9, v10")
a("v_lshl_add_u32 v9, v8, 2, v9")
a("v_lshrrev_b32 v10, 5, v9")
a("v_lshlrev_b32 v10, 6, v10")
a("v_lshl_add_u32 v10, v9, 1, v10")
a(f"s_add_u32 s49, s48, {LB0+X4}")
a("s_lshr_b32 s48, s48, 1")
a("v_lshlrev_b32 v9, 1, v9")
a("v_add_u32 v9, s48, v9")
a(f"v_add_u32 v59, {XB}, v9")
a("s_cmp_eq_u32 s31, 0")
a("s_cbranch_scc0 LC_X2")
a("s_load_dwordx2 s[32:33], s[0:1], 0")
a("s_mov_b32 s34, 1152")
a("s_mov_b32 s35, 0x20000")
a("s_waitcnt lgkmcnt(0)")
a("s_and_b32 s33, s33, 0xffff")
for c in range(3):
    a(f"buffer_load_ushort v{60+c}, v9, s[32:35], 0 offen offset:{c*128}")
a("s_branch LC_X3")
a.label("LC_X2")
for c in range(3):
    a(f"buffer_load_ushort v{60+c}, v10, s[12:15], s49 offen offset:{c*256} sc1")
a.label("LC_X3")
a("s_waitcnt vmcnt(0)")
for c in range(3):
    a(f"v_lshlrev_b32 v{60+c}, 16, v{60+c}")
if OPT["e2g"]:
    a("s_barrier")
a.label("LE2")
for c in range(3):
    for g in range(4):
        a(f"buffer_load_dwordx4 {R('v', 8+16*c+4*g)}, v56, s[12:15], s{44+g} offen offset:{c*256} sc1")
for c in range(3):
    b = 8 + 16 * c
    a(f"s_waitcnt vmcnt({8-4*c})")
    for r in range(4):
        a(f"v_add_f32 v{b+r}, v{b+r}, v{b+4+r}")
        a(f"v_add_f32 v{b+8+r}, v{b+8+r}, v{b+12+r}")
    for r in range(4):
        a(f"v_add_f32 v{b+r}, v{b+r}, v{b+8+r}")
    if OPT["e1f"] and c < 2:
        a(f"v_cmp_u_f32 vcc, v{b}, v{b+3}")
        a("s_cbranch_vccnz LE2R")
    swapreduce(b)
a("v_add_f32 v9, v8, v24")
a("v_cmp_u_f32 vcc, v9, v40")
a("s_cbranch_vccz LE2OK")
a.label("LE2R")
retry("LE2", "LE2OK")
a.label("LE2OK")
a("s_waitcnt vmcnt(0)")
stamp(5)
for c in range(3):
    bf16r(8 + 16 * c, 8 + 16 * c)
for c in range(3):
    a(f"v_add_f32 v{60+c}, v{60+c}, v{8+16*c}")
for c in range(3):
    a(f"v_cvt_pk_bf16_f32 v{60+c}, v{60+c}, v{60+c}")
for c in range(3):
    a(f"ds_write_b16 v59, v{60+c} offset:{c*128}")
a.label("LC_BAR")
a("s_waitcnt lgkmcnt(0)")
a("s_barrier")
a("s_call_b64 s[36:37], LLNG")


def downB(i):
    for t in range(4):
        s = 8 + 16 * (i & 1) + 4 * t
        a(f"ds_read_b64_tr_b16 {R('v', s, 2)}, v4 offset:{i*512+t*32}")
        a(f"ds_read_b64_tr_b16 {R('v', s+2, 2)}, v4 offset:{i*512+t*32+4*1152}")


a(f"v_mov_b32_dpp v41, v60 row_shl:8{DPPM} bound_ctrl:1")
a("v_cvt_pk_bf16_f32 v41, v60, v41")
a("v_lshlrev_b32 v42, 16, v41")
a("v_and_b32 v41, 0xffff0000, v41")
a("v_max_f32 v42, 0, v42")
a("v_mul_f32 v41, v42, v41")
a("v_cvt_pk_bf16_f32 v41, v41, v41")
a("s_mov_b64 exec, 0xff")
a("ds_write_b16 v6, v41")
a("s_mov_b64 exec, -1")
downB(0)
a("s_waitcnt lgkmcnt(8)")
a("s_barrier")
a("ds_read_b128 v[60:63], v5")
a("s_waitcnt lgkmcnt(5)")
downB(1)


def downG(i, wait):
    a(f"s_waitcnt lgkmcnt({wait})")
    for t in range(4):
        s = 8 + 16 * (i & 1) + 4 * t
        a(f"v_mfma_f32_16x16x32_bf16 {R('v', 40+4*t)}, v[60:63], {R('v', s)}, 0")
    a("v_cndmask_b32 v40, v40, v44, s[52:53]")
    a("v_cndmask_b32 v48, v48, v52, s[52:53]")
    a("v_cndmask_b32 v40, v40, v48, s[40:41]")
    a("buffer_store_dword v40, v7, s[12:15], s50 offen sc1")
    a(f"s_add_u32 s50, s50, {4*36864}")


downG(0, 8)
a("s_cmp_eq_u32 s24, 0")
a("s_cbranch_scc1 LDOWN3")
downG(1, 0)
a("s_branch LSTD")
a.label("LDOWN3")
a("s_waitcnt lgkmcnt(0)")
downB(2)
downG(1, 8)
downG(2, 0)
a.label("LSTD")
stamp(6)
a("s_lshl_b32 s50, s27, 3")
a("s_add_u32 s50, s50, s28")
a("s_cmp_lt_u32 s50, 18")
a("s_cbranch_scc0 LSTQ")
a("s_mul_i32 s44, s50, 18432")
a("s_mul_i32 s45, s24, 4608")
a("s_add_u32 s44, s44, s45")
a("s_add_u32 s44, s44, s39")
a(f"s_add_u32 s44, s44, {X3}")
a("s_add_u32 s45, s44, 4096")
a("v_bfe_u32 v58, v1, 4, 1")
a("v_lshlrev_b32 v58, 1, v58")
a("v_lshrrev_b32 v59, 5, v1")
a("v_add_u32 v58, v58, v59")
a("v_and_b32 v59, 7, v1")
a("v_lshl_add_u32 v58, v59, 2, v58")
a("v_lshlrev_b32 v58, 2, v58")
a("s_lshl_b32 s46, s24, 7")
a(f"s_add_u32 s46, s46, {FB}")
a("v_add_u32 v58, s46, v58")
for r in range(4):
    a(f"v_mov_b32 v{24+r}, 0")
a.label("LE3")
for i in range(4):
    a(f"buffer_load_dwordx4 {R('v', 8+4*i)}, v3, s[12:15], s44 offen offset:{i*1024} sc1")
a("s_mov_b32 exec_hi, 0")
a("buffer_load_dwordx4 v[24:27], v3, s[12:15], s45 offen sc1")
a("s_mov_b64 exec, -1")
a("s_waitcnt vmcnt(0)")
for r in range(4):
    a(f"v_add_f32 v{8+r}, v{8+r}, v{12+r}")
    a(f"v_add_f32 v{16+r}, v{16+r}, v{20+r}")
for r in range(4):
    a(f"v_add_f32 v{8+r}, v{8+r}, v{24+r}")
for r in range(4):
    a(f"v_add_f32 v{8+r}, v{8+r}, v{16+r}")
swapreduce(8)
a(f"v_add_f32_dpp v8, v8, v8 row_ror:8{DPPM}")
a("v_cmp_u_f32 vcc, v8, v8")
a("s_cbranch_vccz LE3OK")
retry("LE3", "LE3OK")
a.label("LE3OK")
stamp(7)
a("ds_write_b32 v58, v8")
a("v_lshlrev_b32 v8, 2, v1")
a(f"v_add_u32 v9, {FB}, v8")
a("s_lshl_b32 s45, s50, 6")
a(f"s_add_u32 s46, s45, {XB}")
a("v_lshlrev_b32 v8, 1, v1")
a("v_add_u32 v10, s46, v8")
a("s_waitcnt lgkmcnt(0)")
a("s_barrier")
a("s_cmp_eq_u32 s24, 0")
a("s_cbranch_scc0 LSTQ")
a("s_mov_b32 exec_hi, 0")
for w in range(4):
    a(f"ds_read_b32 v{12+w}, v9 offset:{128*w}")
a("ds_read_u16 v16, v10")
a("s_waitcnt lgkmcnt(0)")
a("v_lshlrev_b32 v16, 16, v16")
a("v_add_f32 v12, v12, v13")
a("v_add_f32 v14, v14, v15")
a("v_add_f32 v12, v12, v14")
bf16r(12, 12)
a("v_add_f32 v12, v12, v16")
a(f"v_mov_b32_dpp v13, v12 quad_perm:[1,1,3,3]{DPPM}")
a("v_cvt_pk_bf16_f32 v12, v12, v13")
a("s_mov_b32 exec_lo, 0x55555555")
a("s_cmp_eq_u32 s31, 0")
a("s_cbranch_scc0 LFINAL")
a("s_lshl_b32 s45, s50, 7")
a("s_add_u32 s45, s45, s39")
a(f"s_add_u32 s45, s45, {X4}")
a("buffer_store_dword v12, v8, s[12:15], s45 offen sc1")
a("s_mov_b64 exec, -1")
a("s_branch LSTQ")
a.label("LFINAL")
a("buffer_store_dword v12, v8, s[16:19], s45 offen")
a("s_mov_b64 exec, 1")
a("s_cmp_eq_u32 s50, 0")
a("s_cbranch_scc0 LNOEP")
a("v_mov_b32 v9, s29")
a("buffer_store_dword v9, v8, s[12:15], 0 offen sc1")
a.label("LNOEP")
a("s_mov_b64 exec, -1")
a.label("LSTQ")
stamp(8)
a("s_cmp_eq_u32 s31, 0")
a("s_cbranch_scc0 LDONE")
if OPT["npf"]:
    a("s_cmp_lt_u32 s27, 18")
    a("s_cbranch_scc1 LQ5")
    a("v_lshlrev_b32 v34, 7, v1")
    a("s_lshl_b32 s44, s26, 2")
    a("s_add_u32 s44, s44, s24")
    a("s_lshl_b32 s44, s44, 13")
    for n in range(OPT["npf"]):
        a(f"s_add_u32 s45, s44, {(4+n)*UNIT_STEP}")
        a(f"buffer_load_dword v35, v34, s[4:7], s45 offen{PFK}")
        a(f"buffer_load_dword v36, v34, s[8:11], s45 offen{PFV}")
a("s_cmp_ge_u32 s27, 24")
a("s_cbranch_scc0 LQ5")
qprep(X5)
a("s_waitcnt lgkmcnt(0)")
a(f"s_add_u32 s44, s39, {X4}")
a("v_lshrrev_b32 v16, 2, v1")
a("v_lshlrev_b32 v16, 7, v16")
a("v_and_b32 v17, 3, v1")
a("v_lshl_add_u32 v16, v17, 4, v16")
for r in range(4):
    a(f"v_mov_b32 v{12+r}, 0")
a.label("LE4")
a("buffer_load_dwordx4 v[8:11], v16, s[12:15], s44 offen sc1")
a("s_mov_b64 exec, 0xff")
a("buffer_load_dwordx4 v[12:15], v16, s[12:15], s44 offen offset:2048 sc1")
a("s_mov_b64 exec, -1")
a("s_waitcnt vmcnt(0)")
a("v_max3_u32 v17, v8, v9, v10")
a("v_max3_u32 v18, v11, v12, v13")
a("v_max3_u32 v17, v17, v14, v15")
a("v_max_u32 v17, v17, v18")
a("v_cmp_eq_u32 vcc, -1, v17")
a("s_cbranch_vccz LE4OK")
retry("LE4", "LE4OK")
a.label("LE4OK")
stamp(9)
a("s_call_b64 s[36:37], LQSTAGE")
a.label("LQ5")
if STAMPS:
    a("s_memrealtime s[58:59]")
    a("s_waitcnt lgkmcnt(0)")
    a("s_mov_b32 s74, s58")
a("s_mov_b32 s31, 1")
a(f"s_add_u32 s39, s39, {LSTRIDE}")
loopconsts()
a(f"s_mov_b32 s96, {NP2}")
a("s_mov_b32 s91, 0")
a("s_mov_b32 s95, s97")
a("v_lshlrev_b32 v40, 2, v0")
a(f"v_add_u32 v40, {LSV}, v40")
a(f"ds_read_b32 v{VL}, v40")
qpoll_addr(X5)
a("v_lshlrev_b32 v33, 2, v1")
a(f"v_add_u32 v33, {SA}, v33")
a("s_waitcnt lgkmcnt(0)")
if OPT["q1w"]:
    a("s_cmp_eq_u32 s24, 0")
    a("s_cbranch_scc1 LQPOLL")
    a("s_barrier")
    for i in range(4):
        a(f"ds_read_b32 v{24+2*i}, v33 offset:{256*i}")
    a("s_waitcnt lgkmcnt(0)")
    a("s_branch LQREADY2")
else:
    a("s_branch LQPOLL")

a.label("LQSTAGE")
a("ds_write_b128 v2, v[8:11]")
a("s_mov_b64 exec, 0xff")
a("ds_write_b128 v2, v[12:15] offset:1024")
a("s_mov_b64 exec, -1")
a("s_mov_b64 s[52:53], s[36:37]")
a("s_waitcnt lgkmcnt(1)")
a("s_call_b64 s[36:37], LLNG")
a("v_lshlrev_b32 v8, 2, v1")
a("v_mov_b32 v11, s29")
a(f"v_mov_b32_dpp v9, v60 quad_perm:[1,1,3,3]{DPPM}")
a("v_cvt_pk_bf16_f32 v10, v60, v9")
a("s_mov_b64 exec, 0x5555")
a("buffer_store_dwordx2 v[10:11], v8, s[12:15], s54 offen sc1")
a("s_mov_b64 exec, -1")
a("s_setpc_b64 s[52:53]")

a.label("LLNG")
lngemv()
a("s_setpc_b64 s[36:37]")

a.vq = sum((qtags(f"R{q}") for q in range(RN)), [])
for s in range(RN):
    lp, lg, ln, lb, lx = (a.newlabel(x) for x in ("pool", "go", "noapp", "bonly", "next"))
    a.label(f"LRING{s}")
    a(f"s_mov_b32 s3, {s}")
    if OPT["hv"]:
        a(f"s_waitcnt vmcnt({OPT['hv']})")
    ticket_ready()
    if not OPT["lfirst"]:
        a("s_cmp_ge_u32 s90, s55")
        a("s_cbranch_scc1 LRINGX")
        a("s_cmp_ge_u32 s101, s37")
        a("s_cbranch_scc1 LRINGX")
    a("s_cmp_lt_u32 s91, s92")
    a(f"s_cbranch_scc0 {lp}")
    if OPT["lrev"]:
        a("s_sub_u32 s92, s92, 1")
        a(f"v_readlane_b32 s32, v{VL}, s92")
    else:
        a(f"v_readlane_b32 s32, v{VL}, s91")
        a("s_add_u32 s91, s91, 1")
    a(f"s_branch {lg}")
    a.label(lp)
    if OPT["lfirst"]:
        a("s_cmp_ge_u32 s90, s55")
        a("s_cbranch_scc1 LRINGX")
        a("s_cmp_ge_u32 s101, s37")
        a("s_cbranch_scc1 LRINGX")
    draw(s, f"LDRAINE{s}")
    a.label(lg)
    setaddr(32, 32)
    a("s_add_u32 s101, s101, 1")
    a(f"s_bitcmp1_b32 s95, {s}")
    a(f"s_cbranch_scc0 {lb}")
    unit("v", RING[s], f"R{s}", f"R{s}n")
    logt()
    q1 = [(t[0].rstrip("n"), t[1], t[2]) for t in a.vq]
    a(f"s_branch LRING{(s+1)%RN}")
    a.label(lb)
    a(f"s_bitset1_b32 s95, {s}")
    for t in range(8):
        ldK("v", RING[s], t, "x")
    for t in range(8):
        ldV("v", RING[s], t, "x")
    a(f"s_branch LRING{(s+1)%RN}")
    a.vq = q1
a.label("LRINGX")
for k in range(1, NB + 1):
    a(f"s_cmp_eq_u32 s36, {k}")
    a(f"s_cbranch_scc1 LRET{k}")
a(f"s_branch LRET{NB+1}")

for s in range(RN):
    a.label(f"LDRAINE{s}")
    a("v_mov_b32 v48, 0")
    a("buffer_load_dword v49, v48, s[20:23], 0 offen sc1")
    a("s_mov_b32 s93, 0")
    a("s_mov_b64 s[98:99], 0")
    a("s_atomic_add_x2 s[98:99], s[88:89], 16 glc")
    a("s_bcnt1_i32_b32 s44, s97")
    a("s_sub_u32 s92, s94, s44")
    a(f"s_branch LDRAIN{s}")
for s in range(RN):
    a.label(f"LDRAIN{s}")
    lsk = a.newlabel("dsk")
    a(f"s_bitcmp1_b32 s95, {s}")
    a(f"s_cbranch_scc0 {lsk}")
    unit_drain(RING[s])
    a.label(lsk)
    a("s_add_u32 s93, s93, 1")
    a(f"s_cmp_eq_u32 s93, {RN}")
    a("s_cbranch_scc1 LPASSEND")
a("s_branch LDRAIN0")

a.label("LDONE")
if OPT["enc"]:
    a("s_or_b32 s44, s2, s24")
    a("s_cmp_eq_u32 s44, 0")
    a("s_cbranch_scc0 LEND")
    a("s_memrealtime s[58:59]")
    a("s_waitcnt lgkmcnt(0)")
    a("s_sub_u32 s44, s58, s64")
    a("s_sub_u32 s44, s44, 4000")
    a("s_mul_hi_u32 s44, s44, 42949673")
    a(f"s_mul_i32 s44, s44, {5000 if OPT['enc'] == 1 else 0}")
    a("s_sub_u32 s45, s64, s100")
    a("s_add_u32 s44, s44, s45")
    a("s_add_u32 s44, s44, 12000")
    a.label("LENC")
    a("s_memrealtime s[58:59]")
    a("s_waitcnt lgkmcnt(0)")
    a("s_sub_u32 s58, s58, s100")
    a("s_cmp_lt_u32 s58, s44")
    a("s_cbranch_scc1 LENC")
if OPT["padto"]:
    if OPT["padmin"]:
        a("s_mov_b32 s100, 0")
        a("s_atomic_add s100, s[84:85], 64 glc")
        a("s_waitcnt lgkmcnt(0)")
        a("s_not_b32 s100, s100")
    a.label("LPAD")
    a("s_memrealtime s[58:59]")
    a("s_waitcnt lgkmcnt(0)")
    a("s_sub_u32 s58, s58, s100")
    a(f"s_cmp_lt_u32 s58, {OPT['padto']*100}")
    a("s_cbranch_scc1 LPAD")
if STAMPS:
    a("s_memrealtime s[58:59]")
    a("s_waitcnt lgkmcnt(0)")
    a("s_mov_b32 s87, s58")
    a("s_lshl_b32 s44, s2, 2")
    a("s_add_u32 s44, s44, s24")
    a("s_lshl_b32 s44, s44, 7")
    a(f"s_add_u32 s44, s44, {STAMP_OFF}")
    a("v_mov_b32 v8, 0")
    a("s_mov_b64 exec, 1")
    for i in range(24):
        a(f"v_mov_b32 v9, s{64+i}")
        a(f"buffer_store_dword v9, v8, s[12:15], s44 offen offset:{4*i}")
    a("v_mov_b32 v9, s100")
    a("buffer_store_dword v9, v8, s[12:15], s44 offen offset:96")
    for i, r in enumerate((57, 92, 57, 57, 57, 94)):
        a(f"v_mov_b32 v9, s{r}")
        a(f"buffer_store_dword v9, v8, s[12:15], s44 offen offset:{100+4*i}")
    if OPT["dbgout"]:
        a("s_or_b32 s44, s2, s24")
        a("s_cmp_eq_u32 s44, 0")
        a("s_cbranch_scc0 LEND")
        for i, r in enumerate((64, 65, 76, 77, 87)):
            a(f"s_sub_u32 s44, s{r}, s100")
            a("v_mov_b32 v9, s44")
            a(f"buffer_store_dword v9, v8, s[20:23], 0 offen offset:{4+4*i}")
        a("s_mov_b64 exec, 0xffff")
        a("v_lshlrev_b32 v10, 8, v1")
        a(f"s_mov_b32 s44, {CTR}")
        a("buffer_load_dwordx2 v[12:13], v10, s[12:15], s44 offen offset:16 sc1")
        a("s_waitcnt vmcnt(0)")
        a("v_cmp_gt_i32 s[46:47], v12, 0")
        a("v_cmp_gt_i32 s[48:49], v13, 0")
        a("s_mov_b64 exec, 1")
        a("v_mov_b32 v9, s46")
        a("buffer_store_dword v9, v8, s[20:23], 0 offen offset:24")
        a("v_mov_b32 v9, s48")
        a("buffer_store_dword v9, v8, s[20:23], 0 offen offset:28")
        for i, l in enumerate((0, 5, 10, 15)):
            for j in range(2):
                a(f"v_readlane_b32 s44, v{12+j}, {l}")
                a("s_add_u32 s44, s44, 100000")
                a("v_mov_b32 v9, s44")
                a(f"buffer_store_dword v9, v8, s[20:23], 0 offen offset:{32+8*i+4*j}")
    a("s_waitcnt vmcnt(0)")
a.label("LEND")
a("s_endpgm")

hdr = open("cdna_kernels/" + NAME + ".s.ref").read().split("\n")
top = [l for l in hdr if l.startswith(";") and "@launch" not in l]
out = "\n".join(top) + "\n"
out += f"; @launch grid=(256,1,1) block=(256,1,1) lds={LDS_SIZE}\n"
out += f""".amdgcn_target "amdgcn-amd-amdhsa--gfx950"
.text
.globl {NAME}_kernel
.p2align 8
.type {NAME}_kernel,@function
"""
out += a.text()
out += f""".section .rodata,"a"
.p2align 6
.amdhsa_kernel {NAME}_kernel
  .amdhsa_next_free_vgpr 512
  .amdhsa_next_free_sgpr 102
  .amdhsa_accum_offset 256
  .amdhsa_group_segment_fixed_size 0
  .amdhsa_kernarg_size 96
  .amdhsa_user_sgpr_count 2
  .amdhsa_user_sgpr_kernarg_segment_ptr 1
  .amdhsa_system_sgpr_workgroup_id_x 1
.end_amdhsa_kernel
"""
import re
if OPT["xl"]:
    out = re.sub(r"(buffer_load\S+ .*) sc1$", r"\1 sc0 sc1", out, flags=re.M)
if OPT["xs"]:
    out = re.sub(r"(buffer_store\S+ .*) sc1$", r"\1 sc0 sc1", out, flags=re.M)
open(sys.argv[1], "w").write(out)
```
